```python
import torch

def _softmax(x, axis=-1):
    return torch.softmax(x, dim=axis)

def _gelu(x):
    return torch.nn.functional.gelu(x, approximate='tanh')

def _silu(x):
    return torch.nn.functional.silu(x)

def _sigmoid(x):
    return torch.sigmoid(x)

def _layernorm(x, axis=-1, eps=1e-05):
    m = x.mean(dim=axis, keepdim=True)
    v = x.var(dim=axis, keepdim=True, unbiased=False)
    return (x - m) / torch.sqrt(v + eps)

def _scatter_add(tgt, idx, src, axis=0):
    return tgt.clone().index_add_(axis, idx, src)

def _segment_sum(src, seg, n):
    out = torch.zeros((n,) + src.shape[1:], dtype=src.dtype)
    return out.index_add_(0, seg, src)

def _pad(x, pw):
    flat = tuple((v for pair in reversed(pw) for v in pair))
    return torch.nn.functional.pad(x, flat)
kernel_name = 'parallel_sum__memory_aug_recurrent_mem_tr__moe_arch_mod__prompt'

def setup_inputs():

    _w = lambda a: (lambda t: t.to(torch.bfloat16) if t.is_floating_point() else t)(torch.as_tensor(a))

    def _A_setup():
        B, S, Dm = (1, 2048, 512)
        H, Dh = (32, 128)
        M, seg = (8, 32)
        seg = min(seg, S)
        S = S // seg * seg
        return {'x': _w((lambda *s: torch.randn(*s, dtype=torch.bfloat16) * 0.05)(B, S, Dm)), 'mem0': _w((lambda *s: torch.randn(*s, dtype=torch.bfloat16) * 1.6)(B, M, Dm)), 'Wq': _w((lambda *s: torch.randn(*s, dtype=torch.bfloat16) * 0.8)(Dm, H, Dh) * Dm ** (-0.5)), 'Wk': _w((lambda *s: torch.randn(*s, dtype=torch.bfloat16) * 0.8)(Dm, H, Dh) * Dm ** (-0.5)), 'Wv': _w((lambda *s: torch.randn(*s, dtype=torch.bfloat16) * 1.6)(Dm, H, Dh) * Dm ** (-0.5)), 'Wo': _w((lambda *s: torch.randn(*s, dtype=torch.bfloat16) * 1.6)(H, Dh, Dm) * (H * Dh) ** (-0.5)), 'seg_len': seg}
    _A_in = _A_setup()

    def _B_setup():
        B, S, D, F, C = (1, 2048, 512, 1792, 2)
        return {'x': _w((lambda *s: torch.randn(*s, dtype=torch.bfloat16) * 0.05)(B, S, D)), 'w_r': _w((lambda *s: torch.randn(*s, dtype=torch.bfloat16) * 0.05)(D)), 'w_gate': _w((lambda *s: torch.randn(*s, dtype=torch.bfloat16) * 0.05)(D, F)), 'w_up': _w((lambda *s: torch.randn(*s, dtype=torch.bfloat16) * 0.05)(D, F)), 'w_down': _w((lambda *s: torch.randn(*s, dtype=torch.bfloat16) * 0.05)(F, D))}
    _B_in = _B_setup()
    return {'A_x': _A_in['x'], 'A_mem0': _A_in['mem0'], 'A_Wq': _A_in['Wq'], 'A_Wk': _A_in['Wk'], 'A_Wv': _A_in['Wv'], 'A_Wo': _A_in['Wo'], 'A_seg_len': _A_in['seg_len'], 'B_x': _B_in['x'], 'B_w_r': _B_in['w_r'], 'B_w_gate': _B_in['w_gate'], 'B_w_up': _B_in['w_up'], 'B_w_down': _B_in['w_down']}

def reference(A_x, A_mem0, A_Wq, A_Wk, A_Wv, A_Wo, A_seg_len, B_x, B_w_r, B_w_gate, B_w_up, B_w_down):

    def _A_ref(x, mem0, Wq, Wk, Wv, Wo, seg_len):
        B, S, Dm = x.shape
        H, Dh = (Wq.shape[1], Wq.shape[2])
        M = mem0.shape[1]
        scale = Dh ** (-0.5)
        n_seg = S // seg_len
        L = M + seg_len
        idx = torch.arange(L)
        mask = (idx[:, None] < M) | (idx[:, None] >= idx[None, :])
        mem = mem0
        outs = []
        for s in range(n_seg):
            xs = x[:, s * seg_len:(s + 1) * seg_len, :].clone()
            h = torch.concatenate([mem, xs], axis=1)
            q = torch.einsum('btd,dhe->bhte', h, Wq)
            k = torch.einsum('btd,dhe->bhte', h, Wk)
            v = torch.einsum('btd,dhe->bhte', h, Wv)
            scores = torch.einsum('bhqe,bhke->bhqk', q, k) * scale
            scores = torch.where(mask[None, None], scores, -1000000000.0)
            p = _softmax(scores, axis=-1)
            o = torch.einsum('bhqk,bhke->bhqe', p, v)
            o = torch.einsum('bhte,hed->btd', o, Wo)
            mem = o[:, :M, :].clone()
            outs.append(o[:, M:, :])
        return torch.concatenate(outs, axis=1)

    def _B_ref(x, w_r, w_gate, w_up, w_down):
        B, S, D = x.shape
        C = 2
        r = x @ w_r
        idx = torch.argsort(-r, axis=-1)[:, :C]
        idx_e = (lambda x, n, axis: torch.repeat_interleave(x, n, dim=axis))(idx.reshape(B, C, 1), D, axis=2)
        x_sel = (lambda x, i, axis: torch.take_along_dim(x, i, dim=axis))(x, idx_e, axis=1)
        g = _silu(x_sel @ w_gate)
        u = x_sel @ w_up
        y = g * u @ w_down
        r_sel = _sigmoid((lambda x, i, axis: torch.take_along_dim(x, i, dim=axis))(r, idx, axis=1))
        y = y * r_sel.reshape(B, C, 1)
        b_off = (torch.arange(B) * S).reshape(B, 1)
        flat_idx = (idx + b_off).reshape(B * C)
        zero = (x * 0.0).reshape(B * S, D)
        upd = _scatter_add(zero, flat_idx, y.reshape(B * C, D), axis=0)
        return x + upd.reshape(B, S, D)
    x = A_x
    xn = _layernorm(x, axis=-1)
    return x + _A_ref(xn, A_mem0, A_Wq, A_Wk, A_Wv, A_Wo, A_seg_len) + _B_ref(xn, B_w_r, B_w_gate, B_w_up, B_w_down)
```

```python
import re
NAME = "parallel_sum__memory_aug_recurrent_mem_tr__moe_arch_mod__prompt"

_REG = re.compile(r"^(-|abs\()?([vas])(\d+|\[(\d+):(\d+)\])\)?$")

def regs_of(op):
    op = op.strip()
    if op in ("vcc",): return {("s", 106), ("s", 107)}
    if op == "vcc_lo": return {("s", 106)}
    if op == "vcc_hi": return {("s", 107)}
    if op == "exec": return {("s", 126), ("s", 127)}
    if op == "m0": return {("s", 124)}
    m = _REG.match(op)
    if not m: return set()
    k = m.group(2)
    if m.group(4) is not None:
        return {(k, i) for i in range(int(m.group(4)), int(m.group(5)) + 1)}
    return {(k, int(m.group(3)))}

TRANS = ("v_exp_f32", "v_log_f32", "v_rcp_f32", "v_rsq_f32", "v_sqrt_f32", "v_sin_f32", "v_cos_f32")

class Ins:
    __slots__ = ("text", "mn", "ops", "cls", "defs", "uses", "passes", "srcc", "srcab", "ws", "dpp", "wide")
    def __init__(self, text):
        self.text = text
        t = text.split(";")[0].strip()
        parts = t.split(None, 1)
        self.mn = mn = parts[0]
        rest = parts[1] if len(parts) > 1 else ""
        ops = [o.strip() for o in re.split(r",(?![^\[]*\])", rest)] if rest else []
        mods = ""
        if ops:
            last = ops[-1].split(None, 1)
            ops[-1] = last[0]
            mods = last[1] if len(last) > 1 else ""
        self.ops = ops
        self.defs = set(); self.uses = set(); self.passes = 0; self.srcc = set(); self.srcab = set()
        self.ws = 1; self.dpp = ("_dpp" in mn) or ("row_" in mods) or ("quad_perm" in mods); self.wide = False
        R = [regs_of(o) for o in ops]
        U = lambda xs: set().union(*xs) if xs else set()
        if mn.startswith("v_mfma") or mn.startswith("v_smfmac"):
            self.cls = "mfma"
            self.passes = 8 if "32x32" in mn else 4
            self.defs = R[0]
            if mn.startswith("v_smfmac"):
                self.srcc = R[0]; self.srcab = R[1] | R[2] | R[3]
            else:
                self.srcc = R[3]; self.srcab = R[1] | R[2]
            self.uses = self.srcc | self.srcab
        elif mn.startswith("v_"):
            self.cls = "trans" if any(mn.startswith(x) for x in TRANS) else "valu"
            if mn.startswith("v_permlane") and "swap" in mn:
                self.defs = R[0] | R[1]; self.uses = R[0] | R[1]
            elif mn.startswith("v_nop"):
                pass
            elif mn.startswith(("v_add_co", "v_sub_co", "v_addc_co", "v_subb_co", "v_div_scale", "v_mad_u64")):
                self.defs = R[0] | R[1]; self.uses = U(R[2:])
            else:
                self.defs = R[0]; self.uses = U(R[1:])
                if mn.startswith(("v_fmac", "v_dot2c", "v_pk_fmac", "v_writelane")) or self.dpp:
                    self.uses |= R[0]
                if mn.startswith("v_cmpx"): self.defs |= regs_of("exec")
                if mn.startswith("v_div_fmas"): self.uses |= regs_of("vcc")
        elif mn.startswith("ds_"):
            self.cls = "ds"
            if mn.startswith(("ds_read", "ds_bpermute", "ds_permute", "ds_swizzle")):
                self.defs = R[0]; self.uses = U(R[1:])
            else:
                self.uses = U(R)
        elif mn.startswith(("buffer_", "global_")):
            self.cls = "vmem"
            lds = bool(re.search(r"\blds\b", mods)) or "_lds_" in mn
            if "load" in mn and not lds:
                self.defs = R[0]; self.uses = U(R[1:])
            elif "atomic" in mn and mn.startswith("buffer_"):
                self.uses = U(R)
                if "sc0" in mods: self.defs = R[0]
            else:
                self.uses = U(R)
                if lds: self.uses |= regs_of("m0")
            if "store" in mn and ("x4" in mn or "x3" in mn):
                self.wide = True
        elif mn.startswith("s_"):
            self.cls = "salu"
            if mn == "s_nop": self.ws = int(ops[0], 0) + 1
            elif mn.startswith(("s_cmp", "s_cbranch", "s_branch", "s_waitcnt", "s_barrier", "s_endpgm", "s_sleep", "s_setprio", "s_bitcmp")):
                self.uses = U(R)
            else:
                self.defs = R[0] if R else set(); self.uses = U(R[1:])
                if "saveexec" in mn: self.defs |= regs_of("exec")
        else:
            raise ValueError("unknown instr " + text)

def need(p, c):
    n = 0
    vdefs = lambda i: {r for r in i.defs if r[0] != "s"}
    sdefs = lambda i: {r for r in i.defs if r[0] == "s"}
    isv = lambda i: i.cls in ("valu", "trans")
    if isv(p):
        d = vdefs(p)
        if c.cls == "mfma" and d & c.uses: n = max(n, 2)
        if p.cls == "trans" and c.cls in ("valu", "mfma", "ds", "vmem") and d & c.uses: n = max(n, 1)
        if isv(c) and d & c.uses:
            if c.mn.startswith("v_permlane") or c.dpp: n = max(n, 2)
            if c.mn.startswith(("v_readlane", "v_readfirstlane")): n = max(n, 1)
        sd = sdefs(p)
        if sd & c.uses:
            if isv(c): n = max(n, 4 if c.mn.startswith(("v_readlane", "v_writelane", "v_div_fmas")) else 2)
            if c.cls == "vmem": n = max(n, 5)
        if regs_of("exec") & sd:
            if c.cls == "mfma" or c.mn.startswith(("v_readlane", "v_readfirstlane", "v_writelane", "v_permlane")): n = max(n, 4)
            if c.dpp: n = max(n, 5)
    if p.cls == "mfma":
        big = {4: 8, 8: 12}[p.passes]; ovl = {4: 6, 8: 10}[p.passes]; war = {4: 3, 8: 7}[p.passes]
        if c.cls == "mfma":
            if p.defs & c.srcab: n = max(n, big)
            if p.defs & c.srcc and not (p.defs == c.srcc and p.mn == c.mn): n = max(n, ovl)
            if p.defs & c.defs and not (p.defs == c.srcc and p.mn == c.mn): n = max(n, ovl)
        elif isv(c) or c.cls in ("ds", "vmem"):
            if p.defs & (c.uses | c.defs): n = max(n, big)
            if isv(c) and p.srcc & c.defs: n = max(n, war)
    if p.cls == "vmem" and p.wide:
        data = regs_of(p.ops[0]) if p.mn.startswith("buffer_") else regs_of(p.ops[1])
        if data & c.defs: n = max(n, 2 if isv(c) else 1)
    if p.cls == "salu" and regs_of("m0") & p.defs and c.cls == "vmem" and regs_of("m0") & c.uses: n = max(n, 1)
    return n

class Asm:
    def __init__(self, autopad=True):
        self.items = []
        self.nlab = 0
        self.autopad = autopad
        self.pads = 0
    def _emit(self, ln):
        ins = Ins(ln)
        if self.autopad:
            dist = 0; req = 0; km = 0; nafter = 0
            for it in reversed(self.items):
                if isinstance(it, str): continue
                if it.mn in ("s_branch", "s_endpgm"): break
                d = dist
                if it.cls == "mfma" and km > 0: d = max(d, 4 * km + nafter)
                r = need(it, ins) - d
                if r > req: req = r
                dist += it.ws
                if it.cls == "mfma": km += 1
                elif km == 0: nafter += it.ws
                if dist >= 20: break
            if req > 0:
                self.items.append(Ins(f"s_nop {req-1}"))
                self.pads += req
        self.items.append(ins)
    def __call__(self, s):
        for ln in s.strip("\n").split("\n"):
            ln = ln.strip()
            if not ln or ln.startswith(";"): continue
            if ln.endswith(":"): self.label(ln[:-1])
            else: self._emit(ln)
    def label(self, n):
        self.items.append(n + ":")
    def newlabel(self, p="L"):
        self.nlab += 1
        return f"{p}_{self.nlab}"
    def raw(self, s):
        self.items.append(s)
    def check_branches(self):
        labels = {it[:-1]: i for i, it in enumerate(self.items) if isinstance(it, str) and it.endswith(":") and not it.startswith((".", ";"))}
        bad = []
        for i, it in enumerate(self.items):
            if isinstance(it, str) or not it.mn.startswith(("s_branch", "s_cbranch")): continue
            tgt = labels.get(it.ops[0])
            if tgt is None: raise ValueError("missing label " + it.ops[0])
            prods = []; dist = 0
            for p in reversed(self.items[:i + 1]):
                if isinstance(p, str): continue
                if p is not it and p.mn in ("s_branch", "s_endpgm"): break
                prods.append((p, dist)); dist += p.ws
                if dist >= 20: break
            d2 = 0
            for c in self.items[tgt:]:
                if isinstance(c, str): continue
                for p, dp in prods:
                    if need(p, c) > dp + d2: bad.append((p.text, c.text, need(p, c), dp + d2))
                d2 += c.ws
                if d2 >= 20 or c.mn in ("s_branch", "s_endpgm"): break
        return bad
    def text(self):
        bad = self.check_branches()
        assert not bad, bad
        return "\n".join(it if isinstance(it, str) else "    " + it.text for it in self.items) + "\n"

def v(n, cnt=1):
    return f"v{n}" if cnt == 1 else f"v[{n}:{n+cnt-1}]"
def a(n, cnt=1):
    return f"a{n}" if cnt == 1 else f"a[{n}:{n+cnt-1}]"
def s(n, cnt=1):
    return f"s{n}" if cnt == 1 else f"s[{n}:{n+cnt-1}]"

def kernel_begin(A, name):
    A.raw(f".globl {name}")
    A.raw(".p2align 8")
    A.raw(f".type {name},@function")
    A.raw(f"{name}:")

def descriptor(name, vgpr, sgpr, accum):
    return f""".p2align 6
.amdhsa_kernel {name}
  .amdhsa_next_free_vgpr {vgpr}
  .amdhsa_next_free_sgpr {sgpr}
  .amdhsa_accum_offset {accum}
  .amdhsa_group_segment_fixed_size 0
  .amdhsa_kernarg_size 120
  .amdhsa_user_sgpr_count 2
  .amdhsa_user_sgpr_kernarg_segment_ptr 1
  .amdhsa_system_sgpr_workgroup_id_x 1
  .amdhsa_float_denorm_mode_32 3
  .amdhsa_float_denorm_mode_16_64 3
.end_amdhsa_kernel
"""

def srd(A, d, b, nbytes):
    A(f"s_mov_b32 s{d}, s{b}")
    A(f"s_and_b32 s{d+1}, s{b+1}, 0xffff")
    A(f"s_mov_b32 s{d+2}, {nbytes:#x}")
    A(f"s_mov_b32 s{d+3}, 0x00020000")
```

```python
from asmlib import *

H2 = 0
H1 = 1 << 20
RES = (1 << 20) + (256 << 10)
XN = 2 << 20
KV = 16 << 20
QX = 50 << 20
MEMG = (1 << 20) + (512 << 10)
WS_BYTES = 256 << 20

L_MEM = 0; L_KX = 8192; L_VX = 16384; L_Q = 24576; L_K = 26880; L_O = 29184; L_ST = 31744; L_W = 32768
RS = 288; RSO = 320

rWS, rDBG, rW = 8, 12, 16
sX, sW, sT, sH = 20, 21, 22, 23
sStep, sTmp, sG, sTmp2 = 24, 25, 26, 27
sO1, sO1b, sO2, sO2b = 28, 29, 30, 31
sRd2, sPubO, sRst2, sRst1 = 32, 33, 34, 35
sKV, sMG, sC, sPerm0, sPerm1 = 36, 37, 38, 39, 40
sB = 44
sRetA, sRetB, sRet2 = 48, 49, 50
sMK, sMV, sRd, sPF = 41, 42, 100, 101
sSt = 56
SPIN = 400000
D_WIN, D_INIT, D_LN, D_MOE, D_MOEDONE = 4, 36, 68, 100, 132
D_KV, D_O = 8, 16
sRdy = 51

vIdx, vL16, vT16, vT16b, vT16c, vM1, vM2, vM3, vSt2, vQW, vQR, vOW, vOR = range(1, 14)
vT0, vT1, vPD = 0, 14, 15
MEMA = 16
ACCA = 48
ACCB = 56
STG = 64
POOL = 80
ACCV = 112
NEG = 120
S = MEMA
VMR = 124

LDSF = [("q",1,0),("k",0,0),
        ("q",0,4),("k",1,4),
        ("k",0,2),("q",1,3)]
LDSF += [("o", i >> 1, i & 1) for i in (0, 1, 2, 4, 6, 8, 10, 12, 13, 15)]
ALLF = [(m,t,sl) for m in "qkv" for sl in range(8) for t in range(2)] + [("o",t,k) for k in range(2) for t in range(8)]
HOME = {}
_n = 0
for f in ALLF:
    if f in LDSF: HOME[f] = ("l", LDSF.index(f))
    else:
        HOME[f] = ("a", 8*_n) if _n < 32 else ("v", 128 + 8*(_n-32)); _n += 1
assert _n == 48

def lds_frag_addr(idx, part):
    off = L_W + (2*idx + part) * 4096
    if off < 65536: return vT16, off
    if off < 131072: return vT16b, off - 65536
    return vT16c, off - 131072

class Cnt:
    def __init__(self, A, name, cap): self.A, self.name, self.cap, self.n = A, name, cap, 0
    def issue(self): self.n += 1; return self.n
    def wait(self, tok):
        k = self.n - tok
        if k <= self.cap: self.A(f"s_waitcnt {self.name}({k})")
        else: self.A(f"s_waitcnt {self.name}({self.cap})")

def role_select(A, lab_worker):
    A(f"""
    s_cmp_lg_u32 s{sW}, 0
    s_cbranch_scc1 L_role_wait
    s_mov_b64 exec, 1
    v_mov_b32 v3, 1
    s_lshl_b32 s{sTmp}, s{sX}, 5
    v_mov_b32 v4, s{sTmp}
    buffer_atomic_add v3, v4, {s(rDBG,4)}, 0 offen sc0
    s_waitcnt vmcnt(0)
    v_readfirstlane_b32 s{sT}, v3
    s_add_u32 s{sTmp}, s{sX}, 1
    s_mov_b32 s{sH}, 0xffff
    s_cmp_gt_u32 s{sT}, 31
    s_cbranch_scc1 L_role_done
    v_mov_b32 v4, 0
    s_cmp_lg_u32 s{sT}, 31
    s_cbranch_scc1 L_poll_win
    v_mov_b32 v6, s{sTmp}
    v_mov_b32 v7, 0
    buffer_atomic_cmpswap v[6:7], v4, {s(rDBG,4)}, 0 offen offset:{D_WIN}
    s_waitcnt vmcnt(0)
    L_poll_win:
    s_mov_b32 s{sG}, 0
    L_poll_win2:
    buffer_load_dword v3, v4, {s(rDBG,4)}, 0 offen offset:{D_WIN} sc1
    s_waitcnt vmcnt(0)
    v_readfirstlane_b32 s{sStep}, v3
    s_add_u32 s{sG}, s{sG}, 1
    s_cmp_gt_u32 s{sG}, {SPIN}
    s_cbranch_scc1 L_role_done
    s_cmp_eq_u32 s{sStep}, 0
    s_cbranch_scc1 L_poll_win2
    s_cmp_gt_u32 s{sTmp}, s{sStep}
    s_cselect_b32 s{sH}, s{sX}, s{sTmp}
    s_cmp_eq_u32 s{sStep}, s{sTmp}
    s_cselect_b32 s{sH}, 0, s{sH}
    s_lshl_b32 s{sH}, s{sH}, 5
    s_add_u32 s{sH}, s{sH}, s{sT}
    L_role_done:
    v_mov_b32 v3, s{sH}
    v_mov_b32 v4, 0
    ds_write_b32 v4, v3
    s_mov_b64 exec, -1
    L_role_wait:
    s_waitcnt lgkmcnt(0)
    s_barrier
    v_mov_b32 v4, 0
    ds_read_b32 v3, v4
    s_waitcnt lgkmcnt(0)
    v_readfirstlane_b32 s{sH}, v3
    s_barrier
    s_cmp_gt_u32 s{sH}, 31
    s_cbranch_scc1 {lab_worker}
    """)

def team(A, nsteps=64, stamps=False, dA=8, gapB=24, nsets=2, dR=(24,0,30,0), n2=1, dAA=0, bar1=1, bar2=1, pfd=0, usepk=True, rt=False, off="pf", cs=((1,6),(6,6)), kvchk=False):
    nst = [0]
    names = []
    def stamp(name=""):
        if stamps != 1: return
        k = nst[0]; nst[0] += 1
        assert k < 23
        names.append(name)
        A(f"s_mem{'real' if rt else ''}time s[{52+2*k}:{53+2*k}]")
    A.stamp_names = names
    if stamps == 2: A("s_memrealtime s[92:93]")
    vC, vG, vLn = 16, 17, 18
    x0, x1, x2, x3 = 19, 20, 21, 22
    vWq, vWq2, vWv, vWv2, vWo = 23, 24, 25, 26, 27
    vPubT = 28
    A(f"""
    s_load_dwordx4 s[80:83], s[0:1], 16
    s_load_dwordx4 s[84:87], s[0:1], 32
    s_load_dwordx2 s[88:89], s[0:1], 8
    v_and_b32 v{vLn}, 63, v0
    v_and_b32 v{vC}, 15, v0
    v_lshrrev_b32 v{vG}, 4, v{vLn}
    v_lshlrev_b32 v{vL16}, 4, v{vLn}
    v_lshlrev_b32 v{vT16}, 4, v0
    v_add_u32 v{vT16b}, 0x10000, v{vT16}
    v_add_u32 v{vT16c}, 0x20000, v{vT16}
    v_xor_b32 v{vM1}, 1024, v{vT16}
    v_xor_b32 v{vM2}, 2048, v{vT16}
    v_xor_b32 v{vM3}, 3072, v{vT16}
    v_and_b32 v{x0}, 2, v{vC}
    v_cmp_ne_u32 vcc, 0, v{x0}
    v_mov_b32 v{x1}, 0x4444
    v_mov_b32 v{x2}, 0xeeee
    v_cndmask_b32 v{vIdx}, v{x1}, v{x2}, vcc
    ; row(c) = 2*(c>>2) + (c&1)
    v_lshrrev_b32 v{x1}, 2, v{vC}
    v_and_b32 v{x2}, 1, v{vC}
    v_lshl_add_u32 v{x1}, v{x1}, 1, v{x2}
    v_mul_u32_u24 v{x3}, {RSO}, v{x1}
    v_mul_u32_u24 v{x1}, {RS}, v{x1}
    v_lshl_add_u32 v{vQR}, v{vG}, 4, v{x1}
    s_lshl_b32 s{sTmp}, s{sW}, 6
    v_lshl_add_u32 v{vOW}, v{vG}, 4, v{x3}
    v_add_u32 v{vOW}, s{sTmp}, v{vOW}
    v_lshl_add_u32 v{vOR}, v{vG}, 5, v{x3}
    v_lshl_add_u32 v{vOR}, v{x0}, 3, v{vOR}
    v_mul_u32_u24 v{x1}, {2*RS}, v{vG}
    v_lshl_add_u32 v{x1}, v{vC}, 2, v{x1}
    v_add_u32 v{vQW}, s{sTmp}, v{x1}
    ; vSt2 = (8w + c>>1)*4096 + (g>>1)*2048 + h*64 + (2(g&1) + (c&1))*16
    v_lshrrev_b32 v{x1}, 1, v{vC}
    s_lshl_b32 s{sTmp}, s{sW}, 3
    v_add_u32 v{x1}, s{sTmp}, v{x1}
    v_lshlrev_b32 v{x1}, 12, v{x1}
    v_lshrrev_b32 v{x3}, 1, v{vG}
    v_lshl_add_u32 v{x1}, v{x3}, 11, v{x1}
    v_and_b32 v{x0}, 1, v{vG}
    v_lshl_add_u32 v{x1}, v{x0}, 5, v{x1}
    v_lshl_add_u32 v{x1}, v{x2}, 4, v{x1}
    s_lshl_b32 s{sTmp}, s{sH}, 6
    v_add_u32 v{vSt2}, s{sTmp}, v{x1}
    v_bfe_u32 v{x1}, v{vC}, 1, 1
    s_and_b32 s{sTmp}, s{sW}, 2
    v_add_u32 v{x1}, s{sTmp}, v{x1}
    v_lshl_add_u32 v30, v{x1}, 2, v{x3}
    v_lshlrev_b32 v30, 4, v30
    v_lshl_add_u32 v30, v{x2}, 3, v30
    v_lshl_add_u32 v30, v{x0}, 2, v30
    s_lshr_b32 s{sTmp}, s{sH}, 1
    s_lshl_b32 s{sTmp}, s{sTmp}, 8
    s_and_b32 s{sTmp2}, s{sH}, 1
    s_lshl_b32 s{sTmp2}, s{sTmp2}, 5
    s_add_u32 s{sTmp}, s{sTmp}, s{sTmp2}
    v_add_u32 v30, s{sTmp}, v30
    v_cmp_gt_u32 vcc, 4, v{vC}
    v_mov_b32 v{vPubT}, 0x7f000000
    v_cndmask_b32 v{vPubT}, v{vPubT}, v30, vcc
    v_mov_b32 v{vT1}, v{vPubT}
    v_lshl_add_u32 v{x1}, v{x1}, 1, v{x3}
    v_lshlrev_b32 v{x1}, 10, v{x1}
    v_lshl_add_u32 v{x1}, v{x2}, 4, v{x1}
    v_lshl_add_u32 v{x1}, v{x0}, 2, v{x1}
    s_lshl_b32 s{sTmp}, s{sH}, 5
    v_add_u32 v29, s{sTmp}, v{x1}
    v_lshlrev_b32 v{x2}, 4, v{x2}
    v_mov_b32 v{x3}, 0x3f80
    v_lshlrev_b32 v{x3}, v{x2}, v{x3}
    v_lshrrev_b32 v{x2}, 2, v{vC}
    """)
    for r in range(4):
        A(f"v_cmp_eq_u32 vcc, {r}, v{x2}")
        A(f"v_cndmask_b32 v{32+r}, 0, v{x3}, vcc")
    A(f"ds_write_b128 v{vL16}, v[32:35] offset:{L_ST}")
    A(f"""
    v_lshrrev_b32 v{x0}, 1, v{vG}
    v_and_b32 v{x1}, 1, v{vG}
    v_lshlrev_b32 v{x2}, 18, v{x0}
    v_lshl_add_u32 v{x2}, v{x1}, 16, v{x2}
    s_lshl_b32 s{sTmp}, s{sH}, 8
    s_lshl_b32 s{sTmp2}, s{sW}, 6
    s_add_u32 s{sTmp}, s{sTmp}, s{sTmp2}
    v_add_u32 v{x2}, s{sTmp}, v{x2}
    v_lshl_add_u32 v{vWq}, v{vC}, 2, v{x2}
    v_add_u32 v{vWq2}, 0x2000, v{vWq}
    ; Wo: (16(g>>1) + 4(g&1))*1024 + h*131072 + 256w + 16c
    v_lshlrev_b32 v{x2}, 12, v{x1}
    v_lshl_add_u32 v{x2}, v{x0}, 14, v{x2}
    v_lshl_add_u32 v{x2}, v{vC}, 4, v{x2}
    s_lshl_b32 s{sTmp}, s{sH}, 17
    s_lshl_b32 s{sTmp2}, s{sW}, 8
    s_add_u32 s{sTmp}, s{sTmp}, s{sTmp2}
    v_add_u32 v{vWo}, s{sTmp}, v{x2}
    s_mov_b32 s{sPerm0}, 0x05040100
    s_mov_b32 s{sPerm1}, 0x07060302
    """)
    for i in range(4):
        A(f"s_xor_b32 s{sB+i}, s{sW}, {i}")
        A(f"s_lshl_b32 s{sB+i}, s{sB+i}, 20")
    for i in range(4): A(f"v_mov_b32 v{36+i}, -1")
    A(f"s_lshl_b32 s{sRst2}, s{sH}, 12")
    for sl in range(2):
        for x in range(2):
            A(f"s_add_u32 s{sTmp}, s{sRst2}, {H2 + sl*(256<<10) + x*(128<<10)}")
            A(f"buffer_store_dwordx4 v[36:39], v{vT16}, {s(rWS,4)}, s{sTmp} offen")
    A(f"s_lshl_b32 s{sTmp2}, s{sH}, 14")
    for i in range(4):
        A(f"s_add_u32 s{sTmp}, s{sTmp2}, {MEMG + i*4096}")
        A(f"buffer_store_dwordx4 v[36:39], v{vT16}, {s(rWS,4)}, s{sTmp} offen sc1")
    A(f"s_and_b32 s{sPubO}, s{sW}, 1")
    A(f"s_lshl_b32 s{sTmp2}, s{sPubO}, 3")
    A(f"s_lshl_b32 s{sPubO}, s{sPubO}, 12")
    A(f"s_add_u32 s{sMG}, s{sPubO}, {MEMG}")
    A(f"s_add_u32 s{sPubO}, s{sPubO}, {H1}")
    for sl in range(1, 4):
        A(f"s_add_u32 s{sTmp}, s{sPubO}, {sl*8192}")
        A(f"buffer_store_dword v36, v{vPubT}, {s(rWS,4)}, s{sTmp} offen")
    A("s_waitcnt lgkmcnt(0)")
    srd(A, rW, 88, 8192)
    A(f"buffer_load_dword v{vPD}, v29, {s(rW,4)}, s{sTmp2} offen")
    A("s_waitcnt vmcnt(0)")
    A(f"v_min_u32 v{vPD}, 0xfffffffe, v{vPD}")
    A(f"buffer_store_dword v{vPD}, v{vPubT}, {s(rWS,4)}, s{sPubO} offen")
    A("s_waitcnt vmcnt(0)")
    A("s_barrier")
    A(f"""
    s_cmp_lg_u32 s{sW}, 0
    s_cbranch_scc1 L_t_arrived
    s_mov_b64 exec, 1
    v_mov_b32 v40, 1
    v_mov_b32 v41, 0
    buffer_atomic_add v40, v41, {s(rDBG,4)}, 0 offen offset:{D_INIT}
    s_mov_b64 exec, -1
    L_t_arrived:
    """)
    TB = [32, 48, 64, 80]
    PT = 96
    vm = Cnt(A, "vmcnt", 63)
    batches = []
    for mi, m in enumerate("qkv"):
        for sl in range(8): batches.append((m, sl))
    for k in range(2):
        for bp in range(4): batches.append(("o", k, bp))
    def issue(bi):
        b = batches[bi]; T = TB[bi % 4]
        if b[0] != "o":
            m, sl = b
            if sl == 0: srd(A, rW, {"q": 80, "k": 82, "v": 84}[m], 4 << 20)
            va, vb = vWq, vWq2
            for be in range(8):
                row = 64*(be >> 2) + 16*(be & 1) + 4*(sl >> 2) + 2*((be >> 1) & 1)
                A(f"s_add_u32 s{sTmp}, s{sB+(sl&3)}, {row*8192}")
                A(f"buffer_load_dword v{T+2*be}, v{va}, {s(rW,4)}, s{sTmp} offen"); vm.issue()
                A(f"buffer_load_dword v{T+2*be+1}, v{vb}, {s(rW,4)}, s{sTmp} offen"); tok = vm.issue()
        else:
            _, k, bp = b
            if k == 0 and bp == 0: srd(A, rW, 86, 4 << 20)
            for j in range(2):
                be = 2*bp + j
                row = 64*k + 32*(be >> 2) + 8*(be & 1) + 2*((be >> 1) & 1)
                A(f"s_mov_b32 s{sTmp}, {row*1024}")
                A(f"buffer_load_dwordx4 {v(T+8*j,4)}, v{vWo}, {s(rW,4)}, s{sTmp} offen"); vm.issue()
                A(f"buffer_load_dwordx4 {v(T+8*j+4,4)}, v{vWo}, {s(rW,4)}, s{sTmp} offen offset:1024"); tok = vm.issue()
        return tok
    def put(f, be, lo, hi, sel, tmp):
        kind, base = HOME[f]
        if kind == "v":
            A(f"v_perm_b32 v{base+be}, v{hi}, v{lo}, s{sel}")
        else:
            A(f"v_perm_b32 v{tmp}, v{hi}, v{lo}, s{sel}")
            if kind == "a": A(f"v_accvgpr_write_b32 a{base+be}, v{tmp}")
    def consume(bi):
        b = batches[bi]; T = TB[bi % 4]
        if b[0] != "o":
            m, sl = b
            for t in range(2):
                f = (m, t, sl)
                for be in range(8):
                    put(f, be, T+2*be, T+2*be+1, sPerm1 if t else sPerm0, PT + 8*t + be)
                if HOME[f][0] == "l":
                    for p in range(2):
                        ar, off = lds_frag_addr(HOME[f][1], p)
                        A(f"ds_write_b128 v{ar}, {v(PT+8*t+4*p,4)} offset:{off}")
            A("s_waitcnt lgkmcnt(0)")
        else:
            _, k, bp = b
            for t in range(8):
                f = ("o", t, k)
                for j in range(2):
                    be = 2*bp + j
                    put(f, be, T+8*j+(t >> 1), T+8*j+4+(t >> 1), sPerm1 if t & 1 else sPerm0, PT + 2*t + j)
                if HOME[f][0] == "l":
                    ar, off = lds_frag_addr(HOME[f][1], bp >> 1)
                    A(f"ds_write_b64 v{ar}, {v(PT+2*t,2)} offset:{off + 8*(bp & 1)}")
            A("s_waitcnt lgkmcnt(0)")
    toks = {}
    DEPTH = 3
    for bi in range(len(batches) + DEPTH):
        if bi >= DEPTH:
            vm.wait(toks[bi - DEPTH]); consume(bi - DEPTH)
        if bi < len(batches): toks[bi] = issue(bi)
    if stamps == 2: A("s_memrealtime s[94:95]")
    A(f"s_lshl_b32 s{sKV}, s{sH}, 14")
    A(f"s_lshl_b32 s{sTmp}, s{sW}, 11")
    A(f"s_add_u32 s{sKV}, s{sKV}, s{sTmp}")
    A(f"s_add_u32 s{sKV}, s{sKV}, {KV}")
    A(f"s_add_u32 s{sMK}, s{sTmp}, {L_KX}")
    A(f"s_add_u32 s{sMV}, s{sTmp}, {L_VX}")
    A(f"s_add_u32 s{sMV+1}, s{sTmp}, {L_MEM}")
    A(f"s_add_u32 s{sPF}, s{sTmp}, {pfd*32*16384}")
    def dma(which, par, j):
        if j == 0:
            A(f"s_mov_b32 m0, s{sMK if which == 'k' else sMV + par}")
            if which == "v": A(f"s_add_u32 s{sTmp}, s{sKV}, 8192")
        A(f"buffer_load_dwordx4 v{vL16}, {s(rWS,4)}, s{sKV if which == 'k' else sTmp} offen offset:{1024*j} sc1 lds")
    def kv_wait(tag, ta, tb, need):
        A(f"""
        L_kvw{tag}:
        v_lshrrev_b32 v{ta}, 7, v{vL16}
        v_bfe_u32 v{tb}, v{vL16}, 4, 3
        v_lshl_add_u32 v{ta}, v{ta}, 5, v{tb}
        buffer_load_ubyte v{tb}, v{ta}, {s(rDBG,4)}, 0 offen offset:{D_KV} sc1
        s_waitcnt vmcnt(0)
        v_cmp_eq_u32 vcc, 32, v{tb}
        s_ff0_i32_b64 s{sRdy}, vcc
        s_add_u32 s{sG}, s{sG}, 1
        s_cmp_gt_u32 s{sG}, {SPIN}
        s_cbranch_scc1 L_team_end
        s_cmp_gt_u32 s{sRdy}, {need}
        s_cbranch_scc0 L_kvw{tag}
        """)
    A(f"s_mov_b32 s{sG}, 0")
    if kvchk: kv_wait("0", 40, 41, "0")
    dma("k", 0, 0); dma("k", 0, 1); dma("v", 0, 0); dma("v", 0, 1)
    A(f"s_add_u32 s{sKV}, s{sKV}, {32*16384}")
    A("s_waitcnt vmcnt(0)")
    A(f"""
    s_cmp_lg_u32 s{sW}, 0
    s_cbranch_scc1 L_init_wait
    v_mov_b32 v41, 0
    s_mov_b32 s{sG}, 0
    L_init_poll:
    buffer_load_dword v40, v41, {s(rDBG,4)}, 0 offen offset:{D_INIT} sc1
    s_waitcnt vmcnt(0)
    v_readfirstlane_b32 s{sTmp}, v40
    s_add_u32 s{sG}, s{sG}, 1
    s_cmp_gt_u32 s{sG}, {SPIN}
    s_cbranch_scc1 L_init_wait
    s_cmp_lt_u32 s{sTmp}, 32
    s_cbranch_scc1 L_init_poll
    L_init_wait:
    s_waitcnt lgkmcnt(0)
    s_barrier
    s_mov_b32 s{sStep}, 0
    s_mov_b32 s{sG}, 0
    s_mov_b32 s{sRetA}, 0
    s_mov_b32 s{sRetB}, 0
    s_mov_b32 s{sRet2}, 0
    s_mov_b32 s{sC}, 0x3e0293ee
    v_mov_b32 v{VMR+1}, 0
    v_mov_b32 v{VMR+3}, 0
    s_lshl_b32 s{sRd2}, s{sW}, 17
    s_lshl_b32 s{sTmp}, s{sH}, 12
    s_add_u32 s{sRd2}, s{sRd2}, s{sTmp}
    """)
    import math, struct
    cval = struct.unpack("<I", struct.pack("<f", (128 ** -0.5) * math.log2(math.e)))[0]
    A(f"s_mov_b32 s{sC}, {cval:#x}")
    if stamps == 2:
        A("s_memrealtime s[96:97]")
        A("s_memtime s[76:77]"); A("s_waitcnt lgkmcnt(0)")
    if stamps == 1:
        for k in range(52, 100): A(f"s_mov_b32 s{k}, 0")

    lg = Cnt(A, "lgkmcnt", 15)
    staged = {}
    def stage(idx, reg):
        f = LDSF[idx]
        for p in range(2):
            ar, off = lds_frag_addr(idx, p)
            A(f"ds_read_b128 {v(reg+4*p,4)}, v{ar} offset:{off}"); tok = lg.issue()
        staged[f] = (reg, tok)
    waited = [0]
    def lwait(tok):
        if tok > waited[0]:
            lg.wait(tok); waited[0] = tok
    def sm(m, t, sl, acc, areg):
        f = (m, t, sl); kind, base = HOME[f]
        if kind == "l":
            reg, tok = staged.pop(f); lwait(tok); b = v(reg, 8)
        else:
            b = (a if kind == "a" else v)(base, 8)
        A(f"v_smfmac_f32_16x16x64_bf16 {v(acc,4)}, {v(areg,4)}, {b}, v{vIdx}")
    def dsr(dst, addr, off, n=4):
        A(f"ds_read_b{32*n} {v(dst,n)}, v{addr} offset:{off}"); return lg.issue()
    def dsw(addr, src, off, n=4):
        A(f"ds_write_b{32*n} v{addr}, {v(src,n)} offset:{off}"); return lg.issue()
    def chk(r, lab):
        A(f"v_max3_u32 v{vT0}, v{r}, v{r+1}, v{r+2}")
        A(f"v_max_u32 v{vT0}, v{vT0}, v{r+3}")
        A(f"v_cmp_eq_u32 vcc, -1, v{vT0}")
        A(f"s_cbranch_vccnz {lab}")
    qa = lambda t: ACCA + 4*t
    ka = lambda t: ACCB + 4*t
    ma = lambda sl: MEMA + 4*sl

    QB = POOL; FR = POOL + 16
    va = lambda t: ACCV + 4*t
    WA = MEMA
    wa = lambda t: WA + 4*t
    R2 = ma(5); SEL = ma(7); PUB = vT1; DD = ma(3)
    def stage1(idx, reg, p):
        f = LDSF[idx]
        ar, off = lds_frag_addr(idx, p)
        A(f"ds_read_b128 {v(reg+4*p,4)}, v{ar} offset:{off}"); tok = lg.issue()
        if p == 1: staged[f] = (reg, tok)
    G = lambda idx, reg, p: (lambda: stage1(idx, reg, p))
    def mf(d, a_, b_, first, k16=False):
        n = 2 if k16 else 4
        A(f"v_mfma_f32_16x16x{16 if k16 else 32}_bf16 {v(d,4)}, {v(a_,n)}, {v(b_,n)}, {0 if first else v(d,4)}")
    def slots(ms, fill):
        for i, m in enumerate(ms):
            m()
            if i < len(fill):
                for f in fill[i]: f()
        for fl in fill[len(ms):]:
            for f in fl: f()
    I = lambda txt: (lambda: A(txt))
    accf = {"q": qa, "k": ka, "v": va}
    SM = lambda m, t, sl, areg=None: (lambda: sm(m, t, sl, accf[m](t), ma(sl) if areg is None else areg))
    PRE = [(0, STG), (1, STG+8), (2, FR), (3, FR+8), (5, QB+8), (4, QB)]
    def chores(lo, hi):
        for idx, reg in PRE[lo:hi]: stage(idx, reg)
    def zero_accs():
        for i in range(0, 16, 2): A(f"v_mov_b64 {v(ACCA+i,2)}, 0")
        for i in range(0, 8, 2): A(f"v_mov_b64 {v(ACCV+i,2)}, 0")
    def set_neg():
        A(f"v_mov_b64 {v(NEG,2)}, -1"); A(f"v_mov_b64 {v(NEG+2,2)}, -1")
    def slot_offsets():
        A(f"""
        s_and_b32 s{sTmp}, s{sStep}, 3
        s_lshl_b32 s{sO1}, s{sTmp}, 13
        s_add_u32 s{sO1}, s{sO1}, {H1}
        s_add_u32 s{sO1b}, s{sO1}, 4096
        """)
    def ld1():
        A(f"buffer_load_dwordx4 {v(ma(0),4)}, v{vT16}, {s(rWS,4)}, s{sO1} offen sc1")
        A(f"buffer_load_dwordx4 {v(ma(4),4)}, v{vT16}, {s(rWS,4)}, s{sO1b} offen sc1")
    def ld2():
        for u in range(2):
            A(f"buffer_load_dwordx4 {v(R2+4*u,4)}, v{vL16}, {s(rWS,4)}, s{sRd} offen offset:{1024*u} sc1")
    def delay(n):
        while n > 0:
            A(f"s_nop {min(n,16)-1}"); n -= 16
    chores(0, 6); zero_accs(); set_neg(); slot_offsets()
    A(f"s_mov_b32 s{sO2}, {H2}"); A(f"s_mov_b32 s{sO2b}, {H2 + (128<<10)}")
    A(f"s_add_u32 s{sRst1}, s{sPubO}, {2*8192}")
    A(f"s_and_b32 s{sTmp}, s{sW}, 1")
    A(f"s_lshl_b32 s{sRd2}, s{sTmp}, 17")
    A(f"s_lshl_b32 s{sTmp}, s{sH}, 12")
    A(f"s_add_u32 s{sRd2}, s{sRd2}, s{sTmp}")
    A(f"s_lshr_b32 s{sTmp}, s{sW}, 1")
    A(f"s_lshl_b32 s{sTmp}, s{sTmp}, 11")
    A(f"s_add_u32 s{sRd2}, s{sRd2}, s{sTmp}")
    pre_staged = dict(staged)
    A(f"s_waitcnt lgkmcnt(0)")
    for par in range(2):
        P = f"_{par}"
        LM, LV = (L_MEM, L_VX) if par == 0 else (L_VX, L_MEM)
        st = stamp if par == 0 else (lambda n="": None)
        A.label("L_step" + P)
        if stamps == 1 and par == 0:
            stamp("top")
            A(f"s_cmp_ge_u32 s{sStep}, {nsteps-3}")
            A("s_cbranch_scc1 L_team_end")
        st("top2")
        for j in range(nsets):
            delay(gapB if j else dA)
            ld1()
        waited[0] = lg.n
        staged.clear(); staged.update({f: (r, 0) for f, (r, t) in pre_staged.items()})
        A.label("L_poll1" + P)
        r, q = ma(0), ma(4)
        A(f"s_waitcnt vmcnt({2*nsets-1})")
        A(f"v_max3_u32 v{vT0}, v{r}, v{r+1}, v{r+2}")
        A(f"s_waitcnt vmcnt({2*nsets-2})")
        A(f"v_max3_u32 v{vT0}, v{vT0}, v{r+3}, v{q}")
        A(f"v_max3_u32 v{vT0}, v{vT0}, v{q+1}, v{q+2}")
        A(f"v_max_u32 v{vT0}, v{vT0}, v{q+3}")
        A(f"v_cmp_eq_u32 vcc, -1, v{vT0}")
        A(f"s_cbranch_vccnz L_retry1{P}")
        tt = {}
        def rd(key, dst, addr, off): return lambda: tt.__setitem__(key, dsr(dst, addr, off))
        kx = lambda i, dst: rd(("kx", i), dst, vL16, L_KX + 1024*i)
        dsw(vT16, r, LM)
        st("ok")
        SM("q",0,0)()
        tw = dsw(vT16, q, LM + 4096)
        SM("q",1,0)(); SM("k",0,0)(); SM("k",1,0)(); SM("q",0,4)(); SM("q",1,4)()
        lwait(tw); A("s_barrier"); st("barM")
        rd(1, ma(1), vM1, LM)()
        slots([SM("k",0,4), SM("k",1,4), SM("v",0,0), SM("v",1,0)],
              [[rd(2, ma(2), vM2, LM)], [rd(3, ma(3), vM3, LM)], [rd(5, ma(5), vM1, LM+4096)], [rd(6, ma(6), vM2, LM+4096), lambda: lwait(tt[1])]])
        rst = [I(f"s_xor_b32 s{sTmp}, s{sO2}, {256<<10}"), I(f"s_add_u32 s{sTmp}, s{sTmp}, s{sRst2}"),
               I(f"buffer_store_dwordx4 {v(NEG,4)}, v{vT16}, {s(rWS,4)}, s{sTmp} offen")]
        rst2 = [I(f"s_add_u32 s{sTmp}, s{sTmp}, {128<<10}"),
               I(f"buffer_store_dwordx4 {v(NEG,4)}, v{vT16}, {s(rWS,4)}, s{sTmp} offen"),
               I(f"buffer_store_dword v{NEG}, v{PUB}, {s(rWS,4)}, s{sRst1} offen")]
        pubg = [I(f"buffer_store_dword v{vPD}, v{PUB}, {s(rWS,4)}, s{sMG} offen sc1"), I(f"s_add_u32 s{sMG}, s{sMG}, 8192")]
        pf = [I(f"s_mov_b32 m0, {L_ST+1024}"), I(f"v_lshlrev_b32 v{ma(0)}, 2, v{vL16}"), I(f"s_add_u32 s{sTmp2}, s{sKV}, s{sPF}"),
              I(f"buffer_load_dword v{ma(0)}, {s(rWS,4)}, s{sTmp2} offen sc1 lds")]
        W = lambda key: (lambda: lwait(tt[key]))
        nopI = I("s_nop 0")
        assert "pf" in off
        pf = [lambda: None] * 4
        if "pubg" in off: pubg[0] = nopI
        WS = lambda idx: (lambda: lwait(staged[LDSF[idx]][1]))
        slots([SM("q",0,1), SM("q",1,1), SM("k",0,1), SM("k",1,1), SM("q",0,2), SM("q",1,2), SM("k",0,2), SM("k",1,2),
               SM("q",1,3), SM("k",0,3), SM("q",0,3), SM("k",1,3), SM("v",0,1), SM("v",1,1), SM("v",0,4), SM("v",1,4)],
              [[rd(7, ma(7), vM3, LM+4096)] + rst[:2], [kx(4, STG)], rst[2:], [W(7)], [kx(5, STG+4)], [kx(6, STG+8)], rst2[:2], [kx(7, STG+12)],
               [kx(0, FR)], [], [kx(1, FR+4)] + rst2[2:], [], [kx(2, FR+8)], pubg, [kx(3, FR+12)], []])
        slots([SM("q",0,5), SM("q",1,5), SM("q",0,6), SM("q",1,6), SM("q",0,7), SM("q",1,7)],
              [[I(f"s_waitcnt vmcnt({4 - ('pubg' in off)})"), pf[1]], [pf[0], pf[2], pf[3]], [], [], [], []])
        st("qdone")
        def epi_ops(acc):
            return [I(f"v_add_f32 v{acc}, v{acc}, v{acc+2}"), I(f"v_add_f32 v{acc+1}, v{acc+1}, v{acc+3}"),
                    I(f"v_add_f32 v{acc+4}, v{acc+4}, v{acc+6}"), I(f"v_add_f32 v{acc+5}, v{acc+5}, v{acc+7}"),
                    I(f"v_cvt_pk_bf16_f32 v{acc}, v{acc}, v{acc+4}"), I(f"v_cvt_pk_bf16_f32 v{acc+1}, v{acc+1}, v{acc+5}")]
        e = epi_ops(ACCA); ek = epi_ops(ACCB)
        wq = [lambda: dsw(vQW, ACCA, L_Q, 1), lambda: dsw(vQW, ACCA+1, L_Q + RS, 1)]
        wk = [lambda: dsw(vQW, ACCB, L_K, 1), lambda: tt.__setitem__("wk", dsw(vQW, ACCB+1, L_K + RS, 1))]
        N1 = I("s_nop 1"); N0 = I("s_nop 0")
        slots([SM("k",1,5), SM("k",0,6), SM("k",1,6), SM("k",0,5), SM("k",0,7), SM("k",1,7),
               SM("v",0,2), SM("v",1,2), SM("v",0,3), SM("v",1,3), SM("v",0,5)],
              [[e[0]], [e[1]], [e[2]], [e[3]], [e[4]], [wq[0], e[5]],
               [wq[1], ek[0], ek[1]], [ek[2], ek[3], ek[4], ek[5]] + wk, [], [],
               [I(f"s_add_u32 s{sTmp2}, s{sStep}, 1"), I(f"s_cmp_gt_u32 s{sRdy}, s{sTmp2}")] if kvchk else []])
        lwait(tt["wk"]); A("s_barrier"); st("barQK")
        if kvchk:
            A(f"s_cbranch_scc0 L_kvw{P}")
            A.label("L_kvok" + P)
        qr = lambda k: rd(("q", k), QB+4*k, vQR, L_Q + 64*k)
        KMR = ACCA
        kr = lambda k: rd(("km", k), KMR+4*k, vQR, L_K + 64*k)
        qr(0)()
        slots([SM("v",1,5), SM("v",0,6), SM("v",1,6), SM("v",0,7), SM("v",1,7)],
              [[qr(1)], [qr(2)], [qr(3)], [kr(0)], [kr(1), W(("q",1))]])
        st("vdone")
        Sx = lambda t, k: (lambda: (lwait(tt[("q", k)]), mf(S+4*t, (FR if t == 0 else STG) + 4*k, QB+4*k, k == 0)))
        Sm = lambda k: (lambda: (lwait(tt[("km", k)]), mf(S+8, KMR+4*k, QB+4*k, k == 0)))
        ve = []
        for t in range(2):
            ve += [I(f"v_add_f32 v{va(t)}, v{va(t)}, v{va(t)+2}"), I(f"v_add_f32 v{va(t)+1}, v{va(t)+1}, v{va(t)+3}"),
                   I(f"v_cvt_pk_bf16_f32 v{VMR+2*t}, v{va(t)}, v{va(t)+1}")]
        VXR = FR; OO = QB; LL = QB + 8; ONES = NEG
        zw = [I(f"v_mov_b64 {v(WA+i,2)}, 0") for i in range(0, 32, 2)]
        ones = [I(f"v_mov_b32 v{ONES+i}, 0x3f803f80") for i in range(4)]
        m0k = I(f"s_mov_b32 m0, s{sMK}")
        dk = lambda j: I(f"buffer_load_dwordx4 v{vL16}, {s(rWS,4)}, s{sKV} offen offset:{1024*j} sc1 lds")
        m0v = [I(f"s_mov_b32 m0, s{sMV + 1 - par}"), I(f"s_add_u32 s{sTmp}, s{sKV}, 8192"), I(f"s_add_u32 s{sKV}, s{sKV}, {32*16384}")]
        dv = lambda j: I(f"buffer_load_dwordx4 v{vL16}, {s(rWS,4)}, s{sTmp} offen offset:{1024*j} sc1 lds")
        if "dma" in off: dk = dv = lambda j: nopI
        nvm = 6 - ("pubg" in off) - ("pf" in off) - 4*("dma" in off)
        slots([Sx(0,0), Sx(1,0), Sx(0,1), Sx(1,1), Sx(0,2), Sx(1,2), Sx(0,3), Sx(1,3), Sm(0), Sm(1), Sm(2), Sm(3)],
              [[kr(2), m0k, ones[0]], [kr(3), ones[1], ones[2]], [dk(0), ones[3], ve[0]], [W(("q",3)), ve[1], ve[2]],
               [rd("vx0", VXR, vT16, LV), ve[3], ve[4]], [rd("vx1", VXR+4, vT16, LV+4096), dk(1), ve[5]],
               [m0v[0], m0v[1], m0v[2]], [W(("km",3)), dv(0)], [G(6, STG, 0), I(f"v_max3_f32 v{vT0}, v{S}, v{S+1}, v{S+2}")],
               [G(6, STG, 1), I(f"v_max3_f32 v{vT0}, v{vT0}, v{S+3}, v{S+4}"), I(f"v_max3_f32 v{vT0}, v{vT0}, v{S+5}, v{S+6}")],
               [G(7, FR+8, 0), dv(1), I(f"v_max_f32 v{vT0}, v{vT0}, v{S+7}")],
               [G(7, FR+8, 1), W("vx1"), zw[6], zw[7]]])
        st("Smm")
        zw[10](); zw[11](); zw[14](); zw[15]()
        A(f"v_max3_f32 v{vT0}, v{vT0}, v{S+8}, v{S+9}")
        A(f"v_mov_b32 v{S+10}, v{vT0}")
        zw[12](); zw[13]()
        A(f"v_permlane32_swap_b32 v{vT0}, v{S+10}")
        A(f"v_max_f32 v{vT0}, v{vT0}, v{S+10}")
        A(f"v_mov_b32 v{S+10}, v{vT0}")
        zw[8](); zw[9]()
        A(f"v_permlane16_swap_b32 v{vT0}, v{S+10}")
        A(f"v_max_f32 v{vT0}, v{vT0}, v{S+10}")
        A(f"v_mul_f32 v{S+10}, s{sC}, v{vT0}")
        if usepk:
            for i in range(0, 10, 2):
                A(f"v_pk_fma_f32 {v(S+i,2)}, {v(S+i,2)}, s[{sC}:{sC+1}], {v(S+10,2)} op_sel_hi:[1,0,0] neg_lo:[0,0,1] neg_hi:[0,0,1]")
        else:
            for i in range(10): A(f"v_fma_f32 v{S+i}, v{S+i}, s{sC}, -v{S+10}")
        for i in range(8): A(f"v_exp_f32 v{S+i}, v{S+i}")
        for i in range(4): A(f"v_cvt_pk_bf16_f32 v{S+i}, v{S+2*i}, v{S+2*i+1}")
        st("exp")
        A(f"v_exp_f32 v{S+8}, v{S+8}")
        slots([lambda: mf(LL, ONES, S, True), lambda: mf(OO, VXR, S, True), lambda: mf(OO+4, VXR+4, S, True)],
              [[G(8, STG+8, 0), I(f"v_exp_f32 v{S+9}, v{S+9}")], [G(8, STG+8, 1), I(f"v_cvt_pk_bf16_f32 v{S+8}, v{S+8}, v{S+9}"), I(f"v_mov_b32 v{S+9}, 0")], [G(9, ACCV, 0), zw[2], zw[3]]])
        slots([lambda: mf(LL, ONES, S+8, False, True), lambda: mf(OO, VMR, S+8, False, True), lambda: mf(OO+4, VMR+2, S+8, False, True)],
              [[G(9, ACCV, 1), zw[0], zw[1]], [G(10, ACCB, 0), I(f"s_waitcnt vmcnt({nvm})"), zw[5]], [G(10, ACCB, 1)]])
        st("PV")
        A(f"v_rcp_f32 v{vT0}, v{LL}")
        zw[4]()
        if usepk:
            A(f"v_pk_mul_f32 {v(OO,2)}, {v(OO,2)}, {v(vT0,2)} op_sel_hi:[1,0]")
            A(f"v_pk_mul_f32 {v(OO+2,2)}, {v(OO+2,2)}, {v(vT0,2)} op_sel_hi:[1,0]")
            A(f"v_pk_mul_f32 {v(OO+4,2)}, {v(OO+4,2)}, {v(vT0,2)} op_sel_hi:[1,0]")
            A(f"v_pk_mul_f32 {v(OO+6,2)}, {v(OO+6,2)}, {v(vT0,2)} op_sel_hi:[1,0]")
        else:
            for i in range(8): A(f"v_mul_f32 v{OO+i}, v{OO+i}, v{vT0}")
        for i in range(4): A(f"v_cvt_pk_bf16_f32 v{OO+i}, v{OO+i}, v{OO+4+i}")
        tw = dsw(vOW, OO, L_O)
        st("owr")
        lwait(tw); A("s_barrier"); st("barO")
        OA = ACCA
        to0 = dsr(OA, vOR, L_O)
        to = dsr(OA+4, vOR, L_O + 128)
        G(11, FR, 0)(); G(11, FR, 1)(); G(12, QB+8, 0)(); G(12, QB+8, 1)()
        A(f"s_add_u32 s{sStep}, s{sStep}, 1")
        A(f"s_add_u32 s{sRd}, s{sO2}, s{sRd2}")
        slot_offsets()
        A(f"s_lshl_b32 s{sTmp2}, s{sTmp}, 13")
        A(f"s_add_u32 s{sTmp2}, s{sTmp2}, s{sPubO}")
        A(f"s_add_u32 s{sRst1}, s{sTmp}, 2")
        A(f"s_and_b32 s{sRst1}, s{sRst1}, 3")
        A(f"s_lshl_b32 s{sRst1}, s{sRst1}, 13")
        A(f"s_add_u32 s{sRst1}, s{sRst1}, s{sPubO}")
        ad = lambda t: [I(f"v_add_f32 v{wa(t)}, v{wa(t)}, v{wa(t)+2}"), I(f"v_add_f32 v{wa(t)+1}, v{wa(t)+1}, v{wa(t)+3}")]
        cvp = lambda dst, t: [I(f"v_cvt_pk_bf16_f32 v{dst}, v{wa(t)}, v{wa(t+1)}"), I(f"v_cvt_pk_bf16_f32 v{dst+2}, v{wa(t)+1}, v{wa(t+1)+1}")]
        sto = lambda x, dst: [I(f"buffer_store_dwordx4 {v(dst,4)}, v{vSt2}, {s(rWS,4)}, s{sO2b if x else sO2} offen")]
        SO = lambda t, k: (lambda: sm("o", t, k, wa(t), OA+4*k))
        DA, DB = QB, QB + 4
        lwait(to0)
        st("ord")
        N2 = I("s_nop 2")
        slots([SO(t, k) for t in range(8) for k in range(2)],
              [[lambda: lwait(to)], [G(13, STG, 0)], [G(13, STG, 1)], [G(14, FR+8, 0), ad(0)[0]], [G(14, FR+8, 1), ad(0)[1]],
               [G(15, STG+8, 0), ad(1)[0]], [G(15, STG+8, 1), ad(1)[1], cvp(DA, 0)[0]], [WS(13), cvp(DA, 0)[1], ad(2)[0]],
               [ad(2)[1]], ad(3) + cvp(DA+1, 2) + sto(0, DA) + [lambda: st("stA")], [], [WS(15), ad(4)[0]], [ad(4)[1]], ad(5), cvp(DB, 4), ad(6)])
        for f in ad(7) + cvp(DB+1, 6) + sto(1, DB): f()
        st("stB")
        A(f"s_xor_b32 s{sO2}, s{sO2}, {256<<10}")
        A(f"s_xor_b32 s{sO2b}, s{sO2b}, {256<<10}")
        assert not staged, staged
        dsr(SEL, vL16, L_ST)
        if bar1: A("s_barrier")
        for role in range(2):
            if role == 0:
                A(f"s_bitcmp1_b32 s{sW}, 0")
                A(f"s_cbranch_scc1 L_tailB{P}")
            else:
                A.label(f"L_tailB{P}")
                staged.clear()
            ca, cb_ = cs[role]
            chores(0, ca); delay(dR[2*role]); ld2()
            chores(ca, cb_); delay(dR[2*role+1])
            if n2 > 1: ld2()
            chores(cb_, 6); zero_accs(); set_neg()
            if role == 0: A(f"s_branch L_tailj{P}")
        A.label(f"L_tailj{P}")
        A("s_waitcnt lgkmcnt(0)")
        A.label("L_poll2" + P)
        for u in range(2):
            r = R2 + 4*u
            A(f"s_waitcnt vmcnt({2*n2-1-u})")
            A(f"v_max3_u32 v{vT0}, v{r}, v{r+1}, {'v%d' % vT0 if u else 0}")
            A(f"v_max3_u32 v{vT0}, v{r+2}, v{r+3}, v{vT0}")
            mf(DD, SEL, r, u == 0)
        A(f"v_cmp_eq_u32 vcc, -1, v{vT0}")
        A(f"s_cbranch_vccnz L_retry2{P}")
        for rot in (4, 8):
            A(f"v_add_f32_dpp v{DD}, v{DD}, v{DD} row_ror:{rot} row_mask:0xf bank_mask:0xf")
            A(f"v_add_f32_dpp v{DD+1}, v{DD+1}, v{DD+1} row_ror:{rot} row_mask:0xf bank_mask:0xf")
        A(f"v_cvt_pk_bf16_f32 v{vPD}, v{DD}, v{DD+1}")
        A(f"v_min_u32 v{vPD}, 0xfffffffe, v{vPD}")
        A(f"buffer_store_dword v{vPD}, v{PUB}, {s(rWS,4)}, s{sTmp2} offen")
        st("red")
        A(f"s_cmp_eq_u32 s{sStep}, {nsteps-1}")
        A("s_cbranch_scc1 L_last")
        if bar2: A("s_barrier")
        if dAA:
            A(f"s_bitcmp1_b32 s{sW}, 0")
            A(f"s_cbranch_scc1 L_step_{1-par}")
            delay(dAA)
        if par == 1: A("s_branch L_step_0")
        staged.clear()
    def retry(lab, cnt, body, back):
        A.label(lab)
        A("s_mov_b64 exec, vcc")
        body()
        A("s_mov_b64 exec, -1")
        A(f"s_add_u32 s{cnt}, s{cnt}, 1")
        A(f"s_add_u32 s{sG}, s{sG}, 1")
        A(f"s_cmp_gt_u32 s{sG}, {SPIN}")
        A(f"s_cbranch_scc1 L_team_end")
        A(f"s_branch {back}")
    for par in range(2):
        P = f"_{par}"
        retry("L_retry1" + P, sRetB, ld1, "L_poll1" + P)
        retry("L_retry2" + P, sRet2, ld2, "L_poll2" + P)
        if kvchk:
            kv_wait(P, vT0, ma(0), f"s{sTmp2}")
            A(f"s_branch L_kvok{P}")
    A.label("L_last")
    A(f"buffer_store_dword v{vPD}, v{PUB}, {s(rWS,4)}, s{sMG} offen sc1")
    A("s_waitcnt vmcnt(0) lgkmcnt(0)")
    A.label("L_team_end")
    if stamps:
        if stamps == 2:
            A("s_memrealtime s[98:99]")
            A("s_memtime s[72:73]"); A("s_waitcnt lgkmcnt(0)")
            A("s_sub_u32 s72, s72, s76")
            vals = [72, sStep, sRetA, sRetB, sRet2, 76, 76, 76] + [90, 92, 94, 96, 98, 98, 98, 98]
        else:
            A("s_waitcnt lgkmcnt(0)")
            for c, (ra, rb) in enumerate(((44, 45), (46, 47))):
                A(f"""
                s_memrealtime s[16:17]
                s_waitcnt lgkmcnt(0)
                s_add_u32 s16, s16, {200 if c else 8}
                L_cal{c}:
                s_memrealtime s[18:19]
                s_memtime s[98:99]
                s_waitcnt lgkmcnt(0)
                s_cmp_lt_u32 s18, s16
                s_cbranch_scc1 L_cal{c}
                s_mov_b32 s{ra}, s18
                s_mov_b32 s{rb}, s98
                """)
            vals = [44, sStep, sRetA, sRetB, sRet2, 45, 46, 47] + list(range(52, 100, 2))
        A(f"s_lshl_b32 s{sTmp}, s{sH}, 2")
        A(f"s_add_u32 s{sTmp}, s{sTmp}, s{sW}")
        A(f"s_lshl_b32 s{sTmp}, s{sTmp}, 7")
        A(f"s_add_u32 s{sTmp}, s{sTmp}, {RES}")
        A("s_waitcnt vmcnt(0)")
        for i, r in enumerate(vals): A(f"v_mov_b32 v{16+i}, s{r}")
        A("v_mov_b32 v0, 0")
        A("s_mov_b64 exec, 1")
        for i in range(len(vals)//4): A(f"buffer_store_dwordx4 {v(16+4*i,4)}, v0, {s(rWS,4)}, s{sTmp} offen offset:{16*i}")
    A("s_waitcnt vmcnt(0)")

def gen_standalone(**kw):
    A = Asm()
    A.raw(f"; @launch grid=(256,1,1) block=(256,1,1) lds=163840")
    A.raw('.amdgcn_target "amdgcn-amd-amdhsa--gfx950"')
    A.raw(".text")
    kernel_begin(A, NAME + "_kernel")
    A(f"""
    s_cmp_ge_u32 s2, 256
    s_cbranch_scc1 L_end
    s_memrealtime s[90:91]
    s_load_dwordx4 s[4:7], s[0:1], 104
    s_getreg_b32 s{sX}, hwreg(HW_REG_XCC_ID)
    s_and_b32 s{sX}, s{sX}, 7
    v_lshrrev_b32 v1, 6, v0
    v_readfirstlane_b32 s{sW}, v1
    s_waitcnt lgkmcnt(0)
    """)
    srd(A, rWS, 6, WS_BYTES)
    srd(A, rDBG, 4, 256)
    role_select(A, "L_end")
    team(A, **kw)
    A.label("L_end")
    A("s_endpgm")
    A.raw('.section .rodata,"a"')
    A.raw(descriptor(NAME + "_kernel", 512, 102, 256))
    global STAMP_NAMES
    STAMP_NAMES = A.stamp_names
    return A.text()

if __name__ == "__main__":
    open("team.s", "w").write(gen_standalone(stamps=True))
```

```python
from asmlib import *
import team as T
from team import (rWS, rDBG, rW, sX, sW, sH, sTmp, sTmp2, sG, sPerm0, sPerm1, SPIN, Cnt,
                  D_INIT, D_LN, D_MOE, D_MOEDONE, D_KV, D_O, XN, KV, QX, MEMG)
import struct, math
XB = 4 << 20
RL = 6 << 20
MOEP = (6 << 20) + (64 << 10)
OX = 68 << 20
NR = 5
NG = 3
f2u = lambda x: struct.unpack("<I", struct.pack("<f", x))[0]
sI, sHd, sR, sSeg, sPrev, sA, sBq, sC = 24, 28, 29, 30, 31, 32, 33, 34
rX, rOUT = 44, 48
DPP = " row_mask:0xf bank_mask:0xf"

def allreduce(A, op, regs, tmps):
    for ctrl in ("quad_perm:[1,0,3,2]", "quad_perm:[2,3,0,1]", "row_half_mirror", "row_mirror"):
        for r in regs: A(f"{op}_dpp v{r}, v{r}, v{r} {ctrl}{DPP}")
    for sw in (16, 32):
        for r, t in zip(regs, tmps): A(f"v_mov_b32 v{t}, v{r}")
        for r, t in zip(regs, tmps): A(f"v_permlane{sw}_swap_b32 v{r}, v{t}")
        for r, t in zip(regs, tmps): A(f"{op} v{r}, v{r}, v{t}")

def rnd_bf(A, r):
    A(f"v_cvt_pk_bf16_f32 v{r}, v{r}, v{r}")
    A(f"v_and_b32 v{r}, 0xffff0000, v{r}")

def unpack(A, lo, hi, src):
    A(f"v_lshlrev_b32 v{lo}, 16, v{src}")
    A(f"v_and_b32 v{hi}, 0xffff0000, v{src}")

def wait_dword(A, tag, off, target, ta, tb, sleep=2):
    A(f"""
    v_mov_b32 v{ta}, 0
    L_wd{tag}:
    buffer_load_dword v{tb}, v{ta}, {s(rDBG,4)}, 0 offen offset:{off} sc1
    s_waitcnt vmcnt(0)
    v_readfirstlane_b32 s{sTmp}, v{tb}
    s_cmp_ge_u32 s{sTmp}, {target}
    s_cbranch_scc1 L_wd{tag}_ok
    s_sleep {sleep}
    s_add_u32 s{sG}, s{sG}, 1
    s_cmp_lt_u32 s{sG}, {SPIN}
    s_cbranch_scc1 L_wd{tag}
    s_branch L_end
    L_wd{tag}_ok:
    s_nop 1
    """)

def signal(A, tag, body, ta, tb, ret=False):
    A(f"s_cmp_lg_u32 s{sW}, 0")
    A(f"s_cbranch_scc1 L_sig{tag}")
    A("s_mov_b64 exec, 1")
    body()
    A(f"buffer_atomic_add v{tb}, v{ta}, {s(rDBG,4)}, 0 offen" + (" sc0" if ret else ""))
    A("s_mov_b64 exec, -1")
    A.label(f"L_sig{tag}")

def seg_signal(A, tag, sseg, base, ta, tb):
    def body():
        A(f"""
        s_lshr_b32 s{sTmp}, s{sseg}, 3
        s_lshl_b32 s{sTmp}, s{sTmp}, 5
        s_and_b32 s{sTmp2}, s{sseg}, 4
        s_add_u32 s{sTmp}, s{sTmp}, s{sTmp2}
        s_add_u32 s{sTmp}, s{sTmp}, {base}
        v_mov_b32 v{ta}, s{sTmp}
        s_and_b32 s{sTmp2}, s{sseg}, 3
        s_lshl_b32 s{sTmp2}, s{sTmp2}, 3
        s_lshl_b32 s{sTmp2}, 1, s{sTmp2}
        v_mov_b32 v{tb}, s{sTmp2}
        """)
    signal(A, tag, body, ta, tb)

vL16, vT16, vC, vG = 1, 2, 3, 4

def common(A):
    A(f"""
    s_sub_u32 s{sI}, s{sH}, 32
    s_cmp_ge_u32 s{sI}, 224
    s_cbranch_scc1 L_end
    s_load_dwordx2 s[76:77], s[0:1], 0
    s_load_dwordx4 s[80:83], s[0:1], 16
    s_load_dwordx4 s[84:87], s[0:1], 32
    s_load_dwordx8 s[88:95], s[0:1], 64
    s_load_dwordx2 s[78:79], s[0:1], 96
    v_and_b32 v5, 63, v0
    v_and_b32 v{vC}, 15, v0
    v_lshrrev_b32 v{vG}, 4, v5
    v_lshlrev_b32 v{vL16}, 4, v5
    v_lshlrev_b32 v{vT16}, 4, v0
    s_mov_b32 s{sPerm0}, 0x05040100
    s_mov_b32 s{sPerm1}, 0x07060302
    s_mov_b32 s{sG}, 0
    s_waitcnt lgkmcnt(0)
    """)
    srd(A, rX, 76, 2 << 20)
    srd(A, rOUT, 78, 2 << 20)

def ln(A):
    X, WR, F, Sg, Tm, Mb, WF = 16, 32, 40, 72, 76, 80, 84
    A(f"s_cmp_ge_u32 s{sI}, 128")
    A("s_cbranch_scc1 L_ln_done")
    srd(A, rW, 88, 1024)
    A(f"s_lshl_b32 s{sA}, s{sI}, 2")
    A(f"s_add_u32 s{sA}, s{sA}, s{sW}")
    A(f"s_lshl_b32 s{sBq}, s{sA}, 4")
    A(f"s_lshl_b32 s{sA}, s{sA}, 12")
    for j in range(4): A(f"buffer_load_dwordx4 {v(X+4*j,4)}, v{vL16}, {s(rX,4)}, s{sA} offen offset:{1024*j}")
    A(f"buffer_load_dwordx4 {v(WR,4)}, v{vL16}, {s(rW,4)}, 0 offen")
    R4 = range(4)
    for j in R4:
        A(f"s_waitcnt vmcnt({4-j})")
        for d in range(4): unpack(A, F+8*j+2*d, F+8*j+2*d+1, X+4*j+d)
        A(f"v_add_f32 v{Sg+j}, v{F+8*j}, v{F+8*j+1}")
        for e in range(2, 8): A(f"v_add_f32 v{Sg+j}, v{Sg+j}, v{F+8*j+e}")
    allreduce(A, "v_add_f32", [Sg+j for j in R4], [Tm+j for j in R4])
    for j in R4: A(f"v_mul_f32 v{Mb+j}, {f2u(1/512):#x}, v{Sg+j}")
    for j in R4:
        for e in range(8):
            A(f"v_sub_f32 v{Tm}, v{F+8*j+e}, v{Mb+j}")
            if e == 0: A(f"v_mul_f32 v{Sg+j}, v{Tm}, v{Tm}")
            else: A(f"v_fmac_f32 v{Sg+j}, v{Tm}, v{Tm}")
    allreduce(A, "v_add_f32", [Sg+j for j in R4], [Tm+j for j in R4])
    for j in R4:
        rnd_bf(A, Mb+j)
        A(f"v_mul_f32 v{Sg+j}, {f2u(1/512):#x}, v{Sg+j}")
        rnd_bf(A, Sg+j)
        A(f"v_add_f32 v{Sg+j}, {f2u(1e-5):#x}, v{Sg+j}")
        rnd_bf(A, Sg+j)
        A(f"v_sqrt_f32 v{Sg+j}, v{Sg+j}")
        rnd_bf(A, Sg+j)
        A(f"v_rcp_f32 v{Tm+j}, v{Sg+j}")
    A("s_waitcnt vmcnt(0)")
    for d in range(4): unpack(A, WF+2*d, WF+2*d+1, WR+d)
    Q, E, RA = 92, 94, 96
    for j in R4:
        for d in range(4):
            f = F + 8*j + 2*d
            A(f"v_sub_f32 v{f}, v{f}, v{Mb+j}")
            A(f"v_sub_f32 v{f+1}, v{f+1}, v{Mb+j}")
            A(f"v_cvt_pk_bf16_f32 v{Q}, v{f}, v{f+1}")
            unpack(A, f, f+1, Q)
            for u in range(2):
                A(f"v_mul_f32 v{Q+u}, v{f+u}, v{Tm+j}")
                A(f"v_fma_f32 v{E+u}, -v{Q+u}, v{Sg+j}, v{f+u}")
                A(f"v_fmac_f32 v{Q+u}, v{E+u}, v{Tm+j}")
            A(f"v_cvt_pk_bf16_f32 v{X+4*j+d}, v{Q}, v{Q+1}")
            unpack(A, f, f+1, X+4*j+d)
            if d == 0: A(f"v_mul_f32 v{RA+j}, v{f}, v{WF}")
            else: A(f"v_fmac_f32 v{RA+j}, v{f}, v{WF+2*d}")
            A(f"v_fmac_f32 v{RA+j}, v{f+1}, v{WF+2*d+1}")
        A(f"s_add_u32 s{sTmp}, s{sA}, {XN}")
        A(f"buffer_store_dwordx4 {v(X+4*j,4)}, v{vL16}, {s(rWS,4)}, s{sTmp} offen offset:{1024*j} sc1")
        A(f"s_add_u32 s{sTmp}, s{sA}, {XB}")
        A(f"buffer_store_dwordx4 {v(X+4*j,4)}, v{vL16}, {s(rWS,4)}, s{sTmp} offen offset:{1024*j} sc1")
    allreduce(A, "v_add_f32", [RA+j for j in R4], [Tm+j for j in R4])
    for j in R4: rnd_bf(A, RA+j)
    A(f"s_add_u32 s{sTmp}, s{sBq}, {RL}")
    A("s_mov_b64 exec, 1")
    A(f"buffer_store_dwordx4 {v(RA,4)}, v{vL16}, {s(rWS,4)}, s{sTmp} offen sc1")
    A("s_mov_b64 exec, -1")
    A("s_waitcnt vmcnt(0)")
    A("s_barrier")
    signal(A, "ln", lambda: A(f"v_mov_b32 v5, {D_LN}\nv_mov_b32 v6, 1"), 5, 6)
    A.label("L_ln_done")

def load_frags(A, nb, issue8, home, TB, PT, depth=3):
    vm = Cnt(A, "vmcnt", 63); toks = {}
    for bi in range(nb + depth):
        if bi >= depth:
            b = bi - depth; Tt = TB[b % len(TB)]
            vm.wait(toks[b])
            for half in range(2):
                for t in range(2):
                    kind, base = home(b, half, t)
                    for r in range(4):
                        lo, hi = Tt + 8*half + 2*r, Tt + 8*half + 2*r + 1
                        sel = sPerm1 if t else sPerm0
                        if kind == "v": A(f"v_perm_b32 v{base+r}, v{hi}, v{lo}, s{sel}")
                        else:
                            A(f"v_perm_b32 v{PT+(r&1)}, v{hi}, v{lo}, s{sel}")
                            A(f"v_accvgpr_write_b32 a{base+r}, v{PT+(r&1)}")
        if bi < nb:
            for half in range(2):
                issue8(bi, half, TB[bi % len(TB)] + 8*half)
                for _ in range(8): toks[bi] = vm.issue()

def hrole(A):
    MI = {"k": 0, "v": 1, "q": 2}
    def wf(m, t, k):
        n = (MI[m]*16 + k)*2 + t
        return ("a", 4*n) if n < 64 else ("v", 128 + 4*(n-64))
    def wop(m, t, k):
        kind, base = wf(m, t, k)
        return (a if kind == "a" else v)(base, 4)
    vWa, vXs, vXB = 5, 6, 7
    A(f"""
    s_mul_i32 s{sHd}, s{sI}, 205
    s_lshr_b32 s{sHd}, s{sHd}, 10
    s_mul_i32 s{sTmp}, s{sHd}, {NR}
    s_sub_u32 s{sR}, s{sI}, s{sTmp}
    ; W voffset = g*65536 + h*256 + 64w + 4c
    v_lshlrev_b32 v{vWa}, 16, v{vG}
    v_lshl_add_u32 v{vWa}, v{vC}, 2, v{vWa}
    s_lshl_b32 s{sTmp}, s{sHd}, 8
    s_lshl_b32 s{sTmp2}, s{sW}, 6
    s_add_u32 s{sTmp}, s{sTmp}, s{sTmp2}
    v_add_u32 v{vWa}, s{sTmp}, v{vWa}
    v_lshlrev_b32 v{vXs}, 10, v{vC}
    v_lshl_add_u32 v{vXs}, v{vG}, 4, v{vXs}
    s_lshr_b32 s{sTmp}, s{sW}, 1
    s_lshl_b32 s{sTmp}, s{sTmp}, 14
    s_and_b32 s{sTmp2}, s{sW}, 1
    s_lshl_b32 s{sTmp2}, s{sTmp2}, 9
    s_add_u32 s{sTmp}, s{sTmp}, s{sTmp2}
    v_add_u32 v{vXs}, s{sTmp}, v{vXs}
    v_mov_b32 v{vXB}, v{vL16}
    """)
    mats = "kvq"
    def issue8(b, half, Tt):
        m = mats[b // 8]; k = 2*(b % 8) + half
        if b % 8 == 0 and half == 0: srd(A, rW, {"q": 80, "k": 82, "v": 84}[m], 4 << 20)
        for j in range(8):
            A(f"s_mov_b32 s{sTmp}, {(32*k + j)*8192}")
            A(f"buffer_load_dword v{Tt+j}, v{vWa}, {s(rW,4)}, s{sTmp} offen")
    load_frags(A, 24, issue8, lambda b, half, t: wf(mats[b // 8], t, 2*(b % 8) + half), [16, 32, 48], 64)
    wait_dword(A, "ln", D_LN, 128, 8, 9)
    sM0 = 35
    def dma_x(sseg):
        A(f"s_lshl_b32 s{sTmp}, s{sseg}, 15")
        A(f"s_add_u32 s{sTmp}, s{sTmp}, {XN}")
        A(f"s_mov_b32 m0, s{sM0}")
        for k in range(8):
            if k: A(f"s_add_u32 m0, m0, 960")
            A(f"buffer_load_dwordx4 v{vXs}, {s(rWS,4)}, s{sTmp} offen offset:{64*k} sc1 lds")
        A(f"s_xor_b32 s{sM0}, s{sM0}, 32768")
    A(f"s_lshl_b32 s{sM0}, s{sW}, 13")
    A(f"s_mov_b32 s{sSeg}, s{sR}")
    A(f"s_mov_b32 s{sPrev}, 64")
    dma_x(sSeg)
    ACC, XF, PK = 16, 64, 80
    acc = lambda tile, m, t: ACC + 4*((tile*3 + MI[m])*2 + t)
    A.label("L_p1")
    A("s_waitcnt vmcnt(0)")
    A("s_barrier")
    A(f"s_cmp_ge_u32 s{sPrev}, 64")
    A("s_cbranch_scc1 L_p1_nosig")
    seg_signal(A, "kv", sPrev, D_KV, 8, 9)
    A.label("L_p1_nosig")
    A(f"s_cmp_ge_u32 s{sSeg}, 64")
    A("s_cbranch_scc1 L_p1_done")
    A(f"s_add_u32 s{sA}, s{sSeg}, {NR}")
    A(f"s_cmp_ge_u32 s{sA}, 64")
    A("s_cbranch_scc1 L_p1_nodma")
    dma_x(sA)
    A.label("L_p1_nodma")
    lg = Cnt(A, "lgkmcnt", 15); tk = {}
    def rdx(i):
        A(f"ds_read_b128 {v(XF+4*(i&3),4)}, v{vXB} offset:{1024*i}"); tk[i] = lg.issue()
    for i in range(3): rdx(i)
    A(f"s_lshl_b32 s{sA}, s{sSeg}, 5")
    A(f"s_add_u32 s{sA}, s{sA}, s{sHd}")
    A(f"s_lshl_b32 s{sBq}, s{sA}, 13")
    A(f"s_add_u32 s{sBq}, s{sBq}, {QX}")
    A(f"s_lshl_b32 s{sA}, s{sA}, 14")
    A(f"s_add_u32 s{sA}, s{sA}, {KV}")
    def st_t(m, tile, pk, sbase):
        for i in range(4): A(f"v_cvt_pk_bf16_f32 v{pk+i}, v{acc(tile,m,0)+i}, v{acc(tile,m,1)+i}")
        A(f"s_add_u32 s{sTmp}, s{sbase}, {4096*tile}")
        A(f"buffer_store_dwordx4 {v(pk,4)}, v{vT16}, {s(rWS,4)}, s{sTmp} offen sc1")
    for i in range(32):
        tile, k = i >> 4, i & 15
        lg.wait(tk[i])
        xf = v(XF+4*(i&3), 4)
        n = 0
        for m in "kvq":
            for t in range(2):
                d = v(acc(tile, m, t), 4); c = 0 if k == 0 else d
                if m == "v": A(f"v_mfma_f32_16x16x32_bf16 {d}, {xf}, {wop(m,t,k)}, {c}")
                else: A(f"v_mfma_f32_16x16x32_bf16 {d}, {wop(m,t,k)}, {xf}, {c}")
                n += 1
                if n == 1 and i + 3 < 32: rdx(i + 3)
        if i == 17: st_t("k", 0, PK, sA)
        if i == 19: st_t("q", 0, PK+4, sBq)
    st_t("k", 1, PK+8, sA)
    for t in range(2):
        pk = PK + 12 + 4*t
        for tile in range(2):
            for u in range(2): A(f"v_cvt_pk_bf16_f32 v{pk+2*tile+u}, v{acc(tile,'v',t)+2*u}, v{acc(tile,'v',t)+2*u+1}")
        A(f"s_add_u32 s{sTmp}, s{sA}, {8192 + 4096*t}")
        A(f"buffer_store_dwordx4 {v(pk,4)}, v{vT16}, {s(rWS,4)}, s{sTmp} offen sc1")
    st_t("q", 1, PK+20, sBq)
    A(f"v_xor_b32 v{vXB}, 0x8000, v{vXB}")
    A(f"s_mov_b32 s{sPrev}, s{sSeg}")
    A(f"s_add_u32 s{sSeg}, s{sSeg}, {NR}")
    A("s_branch L_p1")
    A.label("L_p1_done")
    RSM = 1056; L_MN = 0; L_KM = 8704; L_VM = L_KM + 4096
    vMW, vMR, vNI, vVR, vVW = 5, 6, 7, 8, 9
    sMask = 52
    sQo, sVo, sOo = 36, 37, 38
    A(f"""
    ; row(c)
    v_lshrrev_b32 v10, 2, v{vC}
    v_and_b32 v11, 1, v{vC}
    v_lshl_add_u32 v10, v10, 1, v11
    v_mul_u32_u24 v10, {RSM}, v10
    v_lshl_add_u32 v{vMR}, v{vG}, 4, v10
    v_lshl_add_u32 v{vMW}, v{vG}, 6, v10
    v_and_b32 v11, 2, v{vC}
    v_lshl_add_u32 v{vMW}, v11, 4, v{vMW}
    s_lshl_b32 s{sTmp}, s{sW}, 8
    v_add_u32 v{vMW}, s{sTmp}, v{vMW}
    v_mov_b32 v{vNI}, 0xff800000
    v_lshrrev_b32 v{vVW}, 1, v{vT16}
    v_lshrrev_b32 v{vVR}, 1, v{vL16}
    s_and_b32 s{sTmp}, s{sW}, 2
    s_lshl_b32 s{sVo}, s{sTmp}, 10
    s_lshl_b32 s{sTmp}, s{sTmp}, 9
    v_add_u32 v{vVR}, s{sTmp}, v{vVR}
    s_and_b32 s{sTmp}, s{sW}, 1
    s_lshl_b32 s{sQo}, s{sTmp}, 12
    s_lshl_b32 s{sOo}, s{sTmp}, 17
    s_add_u32 s{sOo}, s{sOo}, s{sVo}
    s_lshl_b32 s{sTmp2}, s{sHd}, 12
    s_add_u32 s{sOo}, s{sOo}, s{sTmp2}
    s_add_u32 s{sOo}, s{sOo}, {OX}
    s_lshl_b32 s{sTmp}, s{sTmp}, 4
    v_lshlrev_b32 v10, 2, v{vG}
    v_sub_u32 v10, v{vC}, v10
    v_add_u32 v10, s{sTmp}, v10
    s_mov_b32 s{sC}, {f2u((128 ** -0.5) * math.log2(math.e)):#x}
    """)
    for t in range(2):
        for i in range(4): A(f"v_cmp_le_i32 s[{sMask+2*(4*t+i)}:{sMask+2*(4*t+i)+1}], {16*t+i}, v10")
    wait_dword(A, "init", D_INIT, 32, 10, 11)
    QF, KF, VF, S, AM, MF = 16, 32, 64, 80, 92, 108
    t0, t1 = 10, 11
    A(f"s_mov_b32 s{sSeg}, s{sR}")
    A.label("L_p2")
    A(f"""
    s_lshl_b32 s{sA}, s{sSeg}, 5
    s_add_u32 s{sA}, s{sA}, s{sHd}
    s_lshl_b32 s{sBq}, s{sA}, 13
    s_add_u32 s{sBq}, s{sBq}, {QX}
    s_add_u32 s{sBq}, s{sBq}, s{sQo}
    s_lshl_b32 s{sA}, s{sA}, 14
    s_add_u32 s{sA}, s{sA}, {KV}
    """)
    for k in range(4): A(f"buffer_load_dwordx4 {v(QF+4*k,4)}, v{vL16}, {s(rWS,4)}, s{sBq} offen offset:{1024*k} sc1")
    for i in range(8):
        if i == 4: A(f"s_add_u32 s{sA}, s{sA}, 4096")
        A(f"buffer_load_dwordx4 {v(KF+4*i,4)}, v{vL16}, {s(rWS,4)}, s{sA} offen offset:{1024*(i&3)} sc1")
    A(f"s_add_u32 s{sA}, s{sA}, s{sVo}")
    for t in range(2):
        A(f"s_add_u32 s{sA}, s{sA}, 4096")
        for wp in range(2): A(f"buffer_load_dwordx4 {v(VF+4*(2*wp+t),4)}, v{vL16}, {s(rWS,4)}, s{sA} offen offset:{1024*wp} sc1")
    A("s_waitcnt vmcnt(4)")
    for k in range(4):
        for t in range(2):
            A(f"v_mfma_f32_16x16x32_bf16 {v(S+4*t,4)}, {v(KF+16*t+4*k,4)}, {v(QF+4*k,4)}, {v(S+4*t,4) if k else 0}")
    A(f"s_lshl_b32 s{sA}, s{sSeg}, 13")
    A(f"s_add_u32 s{sA}, s{sA}, {MEMG}")
    A(f"s_add_u32 s{sBq}, s{sA}, 4096")
    for i in range(8): A(f"v_cndmask_b32 v{S+i}, v{vNI}, v{S+i}, s[{sMask+2*i}:{sMask+2*i+1}]")
    A(f"v_max3_f32 v12, v{S}, v{S+1}, v{S+2}")
    A(f"v_max3_f32 v12, v12, v{S+3}, v{S+4}")
    A(f"v_max3_f32 v12, v12, v{S+5}, v{S+6}")
    A(f"v_max_f32 v12, v12, v{S+7}")
    A.label("L_p2_poll")
    A(f"buffer_load_dwordx4 {v(MF,4)}, v{vT16}, {s(rWS,4)}, s{sA} offen sc1")
    A(f"buffer_load_dwordx4 {v(MF+4,4)}, v{vT16}, {s(rWS,4)}, s{sBq} offen sc1")
    A(f"""
    s_waitcnt vmcnt(0)
    v_max3_u32 v{t0}, v{MF}, v{MF+1}, v{MF+2}
    v_max3_u32 v{t0}, v{t0}, v{MF+3}, v{MF+4}
    v_max3_u32 v{t0}, v{t0}, v{MF+5}, v{MF+6}
    v_max_u32 v{t0}, v{t0}, v{MF+7}
    v_cmp_eq_u32 vcc, -1, v{t0}
    s_cbranch_vccz L_p2_got
    s_sleep 4
    s_add_u32 s{sG}, s{sG}, 1
    s_cmp_lt_u32 s{sG}, {SPIN}
    s_cbranch_scc1 L_p2_poll
    s_branch L_end
    L_p2_got:
    ds_write2_b64 v{vMW}, {v(MF,2)}, {v(MF+2,2)} offset0:0 offset1:2
    ds_write2_b64 v{vMW}, {v(MF+4,2)}, {v(MF+6,2)} offset0:1 offset1:3
    s_waitcnt lgkmcnt(0)
    s_barrier
    """)
    lg = Cnt(A, "lgkmcnt", 15); tk = {}
    def rdm(k):
        A(f"ds_read_b128 {v(MF+4*(k&3),4)}, v{vMR} offset:{L_MN+64*k}"); tk[k] = lg.issue()
    for k in range(3): rdm(k)
    for k in range(16):
        lg.wait(tk[k]); xf = v(MF+4*(k&3), 4)
        for n, (m, t) in enumerate((("k",0),("k",1),("v",0),("v",1))):
            d = v(AM+4*n, 4); c = 0 if k == 0 else d
            if m == "v": A(f"v_mfma_f32_16x16x32_bf16 {d}, {xf}, {wop(m,t,k)}, {c}")
            else: A(f"v_mfma_f32_16x16x32_bf16 {d}, {wop(m,t,k)}, {xf}, {c}")
            if n == 0 and k + 3 < 16: rdm(k + 3)
    for i in range(4): A(f"v_cvt_pk_bf16_f32 v{AM+i}, v{AM+i}, v{AM+4+i}")
    A(f"ds_write_b128 v{vT16}, {v(AM,4)} offset:{L_KM}")
    A(f"v_cvt_pk_bf16_f32 v{AM+8}, v{AM+8}, v{AM+9}")
    A(f"v_cvt_pk_bf16_f32 v{AM+9}, v{AM+12}, v{AM+13}")
    A(f"ds_write_b64 v{vVW}, {v(AM+8,2)} offset:{L_VM}")
    KM, VMp, ONES, OO, LL = KF, KF+16, KF+24, AM, MF
    for i in range(4): A(f"v_mov_b32 v{ONES+i}, 0x3f803f80")
    A("s_waitcnt lgkmcnt(0)")
    A("s_barrier")
    for k in range(4): A(f"ds_read_b128 {v(KM+4*k,4)}, v{vL16} offset:{L_KM+1024*k}")
    for wp in range(2):
        for t in range(2):
            A(f"ds_read_b32 v{VMp+2*(2*wp+t)}, v{vVR} offset:{L_VM+512*wp+4*t}")
            A(f"v_mov_b32 v{VMp+2*(2*wp+t)+1}, 0")
    for k in range(4):
        A(f"s_waitcnt lgkmcnt({7-k})")
        A(f"v_mfma_f32_16x16x32_bf16 {v(S+8,4)}, {v(KM+4*k,4)}, {v(QF+4*k,4)}, {v(S+8,4) if k else 0}")
    A(f"v_max3_f32 v{t0}, v12, v{S+8}, v{S+9}")
    for sw in (32, 16):
        A(f"v_mov_b32 v{t1}, v{t0}")
        A(f"v_permlane{sw}_swap_b32 v{t0}, v{t1}")
        A(f"v_max_f32 v{t0}, v{t0}, v{t1}")
    A(f"v_mul_f32 v{t0}, s{sC}, v{t0}")
    for i in range(10): A(f"v_fma_f32 v{S+i}, v{S+i}, s{sC}, -v{t0}")
    for i in range(10): A(f"v_exp_f32 v{S+i}, v{S+i}")
    for i in range(4): A(f"v_cvt_pk_bf16_f32 v{S+i}, v{S+2*i}, v{S+2*i+1}")
    A(f"v_cvt_pk_bf16_f32 v{S+8}, v{S+8}, v{S+9}")
    A(f"v_mov_b32 v{S+9}, 0")
    A("s_waitcnt lgkmcnt(0)")
    A(f"v_mfma_f32_16x16x32_bf16 {v(LL,4)}, {v(ONES,4)}, {v(S,4)}, 0")
    for n in range(4): A(f"v_mfma_f32_16x16x32_bf16 {v(OO+4*n,4)}, {v(VF+4*n,4)}, {v(S,4)}, 0")
    A(f"v_mfma_f32_16x16x16_bf16 {v(LL,4)}, {v(ONES,2)}, {v(S+8,2)}, {v(LL,4)}")
    for n in range(4): A(f"v_mfma_f32_16x16x16_bf16 {v(OO+4*n,4)}, {v(VMp+2*n,2)}, {v(S+8,2)}, {v(OO+4*n,4)}")
    A(f"v_rcp_f32 v{t0}, v{LL}")
    A(f"s_lshl_b32 s{sA}, s{sSeg}, 18")
    A(f"s_add_u32 s{sA}, s{sA}, s{sOo}")
    for wp in range(2):
        for i in range(8): A(f"v_mul_f32 v{OO+8*wp+i}, v{OO+8*wp+i}, v{t0}")
        for i in range(4): A(f"v_cvt_pk_bf16_f32 v{OO+8*wp+i}, v{OO+8*wp+i}, v{OO+8*wp+4+i}")
        A(f"buffer_store_dwordx4 {v(OO+8*wp,4)}, v{vL16}, {s(rWS,4)}, s{sA} offen offset:{1024*wp} sc1")
    A("s_waitcnt vmcnt(0)")
    A("s_barrier")
    seg_signal(A, "o", sSeg, D_O, 10, 11)
    A(f"s_add_u32 s{sSeg}, s{sSeg}, {NR}")
    A(f"s_cmp_lt_u32 s{sSeg}, 64")
    A("s_cbranch_scc1 L_p2")
    A("s_branch L_end")

def orole(A):
    vWa, vWb, vXo, vRd = 5, 6, 7, 8
    sCs, sT_ = 28, 30
    A(f"""
    s_sub_u32 s{sTmp}, s{sI}, 176
    s_and_b32 s{sCs}, s{sTmp}, 15
    s_lshr_b32 s{sT_}, s{sTmp}, 4
    v_lshlrev_b32 v{vWa}, 13, v{vG}
    v_lshl_add_u32 v{vWa}, v{vC}, 2, v{vWa}
    s_lshl_b32 s{sTmp}, s{sW}, 20
    s_lshl_b32 s{sTmp2}, s{sCs}, 6
    s_add_u32 s{sTmp}, s{sTmp}, s{sTmp2}
    v_add_u32 v{vWa}, s{sTmp}, v{vWa}
    v_add_u32 v{vWb}, 4096, v{vWa}
    v_lshlrev_b32 v{vXo}, 12, v{vG}
    v_lshl_add_u32 v{vXo}, v{vC}, 2, v{vXo}
    s_lshl_b32 s{sTmp}, s{sW}, 10
    s_add_u32 s{sTmp}, s{sTmp}, s{sTmp2}
    v_add_u32 v{vXo}, s{sTmp}, v{vXo}
    s_lshl_b32 s{sTmp}, s{sW}, 2
    v_add_u32 v{vRd}, s{sTmp}, v{vL16}
    """)
    srd(A, rW, 86, 4 << 20)
    def issue8(b, half, Tt):
        ks = 2*b + half
        A(f"s_mov_b32 s{sTmp}, {ks*32768}")
        for j in range(8): A(f"buffer_load_dword v{Tt+j}, v{vWa if j < 4 else vWb}, {s(rW,4)}, s{sTmp} offen offset:{1024*(j&3)}")
    load_frags(A, 16, issue8, lambda b, half, t: ("a", 4*((2*b+half)*2 + t)), [16, 32, 48], 64)
    wait_dword(A, "moe", D_MOEDONE, 1, 10, 11, sleep=8)
    OF, D, XX, P = 128, 16, 24, 32
    A.label("L_o")
    A(f"""
    s_lshl_b32 s{sA}, s{sT_}, 14
    buffer_load_dword v{XX}, v{vXo}, {s(rX,4)}, s{sA} offen
    s_add_u32 s{sTmp}, s{sA}, {XB}
    buffer_load_dword v{XX+1}, v{vXo}, {s(rWS,4)}, s{sTmp} offen sc1
    s_lshr_b32 s{sTmp}, s{sT_}, 4
    s_lshl_b32 s{sTmp}, s{sTmp}, 5
    s_bfe_u32 s{sTmp2}, s{sT_}, 0x30001
    s_add_u32 s{sTmp}, s{sTmp}, s{sTmp2}
    v_mov_b32 v10, s{sTmp}
    s_lshl_b32 s{sBq}, s{sT_}, 17
    s_lshl_b32 s{sTmp}, s{sW}, 15
    s_add_u32 s{sBq}, s{sBq}, s{sTmp}
    s_add_u32 s{sBq}, s{sBq}, {OX}
    L_o_poll:
    buffer_load_ubyte v11, v10, {s(rDBG,4)}, 0 offen offset:{D_O} sc1
    s_waitcnt vmcnt(0)
    v_readfirstlane_b32 s{sTmp}, v11
    s_cmp_eq_u32 s{sTmp}, 32
    s_cbranch_scc1 L_o_go
    s_sleep 4
    s_add_u32 s{sG}, s{sG}, 1
    s_cmp_lt_u32 s{sG}, {SPIN}
    s_cbranch_scc1 L_o_poll
    s_branch L_end
    L_o_go:
    """)
    for ks in range(32):
        if ks and ks % 4 == 0: A(f"s_add_u32 s{sBq}, s{sBq}, 4096")
        A(f"buffer_load_dwordx4 {v(OF+4*ks,4)}, v{vL16}, {s(rWS,4)}, s{sBq} offen offset:{1024*(ks&3)} sc1")
    for ks in range(32):
        A(f"s_waitcnt vmcnt({31-ks})")
        for t in range(2):
            A(f"v_mfma_f32_16x16x32_bf16 {v(D+4*t,4)}, {v(OF+4*ks,4)}, {a(4*(2*ks+t),4)}, {v(D+4*t,4) if ks else 0}")
    A(f"ds_write_b128 v{vT16}, {v(D,4)}")
    A(f"ds_write_b128 v{vT16}, {v(D+4,4)} offset:4096")
    A("s_waitcnt lgkmcnt(0)")
    A("s_barrier")
    for t in range(2):
        for w2 in range(4): A(f"ds_read_b32 v{P+4*t+w2}, v{vRd} offset:{4096*t+1024*w2}")
    unpack(A, XX+2, XX+3, XX); unpack(A, XX+4, XX+5, XX+1)
    A("s_waitcnt lgkmcnt(0)")
    A("s_barrier")
    for t in range(2):
        A(f"v_add_f32 v{P+4*t}, v{P+4*t}, v{P+4*t+1}")
        A(f"v_add_f32 v{P+4*t+2}, v{P+4*t+2}, v{P+4*t+3}")
        A(f"v_add_f32 v{P+4*t}, v{P+4*t}, v{P+4*t+2}")
    A(f"v_cvt_pk_bf16_f32 v{P+1}, v{P}, v{P+4}")
    unpack(A, P, P+4, P+1)
    A(f"v_add_f32 v{P}, v{P}, v{XX+2}")
    A(f"v_add_f32 v{P+4}, v{P+4}, v{XX+3}")
    A(f"v_cvt_pk_bf16_f32 v{P+1}, v{P}, v{P+4}")
    unpack(A, P, P+4, P+1)
    A(f"v_add_f32 v{P}, v{P}, v{XX+4}")
    A(f"v_add_f32 v{P+4}, v{P+4}, v{XX+5}")
    A(f"v_cvt_pk_bf16_f32 v{P+1}, v{P}, v{P+4}")
    A(f"buffer_store_dword v{P+1}, v{vXo}, {s(rOUT,4)}, s{sA} offen")
    A(f"s_add_u32 s{sT_}, s{sT_}, {NG}")
    A(f"s_cmp_lt_u32 s{sT_}, 128")
    A("s_cbranch_scc1 L_o")
    A("s_branch L_end")

def mrole(A):
    sM, sI0, sI1 = 28, 29, 30
    vGa, vDa, vT4 = 5, 6, 7
    rU, rD = 52, 56
    A(f"""
    s_sub_u32 s{sM}, s{sI}, 160
    v_lshrrev_b32 v{vGa}, 2, v{vL16}
    s_mul_i32 s{sTmp}, s{sM}, 224
    s_mul_i32 s{sTmp2}, s{sW}, {128*3584}
    s_add_u32 s{sTmp}, s{sTmp}, s{sTmp2}
    v_add_u32 v{vGa}, s{sTmp}, v{vGa}
    v_lshlrev_b32 v{vT4}, 2, v0
    s_mul_i32 s{sTmp}, s{sM}, {112*1024}
    v_add_u32 v{vDa}, s{sTmp}, v{vT4}
    """)
    srd(A, rW, 90, 512*3584); srd(A, rU, 92, 512*3584); srd(A, rD, 94, 1792*1024)
    n = 0
    def throttle():
        nonlocal n
        n += 1
        if n % 16 == 0: A("s_waitcnt vmcnt(40)")
    for k in range(128):
        A(f"s_mov_b32 s{sTmp}, {k*3584}")
        A(f"buffer_load_dword v{128+k}, v{vGa}, {s(rW,4)}, s{sTmp} offen"); throttle()
        A(f"buffer_load_dword a{k}, v{vGa}, {s(rU,4)}, s{sTmp} offen"); throttle()
    for f in range(112):
        if f % 4 == 0: A(f"s_mov_b32 s{sTmp}, {f*1024}")
        A(f"buffer_load_dword a{128+f}, v{vDa}, {s(rD,4)}, s{sTmp} offen offset:{1024*(f&3)}"); throttle()
    wait_dword(A, "lnm", D_LN, 128, 10, 11)
    K, Tm = 16, 24
    A(f"v_lshlrev_b32 v10, 5, v0")
    A(f"s_mov_b32 s{sTmp}, {RL}")
    A(f"buffer_load_dwordx4 {v(K,4)}, v10, {s(rWS,4)}, s{sTmp} offen sc1")
    A(f"buffer_load_dwordx4 {v(K+4,4)}, v10, {s(rWS,4)}, s{sTmp} offen offset:16 sc1")
    A(f"v_lshlrev_b32 v10, 3, v0")
    A(f"v_sub_u32 v10, 2047, v10")
    A("s_waitcnt vmcnt(0)")
    for e in range(8):
        A(f"v_ashrrev_i32 v11, 31, v{K+e}")
        A(f"v_or_b32 v11, 0x80000000, v11")
        A(f"v_xor_b32 v{K+e}, v{K+e}, v11")
        A(f"v_and_b32 v{K+e}, 0xffff0000, v{K+e}")
        A(f"v_subrev_u32 v11, {e}, v10")
        A(f"v_or_b32 v{K+e}, v{K+e}, v11")
    A(f"s_lshl_b32 s{sTmp}, s{sW}, 2")
    A(f"v_mov_b32 v13, s{sTmp}")
    A("v_mov_b32 v14, 0")
    for rnd, sk in enumerate((sI0, sI1)):
        A(f"v_max3_u32 v12, v{K}, v{K+1}, v{K+2}")
        A(f"v_max3_u32 v12, v12, v{K+3}, v{K+4}")
        A(f"v_max3_u32 v12, v12, v{K+5}, v{K+6}")
        A(f"v_max_u32 v12, v12, v{K+7}")
        allreduce(A, "v_max_u32", [12], [11])
        A(f"ds_write_b32 v13, v12 offset:{16*rnd}")
        A("s_waitcnt lgkmcnt(0)")
        A("s_barrier")
        A(f"ds_read_b128 {v(Tm,4)}, v14 offset:{16*rnd}")
        A("s_waitcnt lgkmcnt(0)")
        A(f"v_max3_u32 v12, v{Tm}, v{Tm+1}, v{Tm+2}")
        A(f"v_max_u32 v12, v12, v{Tm+3}")
        A(f"v_readfirstlane_b32 s{sk}, v12")
        if rnd == 0:
            for e in range(8):
                A(f"v_cmp_ne_u32 vcc, v12, v{K+e}")
                A(f"v_cndmask_b32 v{K+e}, 0, v{K+e}, vcc")
    for sk in (sI0, sI1):
        A(f"s_and_b32 s{sk}, s{sk}, 0x7ff")
        A(f"s_sub_u32 s{sk}, 2047, s{sk}")
    X0, X1, R0 = 16, 17, 18
    for sk, xr, rr in ((sI0, X0, R0), (sI1, X1, R0+1)):
        A(f"s_lshl_b32 s{sTmp}, s{sk}, 10")
        A(f"s_add_u32 s{sTmp}, s{sTmp}, {XN}")
        A(f"buffer_load_dword v{xr}, v{vT4}, {s(rWS,4)}, s{sTmp} offen sc1")
        A(f"s_lshl_b32 s{sTmp}, s{sk}, 2")
        A(f"s_add_u32 s{sTmp}, s{sTmp}, {RL}")
        A(f"buffer_load_dword v{rr}, v14, {s(rWS,4)}, s{sTmp} offen sc1")
    AC = 24
    for i in range(8): A(f"v_mov_b32 v{AC+i}, 0")
    A("s_waitcnt vmcnt(0)")
    U = 32
    for p in range(64):
        sx = 60 + 6*(p & 1)
        A(f"v_readlane_b32 s{sx}, v{X0}, {p}")
        A(f"v_readlane_b32 s{sx+1}, v{X1}, {p}")
        for u in range(2): A(f"v_accvgpr_read_b32 v{U+4+u}, a{2*p+u}")
        A(f"s_lshl_b32 s{sx+2}, s{sx}, 16"); A(f"s_lshl_b32 s{sx+3}, s{sx+1}, 16")
        A(f"s_and_b32 s{sx+4}, s{sx}, 0xffff0000"); A(f"s_and_b32 s{sx+5}, s{sx+1}, 0xffff0000")
        for u in range(2):
            for mat in range(2):
                unpack(A, U+2*mat, U+2*mat+1, (128+2*p+u) if mat == 0 else (U+4+u))
            for mat in range(2):
                for tok in range(2):
                    for col in range(2):
                        A(f"v_fmac_f32 v{AC+4*mat+2*tok+col}, s{sx+2+2*u+tok}, v{U+2*mat+col}")
    LR, LH = 64, 64 + 8192
    A(f"ds_write_b128 v{vT16}, {v(AC,4)} offset:{LR}")
    A(f"ds_write_b128 v{vT16}, {v(AC+4,4)} offset:{LR+4096}")
    A("s_waitcnt lgkmcnt(0)")
    A("s_barrier")
    Pp = 40
    for mat in range(2):
        for w2 in range(4): A(f"ds_read_b128 {v(Pp+16*mat+4*w2,4)}, v{vL16} offset:{LR+4096*mat+1024*w2}")
    A("s_waitcnt lgkmcnt(0)")
    for mat in range(2):
        for i in range(4):
            b = Pp + 16*mat + i
            A(f"v_add_f32 v{b}, v{b}, v{b+4}"); A(f"v_add_f32 v{b+8}, v{b+8}, v{b+12}"); A(f"v_add_f32 v{b}, v{b}, v{b+8}")
            rnd_bf(A, b)
    def sigmoid(dst, src):
        A(f"v_mul_f32 v{dst}, {f2u(-math.log2(math.e)):#x}, v{src}")
        A(f"v_exp_f32 v{dst}, v{dst}")
        A(f"v_add_f32 v{dst}, 1.0, v{dst}")
        A(f"v_rcp_f32 v{dst}, v{dst}")
    for i in range(4):
        sigmoid(Pp+4+i, Pp+i)
        A(f"v_mul_f32 v{Pp+i}, v{Pp+i}, v{Pp+4+i}")
        rnd_bf(A, Pp+i)
        A(f"v_mul_f32 v{Pp+i}, v{Pp+i}, v{Pp+16+i}")
        rnd_bf(A, Pp+i)
    A(f"ds_write_b128 v{vL16}, {v(Pp,4)} offset:{LH}")
    for i in range(4): A(f"v_mov_b32 v{AC+i}, 0")
    A("s_waitcnt lgkmcnt(0)")
    HB = 40
    for blk in range(7):
        for q in range(8): A(f"ds_read_b128 {v(HB+4*q,4)}, v14 offset:{LH+16*(8*blk+q)}")
        A("s_waitcnt lgkmcnt(0)")
        for q in range(8):
            for u in range(2):
                f = 2*(8*blk+q) + u
                A(f"v_accvgpr_read_b32 v{U+2}, a{128+f}")
                unpack(A, U, U+1, U+2)
                for tok in range(2):
                    for col in range(2):
                        A(f"v_fmac_f32 v{AC+2*tok+col}, v{HB+4*q+2*tok+u}, v{U+col}")
    A(f"s_lshl_b32 s{sTmp}, s{sM}, 12")
    A(f"s_add_u32 s{sTmp}, s{sTmp}, {MOEP}")
    A(f"buffer_store_dwordx4 {v(AC,4)}, v{vT16}, {s(rWS,4)}, s{sTmp} offen sc1")
    A("s_waitcnt vmcnt(0)")
    A("s_barrier")
    signal(A, "moe", lambda: A(f"v_mov_b32 v10, {D_MOE}\nv_mov_b32 v11, 1"), 10, 11, ret=True)
    A("s_waitcnt vmcnt(0)")
    A(f"s_cmp_lg_u32 s{sW}, 0")
    A("s_cbranch_scc1 L_m_w")
    A("s_mov_b64 exec, 1")
    A("ds_write_b32 v14, v11 offset:32")
    A("s_mov_b64 exec, -1")
    A.label("L_m_w")
    A("s_waitcnt lgkmcnt(0)")
    A("s_barrier")
    A("ds_read_b32 v11, v14 offset:32")
    A("s_waitcnt lgkmcnt(0)")
    A(f"v_readfirstlane_b32 s{sTmp}, v11")
    A(f"s_cmp_lg_u32 s{sTmp}, 15")
    A("s_cbranch_scc1 L_end")
    for m in range(16):
        A(f"s_mov_b32 s{sTmp}, {MOEP + 4096*m}")
        A(f"buffer_load_dwordx4 {v(40+4*m,4)}, v{vT16}, {s(rWS,4)}, s{sTmp} offen sc1")
    for tok in range(2):
        sigmoid(U+tok, R0+tok); rnd_bf(A, U+tok)
    A("s_waitcnt vmcnt(0)")
    for m in range(1, 16):
        for i in range(4): A(f"v_add_f32 v{40+i}, v{40+i}, v{40+4*m+i}")
    for tok, (sk, xr) in enumerate(((sI0, X0), (sI1, X1))):
        unpack(A, U+2, U+3, xr)
        for col in range(2):
            r = 40 + 2*tok + col
            rnd_bf(A, r)
            A(f"v_mul_f32 v{r}, v{r}, v{U+tok}")
            rnd_bf(A, r)
            A(f"v_add_f32 v{r}, v{r}, v{U+2+col}")
        A(f"v_cvt_pk_bf16_f32 v{48+tok}, v{40+2*tok}, v{41+2*tok}")
        A(f"s_lshl_b32 s{sTmp}, s{sk}, 10")
        A(f"s_add_u32 s{sTmp}, s{sTmp}, {XB}")
        A(f"buffer_store_dword v{48+tok}, v{vT4}, {s(rWS,4)}, s{sTmp} offen sc1")
    A("s_waitcnt vmcnt(0)")
    A("s_barrier")
    signal(A, "moed", lambda: A(f"v_mov_b32 v10, {D_MOEDONE}\nv_mov_b32 v11, 1"), 10, 11)
    A("s_branch L_end")

HEADER = open("cdna_kernels/" + NAME + ".s.ref").read().split("; Override launch geometry")[0] if __import__("os").path.exists("cdna_kernels/" + NAME + ".s.ref") else ""

def gen_full(**kw):
    A = Asm()
    for ln_ in HEADER.strip().split("\n"):
        if ln_: A.raw(ln_)
    A.raw(f"; @launch grid=(256,1,1) block=(256,1,1) lds=163840")
    A.raw('.amdgcn_target "amdgcn-amd-amdhsa--gfx950"')
    A.raw(".text")
    kernel_begin(A, NAME + "_kernel")
    A(f"""
    s_cmp_ge_u32 s2, 256
    s_cbranch_scc1 L_end0
    {"s_memrealtime s[90:91]" if kw.get("stamps") else ""}
    s_load_dwordx4 s[4:7], s[0:1], 104
    s_getreg_b32 s{sX}, hwreg(HW_REG_XCC_ID)
    s_and_b32 s{sX}, s{sX}, 7
    v_lshrrev_b32 v1, 6, v0
    v_readfirstlane_b32 s{sW}, v1
    s_waitcnt lgkmcnt(0)
    """)
    srd(A, rWS, 6, T.WS_BYTES)
    srd(A, rDBG, 4, 256)
    T.role_select(A, "L_worker")
    T.team(A, kvchk=True, **kw)
    A.label("L_end0")
    A("s_endpgm")
    A.label("L_worker")
    common(A)
    A(f"s_cmp_ge_u32 s{sI}, 176")
    A("s_cbranch_scc1 L_orole")
    A(f"s_cmp_ge_u32 s{sI}, 160")
    A("s_cbranch_scc1 L_mrole")
    ln(A)
    hrole(A)
    A.label("L_orole")
    orole(A)
    A.label("L_end")
    A("s_waitcnt vmcnt(0)")
    A("s_endpgm")
    A.label("L_mrole")
    mrole(A)
    A.raw('.section .rodata,"a"')
    A.raw(descriptor(NAME + "_kernel", 512, 102, 256))
    T.STAMP_NAMES = A.stamp_names
    return A.text()

if __name__ == "__main__":
    txt = gen_full()
    open("full.s", "w").write(txt)
    open("cdna_kernels/" + NAME + ".s", "w").write(txt)
```

```python
from asmlib import *

H2 = 0
H1 = 1 << 20
RES = (1 << 20) + (256 << 10)
XN = 2 << 20
KV = 16 << 20
QX = 50 << 20
MEMG = (1 << 20) + (512 << 10)
WS_BYTES = 256 << 20

L_MEM = 0; L_KX = 8192; L_VX = 16384; L_Q = 24576; L_K = 26880; L_O = 29184; L_ST = 31744; L_W = 32768
RS = 288; RSO = 320

rWS, rDBG, rW = 8, 12, 16
sX, sW, sT, sH = 20, 21, 22, 23
sStep, sTmp, sG, sTmp2 = 24, 25, 26, 27
sO1, sO1b, sO2, sO2b = 28, 29, 30, 31
sRd2, sPubO, sRst2, sRst1 = 32, 33, 34, 35
sKV, sMG, sC, sPerm0, sPerm1 = 36, 37, 38, 39, 40
sB = 44
sRetA, sRetB, sRet2 = 48, 49, 50
sMK, sMV, sRd, sPF = 41, 42, 100, 101
sSt = 56
SPIN = 400000
D_WIN, D_INIT, D_LN, D_MOE, D_MOEDONE = 4, 36, 68, 100, 132
CNT = (1 << 20) + (128 << 10)
C_KV, C_O = 0, 128
sRdy = 51

vIdx, vL16, vT16, vT16b, vT16c, vM1, vM2, vM3, vSt2, vQW, vQR, vOW, vOR = range(1, 14)
vT0, vT1, vPD = 0, 14, 15
MEMA = 16
ACCA = 48
ACCB = 56
STG = 64
POOL = 80
ACCV = 112
NEG = 120
S = MEMA
VMR = 124

LDSF = [("q",1,0),("k",0,0),
        ("q",0,4),("k",1,4),
        ("k",0,2),("q",1,3)]
LDSF += [("o", i >> 1, i & 1) for i in (0, 1, 2, 4, 6, 8, 10, 12, 13, 15)]
ALLF = [(m,t,sl) for m in "qkv" for sl in range(8) for t in range(2)] + [("o",t,k) for k in range(2) for t in range(8)]
HOME = {}
_n = 0
for f in ALLF:
    if f in LDSF: HOME[f] = ("l", LDSF.index(f))
    else:
        HOME[f] = ("a", 8*_n) if _n < 32 else ("v", 128 + 8*(_n-32)); _n += 1
assert _n == 48

def lds_frag_addr(idx, part):
    off = L_W + (2*idx + part) * 4096
    if off < 65536: return vT16, off
    if off < 131072: return vT16b, off - 65536
    return vT16c, off - 131072

class Cnt:
    def __init__(self, A, name, cap): self.A, self.name, self.cap, self.n = A, name, cap, 0
    def issue(self): self.n += 1; return self.n
    def wait(self, tok):
        k = self.n - tok
        if k <= self.cap: self.A(f"s_waitcnt {self.name}({k})")
        else: self.A(f"s_waitcnt {self.name}({self.cap})")

def role_select(A, lab_worker, prefetch=False):
    if prefetch:
        A(f"""
        s_cmp_lt_u32 s{sW}, 2
        s_cbranch_scc1 L_nopf
        s_lshr_b32 s{sTmp}, s2, 6
        s_lshl_b32 s{sTmp}, s{sTmp}, 3
        s_add_u32 s{sTmp}, s{sTmp}, 16
        s_load_dwordx2 s[80:81], s[0:1], s{sTmp}
        s_and_b32 s{sTmp}, s2, 63
        s_lshl_b32 s{sTmp}, s{sTmp}, 16
        v_and_b32 v3, 127, v0
        v_lshlrev_b32 v3, 4, v3
        s_waitcnt lgkmcnt(0)
        """)
        srd(A, rW, 80, 4 << 20)
        for i in range(32):
            if i % 2 == 0 and i: A(f"s_add_u32 s{sTmp}, s{sTmp}, 4096")
            A(f"buffer_load_dwordx4 v[{128+4*(i&7)}:{131+4*(i&7)}], v3, {s(rW,4)}, s{sTmp} offen offset:{2048*(i&1)}")
        A.label("L_nopf")
    A(f"""
    s_cmp_lg_u32 s{sW}, 0
    s_cbranch_scc1 L_role_wait
    s_mov_b64 exec, 1
    v_mov_b32 v3, 1
    s_lshl_b32 s{sTmp}, s{sX}, 5
    v_mov_b32 v4, s{sTmp}
    buffer_atomic_add v3, v4, {s(rDBG,4)}, 0 offen sc0
    s_waitcnt vmcnt(0)
    v_readfirstlane_b32 s{sT}, v3
    s_add_u32 s{sTmp}, s{sX}, 1
    s_mov_b32 s{sH}, 0xffff
    s_cmp_gt_u32 s{sT}, 31
    s_cbranch_scc1 L_role_done
    v_mov_b32 v4, 0
    s_cmp_lg_u32 s{sT}, 31
    s_cbranch_scc1 L_poll_win
    v_mov_b32 v6, s{sTmp}
    v_mov_b32 v7, 0
    buffer_atomic_cmpswap v[6:7], v4, {s(rDBG,4)}, 0 offen offset:{D_WIN}
    s_waitcnt vmcnt(0)
    L_poll_win:
    s_mov_b32 s{sG}, 0
    L_poll_win2:
    buffer_load_dword v3, v4, {s(rDBG,4)}, 0 offen offset:{D_WIN} sc1
    s_waitcnt vmcnt(0)
    v_readfirstlane_b32 s{sStep}, v3
    s_add_u32 s{sG}, s{sG}, 1
    s_cmp_gt_u32 s{sG}, {SPIN}
    s_cbranch_scc1 L_role_done
    s_cmp_eq_u32 s{sStep}, 0
    s_cbranch_scc1 L_poll_win2
    s_cmp_gt_u32 s{sTmp}, s{sStep}
    s_cselect_b32 s{sH}, s{sX}, s{sTmp}
    s_cmp_eq_u32 s{sStep}, s{sTmp}
    s_cselect_b32 s{sH}, 0, s{sH}
    s_lshl_b32 s{sH}, s{sH}, 5
    s_add_u32 s{sH}, s{sH}, s{sT}
    L_role_done:
    v_mov_b32 v3, s{sH}
    v_mov_b32 v4, 0
    ds_write_b32 v4, v3
    s_mov_b64 exec, -1
    L_role_wait:
    s_waitcnt lgkmcnt(0)
    s_barrier
    v_mov_b32 v4, 0
    ds_read_b32 v3, v4
    s_waitcnt lgkmcnt(0)
    v_readfirstlane_b32 s{sH}, v3
    s_barrier
    s_cmp_gt_u32 s{sH}, 31
    s_cbranch_scc1 {lab_worker}
    """)

def team(A, nsteps=64, stamps=False, dA=12, gapB=12, nsets=3, dR=(0,0,12,0), n2=2, dAA=0, bar1=1, bar2=1, pfd=0, usepk=True, rt=False, off="pf", cs=((3,6),(5,6)), kvchk=False, trace=False, gapAB=8, a2=True, pipe2=True, d3r=12, fill_at=4, kfasync=False, lead=0):
    nst = [0]
    names = []
    def stamp(name=""):
        if stamps != 1: return
        k = nst[0]; nst[0] += 1
        assert k < 23
        names.append(name)
        A(f"s_mem{'real' if rt else ''}time s[{52+2*k}:{53+2*k}]")
    A.stamp_names = names
    if stamps == 2: A("s_memrealtime s[92:93]")
    vC, vG, vLn = 16, 17, 18
    x0, x1, x2, x3 = 19, 20, 21, 22
    vWq, vWq2, vWv, vWv2, vWo = 23, 24, 25, 26, 27
    vPubT = 28
    A(f"""
    s_load_dwordx4 s[80:83], s[0:1], 16
    s_load_dwordx4 s[84:87], s[0:1], 32
    s_load_dwordx2 s[88:89], s[0:1], 8
    v_and_b32 v{vLn}, 63, v0
    v_and_b32 v{vC}, 15, v0
    v_lshrrev_b32 v{vG}, 4, v{vLn}
    v_lshlrev_b32 v{vL16}, 4, v{vLn}
    v_lshlrev_b32 v{vT16}, 4, v0
    v_add_u32 v{vT16b}, 0x10000, v{vT16}
    v_add_u32 v{vT16c}, 0x20000, v{vT16}
    v_xor_b32 v{vM1}, 1024, v{vT16}
    v_xor_b32 v{vM2}, 2048, v{vT16}
    v_xor_b32 v{vM3}, 3072, v{vT16}
    v_and_b32 v{x0}, 2, v{vC}
    v_cmp_ne_u32 vcc, 0, v{x0}
    v_mov_b32 v{x1}, 0x4444
    v_mov_b32 v{x2}, 0xeeee
    v_cndmask_b32 v{vIdx}, v{x1}, v{x2}, vcc
    ; row(c) = 2*(c>>2) + (c&1)
    v_lshrrev_b32 v{x1}, 2, v{vC}
    v_and_b32 v{x2}, 1, v{vC}
    v_lshl_add_u32 v{x1}, v{x1}, 1, v{x2}
    v_mul_u32_u24 v{x3}, {RSO}, v{x1}
    v_mul_u32_u24 v{x1}, {RS}, v{x1}
    v_lshl_add_u32 v{vQR}, v{vG}, 4, v{x1}
    s_lshl_b32 s{sTmp}, s{sW}, 6
    v_lshl_add_u32 v{vOW}, v{vG}, 4, v{x3}
    v_add_u32 v{vOW}, s{sTmp}, v{vOW}
    v_lshl_add_u32 v{vOR}, v{vG}, 5, v{x3}
    v_lshl_add_u32 v{vOR}, v{x0}, 3, v{vOR}
    v_mul_u32_u24 v{x1}, {2*RS}, v{vG}
    v_lshl_add_u32 v{x1}, v{vC}, 2, v{x1}
    v_add_u32 v{vQW}, s{sTmp}, v{x1}
    ; vSt2 = (8w + c>>1)*4096 + (g>>1)*2048 + h*64 + (2(g&1) + (c&1))*16
    v_lshrrev_b32 v{x1}, 1, v{vC}
    s_lshl_b32 s{sTmp}, s{sW}, 3
    v_add_u32 v{x1}, s{sTmp}, v{x1}
    v_lshlrev_b32 v{x1}, 12, v{x1}
    v_lshrrev_b32 v{x3}, 1, v{vG}
    v_lshl_add_u32 v{x1}, v{x3}, 11, v{x1}
    v_and_b32 v{x0}, 1, v{vG}
    v_lshl_add_u32 v{x1}, v{x0}, 5, v{x1}
    v_lshl_add_u32 v{x1}, v{x2}, 4, v{x1}
    s_lshl_b32 s{sTmp}, s{sH}, 6
    v_add_u32 v{vSt2}, s{sTmp}, v{x1}
    v_bfe_u32 v{x1}, v{vC}, 1, 1
    s_and_b32 s{sTmp}, s{sW}, 2
    v_add_u32 v{x1}, s{sTmp}, v{x1}
    v_lshl_add_u32 v30, v{x1}, 2, v{x3}
    v_lshlrev_b32 v30, 4, v30
    v_lshl_add_u32 v30, v{x2}, 3, v30
    v_lshl_add_u32 v30, v{x0}, 2, v30
    s_lshr_b32 s{sTmp}, s{sH}, 1
    s_lshl_b32 s{sTmp}, s{sTmp}, 8
    s_and_b32 s{sTmp2}, s{sH}, 1
    s_lshl_b32 s{sTmp2}, s{sTmp2}, 5
    s_add_u32 s{sTmp}, s{sTmp}, s{sTmp2}
    v_add_u32 v30, s{sTmp}, v30
    v_cmp_gt_u32 vcc, 4, v{vC}
    v_mov_b32 v{vPubT}, 0x7f000000
    v_cndmask_b32 v{vPubT}, v{vPubT}, v30, vcc
    v_mov_b32 v{vT1}, v{vPubT}
    v_lshl_add_u32 v{x1}, v{x1}, 1, v{x3}
    v_lshlrev_b32 v{x1}, 10, v{x1}
    v_lshl_add_u32 v{x1}, v{x2}, 4, v{x1}
    v_lshl_add_u32 v{x1}, v{x0}, 2, v{x1}
    s_lshl_b32 s{sTmp}, s{sH}, 5
    v_add_u32 v29, s{sTmp}, v{x1}
    v_lshlrev_b32 v{x2}, 4, v{x2}
    v_mov_b32 v{x3}, 0x3f80
    v_lshlrev_b32 v{x3}, v{x2}, v{x3}
    v_lshrrev_b32 v{x2}, 2, v{vC}
    """)
    for r in range(4):
        A(f"v_cmp_eq_u32 vcc, {r}, v{x2}")
        A(f"v_cndmask_b32 v{32+r}, 0, v{x3}, vcc")
    A(f"ds_write_b128 v{vL16}, v[32:35] offset:{L_ST}")
    A(f"""
    v_lshrrev_b32 v{x0}, 1, v{vG}
    v_and_b32 v{x1}, 1, v{vG}
    v_lshlrev_b32 v{x2}, 18, v{x0}
    v_lshl_add_u32 v{x2}, v{x1}, 16, v{x2}
    s_lshl_b32 s{sTmp}, s{sH}, 8
    s_lshl_b32 s{sTmp2}, s{sW}, 6
    s_add_u32 s{sTmp}, s{sTmp}, s{sTmp2}
    v_add_u32 v{x2}, s{sTmp}, v{x2}
    v_lshl_add_u32 v{vWq}, v{vC}, 2, v{x2}
    v_add_u32 v{vWq2}, 0x2000, v{vWq}
    ; Wo: (16(g>>1) + 4(g&1))*1024 + h*131072 + 256w + 16c
    v_lshlrev_b32 v{x2}, 12, v{x1}
    v_lshl_add_u32 v{x2}, v{x0}, 14, v{x2}
    v_lshl_add_u32 v{x2}, v{vC}, 4, v{x2}
    s_lshl_b32 s{sTmp}, s{sH}, 17
    s_lshl_b32 s{sTmp2}, s{sW}, 8
    s_add_u32 s{sTmp}, s{sTmp}, s{sTmp2}
    v_add_u32 v{vWo}, s{sTmp}, v{x2}
    s_mov_b32 s{sPerm0}, 0x05040100
    s_mov_b32 s{sPerm1}, 0x07060302
    """)
    for i in range(4):
        A(f"s_xor_b32 s{sB+i}, s{sW}, {i}")
        A(f"s_lshl_b32 s{sB+i}, s{sB+i}, 20")
    NG_ = 112
    for i in range(4): A(f"v_mov_b32 v{NG_+i}, -1")
    A(f"s_lshl_b32 s{sRst2}, s{sH}, 12")
    A(f"s_and_b32 s{sPubO}, s{sW}, 1")
    A(f"s_lshl_b32 s{sTmp2}, s{sPubO}, 3")
    A(f"s_lshl_b32 s{sPubO}, s{sPubO}, 12")
    A(f"s_add_u32 s{sMG}, s{sPubO}, {MEMG}")
    A(f"s_add_u32 s{sPubO}, s{sPubO}, {H1}")
    A("s_waitcnt lgkmcnt(0)")
    srd(A, rW, 88, 8192)
    A(f"buffer_load_dword v{vPD}, v29, {s(rW,4)}, s{sTmp2} offen")
    def fills():
        for sl in range(2):
            for x in range(2):
                A(f"s_add_u32 s{sTmp}, s{sRst2}, {H2 + sl*(256<<10) + x*(128<<10)}")
                A(f"buffer_store_dwordx4 {v(NG_,4)}, v{vT16}, {s(rWS,4)}, s{sTmp} offen"); vm.issue()
        A(f"s_lshl_b32 s{sTmp2}, s{sH}, 14")
        for i in range(4):
            A(f"s_add_u32 s{sTmp}, s{sTmp2}, {MEMG + i*4096}")
            A(f"buffer_store_dwordx4 {v(NG_,4)}, v{vT16}, {s(rWS,4)}, s{sTmp} offen sc1"); vm.issue()
        for sl in range(1, 4):
            A(f"s_add_u32 s{sTmp}, s{sPubO}, {sl*8192}")
            A(f"buffer_store_dword v{NG_}, v{vPubT}, {s(rWS,4)}, s{sTmp} offen"); vm.issue()
        A(f"v_min_u32 v{vPD}, 0xfffffffe, v{vPD}")
        A(f"buffer_store_dword v{vPD}, v{vPubT}, {s(rWS,4)}, s{sPubO} offen"); vm.issue()
    def arrive():
        A("s_barrier")
        A(f"""
        s_cmp_lg_u32 s{sW}, 0
        s_cbranch_scc1 L_t_arrived
        s_mov_b64 exec, 1
        v_mov_b32 v{NG_}, 1
        v_mov_b32 v{NG_+1}, 0
        buffer_atomic_add v{NG_}, v{NG_+1}, {s(rDBG,4)}, 0 offen offset:{D_INIT}
        s_mov_b64 exec, -1
        L_t_arrived:
        """)
    TB = [32, 48, 64, 80]
    PT = 96
    vm = Cnt(A, "vmcnt", 63)
    batches = []
    ob = [("o", k, bp) for k in range(2) for bp in range(4)]
    for mi, m in enumerate("qkv"):
        for sl in range(8):
            batches.append((m, sl))
            if (8*mi + sl) % 3 == 0: batches.append(ob.pop(0))
    TB = [32, 48, 64, 80, 116 - 4]
    rWo = 52
    srd(A, rWo, 86, 4 << 20)
    def issue(bi):
        b = batches[bi]; T = TB[bi % 4]
        if b[0] != "o":
            m, sl = b
            if sl == 0: srd(A, rW, {"q": 80, "k": 82, "v": 84}[m], 4 << 20)
            va, vb = vWq, vWq2
            for be in range(8):
                row = 64*(be >> 2) + 16*(be & 1) + 4*(sl >> 2) + 2*((be >> 1) & 1)
                A(f"s_add_u32 s{sTmp}, s{sB+(sl&3)}, {row*8192}")
                A(f"buffer_load_dword v{T+2*be}, v{va}, {s(rW,4)}, s{sTmp} offen"); vm.issue()
                A(f"buffer_load_dword v{T+2*be+1}, v{vb}, {s(rW,4)}, s{sTmp} offen"); tok = vm.issue()
        else:
            _, k, bp = b
            for j in range(2):
                be = 2*bp + j
                row = 64*k + 32*(be >> 2) + 8*(be & 1) + 2*((be >> 1) & 1)
                A(f"s_mov_b32 s{sTmp}, {row*1024}")
                A(f"buffer_load_dwordx4 {v(T+8*j,4)}, v{vWo}, {s(rWo,4)}, s{sTmp} offen"); vm.issue()
                A(f"buffer_load_dwordx4 {v(T+8*j+4,4)}, v{vWo}, {s(rWo,4)}, s{sTmp} offen offset:1024"); tok = vm.issue()
        return tok
    def put(f, be, lo, hi, sel, tmp):
        kind, base = HOME[f]
        if kind == "v":
            A(f"v_perm_b32 v{base+be}, v{hi}, v{lo}, s{sel}")
        else:
            A(f"v_perm_b32 v{tmp}, v{hi}, v{lo}, s{sel}")
            if kind == "a": A(f"v_accvgpr_write_b32 a{base+be}, v{tmp}")
    def consume(bi):
        b = batches[bi]; T = TB[bi % 4]
        if b[0] != "o":
            m, sl = b
            for t in range(2):
                f = (m, t, sl)
                for be in range(8):
                    put(f, be, T+2*be, T+2*be+1, sPerm1 if t else sPerm0, PT + 8*t + be)
                if HOME[f][0] == "l":
                    for p in range(2):
                        ar, off = lds_frag_addr(HOME[f][1], p)
                        A(f"ds_write_b128 v{ar}, {v(PT+8*t+4*p,4)} offset:{off}")
            A("s_waitcnt lgkmcnt(0)")
        else:
            _, k, bp = b
            for t in range(8):
                f = ("o", t, k)
                for j in range(2):
                    be = 2*bp + j
                    put(f, be, T+8*j+(t >> 1), T+8*j+4+(t >> 1), sPerm1 if t & 1 else sPerm0, PT + 2*t + j)
                if HOME[f][0] == "l":
                    ar, off = lds_frag_addr(HOME[f][1], bp >> 1)
                    A(f"ds_write_b64 v{ar}, {v(PT+2*t,2)} offset:{off + 8*(bp & 1)}")
            A("s_waitcnt lgkmcnt(0)")
    toks = {}
    DEPTH = 4
    rP = 56
    A(f"v_lshlrev_b32 v30, 6, v0")
    A(f"s_lshl_b32 s{sTmp}, s{sH}, 17")
    A(f"v_add_u32 v30, s{sTmp}, v30")
    pfn = [0]
    def pfw():
        p = pfn[0]; pfn[0] += 1
        if p >= 24 or not lead: return
        if p % 8 == 0: srd(A, rP, 80 + 2*(p >> 3), 4 << 20)
        x, qd = (p >> 2) & 1, p & 3
        A(f"s_mov_b32 s{sTmp}, {(qd >> 1)*65536 + x*32768 + (qd & 1)*16384}")
        A(f"buffer_load_dword v31, v30, {s(rP,4)}, s{sTmp} offen"); vm.issue()
    for _ in range(lead): pfw()
    for bi in range(len(batches) + DEPTH):
        if bi >= DEPTH:
            vm.wait(toks[bi - DEPTH]); consume(bi - DEPTH)
        if bi == fill_at: fills()
        if bi == fill_at + DEPTH: arrive()
        if bi < len(batches):
            toks[bi] = issue(bi)
            if batches[bi][0] != "o": pfw()
    if stamps == 2: A("s_memrealtime s[94:95]")
    A(f"s_lshl_b32 s{sKV}, s{sH}, 14")
    A(f"s_lshl_b32 s{sTmp}, s{sW}, 11")
    A(f"s_add_u32 s{sKV}, s{sKV}, s{sTmp}")
    A(f"s_add_u32 s{sKV}, s{sKV}, {KV}")
    A(f"s_add_u32 s{sMK}, s{sTmp}, {L_KX}")
    A(f"s_add_u32 s{sMV}, s{sTmp}, {L_VX}")
    A(f"s_add_u32 s{sMV+1}, s{sTmp}, {L_MEM}")
    A(f"s_add_u32 s{sPF}, s{sTmp}, {pfd*32*16384}")
    def dma(which, par, j):
        if j == 0:
            A(f"s_mov_b32 m0, s{sMK if which == 'k' else sMV + par}")
            if which == "v": A(f"s_add_u32 s{sTmp}, s{sKV}, 8192")
        A(f"buffer_load_dwordx4 v{vL16}, {s(rWS,4)}, s{sKV if which == 'k' else sTmp} offen offset:{1024*j} sc1 lds")
    def kv_wait(tag, ta, tb, need):
        A(f"""
        L_kvw{tag}:
        v_lshlrev_b32 v{ta}, 4, v{vL16}
        s_mov_b32 s{sTmp}, {CNT + C_KV}
        buffer_load_dword v{tb}, v{ta}, {s(rWS,4)}, s{sTmp} offen sc1
        s_waitcnt vmcnt(0)
        v_cmp_eq_u32 vcc, 32, v{tb}
        s_ff0_i32_b64 s{sRdy}, vcc
        s_add_u32 s{sG}, s{sG}, 1
        s_cmp_gt_u32 s{sG}, {SPIN}
        s_cbranch_scc1 L_team_end
        s_cmp_gt_u32 s{sRdy}, {need}
        s_cbranch_scc0 L_kvw{tag}
        """)
    A(f"s_mov_b32 s{sG}, 0")
    if kvchk:
        A(f"""
        v_mov_b32 v41, 0
        L_lnw:
        buffer_load_dword v40, v41, {s(rDBG,4)}, 0 offen offset:{D_LN} sc1
        s_waitcnt vmcnt(0)
        v_readfirstlane_b32 s{sTmp2}, v40
        s_add_u32 s{sG}, s{sG}, 1
        s_cmp_gt_u32 s{sG}, {SPIN}
        s_cbranch_scc1 L_team_end
        s_cmp_lt_u32 s{sTmp2}, 64
        s_cbranch_scc1 L_lnw
        """)
        kv_wait("0", 40, 41, "0")
    dma("k", 0, 0); dma("k", 0, 1); dma("v", 0, 0); dma("v", 0, 1)
    A(f"s_add_u32 s{sKV}, s{sKV}, {32*16384}")
    A("s_waitcnt vmcnt(0)")
    A(f"""
    s_cmp_lg_u32 s{sW}, 0
    s_cbranch_scc1 L_init_wait
    v_mov_b32 v41, 0
    s_mov_b32 s{sG}, 0
    L_init_poll:
    buffer_load_dword v40, v41, {s(rDBG,4)}, 0 offen offset:{D_INIT} sc1
    s_waitcnt vmcnt(0)
    v_readfirstlane_b32 s{sTmp}, v40
    s_add_u32 s{sG}, s{sG}, 1
    s_cmp_gt_u32 s{sG}, {SPIN}
    s_cbranch_scc1 L_init_wait
    s_cmp_lt_u32 s{sTmp}, 32
    s_cbranch_scc1 L_init_poll
    L_init_wait:
    s_waitcnt lgkmcnt(0)
    s_barrier
    s_mov_b32 s{sStep}, 0
    s_mov_b32 s{sG}, 0
    s_mov_b32 s{sRetA}, 0
    s_mov_b32 s{sRetB}, 0
    s_mov_b32 s{sRet2}, 0
    s_mov_b32 s{sC}, 0x3e0293ee
    v_mov_b32 v{VMR+1}, 0
    v_mov_b32 v{VMR+3}, 0
    s_lshl_b32 s{sRd2}, s{sW}, 17
    s_lshl_b32 s{sTmp}, s{sH}, 12
    s_add_u32 s{sRd2}, s{sRd2}, s{sTmp}
    """)
    import math, struct
    cval = struct.unpack("<I", struct.pack("<f", (128 ** -0.5) * math.log2(math.e)))[0]
    A(f"s_mov_b32 s{sC}, {cval:#x}")
    if stamps == 2:
        A("s_memrealtime s[96:97]")
        A("s_memtime s[76:77]"); A("s_waitcnt lgkmcnt(0)")
    if stamps == 1:
        for k in range(52, 100): A(f"s_mov_b32 s{k}, 0")

    lg = Cnt(A, "lgkmcnt", 15)
    staged = {}
    def stage(idx, reg):
        f = LDSF[idx]
        for p in range(2):
            ar, off = lds_frag_addr(idx, p)
            A(f"ds_read_b128 {v(reg+4*p,4)}, v{ar} offset:{off}"); tok = lg.issue()
        staged[f] = (reg, tok)
    waited = [0]
    def lwait(tok):
        if tok > waited[0]:
            lg.wait(tok); waited[0] = tok
    def sm(m, t, sl, acc, areg):
        f = (m, t, sl); kind, base = HOME[f]
        if kind == "l":
            reg, tok = staged.pop(f); lwait(tok); b = v(reg, 8)
        else:
            b = (a if kind == "a" else v)(base, 8)
        A(f"v_smfmac_f32_16x16x64_bf16 {v(acc,4)}, {v(areg,4)}, {b}, v{vIdx}")
    def dsr(dst, addr, off, n=4):
        A(f"ds_read_b{32*n} {v(dst,n)}, v{addr} offset:{off}"); return lg.issue()
    def dsw(addr, src, off, n=4):
        A(f"ds_write_b{32*n} v{addr}, {v(src,n)} offset:{off}"); return lg.issue()
    def chk(r, lab):
        A(f"v_max3_u32 v{vT0}, v{r}, v{r+1}, v{r+2}")
        A(f"v_max_u32 v{vT0}, v{vT0}, v{r+3}")
        A(f"v_cmp_eq_u32 vcc, -1, v{vT0}")
        A(f"s_cbranch_vccnz {lab}")
    qa = lambda t: ACCA + 4*t
    ka = lambda t: ACCB + 4*t
    ma = lambda sl: MEMA + 4*sl

    QB = POOL; FR = POOL + 16
    va = lambda t: ACCV + 4*t
    WA = MEMA
    wa = lambda t: WA + 4*t
    R2 = ma(5); SEL = ma(7); PUB = vT1; DD = ma(3)
    def stage1(idx, reg, p):
        f = LDSF[idx]
        ar, off = lds_frag_addr(idx, p)
        A(f"ds_read_b128 {v(reg+4*p,4)}, v{ar} offset:{off}"); tok = lg.issue()
        if p == 1: staged[f] = (reg, tok)
    G = lambda idx, reg, p: (lambda: stage1(idx, reg, p))
    def mf(d, a_, b_, first, k16=False):
        n = 2 if k16 else 4
        A(f"v_mfma_f32_16x16x{16 if k16 else 32}_bf16 {v(d,4)}, {v(a_,n)}, {v(b_,n)}, {0 if first else v(d,4)}")
    def slots(ms, fill):
        for i, m in enumerate(ms):
            m()
            if i < len(fill):
                for f in fill[i]: f()
        for fl in fill[len(ms):]:
            for f in fl: f()
    I = lambda txt: (lambda: A(txt))
    accf = {"q": qa, "k": ka, "v": va}
    SM = lambda m, t, sl, areg=None: (lambda: sm(m, t, sl, accf[m](t), ma(sl) if areg is None else areg))
    PRE = [(0, STG), (1, STG+8), (2, FR), (3, FR+8), (5, QB+8), (4, QB)]
    def chores(lo, hi):
        for idx, reg in PRE[lo:hi]: stage(idx, reg)
    def zero_accs():
        for i in range(0, 16, 2): A(f"v_mov_b64 {v(ACCA+i,2)}, 0")
        for i in range(0, 8, 2): A(f"v_mov_b64 {v(ACCV+i,2)}, 0")
    def set_neg():
        A(f"v_mov_b64 {v(NEG,2)}, -1"); A(f"v_mov_b64 {v(NEG+2,2)}, -1")
    def slot_offsets():
        A(f"""
        s_and_b32 s{sTmp}, s{sStep}, 3
        s_lshl_b32 s{sO1}, s{sTmp}, 13
        s_add_u32 s{sO1}, s{sO1}, {H1}
        s_add_u32 s{sO1b}, s{sO1}, 4096
        """)
    def ld1():
        A(f"buffer_load_dwordx4 {v(ma(0),4)}, v{vT16}, {s(rWS,4)}, s{sO1} offen sc1")
        A(f"buffer_load_dwordx4 {v(ma(4),4)}, v{vT16}, {s(rWS,4)}, s{sO1b} offen sc1")
    def ld2():
        for u in range(2):
            A(f"buffer_load_dwordx4 {v(R2+4*u,4)}, v{vL16}, {s(rWS,4)}, s{sRd} offen offset:{1024*u} sc1")
    def delay(n):
        while n > 0:
            A(f"s_nop {min(n,16)-1}"); n -= 16
    chores(0, 6); zero_accs(); set_neg(); slot_offsets()
    A(f"s_mov_b32 s{sO2}, {H2}"); A(f"s_mov_b32 s{sO2b}, {H2 + (128<<10)}")
    A(f"s_add_u32 s{sRst1}, s{sPubO}, {2*8192}")
    A(f"s_and_b32 s{sTmp}, s{sW}, 1")
    A(f"s_lshl_b32 s{sRd2}, s{sTmp}, 17")
    A(f"s_lshl_b32 s{sTmp}, s{sH}, 12")
    A(f"s_add_u32 s{sRd2}, s{sRd2}, s{sTmp}")
    A(f"s_lshr_b32 s{sTmp}, s{sW}, 1")
    A(f"s_lshl_b32 s{sTmp}, s{sTmp}, 11")
    A(f"s_add_u32 s{sRd2}, s{sRd2}, s{sTmp}")
    pre_staged = dict(staged)
    sKf = 47
    A(f"s_mov_b32 s{sKf}, 0")
    if kvchk and kfasync: A(f"s_andn2_b32 s{sRdy}, s{sRdy}, 3")
    A(f"s_waitcnt lgkmcnt(0)")
    def ldA(): A(f"buffer_load_dwordx4 {v(ma(0),4)}, v{vT16}, {s(rWS,4)}, s{sO1} offen sc1")
    def ldB(): A(f"buffer_load_dwordx4 {v(ma(4),4)}, v{vT16}, {s(rWS,4)}, s{sO1b} offen sc1")
    N1 = I("s_nop 1"); N0 = I("s_nop 0")
    for par in range(2):
        P = f"_{par}"
        LM, LV = (L_MEM, L_VX) if par == 0 else (L_VX, L_MEM)
        st = stamp if par == 0 else (lambda n="": None)
        A.label("L_step" + P)
        if stamps == 1 and par == 0:
            stamp("top")
            A(f"s_cmp_ge_u32 s{sStep}, {nsteps-3}")
            A("s_cbranch_scc1 L_team_end")
        st("top2")
        for j in range(nsets):
            delay(gapB if j else dA)
            ldA(); delay(gapAB); ldB()
        waited[0] = lg.n
        staged.clear(); staged.update({f: (r, 0) for f, (r, t) in pre_staged.items()})
        r, q = ma(0), ma(4)
        A.label("L_pollA" + P)
        A(f"s_waitcnt vmcnt({2*nsets-1})")
        chk(r, "L_retryA" + P)
        tt = {}
        def rd(key, dst, addr, off): return lambda: tt.__setitem__(key, dsr(dst, addr, off))
        kx = lambda i, dst: rd(("kx", i), dst, vL16, L_KX + 1024*i)
        W = lambda key: (lambda: lwait(tt[key]))
        WS = lambda idx: (lambda: lwait(staged[LDSF[idx]][1]))
        dsw(vT16, r, LM)
        st("ok")
        slots([SM("q",0,0), SM("q",1,0), SM("k",0,0), SM("k",1,0)],
              [[], [I(f"s_waitcnt vmcnt({2*nsets-2})"), I(f"v_max3_u32 v{vT0}, v{q}, v{q+1}, v{q+2}")], [I(f"v_max_u32 v{vT0}, v{vT0}, v{q+3}")], [I(f"v_cmp_eq_u32 vcc, -1, v{vT0}")]])
        A(f"s_cbranch_vccnz L_retryB{P}")
        A.label("L_okB" + P)
        tw = dsw(vT16, q, LM + 4096)
        SM("q",0,4)(); SM("q",1,4)(); SM("k",0,4)()
        lwait(tw); A("s_barrier"); st("barM")
        rd(1, ma(1), vM1, LM)()
        kvu = [I(f"s_cmp_eq_u32 s{sKf}, 0x20202020"), I(f"s_cselect_b32 s{sKf}, 4, 0"), I(f"s_add_u32 s{sRdy}, s{sRdy}, s{sKf}")] if (kvchk and kfasync and par == 1) else []
        slots([SM("k",1,4), SM("v",0,0), SM("v",1,0), SM("v",0,4), SM("v",1,4)],
              [[rd(2, ma(2), vM2, LM)], [rd(3, ma(3), vM3, LM)], [rd(5, ma(5), vM1, LM+4096)], [rd(6, ma(6), vM2, LM+4096)], [rd(7, ma(7), vM3, LM+4096), W(1)]])
        rst = [I(f"s_xor_b32 s{sTmp}, s{sO2}, {256<<10}"), I(f"s_add_u32 s{sTmp}, s{sTmp}, s{sRst2}"),
               I(f"buffer_store_dwordx4 {v(NEG,4)}, v{vT16}, {s(rWS,4)}, s{sTmp} offen")]
        rst2 = [I(f"s_add_u32 s{sTmp}, s{sTmp}, {128<<10}"),
               I(f"buffer_store_dwordx4 {v(NEG,4)}, v{vT16}, {s(rWS,4)}, s{sTmp} offen"),
               I(f"buffer_store_dword v{NEG}, v{PUB}, {s(rWS,4)}, s{sRst1} offen")]
        pubg = [I(f"buffer_store_dword v{vPD}, v{PUB}, {s(rWS,4)}, s{sMG} offen sc1"), I(f"s_add_u32 s{sMG}, s{sMG}, 8192")]
        bk = [I(x) for x in (
            f"s_add_u32 s{sStep}, s{sStep}, 1", f"s_add_u32 s{sRd}, s{sO2}, s{sRd2}", f"s_and_b32 s{sB}, s{sStep}, 3",
            f"s_lshl_b32 s{sB+1}, s{sB}, 13", f"s_add_u32 s{sO1}, s{sB+1}, {H1}", f"s_add_u32 s{sO1b}, s{sO1}, 4096",
            f"s_add_u32 s{sB+2}, s{sB+1}, s{sPubO}", f"s_xor_b32 s{sRst1}, s{sB+1}, {2<<13}", f"s_add_u32 s{sRst1}, s{sRst1}, s{sPubO}")]
        slots([SM("q",0,1), SM("q",1,1), SM("k",0,1), SM("k",1,1), SM("q",0,2), SM("q",1,2), SM("k",0,2), SM("k",1,2),
               SM("q",1,3), SM("k",0,3), SM("q",0,3), SM("k",1,3), SM("q",0,5), SM("q",1,5), SM("q",0,6), SM("q",1,6), SM("q",0,7), SM("q",1,7)],
              [rst, [kx(4, STG)], kvu, [W(3), kx(5, STG+4)], rst2[:2], [kx(6, STG+8)], [], [kx(7, STG+12)],
               rst2[2:], [kx(0, FR)], pubg, [W(7), kx(1, FR+4)], bk[0:3], [kx(2, FR+8)], bk[3:6], [kx(3, FR+12)], bk[6:9], [I(f"s_waitcnt vmcnt(4)")]])
        st("qdone")
        if trace and par == 0:
            A(f"""
            s_memrealtime s[52:53]
            s_memtime s[54:55]
            s_lshl_b32 s56, s{sStep}, 2
            s_waitcnt lgkmcnt(0)
            v_writelane_b32 v{vT0}, s52, 0
            v_writelane_b32 v{vT0}, s54, 1
            s_lshl_b32 s57, s{sH}, 10
            s_add_u32 s56, s56, s57
            s_add_u32 s56, s56, {RES + 65536 - 4}
            v_lshrrev_b32 v{ma(0)}, 2, v{vL16}
            s_mov_b64 exec, 3
            buffer_store_dword v{vT0}, v{ma(0)}, {s(rWS,4)}, s56 offen
            s_mov_b64 exec, -1
            """)
        def epi_ops(acc):
            return [I(f"v_add_f32 v{acc}, v{acc}, v{acc+2}"), I(f"v_add_f32 v{acc+1}, v{acc+1}, v{acc+3}"),
                    I(f"v_add_f32 v{acc+4}, v{acc+4}, v{acc+6}"), I(f"v_add_f32 v{acc+5}, v{acc+5}, v{acc+7}"),
                    I(f"v_cvt_pk_bf16_f32 v{acc}, v{acc}, v{acc+4}"), I(f"v_cvt_pk_bf16_f32 v{acc+1}, v{acc+1}, v{acc+5}")]
        e = epi_ops(ACCA); ek = epi_ops(ACCB)
        wq = [lambda: dsw(vQW, ACCA, L_Q, 1), lambda: dsw(vQW, ACCA+1, L_Q + RS, 1)]
        wk = [lambda: dsw(vQW, ACCB, L_K, 1), lambda: tt.__setitem__("wk", dsw(vQW, ACCB+1, L_K + RS, 1))]
        slots([SM("k",0,5), SM("k",0,6), SM("k",0,7), SM("k",1,5), SM("k",1,6), SM("k",1,7),
               SM("v",0,1), SM("v",1,1), SM("v",0,2), SM("v",1,2), SM("v",0,3), SM("v",1,3)],
              [[e[0]], [e[1]], [e[2]], [e[3]], [e[4]], [wq[0], e[5]],
               [wq[1], ek[0], ek[1]], [ek[2], ek[3]], [ek[4], ek[5]] + wk, [], [],
               [I(f"s_cmp_gt_u32 s{sRdy}, s{sStep}")] if kvchk else []])
        lwait(tt["wk"]); A("s_barrier"); st("barQK")
        if kvchk:
            A(f"s_cbranch_scc0 L_kvw{P}")
            A.label("L_kvok" + P)
        qr = lambda k: rd(("q", k), QB+4*k, vQR, L_Q + 64*k)
        KMR = ACCA
        kr = lambda k: rd(("km", k), KMR+4*k, vQR, L_K + 64*k)
        VXR = FR; OO = QB; LL = QB + 8; ONES = NEG
        ones = [I(f"v_mov_b32 v{ONES+i}, 0x3f803f80") for i in range(4)]
        m0k = I(f"s_mov_b32 m0, s{sMK}")
        dk = lambda j: I(f"buffer_load_dwordx4 v{vL16}, {s(rWS,4)}, s{sKV} offen offset:{1024*j} sc1 lds")
        m0v = [I(f"s_mov_b32 m0, s{sMV + 1 - par}"), I(f"s_add_u32 s{sTmp}, s{sKV}, 8192"), I(f"s_add_u32 s{sKV}, s{sKV}, {32*16384}")]
        dv = lambda j: I(f"buffer_load_dwordx4 v{vL16}, {s(rWS,4)}, s{sTmp} offen offset:{1024*j} sc1 lds")
        if "dma" in off: dk = dv = lambda j: N0
        nvm = 5 + (1 if trace and par == 0 else 0) - 4*("dma" in off)
        qr(0)()
        slots([SM("v",0,5), SM("v",1,5), SM("v",0,6), SM("v",1,6), SM("v",0,7), SM("v",1,7)],
              [[qr(1), m0k], [qr(2), dk(0)], [qr(3), ones[0]], [kr(0), ones[1]], [kr(1), dk(1)], [kr(2), W(("q",1))]])
        st("vdone")
        Sx = lambda t, k: (lambda: (lwait(tt[("q", k)]), mf(S+4*t, (FR if t == 0 else STG) + 4*k, QB+4*k, k == 0)))
        Sm = lambda k: (lambda: (lwait(tt[("km", k)]), mf(S+8, KMR+4*k, QB+4*k, k == 0)))
        ve = []
        for t in range(2):
            ve += [I(f"v_add_f32 v{va(t)}, v{va(t)}, v{va(t)+2}"), I(f"v_add_f32 v{va(t)+1}, v{va(t)+1}, v{va(t)+3}"),
                   I(f"v_cvt_pk_bf16_f32 v{VMR+2*t}, v{va(t)}, v{va(t)+1}")]
        zw = [I(f"v_mov_b64 {v(WA+i,2)}, 0") for i in range(0, 32, 2)]
        slots([Sx(0,0), Sx(1,0), Sx(0,1), Sx(1,1), Sx(0,2), Sx(1,2), Sx(0,3), Sx(1,3), Sm(0), Sm(1), Sm(2), Sm(3)],
              [[kr(3), ones[2], ones[3]], [m0v[0], ve[0], ve[1]], [m0v[1], ve[2], ve[3]], [W(("q",3)), ve[4], ve[5]],
               [rd("vx0", VXR, vT16, LV), zw[6], zw[7]], [dv(0), zw[8], zw[9]],
               [rd("vx1", VXR+4, vT16, LV+4096), zw[10], zw[11]], [W(("km",3)), zw[12], zw[13]], [dv(1), zw[14], I(f"v_max3_f32 v{vT0}, v{S}, v{S+1}, v{S+2}")],
               [G(6, STG, 0), I(f"v_max3_f32 v{vT0}, v{vT0}, v{S+3}, v{S+4}"), I(f"v_max3_f32 v{vT0}, v{vT0}, v{S+5}, v{S+6}")],
               [G(6, STG, 1), I(f"v_max_f32 v{vT0}, v{vT0}, v{S+7}"), zw[15]],
               [G(7, FR+8, 0), m0v[2], G(7, FR+8, 1), W("vx1")]])
        st("Smm")
        A(f"v_max3_f32 v{vT0}, v{vT0}, v{S+8}, v{S+9}")
        A(f"v_mov_b32 v{S+10}, v{vT0}")
        G(8, STG+8, 0)()
        A(f"v_permlane32_swap_b32 v{vT0}, v{S+10}")
        A(f"v_max_f32 v{vT0}, v{vT0}, v{S+10}")
        A(f"v_mov_b32 v{S+10}, v{vT0}")
        G(8, STG+8, 1)()
        A(f"v_permlane16_swap_b32 v{vT0}, v{S+10}")
        A(f"v_max_f32 v{vT0}, v{vT0}, v{S+10}")
        A(f"v_mul_f32 v{S+10}, s{sC}, v{vT0}")
        for i in (8, 0, 2, 4, 6):
            A(f"v_pk_fma_f32 {v(S+i,2)}, {v(S+i,2)}, s[{sC}:{sC+1}], {v(S+10,2)} op_sel_hi:[1,0,0] neg_lo:[0,0,1] neg_hi:[0,0,1]")
        ex = lambda i: I(f"v_exp_f32 v{S+i}, v{S+i}")
        cv = lambda i: I(f"v_cvt_pk_bf16_f32 v{S+i}, v{S+2*i}, v{S+2*i+1}")
        ex(8)(); ex(9)(); ex(0)()
        A(f"v_cvt_pk_bf16_f32 v{S+8}, v{S+8}, v{S+9}"); A(f"v_mov_b32 v{S+9}, 0")
        ex(1)(); ex(2)()
        slots([lambda: mf(LL, ONES, S+8, True, True), lambda: mf(OO, VMR, S+8, True, True), lambda: mf(OO+4, VMR+2, S+8, True, True)],
              [[G(9, ACCV, 0), ex(3), cv(0)], [G(9, ACCV, 1), ex(4), ex(5)], [G(10, ACCB, 0), ex(6), ex(7), cv(1), cv(2), cv(3)]])
        st("exp")
        G(10, ACCB, 1)(); A(f"s_waitcnt vmcnt({nvm})")
        slots([lambda: mf(LL, ONES, S, False), lambda: mf(OO, VXR, S, False), lambda: mf(OO+4, VXR+4, S, False)],
              [[zw[2], zw[3]], [zw[4], zw[5]], []])
        st("PV")
        A(f"v_rcp_f32 v{vT0}, v{LL}")
        zw[0](); zw[1]()
        for i in range(4): A(f"v_mul_f32 v{OO+i}, v{OO+i}, v{vT0}")
        A(f"v_pk_mul_f32 {v(OO+4,2)}, {v(OO+4,2)}, {v(vT0,2)} op_sel_hi:[1,0]")
        A(f"v_pk_mul_f32 {v(OO+6,2)}, {v(OO+6,2)}, {v(vT0,2)} op_sel_hi:[1,0]")
        for i in range(4): A(f"v_cvt_pk_bf16_f32 v{OO+i}, v{OO+i}, v{OO+4+i}")
        tw = dsw(vOW, OO, L_O)
        st("owr")
        lwait(tw); A("s_barrier"); st("barO")
        OA = ACCA
        to0 = dsr(OA, vOR, L_O)
        to = dsr(OA+4, vOR, L_O + 128)
        ad = lambda t: [I(f"v_add_f32 v{wa(t)}, v{wa(t)}, v{wa(t)+2}"), I(f"v_add_f32 v{wa(t)+1}, v{wa(t)+1}, v{wa(t)+3}")]
        cvp = lambda dst, t: [I(f"v_cvt_pk_bf16_f32 v{dst}, v{wa(t)}, v{wa(t+1)}"), I(f"v_cvt_pk_bf16_f32 v{dst+2}, v{wa(t)+1}, v{wa(t+1)+1}")]
        sto = lambda x, dst: [I(f"buffer_store_dwordx4 {v(dst,4)}, v{vSt2}, {s(rWS,4)}, s{sO2b if x else sO2} offen")]
        SO = lambda t, k: (lambda: sm("o", t, k, wa(t), OA+4*k))
        DA, DB = QB, QB + 4
        lwait(to0)
        st("ord")
        slots([SO(t, k) for t in range(8) for k in range(2)],
              [[lambda: lwait(to), G(11, FR, 0)], [G(11, FR, 1)], [G(12, QB+8, 0)], [G(12, QB+8, 1), ad(0)[0]], [G(13, STG, 0), ad(0)[1]],
               [G(13, STG, 1), ad(1)[0]], [G(14, FR+8, 0), ad(1)[1]], [WS(11), G(14, FR+8, 1), cvp(DA, 0)[0], cvp(DA, 0)[1]],
               [G(15, STG+8, 0), ad(2)[0], ad(2)[1]], [WS(12), G(15, STG+8, 1)] + ad(3), cvp(DA+1, 2) + [WS(14)], sto(0, DA) + [lambda: st("stA"), ad(4)[0]], [ad(4)[1]],
               ad(5), [WS(15)] + cvp(DB, 4), ad(6)])
        for f in ad(7) + cvp(DB+1, 6) + sto(1, DB): f()
        st("stB")
        assert not staged, staged
        if bar1: A("s_barrier")
        dsr(SEL, vL16, L_ST)
        A(f"s_xor_b32 s{sO2}, s{sO2}, {256<<10}")
        A(f"s_xor_b32 s{sO2b}, s{sO2b}, {256<<10}")
        def kfload(tag):
            if not (kvchk and kfasync and par == 0): return
            A(f"""
            s_cmp_ge_u32 s{sRdy}, 64
            s_cbranch_scc1 L_nokf{tag}
            s_lshr_b32 s{sTmp}, s{sRdy}, 3
            s_lshl_b32 s{sTmp}, s{sTmp}, 5
            s_and_b32 s{sTmp2}, s{sRdy}, 4
            s_add_u32 s{sTmp}, s{sTmp}, s{sTmp2}
            s_add_u32 s{sTmp}, s{sTmp}, 8
            s_load_dword s{sKf}, s[4:5], s{sTmp} glc
            L_nokf{tag}:
            """)
        for role in range(2):
            if role == 0:
                A(f"s_bitcmp1_b32 s{sW}, 0")
                A(f"s_cbranch_scc1 L_tailB{P}")
            else:
                A.label(f"L_tailB{P}")
                staged.clear()
            ca, cb_ = cs[role]
            chores(0, ca); delay(dR[2*role]); ld2()
            chores(ca, cb_); zero_accs(); delay(dR[2*role+1])
            if n2 > 1 and (role == 1 or a2): ld2()
            chores(cb_, 6); set_neg()
            if n2 > 2 and (role == 1 or a2):
                delay(d3r); ld2()
            if role == 0:
                if a2 or n2 == 1: A(f"s_branch L_tailj{P}")
                else:
                    A("s_waitcnt lgkmcnt(0)")
                    kfload("a")
                    A(f"s_branch L_poll2{P}")
        A.label(f"L_tailj{P}")
        A("s_waitcnt lgkmcnt(0)")
        kfload("b")
        def red_try(base, ok_lab, fail_lab):
            for u in range(2):
                r = R2 + 4*u
                A(f"s_waitcnt vmcnt({base+1-u})")
                A(f"v_max3_u32 v{vT0}, v{r}, v{r+1}, {'v%d' % vT0 if u else 0}")
                A(f"v_max3_u32 v{vT0}, v{r+2}, v{r+3}, v{vT0}")
                mf(DD, SEL, r, u == 0)
            A(f"v_cmp_eq_u32 vcc, -1, v{vT0}")
            if fail_lab: A(f"s_cbranch_vccnz {fail_lab}")
            if ok_lab: A(f"s_branch {ok_lab}")
        A.label("L_pipe2" + P)
        red_try(2*n2-2, None, ("L_retryp" if pipe2 else "L_poll2" if n2 > 1 else "L_retry2") + P)
        A.label("L_ok2" + P)
        A("s_nop 5")
        for rot in (4, 8):
            A(f"v_add_f32_dpp v{DD}, v{DD}, v{DD} row_ror:{rot} row_mask:0xf bank_mask:0xf")
            A(f"v_add_f32_dpp v{DD+1}, v{DD+1}, v{DD+1} row_ror:{rot} row_mask:0xf bank_mask:0xf")
        A(f"v_cvt_pk_bf16_f32 v{vPD}, v{DD}, v{DD+1}")
        A(f"v_min_u32 v{vPD}, 0xfffffffe, v{vPD}")
        A(f"buffer_store_dword v{vPD}, v{PUB}, {s(rWS,4)}, s{sB+2} offen")
        st("red")
        if bar2: A("s_barrier")
        if par == (nsteps & 1):
            A(f"s_cmp_eq_u32 s{sStep}, {nsteps-1}")
            A("s_cbranch_scc1 L_last")
        if par == 1: A("s_branch L_step_0")
        staged.clear()
    def retry(lab, cnt, body, back):
        A.label(lab)
        A("s_mov_b64 exec, vcc")
        body()
        A("s_mov_b64 exec, -1")
        A(f"s_add_u32 s{cnt}, s{cnt}, 1")
        A(f"s_add_u32 s{sG}, s{sG}, 1")
        A(f"s_cmp_gt_u32 s{sG}, {SPIN}")
        A(f"s_cbranch_scc1 L_team_end")
        if back: A(f"s_branch {back}")
    for par in range(2):
        P = f"_{par}"
        retry("L_retryA" + P, sRetA, ld1, "L_pollA" + P)
        retry("L_retryB" + P, sRetB, ld1, None)
        A(f"s_waitcnt vmcnt({2*nsets-2})")
        chk(ma(4), "L_retryB" + P)
        A(f"s_branch L_okB{P}")
        retry("L_retryp" + P, sRet2, ld2, "L_pipe2" + P)
        retry("L_retry2" + P, sRet2, ld2, None)
        A.label("L_poll2" + P)
        A("s_nop 0")
        red_try(0, "L_ok2" + P, "L_retry2" + P)
        if kvchk:
            kv_wait(P, vT0, ma(0), f"s{sStep}")
            if kfasync:
                A(f"s_andn2_b32 s{sRdy}, s{sRdy}, 3")
                A(f"s_mov_b32 s{sKf}, 0")
            A(f"s_branch L_kvok{P}")
    A.label("L_last")
    A(f"buffer_store_dword v{vPD}, v{PUB}, {s(rWS,4)}, s{sMG} offen sc1")
    A("s_waitcnt vmcnt(0) lgkmcnt(0)")
    A.label("L_team_end")
    if stamps:
        if stamps == 2:
            A("s_memrealtime s[98:99]")
            A("s_memtime s[72:73]"); A("s_waitcnt lgkmcnt(0)")
            A("s_sub_u32 s72, s72, s76")
            vals = [72, sStep, sRetA, sRetB, sRet2, 76, 76, 76] + [90, 92, 94, 96, 98, 98, 98, 98]
        else:
            A("s_waitcnt lgkmcnt(0)")
            for c, (ra, rb) in enumerate(((44, 45), (46, 47))):
                A(f"""
                s_memrealtime s[16:17]
                s_waitcnt lgkmcnt(0)
                s_add_u32 s16, s16, {200 if c else 8}
                L_cal{c}:
                s_memrealtime s[18:19]
                s_memtime s[98:99]
                s_waitcnt lgkmcnt(0)
                s_cmp_lt_u32 s18, s16
                s_cbranch_scc1 L_cal{c}
                s_mov_b32 s{ra}, s18
                s_mov_b32 s{rb}, s98
                """)
            vals = [44, sStep, sRetA, sRetB, sRet2, 45, 46, 47] + list(range(52, 100, 2))
        A(f"s_lshl_b32 s{sTmp}, s{sH}, 2")
        A(f"s_add_u32 s{sTmp}, s{sTmp}, s{sW}")
        A(f"s_lshl_b32 s{sTmp}, s{sTmp}, 7")
        A(f"s_add_u32 s{sTmp}, s{sTmp}, {RES}")
        A("s_waitcnt vmcnt(0)")
        for i, r in enumerate(vals): A(f"v_mov_b32 v{16+i}, s{r}")
        A("v_mov_b32 v0, 0")
        A("s_mov_b64 exec, 1")
        for i in range(len(vals)//4): A(f"buffer_store_dwordx4 {v(16+4*i,4)}, v0, {s(rWS,4)}, s{sTmp} offen offset:{16*i}")
    A("s_waitcnt vmcnt(0)")

def gen_standalone(**kw):
    A = Asm()
    A.raw(f"; @launch grid=(256,1,1) block=(256,1,1) lds=163840")
    A.raw('.amdgcn_target "amdgcn-amd-amdhsa--gfx950"')
    A.raw(".text")
    kernel_begin(A, NAME + "_kernel")
    A(f"""
    s_cmp_ge_u32 s2, 256
    s_cbranch_scc1 L_end
    s_memrealtime s[90:91]
    s_load_dwordx4 s[4:7], s[0:1], 104
    s_getreg_b32 s{sX}, hwreg(HW_REG_XCC_ID)
    s_and_b32 s{sX}, s{sX}, 7
    v_lshrrev_b32 v1, 6, v0
    v_readfirstlane_b32 s{sW}, v1
    s_waitcnt lgkmcnt(0)
    """)
    srd(A, rWS, 6, WS_BYTES)
    srd(A, rDBG, 4, 256)
    spf = kw.pop("spf", 0)
    role_select(A, "L_pfw" if spf else "L_end")
    team(A, **kw)
    A.label("L_end")
    A("s_endpgm")
    if spf:
        A.label("L_pfw")
        A(f"""
        s_lshr_b32 s{sTmp}, s2, 6
        s_lshl_b32 s{sTmp}, s{sTmp}, 3
        s_add_u32 s{sTmp}, s{sTmp}, 16
        s_load_dwordx2 s[80:81], s[0:1], s{sTmp}
        s_and_b32 s{sTmp}, s2, 62
        s_lshl_b32 s{sTmp}, s{sTmp}, 16
        v_lshlrev_b32 v3, 4, v0
        s_waitcnt lgkmcnt(0)
        """)
        srd(A, rW, 80, 4 << 20)
        for i in range(32):
            A(f"buffer_load_dwordx4 v[{128+4*(i&7)}:{131+4*(i&7)}], v3, {s(rW,4)}, s{sTmp} offen")
            A(f"s_add_u32 s{sTmp}, s{sTmp}, 4096")
        A("s_waitcnt vmcnt(0)")
        A("s_endpgm")
    A.raw('.section .rodata,"a"')
    A.raw(descriptor(NAME + "_kernel", 512, 102, 256))
    global STAMP_NAMES
    STAMP_NAMES = A.stamp_names
    return A.text()

if __name__ == "__main__":
    open("team.s", "w").write(gen_standalone(stamps=True))
```

```python
from asmlib import *
import team as T
from team import (rWS, rDBG, rW, sX, sW, sH, sTmp, sTmp2, sG, sPerm0, sPerm1, SPIN, Cnt,
                  D_INIT, D_LN, D_MOE, D_MOEDONE, CNT, C_KV, C_O, XN, KV, QX, MEMG)
import struct, math
XB = 4 << 20
RL = 6 << 20
MOEP = (6 << 20) + (64 << 10)
OX = 68 << 20
NR = 4
NG = 6
NH = 32*NR; M0 = NH; O0 = NH + 16
f2u = lambda x: struct.unpack("<I", struct.pack("<f", x))[0]
sI, sHd, sR, sSeg, sPrev, sA, sBq, sC = 24, 28, 29, 30, 31, 32, 33, 34
rX, rOUT = 44, 48
DPP = " row_mask:0xf bank_mask:0xf"

def allreduce(A, op, regs, tmps):
    for ctrl in ("quad_perm:[1,0,3,2]", "quad_perm:[2,3,0,1]", "row_half_mirror", "row_mirror"):
        for r in regs: A(f"{op}_dpp v{r}, v{r}, v{r} {ctrl}{DPP}")
    for sw in (16, 32):
        for r, t in zip(regs, tmps): A(f"v_mov_b32 v{t}, v{r}")
        for r, t in zip(regs, tmps): A(f"v_permlane{sw}_swap_b32 v{r}, v{t}")
        for r, t in zip(regs, tmps): A(f"{op} v{r}, v{r}, v{t}")

def rnd_bf(A, r):
    A(f"v_cvt_pk_bf16_f32 v{r}, v{r}, v{r}")
    A(f"v_and_b32 v{r}, 0xffff0000, v{r}")

def unpack(A, lo, hi, src):
    A(f"v_lshlrev_b32 v{lo}, 16, v{src}")
    A(f"v_and_b32 v{hi}, 0xffff0000, v{src}")

def wait_dword(A, tag, off, target, ta, tb, sleep=2, srdn=rDBG, soff="0"):
    A(f"""
    s_cmp_lg_u32 s{sW}, 0
    s_cbranch_scc1 L_wd{tag}_ok
    v_mov_b32 v{ta}, 0
    L_wd{tag}:
    buffer_load_dword v{tb}, v{ta}, {s(srdn,4)}, {soff} offen offset:{off} sc1
    s_waitcnt vmcnt(0)
    v_readfirstlane_b32 s{sTmp}, v{tb}
    s_cmp_ge_u32 s{sTmp}, {target}
    s_cbranch_scc1 L_wd{tag}_ok
    s_sleep {sleep}
    s_add_u32 s{sG}, s{sG}, 1
    s_cmp_lt_u32 s{sG}, {SPIN}
    s_cbranch_scc1 L_wd{tag}
    L_wd{tag}_ok:
    s_barrier
    s_nop 1
    """)

def signal(A, tag, body, ta, tb, ret=False, srdn=rDBG):
    A(f"s_cmp_lg_u32 s{sW}, 0")
    A(f"s_cbranch_scc1 L_sig{tag}")
    A("s_mov_b64 exec, 1")
    body()
    A(f"buffer_atomic_add v{tb}, v{ta}, {s(srdn,4)}, 0 offen" + (" sc0" if ret else ""))
    A("s_mov_b64 exec, -1")
    A.label(f"L_sig{tag}")

def seg_signal(A, tag, sseg, base, ta, tb):
    def body():
        A(f"""
        s_lshl_b32 s{sTmp}, s{sseg}, 8
        s_add_u32 s{sTmp}, s{sTmp}, {CNT + base}
        v_mov_b32 v{ta}, s{sTmp}
        v_mov_b32 v{tb}, 1
        """)
    signal(A, tag, body, ta, tb, srdn=rWS)

vL16, vT16, vC, vG = 1, 2, 3, 4
WST = [False]
WPF = [True]
OPF = [True]
def wstamp(A, k):
    if not WST[0]: return
    A("s_memrealtime s[96:97]")
    A("s_waitcnt lgkmcnt(0)")
    A(f"s_mov_b32 s{[72,73,74,75,98,99,100,101][k]}, s96")

def common(A):
    if WST[0]:
        A("s_mov_b32 s72, s90")
        for r in (73,74,75,98,99,100,101): A(f"s_mov_b32 s{r}, 0")
    wstamp(A, 1)
    A(f"""
    s_sub_u32 s{sI}, s{sH}, 32
    s_cmp_ge_u32 s{sI}, 224
    s_cbranch_scc1 L_end
    s_load_dwordx2 s[76:77], s[0:1], 0
    s_load_dwordx4 s[80:83], s[0:1], 16
    s_load_dwordx4 s[84:87], s[0:1], 32
    s_load_dwordx8 s[88:95], s[0:1], 64
    s_load_dwordx2 s[78:79], s[0:1], 96
    v_and_b32 v5, 63, v0
    v_and_b32 v{vC}, 15, v0
    v_lshrrev_b32 v{vG}, 4, v5
    v_lshlrev_b32 v{vL16}, 4, v5
    v_lshlrev_b32 v{vT16}, 4, v0
    s_mov_b32 s{sPerm0}, 0x05040100
    s_mov_b32 s{sPerm1}, 0x07060302
    s_mov_b32 s{sG}, 0
    s_waitcnt lgkmcnt(0)
    """)
    srd(A, rX, 76, 2 << 20)
    srd(A, rOUT, 78, 2 << 20)

def pf_wo(A, first):
    if not OPF[0]: return
    A(f"s_sub_u32 s{sTmp}, s{sI}, {first}")
    A(f"s_lshl_b32 s{sTmp}, s{sTmp}, 17")
    srd(A, 52, 86, 4 << 20)
    for i in range(32):
        A(f"buffer_load_dwordx4 v[{128+4*(i&7)}:{131+4*(i&7)}], v{vT16}, s[52:55], s{sTmp} offen")
        A(f"s_add_u32 s{sTmp}, s{sTmp}, 4096")

def ln(A):
    X, WR, F, Sg, Tm, Mb, WF = 16, 32, 40, 72, 76, 80, 84
    A(f"s_cmp_lt_u32 s{sI}, {O0+64}")
    A("s_cbranch_scc1 L_ln_go")
    pf_wo(A, O0 + 64 - 16)
    A("s_branch L_ln_done")
    A.label("L_ln_go")
    srd(A, rW, 88, 1024)
    A(f"s_sub_u32 s{sA}, s{sI}, {O0}")
    A(f"s_lshl_b32 s{sA}, s{sA}, 3")
    A(f"s_add_u32 s{sA}, s{sA}, s{sW}")
    A(f"s_lshl_b32 s{sBq}, s{sA}, 4")
    A(f"s_lshl_b32 s{sA}, s{sA}, 12")
    A(f"buffer_load_dwordx4 {v(WR,4)}, v{vL16}, {s(rW,4)}, 0 offen")
    for j in range(4): A(f"buffer_load_dwordx4 {v(X+4*j,4)}, v{vL16}, {s(rX,4)}, s{sA} offen offset:{1024*j}")
    A(f"s_add_u32 s{sTmp}, s{sA}, 16384")
    for j in range(4): A(f"buffer_load_dwordx4 {v(100+4*j,4)}, v{vL16}, {s(rX,4)}, s{sTmp} offen offset:{1024*j}")
    A(f"s_sub_u32 s{sTmp}, s{sI}, {O0}")
    A(f"s_lshl_b32 s{sTmp}, s{sTmp}, 8")
    A(f"s_add_u32 s{sTmp}, s{sTmp}, {CNT}")
    A(f"v_lshrrev_b32 v5, 2, v{vL16}")
    A("v_mov_b32 v6, 0")
    A(f"buffer_store_dword v6, v5, {s(rWS,4)}, s{sTmp} offen sc1")
    A(f"s_mov_b32 s{sSeg}, 0")
    if OPF[0]:
        A(f"s_sub_u32 s{sTmp2}, s{sI}, {O0}")
        A(f"s_lshl_b32 s{sTmp2}, s{sTmp2}, 16")
        for mi, base in enumerate((80, 82, 84)):
            srd(A, 52, base, 4 << 20)
            A(f"s_mov_b32 s{sTmp}, s{sTmp2}")
            for i in range(16):
                A(f"buffer_load_dwordx4 v[{128+4*(i&7)}:{131+4*(i&7)}], v{vT16}, s[52:55], s{sTmp} offen")
                A(f"s_add_u32 s{sTmp}, s{sTmp}, 4096")
    A(f"s_waitcnt vmcnt({5 + (48 if OPF[0] else 0)})")
    A.label("L_ln_pass")
    R4 = range(4)
    for j in R4:
        for d in range(4): unpack(A, F+8*j+2*d, F+8*j+2*d+1, X+4*j+d)
        A(f"v_add_f32 v{Sg+j}, v{F+8*j}, v{F+8*j+1}")
        for e in range(2, 8): A(f"v_add_f32 v{Sg+j}, v{Sg+j}, v{F+8*j+e}")
    allreduce(A, "v_add_f32", [Sg+j for j in R4], [Tm+j for j in R4])
    for j in R4: A(f"v_mul_f32 v{Mb+j}, {f2u(1/512):#x}, v{Sg+j}")
    for j in R4:
        for e in range(8):
            A(f"v_sub_f32 v{Tm}, v{F+8*j+e}, v{Mb+j}")
            if e == 0: A(f"v_mul_f32 v{Sg+j}, v{Tm}, v{Tm}")
            else: A(f"v_fmac_f32 v{Sg+j}, v{Tm}, v{Tm}")
    allreduce(A, "v_add_f32", [Sg+j for j in R4], [Tm+j for j in R4])
    for j in R4:
        rnd_bf(A, Mb+j)
        A(f"v_mul_f32 v{Sg+j}, {f2u(1/512):#x}, v{Sg+j}")
        rnd_bf(A, Sg+j)
        A(f"v_add_f32 v{Sg+j}, {f2u(1e-5):#x}, v{Sg+j}")
        rnd_bf(A, Sg+j)
        A(f"v_sqrt_f32 v{Sg+j}, v{Sg+j}")
        rnd_bf(A, Sg+j)
        A(f"v_rcp_f32 v{Tm+j}, v{Sg+j}")
    for d in range(4): unpack(A, WF+2*d, WF+2*d+1, WR+d)
    Q, E, RA = 92, 94, 96
    for j in R4:
        for d in range(4):
            f = F + 8*j + 2*d
            A(f"v_sub_f32 v{f}, v{f}, v{Mb+j}")
            A(f"v_sub_f32 v{f+1}, v{f+1}, v{Mb+j}")
            A(f"v_cvt_pk_bf16_f32 v{Q}, v{f}, v{f+1}")
            unpack(A, f, f+1, Q)
            for u in range(2):
                A(f"v_mul_f32 v{Q+u}, v{f+u}, v{Tm+j}")
                A(f"v_fma_f32 v{E+u}, -v{Q+u}, v{Sg+j}, v{f+u}")
                A(f"v_fmac_f32 v{Q+u}, v{E+u}, v{Tm+j}")
            A(f"v_cvt_pk_bf16_f32 v{X+4*j+d}, v{Q}, v{Q+1}")
            unpack(A, f, f+1, X+4*j+d)
            if d == 0: A(f"v_mul_f32 v{RA+j}, v{f}, v{WF}")
            else: A(f"v_fmac_f32 v{RA+j}, v{f}, v{WF+2*d}")
            A(f"v_fmac_f32 v{RA+j}, v{f+1}, v{WF+2*d+1}")
        A(f"s_add_u32 s{sTmp}, s{sA}, {XN}")
        A(f"buffer_store_dwordx4 {v(X+4*j,4)}, v{vL16}, {s(rWS,4)}, s{sTmp} offen offset:{1024*j} sc1")
        A(f"s_add_u32 s{sTmp}, s{sA}, {XB}")
        A(f"buffer_store_dwordx4 {v(X+4*j,4)}, v{vL16}, {s(rWS,4)}, s{sTmp} offen offset:{1024*j} sc1")
    allreduce(A, "v_add_f32", [RA+j for j in R4], [Tm+j for j in R4])
    for j in R4: rnd_bf(A, RA+j)
    A(f"s_add_u32 s{sTmp}, s{sBq}, {RL}")
    A("s_mov_b64 exec, 1")
    A(f"buffer_store_dwordx4 {v(RA,4)}, v{vL16}, {s(rWS,4)}, s{sTmp} offen sc1")
    A("s_mov_b64 exec, -1")
    A(f"s_cmp_lg_u32 s{sSeg}, 0")
    A("s_cbranch_scc1 L_ln_fin")
    A(f"s_mov_b32 s{sSeg}, 1")
    A(f"s_add_u32 s{sA}, s{sA}, 16384")
    A(f"s_add_u32 s{sBq}, s{sBq}, 64")
    A(f"s_waitcnt vmcnt({10 + (48 if OPF[0] else 0)})")
    for i in range(0, 16, 2): A(f"v_mov_b64 {v(X+i,2)}, {v(100+i,2)}")
    A("s_branch L_ln_pass")
    A.label("L_ln_fin")
    A("s_waitcnt vmcnt(0)")
    A("s_barrier")
    signal(A, "ln", lambda: A(f"v_mov_b32 v5, {D_LN}\nv_mov_b32 v6, 1"), 5, 6)
    A.label("L_ln_done")
    wstamp(A, 2)

def load_frags(A, nb, issue8, home, TB, PT, depth=3):
    vm = Cnt(A, "vmcnt", 63); toks = {}
    for bi in range(nb + depth):
        if bi >= depth:
            b = bi - depth; Tt = TB[b % len(TB)]
            vm.wait(toks[b])
            for half in range(2):
                for t in range(2):
                    kind, base = home(b, half, t)
                    for r in range(4):
                        lo, hi = Tt + 8*half + 2*r, Tt + 8*half + 2*r + 1
                        sel = sPerm1 if t else sPerm0
                        if kind == "v": A(f"v_perm_b32 v{base+r}, v{hi}, v{lo}, s{sel}")
                        else:
                            A(f"v_perm_b32 v{PT+(r&1)}, v{hi}, v{lo}, s{sel}")
                            A(f"v_accvgpr_write_b32 a{base+r}, v{PT+(r&1)}")
        if bi < nb:
            for half in range(2):
                issue8(bi, half, TB[bi % len(TB)] + 8*half)
                for _ in range(8): toks[bi] = vm.issue()

def hrole(A):
    MI = {"k": 0, "v": 1, "q": 2}
    def wf(m, t, k):
        n = (MI[m]*16 + k)*2 + t
        return ("a", 4*n) if n < 64 else ("v", 128 + 4*(n-64))
    def wop(m, t, k):
        kind, base = wf(m, t, k)
        return (a if kind == "a" else v)(base, 4)
    vWa, vXs, vXB = 5, 6, 7
    A(f"""
    s_lshr_b32 s{sHd}, s{sI}, 2
    s_and_b32 s{sR}, s{sI}, 3
    ; W voffset = g*65536 + h*256 + 64w + 4c
    v_lshlrev_b32 v{vWa}, 16, v{vG}
    v_lshl_add_u32 v{vWa}, v{vC}, 2, v{vWa}
    s_lshl_b32 s{sTmp}, s{sHd}, 8
    s_lshl_b32 s{sTmp2}, s{sW}, 6
    s_add_u32 s{sTmp}, s{sTmp}, s{sTmp2}
    v_add_u32 v{vWa}, s{sTmp}, v{vWa}
    v_lshlrev_b32 v{vXs}, 10, v{vC}
    v_lshl_add_u32 v{vXs}, v{vG}, 4, v{vXs}
    s_lshr_b32 s{sTmp}, s{sW}, 1
    s_lshl_b32 s{sTmp}, s{sTmp}, 14
    s_and_b32 s{sTmp2}, s{sW}, 1
    s_lshl_b32 s{sTmp2}, s{sTmp2}, 9
    s_add_u32 s{sTmp}, s{sTmp}, s{sTmp2}
    v_add_u32 v{vXs}, s{sTmp}, v{vXs}
    v_mov_b32 v{vXB}, v{vL16}
    """)
    if WPF[0]:
        A(f"""
        s_lshr_b32 s{sTmp}, s{sI}, 5
        s_lshl_b32 s{sTmp}, s{sTmp}, 3
        s_add_u32 s{sTmp}, s{sTmp}, 16
        s_load_dwordx2 s[68:69], s[0:1], s{sTmp}
        s_and_b32 s{sTmp}, s{sI}, 31
        s_lshl_b32 s{sTmp}, s{sTmp}, 17
        s_waitcnt lgkmcnt(0)
        """)
        srd(A, rW, 68, 4 << 20)
        for i in range(32):
            A(f"buffer_load_dwordx4 v[{128+4*(i&7)}:{131+4*(i&7)}], v{vT16}, {s(rW,4)}, s{sTmp} offen")
            A(f"s_add_u32 s{sTmp}, s{sTmp}, 4096")
        A("s_waitcnt vmcnt(12)")
    mats = "kvq"
    def issue8(b, half, Tt):
        m = mats[b // 8]; k = 2*(b % 8) + half
        if b % 8 == 0 and half == 0: srd(A, rW, {"q": 80, "k": 82, "v": 84}[m], 4 << 20)
        for j in range(8):
            A(f"s_mov_b32 s{sTmp}, {(32*k + j)*8192}")
            A(f"buffer_load_dword v{Tt+j}, v{vWa}, {s(rW,4)}, s{sTmp} offen")
    load_frags(A, 24, issue8, lambda b, half, t: wf(mats[b // 8], t, 2*(b % 8) + half), [16, 32, 48], 64)
    wstamp(A, 3)
    wait_dword(A, "ln", D_LN, 64, 8, 9)
    wstamp(A, 4)
    sM0 = 35
    def dma_x(sseg):
        A(f"s_lshl_b32 s{sTmp}, s{sseg}, 15")
        A(f"s_add_u32 s{sTmp}, s{sTmp}, {XN}")
        A(f"s_mov_b32 m0, s{sM0}")
        for k in range(8):
            if k: A(f"s_add_u32 m0, m0, 960")
            A(f"buffer_load_dwordx4 v{vXs}, {s(rWS,4)}, s{sTmp} offen offset:{64*k} sc1 lds")
        A(f"s_xor_b32 s{sM0}, s{sM0}, 32768")
    A(f"s_lshl_b32 s{sM0}, s{sW}, 13")
    A(f"s_mov_b32 s{sSeg}, s{sR}")
    A(f"s_mov_b32 s{sPrev}, 64")
    dma_x(sSeg)
    ACC, XF, PK = 16, 64, 80
    acc = lambda tile, m, t: ACC + 4*((tile*3 + MI[m])*2 + t)
    A("s_waitcnt vmcnt(0)")
    A.label("L_p1")
    A("s_barrier")
    A(f"s_add_u32 s{sA}, s{sSeg}, {NR}")
    A(f"s_cmp_ge_u32 s{sA}, 64")
    A(f"s_cselect_b32 s{sA}, s{sSeg}, s{sA}")
    dma_x(sA)
    lg = Cnt(A, "lgkmcnt", 15); tk = {}
    def rdx(i):
        A(f"ds_read_b128 {v(XF+4*(i&3),4)}, v{vXB} offset:{1024*i}"); tk[i] = lg.issue()
    for i in range(3): rdx(i)
    A(f"s_lshl_b32 s{sA}, s{sSeg}, 5")
    A(f"s_add_u32 s{sA}, s{sA}, s{sHd}")
    A(f"s_lshl_b32 s{sBq}, s{sA}, 13")
    A(f"s_add_u32 s{sBq}, s{sBq}, {QX}")
    A(f"s_lshl_b32 s{sA}, s{sA}, 14")
    A(f"s_add_u32 s{sA}, s{sA}, {KV}")
    def st_t(m, tile, pk, sbase):
        for i in range(4): A(f"v_cvt_pk_bf16_f32 v{pk+i}, v{acc(tile,m,0)+i}, v{acc(tile,m,1)+i}")
        A(f"s_add_u32 s{sTmp}, s{sbase}, {4096*tile}")
        A(f"buffer_store_dwordx4 {v(pk,4)}, v{vT16}, {s(rWS,4)}, s{sTmp} offen" + (" sc1" if m == "k" else ""))
    for i in range(32):
        tile, k = i >> 4, i & 15
        lg.wait(tk[i])
        xf = v(XF+4*(i&3), 4)
        n = 0
        for m in "kvq":
            for t in range(2):
                d = v(acc(tile, m, t), 4); c = 0 if k == 0 else d
                if m == "v": A(f"v_mfma_f32_16x16x32_bf16 {d}, {xf}, {wop(m,t,k)}, {c}")
                else: A(f"v_mfma_f32_16x16x32_bf16 {d}, {wop(m,t,k)}, {xf}, {c}")
                n += 1
                if n == 1 and i + 3 < 32: rdx(i + 3)
        if i == 12:
            A("s_waitcnt vmcnt(8)")
            A("s_barrier")
            A(f"s_cmp_ge_u32 s{sPrev}, 64")
            A("s_cbranch_scc1 L_p1_nosig")
            seg_signal(A, "kv", sPrev, C_KV, 8, 9)
            A.label("L_p1_nosig")
        if i == 17: st_t("k", 0, PK, sA)
        if i == 19: st_t("q", 0, PK+4, sBq)
    st_t("k", 1, PK+8, sA)
    for t in range(2):
        pk = PK + 12 + 4*t
        for tile in range(2):
            for u in range(2): A(f"v_cvt_pk_bf16_f32 v{pk+2*tile+u}, v{acc(tile,'v',t)+2*u}, v{acc(tile,'v',t)+2*u+1}")
        A(f"s_add_u32 s{sTmp}, s{sA}, {8192 + 4096*t}")
        A(f"buffer_store_dwordx4 {v(pk,4)}, v{vT16}, {s(rWS,4)}, s{sTmp} offen sc1")
    st_t("q", 1, PK+20, sBq)
    A(f"v_xor_b32 v{vXB}, 0x8000, v{vXB}")
    A(f"s_mov_b32 s{sPrev}, s{sSeg}")
    A(f"s_add_u32 s{sSeg}, s{sSeg}, {NR}")
    A(f"s_cmp_lt_u32 s{sPrev}, {NR}")
    A("s_cbranch_scc1 L_p1_full")
    A("s_waitcnt vmcnt(6)")
    A(f"s_cmp_lt_u32 s{sSeg}, 64")
    A("s_cbranch_scc1 L_p1")
    A.label("L_p1_full")
    A("s_waitcnt vmcnt(0)")
    A("s_barrier")
    seg_signal(A, "kv2", sPrev, C_KV, 8, 9)
    if WST[0]:
        A(f"s_cmp_ge_u32 s{sPrev}, {NR}")
        A("s_cbranch_scc1 L_nost2")
        wstamp(A, 2)
        A.label("L_nost2")
    A(f"s_mov_b32 s{sPrev}, 64")
    A(f"s_cmp_lt_u32 s{sSeg}, 64")
    A("s_cbranch_scc1 L_p1")
    A.label("L_p1_done")
    wstamp(A, 5)
    RSM = 1056; L_MN = 0; L_KM = 8704; L_VM = L_KM + 4096
    vMW, vMR, vNI, vVR, vVW = 5, 6, 7, 8, 9
    sMask = 52
    sQo, sVo, sOo = 36, 37, 38
    A(f"""
    ; row(c)
    v_lshrrev_b32 v10, 2, v{vC}
    v_and_b32 v11, 1, v{vC}
    v_lshl_add_u32 v10, v10, 1, v11
    v_mul_u32_u24 v10, {RSM}, v10
    v_lshl_add_u32 v{vMR}, v{vG}, 4, v10
    v_lshl_add_u32 v{vMW}, v{vG}, 6, v10
    v_and_b32 v11, 2, v{vC}
    v_lshl_add_u32 v{vMW}, v11, 4, v{vMW}
    s_lshl_b32 s{sTmp}, s{sW}, 8
    v_add_u32 v{vMW}, s{sTmp}, v{vMW}
    v_mov_b32 v{vNI}, 0xff800000
    v_lshrrev_b32 v{vVW}, 1, v{vT16}
    v_lshrrev_b32 v{vVR}, 1, v{vL16}
    s_and_b32 s{sTmp}, s{sW}, 2
    s_lshl_b32 s{sVo}, s{sTmp}, 10
    s_lshl_b32 s{sTmp}, s{sTmp}, 9
    v_add_u32 v{vVR}, s{sTmp}, v{vVR}
    s_and_b32 s{sTmp}, s{sW}, 1
    s_lshl_b32 s{sQo}, s{sTmp}, 12
    s_lshl_b32 s{sOo}, s{sTmp}, 17
    s_add_u32 s{sOo}, s{sOo}, s{sVo}
    s_lshl_b32 s{sTmp2}, s{sHd}, 12
    s_add_u32 s{sOo}, s{sOo}, s{sTmp2}
    s_add_u32 s{sOo}, s{sOo}, {OX}
    s_lshl_b32 s{sTmp}, s{sTmp}, 4
    v_lshlrev_b32 v10, 2, v{vG}
    v_sub_u32 v10, v{vC}, v10
    v_add_u32 v10, s{sTmp}, v10
    s_mov_b32 s{sC}, {f2u((128 ** -0.5) * math.log2(math.e)):#x}
    """)
    for t in range(2):
        for i in range(4): A(f"v_cmp_le_i32 s[{sMask+2*(4*t+i)}:{sMask+2*(4*t+i)+1}], {16*t+i}, v10")
    wait_dword(A, "init", D_INIT, 32, 10, 11)
    QF, KF, VF, S, AM, MF = 16, 32, 64, 80, 92, 108
    t0, t1 = 10, 11
    A(f"s_mov_b32 s{sSeg}, s{sR}")
    A.label("L_p2")
    A(f"""
    s_lshl_b32 s{sA}, s{sSeg}, 5
    s_add_u32 s{sA}, s{sA}, s{sHd}
    s_lshl_b32 s{sBq}, s{sA}, 13
    s_add_u32 s{sBq}, s{sBq}, {QX}
    s_add_u32 s{sBq}, s{sBq}, s{sQo}
    s_lshl_b32 s{sA}, s{sA}, 14
    s_add_u32 s{sA}, s{sA}, {KV}
    """)
    for k in range(4): A(f"buffer_load_dwordx4 {v(QF+4*k,4)}, v{vL16}, {s(rWS,4)}, s{sBq} offen offset:{1024*k} sc1")
    for i in range(8):
        if i == 4: A(f"s_add_u32 s{sA}, s{sA}, 4096")
        A(f"buffer_load_dwordx4 {v(KF+4*i,4)}, v{vL16}, {s(rWS,4)}, s{sA} offen offset:{1024*(i&3)} sc1")
    A(f"s_add_u32 s{sA}, s{sA}, s{sVo}")
    for t in range(2):
        A(f"s_add_u32 s{sA}, s{sA}, 4096")
        for wp in range(2): A(f"buffer_load_dwordx4 {v(VF+4*(2*wp+t),4)}, v{vL16}, {s(rWS,4)}, s{sA} offen offset:{1024*wp} sc1")
    A("s_waitcnt vmcnt(4)")
    for k in range(4):
        for t in range(2):
            A(f"v_mfma_f32_16x16x32_bf16 {v(S+4*t,4)}, {v(KF+16*t+4*k,4)}, {v(QF+4*k,4)}, {v(S+4*t,4) if k else 0}")
    A(f"s_lshl_b32 s{sA}, s{sSeg}, 13")
    A(f"s_add_u32 s{sA}, s{sA}, {MEMG}")
    A(f"s_add_u32 s{sBq}, s{sA}, 4096")
    for i in range(8): A(f"v_cndmask_b32 v{S+i}, v{vNI}, v{S+i}, s[{sMask+2*i}:{sMask+2*i+1}]")
    A(f"v_max3_f32 v12, v{S}, v{S+1}, v{S+2}")
    A(f"v_max3_f32 v12, v12, v{S+3}, v{S+4}")
    A(f"v_max3_f32 v12, v12, v{S+5}, v{S+6}")
    A(f"v_max_f32 v12, v12, v{S+7}")
    A.label("L_p2_poll")
    A(f"buffer_load_dwordx4 {v(MF,4)}, v{vT16}, {s(rWS,4)}, s{sA} offen sc1")
    A(f"buffer_load_dwordx4 {v(MF+4,4)}, v{vT16}, {s(rWS,4)}, s{sBq} offen sc1")
    A(f"""
    s_waitcnt vmcnt(0)
    v_max3_u32 v{t0}, v{MF}, v{MF+1}, v{MF+2}
    v_max3_u32 v{t0}, v{t0}, v{MF+3}, v{MF+4}
    v_max3_u32 v{t0}, v{t0}, v{MF+5}, v{MF+6}
    v_max_u32 v{t0}, v{t0}, v{MF+7}
    v_cmp_eq_u32 vcc, -1, v{t0}
    s_cbranch_vccz L_p2_got
    s_sleep 6
    s_add_u32 s{sG}, s{sG}, 1
    s_cmp_lt_u32 s{sG}, {SPIN}
    s_cbranch_scc1 L_p2_poll
    s_branch L_end
    L_p2_got:
    """)
    wstamp(A, 6)
    A(f"""
    ds_write2_b64 v{vMW}, {v(MF,2)}, {v(MF+2,2)} offset0:0 offset1:2
    ds_write2_b64 v{vMW}, {v(MF+4,2)}, {v(MF+6,2)} offset0:1 offset1:3
    s_waitcnt lgkmcnt(0)
    s_barrier
    """)
    lg = Cnt(A, "lgkmcnt", 15); tk = {}
    def rdm(k):
        A(f"ds_read_b128 {v(MF+4*(k&3),4)}, v{vMR} offset:{L_MN+64*k}"); tk[k] = lg.issue()
    for k in range(3): rdm(k)
    for k in range(16):
        lg.wait(tk[k]); xf = v(MF+4*(k&3), 4)
        for n, (m, t) in enumerate((("k",0),("k",1),("v",0),("v",1))):
            d = v(AM+4*n, 4); c = 0 if k == 0 else d
            if m == "v": A(f"v_mfma_f32_16x16x32_bf16 {d}, {xf}, {wop(m,t,k)}, {c}")
            else: A(f"v_mfma_f32_16x16x32_bf16 {d}, {wop(m,t,k)}, {xf}, {c}")
            if n == 0 and k + 3 < 16: rdm(k + 3)
    for i in range(4): A(f"v_cvt_pk_bf16_f32 v{AM+i}, v{AM+i}, v{AM+4+i}")
    A(f"ds_write_b128 v{vT16}, {v(AM,4)} offset:{L_KM}")
    A(f"v_cvt_pk_bf16_f32 v{AM+8}, v{AM+8}, v{AM+9}")
    A(f"v_cvt_pk_bf16_f32 v{AM+9}, v{AM+12}, v{AM+13}")
    A(f"ds_write_b64 v{vVW}, {v(AM+8,2)} offset:{L_VM}")
    KM, VMp, ONES, OO, LL = KF, KF+16, KF+24, AM, MF
    for i in range(4): A(f"v_mov_b32 v{ONES+i}, 0x3f803f80")
    A("s_waitcnt lgkmcnt(0)")
    A("s_barrier")
    for k in range(4): A(f"ds_read_b128 {v(KM+4*k,4)}, v{vL16} offset:{L_KM+1024*k}")
    for wp in range(2):
        for t in range(2):
            A(f"ds_read_b32 v{VMp+2*(2*wp+t)}, v{vVR} offset:{L_VM+512*wp+4*t}")
            A(f"v_mov_b32 v{VMp+2*(2*wp+t)+1}, 0")
    for k in range(4):
        A(f"s_waitcnt lgkmcnt({7-k})")
        A(f"v_mfma_f32_16x16x32_bf16 {v(S+8,4)}, {v(KM+4*k,4)}, {v(QF+4*k,4)}, {v(S+8,4) if k else 0}")
    A(f"v_max3_f32 v{t0}, v12, v{S+8}, v{S+9}")
    for sw in (32, 16):
        A(f"v_mov_b32 v{t1}, v{t0}")
        A(f"v_permlane{sw}_swap_b32 v{t0}, v{t1}")
        A(f"v_max_f32 v{t0}, v{t0}, v{t1}")
    A(f"v_mul_f32 v{t0}, s{sC}, v{t0}")
    for i in range(10): A(f"v_fma_f32 v{S+i}, v{S+i}, s{sC}, -v{t0}")
    for i in range(10): A(f"v_exp_f32 v{S+i}, v{S+i}")
    for i in range(4): A(f"v_cvt_pk_bf16_f32 v{S+i}, v{S+2*i}, v{S+2*i+1}")
    A(f"v_cvt_pk_bf16_f32 v{S+8}, v{S+8}, v{S+9}")
    A(f"v_mov_b32 v{S+9}, 0")
    A("s_waitcnt lgkmcnt(0)")
    A(f"v_mfma_f32_16x16x32_bf16 {v(LL,4)}, {v(ONES,4)}, {v(S,4)}, 0")
    for n in range(4): A(f"v_mfma_f32_16x16x32_bf16 {v(OO+4*n,4)}, {v(VF+4*n,4)}, {v(S,4)}, 0")
    A(f"v_mfma_f32_16x16x16_bf16 {v(LL,4)}, {v(ONES,2)}, {v(S+8,2)}, {v(LL,4)}")
    for n in range(4): A(f"v_mfma_f32_16x16x16_bf16 {v(OO+4*n,4)}, {v(VMp+2*n,2)}, {v(S+8,2)}, {v(OO+4*n,4)}")
    A(f"v_rcp_f32 v{t0}, v{LL}")
    A(f"s_lshl_b32 s{sA}, s{sSeg}, 18")
    A(f"s_add_u32 s{sA}, s{sA}, s{sOo}")
    for wp in range(2):
        for i in range(8): A(f"v_mul_f32 v{OO+8*wp+i}, v{OO+8*wp+i}, v{t0}")
        for i in range(4): A(f"v_cvt_pk_bf16_f32 v{OO+8*wp+i}, v{OO+8*wp+i}, v{OO+8*wp+4+i}")
        A(f"buffer_store_dwordx4 {v(OO+8*wp,4)}, v{vL16}, {s(rWS,4)}, s{sA} offen offset:{1024*wp} sc1")
    A("s_waitcnt vmcnt(0)")
    A("s_barrier")
    seg_signal(A, "o", sSeg, C_O, 10, 11)
    A(f"s_add_u32 s{sSeg}, s{sSeg}, {NR}")
    A(f"s_cmp_lt_u32 s{sSeg}, 64")
    A("s_cbranch_scc1 L_p2")
    A("s_branch L_end")

def orole(A):
    vWa, vWb, vXo, vRd = 5, 6, 7, 8
    sCs, sT_ = 28, 30
    A(f"""
    s_sub_u32 s{sTmp}, s{sI}, {M0}
    s_and_b32 s{sCs}, s{sTmp}, 15
    s_lshr_b32 s{sT_}, s{sTmp}, 4
    v_lshlrev_b32 v{vWa}, 13, v{vG}
    v_lshl_add_u32 v{vWa}, v{vC}, 2, v{vWa}
    s_lshl_b32 s{sTmp}, s{sW}, 20
    s_lshl_b32 s{sTmp2}, s{sCs}, 6
    s_add_u32 s{sTmp}, s{sTmp}, s{sTmp2}
    v_add_u32 v{vWa}, s{sTmp}, v{vWa}
    v_add_u32 v{vWb}, 4096, v{vWa}
    v_lshlrev_b32 v{vXo}, 12, v{vG}
    v_lshl_add_u32 v{vXo}, v{vC}, 2, v{vXo}
    s_lshl_b32 s{sTmp}, s{sW}, 10
    s_add_u32 s{sTmp}, s{sTmp}, s{sTmp2}
    v_add_u32 v{vXo}, s{sTmp}, v{vXo}
    s_lshl_b32 s{sTmp}, s{sW}, 2
    v_add_u32 v{vRd}, s{sTmp}, v{vL16}
    """)
    wait_dword(A, "moe", D_MOEDONE, 1, 10, 11, sleep=40)
    wstamp(A, 3)
    srd(A, rW, 86, 4 << 20)
    def issue8(b, half, Tt):
        ks = 2*b + half
        A(f"s_mov_b32 s{sTmp}, {ks*32768}")
        for j in range(8): A(f"buffer_load_dword v{Tt+j}, v{vWa if j < 4 else vWb}, {s(rW,4)}, s{sTmp} offen offset:{1024*(j&3)}")
    load_frags(A, 16, issue8, lambda b, half, t: ("a", 4*((2*b+half)*2 + t)), [16, 32, 48], 64)
    wstamp(A, 4)
    OF, D, XX, P = 128, 16, 24, 32
    A.label("L_o")
    A(f"""
    s_lshl_b32 s{sA}, s{sT_}, 14
    buffer_load_dword v{XX}, v{vXo}, {s(rX,4)}, s{sA} offen
    s_add_u32 s{sTmp}, s{sA}, {XB}
    buffer_load_dword v{XX+1}, v{vXo}, {s(rWS,4)}, s{sTmp} offen sc1
    s_lshr_b32 s{sPrev}, s{sT_}, 1
    s_lshl_b32 s{sPrev}, s{sPrev}, 8
    s_add_u32 s{sPrev}, s{sPrev}, {CNT}
    s_lshl_b32 s{sBq}, s{sT_}, 17
    s_lshl_b32 s{sTmp}, s{sW}, 15
    s_add_u32 s{sBq}, s{sBq}, s{sTmp}
    s_add_u32 s{sBq}, s{sBq}, {OX}
    """)
    wait_dword(A, "oc", C_O, 32, 10, 11, sleep=3, srdn=rWS, soff=f"s{sPrev}")
    wstamp(A, 6)
    for ks in range(32):
        if ks and ks % 4 == 0: A(f"s_add_u32 s{sBq}, s{sBq}, 4096")
        A(f"buffer_load_dwordx4 {v(OF+4*ks,4)}, v{vL16}, {s(rWS,4)}, s{sBq} offen offset:{1024*(ks&3)} sc1")
    for ks in range(32):
        A(f"s_waitcnt vmcnt({31-ks})")
        for t in range(2):
            A(f"v_mfma_f32_16x16x32_bf16 {v(D+4*t,4)}, {v(OF+4*ks,4)}, {a(4*(2*ks+t),4)}, {v(D+4*t,4) if ks else 0}")
    A(f"ds_write_b128 v{vT16}, {v(D,4)}")
    A(f"ds_write_b128 v{vT16}, {v(D+4,4)} offset:4096")
    A("s_waitcnt lgkmcnt(0)")
    A("s_barrier")
    for t in range(2):
        for w2 in range(4): A(f"ds_read_b32 v{P+4*t+w2}, v{vRd} offset:{4096*t+1024*w2}")
    unpack(A, XX+2, XX+3, XX); unpack(A, XX+4, XX+5, XX+1)
    A("s_waitcnt lgkmcnt(0)")
    A("s_barrier")
    for t in range(2):
        A(f"v_add_f32 v{P+4*t}, v{P+4*t}, v{P+4*t+1}")
        A(f"v_add_f32 v{P+4*t+2}, v{P+4*t+2}, v{P+4*t+3}")
        A(f"v_add_f32 v{P+4*t}, v{P+4*t}, v{P+4*t+2}")
    A(f"v_cvt_pk_bf16_f32 v{P+1}, v{P}, v{P+4}")
    unpack(A, P, P+4, P+1)
    A(f"v_add_f32 v{P}, v{P}, v{XX+2}")
    A(f"v_add_f32 v{P+4}, v{P+4}, v{XX+3}")
    A(f"v_cvt_pk_bf16_f32 v{P+1}, v{P}, v{P+4}")
    unpack(A, P, P+4, P+1)
    A(f"v_add_f32 v{P}, v{P}, v{XX+4}")
    A(f"v_add_f32 v{P+4}, v{P+4}, v{XX+5}")
    A(f"v_cvt_pk_bf16_f32 v{P+1}, v{P}, v{P+4}")
    A(f"buffer_store_dword v{P+1}, v{vXo}, {s(rOUT,4)}, s{sA} offen")
    A(f"s_add_u32 s{sT_}, s{sT_}, {NG}")
    A(f"s_cmp_lt_u32 s{sT_}, 128")
    A("s_cbranch_scc1 L_o")
    A("s_branch L_end")

def mrole(A):
    sM, sI0, sI1 = 28, 29, 30
    vGa, vDa, vT4 = 5, 6, 7
    rU, rD = 52, 56
    A(f"""
    s_sub_u32 s{sM}, s{sI}, {M0}
    v_lshrrev_b32 v{vGa}, 2, v{vL16}
    s_mul_i32 s{sTmp}, s{sM}, 224
    s_mul_i32 s{sTmp2}, s{sW}, {128*3584}
    s_add_u32 s{sTmp}, s{sTmp}, s{sTmp2}
    v_add_u32 v{vGa}, s{sTmp}, v{vGa}
    v_lshlrev_b32 v{vT4}, 2, v0
    s_mul_i32 s{sTmp}, s{sM}, {112*1024}
    v_add_u32 v{vDa}, s{sTmp}, v{vT4}
    """)
    pf_wo(A, M0)
    srd(A, rW, 90, 512*3584); srd(A, rU, 92, 512*3584); srd(A, rD, 94, 1792*1024)
    wait_dword(A, "lnm", D_LN, 64, 10, 11, sleep=16)
    n = 0
    def throttle():
        nonlocal n
        n += 1
        if n % 16 == 0: A("s_waitcnt vmcnt(40)")
    for k in range(128):
        A(f"s_mov_b32 s{sTmp}, {k*3584}")
        A(f"buffer_load_dword v{128+k}, v{vGa}, {s(rW,4)}, s{sTmp} offen"); throttle()
        A(f"buffer_load_dword a{k}, v{vGa}, {s(rU,4)}, s{sTmp} offen"); throttle()
    for f in range(112):
        if f % 4 == 0: A(f"s_mov_b32 s{sTmp}, {f*1024}")
        A(f"buffer_load_dword a{128+f}, v{vDa}, {s(rD,4)}, s{sTmp} offen offset:{1024*(f&3)}"); throttle()
    K, Tm = 16, 24
    A(f"v_lshlrev_b32 v10, 5, v0")
    A(f"s_mov_b32 s{sTmp}, {RL}")
    A(f"buffer_load_dwordx4 {v(K,4)}, v10, {s(rWS,4)}, s{sTmp} offen sc1")
    A(f"buffer_load_dwordx4 {v(K+4,4)}, v10, {s(rWS,4)}, s{sTmp} offen offset:16 sc1")
    A(f"v_lshlrev_b32 v10, 3, v0")
    A(f"v_sub_u32 v10, 2047, v10")
    A("s_waitcnt vmcnt(0)")
    for e in range(8):
        A(f"v_ashrrev_i32 v11, 31, v{K+e}")
        A(f"v_or_b32 v11, 0x80000000, v11")
        A(f"v_xor_b32 v{K+e}, v{K+e}, v11")
        A(f"v_and_b32 v{K+e}, 0xffff0000, v{K+e}")
        A(f"v_subrev_u32 v11, {e}, v10")
        A(f"v_or_b32 v{K+e}, v{K+e}, v11")
    A(f"s_lshl_b32 s{sTmp}, s{sW}, 2")
    A(f"v_mov_b32 v13, s{sTmp}")
    A("v_mov_b32 v14, 0")
    for rnd, sk in enumerate((sI0, sI1)):
        A(f"v_max3_u32 v12, v{K}, v{K+1}, v{K+2}")
        A(f"v_max3_u32 v12, v12, v{K+3}, v{K+4}")
        A(f"v_max3_u32 v12, v12, v{K+5}, v{K+6}")
        A(f"v_max_u32 v12, v12, v{K+7}")
        allreduce(A, "v_max_u32", [12], [11])
        A(f"ds_write_b32 v13, v12 offset:{16*rnd}")
        A("s_waitcnt lgkmcnt(0)")
        A("s_barrier")
        A(f"ds_read_b128 {v(Tm,4)}, v14 offset:{16*rnd}")
        A("s_waitcnt lgkmcnt(0)")
        A(f"v_max3_u32 v12, v{Tm}, v{Tm+1}, v{Tm+2}")
        A(f"v_max_u32 v12, v12, v{Tm+3}")
        A(f"v_readfirstlane_b32 s{sk}, v12")
        if rnd == 0:
            for e in range(8):
                A(f"v_cmp_ne_u32 vcc, v12, v{K+e}")
                A(f"v_cndmask_b32 v{K+e}, 0, v{K+e}, vcc")
    for sk in (sI0, sI1):
        A(f"s_and_b32 s{sk}, s{sk}, 0x7ff")
        A(f"s_sub_u32 s{sk}, 2047, s{sk}")
    X0, X1, R0 = 16, 17, 18
    for sk, xr, rr in ((sI0, X0, R0), (sI1, X1, R0+1)):
        A(f"s_lshl_b32 s{sTmp}, s{sk}, 10")
        A(f"s_add_u32 s{sTmp}, s{sTmp}, {XN}")
        A(f"buffer_load_dword v{xr}, v{vT4}, {s(rWS,4)}, s{sTmp} offen sc1")
        A(f"s_lshl_b32 s{sTmp}, s{sk}, 2")
        A(f"s_add_u32 s{sTmp}, s{sTmp}, {RL}")
        A(f"buffer_load_dword v{rr}, v14, {s(rWS,4)}, s{sTmp} offen sc1")
    AC = 24
    for i in range(8): A(f"v_mov_b32 v{AC+i}, 0")
    A("s_waitcnt vmcnt(0)")
    U = 32
    for p in range(64):
        sx = 60 + 6*(p & 1)
        A(f"v_readlane_b32 s{sx}, v{X0}, {p}")
        A(f"v_readlane_b32 s{sx+1}, v{X1}, {p}")
        for u in range(2): A(f"v_accvgpr_read_b32 v{U+4+u}, a{2*p+u}")
        A(f"s_lshl_b32 s{sx+2}, s{sx}, 16"); A(f"s_lshl_b32 s{sx+3}, s{sx+1}, 16")
        A(f"s_and_b32 s{sx+4}, s{sx}, 0xffff0000"); A(f"s_and_b32 s{sx+5}, s{sx+1}, 0xffff0000")
        for u in range(2):
            for mat in range(2):
                unpack(A, U+2*mat, U+2*mat+1, (128+2*p+u) if mat == 0 else (U+4+u))
            for mat in range(2):
                for tok in range(2):
                    for col in range(2):
                        A(f"v_fmac_f32 v{AC+4*mat+2*tok+col}, s{sx+2+2*u+tok}, v{U+2*mat+col}")
    LR, LH = 64, 64 + 8192
    A(f"ds_write_b128 v{vT16}, {v(AC,4)} offset:{LR}")
    A(f"ds_write_b128 v{vT16}, {v(AC+4,4)} offset:{LR+4096}")
    A("s_waitcnt lgkmcnt(0)")
    A("s_barrier")
    Pp = 40
    for mat in range(2):
        for w2 in range(4): A(f"ds_read_b128 {v(Pp+16*mat+4*w2,4)}, v{vL16} offset:{LR+4096*mat+1024*w2}")
    A("s_waitcnt lgkmcnt(0)")
    for mat in range(2):
        for i in range(4):
            b = Pp + 16*mat + i
            A(f"v_add_f32 v{b}, v{b}, v{b+4}"); A(f"v_add_f32 v{b+8}, v{b+8}, v{b+12}"); A(f"v_add_f32 v{b}, v{b}, v{b+8}")
            rnd_bf(A, b)
    def sigmoid(dst, src):
        A(f"v_mul_f32 v{dst}, {f2u(-math.log2(math.e)):#x}, v{src}")
        A(f"v_exp_f32 v{dst}, v{dst}")
        A(f"v_add_f32 v{dst}, 1.0, v{dst}")
        A(f"v_rcp_f32 v{dst}, v{dst}")
    for i in range(4):
        sigmoid(Pp+4+i, Pp+i)
        A(f"v_mul_f32 v{Pp+i}, v{Pp+i}, v{Pp+4+i}")
        rnd_bf(A, Pp+i)
        A(f"v_mul_f32 v{Pp+i}, v{Pp+i}, v{Pp+16+i}")
        rnd_bf(A, Pp+i)
    A(f"ds_write_b128 v{vL16}, {v(Pp,4)} offset:{LH}")
    for i in range(4): A(f"v_mov_b32 v{AC+i}, 0")
    A("s_waitcnt lgkmcnt(0)")
    HB = 40
    for blk in range(7):
        for q in range(8): A(f"ds_read_b128 {v(HB+4*q,4)}, v14 offset:{LH+16*(8*blk+q)}")
        A("s_waitcnt lgkmcnt(0)")
        for q in range(8):
            for u in range(2):
                f = 2*(8*blk+q) + u
                A(f"v_accvgpr_read_b32 v{U+2}, a{128+f}")
                unpack(A, U, U+1, U+2)
                for tok in range(2):
                    for col in range(2):
                        A(f"v_fmac_f32 v{AC+2*tok+col}, v{HB+4*q+2*tok+u}, v{U+col}")
    A(f"s_lshl_b32 s{sTmp}, s{sM}, 12")
    A(f"s_add_u32 s{sTmp}, s{sTmp}, {MOEP}")
    A(f"buffer_store_dwordx4 {v(AC,4)}, v{vT16}, {s(rWS,4)}, s{sTmp} offen sc1")
    A("s_waitcnt vmcnt(0)")
    A("s_barrier")
    signal(A, "moe", lambda: A(f"v_mov_b32 v10, {D_MOE}\nv_mov_b32 v11, 1"), 10, 11, ret=True)
    A("s_waitcnt vmcnt(0)")
    A(f"s_cmp_lg_u32 s{sW}, 0")
    A("s_cbranch_scc1 L_m_w")
    A("s_mov_b64 exec, 1")
    A("ds_write_b32 v14, v11 offset:32")
    A("s_mov_b64 exec, -1")
    A.label("L_m_w")
    A("s_waitcnt lgkmcnt(0)")
    A("s_barrier")
    A("ds_read_b32 v11, v14 offset:32")
    A("s_waitcnt lgkmcnt(0)")
    A(f"v_readfirstlane_b32 s{sTmp}, v11")
    A(f"s_cmp_lg_u32 s{sTmp}, 15")
    A("s_cbranch_scc1 L_orole2")
    for m in range(16):
        A(f"s_mov_b32 s{sTmp}, {MOEP + 4096*m}")
        A(f"buffer_load_dwordx4 {v(40+4*m,4)}, v{vT16}, {s(rWS,4)}, s{sTmp} offen sc1")
    for tok in range(2):
        sigmoid(U+tok, R0+tok); rnd_bf(A, U+tok)
    A("s_waitcnt vmcnt(0)")
    for m in range(1, 16):
        for i in range(4): A(f"v_add_f32 v{40+i}, v{40+i}, v{40+4*m+i}")
    for tok, (sk, xr) in enumerate(((sI0, X0), (sI1, X1))):
        unpack(A, U+2, U+3, xr)
        for col in range(2):
            r = 40 + 2*tok + col
            rnd_bf(A, r)
            A(f"v_mul_f32 v{r}, v{r}, v{U+tok}")
            rnd_bf(A, r)
            A(f"v_add_f32 v{r}, v{r}, v{U+2+col}")
        A(f"v_cvt_pk_bf16_f32 v{48+tok}, v{40+2*tok}, v{41+2*tok}")
        A(f"s_lshl_b32 s{sTmp}, s{sk}, 10")
        A(f"s_add_u32 s{sTmp}, s{sTmp}, {XB}")
        A(f"buffer_store_dword v{48+tok}, v{vT4}, {s(rWS,4)}, s{sTmp} offen sc1")
    A("s_waitcnt vmcnt(0)")
    A("s_barrier")
    signal(A, "moed", lambda: A(f"v_mov_b32 v10, {D_MOEDONE}\nv_mov_b32 v11, 1"), 10, 11)
    A("s_branch L_orole2")

HEADER = open("cdna_kernels/" + NAME + ".s.ref").read().split("; Override launch geometry")[0] if __import__("os").path.exists("cdna_kernels/" + NAME + ".s.ref") else ""

def gen_full(**kw):
    A = Asm()
    WST[0] = kw.get("stamps") == 2
    for ln_ in HEADER.strip().split("\n"):
        if ln_: A.raw(ln_)
    A.raw(f"; @launch grid=(256,1,1) block=(256,1,1) lds=163840")
    A.raw('.amdgcn_target "amdgcn-amd-amdhsa--gfx950"')
    A.raw(".text")
    kernel_begin(A, NAME + "_kernel")
    A(f"""
    s_cmp_ge_u32 s2, 256
    s_cbranch_scc1 L_end0
    {"s_memrealtime s[90:91]" if kw.get("stamps") else ""}
    s_load_dwordx4 s[4:7], s[0:1], 104
    s_getreg_b32 s{sX}, hwreg(HW_REG_XCC_ID)
    s_and_b32 s{sX}, s{sX}, 7
    v_lshrrev_b32 v1, 6, v0
    v_readfirstlane_b32 s{sW}, v1
    s_waitcnt lgkmcnt(0)
    """)
    srd(A, rWS, 6, T.WS_BYTES)
    srd(A, rDBG, 4, 256)
    T.role_select(A, "L_worker")
    WPF[0] = kw.pop("wpf", False)
    OPF[0] = kw.pop("opf", True)
    T.team(A, kvchk=True, **kw)
    A.label("L_end0")
    A("s_endpgm")
    A.label("L_worker")
    common(A)
    A(f"s_cmp_ge_u32 s{sI}, {O0}")
    A("s_cbranch_scc1 L_orole")
    A(f"s_cmp_ge_u32 s{sI}, {M0}")
    A("s_cbranch_scc1 L_mrole")
    hrole(A)
    A.label("L_orole")
    ln(A)
    A.label("L_orole2")
    orole(A)
    A.label("L_end")
    A("s_waitcnt vmcnt(0)")
    if WST[0]:
        wstamp(A, 7)
        A("s_mov_b64 exec, 1")
        for i, r in enumerate([72,73,74,75,98,99,100,101]): A(f"v_mov_b32 v{16+i}, s{r}")
        A(f"s_lshl_b32 s{sTmp}, s{sH}, 5")
        A(f"s_add_u32 s{sTmp}, s{sTmp}, {T.RES + 32768}")
        A("v_mov_b32 v0, 0")
        A(f"buffer_store_dwordx4 v[16:19], v0, {s(rWS,4)}, s{sTmp} offen")
        A(f"buffer_store_dwordx4 v[20:23], v0, {s(rWS,4)}, s{sTmp} offen offset:16")
        A("s_waitcnt vmcnt(0)")
    A("s_endpgm")
    A.label("L_mrole")
    mrole(A)
    A.raw('.section .rodata,"a"')
    A.raw(descriptor(NAME + "_kernel", 512, 102, 256))
    T.STAMP_NAMES = A.stamp_names
    return A.text()

if __name__ == "__main__":
    txt = gen_full()
    open("full.s", "w").write(txt)
    open("cdna_kernels/" + NAME + ".s", "w").write(txt)
```

```python
from asmlib import *

H2 = 0
H1 = 1 << 20
RES = (1 << 20) + (256 << 10)
XN = 2 << 20
KV = 16 << 20
QX = 50 << 20
MEMG = (1 << 20) + (512 << 10)
WS_BYTES = 256 << 20

L_MEM = 0; L_KX = 8192; L_VX = 16384; L_Q = 24576; L_K = 26880; L_O = 29184; L_ST = 31744; L_W = 32768
RS = 288; RSO = 320

rWS, rDBG, rW = 8, 12, 16
sX, sW, sT, sH = 20, 21, 22, 23
sStep, sTmp, sG, sTmp2 = 24, 25, 26, 27
sO1, sO1b, sO2, sO2b = 28, 29, 30, 31
sRd2, sPubO, sRst2, sRst1 = 32, 33, 34, 35
sKV, sMG, sC, sPerm0, sPerm1 = 36, 37, 38, 39, 40
sB = 44
sRetA, sRetB, sRet2 = 48, 49, 50
sMK, sMV, sRd, sPF = 41, 42, 100, 101
sSt = 56
SPIN = 400000
D_WIN, D_INIT, D_LN, D_MOE, D_MOEDONE = 4, 36, 68, 100, 132
CNT = (1 << 20) + (128 << 10)
C_KV, C_O = 0, 128
sRdy = 51

vIdx, vL16, vT16, vT16b, vT16c, vM1, vM2, vM3, vSt2, vQW, vQR, vOW, vOR = range(1, 14)
vT0, vT1, vPD = 0, 14, 15
MEMA = 16
ACCA = 48
ACCB = 56
STG = 64
POOL = 80
ACCV = 112
NEG = 120
S = MEMA + 4
VMR = 124

LDSF = [("q",1,0),("k",0,0),
        ("q",0,4),("k",1,4),
        ("k",0,2),("q",1,3)]
LDSF += [("o", i >> 1, i & 1) for i in (0, 1, 2, 4, 6, 8, 10, 12, 13, 15)]
ALLF = [(m,t,sl) for m in "qkv" for sl in range(8) for t in range(2)] + [("o",t,k) for k in range(2) for t in range(8)]
HOME = {}
_n = 0
for f in ALLF:
    if f in LDSF: HOME[f] = ("l", LDSF.index(f))
    else:
        HOME[f] = ("a", 8*_n) if _n < 32 else ("v", 128 + 8*(_n-32)); _n += 1
assert _n == 48

def lds_frag_addr(idx, part):
    off = L_W + (2*idx + part) * 4096
    if off < 65536: return vT16, off
    if off < 131072: return vT16b, off - 65536
    return vT16c, off - 131072

class Cnt:
    def __init__(self, A, name, cap): self.A, self.name, self.cap, self.n = A, name, cap, 0
    def issue(self): self.n += 1; return self.n
    def wait(self, tok):
        k = self.n - tok
        if k <= self.cap: self.A(f"s_waitcnt {self.name}({k})")
        else: self.A(f"s_waitcnt {self.name}({self.cap})")

def role_select(A, lab_worker, prefetch=False):
    if prefetch:
        A(f"""
        s_cmp_lt_u32 s{sW}, 2
        s_cbranch_scc1 L_nopf
        s_lshr_b32 s{sTmp}, s2, 6
        s_lshl_b32 s{sTmp}, s{sTmp}, 3
        s_add_u32 s{sTmp}, s{sTmp}, 16
        s_load_dwordx2 s[80:81], s[0:1], s{sTmp}
        s_and_b32 s{sTmp}, s2, 63
        s_lshl_b32 s{sTmp}, s{sTmp}, 16
        v_and_b32 v3, 127, v0
        v_lshlrev_b32 v3, 4, v3
        s_waitcnt lgkmcnt(0)
        """)
        srd(A, rW, 80, 4 << 20)
        for i in range(32):
            if i % 2 == 0 and i: A(f"s_add_u32 s{sTmp}, s{sTmp}, 4096")
            A(f"buffer_load_dwordx4 v[{128+4*(i&7)}:{131+4*(i&7)}], v3, {s(rW,4)}, s{sTmp} offen offset:{2048*(i&1)}")
        A.label("L_nopf")
    A(f"""
    s_cmp_lg_u32 s{sW}, 0
    s_cbranch_scc1 L_role_wait
    s_mov_b64 exec, 1
    v_mov_b32 v3, 1
    s_lshl_b32 s{sTmp}, s{sX}, 5
    v_mov_b32 v4, s{sTmp}
    buffer_atomic_add v3, v4, {s(rDBG,4)}, 0 offen sc0
    s_waitcnt vmcnt(0)
    v_readfirstlane_b32 s{sT}, v3
    s_add_u32 s{sTmp}, s{sX}, 1
    s_mov_b32 s{sH}, 0xffff
    s_cmp_gt_u32 s{sT}, 31
    s_cbranch_scc1 L_role_done
    v_mov_b32 v4, 0
    s_cmp_lg_u32 s{sT}, 31
    s_cbranch_scc1 L_poll_win
    v_mov_b32 v6, s{sTmp}
    v_mov_b32 v7, 0
    buffer_atomic_cmpswap v[6:7], v4, {s(rDBG,4)}, 0 offen offset:{D_WIN}
    s_waitcnt vmcnt(0)
    L_poll_win:
    s_mov_b32 s{sG}, 0
    L_poll_win2:
    buffer_load_dword v3, v4, {s(rDBG,4)}, 0 offen offset:{D_WIN} sc1
    s_waitcnt vmcnt(0)
    v_readfirstlane_b32 s{sStep}, v3
    s_add_u32 s{sG}, s{sG}, 1
    s_cmp_gt_u32 s{sG}, {SPIN}
    s_cbranch_scc1 L_role_done
    s_cmp_eq_u32 s{sStep}, 0
    s_cbranch_scc1 L_poll_win2
    s_cmp_gt_u32 s{sTmp}, s{sStep}
    s_cselect_b32 s{sH}, s{sX}, s{sTmp}
    s_cmp_eq_u32 s{sStep}, s{sTmp}
    s_cselect_b32 s{sH}, 0, s{sH}
    s_lshl_b32 s{sH}, s{sH}, 5
    s_add_u32 s{sH}, s{sH}, s{sT}
    L_role_done:
    v_mov_b32 v3, s{sH}
    v_mov_b32 v4, 0
    ds_write_b32 v4, v3
    s_mov_b64 exec, -1
    L_role_wait:
    s_waitcnt lgkmcnt(0)
    s_barrier
    v_mov_b32 v4, 0
    ds_read_b32 v3, v4
    s_waitcnt lgkmcnt(0)
    v_readfirstlane_b32 s{sH}, v3
    s_barrier
    s_cmp_gt_u32 s{sH}, 31
    s_cbranch_scc1 {lab_worker}
    """)

def team(A, nsteps=64, stamps=False, dA=12, gapB=12, nsets=3, dR=(0,0,12,0), n2=2, dAA=0, bar1=1, bar2=1, pfd=0, usepk=True, rt=False, off="pf", cs=((3,6),(5,6)), kvchk=False, trace=False, gapAB=8, a2=True, pipe2=True, d3r=12, fill_at=4, kfasync=True, lead=0, ks=31, iwarm=False):
    nst = [0]
    names = []
    def stamp(name=""):
        if stamps != 1: return
        k = nst[0]; nst[0] += 1
        assert k < 23
        names.append(name)
        A(f"s_mem{'real' if rt else ''}time s[{52+2*k}:{53+2*k}]")
    A.stamp_names = names
    if stamps == 2: A("s_memrealtime s[92:93]")
    vC, vG, vLn = 16, 17, 18
    x0, x1, x2, x3 = 19, 20, 21, 22
    vWq, vWq2, vWv, vWv2, vWo = 23, 24, 25, 26, 27
    vPubT = 28
    A(f"""
    s_load_dwordx4 s[80:83], s[0:1], 16
    s_load_dwordx4 s[84:87], s[0:1], 32
    s_load_dwordx2 s[88:89], s[0:1], 8
    v_and_b32 v{vLn}, 63, v0
    v_and_b32 v{vC}, 15, v0
    v_lshrrev_b32 v{vG}, 4, v{vLn}
    v_lshlrev_b32 v{vL16}, 4, v{vLn}
    v_lshlrev_b32 v{vT16}, 4, v0
    v_add_u32 v{vT16b}, 0x10000, v{vT16}
    v_add_u32 v{vT16c}, 0x20000, v{vT16}
    v_xor_b32 v{vM1}, 1024, v{vT16}
    v_xor_b32 v{vM2}, 2048, v{vT16}
    v_xor_b32 v{vM3}, 3072, v{vT16}
    v_and_b32 v{x0}, 2, v{vC}
    v_cmp_ne_u32 vcc, 0, v{x0}
    v_mov_b32 v{x1}, 0x4444
    v_mov_b32 v{x2}, 0xeeee
    v_cndmask_b32 v{vIdx}, v{x1}, v{x2}, vcc
    ; row(c) = 2*(c>>2) + (c&1)
    v_lshrrev_b32 v{x1}, 2, v{vC}
    v_and_b32 v{x2}, 1, v{vC}
    v_lshl_add_u32 v{x1}, v{x1}, 1, v{x2}
    v_mul_u32_u24 v{x3}, {RSO}, v{x1}
    v_mul_u32_u24 v{x1}, {RS}, v{x1}
    v_lshl_add_u32 v{vQR}, v{vG}, 4, v{x1}
    s_lshl_b32 s{sTmp}, s{sW}, 6
    v_lshl_add_u32 v{vOW}, v{vG}, 4, v{x3}
    v_add_u32 v{vOW}, s{sTmp}, v{vOW}
    v_lshl_add_u32 v{vOR}, v{vG}, 5, v{x3}
    v_lshl_add_u32 v{vOR}, v{x0}, 3, v{vOR}
    v_mul_u32_u24 v{x1}, {2*RS}, v{vG}
    v_lshl_add_u32 v{x1}, v{vC}, 2, v{x1}
    v_add_u32 v{vQW}, s{sTmp}, v{x1}
    ; vSt2 = (8w + c>>1)*4096 + (g>>1)*2048 + h*64 + (2(g&1) + (c&1))*16
    v_lshrrev_b32 v{x1}, 1, v{vC}
    s_lshl_b32 s{sTmp}, s{sW}, 3
    v_add_u32 v{x1}, s{sTmp}, v{x1}
    v_lshlrev_b32 v{x1}, 12, v{x1}
    v_lshrrev_b32 v{x3}, 1, v{vG}
    v_lshl_add_u32 v{x1}, v{x3}, 11, v{x1}
    v_and_b32 v{x0}, 1, v{vG}
    v_lshl_add_u32 v{x1}, v{x0}, 5, v{x1}
    v_lshl_add_u32 v{x1}, v{x2}, 4, v{x1}
    s_lshl_b32 s{sTmp}, s{sH}, 6
    v_add_u32 v{vSt2}, s{sTmp}, v{x1}
    v_bfe_u32 v{x1}, v{vC}, 1, 1
    s_and_b32 s{sTmp}, s{sW}, 2
    v_add_u32 v{x1}, s{sTmp}, v{x1}
    v_lshl_add_u32 v30, v{x1}, 2, v{x3}
    v_lshlrev_b32 v30, 4, v30
    v_lshl_add_u32 v30, v{x2}, 3, v30
    v_lshl_add_u32 v30, v{x0}, 2, v30
    s_lshr_b32 s{sTmp}, s{sH}, 1
    s_lshl_b32 s{sTmp}, s{sTmp}, 8
    s_and_b32 s{sTmp2}, s{sH}, 1
    s_lshl_b32 s{sTmp2}, s{sTmp2}, 5
    s_add_u32 s{sTmp}, s{sTmp}, s{sTmp2}
    v_add_u32 v30, s{sTmp}, v30
    v_cmp_gt_u32 vcc, 4, v{vC}
    v_mov_b32 v{vPubT}, 0x7f000000
    v_cndmask_b32 v{vPubT}, v{vPubT}, v30, vcc
    v_mov_b32 v{vT1}, v{vPubT}
    v_lshl_add_u32 v{x1}, v{x1}, 1, v{x3}
    v_lshlrev_b32 v{x1}, 10, v{x1}
    v_lshl_add_u32 v{x1}, v{x2}, 4, v{x1}
    v_lshl_add_u32 v{x1}, v{x0}, 2, v{x1}
    s_lshl_b32 s{sTmp}, s{sH}, 5
    v_add_u32 v29, s{sTmp}, v{x1}
    v_lshlrev_b32 v{x2}, 4, v{x2}
    v_mov_b32 v{x3}, 0x3f80
    v_lshlrev_b32 v{x3}, v{x2}, v{x3}
    v_lshrrev_b32 v{x2}, 2, v{vC}
    """)
    for r in range(4):
        A(f"v_cmp_eq_u32 vcc, {r}, v{x2}")
        A(f"v_cndmask_b32 v{32+r}, 0, v{x3}, vcc")
    A(f"ds_write_b128 v{vL16}, v[32:35] offset:{L_ST}")
    A(f"""
    v_lshrrev_b32 v{x0}, 1, v{vG}
    v_and_b32 v{x1}, 1, v{vG}
    v_lshlrev_b32 v{x2}, 18, v{x0}
    v_lshl_add_u32 v{x2}, v{x1}, 16, v{x2}
    s_lshl_b32 s{sTmp}, s{sH}, 8
    s_lshl_b32 s{sTmp2}, s{sW}, 6
    s_add_u32 s{sTmp}, s{sTmp}, s{sTmp2}
    v_add_u32 v{x2}, s{sTmp}, v{x2}
    v_lshl_add_u32 v{vWq}, v{vC}, 2, v{x2}
    v_add_u32 v{vWq2}, 0x2000, v{vWq}
    ; Wo: (16(g>>1) + 4(g&1))*1024 + h*131072 + 256w + 16c
    v_lshlrev_b32 v{x2}, 12, v{x1}
    v_lshl_add_u32 v{x2}, v{x0}, 14, v{x2}
    v_lshl_add_u32 v{x2}, v{vC}, 4, v{x2}
    s_lshl_b32 s{sTmp}, s{sH}, 17
    s_lshl_b32 s{sTmp2}, s{sW}, 8
    s_add_u32 s{sTmp}, s{sTmp}, s{sTmp2}
    v_add_u32 v{vWo}, s{sTmp}, v{x2}
    s_mov_b32 s{sPerm0}, 0x05040100
    s_mov_b32 s{sPerm1}, 0x07060302
    """)
    for i in range(4):
        A(f"s_xor_b32 s{sB+i}, s{sW}, {i}")
        A(f"s_lshl_b32 s{sB+i}, s{sB+i}, 20")
    NG_ = 112
    for i in range(4): A(f"v_mov_b32 v{NG_+i}, -1")
    A(f"s_lshl_b32 s{sRst2}, s{sH}, 12")
    A(f"s_and_b32 s{sPubO}, s{sW}, 1")
    A(f"s_lshl_b32 s{sTmp2}, s{sPubO}, 3")
    A(f"s_lshl_b32 s{sPubO}, s{sPubO}, 12")
    A(f"s_add_u32 s{sMG}, s{sPubO}, {MEMG}")
    A(f"s_add_u32 s{sPubO}, s{sPubO}, {H1}")
    A("s_waitcnt lgkmcnt(0)")
    srd(A, rW, 88, 8192)
    A(f"buffer_load_dword v{vPD}, v29, {s(rW,4)}, s{sTmp2} offen")
    def fills():
        for sl in range(2):
            for x in range(2):
                A(f"s_add_u32 s{sTmp}, s{sRst2}, {H2 + sl*(256<<10) + x*(128<<10)}")
                A(f"buffer_store_dwordx4 {v(NG_,4)}, v{vT16}, {s(rWS,4)}, s{sTmp} offen"); vm.issue()
        A(f"s_lshl_b32 s{sTmp2}, s{sH}, 14")
        for i in range(4):
            A(f"s_add_u32 s{sTmp}, s{sTmp2}, {MEMG + i*4096}")
            A(f"buffer_store_dwordx4 {v(NG_,4)}, v{vT16}, {s(rWS,4)}, s{sTmp} offen sc1"); vm.issue()
        for sl in range(1, 4):
            A(f"s_add_u32 s{sTmp}, s{sPubO}, {sl*8192}")
            A(f"buffer_store_dword v{NG_}, v{vPubT}, {s(rWS,4)}, s{sTmp} offen"); vm.issue()
        A(f"v_min_u32 v{vPD}, 0xfffffffe, v{vPD}")
        A(f"buffer_store_dword v{vPD}, v{vPubT}, {s(rWS,4)}, s{sPubO} offen"); vm.issue()
    def arrive():
        A("s_barrier")
        A(f"""
        s_cmp_lg_u32 s{sW}, 0
        s_cbranch_scc1 L_t_arrived
        s_mov_b64 exec, 1
        v_mov_b32 v{NG_}, 1
        v_mov_b32 v{NG_+1}, 0
        buffer_atomic_add v{NG_}, v{NG_+1}, {s(rDBG,4)}, 0 offen offset:{D_INIT}
        s_mov_b64 exec, -1
        L_t_arrived:
        """)
    TB = [32, 48, 64, 80]
    PT = 96
    vm = Cnt(A, "vmcnt", 63)
    batches = []
    ob = [("o", k, bp) for k in range(2) for bp in range(4)]
    for mi, m in enumerate("qkv"):
        for sl in range(8):
            batches.append((m, sl))
            if (8*mi + sl) % 3 == 0: batches.append(ob.pop(0))
    TB = [32, 48, 64, 80, 116 - 4]
    rWo = 52
    srd(A, rWo, 86, 4 << 20)
    def issue(bi):
        b = batches[bi]; T = TB[bi % 4]
        if b[0] != "o":
            m, sl = b
            if sl == 0: srd(A, rW, {"q": 80, "k": 82, "v": 84}[m], 4 << 20)
            va, vb = vWq, vWq2
            for be in range(8):
                row = 64*(be >> 2) + 16*(be & 1) + 4*(sl >> 2) + 2*((be >> 1) & 1)
                A(f"s_add_u32 s{sTmp}, s{sB+(sl&3)}, {row*8192}")
                A(f"buffer_load_dword v{T+2*be}, v{va}, {s(rW,4)}, s{sTmp} offen"); vm.issue()
                A(f"buffer_load_dword v{T+2*be+1}, v{vb}, {s(rW,4)}, s{sTmp} offen"); tok = vm.issue()
        else:
            _, k, bp = b
            for j in range(2):
                be = 2*bp + j
                row = 64*k + 32*(be >> 2) + 8*(be & 1) + 2*((be >> 1) & 1)
                A(f"s_mov_b32 s{sTmp}, {row*1024}")
                A(f"buffer_load_dwordx4 {v(T+8*j,4)}, v{vWo}, {s(rWo,4)}, s{sTmp} offen"); vm.issue()
                A(f"buffer_load_dwordx4 {v(T+8*j+4,4)}, v{vWo}, {s(rWo,4)}, s{sTmp} offen offset:1024"); tok = vm.issue()
        return tok
    def put(f, be, lo, hi, sel, tmp):
        kind, base = HOME[f]
        if kind == "v":
            A(f"v_perm_b32 v{base+be}, v{hi}, v{lo}, s{sel}")
        else:
            A(f"v_perm_b32 v{tmp}, v{hi}, v{lo}, s{sel}")
            if kind == "a": A(f"v_accvgpr_write_b32 a{base+be}, v{tmp}")
    def consume(bi):
        b = batches[bi]; T = TB[bi % 4]
        if b[0] != "o":
            m, sl = b
            for t in range(2):
                f = (m, t, sl)
                for be in range(8):
                    put(f, be, T+2*be, T+2*be+1, sPerm1 if t else sPerm0, PT + 8*t + be)
                if HOME[f][0] == "l":
                    for p in range(2):
                        ar, off = lds_frag_addr(HOME[f][1], p)
                        A(f"ds_write_b128 v{ar}, {v(PT+8*t+4*p,4)} offset:{off}")
            A("s_waitcnt lgkmcnt(0)")
        else:
            _, k, bp = b
            for t in range(8):
                f = ("o", t, k)
                for j in range(2):
                    be = 2*bp + j
                    put(f, be, T+8*j+(t >> 1), T+8*j+4+(t >> 1), sPerm1 if t & 1 else sPerm0, PT + 2*t + j)
                if HOME[f][0] == "l":
                    ar, off = lds_frag_addr(HOME[f][1], bp >> 1)
                    A(f"ds_write_b64 v{ar}, {v(PT+2*t,2)} offset:{off + 8*(bp & 1)}")
            A("s_waitcnt lgkmcnt(0)")
    toks = {}
    DEPTH = 4
    rP = 56
    A(f"v_lshlrev_b32 v30, 6, v0")
    A(f"s_lshl_b32 s{sTmp}, s{sH}, 17")
    A(f"v_add_u32 v30, s{sTmp}, v30")
    pfn = [0]
    def pfw():
        p = pfn[0]; pfn[0] += 1
        if p >= 24 or not lead: return
        if p % 8 == 0: srd(A, rP, 80 + 2*(p >> 3), 4 << 20)
        x, qd = (p >> 2) & 1, p & 3
        A(f"s_mov_b32 s{sTmp}, {(qd >> 1)*65536 + x*32768 + (qd & 1)*16384}")
        A(f"buffer_load_dword v31, v30, {s(rP,4)}, s{sTmp} offen"); vm.issue()
    for _ in range(lead): pfw()
    for bi in range(len(batches) + DEPTH):
        if bi >= DEPTH:
            vm.wait(toks[bi - DEPTH]); consume(bi - DEPTH)
        if bi == len(batches) - 3 and iwarm:
            A("s_getpc_b64 s[60:61]")
            A.label("L_pc0")
            A("s_add_u32 s60, s60, L_step_0-L_pc0")
            A("s_addc_u32 s61, s61, 0")
            A("v_lshlrev_b32 v30, 5, v0")
            A("v_mov_b32 v31, s61")
            A("v_add_co_u32 v30, vcc, s60, v30")
            A("v_addc_co_u32 v31, vcc, 0, v31, vcc")
            A("global_load_dword v29, v[30:31], off"); vm.issue()
        if bi == len(batches) - 5:
            A("v_mov_b32 v30, 0")
            A(f"buffer_load_dword v29, v30, {s(rDBG,4)}, 0 offen offset:{D_LN} sc1"); vm.issue()
            A(f"buffer_load_dword v31, v30, {s(rDBG,4)}, 0 offen offset:{D_INIT} sc1"); vm.issue()
        if bi == len(batches) - 1:
            A("v_readfirstlane_b32 s60, v29")
            A("v_readfirstlane_b32 s61, v31")
            A(f"v_lshlrev_b32 v30, 4, v{vL16}")
            A(f"s_mov_b32 s{sTmp}, {CNT + C_KV}")
            A(f"buffer_load_dword v29, v30, {s(rWS,4)}, s{sTmp} offen sc1"); vm.issue()
        if bi == fill_at: fills()
        if bi == fill_at + DEPTH: arrive()
        if bi < len(batches):
            toks[bi] = issue(bi)
            if batches[bi][0] != "o": pfw()
    if stamps == 2: A("s_memrealtime s[94:95]")
    A(f"s_lshl_b32 s{sKV}, s{sH}, 14")
    A(f"s_lshl_b32 s{sTmp}, s{sW}, 11")
    A(f"s_add_u32 s{sKV}, s{sKV}, s{sTmp}")
    A(f"s_add_u32 s{sKV}, s{sKV}, {KV}")
    A(f"s_add_u32 s{sMK}, s{sTmp}, {L_KX}")
    A(f"s_add_u32 s{sMV}, s{sTmp}, {L_VX}")
    A(f"s_lshl_b32 s{sMV+1}, s{sH}, 14")
    A(f"s_add_u32 s{sMV+1}, s{sMV+1}, {KV + 8192}")
    A(f"s_add_u32 s{sPF}, s{sTmp}, {pfd*32*16384}")
    def dma(which, par, j):
        if j == 0:
            A(f"s_mov_b32 m0, s{sMK if which == 'k' else sMV + par}")
            if which == "v": A(f"s_add_u32 s{sTmp}, s{sKV}, 8192")
        A(f"buffer_load_dwordx4 v{vL16}, {s(rWS,4)}, s{sKV if which == 'k' else sTmp} offen offset:{1024*j} sc1 lds")
    def kv_wait(tag, ta, tb, need):
        A(f"""
        L_kvw{tag}:
        v_lshlrev_b32 v{ta}, 4, v{vL16}
        s_mov_b32 s{sTmp}, {CNT + C_KV}
        buffer_load_dword v{tb}, v{ta}, {s(rWS,4)}, s{sTmp} offen sc1
        s_waitcnt vmcnt(0)
        v_cmp_eq_u32 vcc, 32, v{tb}
        s_ff0_i32_b64 s{sRdy}, vcc
        s_add_u32 s{sG}, s{sG}, 1
        s_cmp_gt_u32 s{sG}, {SPIN}
        s_cbranch_scc1 L_team_end
        s_cmp_gt_u32 s{sRdy}, {need}
        s_cbranch_scc0 L_kvw{tag}
        """)
    A(f"s_mov_b32 s{sG}, 0")
    if kvchk:
        A(f"""
        v_cmp_eq_u32 vcc, 32, v29
        s_ff0_i32_b64 s{sRdy}, vcc
        s_cmp_ge_u32 s60, 64
        s_cselect_b32 s{sRdy}, s{sRdy}, 0
        s_cmp_lg_u32 s{sRdy}, 0
        s_cbranch_scc1 L_kv0ok
        v_mov_b32 v41, 0
        L_lnw:
        buffer_load_dword v40, v41, {s(rDBG,4)}, 0 offen offset:{D_LN} sc1
        s_waitcnt vmcnt(0)
        v_readfirstlane_b32 s{sTmp2}, v40
        s_add_u32 s{sG}, s{sG}, 1
        s_cmp_gt_u32 s{sG}, {SPIN}
        s_cbranch_scc1 L_team_end
        s_cmp_lt_u32 s{sTmp2}, 64
        s_cbranch_scc1 L_lnw
        """)
        kv_wait("0", 40, 41, "0")
        A.label("L_kv0ok")
    dma("k", 0, 0); dma("k", 0, 1)
    A(f"s_add_u32 s{sKV}, s{sKV}, {32*16384}")
    A(f"""
    s_cmp_ge_u32 s61, 32
    s_cbranch_scc1 L_init_wait
    s_cmp_lg_u32 s{sW}, 0
    s_cbranch_scc1 L_init_wait
    v_mov_b32 v41, 0
    s_mov_b32 s{sG}, 0
    L_init_poll:
    buffer_load_dword v40, v41, {s(rDBG,4)}, 0 offen offset:{D_INIT} sc1
    s_waitcnt vmcnt(0)
    v_readfirstlane_b32 s{sTmp}, v40
    s_add_u32 s{sG}, s{sG}, 1
    s_cmp_gt_u32 s{sG}, {SPIN}
    s_cbranch_scc1 L_init_wait
    s_cmp_lt_u32 s{sTmp}, 32
    s_cbranch_scc1 L_init_poll
    L_init_wait:
    s_waitcnt lgkmcnt(0)
    s_barrier
    s_mov_b32 s{sStep}, 0
    s_mov_b32 s{sG}, 0
    s_mov_b32 s{sRetA}, 0
    s_mov_b32 s{sRetB}, 0
    s_mov_b32 s{sRet2}, 0
    s_mov_b32 s{sC}, 0x3e0293ee
    v_mov_b32 v{VMR+1}, 0
    v_mov_b32 v{VMR+3}, 0
    s_lshl_b32 s{sRd2}, s{sW}, 17
    s_lshl_b32 s{sTmp}, s{sH}, 12
    s_add_u32 s{sRd2}, s{sRd2}, s{sTmp}
    """)
    import math, struct
    cval = struct.unpack("<I", struct.pack("<f", (128 ** -0.5) * math.log2(math.e)))[0]
    A(f"s_mov_b32 s{sC}, {cval:#x}")
    if stamps == 2:
        A("s_memrealtime s[96:97]")
        A("s_memtime s[76:77]"); A("s_waitcnt lgkmcnt(0)")
    if stamps == 1:
        for k in range(52, 100): A(f"s_mov_b32 s{k}, 0")

    lg = Cnt(A, "lgkmcnt", 15)
    staged = {}
    def stage(idx, reg):
        f = LDSF[idx]
        for p in range(2):
            ar, off = lds_frag_addr(idx, p)
            A(f"ds_read_b128 {v(reg+4*p,4)}, v{ar} offset:{off}"); tok = lg.issue()
        staged[f] = (reg, tok)
    waited = [0]
    def lwait(tok):
        if tok > waited[0]:
            lg.wait(tok); waited[0] = tok
    def sm(m, t, sl, acc, areg):
        f = (m, t, sl); kind, base = HOME[f]
        if kind == "l":
            reg, tok = staged.pop(f); lwait(tok); b = v(reg, 8)
        else:
            b = (a if kind == "a" else v)(base, 8)
        A(f"v_smfmac_f32_16x16x64_bf16 {v(acc,4)}, {v(areg,4)}, {b}, v{vIdx}")
    def dsr(dst, addr, off, n=4):
        A(f"ds_read_b{32*n} {v(dst,n)}, v{addr} offset:{off}"); return lg.issue()
    def dsw(addr, src, off, n=4):
        A(f"ds_write_b{32*n} v{addr}, {v(src,n)} offset:{off}"); return lg.issue()
    def chk(r, lab):
        A(f"v_max3_u32 v{vT0}, v{r}, v{r+1}, v{r+2}")
        A(f"v_max_u32 v{vT0}, v{vT0}, v{r+3}")
        A(f"v_cmp_eq_u32 vcc, -1, v{vT0}")
        A(f"s_cbranch_vccnz {lab}")
    qa = lambda t: ACCA + 4*t
    ka = lambda t: ACCB + 4*t
    ma = lambda sl: MEMA + 4*sl

    QB = POOL; FR = POOL + 16
    va = lambda t: ACCV + 4*t
    WA = MEMA
    wa = lambda t: WA + 4*t
    R2 = ma(5); SEL = ma(7); PUB = vT1; DD = ma(3)
    def stage1(idx, reg, p):
        f = LDSF[idx]
        ar, off = lds_frag_addr(idx, p)
        A(f"ds_read_b128 {v(reg+4*p,4)}, v{ar} offset:{off}"); tok = lg.issue()
        if p == 1: staged[f] = (reg, tok)
    G = lambda idx, reg, p: (lambda: stage1(idx, reg, p))
    def mf(d, a_, b_, first, k16=False):
        n = 2 if k16 else 4
        A(f"v_mfma_f32_16x16x{16 if k16 else 32}_bf16 {v(d,4)}, {v(a_,n)}, {v(b_,n)}, {0 if first else v(d,4)}")
    def slots(ms, fill):
        for i, m in enumerate(ms):
            m()
            if i < len(fill):
                for f in fill[i]: f()
        for fl in fill[len(ms):]:
            for f in fl: f()
    I = lambda txt: (lambda: A(txt))
    accf = {"q": qa, "k": ka, "v": va}
    SM = lambda m, t, sl, areg=None: (lambda: sm(m, t, sl, accf[m](t), ma(sl) if areg is None else areg))
    PRE = [(0, STG), (1, STG+8), (2, FR), (3, FR+8), (5, QB+8), (4, QB)]
    def chores(lo, hi):
        for idx, reg in PRE[lo:hi]: stage(idx, reg)
    def zero_accs():
        for i in range(0, 16, 2): A(f"v_mov_b64 {v(ACCA+i,2)}, 0")
        for i in range(0, 8, 2): A(f"v_mov_b64 {v(ACCV+i,2)}, 0")
    def set_neg():
        A(f"v_mov_b64 {v(NEG,2)}, -1"); A(f"v_mov_b64 {v(NEG+2,2)}, -1")
    def slot_offsets():
        A(f"""
        s_and_b32 s{sTmp}, s{sStep}, 3
        s_lshl_b32 s{sO1}, s{sTmp}, 13
        s_add_u32 s{sO1}, s{sO1}, {H1}
        s_add_u32 s{sO1b}, s{sO1}, 4096
        """)
    def ld1():
        A(f"buffer_load_dwordx4 {v(ma(0),4)}, v{vT16}, {s(rWS,4)}, s{sO1} offen sc1")
        A(f"buffer_load_dwordx4 {v(ma(4),4)}, v{vT16}, {s(rWS,4)}, s{sO1b} offen sc1")
    def ld2():
        for u in range(2):
            A(f"buffer_load_dwordx4 {v(R2+4*u,4)}, v{vL16}, {s(rWS,4)}, s{sRd} offen offset:{1024*u} sc1")
    def delay(n):
        while n > 0:
            A(f"s_nop {min(n,16)-1}"); n -= 16
    chores(0, 6); zero_accs(); set_neg(); slot_offsets()
    A(f"s_mov_b32 s{sO2}, {H2}"); A(f"s_mov_b32 s{sO2b}, {H2 + (128<<10)}")
    A(f"s_add_u32 s{sRst1}, s{sPubO}, {2*8192}")
    A(f"s_and_b32 s{sTmp}, s{sW}, 1")
    A(f"s_lshl_b32 s{sRd2}, s{sTmp}, 17")
    A(f"s_lshl_b32 s{sTmp}, s{sH}, 12")
    A(f"s_add_u32 s{sRd2}, s{sRd2}, s{sTmp}")
    A(f"s_lshr_b32 s{sTmp}, s{sW}, 1")
    A(f"s_lshl_b32 s{sTmp}, s{sTmp}, 11")
    A(f"s_add_u32 s{sRd2}, s{sRd2}, s{sTmp}")
    pre_staged = dict(staged)
    sKf = 47
    A(f"s_mov_b32 s{sKf}, 0")
    A(f"s_waitcnt lgkmcnt(0)")
    def ldA(): A(f"buffer_load_dwordx4 {v(ma(0),4)}, v{vT16}, {s(rWS,4)}, s{sO1} offen sc1")
    def ldB(): A(f"buffer_load_dwordx4 {v(ma(4),4)}, v{vT16}, {s(rWS,4)}, s{sO1b} offen sc1")
    N1 = I("s_nop 1"); N0 = I("s_nop 0")
    for par in range(2):
        P = f"_{par}"
        LM = L_MEM; LK = L_KX if par == 0 else L_VX
        st = stamp if par == 0 else (lambda n="": None)
        A.label("L_step" + P)
        if stamps == 1 and par == 0:
            stamp("top")
            A(f"s_cmp_ge_u32 s{sStep}, {nsteps-3}")
            A("s_cbranch_scc1 L_team_end")
        st("top2")
        for j in range(nsets):
            delay(gapB if j else dA)
            ldA(); delay(gapAB); ldB()
        waited[0] = lg.n
        staged.clear(); staged.update({f: (r, 0) for f, (r, t) in pre_staged.items()})
        r, q = ma(0), ma(4)
        A.label("L_pollA" + P)
        A(f"s_waitcnt vmcnt({2*nsets-1})")
        chk(r, "L_retryA" + P)
        tt = {}
        def rd(key, dst, addr, off): return lambda: tt.__setitem__(key, dsr(dst, addr, off))
        kx = lambda i, dst: rd(("kx", i), dst, vL16, LK + 1024*i)
        W = lambda key: (lambda: lwait(tt[key]))
        WS = lambda idx: (lambda: lwait(staged[LDSF[idx]][1]))
        twa = dsw(vT16, r, LM)
        st("ok")
        slots([SM("q",0,0), SM("q",1,0), SM("k",0,0), SM("k",1,0)],
              [[], [I(f"s_waitcnt vmcnt({2*nsets-2})"), I(f"v_max3_u32 v{vT0}, v{q}, v{q+1}, v{q+2}")], [I(f"v_max_u32 v{vT0}, v{vT0}, v{q+3}")],
               [lambda: lwait(twa), I("s_barrier"), I(f"v_cmp_eq_u32 vcc, -1, v{vT0}")]])
        st("barM")
        rd(1, ma(1), vM1, LM)()
        SM("v",0,0)()
        A(f"s_cbranch_vccnz L_retryB{P}")
        A.label("L_okB" + P)
        st("okB")
        tw = dsw(vT16, q, LM + 4096)
        kvu = []
        slots([SM("v",1,0), SM("q",0,4), SM("q",1,4), SM("k",0,4), SM("k",1,4), SM("v",0,4), SM("v",1,4)],
              [[rd(2, ma(2), vM2, LM)], [rd(3, ma(3), vM3, LM)], [kx(4, STG)], [kx(5, STG+4)], [], [lambda: lwait(tw), I("s_barrier")], [rd(5, ma(5), vM1, LM+4096)]])
        st("barB")
        rst = [I(f"s_xor_b32 s{sTmp}, s{sO2}, {256<<10}"), I(f"s_add_u32 s{sTmp}, s{sTmp}, s{sRst2}"),
               I(f"buffer_store_dwordx4 {v(NEG,4)}, v{vT16}, {s(rWS,4)}, s{sTmp} offen")]
        rst2 = [I(f"s_add_u32 s{sTmp}, s{sTmp}, {128<<10}"),
               I(f"buffer_store_dwordx4 {v(NEG,4)}, v{vT16}, {s(rWS,4)}, s{sTmp} offen"),
               I(f"buffer_store_dword v{NEG}, v{PUB}, {s(rWS,4)}, s{sRst1} offen")]
        pubg = [I(f"buffer_store_dword v{vPD}, v{PUB}, {s(rWS,4)}, s{sMG} offen sc1"), I(f"s_add_u32 s{sMG}, s{sMG}, 8192")]
        bk = [I(x) for x in (
            f"s_add_u32 s{sStep}, s{sStep}, 1", f"s_add_u32 s{sRd}, s{sO2}, s{sRd2}", f"s_and_b32 s{sB}, s{sStep}, 3",
            f"s_lshl_b32 s{sB+1}, s{sB}, 13", f"s_add_u32 s{sO1}, s{sB+1}, {H1}", f"s_add_u32 s{sO1b}, s{sO1}, 4096",
            f"s_add_u32 s{sB+2}, s{sB+1}, s{sPubO}", f"s_xor_b32 s{sRst1}, s{sB+1}, {2<<13}", f"s_add_u32 s{sRst1}, s{sRst1}, s{sPubO}")]
        m0k = I(f"s_mov_b32 m0, s{sMV if par == 0 else sMK}")
        dk = lambda j: I(f"buffer_load_dwordx4 v{vL16}, {s(rWS,4)}, s{sKV} offen offset:{1024*j} sc1 lds")
        VX0, VX1 = ma(0), ma(4)
        lv = [I(f"buffer_load_dwordx4 {v(VX0,4)}, v{vT16}, {s(rWS,4)}, s{sMV+1} offen sc1"), I(f"s_add_u32 s{sTmp2}, s{sMV+1}, 4096"),
              I(f"buffer_load_dwordx4 {v(VX1,4)}, v{vT16}, {s(rWS,4)}, s{sTmp2} offen sc1"), I(f"s_add_u32 s{sMV+1}, s{sMV+1}, {32*16384}")]
        if "dma" in off: dk = lambda j: N0
        def kvbr():
            if kvchk:
                A(f"s_cmp_gt_u32 s{sRdy}, s{sStep}")
                A(f"s_cbranch_scc0 L_kvw{P}")
                A.label("L_kvok" + P)
        def kfissue():
            if not (kvchk and kfasync and par == 0): return
            A(f"""
            s_min_u32 s{sTmp}, s{sRdy}, 64
            s_lshl_b32 s{sTmp}, s{sTmp}, 8
            v_lshlrev_b32 v{VMR}, 4, v{vL16}
            s_add_u32 s{sTmp}, s{sTmp}, {CNT + C_KV}
            s_mov_b32 s{sKf}, s{sRdy}
            s_mov_b64 exec, 0xffff
            buffer_load_dword v{vPD}, v{VMR}, {s(rWS,4)}, s{sTmp} offen sc1
            s_mov_b64 exec, -1
            """)
        dmaseq = {ks: [m0k, kvbr], ks+1: [dk(0)], ks+3: [dk(1), I(f"s_add_u32 s{sKV}, s{sKV}, {32*16384}")]}
        slotno = [0]
        def slots2(ms, fill):
            fill = [list(f) for f in fill] + [[] for _ in range(len(ms) - len(fill))]
            for i in range(len(ms)):
                fill[i] = dmaseq.pop(slotno[0], []) + fill[i]; slotno[0] += 1
            slots(ms, fill)
        slots2([SM("q",0,1), SM("q",1,1), SM("k",0,1), SM("k",1,1), SM("q",0,2), SM("q",1,2), SM("k",0,2), SM("k",1,2),
               SM("q",1,3), SM("k",0,3), SM("q",0,3), SM("k",1,3), SM("q",0,5), SM("q",1,5), SM("q",0,6), SM("q",1,6), SM("q",0,7), SM("q",1,7)],
              [[rd(6, ma(6), vM2, LM+4096)] + lv[:2], [rd(7, ma(7), vM3, LM+4096), bk[0]], lv[2:], [W(3)] + rst[:2], [kx(6, STG+8)], [kx(7, STG+12)] + rst[2:], bk[1:3], [kx(0, FR)],
               [kx(1, FR+4)], rst2[:2], bk[3:6], [W(7), kx(2, FR+8)], rst2[2:], [kx(3, FR+12)], pubg, bk[6:9], [kfissue], []])
        st("qdone")
        if trace and par == 0:
            A(f"""
            s_memrealtime s[52:53]
            s_memtime s[54:55]
            s_lshl_b32 s56, s{sStep}, 2
            s_waitcnt lgkmcnt(0)
            v_writelane_b32 v{vT0}, s52, 0
            v_writelane_b32 v{vT0}, s54, 1
            s_lshl_b32 s57, s{sH}, 10
            s_add_u32 s56, s56, s57
            s_add_u32 s56, s56, {RES + 65536 - 4}
            v_lshrrev_b32 v{QB}, 2, v{vL16}
            s_mov_b64 exec, 3
            buffer_store_dword v{vT0}, v{QB}, {s(rWS,4)}, s56 offen
            s_mov_b64 exec, -1
            """)
        def epi_ops(acc):
            return [I(f"v_add_f32 v{acc}, v{acc}, v{acc+2}"), I(f"v_add_f32 v{acc+1}, v{acc+1}, v{acc+3}"),
                    I(f"v_add_f32 v{acc+4}, v{acc+4}, v{acc+6}"), I(f"v_add_f32 v{acc+5}, v{acc+5}, v{acc+7}"),
                    I(f"v_cvt_pk_bf16_f32 v{acc}, v{acc}, v{acc+4}"), I(f"v_cvt_pk_bf16_f32 v{acc+1}, v{acc+1}, v{acc+5}")]
        e = epi_ops(ACCA); ek = epi_ops(ACCB)
        wq = [lambda: dsw(vQW, ACCA, L_Q, 1), lambda: dsw(vQW, ACCA+1, L_Q + RS, 1)]
        wk = [lambda: dsw(vQW, ACCB, L_K, 1), lambda: tt.__setitem__("wk", dsw(vQW, ACCB+1, L_K + RS, 1))]
        slots2([SM("k",0,5), SM("k",0,6), SM("k",0,7), SM("k",1,5), SM("k",1,6), SM("k",1,7),
               SM("v",0,1), SM("v",1,1), SM("v",0,2), SM("v",1,2), SM("v",0,3), SM("v",1,3)],
              [[e[0]], [e[1]], [e[2]], [e[3]], [e[4]], [wq[0], e[5]],
               [wq[1], ek[0], ek[1]], [ek[2], ek[3]], [ek[4], ek[5]] + wk, [], [],
               []])
        lwait(tt["wk"]); A("s_barrier"); st("barQK")
        qr = lambda k: rd(("q", k), QB+4*k, vQR, L_Q + 64*k)
        KMR = ACCA
        kr = lambda k: rd(("km", k), KMR+4*k, vQR, L_K + 64*k)
        VXR = FR; OO = QB; LL = QB + 8; ONES = NEG
        ones = [I(f"v_mov_b32 v{ONES+i}, 0x3f803f80") for i in range(4)]
        nvm = 3 + (1 if kvchk and kfasync and par == 0 else 0) + (1 if trace and par == 0 else 0) - 2*("dma" in off)
        assert ks >= 15
        qr(0)()
        slots2([SM("v",0,5), SM("v",1,5), SM("v",0,6), SM("v",1,6), SM("v",0,7), SM("v",1,7)],
              [[qr(1), ones[0]], [qr(2), ones[1]], [qr(3), ones[2]], [kr(0), ones[3]], [kr(1)], [kr(2), W(("q",1))]])
        st("vdone")
        Sx = lambda t, k: (lambda: (lwait(tt[("q", k)]), mf(S+4*t, (FR if t == 0 else STG) + 4*k, QB+4*k, k == 0)))
        Sm = lambda k: (lambda: (lwait(tt[("km", k)]), mf(S+8, KMR+4*k, QB+4*k, k == 0)))
        ve = []
        for t in range(2):
            ve += [I(f"v_add_f32 v{va(t)}, v{va(t)}, v{va(t)+2}"), I(f"v_add_f32 v{va(t)+1}, v{va(t)+1}, v{va(t)+3}"),
                   I(f"v_cvt_pk_bf16_f32 v{VMR+2*t}, v{va(t)}, v{va(t)+1}")]
        zw = [I(f"v_mov_b64 {v(WA+i,2)}, 0") for i in range(0, 32, 2)]
        slots2([Sx(0,0), Sx(1,0), Sx(0,1), Sx(1,1), Sx(0,2), Sx(1,2), Sx(0,3), Sx(1,3), Sm(0), Sm(1), Sm(2), Sm(3)],
              [[kr(3)], [ve[0], ve[1]], [ve[2], ve[3]], [W(("q",3)), ve[4]],
               [G(11, FR, 0), ve[5]], [G(11, FR, 1)],
               [G(6, STG, 0)], [W(("km",3)), G(6, STG, 1)], [G(7, FR+8, 0), I(f"v_max3_f32 v{vT0}, v{S}, v{S+1}, v{S+2}")],
               [I(f"v_max3_f32 v{vT0}, v{vT0}, v{S+3}, v{S+4}"), I(f"v_max3_f32 v{vT0}, v{vT0}, v{S+5}, v{S+6}")],
               [G(7, FR+8, 1), I(f"v_max_f32 v{vT0}, v{vT0}, v{S+7}")],
               [G(9, ACCV, 0), zw[10], zw[11], G(9, ACCV, 1), zw[12], zw[13], zw[14]]])
        assert not dmaseq
        st("Smm")
        A(f"v_max3_f32 v{vT0}, v{vT0}, v{S+8}, v{S+9}")
        A(f"v_mov_b32 v{S+10}, v{vT0}")
        G(8, STG+8, 0)(); zw[15]()
        A(f"v_permlane32_swap_b32 v{vT0}, v{S+10}")
        A(f"v_max_f32 v{vT0}, v{vT0}, v{S+10}")
        A(f"v_mov_b32 v{S+10}, v{vT0}")
        G(8, STG+8, 1)()
        A(f"v_permlane16_swap_b32 v{vT0}, v{S+10}")
        A(f"v_max_f32 v{vT0}, v{vT0}, v{S+10}")
        A(f"v_mul_f32 v{S+10}, s{sC}, v{vT0}")
        for i in (8, 0, 2, 4, 6):
            A(f"v_pk_fma_f32 {v(S+i,2)}, {v(S+i,2)}, s[{sC}:{sC+1}], {v(S+10,2)} op_sel_hi:[1,0,0] neg_lo:[0,0,1] neg_hi:[0,0,1]")
        ex = lambda i: I(f"v_exp_f32 v{S+i}, v{S+i}")
        cv = lambda i: I(f"v_cvt_pk_bf16_f32 v{S+i}, v{S+2*i}, v{S+2*i+1}")
        ex(8)(); ex(9)(); ex(0)()
        A(f"v_cvt_pk_bf16_f32 v{S+8}, v{S+8}, v{S+9}"); A(f"v_mov_b32 v{S+9}, 0")
        ex(1)(); ex(2)()
        slots([lambda: mf(LL, ONES, S+8, True, True), lambda: mf(OO, VMR, S+8, True, True), lambda: mf(OO+4, VMR+2, S+8, True, True)],
              [[ex(3), cv(0)], [ex(4), ex(5)], [ex(6), ex(7), cv(1), cv(2), cv(3)]])
        st("exp")
        G(10, ACCB, 0)(); A(f"s_waitcnt vmcnt({nvm})")
        slots([lambda: mf(LL, ONES, S, False), lambda: mf(OO, VX0, S, False), lambda: mf(OO+4, VX1, S, False)],
              [[G(10, ACCB, 1), zw[4]], [zw[5], zw[6]], [zw[7]]])
        st("PV")
        A(f"v_rcp_f32 v{vT0}, v{LL}")
        zw[0]()
        for i in range(4): A(f"v_mul_f32 v{OO+i}, v{OO+i}, v{vT0}")
        A(f"v_pk_mul_f32 {v(OO+4,2)}, {v(OO+4,2)}, {v(vT0,2)} op_sel_hi:[1,0]")
        A(f"v_pk_mul_f32 {v(OO+6,2)}, {v(OO+6,2)}, {v(vT0,2)} op_sel_hi:[1,0]")
        for i in range(4): A(f"v_cvt_pk_bf16_f32 v{OO+i}, v{OO+i}, v{OO+4+i}")
        tw = dsw(vOW, OO, L_O)
        st("owr")
        for f in (zw[1], zw[2], zw[3], zw[8], zw[9]): f()
        lwait(tw); A("s_barrier"); st("barO")
        OA = ACCA
        to0 = dsr(OA, vOR, L_O)
        to = dsr(OA+4, vOR, L_O + 128)
        ad = lambda t: [I(f"v_add_f32 v{wa(t)}, v{wa(t)}, v{wa(t)+2}"), I(f"v_add_f32 v{wa(t)+1}, v{wa(t)+1}, v{wa(t)+3}")]
        cvp = lambda dst, t: [I(f"v_cvt_pk_bf16_f32 v{dst}, v{wa(t)}, v{wa(t+1)}"), I(f"v_cvt_pk_bf16_f32 v{dst+2}, v{wa(t)+1}, v{wa(t+1)+1}")]
        sto = lambda x, dst: [I(f"buffer_store_dwordx4 {v(dst,4)}, v{vSt2}, {s(rWS,4)}, s{sO2b if x else sO2} offen")]
        SO = lambda t, k: (lambda: sm("o", t, k, wa(t), OA+4*k))
        DA, DB = QB, QB + 4
        lwait(to0)
        st("ord")
        slots([SO(t, k) for t in range(8) for k in range(2)],
              [[lambda: lwait(to), G(12, QB+8, 0)], [G(12, QB+8, 1)], [G(13, STG, 0)], [G(13, STG, 1), ad(0)[0]], [G(14, FR+8, 0), ad(0)[1]],
               [G(14, FR+8, 1), ad(1)[0]], [G(15, STG+8, 0), ad(1)[1]], [G(15, STG+8, 1), cvp(DA, 0)[0], cvp(DA, 0)[1]],
               ad(2), [WS(13)] + ad(3), cvp(DA+1, 2), sto(0, DA) + [lambda: st("stA"), ad(4)[0]], [WS(15), ad(4)[1]],
               ad(5)[:1], ad(5)[1:], cvp(DB, 4) + ad(6)])
        for f in ad(7) + cvp(DB+1, 6) + sto(1, DB): f()
        st("stB")
        assert not staged, staged
        if bar1: A("s_barrier")
        st("bar1")
        dsr(SEL, vL16, L_ST)
        A(f"s_xor_b32 s{sO2}, s{sO2}, {256<<10}")
        A(f"s_xor_b32 s{sO2b}, s{sO2b}, {256<<10}")
        def kfload(tag):
            if not (kvchk and kfasync and par == 0): return
            A(f"""
            s_waitcnt vmcnt({2*n2+2})
            v_cmp_eq_u32 vcc, 32, v{vPD}
            s_and_b32 s{sTmp}, vcc_lo, 0xffff
            s_ff0_i32_b32 s{sTmp}, s{sTmp}
            s_min_u32 s{sKf}, s{sKf}, 64
            s_add_u32 s{sTmp}, s{sTmp}, s{sKf}
            s_max_u32 s{sRdy}, s{sRdy}, s{sTmp}
            """)
        for role in range(2):
            if role == 0:
                A(f"s_bitcmp1_b32 s{sW}, 0")
                A(f"s_cbranch_scc1 L_tailB{P}")
            else:
                A.label(f"L_tailB{P}")
                staged.clear()
            ca, cb_ = cs[role]
            chores(0, ca); delay(dR[2*role]); ld2()
            if role == 1 and par == 0 and stamps == 1:
                nst[0] -= 1; names.pop()
            st("ld2")
            chores(ca, cb_); zero_accs(); delay(dR[2*role+1])
            if n2 > 1 and (role == 1 or a2): ld2()
            chores(cb_, 6); set_neg()
            if n2 > 2 and (role == 1 or a2):
                delay(d3r); ld2()
            if role == 0:
                if a2 or n2 == 1: A(f"s_branch L_tailj{P}")
                else:
                    A("s_waitcnt lgkmcnt(0)")
                    kfload("a")
                    A(f"s_branch L_poll2{P}")
        A.label(f"L_tailj{P}")
        A("s_waitcnt lgkmcnt(0)")
        kfload("b")
        def red_try(base, ok_lab, fail_lab):
            for u in range(2):
                r = R2 + 4*u
                A(f"s_waitcnt vmcnt({base+1-u})")
                A(f"v_max3_u32 v{vT0}, v{r}, v{r+1}, {'v%d' % vT0 if u else 0}")
                A(f"v_max3_u32 v{vT0}, v{r+2}, v{r+3}, v{vT0}")
                mf(DD, SEL, r, u == 0)
            A(f"v_cmp_eq_u32 vcc, -1, v{vT0}")
            if fail_lab: A(f"s_cbranch_vccnz {fail_lab}")
            if ok_lab: A(f"s_branch {ok_lab}")
        st("tailj")
        A.label("L_pipe2" + P)
        red_try(2*n2-2, None, ("L_retryp" if pipe2 else "L_poll2" if n2 > 1 else "L_retry2") + P)
        A.label("L_ok2" + P)
        st("ok2")
        A("s_nop 5")
        for rot in (4, 8):
            A(f"v_add_f32_dpp v{DD}, v{DD}, v{DD} row_ror:{rot} row_mask:0xf bank_mask:0xf")
            A(f"v_add_f32_dpp v{DD+1}, v{DD+1}, v{DD+1} row_ror:{rot} row_mask:0xf bank_mask:0xf")
        A(f"v_cvt_pk_bf16_f32 v{vPD}, v{DD}, v{DD+1}")
        A(f"v_min_u32 v{vPD}, 0xfffffffe, v{vPD}")
        A(f"buffer_store_dword v{vPD}, v{PUB}, {s(rWS,4)}, s{sB+2} offen")
        st("red")
        if bar2: A("s_barrier")
        if par == (nsteps & 1):
            A(f"s_cmp_eq_u32 s{sStep}, {nsteps-1}")
            A("s_cbranch_scc1 L_last")
        if par == 1: A("s_branch L_step_0")
        staged.clear()
    def retry(lab, cnt, body, back):
        A.label(lab)
        A("s_mov_b64 exec, vcc")
        body()
        A("s_mov_b64 exec, -1")
        A(f"s_add_u32 s{cnt}, s{cnt}, 1")
        A(f"s_add_u32 s{sG}, s{sG}, 1")
        A(f"s_cmp_gt_u32 s{sG}, {SPIN}")
        A(f"s_cbranch_scc1 L_team_end")
        if back: A(f"s_branch {back}")
    for par in range(2):
        P = f"_{par}"
        retry("L_retryA" + P, sRetA, ld1, "L_pollA" + P)
        retry("L_retryB" + P, sRetB, ld1, None)
        A(f"s_waitcnt vmcnt({2*nsets-2})")
        chk(ma(4), "L_retryB" + P)
        A(f"s_branch L_okB{P}")
        retry("L_retryp" + P, sRet2, ld2, "L_pipe2" + P)
        retry("L_retry2" + P, sRet2, ld2, None)
        A.label("L_poll2" + P)
        A("s_nop 0")
        red_try(0, "L_ok2" + P, "L_retry2" + P)
        if kvchk:
            kv_wait(P, vT0, VMR, f"s{sStep}")
            A(f"s_branch L_kvok{P}")
    A.label("L_last")
    A(f"buffer_store_dword v{vPD}, v{PUB}, {s(rWS,4)}, s{sMG} offen sc1")
    A("s_waitcnt vmcnt(0) lgkmcnt(0)")
    A.label("L_team_end")
    if stamps:
        if stamps == 2:
            A("s_memrealtime s[98:99]")
            A("s_memtime s[72:73]"); A("s_waitcnt lgkmcnt(0)")
            A("s_sub_u32 s72, s72, s76")
            vals = [72, sStep, sRetA, sRetB, sRet2, 76, 76, 76] + [90, 92, 94, 96, 98, 98, 98, 98]
        else:
            A("s_waitcnt lgkmcnt(0)")
            for c, (ra, rb) in enumerate(((44, 45), (46, 47))):
                A(f"""
                s_memrealtime s[16:17]
                s_waitcnt lgkmcnt(0)
                s_add_u32 s16, s16, {200 if c else 8}
                L_cal{c}:
                s_memrealtime s[18:19]
                s_memtime s[98:99]
                s_waitcnt lgkmcnt(0)
                s_cmp_lt_u32 s18, s16
                s_cbranch_scc1 L_cal{c}
                s_mov_b32 s{ra}, s18
                s_mov_b32 s{rb}, s98
                """)
            vals = [44, sStep, sRetA, sRetB, sRet2, 45, 46, 47] + list(range(52, 100, 2))
        A(f"s_lshl_b32 s{sTmp}, s{sH}, 2")
        A(f"s_add_u32 s{sTmp}, s{sTmp}, s{sW}")
        A(f"s_lshl_b32 s{sTmp}, s{sTmp}, 7")
        A(f"s_add_u32 s{sTmp}, s{sTmp}, {RES}")
        A("s_waitcnt vmcnt(0)")
        for i, r in enumerate(vals): A(f"v_mov_b32 v{16+i}, s{r}")
        A("v_mov_b32 v0, 0")
        A("s_mov_b64 exec, 1")
        for i in range(len(vals)//4): A(f"buffer_store_dwordx4 {v(16+4*i,4)}, v0, {s(rWS,4)}, s{sTmp} offen offset:{16*i}")
    A("s_waitcnt vmcnt(0)")

def gen_standalone(**kw):
    A = Asm()
    A.raw(f"; @launch grid=(256,1,1) block=(256,1,1) lds=163840")
    A.raw('.amdgcn_target "amdgcn-amd-amdhsa--gfx950"')
    A.raw(".text")
    kernel_begin(A, NAME + "_kernel")
    A(f"""
    s_cmp_ge_u32 s2, 256
    s_cbranch_scc1 L_end
    s_memrealtime s[90:91]
    s_load_dwordx4 s[4:7], s[0:1], 104
    s_getreg_b32 s{sX}, hwreg(HW_REG_XCC_ID)
    s_and_b32 s{sX}, s{sX}, 7
    v_lshrrev_b32 v1, 6, v0
    v_readfirstlane_b32 s{sW}, v1
    s_waitcnt lgkmcnt(0)
    """)
    srd(A, rWS, 6, WS_BYTES)
    srd(A, rDBG, 4, 256)
    spf = kw.pop("spf", 0)
    kw["iwarm"] = False
    role_select(A, "L_pfw" if spf else "L_end")
    team(A, **kw)
    A.label("L_end")
    A("s_endpgm")
    if spf:
        A.label("L_pfw")
        A(f"""
        s_lshr_b32 s{sTmp}, s2, 6
        s_lshl_b32 s{sTmp}, s{sTmp}, 3
        s_add_u32 s{sTmp}, s{sTmp}, 16
        s_load_dwordx2 s[80:81], s[0:1], s{sTmp}
        s_and_b32 s{sTmp}, s2, 62
        s_lshl_b32 s{sTmp}, s{sTmp}, 16
        v_lshlrev_b32 v3, 4, v0
        s_waitcnt lgkmcnt(0)
        """)
        srd(A, rW, 80, 4 << 20)
        for i in range(32):
            A(f"buffer_load_dwordx4 v[{128+4*(i&7)}:{131+4*(i&7)}], v3, {s(rW,4)}, s{sTmp} offen")
            A(f"s_add_u32 s{sTmp}, s{sTmp}, 4096")
        A("s_waitcnt vmcnt(0)")
        A("s_endpgm")
    A.raw('.section .rodata,"a"')
    A.raw(descriptor(NAME + "_kernel", 512, 102, 256))
    global STAMP_NAMES
    STAMP_NAMES = A.stamp_names
    return A.text()

if __name__ == "__main__":
    open("team.s", "w").write(gen_standalone(stamps=True))
```

```python
from asmlib import *
import team as T
from team import (rWS, rDBG, rW, sX, sW, sH, sTmp, sTmp2, sG, sPerm0, sPerm1, SPIN, Cnt,
                  D_INIT, D_LN, D_MOE, D_MOEDONE, CNT, C_KV, C_O, XN, KV, QX, MEMG)
import struct, math
XB = 4 << 20
RL = 6 << 20
MOEP = (6 << 20) + (64 << 10)
OX = 68 << 20
NR = 4
NG = 6
NH = 32*NR; M0 = NH; O0 = NH + 16
f2u = lambda x: struct.unpack("<I", struct.pack("<f", x))[0]
sI, sHd, sR, sSeg, sPrev, sA, sBq, sC = 24, 28, 29, 30, 31, 32, 33, 34
rX, rOUT = 44, 48
DPP = " row_mask:0xf bank_mask:0xf"

def allreduce(A, op, regs, tmps):
    for ctrl in ("quad_perm:[1,0,3,2]", "quad_perm:[2,3,0,1]", "row_half_mirror", "row_mirror"):
        for r in regs: A(f"{op}_dpp v{r}, v{r}, v{r} {ctrl}{DPP}")
    for sw in (16, 32):
        for r, t in zip(regs, tmps): A(f"v_mov_b32 v{t}, v{r}")
        for r, t in zip(regs, tmps): A(f"v_permlane{sw}_swap_b32 v{r}, v{t}")
        for r, t in zip(regs, tmps): A(f"{op} v{r}, v{r}, v{t}")

def rnd_bf(A, r):
    A(f"v_cvt_pk_bf16_f32 v{r}, v{r}, v{r}")
    A(f"v_and_b32 v{r}, 0xffff0000, v{r}")

def unpack(A, lo, hi, src):
    A(f"v_lshlrev_b32 v{lo}, 16, v{src}")
    A(f"v_and_b32 v{hi}, 0xffff0000, v{src}")

def wait_dword(A, tag, off, target, ta, tb, sleep=2, srdn=rDBG, soff="0"):
    A(f"""
    s_cmp_lg_u32 s{sW}, 0
    s_cbranch_scc1 L_wd{tag}_ok
    v_mov_b32 v{ta}, 0
    L_wd{tag}:
    buffer_load_dword v{tb}, v{ta}, {s(srdn,4)}, {soff} offen offset:{off} sc1
    s_waitcnt vmcnt(0)
    v_readfirstlane_b32 s{sTmp}, v{tb}
    s_cmp_ge_u32 s{sTmp}, {target}
    s_cbranch_scc1 L_wd{tag}_ok
    s_sleep {sleep}
    s_add_u32 s{sG}, s{sG}, 1
    s_cmp_lt_u32 s{sG}, {SPIN}
    s_cbranch_scc1 L_wd{tag}
    L_wd{tag}_ok:
    s_barrier
    s_nop 1
    """)

def signal(A, tag, body, ta, tb, ret=False, srdn=rDBG):
    A(f"s_cmp_lg_u32 s{sW}, 0")
    A(f"s_cbranch_scc1 L_sig{tag}")
    A("s_mov_b64 exec, 1")
    body()
    A(f"buffer_atomic_add v{tb}, v{ta}, {s(srdn,4)}, 0 offen" + (" sc0" if ret else ""))
    A("s_mov_b64 exec, -1")
    A.label(f"L_sig{tag}")

def seg_signal(A, tag, sseg, base, ta, tb):
    def body():
        A(f"""
        s_lshl_b32 s{sTmp}, s{sseg}, 8
        s_add_u32 s{sTmp}, s{sTmp}, {CNT + base}
        v_mov_b32 v{ta}, s{sTmp}
        v_mov_b32 v{tb}, 1
        """)
    signal(A, tag, body, ta, tb, srdn=rWS)

vL16, vT16, vC, vG = 1, 2, 3, 4
WST = [False]
WPF = [True]
OPF = [True]
SLP = [6, 3]
OPN = [3]
def wstamp(A, k):
    if not WST[0]: return
    A("s_memrealtime s[96:97]")
    A("s_waitcnt lgkmcnt(0)")
    A(f"s_mov_b32 s{[72,73,74,75,98,99,100,101][k]}, s96")

def common(A):
    if WST[0]:
        A("s_mov_b32 s72, s90")
        for r in (73,74,75,98,99,100,101): A(f"s_mov_b32 s{r}, 0")
    wstamp(A, 1)
    A(f"""
    s_sub_u32 s{sI}, s{sH}, 32
    s_cmp_ge_u32 s{sI}, 224
    s_cbranch_scc1 L_end
    s_load_dwordx2 s[76:77], s[0:1], 0
    s_load_dwordx4 s[80:83], s[0:1], 16
    s_load_dwordx4 s[84:87], s[0:1], 32
    s_load_dwordx8 s[88:95], s[0:1], 64
    s_load_dwordx2 s[78:79], s[0:1], 96
    v_and_b32 v5, 63, v0
    v_and_b32 v{vC}, 15, v0
    v_lshrrev_b32 v{vG}, 4, v5
    v_lshlrev_b32 v{vL16}, 4, v5
    v_lshlrev_b32 v{vT16}, 4, v0
    s_mov_b32 s{sPerm0}, 0x05040100
    s_mov_b32 s{sPerm1}, 0x07060302
    s_mov_b32 s{sG}, 0
    s_waitcnt lgkmcnt(0)
    """)
    srd(A, rX, 76, 2 << 20)
    srd(A, rOUT, 78, 2 << 20)

def pf_wo(A, first):
    if not OPF[0]: return
    A(f"s_sub_u32 s{sTmp}, s{sI}, {first}")
    A(f"s_lshl_b32 s{sTmp}, s{sTmp}, 17")
    srd(A, 52, 86, 4 << 20)
    for i in range(32):
        A(f"buffer_load_dwordx4 v[{128+4*(i&7)}:{131+4*(i&7)}], v{vT16}, s[52:55], s{sTmp} offen")
        A(f"s_add_u32 s{sTmp}, s{sTmp}, 4096")

def ln(A):
    X, WR, F, Sg, Tm, Mb, WF = 16, 32, 40, 72, 76, 80, 84
    A(f"s_cmp_lt_u32 s{sI}, {O0+64}")
    A("s_cbranch_scc1 L_ln_go")
    pf_wo(A, O0 + 64 - 16)
    A("s_branch L_ln_done")
    A.label("L_ln_go")
    srd(A, rW, 88, 1024)
    A(f"s_sub_u32 s{sA}, s{sI}, {O0}")
    A(f"s_lshl_b32 s{sA}, s{sA}, 3")
    A(f"s_add_u32 s{sA}, s{sA}, s{sW}")
    A(f"s_lshl_b32 s{sBq}, s{sA}, 4")
    A(f"s_lshl_b32 s{sA}, s{sA}, 12")
    A(f"buffer_load_dwordx4 {v(WR,4)}, v{vL16}, {s(rW,4)}, 0 offen")
    for j in range(4): A(f"buffer_load_dwordx4 {v(X+4*j,4)}, v{vL16}, {s(rX,4)}, s{sA} offen offset:{1024*j}")
    A(f"s_add_u32 s{sTmp}, s{sA}, 16384")
    for j in range(4): A(f"buffer_load_dwordx4 {v(100+4*j,4)}, v{vL16}, {s(rX,4)}, s{sTmp} offen offset:{1024*j}")
    A(f"s_sub_u32 s{sTmp}, s{sI}, {O0}")
    A(f"s_lshl_b32 s{sTmp}, s{sTmp}, 8")
    A(f"s_add_u32 s{sTmp}, s{sTmp}, {CNT}")
    A(f"v_lshrrev_b32 v5, 2, v{vL16}")
    A("v_mov_b32 v6, 0")
    A(f"buffer_store_dword v6, v5, {s(rWS,4)}, s{sTmp} offen sc1")
    A(f"s_mov_b32 s{sSeg}, 0")
    if OPF[0]:
        A(f"s_sub_u32 s{sTmp2}, s{sI}, {O0}")
        A(f"s_lshl_b32 s{sTmp2}, s{sTmp2}, 16")
        for mi, base in enumerate((80, 82, 84)[:OPN[0]]):
            srd(A, 52, base, 4 << 20)
            A(f"s_mov_b32 s{sTmp}, s{sTmp2}")
            for i in range(16):
                A(f"buffer_load_dwordx4 v[{128+4*(i&7)}:{131+4*(i&7)}], v{vT16}, s[52:55], s{sTmp} offen")
                A(f"s_add_u32 s{sTmp}, s{sTmp}, 4096")
    A(f"s_waitcnt vmcnt({5 + (16*OPN[0] if OPF[0] else 0)})")
    A.label("L_ln_pass")
    R4 = range(4)
    for j in R4:
        for d in range(4): unpack(A, F+8*j+2*d, F+8*j+2*d+1, X+4*j+d)
        A(f"v_add_f32 v{Sg+j}, v{F+8*j}, v{F+8*j+1}")
        for e in range(2, 8): A(f"v_add_f32 v{Sg+j}, v{Sg+j}, v{F+8*j+e}")
    allreduce(A, "v_add_f32", [Sg+j for j in R4], [Tm+j for j in R4])
    for j in R4: A(f"v_mul_f32 v{Mb+j}, {f2u(1/512):#x}, v{Sg+j}")
    for j in R4:
        for e in range(8):
            A(f"v_sub_f32 v{Tm}, v{F+8*j+e}, v{Mb+j}")
            if e == 0: A(f"v_mul_f32 v{Sg+j}, v{Tm}, v{Tm}")
            else: A(f"v_fmac_f32 v{Sg+j}, v{Tm}, v{Tm}")
    allreduce(A, "v_add_f32", [Sg+j for j in R4], [Tm+j for j in R4])
    for j in R4:
        rnd_bf(A, Mb+j)
        A(f"v_mul_f32 v{Sg+j}, {f2u(1/512):#x}, v{Sg+j}")
        rnd_bf(A, Sg+j)
        A(f"v_add_f32 v{Sg+j}, {f2u(1e-5):#x}, v{Sg+j}")
        rnd_bf(A, Sg+j)
        A(f"v_sqrt_f32 v{Sg+j}, v{Sg+j}")
        rnd_bf(A, Sg+j)
        A(f"v_rcp_f32 v{Tm+j}, v{Sg+j}")
    for d in range(4): unpack(A, WF+2*d, WF+2*d+1, WR+d)
    Q, E, RA = 92, 94, 96
    for j in R4:
        for d in range(4):
            f = F + 8*j + 2*d
            A(f"v_sub_f32 v{f}, v{f}, v{Mb+j}")
            A(f"v_sub_f32 v{f+1}, v{f+1}, v{Mb+j}")
            A(f"v_cvt_pk_bf16_f32 v{Q}, v{f}, v{f+1}")
            unpack(A, f, f+1, Q)
            for u in range(2):
                A(f"v_mul_f32 v{Q+u}, v{f+u}, v{Tm+j}")
                A(f"v_fma_f32 v{E+u}, -v{Q+u}, v{Sg+j}, v{f+u}")
                A(f"v_fmac_f32 v{Q+u}, v{E+u}, v{Tm+j}")
            A(f"v_cvt_pk_bf16_f32 v{X+4*j+d}, v{Q}, v{Q+1}")
            unpack(A, f, f+1, X+4*j+d)
            if d == 0: A(f"v_mul_f32 v{RA+j}, v{f}, v{WF}")
            else: A(f"v_fmac_f32 v{RA+j}, v{f}, v{WF+2*d}")
            A(f"v_fmac_f32 v{RA+j}, v{f+1}, v{WF+2*d+1}")
        A(f"s_add_u32 s{sTmp}, s{sA}, {XN}")
        A(f"buffer_store_dwordx4 {v(X+4*j,4)}, v{vL16}, {s(rWS,4)}, s{sTmp} offen offset:{1024*j} sc1")
        A(f"s_add_u32 s{sTmp}, s{sA}, {XB}")
        A(f"buffer_store_dwordx4 {v(X+4*j,4)}, v{vL16}, {s(rWS,4)}, s{sTmp} offen offset:{1024*j} sc1")
    allreduce(A, "v_add_f32", [RA+j for j in R4], [Tm+j for j in R4])
    for j in R4: rnd_bf(A, RA+j)
    A(f"s_add_u32 s{sTmp}, s{sBq}, {RL}")
    A("s_mov_b64 exec, 1")
    A(f"buffer_store_dwordx4 {v(RA,4)}, v{vL16}, {s(rWS,4)}, s{sTmp} offen sc1")
    A("s_mov_b64 exec, -1")
    A(f"s_cmp_lg_u32 s{sSeg}, 0")
    A("s_cbranch_scc1 L_ln_fin")
    A(f"s_mov_b32 s{sSeg}, 1")
    A(f"s_add_u32 s{sA}, s{sA}, 16384")
    A(f"s_add_u32 s{sBq}, s{sBq}, 64")
    A(f"s_waitcnt vmcnt({10 + (16*OPN[0] if OPF[0] else 0)})")
    for i in range(0, 16, 2): A(f"v_mov_b64 {v(X+i,2)}, {v(100+i,2)}")
    A("s_branch L_ln_pass")
    A.label("L_ln_fin")
    A("s_waitcnt vmcnt(0)")
    A("s_barrier")
    signal(A, "ln", lambda: A(f"v_mov_b32 v5, {D_LN}\nv_mov_b32 v6, 1"), 5, 6)
    A.label("L_ln_done")
    wstamp(A, 2)

def load_frags(A, nb, issue8, home, TB, PT, depth=3):
    vm = Cnt(A, "vmcnt", 63); toks = {}
    for bi in range(nb + depth):
        if bi >= depth:
            b = bi - depth; Tt = TB[b % len(TB)]
            vm.wait(toks[b])
            for half in range(2):
                for t in range(2):
                    kind, base = home(b, half, t)
                    for r in range(4):
                        lo, hi = Tt + 8*half + 2*r, Tt + 8*half + 2*r + 1
                        sel = sPerm1 if t else sPerm0
                        if kind == "v": A(f"v_perm_b32 v{base+r}, v{hi}, v{lo}, s{sel}")
                        else:
                            A(f"v_perm_b32 v{PT+(r&1)}, v{hi}, v{lo}, s{sel}")
                            A(f"v_accvgpr_write_b32 a{base+r}, v{PT+(r&1)}")
        if bi < nb:
            for half in range(2):
                issue8(bi, half, TB[bi % len(TB)] + 8*half)
                for _ in range(8): toks[bi] = vm.issue()

def hrole(A):
    MI = {"k": 0, "v": 1, "q": 2}
    def wf(m, t, k):
        n = (MI[m]*16 + k)*2 + t
        return ("a", 4*n) if n < 64 else ("v", 128 + 4*(n-64))
    def wop(m, t, k):
        kind, base = wf(m, t, k)
        return (a if kind == "a" else v)(base, 4)
    vWa, vXs, vXB = 5, 6, 7
    A(f"""
    s_lshr_b32 s{sHd}, s{sI}, 2
    s_and_b32 s{sR}, s{sI}, 3
    ; W voffset = g*65536 + h*256 + 64w + 4c
    v_lshlrev_b32 v{vWa}, 16, v{vG}
    v_lshl_add_u32 v{vWa}, v{vC}, 2, v{vWa}
    s_lshl_b32 s{sTmp}, s{sHd}, 8
    s_lshl_b32 s{sTmp2}, s{sW}, 6
    s_add_u32 s{sTmp}, s{sTmp}, s{sTmp2}
    v_add_u32 v{vWa}, s{sTmp}, v{vWa}
    v_lshlrev_b32 v{vXs}, 10, v{vC}
    v_lshl_add_u32 v{vXs}, v{vG}, 4, v{vXs}
    s_lshr_b32 s{sTmp}, s{sW}, 1
    s_lshl_b32 s{sTmp}, s{sTmp}, 14
    s_and_b32 s{sTmp2}, s{sW}, 1
    s_lshl_b32 s{sTmp2}, s{sTmp2}, 9
    s_add_u32 s{sTmp}, s{sTmp}, s{sTmp2}
    v_add_u32 v{vXs}, s{sTmp}, v{vXs}
    v_mov_b32 v{vXB}, v{vL16}
    """)
    if WPF[0]:
        A(f"""
        s_lshr_b32 s{sTmp}, s{sI}, 5
        s_lshl_b32 s{sTmp}, s{sTmp}, 3
        s_add_u32 s{sTmp}, s{sTmp}, 16
        s_load_dwordx2 s[68:69], s[0:1], s{sTmp}
        s_and_b32 s{sTmp}, s{sI}, 31
        s_lshl_b32 s{sTmp}, s{sTmp}, 17
        s_waitcnt lgkmcnt(0)
        """)
        srd(A, rW, 68, 4 << 20)
        for i in range(32):
            A(f"buffer_load_dwordx4 v[{128+4*(i&7)}:{131+4*(i&7)}], v{vT16}, {s(rW,4)}, s{sTmp} offen")
            A(f"s_add_u32 s{sTmp}, s{sTmp}, 4096")
        A("s_waitcnt vmcnt(12)")
    mats = "kvq"
    def issue8(b, half, Tt):
        m = mats[b // 8]; k = 2*(b % 8) + half
        if b % 8 == 0 and half == 0: srd(A, rW, {"q": 80, "k": 82, "v": 84}[m], 4 << 20)
        for j in range(8):
            A(f"s_mov_b32 s{sTmp}, {(32*k + j)*8192}")
            A(f"buffer_load_dword v{Tt+j}, v{vWa}, {s(rW,4)}, s{sTmp} offen")
    load_frags(A, 24, issue8, lambda b, half, t: wf(mats[b // 8], t, 2*(b % 8) + half), [16, 32, 48], 64)
    wstamp(A, 3)
    wait_dword(A, "ln", D_LN, 64, 8, 9)
    wstamp(A, 4)
    sM0 = 35
    def dma_x(sseg):
        A(f"s_lshl_b32 s{sTmp}, s{sseg}, 15")
        A(f"s_add_u32 s{sTmp}, s{sTmp}, {XN}")
        A(f"s_mov_b32 m0, s{sM0}")
        for k in range(8):
            if k: A(f"s_add_u32 m0, m0, 960")
            A(f"buffer_load_dwordx4 v{vXs}, {s(rWS,4)}, s{sTmp} offen offset:{64*k} sc1 lds")
        A(f"s_xor_b32 s{sM0}, s{sM0}, 32768")
    A(f"s_lshl_b32 s{sM0}, s{sW}, 13")
    A(f"s_mov_b32 s{sSeg}, s{sR}")
    A(f"s_mov_b32 s{sPrev}, 64")
    dma_x(sSeg)
    ACC, XF, PK = 16, 64, 80
    acc = lambda tile, m, t: ACC + 4*((tile*3 + MI[m])*2 + t)
    A("s_waitcnt vmcnt(0)")
    A.label("L_p1")
    A("s_barrier")
    A(f"s_add_u32 s{sA}, s{sSeg}, {NR}")
    A(f"s_cmp_ge_u32 s{sA}, 64")
    A(f"s_cselect_b32 s{sA}, s{sSeg}, s{sA}")
    dma_x(sA)
    lg = Cnt(A, "lgkmcnt", 15); tk = {}
    def rdx(i):
        A(f"ds_read_b128 {v(XF+4*(i&3),4)}, v{vXB} offset:{1024*i}"); tk[i] = lg.issue()
    for i in range(3): rdx(i)
    A(f"s_lshl_b32 s{sA}, s{sSeg}, 5")
    A(f"s_add_u32 s{sA}, s{sA}, s{sHd}")
    A(f"s_lshl_b32 s{sBq}, s{sA}, 13")
    A(f"s_add_u32 s{sBq}, s{sBq}, {QX}")
    A(f"s_lshl_b32 s{sA}, s{sA}, 14")
    A(f"s_add_u32 s{sA}, s{sA}, {KV}")
    def st_t(m, tile, pk, sbase):
        for i in range(4): A(f"v_cvt_pk_bf16_f32 v{pk+i}, v{acc(tile,m,0)+i}, v{acc(tile,m,1)+i}")
        A(f"s_add_u32 s{sTmp}, s{sbase}, {4096*tile}")
        A(f"buffer_store_dwordx4 {v(pk,4)}, v{vT16}, {s(rWS,4)}, s{sTmp} offen" + (" sc1" if m == "k" else ""))
    for i in range(32):
        tile, k = i >> 4, i & 15
        lg.wait(tk[i])
        xf = v(XF+4*(i&3), 4)
        n = 0
        for m in "kvq":
            for t in range(2):
                d = v(acc(tile, m, t), 4); c = 0 if k == 0 else d
                if m == "v": A(f"v_mfma_f32_16x16x32_bf16 {d}, {xf}, {wop(m,t,k)}, {c}")
                else: A(f"v_mfma_f32_16x16x32_bf16 {d}, {wop(m,t,k)}, {xf}, {c}")
                n += 1
                if n == 1 and i + 3 < 32: rdx(i + 3)
        if i == 12:
            A("s_waitcnt vmcnt(8)")
            A("s_barrier")
            A(f"s_cmp_ge_u32 s{sPrev}, 64")
            A("s_cbranch_scc1 L_p1_nosig")
            seg_signal(A, "kv", sPrev, C_KV, 8, 9)
            A.label("L_p1_nosig")
        if i == 17: st_t("k", 0, PK, sA)
        if i == 19: st_t("q", 0, PK+4, sBq)
    st_t("k", 1, PK+8, sA)
    for t in range(2):
        pk = PK + 12 + 4*t
        for tile in range(2):
            for u in range(2): A(f"v_cvt_pk_bf16_f32 v{pk+2*tile+u}, v{acc(tile,'v',t)+2*u}, v{acc(tile,'v',t)+2*u+1}")
        A(f"s_add_u32 s{sTmp}, s{sA}, {8192 + 4096*t}")
        A(f"buffer_store_dwordx4 {v(pk,4)}, v{vT16}, {s(rWS,4)}, s{sTmp} offen sc1")
    st_t("q", 1, PK+20, sBq)
    A(f"v_xor_b32 v{vXB}, 0x8000, v{vXB}")
    A(f"s_mov_b32 s{sPrev}, s{sSeg}")
    A(f"s_add_u32 s{sSeg}, s{sSeg}, {NR}")
    A(f"s_cmp_lt_u32 s{sPrev}, {NR}")
    A("s_cbranch_scc1 L_p1_full")
    A("s_waitcnt vmcnt(6)")
    A(f"s_cmp_lt_u32 s{sSeg}, 64")
    A("s_cbranch_scc1 L_p1")
    A.label("L_p1_full")
    A("s_waitcnt vmcnt(0)")
    A("s_barrier")
    seg_signal(A, "kv2", sPrev, C_KV, 8, 9)
    if WST[0]:
        A(f"s_cmp_ge_u32 s{sPrev}, {NR}")
        A("s_cbranch_scc1 L_nost2")
        wstamp(A, 2)
        A.label("L_nost2")
    A(f"s_mov_b32 s{sPrev}, 64")
    A(f"s_cmp_lt_u32 s{sSeg}, 64")
    A("s_cbranch_scc1 L_p1")
    A.label("L_p1_done")
    wstamp(A, 5)
    RSM = 1056; L_MN = 0; L_KM = 8704; L_VM = L_KM + 4096
    vMW, vMR, vNI, vVR, vVW = 5, 6, 7, 8, 9
    sMask = 52
    sQo, sVo, sOo = 36, 37, 38
    A(f"""
    ; row(c)
    v_lshrrev_b32 v10, 2, v{vC}
    v_and_b32 v11, 1, v{vC}
    v_lshl_add_u32 v10, v10, 1, v11
    v_mul_u32_u24 v10, {RSM}, v10
    v_lshl_add_u32 v{vMR}, v{vG}, 4, v10
    v_lshl_add_u32 v{vMW}, v{vG}, 6, v10
    v_and_b32 v11, 2, v{vC}
    v_lshl_add_u32 v{vMW}, v11, 4, v{vMW}
    s_lshl_b32 s{sTmp}, s{sW}, 8
    v_add_u32 v{vMW}, s{sTmp}, v{vMW}
    v_mov_b32 v{vNI}, 0xff800000
    v_lshrrev_b32 v{vVW}, 1, v{vT16}
    v_lshrrev_b32 v{vVR}, 1, v{vL16}
    s_and_b32 s{sTmp}, s{sW}, 2
    s_lshl_b32 s{sVo}, s{sTmp}, 10
    s_lshl_b32 s{sTmp}, s{sTmp}, 9
    v_add_u32 v{vVR}, s{sTmp}, v{vVR}
    s_and_b32 s{sTmp}, s{sW}, 1
    s_lshl_b32 s{sQo}, s{sTmp}, 12
    s_lshl_b32 s{sOo}, s{sTmp}, 17
    s_add_u32 s{sOo}, s{sOo}, s{sVo}
    s_lshl_b32 s{sTmp2}, s{sHd}, 12
    s_add_u32 s{sOo}, s{sOo}, s{sTmp2}
    s_add_u32 s{sOo}, s{sOo}, {OX}
    s_lshl_b32 s{sTmp}, s{sTmp}, 4
    v_lshlrev_b32 v10, 2, v{vG}
    v_sub_u32 v10, v{vC}, v10
    v_add_u32 v10, s{sTmp}, v10
    s_mov_b32 s{sC}, {f2u((128 ** -0.5) * math.log2(math.e)):#x}
    """)
    for t in range(2):
        for i in range(4): A(f"v_cmp_le_i32 s[{sMask+2*(4*t+i)}:{sMask+2*(4*t+i)+1}], {16*t+i}, v10")
    wait_dword(A, "init", D_INIT, 32, 10, 11)
    QF, KF, VF, S, AM, MF = 16, 32, 64, 80, 92, 108
    t0, t1 = 10, 11
    A(f"s_mov_b32 s{sSeg}, s{sR}")
    A.label("L_p2")
    A(f"""
    s_lshl_b32 s{sA}, s{sSeg}, 5
    s_add_u32 s{sA}, s{sA}, s{sHd}
    s_lshl_b32 s{sBq}, s{sA}, 13
    s_add_u32 s{sBq}, s{sBq}, {QX}
    s_add_u32 s{sBq}, s{sBq}, s{sQo}
    s_lshl_b32 s{sA}, s{sA}, 14
    s_add_u32 s{sA}, s{sA}, {KV}
    """)
    for k in range(4): A(f"buffer_load_dwordx4 {v(QF+4*k,4)}, v{vL16}, {s(rWS,4)}, s{sBq} offen offset:{1024*k} sc1")
    for i in range(8):
        if i == 4: A(f"s_add_u32 s{sA}, s{sA}, 4096")
        A(f"buffer_load_dwordx4 {v(KF+4*i,4)}, v{vL16}, {s(rWS,4)}, s{sA} offen offset:{1024*(i&3)} sc1")
    A(f"s_add_u32 s{sA}, s{sA}, s{sVo}")
    for t in range(2):
        A(f"s_add_u32 s{sA}, s{sA}, 4096")
        for wp in range(2): A(f"buffer_load_dwordx4 {v(VF+4*(2*wp+t),4)}, v{vL16}, {s(rWS,4)}, s{sA} offen offset:{1024*wp} sc1")
    A("s_waitcnt vmcnt(4)")
    for k in range(4):
        for t in range(2):
            A(f"v_mfma_f32_16x16x32_bf16 {v(S+4*t,4)}, {v(KF+16*t+4*k,4)}, {v(QF+4*k,4)}, {v(S+4*t,4) if k else 0}")
    A(f"s_lshl_b32 s{sA}, s{sSeg}, 13")
    A(f"s_add_u32 s{sA}, s{sA}, {MEMG}")
    A(f"s_add_u32 s{sBq}, s{sA}, 4096")
    for i in range(8): A(f"v_cndmask_b32 v{S+i}, v{vNI}, v{S+i}, s[{sMask+2*i}:{sMask+2*i+1}]")
    A(f"v_max3_f32 v12, v{S}, v{S+1}, v{S+2}")
    A(f"v_max3_f32 v12, v12, v{S+3}, v{S+4}")
    A(f"v_max3_f32 v12, v12, v{S+5}, v{S+6}")
    A(f"v_max_f32 v12, v12, v{S+7}")
    A.label("L_p2_poll")
    A(f"buffer_load_dwordx4 {v(MF,4)}, v{vT16}, {s(rWS,4)}, s{sA} offen sc1")
    A(f"buffer_load_dwordx4 {v(MF+4,4)}, v{vT16}, {s(rWS,4)}, s{sBq} offen sc1")
    A(f"""
    s_waitcnt vmcnt(0)
    v_max3_u32 v{t0}, v{MF}, v{MF+1}, v{MF+2}
    v_max3_u32 v{t0}, v{t0}, v{MF+3}, v{MF+4}
    v_max3_u32 v{t0}, v{t0}, v{MF+5}, v{MF+6}
    v_max_u32 v{t0}, v{t0}, v{MF+7}
    v_cmp_eq_u32 vcc, -1, v{t0}
    s_cbranch_vccz L_p2_got
    s_sleep {SLP[0]}
    s_add_u32 s{sG}, s{sG}, 1
    s_cmp_lt_u32 s{sG}, {SPIN}
    s_cbranch_scc1 L_p2_poll
    s_branch L_end
    L_p2_got:
    """)
    wstamp(A, 6)
    A(f"""
    ds_write2_b64 v{vMW}, {v(MF,2)}, {v(MF+2,2)} offset0:0 offset1:2
    ds_write2_b64 v{vMW}, {v(MF+4,2)}, {v(MF+6,2)} offset0:1 offset1:3
    s_waitcnt lgkmcnt(0)
    s_barrier
    """)
    lg = Cnt(A, "lgkmcnt", 15); tk = {}
    def rdm(k):
        A(f"ds_read_b128 {v(MF+4*(k&3),4)}, v{vMR} offset:{L_MN+64*k}"); tk[k] = lg.issue()
    for k in range(3): rdm(k)
    for k in range(16):
        lg.wait(tk[k]); xf = v(MF+4*(k&3), 4)
        for n, (m, t) in enumerate((("k",0),("k",1),("v",0),("v",1))):
            d = v(AM+4*n, 4); c = 0 if k == 0 else d
            if m == "v": A(f"v_mfma_f32_16x16x32_bf16 {d}, {xf}, {wop(m,t,k)}, {c}")
            else: A(f"v_mfma_f32_16x16x32_bf16 {d}, {wop(m,t,k)}, {xf}, {c}")
            if n == 0 and k + 3 < 16: rdm(k + 3)
    for i in range(4): A(f"v_cvt_pk_bf16_f32 v{AM+i}, v{AM+i}, v{AM+4+i}")
    A(f"ds_write_b128 v{vT16}, {v(AM,4)} offset:{L_KM}")
    A(f"v_cvt_pk_bf16_f32 v{AM+8}, v{AM+8}, v{AM+9}")
    A(f"v_cvt_pk_bf16_f32 v{AM+9}, v{AM+12}, v{AM+13}")
    A(f"ds_write_b64 v{vVW}, {v(AM+8,2)} offset:{L_VM}")
    KM, VMp, ONES, OO, LL = KF, KF+16, KF+24, AM, MF
    for i in range(4): A(f"v_mov_b32 v{ONES+i}, 0x3f803f80")
    A("s_waitcnt lgkmcnt(0)")
    A("s_barrier")
    for k in range(4): A(f"ds_read_b128 {v(KM+4*k,4)}, v{vL16} offset:{L_KM+1024*k}")
    for wp in range(2):
        for t in range(2):
            A(f"ds_read_b32 v{VMp+2*(2*wp+t)}, v{vVR} offset:{L_VM+512*wp+4*t}")
            A(f"v_mov_b32 v{VMp+2*(2*wp+t)+1}, 0")
    for k in range(4):
        A(f"s_waitcnt lgkmcnt({7-k})")
        A(f"v_mfma_f32_16x16x32_bf16 {v(S+8,4)}, {v(KM+4*k,4)}, {v(QF+4*k,4)}, {v(S+8,4) if k else 0}")
    A(f"v_max3_f32 v{t0}, v12, v{S+8}, v{S+9}")
    for sw in (32, 16):
        A(f"v_mov_b32 v{t1}, v{t0}")
        A(f"v_permlane{sw}_swap_b32 v{t0}, v{t1}")
        A(f"v_max_f32 v{t0}, v{t0}, v{t1}")
    A(f"v_mul_f32 v{t0}, s{sC}, v{t0}")
    for i in range(10): A(f"v_fma_f32 v{S+i}, v{S+i}, s{sC}, -v{t0}")
    for i in range(10): A(f"v_exp_f32 v{S+i}, v{S+i}")
    for i in range(4): A(f"v_cvt_pk_bf16_f32 v{S+i}, v{S+2*i}, v{S+2*i+1}")
    A(f"v_cvt_pk_bf16_f32 v{S+8}, v{S+8}, v{S+9}")
    A(f"v_mov_b32 v{S+9}, 0")
    A("s_waitcnt lgkmcnt(0)")
    A(f"v_mfma_f32_16x16x32_bf16 {v(LL,4)}, {v(ONES,4)}, {v(S,4)}, 0")
    for n in range(4): A(f"v_mfma_f32_16x16x32_bf16 {v(OO+4*n,4)}, {v(VF+4*n,4)}, {v(S,4)}, 0")
    A(f"v_mfma_f32_16x16x16_bf16 {v(LL,4)}, {v(ONES,2)}, {v(S+8,2)}, {v(LL,4)}")
    for n in range(4): A(f"v_mfma_f32_16x16x16_bf16 {v(OO+4*n,4)}, {v(VMp+2*n,2)}, {v(S+8,2)}, {v(OO+4*n,4)}")
    A(f"v_rcp_f32 v{t0}, v{LL}")
    A(f"s_lshl_b32 s{sA}, s{sSeg}, 18")
    A(f"s_add_u32 s{sA}, s{sA}, s{sOo}")
    for wp in range(2):
        for i in range(8): A(f"v_mul_f32 v{OO+8*wp+i}, v{OO+8*wp+i}, v{t0}")
        for i in range(4): A(f"v_cvt_pk_bf16_f32 v{OO+8*wp+i}, v{OO+8*wp+i}, v{OO+8*wp+4+i}")
        A(f"buffer_store_dwordx4 {v(OO+8*wp,4)}, v{vL16}, {s(rWS,4)}, s{sA} offen offset:{1024*wp} sc1")
    A("s_waitcnt vmcnt(0)")
    A("s_barrier")
    seg_signal(A, "o", sSeg, C_O, 10, 11)
    A(f"s_add_u32 s{sSeg}, s{sSeg}, {NR}")
    A(f"s_cmp_lt_u32 s{sSeg}, 64")
    A("s_cbranch_scc1 L_p2")
    A("s_branch L_end")

def orole(A):
    vWa, vWb, vXo, vRd = 5, 6, 7, 8
    sCs, sT_ = 28, 30
    A(f"""
    s_sub_u32 s{sTmp}, s{sI}, {M0}
    s_and_b32 s{sCs}, s{sTmp}, 15
    s_lshr_b32 s{sT_}, s{sTmp}, 4
    v_lshlrev_b32 v{vWa}, 13, v{vG}
    v_lshl_add_u32 v{vWa}, v{vC}, 2, v{vWa}
    s_lshl_b32 s{sTmp}, s{sW}, 20
    s_lshl_b32 s{sTmp2}, s{sCs}, 6
    s_add_u32 s{sTmp}, s{sTmp}, s{sTmp2}
    v_add_u32 v{vWa}, s{sTmp}, v{vWa}
    v_add_u32 v{vWb}, 4096, v{vWa}
    v_lshlrev_b32 v{vXo}, 12, v{vG}
    v_lshl_add_u32 v{vXo}, v{vC}, 2, v{vXo}
    s_lshl_b32 s{sTmp}, s{sW}, 10
    s_add_u32 s{sTmp}, s{sTmp}, s{sTmp2}
    v_add_u32 v{vXo}, s{sTmp}, v{vXo}
    s_lshl_b32 s{sTmp}, s{sW}, 2
    v_add_u32 v{vRd}, s{sTmp}, v{vL16}
    """)
    wait_dword(A, "moe", D_MOEDONE, 1, 10, 11, sleep=40)
    wstamp(A, 3)
    srd(A, rW, 86, 4 << 20)
    def issue8(b, half, Tt):
        ks = 2*b + half
        A(f"s_mov_b32 s{sTmp}, {ks*32768}")
        for j in range(8): A(f"buffer_load_dword v{Tt+j}, v{vWa if j < 4 else vWb}, {s(rW,4)}, s{sTmp} offen offset:{1024*(j&3)}")
    load_frags(A, 16, issue8, lambda b, half, t: ("a", 4*((2*b+half)*2 + t)), [16, 32, 48], 64)
    wstamp(A, 4)
    OF, D, XX, P = 128, 16, 24, 32
    A.label("L_o")
    A(f"""
    s_lshl_b32 s{sA}, s{sT_}, 14
    buffer_load_dword v{XX}, v{vXo}, {s(rX,4)}, s{sA} offen
    s_add_u32 s{sTmp}, s{sA}, {XB}
    buffer_load_dword v{XX+1}, v{vXo}, {s(rWS,4)}, s{sTmp} offen sc1
    s_lshr_b32 s{sPrev}, s{sT_}, 1
    s_lshl_b32 s{sPrev}, s{sPrev}, 8
    s_add_u32 s{sPrev}, s{sPrev}, {CNT}
    s_lshl_b32 s{sBq}, s{sT_}, 17
    s_lshl_b32 s{sTmp}, s{sW}, 15
    s_add_u32 s{sBq}, s{sBq}, s{sTmp}
    s_add_u32 s{sBq}, s{sBq}, {OX}
    """)
    wait_dword(A, "oc", C_O, 32, 10, 11, sleep=SLP[1], srdn=rWS, soff=f"s{sPrev}")
    wstamp(A, 6)
    for ks in range(32):
        if ks and ks % 4 == 0: A(f"s_add_u32 s{sBq}, s{sBq}, 4096")
        A(f"buffer_load_dwordx4 {v(OF+4*ks,4)}, v{vL16}, {s(rWS,4)}, s{sBq} offen offset:{1024*(ks&3)} sc1")
    for ks in range(32):
        A(f"s_waitcnt vmcnt({31-ks})")
        for t in range(2):
            A(f"v_mfma_f32_16x16x32_bf16 {v(D+4*t,4)}, {v(OF+4*ks,4)}, {a(4*(2*ks+t),4)}, {v(D+4*t,4) if ks else 0}")
    A(f"ds_write_b128 v{vT16}, {v(D,4)}")
    A(f"ds_write_b128 v{vT16}, {v(D+4,4)} offset:4096")
    A("s_waitcnt lgkmcnt(0)")
    A("s_barrier")
    for t in range(2):
        for w2 in range(4): A(f"ds_read_b32 v{P+4*t+w2}, v{vRd} offset:{4096*t+1024*w2}")
    unpack(A, XX+2, XX+3, XX); unpack(A, XX+4, XX+5, XX+1)
    A("s_waitcnt lgkmcnt(0)")
    A("s_barrier")
    for t in range(2):
        A(f"v_add_f32 v{P+4*t}, v{P+4*t}, v{P+4*t+1}")
        A(f"v_add_f32 v{P+4*t+2}, v{P+4*t+2}, v{P+4*t+3}")
        A(f"v_add_f32 v{P+4*t}, v{P+4*t}, v{P+4*t+2}")
    A(f"v_cvt_pk_bf16_f32 v{P+1}, v{P}, v{P+4}")
    unpack(A, P, P+4, P+1)
    A(f"v_add_f32 v{P}, v{P}, v{XX+2}")
    A(f"v_add_f32 v{P+4}, v{P+4}, v{XX+3}")
    A(f"v_cvt_pk_bf16_f32 v{P+1}, v{P}, v{P+4}")
    unpack(A, P, P+4, P+1)
    A(f"v_add_f32 v{P}, v{P}, v{XX+4}")
    A(f"v_add_f32 v{P+4}, v{P+4}, v{XX+5}")
    A(f"v_cvt_pk_bf16_f32 v{P+1}, v{P}, v{P+4}")
    A(f"buffer_store_dword v{P+1}, v{vXo}, {s(rOUT,4)}, s{sA} offen")
    A(f"s_add_u32 s{sT_}, s{sT_}, {NG}")
    A(f"s_cmp_lt_u32 s{sT_}, 128")
    A("s_cbranch_scc1 L_o")
    A("s_branch L_end")

def mrole(A):
    sM, sI0, sI1 = 28, 29, 30
    vGa, vDa, vT4 = 5, 6, 7
    rU, rD = 52, 56
    A(f"""
    s_sub_u32 s{sM}, s{sI}, {M0}
    v_lshrrev_b32 v{vGa}, 2, v{vL16}
    s_mul_i32 s{sTmp}, s{sM}, 224
    s_mul_i32 s{sTmp2}, s{sW}, {128*3584}
    s_add_u32 s{sTmp}, s{sTmp}, s{sTmp2}
    v_add_u32 v{vGa}, s{sTmp}, v{vGa}
    v_lshlrev_b32 v{vT4}, 2, v0
    s_mul_i32 s{sTmp}, s{sM}, {112*1024}
    v_add_u32 v{vDa}, s{sTmp}, v{vT4}
    """)
    pf_wo(A, M0)
    srd(A, rW, 90, 512*3584); srd(A, rU, 92, 512*3584); srd(A, rD, 94, 1792*1024)
    wait_dword(A, "lnm", D_LN, 64, 10, 11, sleep=16)
    n = 0
    def throttle():
        nonlocal n
        n += 1
        if n % 16 == 0: A("s_waitcnt vmcnt(40)")
    for k in range(128):
        A(f"s_mov_b32 s{sTmp}, {k*3584}")
        A(f"buffer_load_dword v{128+k}, v{vGa}, {s(rW,4)}, s{sTmp} offen"); throttle()
        A(f"buffer_load_dword a{k}, v{vGa}, {s(rU,4)}, s{sTmp} offen"); throttle()
    for f in range(112):
        if f % 4 == 0: A(f"s_mov_b32 s{sTmp}, {f*1024}")
        A(f"buffer_load_dword a{128+f}, v{vDa}, {s(rD,4)}, s{sTmp} offen offset:{1024*(f&3)}"); throttle()
    K, Tm = 16, 24
    A(f"v_lshlrev_b32 v10, 5, v0")
    A(f"s_mov_b32 s{sTmp}, {RL}")
    A(f"buffer_load_dwordx4 {v(K,4)}, v10, {s(rWS,4)}, s{sTmp} offen sc1")
    A(f"buffer_load_dwordx4 {v(K+4,4)}, v10, {s(rWS,4)}, s{sTmp} offen offset:16 sc1")
    A(f"v_lshlrev_b32 v10, 3, v0")
    A(f"v_sub_u32 v10, 2047, v10")
    A("s_waitcnt vmcnt(0)")
    for e in range(8):
        A(f"v_ashrrev_i32 v11, 31, v{K+e}")
        A(f"v_or_b32 v11, 0x80000000, v11")
        A(f"v_xor_b32 v{K+e}, v{K+e}, v11")
        A(f"v_and_b32 v{K+e}, 0xffff0000, v{K+e}")
        A(f"v_subrev_u32 v11, {e}, v10")
        A(f"v_or_b32 v{K+e}, v{K+e}, v11")
    A(f"s_lshl_b32 s{sTmp}, s{sW}, 2")
    A(f"v_mov_b32 v13, s{sTmp}")
    A("v_mov_b32 v14, 0")
    for rnd, sk in enumerate((sI0, sI1)):
        A(f"v_max3_u32 v12, v{K}, v{K+1}, v{K+2}")
        A(f"v_max3_u32 v12, v12, v{K+3}, v{K+4}")
        A(f"v_max3_u32 v12, v12, v{K+5}, v{K+6}")
        A(f"v_max_u32 v12, v12, v{K+7}")
        allreduce(A, "v_max_u32", [12], [11])
        A(f"ds_write_b32 v13, v12 offset:{16*rnd}")
        A("s_waitcnt lgkmcnt(0)")
        A("s_barrier")
        A(f"ds_read_b128 {v(Tm,4)}, v14 offset:{16*rnd}")
        A("s_waitcnt lgkmcnt(0)")
        A(f"v_max3_u32 v12, v{Tm}, v{Tm+1}, v{Tm+2}")
        A(f"v_max_u32 v12, v12, v{Tm+3}")
        A(f"v_readfirstlane_b32 s{sk}, v12")
        if rnd == 0:
            for e in range(8):
                A(f"v_cmp_ne_u32 vcc, v12, v{K+e}")
                A(f"v_cndmask_b32 v{K+e}, 0, v{K+e}, vcc")
    for sk in (sI0, sI1):
        A(f"s_and_b32 s{sk}, s{sk}, 0x7ff")
        A(f"s_sub_u32 s{sk}, 2047, s{sk}")
    X0, X1, R0 = 16, 17, 18
    for sk, xr, rr in ((sI0, X0, R0), (sI1, X1, R0+1)):
        A(f"s_lshl_b32 s{sTmp}, s{sk}, 10")
        A(f"s_add_u32 s{sTmp}, s{sTmp}, {XN}")
        A(f"buffer_load_dword v{xr}, v{vT4}, {s(rWS,4)}, s{sTmp} offen sc1")
        A(f"s_lshl_b32 s{sTmp}, s{sk}, 2")
        A(f"s_add_u32 s{sTmp}, s{sTmp}, {RL}")
        A(f"buffer_load_dword v{rr}, v14, {s(rWS,4)}, s{sTmp} offen sc1")
    AC = 24
    for i in range(8): A(f"v_mov_b32 v{AC+i}, 0")
    A("s_waitcnt vmcnt(0)")
    U = 32
    for p in range(64):
        sx = 60 + 6*(p & 1)
        A(f"v_readlane_b32 s{sx}, v{X0}, {p}")
        A(f"v_readlane_b32 s{sx+1}, v{X1}, {p}")
        for u in range(2): A(f"v_accvgpr_read_b32 v{U+4+u}, a{2*p+u}")
        A(f"s_lshl_b32 s{sx+2}, s{sx}, 16"); A(f"s_lshl_b32 s{sx+3}, s{sx+1}, 16")
        A(f"s_and_b32 s{sx+4}, s{sx}, 0xffff0000"); A(f"s_and_b32 s{sx+5}, s{sx+1}, 0xffff0000")
        for u in range(2):
            for mat in range(2):
                unpack(A, U+2*mat, U+2*mat+1, (128+2*p+u) if mat == 0 else (U+4+u))
            for mat in range(2):
                for tok in range(2):
                    for col in range(2):
                        A(f"v_fmac_f32 v{AC+4*mat+2*tok+col}, s{sx+2+2*u+tok}, v{U+2*mat+col}")
    LR, LH = 64, 64 + 8192
    A(f"ds_write_b128 v{vT16}, {v(AC,4)} offset:{LR}")
    A(f"ds_write_b128 v{vT16}, {v(AC+4,4)} offset:{LR+4096}")
    A("s_waitcnt lgkmcnt(0)")
    A("s_barrier")
    Pp = 40
    for mat in range(2):
        for w2 in range(4): A(f"ds_read_b128 {v(Pp+16*mat+4*w2,4)}, v{vL16} offset:{LR+4096*mat+1024*w2}")
    A("s_waitcnt lgkmcnt(0)")
    for mat in range(2):
        for i in range(4):
            b = Pp + 16*mat + i
            A(f"v_add_f32 v{b}, v{b}, v{b+4}"); A(f"v_add_f32 v{b+8}, v{b+8}, v{b+12}"); A(f"v_add_f32 v{b}, v{b}, v{b+8}")
            rnd_bf(A, b)
    def sigmoid(dst, src):
        A(f"v_mul_f32 v{dst}, {f2u(-math.log2(math.e)):#x}, v{src}")
        A(f"v_exp_f32 v{dst}, v{dst}")
        A(f"v_add_f32 v{dst}, 1.0, v{dst}")
        A(f"v_rcp_f32 v{dst}, v{dst}")
    for i in range(4):
        sigmoid(Pp+4+i, Pp+i)
        A(f"v_mul_f32 v{Pp+i}, v{Pp+i}, v{Pp+4+i}")
        rnd_bf(A, Pp+i)
        A(f"v_mul_f32 v{Pp+i}, v{Pp+i}, v{Pp+16+i}")
        rnd_bf(A, Pp+i)
    A(f"ds_write_b128 v{vL16}, {v(Pp,4)} offset:{LH}")
    for i in range(4): A(f"v_mov_b32 v{AC+i}, 0")
    A("s_waitcnt lgkmcnt(0)")
    HB = 40
    for blk in range(7):
        for q in range(8): A(f"ds_read_b128 {v(HB+4*q,4)}, v14 offset:{LH+16*(8*blk+q)}")
        A("s_waitcnt lgkmcnt(0)")
        for q in range(8):
            for u in range(2):
                f = 2*(8*blk+q) + u
                A(f"v_accvgpr_read_b32 v{U+2}, a{128+f}")
                unpack(A, U, U+1, U+2)
                for tok in range(2):
                    for col in range(2):
                        A(f"v_fmac_f32 v{AC+2*tok+col}, v{HB+4*q+2*tok+u}, v{U+col}")
    A(f"s_lshl_b32 s{sTmp}, s{sM}, 12")
    A(f"s_add_u32 s{sTmp}, s{sTmp}, {MOEP}")
    A(f"buffer_store_dwordx4 {v(AC,4)}, v{vT16}, {s(rWS,4)}, s{sTmp} offen sc1")
    A("s_waitcnt vmcnt(0)")
    A("s_barrier")
    signal(A, "moe", lambda: A(f"v_mov_b32 v10, {D_MOE}\nv_mov_b32 v11, 1"), 10, 11, ret=True)
    A("s_waitcnt vmcnt(0)")
    A(f"s_cmp_lg_u32 s{sW}, 0")
    A("s_cbranch_scc1 L_m_w")
    A("s_mov_b64 exec, 1")
    A("ds_write_b32 v14, v11 offset:32")
    A("s_mov_b64 exec, -1")
    A.label("L_m_w")
    A("s_waitcnt lgkmcnt(0)")
    A("s_barrier")
    A("ds_read_b32 v11, v14 offset:32")
    A("s_waitcnt lgkmcnt(0)")
    A(f"v_readfirstlane_b32 s{sTmp}, v11")
    A(f"s_cmp_lg_u32 s{sTmp}, 15")
    A("s_cbranch_scc1 L_orole2")
    for m in range(16):
        A(f"s_mov_b32 s{sTmp}, {MOEP + 4096*m}")
        A(f"buffer_load_dwordx4 {v(40+4*m,4)}, v{vT16}, {s(rWS,4)}, s{sTmp} offen sc1")
    for tok in range(2):
        sigmoid(U+tok, R0+tok); rnd_bf(A, U+tok)
    A("s_waitcnt vmcnt(0)")
    for m in range(1, 16):
        for i in range(4): A(f"v_add_f32 v{40+i}, v{40+i}, v{40+4*m+i}")
    for tok, (sk, xr) in enumerate(((sI0, X0), (sI1, X1))):
        unpack(A, U+2, U+3, xr)
        for col in range(2):
            r = 40 + 2*tok + col
            rnd_bf(A, r)
            A(f"v_mul_f32 v{r}, v{r}, v{U+tok}")
            rnd_bf(A, r)
            A(f"v_add_f32 v{r}, v{r}, v{U+2+col}")
        A(f"v_cvt_pk_bf16_f32 v{48+tok}, v{40+2*tok}, v{41+2*tok}")
        A(f"s_lshl_b32 s{sTmp}, s{sk}, 10")
        A(f"s_add_u32 s{sTmp}, s{sTmp}, {XB}")
        A(f"buffer_store_dword v{48+tok}, v{vT4}, {s(rWS,4)}, s{sTmp} offen sc1")
    A("s_waitcnt vmcnt(0)")
    A("s_barrier")
    signal(A, "moed", lambda: A(f"v_mov_b32 v10, {D_MOEDONE}\nv_mov_b32 v11, 1"), 10, 11)
    A("s_branch L_orole2")

HEADER = open("cdna_kernels/" + NAME + ".s.ref").read().split("; Override launch geometry")[0] if __import__("os").path.exists("cdna_kernels/" + NAME + ".s.ref") else ""

def gen_full(**kw):
    A = Asm()
    WST[0] = kw.get("stamps") == 2
    for ln_ in HEADER.strip().split("\n"):
        if ln_: A.raw(ln_)
    A.raw(f"; @launch grid=(256,1,1) block=(256,1,1) lds=163840")
    A.raw('.amdgcn_target "amdgcn-amd-amdhsa--gfx950"')
    A.raw(".text")
    kernel_begin(A, NAME + "_kernel")
    A(f"""
    s_cmp_ge_u32 s2, 256
    s_cbranch_scc1 L_end0
    {"s_memrealtime s[90:91]" if kw.get("stamps") else ""}
    s_load_dwordx4 s[4:7], s[0:1], 104
    s_getreg_b32 s{sX}, hwreg(HW_REG_XCC_ID)
    s_and_b32 s{sX}, s{sX}, 7
    v_lshrrev_b32 v1, 6, v0
    v_readfirstlane_b32 s{sW}, v1
    s_waitcnt lgkmcnt(0)
    """)
    srd(A, rWS, 6, T.WS_BYTES)
    srd(A, rDBG, 4, 256)
    T.role_select(A, "L_worker")
    WPF[0] = kw.pop("wpf", False)
    OPF[0] = kw.pop("opf", True)
    SLP[:] = kw.pop("slp", [6, 3])
    OPN[0] = kw.pop("opn", 3)
    T.team(A, kvchk=True, **kw)
    A.label("L_end0")
    A("s_endpgm")
    A.label("L_worker")
    common(A)
    A(f"s_cmp_ge_u32 s{sI}, {O0}")
    A("s_cbranch_scc1 L_orole")
    A(f"s_cmp_ge_u32 s{sI}, {M0}")
    A("s_cbranch_scc1 L_mrole")
    hrole(A)
    A.label("L_orole")
    ln(A)
    A.label("L_orole2")
    orole(A)
    A.label("L_end")
    A("s_waitcnt vmcnt(0)")
    if WST[0]:
        wstamp(A, 7)
        A("s_mov_b64 exec, 1")
        for i, r in enumerate([72,73,74,75,98,99,100,101]): A(f"v_mov_b32 v{16+i}, s{r}")
        A(f"s_lshl_b32 s{sTmp}, s{sH}, 5")
        A(f"s_add_u32 s{sTmp}, s{sTmp}, {T.RES + 32768}")
        A("v_mov_b32 v0, 0")
        A(f"buffer_store_dwordx4 v[16:19], v0, {s(rWS,4)}, s{sTmp} offen")
        A(f"buffer_store_dwordx4 v[20:23], v0, {s(rWS,4)}, s{sTmp} offen offset:16")
        A("s_waitcnt vmcnt(0)")
    A("s_endpgm")
    A.label("L_mrole")
    mrole(A)
    A.raw('.section .rodata,"a"')
    A.raw(descriptor(NAME + "_kernel", 512, 102, 256))
    T.STAMP_NAMES = A.stamp_names
    return A.text()

if __name__ == "__main__":
    txt = gen_full()
    open("full.s", "w").write(txt)
    open("cdna_kernels/" + NAME + ".s", "w").write(txt)
```

```python
from asmlib import *

H2 = 0
H1 = 1 << 20
RES = (1 << 20) + (256 << 10)
XN = 2 << 20
KV = 16 << 20
QX = 50 << 20
MEMG = (1 << 20) + (512 << 10)
WS_BYTES = 256 << 20

L_MEM = 0; L_KX = 8192; L_VX = 16384; L_Q = 24576; L_K = 26880; L_O = 29184; L_ST = 31744; L_W = 32768
RS = 288; RSO = 320

rWS, rDBG, rW = 8, 12, 16
sX, sW, sT, sH = 20, 21, 22, 23
sStep, sTmp, sG, sTmp2 = 24, 25, 26, 27
sO1, sO1b, sO2, sO2b = 28, 29, 30, 31
sRd2, sPubO, sRst2, sRst1 = 32, 33, 34, 35
sKV, sMG, sC, sPerm0, sPerm1 = 36, 37, 38, 39, 40
sB = 44
sRetA, sRetB, sRet2 = 48, 49, 50
sMK, sMV, sRd, sPF = 41, 42, 100, 101
sSt = 56
SPIN = 400000
D_WIN, D_INIT, D_LN, D_MOE, D_MOEDONE = 4, 36, 68, 100, 132
CNT = (1 << 20) + (128 << 10)
C_KV, C_O = 0, 128
FLG = (1 << 20) + (64 << 10)
sFl, sFlS, sK = 62, 63, 64
sCm = 66
sRdy = 51

vIdx, vL16, vT16, vT16b, vT16c, vM1, vM2, vM3, vSt2, vQW, vQR, vOW, vOR = range(1, 14)
vT0, vT1, vPD = 0, 14, 15
MEMA = 16
ACCA = 48
ACCB = 56
STG = 64
POOL = 80
ACCV = 112
NEG = 120
S = MEMA + 4
VMR = 124

LDSF = [("q",1,0),("k",0,0),
        ("q",0,4),("k",1,4),
        ("k",0,2),("q",1,3)]
LDSF += [("o", i >> 1, i & 1) for i in (0, 1, 2, 4, 6, 8, 10, 12, 13, 15, 14)]
ALLF = [(m,t,sl) for m in "qkv" for sl in range(8) for t in range(2)] + [("o",t,k) for k in range(2) for t in range(8)]
HOME = {}
_n = 0
for f in ALLF:
    if f in LDSF: HOME[f] = ("l", LDSF.index(f))
    else:
        HOME[f] = ("a", 8*_n) if _n < 32 else ("v", 128 + 8*(_n-32)); _n += 1
assert _n == 47
KST = 248

def lds_frag_addr(idx, part):
    off = L_W + (2*idx + part) * 4096
    if idx == 16: off = L_VX + part * 4096
    if off < 65536: return vT16, off
    if off < 131072: return vT16b, off - 65536
    return vT16c, off - 131072

class Cnt:
    def __init__(self, A, name, cap): self.A, self.name, self.cap, self.n = A, name, cap, 0
    def issue(self): self.n += 1; return self.n
    def wait(self, tok):
        k = self.n - tok
        if k <= self.cap: self.A(f"s_waitcnt {self.name}({k})")
        else: self.A(f"s_waitcnt {self.name}({self.cap})")

def role_select(A, lab_worker, prefetch=False, force=None):
    if prefetch:
        A(f"""
        s_cmp_lt_u32 s{sW}, 2
        s_cbranch_scc1 L_nopf
        s_lshr_b32 s{sTmp}, s2, 6
        s_lshl_b32 s{sTmp}, s{sTmp}, 3
        s_add_u32 s{sTmp}, s{sTmp}, 16
        s_load_dwordx2 s[80:81], s[0:1], s{sTmp}
        s_and_b32 s{sTmp}, s2, 63
        s_lshl_b32 s{sTmp}, s{sTmp}, 16
        v_and_b32 v3, 127, v0
        v_lshlrev_b32 v3, 4, v3
        s_waitcnt lgkmcnt(0)
        """)
        srd(A, rW, 80, 4 << 20)
        for i in range(32):
            if i % 2 == 0 and i: A(f"s_add_u32 s{sTmp}, s{sTmp}, 4096")
            A(f"buffer_load_dwordx4 v[{128+4*(i&7)}:{131+4*(i&7)}], v3, {s(rW,4)}, s{sTmp} offen offset:{2048*(i&1)}")
        A.label("L_nopf")
    A(f"""
    s_cmp_lg_u32 s{sW}, 0
    s_cbranch_scc1 L_role_wait
    s_mov_b64 exec, 1
    v_mov_b32 v3, 1
    s_lshl_b32 s{sTmp}, s{sX}, 5
    v_mov_b32 v4, s{sTmp}
    buffer_atomic_add v3, v4, {s(rDBG,4)}, 0 offen sc0
    s_waitcnt vmcnt(0)
    v_readfirstlane_b32 s{sT}, v3
    s_add_u32 s{sTmp}, s{sX}, 1
    s_mov_b32 s{sH}, 0xffff
    s_cmp_gt_u32 s{sT}, 31
    s_cbranch_scc1 L_role_done
    v_mov_b32 v4, 0
    s_cmp_lg_u32 s{sT}, 31
    s_cbranch_scc1 L_poll_win
    {f"s_cmp_lg_u32 s{sX}, {force}" if force is not None else ""}
    {"s_cbranch_scc1 L_poll_win" if force is not None else ""}
    s_and_b32 s{sG}, s{sX}, 3
    s_cbranch_scc1 L_bid
    s_sleep 48
    L_bid:
    v_mov_b32 v6, s{sTmp}
    v_mov_b32 v7, 0
    buffer_atomic_cmpswap v[6:7], v4, {s(rDBG,4)}, 0 offen offset:{D_WIN}
    s_waitcnt vmcnt(0)
    L_poll_win:
    s_mov_b32 s{sG}, 0
    L_poll_win2:
    buffer_load_dword v3, v4, {s(rDBG,4)}, 0 offen offset:{D_WIN} sc1
    s_waitcnt vmcnt(0)
    v_readfirstlane_b32 s{sStep}, v3
    s_add_u32 s{sG}, s{sG}, 1
    s_cmp_gt_u32 s{sG}, {SPIN}
    s_cbranch_scc1 L_role_done
    s_cmp_eq_u32 s{sStep}, 0
    s_cbranch_scc1 L_poll_win2
    s_sub_u32 s{sStep}, s{sStep}, 1
    s_xor_b32 s{sStep}, s{sStep}, s{sX}
    s_sub_u32 s{sH}, s{sStep}, 3
    s_add_u32 s{sTmp}, s{sStep}, 4
    s_cmp_ge_u32 s{sStep}, 4
    s_cselect_b32 s{sH}, s{sH}, s{sTmp}
    s_cmp_eq_u32 s{sStep}, 0
    s_cselect_b32 s{sH}, 0, s{sH}
    s_lshl_b32 s{sH}, s{sH}, 5
    s_add_u32 s{sH}, s{sH}, s{sT}
    L_role_done:
    v_mov_b32 v3, s{sH}
    v_mov_b32 v4, 0
    ds_write_b32 v4, v3
    s_mov_b64 exec, -1
    L_role_wait:
    s_waitcnt lgkmcnt(0)
    s_barrier
    v_mov_b32 v4, 0
    ds_read_b32 v3, v4
    s_waitcnt lgkmcnt(0)
    v_readfirstlane_b32 s{sH}, v3
    s_barrier
    s_cmp_gt_u32 s{sH}, 31
    s_cbranch_scc1 {lab_worker}
    """)

def team(A, nsteps=64, stamps=False, dA=16, gapB=8, nsets=3, dR=(16,0,20,6), n2=2, dAA=0, bar1=1, bar2=1, pfd=0, usepk=True, rt=False, off="pf", cs=((3,6),(5,6)), kvchk=False, trace=False, gapAB=8, na=2, d3r=2, joint=True, bonly=False, fsl=(), fnop=3, cpre=0, fill_at=4, kfasync=True, lead=0, ks=28, linw=0):
    nst = [0]
    names = []
    def stamp(name=""):
        if stamps != 1: return
        k = nst[0]; nst[0] += 1
        assert k < 23
        names.append(name)
        A(f"s_mem{'real' if rt else ''}time s[{52+2*k}:{53+2*k}]")
    A.stamp_names = names
    if stamps == 2: A("s_memrealtime s[92:93]")
    vC, vG, vLn = 16, 17, 18
    x0, x1, x2, x3 = 19, 20, 21, 22
    vWq, vWq2, vWv, vWv2, vWo = 23, 24, 25, 26, 27
    vPubT = 28
    A(f"""
    s_load_dwordx4 s[80:83], s[0:1], 16
    s_load_dwordx4 s[84:87], s[0:1], 32
    s_load_dwordx2 s[88:89], s[0:1], 8
    v_and_b32 v{vLn}, 63, v0
    v_and_b32 v{vC}, 15, v0
    v_lshrrev_b32 v{vG}, 4, v{vLn}
    v_lshlrev_b32 v{vL16}, 4, v{vLn}
    v_lshlrev_b32 v{vT16}, 4, v0
    v_add_u32 v{vT16b}, 0x10000, v{vT16}
    v_add_u32 v{vT16c}, 0x20000, v{vT16}
    v_xor_b32 v{vM1}, 1024, v{vT16}
    v_xor_b32 v{vM2}, 2048, v{vT16}
    v_xor_b32 v{vM3}, 3072, v{vT16}
    v_and_b32 v{x0}, 2, v{vC}
    v_cmp_ne_u32 vcc, 0, v{x0}
    v_mov_b32 v{x1}, 0x4444
    v_mov_b32 v{x2}, 0xeeee
    v_cndmask_b32 v{vIdx}, v{x1}, v{x2}, vcc
    ; row(c) = 2*(c>>2) + (c&1)
    v_lshrrev_b32 v{x1}, 2, v{vC}
    v_and_b32 v{x2}, 1, v{vC}
    v_lshl_add_u32 v{x1}, v{x1}, 1, v{x2}
    v_mul_u32_u24 v{x3}, {RSO}, v{x1}
    v_mul_u32_u24 v{x1}, {RS}, v{x1}
    v_lshl_add_u32 v{vQR}, v{vG}, 4, v{x1}
    s_lshl_b32 s{sTmp}, s{sW}, 6
    v_lshl_add_u32 v{vOW}, v{vG}, 4, v{x3}
    v_add_u32 v{vOW}, s{sTmp}, v{vOW}
    v_lshl_add_u32 v{vOR}, v{vG}, 5, v{x3}
    v_lshl_add_u32 v{vOR}, v{x0}, 3, v{vOR}
    v_mul_u32_u24 v{x1}, {2*RS}, v{vG}
    v_lshl_add_u32 v{x1}, v{vC}, 2, v{x1}
    v_add_u32 v{vQW}, s{sTmp}, v{x1}
    ; vSt2 = (8w + c>>1)*4096 + (g>>1)*2048 + h*64 + (2(g&1) + (c&1))*16
    v_lshrrev_b32 v{x1}, 1, v{vC}
    s_lshl_b32 s{sTmp}, s{sW}, 3
    v_add_u32 v{x1}, s{sTmp}, v{x1}
    v_lshlrev_b32 v{x1}, 12, v{x1}
    v_lshrrev_b32 v{x3}, 1, v{vG}
    v_lshl_add_u32 v{x1}, v{x3}, 11, v{x1}
    v_and_b32 v{x0}, 1, v{vG}
    v_lshl_add_u32 v{x1}, v{x0}, 5, v{x1}
    v_lshl_add_u32 v{x1}, v{x2}, 4, v{x1}
    s_lshl_b32 s{sTmp}, s{sH}, 6
    v_add_u32 v{vSt2}, s{sTmp}, v{x1}
    v_bfe_u32 v{x1}, v{vC}, 1, 1
    s_and_b32 s{sTmp}, s{sW}, 2
    v_add_u32 v{x1}, s{sTmp}, v{x1}
    v_lshl_add_u32 v30, v{x1}, 2, v{x3}
    v_lshlrev_b32 v30, 4, v30
    v_lshl_add_u32 v30, v{x2}, 3, v30
    v_lshl_add_u32 v30, v{x0}, 2, v30
    s_lshr_b32 s{sTmp}, s{sH}, 1
    s_lshl_b32 s{sTmp}, s{sTmp}, 8
    s_and_b32 s{sTmp2}, s{sH}, 1
    s_lshl_b32 s{sTmp2}, s{sTmp2}, 5
    s_add_u32 s{sTmp}, s{sTmp}, s{sTmp2}
    v_add_u32 v30, s{sTmp}, v30
    v_cmp_gt_u32 vcc, 4, v{vC}
    v_mov_b32 v{vPubT}, 0x7f000000
    v_cndmask_b32 v{vPubT}, v{vPubT}, v30, vcc
    v_mov_b32 v{vT1}, v{vPubT}
    v_lshl_add_u32 v{x1}, v{x1}, 1, v{x3}
    v_lshlrev_b32 v{x1}, 10, v{x1}
    v_lshl_add_u32 v{x1}, v{x2}, 4, v{x1}
    v_lshl_add_u32 v{x1}, v{x0}, 2, v{x1}
    s_lshl_b32 s{sTmp}, s{sH}, 5
    v_add_u32 v29, s{sTmp}, v{x1}
    v_lshlrev_b32 v{x2}, 4, v{x2}
    v_mov_b32 v{x3}, 0x3f80
    v_lshlrev_b32 v{x3}, v{x2}, v{x3}
    v_lshrrev_b32 v{x2}, 2, v{vC}
    """)
    for r in range(4):
        A(f"v_cmp_eq_u32 vcc, {r}, v{x2}")
        A(f"v_cndmask_b32 v{32+r}, 0, v{x3}, vcc")
    A(f"ds_write_b128 v{vL16}, v[32:35] offset:{L_ST}")
    A(f"""
    v_lshrrev_b32 v{x0}, 1, v{vG}
    v_and_b32 v{x1}, 1, v{vG}
    v_lshlrev_b32 v{x2}, 18, v{x0}
    v_lshl_add_u32 v{x2}, v{x1}, 16, v{x2}
    s_lshl_b32 s{sTmp}, s{sH}, 8
    s_lshl_b32 s{sTmp2}, s{sW}, 6
    s_add_u32 s{sTmp}, s{sTmp}, s{sTmp2}
    v_add_u32 v{x2}, s{sTmp}, v{x2}
    v_lshl_add_u32 v{vWq}, v{vC}, 2, v{x2}
    v_add_u32 v{vWq2}, 0x2000, v{vWq}
    ; Wo: (16(g>>1) + 4(g&1))*1024 + h*131072 + 256w + 16c
    v_lshlrev_b32 v{x2}, 12, v{x1}
    v_lshl_add_u32 v{x2}, v{x0}, 14, v{x2}
    v_lshl_add_u32 v{x2}, v{vC}, 4, v{x2}
    s_lshl_b32 s{sTmp}, s{sH}, 17
    s_lshl_b32 s{sTmp2}, s{sW}, 8
    s_add_u32 s{sTmp}, s{sTmp}, s{sTmp2}
    v_add_u32 v{vWo}, s{sTmp}, v{x2}
    s_mov_b32 s{sPerm0}, 0x05040100
    s_mov_b32 s{sPerm1}, 0x07060302
    v_lshrrev_b32 v{vWv}, 4, v0
    v_lshlrev_b32 v{vWv}, 13, v{vWv}
    v_lshl_add_u32 v{vWv}, v{vC}, 4, v{vWv}
    s_lshl_b32 s{sTmp}, s{sH}, 8
    v_add_u32 v{vWv}, s{sTmp}, v{vWv}
    """)
    for i in range(4):
        A(f"s_xor_b32 s{sB+i}, s{sW}, {i}")
        A(f"s_lshl_b32 s{sB+i}, s{sB+i}, 20")
    NG_ = 112
    for i in range(4): A(f"v_mov_b32 v{NG_+i}, -1")
    A(f"s_lshl_b32 s{sRst2}, s{sH}, 12")
    A(f"s_and_b32 s{sPubO}, s{sW}, 1")
    A(f"s_lshl_b32 s{sTmp2}, s{sPubO}, 3")
    A(f"s_lshl_b32 s{sPubO}, s{sPubO}, 12")
    A(f"s_add_u32 s{sMG}, s{sPubO}, {MEMG}")
    A(f"s_add_u32 s{sPubO}, s{sPubO}, {H1}")
    A("s_waitcnt lgkmcnt(0)")
    srd(A, rW, 88, 8192)
    A(f"buffer_load_dword v{vPD}, v29, {s(rW,4)}, s{sTmp2} offen")
    def fills():
        for sl in range(2):
            for x in range(2):
                A(f"s_add_u32 s{sTmp}, s{sRst2}, {H2 + sl*(256<<10) + x*(128<<10)}")
                A(f"buffer_store_dwordx4 {v(NG_,4)}, v{vT16}, {s(rWS,4)}, s{sTmp} offen"); vm.issue()
        A(f"s_lshl_b32 s{sTmp2}, s{sH}, 14")
        for i in range(4):
            A(f"s_add_u32 s{sTmp}, s{sTmp2}, {MEMG + i*4096}")
            A(f"buffer_store_dwordx4 {v(NG_,4)}, v{vT16}, {s(rWS,4)}, s{sTmp} offen sc1"); vm.issue()
        for sl in range(1, 4):
            A(f"s_add_u32 s{sTmp}, s{sPubO}, {sl*8192}")
            A(f"buffer_store_dword v{NG_}, v{vPubT}, {s(rWS,4)}, s{sTmp} offen"); vm.issue()
        A(f"v_min_u32 v{vPD}, 0xfffffffe, v{vPD}")
        A(f"buffer_store_dword v{vPD}, v{vPubT}, {s(rWS,4)}, s{sPubO} offen"); vm.issue()
        if not fsl: return
        A(f"s_lshr_b32 s{sFl}, s{sW}, 1")
        A(f"s_mul_i32 s{sFl}, s{sFl}, 1280")
        A(f"s_add_u32 s{sFl}, s{sFl}, {FLG}")
        A(f"s_bitcmp1_b32 s{sW}, 0")
        A(f"s_cselect_b32 s{sFl}, s{sFl}, 0x7f000000")
        A(f"s_add_u32 s{sFlS}, s{sH}, {FLG}")
        A(f"s_cmp_eq_u32 s{sW}, 0")
        A(f"s_cselect_b32 s{sFlS}, s{sFlS}, 0x7f000000")
        A(f"v_lshlrev_b32 v31, 4, v{vL16}")
        A("s_mov_b64 exec, 0x3ff")
        A(f"buffer_store_byte v{NG_}, v31, {s(rWS,4)}, s{sFlS} offen"); vm.issue()
        A("s_mov_b64 exec, -1")
    def arrive():
        A("s_barrier")
        A(f"""
        s_cmp_lg_u32 s{sW}, 0
        s_cbranch_scc1 L_t_arrived
        s_mov_b64 exec, 1
        v_mov_b32 v{NG_}, 1
        v_mov_b32 v{NG_+1}, 0
        buffer_atomic_add v{NG_}, v{NG_+1}, {s(rDBG,4)}, 0 offen offset:{D_INIT}
        s_mov_b64 exec, -1
        L_t_arrived:
        """)
    TB = [32, 48, 64, 80]
    PT = 96
    vm = Cnt(A, "vmcnt", 63)
    batches = []
    ob = [("o", k, bp) for k in range(2) for bp in range(4)]
    for mi, m in enumerate("qkv"):
        for sl in range(8):
            batches.append((m, sl))
            if (8*mi + sl) % 3 == 0: batches.append(ob.pop(0))
    TB = [32, 48, 64, 80, 116 - 4]
    rWo = 52
    srd(A, rWo, 86, 4 << 20)
    def issue(bi):
        b = batches[bi]; T = TB[bi % 4]
        if b[0] != "o":
            m, sl = b
            if sl == 0: srd(A, rW, {"q": 80, "k": 82, "v": 84}[m], 4 << 20)
            va, vb = vWq, vWq2
            if linw == 1:
                for j in range(4):
                    A(f"s_lshl_b32 s{sTmp}, s{sH}, 17")
                    A(f"s_add_u32 s{sTmp}, s{sTmp}, {sl*16384 + j*4096}")
                    A(f"buffer_load_dwordx4 {v(T+4*j,4)}, v{vT16}, {s(rW,4)}, s{sTmp} offen"); tok = vm.issue()
                return tok
            if linw == 2:
                for j in range(4):
                    A(f"s_mov_b32 s{sTmp}, {(sl*64 + j*16)*8192}")
                    A(f"buffer_load_dwordx4 {v(T+4*j,4)}, v{vWv}, {s(rW,4)}, s{sTmp} offen"); tok = vm.issue()
                return tok
            for be in range(8):
                row = 64*(be >> 2) + 16*(be & 1) + 4*(sl >> 2) + 2*((be >> 1) & 1)
                A(f"s_add_u32 s{sTmp}, s{sB+(sl&3)}, {row*8192}")
                A(f"buffer_load_dword v{T+2*be}, v{va}, {s(rW,4)}, s{sTmp} offen"); vm.issue()
                A(f"buffer_load_dword v{T+2*be+1}, v{vb}, {s(rW,4)}, s{sTmp} offen"); tok = vm.issue()
        else:
            _, k, bp = b
            for j in range(2):
                be = 2*bp + j
                row = 64*k + 32*(be >> 2) + 8*(be & 1) + 2*((be >> 1) & 1)
                A(f"s_mov_b32 s{sTmp}, {row*1024}")
                A(f"buffer_load_dwordx4 {v(T+8*j,4)}, v{vWo}, {s(rWo,4)}, s{sTmp} offen"); vm.issue()
                A(f"buffer_load_dwordx4 {v(T+8*j+4,4)}, v{vWo}, {s(rWo,4)}, s{sTmp} offen offset:1024"); tok = vm.issue()
        return tok
    def put(f, be, lo, hi, sel, tmp):
        kind, base = HOME[f]
        if kind == "v":
            A(f"v_perm_b32 v{base+be}, v{hi}, v{lo}, s{sel}")
        else:
            A(f"v_perm_b32 v{tmp}, v{hi}, v{lo}, s{sel}")
            if kind == "a": A(f"v_accvgpr_write_b32 a{base+be}, v{tmp}")
    def consume(bi):
        b = batches[bi]; T = TB[bi % 4]
        if b[0] != "o":
            m, sl = b
            for t in range(2):
                f = (m, t, sl)
                for be in range(8):
                    put(f, be, T+2*be, T+2*be+1, sPerm1 if t else sPerm0, PT + 8*t + be)
                if HOME[f][0] == "l":
                    for p in range(2):
                        ar, off = lds_frag_addr(HOME[f][1], p)
                        A(f"ds_write_b128 v{ar}, {v(PT+8*t+4*p,4)} offset:{off}")
            A("s_waitcnt lgkmcnt(0)")
        else:
            _, k, bp = b
            for t in range(8):
                f = ("o", t, k)
                for j in range(2):
                    be = 2*bp + j
                    put(f, be, T+8*j+(t >> 1), T+8*j+4+(t >> 1), sPerm1 if t & 1 else sPerm0, PT + 2*t + j)
                if HOME[f][0] == "l":
                    ar, off = lds_frag_addr(HOME[f][1], bp >> 1)
                    A(f"ds_write_b64 v{ar}, {v(PT+2*t,2)} offset:{off + 8*(bp & 1)}")
            A("s_waitcnt lgkmcnt(0)")
    toks = {}
    DEPTH = 4
    rP = 56
    A(f"v_lshlrev_b32 v30, 6, v0")
    A(f"s_lshl_b32 s{sTmp}, s{sH}, 17")
    A(f"v_add_u32 v30, s{sTmp}, v30")
    pfn = [0]
    def pfw():
        p = pfn[0]; pfn[0] += 1
        if p >= 24 or not lead: return
        if p % 8 == 0: srd(A, rP, 80 + 2*(p >> 3), 4 << 20)
        x, qd = (p >> 2) & 1, p & 3
        A(f"s_mov_b32 s{sTmp}, {(qd >> 1)*65536 + x*32768 + (qd & 1)*16384}")
        A(f"buffer_load_dword v31, v30, {s(rP,4)}, s{sTmp} offen"); vm.issue()
    for _ in range(lead): pfw()
    for bi in range(len(batches) + DEPTH):
        if bi >= DEPTH:
            vm.wait(toks[bi - DEPTH]); consume(bi - DEPTH)
        if bi == len(batches) - 5:
            A("v_mov_b32 v30, 0")
            A(f"buffer_load_dword v29, v30, {s(rDBG,4)}, 0 offen offset:{D_LN} sc1"); vm.issue()
            A(f"buffer_load_dword v31, v30, {s(rDBG,4)}, 0 offen offset:{D_INIT} sc1"); vm.issue()
        if bi == len(batches) - 1:
            A("v_readfirstlane_b32 s60, v29")
            A("v_readfirstlane_b32 s61, v31")
            A(f"v_lshlrev_b32 v30, 4, v{vL16}")
            A(f"s_mov_b32 s{sTmp}, {CNT + C_KV}")
            A(f"buffer_load_dword v29, v30, {s(rWS,4)}, s{sTmp} offen sc1"); vm.issue()
        if bi == fill_at: fills()
        if bi == fill_at + DEPTH: arrive()
        if bi < len(batches):
            toks[bi] = issue(bi)
            if batches[bi][0] != "o": pfw()
    if stamps == 2: A("s_memrealtime s[94:95]")
    A(f"s_lshl_b32 s{sKV}, s{sH}, 14")
    A(f"s_lshl_b32 s{sTmp}, s{sW}, 11")
    A(f"s_add_u32 s{sKV}, s{sKV}, s{sTmp}")
    A(f"s_add_u32 s{sKV}, s{sKV}, {KV}")
    A(f"s_add_u32 s{sMK}, s{sTmp}, {L_KX}")
    A(f"s_add_u32 s{sMV}, s{sTmp}, {L_VX}")
    A(f"s_lshl_b32 s{sMV+1}, s{sH}, 14")
    A(f"s_add_u32 s{sMV+1}, s{sMV+1}, {KV + 8192}")
    A(f"s_add_u32 s{sPF}, s{sTmp}, {pfd*32*16384}")
    def dma(which, par, j):
        if j == 0:
            A(f"s_mov_b32 m0, s{sMK if which == 'k' else sMV + par}")
            if which == "v": A(f"s_add_u32 s{sTmp}, s{sKV}, 8192")
        A(f"buffer_load_dwordx4 v{vL16}, {s(rWS,4)}, s{sKV if which == 'k' else sTmp} offen offset:{1024*j} sc1 lds")
    def kv_wait(tag, ta, tb, need):
        A(f"""
        L_kvw{tag}:
        v_lshlrev_b32 v{ta}, 4, v{vL16}
        s_mov_b32 s{sTmp}, {CNT + C_KV}
        buffer_load_dword v{tb}, v{ta}, {s(rWS,4)}, s{sTmp} offen sc1
        s_waitcnt vmcnt(0)
        v_cmp_eq_u32 vcc, 32, v{tb}
        s_ff0_i32_b64 s{sRdy}, vcc
        s_add_u32 s{sG}, s{sG}, 1
        s_cmp_gt_u32 s{sG}, {SPIN}
        s_cbranch_scc1 L_team_end
        s_cmp_gt_u32 s{sRdy}, {need}
        s_cbranch_scc0 L_kvw{tag}
        """)
    A(f"s_mov_b32 s{sG}, 0")
    if kvchk:
        A(f"""
        v_cmp_eq_u32 vcc, 32, v29
        s_ff0_i32_b64 s{sRdy}, vcc
        s_cmp_ge_u32 s60, 64
        s_cselect_b32 s{sRdy}, s{sRdy}, 0
        s_cmp_lg_u32 s{sRdy}, 0
        s_cbranch_scc1 L_kv0ok
        v_mov_b32 v41, 0
        L_lnw:
        buffer_load_dword v40, v41, {s(rDBG,4)}, 0 offen offset:{D_LN} sc1
        s_waitcnt vmcnt(0)
        v_readfirstlane_b32 s{sTmp2}, v40
        s_add_u32 s{sG}, s{sG}, 1
        s_cmp_gt_u32 s{sG}, {SPIN}
        s_cbranch_scc1 L_team_end
        s_cmp_lt_u32 s{sTmp2}, 64
        s_cbranch_scc1 L_lnw
        """)
        kv_wait("0", 40, 41, "0")
        A.label("L_kv0ok")
    dma("k", 0, 0); dma("k", 0, 1)
    A(f"s_add_u32 s{sKV}, s{sKV}, {32*16384}")
    A(f"""
    s_cmp_ge_u32 s61, 32
    s_cbranch_scc1 L_init_wait
    s_cmp_lg_u32 s{sW}, 0
    s_cbranch_scc1 L_init_wait
    v_mov_b32 v41, 0
    s_mov_b32 s{sG}, 0
    L_init_poll:
    buffer_load_dword v40, v41, {s(rDBG,4)}, 0 offen offset:{D_INIT} sc1
    s_waitcnt vmcnt(0)
    v_readfirstlane_b32 s{sTmp}, v40
    s_add_u32 s{sG}, s{sG}, 1
    s_cmp_gt_u32 s{sG}, {SPIN}
    s_cbranch_scc1 L_init_wait
    s_cmp_lt_u32 s{sTmp}, 32
    s_cbranch_scc1 L_init_poll
    L_init_wait:
    s_waitcnt lgkmcnt(0)
    s_barrier
    s_mov_b32 s{sStep}, 0
    s_mov_b32 s{sG}, 0
    s_mov_b32 s{sRetA}, 0
    s_mov_b32 s{sRetB}, 0
    s_mov_b32 s{sRet2}, 0
    s_mov_b32 s{sC}, 0x3e0293ee
    v_mov_b32 v{VMR+1}, 0
    v_mov_b32 v{VMR+3}, 0
    s_lshl_b32 s{sRd2}, s{sW}, 17
    s_lshl_b32 s{sTmp}, s{sH}, 12
    s_add_u32 s{sRd2}, s{sRd2}, s{sTmp}
    """)
    import math, struct
    cval = struct.unpack("<I", struct.pack("<f", (128 ** -0.5) * math.log2(math.e)))[0]
    A(f"s_mov_b32 s{sC}, {cval:#x}")
    if stamps == 2:
        A("s_memrealtime s[96:97]")
        A("s_memtime s[76:77]"); A("s_waitcnt lgkmcnt(0)")
    assert not (stamps == 1 and fsl)
    if stamps == 1:
        for k in range(52, 100): A(f"s_mov_b32 s{k}, 0")

    lg = Cnt(A, "lgkmcnt", 15)
    staged = {}
    def stage(idx, reg):
        f = LDSF[idx]
        for p in range(2):
            ar, off = lds_frag_addr(idx, p)
            A(f"ds_read_b128 {v(reg+4*p,4)}, v{ar} offset:{off}"); tok = lg.issue()
        staged[f] = (reg, tok)
    waited = [0]
    def lwait(tok):
        if tok > waited[0]:
            lg.wait(tok); waited[0] = tok
    def sm(m, t, sl, acc, areg):
        f = (m, t, sl); kind, base = HOME[f]
        if kind == "l":
            reg, tok = staged.pop(f); lwait(tok); b = v(reg, 8)
        else:
            b = (a if kind == "a" else v)(base, 8)
        A(f"v_smfmac_f32_16x16x64_bf16 {v(acc,4)}, {v(areg,4)}, {b}, v{vIdx}")
    def dsr(dst, addr, off, n=4):
        A(f"ds_read_b{32*n} {v(dst,n)}, v{addr} offset:{off}"); return lg.issue()
    def dsw(addr, src, off, n=4):
        A(f"ds_write_b{32*n} v{addr}, {v(src,n)} offset:{off}"); return lg.issue()
    def chk(r, lab):
        A(f"v_max3_u32 v{vT0}, v{r}, v{r+1}, v{r+2}")
        A(f"v_max_u32 v{vT0}, v{vT0}, v{r+3}")
        A(f"v_cmp_eq_u32 vcc, -1, v{vT0}")
        A(f"s_cbranch_vccnz {lab}")
    qa = lambda t: ACCA + 4*t
    ka = lambda t: ACCB + 4*t
    ma = lambda sl: MEMA + 4*sl

    QB = POOL; FR = POOL + 16
    va = lambda t: ACCV + 4*t
    WA = MEMA
    wa = lambda t: WA + 4*t
    R2 = ma(5); SEL = ma(7); PUB = vT1; DD = ma(3)
    def stage1(idx, reg, p):
        f = LDSF[idx]
        ar, off = lds_frag_addr(idx, p)
        A(f"ds_read_b128 {v(reg+4*p,4)}, v{ar} offset:{off}"); tok = lg.issue()
        if p == 1: staged[f] = (reg, tok)
    G = lambda idx, reg, p: (lambda: stage1(idx, reg, p))
    def mf(d, a_, b_, first, k16=False):
        n = 2 if k16 else 4
        A(f"v_mfma_f32_16x16x{16 if k16 else 32}_bf16 {v(d,4)}, {v(a_,n)}, {v(b_,n)}, {0 if first else v(d,4)}")
    def slots(ms, fill):
        for i, m in enumerate(ms):
            m()
            if i < len(fill):
                for f in fill[i]: f()
        for fl in fill[len(ms):]:
            for f in fl: f()
    I = lambda txt: (lambda: A(txt))
    accf = {"q": qa, "k": ka, "v": va}
    SM = lambda m, t, sl, areg=None: (lambda: sm(m, t, sl, accf[m](t), ma(sl) if areg is None else areg))
    PRE = [(0, STG), (1, STG+8), (2, FR), (3, FR+8), (5, QB+8), (4, QB)]
    def chores(lo, hi):
        for idx, reg in PRE[lo:hi]: stage(idx, reg)
    def zero_accs():
        for i in range(0, 16, 2): A(f"v_mov_b64 {v(ACCA+i,2)}, 0")
        for i in range(0, 8, 2): A(f"v_mov_b64 {v(ACCV+i,2)}, 0")
    def set_neg():
        A(f"v_mov_b64 {v(NEG,2)}, -1"); A(f"v_mov_b64 {v(NEG+2,2)}, -1")
    def slot_offsets():
        A(f"""
        s_and_b32 s{sTmp}, s{sStep}, 3
        s_lshl_b32 s{sO1}, s{sTmp}, 13
        s_add_u32 s{sO1}, s{sO1}, {H1}
        s_add_u32 s{sO1b}, s{sO1}, 4096
        """)
    def ld1():
        A(f"buffer_load_dwordx4 {v(ma(0),4)}, v{vT16}, {s(rWS,4)}, s{sO1} offen sc1")
        A(f"buffer_load_dwordx4 {v(ma(4),4)}, v{vT16}, {s(rWS,4)}, s{sO1b} offen sc1")
    def ld2():
        for u in range(2):
            A(f"buffer_load_dwordx4 {v(R2+4*u,4)}, v{vL16}, {s(rWS,4)}, s{sRd} offen offset:{1024*u} sc1")
    def delay(n):
        while n > 0:
            A(f"s_nop {min(n,16)-1}"); n -= 16
    chores(0, 6); zero_accs(); set_neg(); slot_offsets()
    A(f"s_mov_b32 s{sO2}, {H2}"); A(f"s_mov_b32 s{sO2b}, {H2 + (128<<10)}")
    A(f"s_add_u32 s{sRst1}, s{sPubO}, {2*8192}")
    A(f"s_and_b32 s{sTmp}, s{sW}, 1")
    A(f"s_lshl_b32 s{sRd2}, s{sTmp}, 17")
    A(f"s_lshl_b32 s{sTmp}, s{sH}, 12")
    A(f"s_add_u32 s{sRd2}, s{sRd2}, s{sTmp}")
    A(f"s_lshr_b32 s{sTmp}, s{sW}, 1")
    A(f"s_lshl_b32 s{sTmp}, s{sTmp}, 11")
    A(f"s_add_u32 s{sRd2}, s{sRd2}, s{sTmp}")
    pre_staged = dict(staged)
    sKf = 47
    A(f"s_mov_b32 s{sKf}, 0")
    A(f"s_waitcnt lgkmcnt(0)")
    def ldA(): A(f"buffer_load_dwordx4 {v(ma(0),4)}, v{vT16}, {s(rWS,4)}, s{sO1} offen sc1")
    def ldB(): A(f"buffer_load_dwordx4 {v(ma(4),4)}, v{vT16}, {s(rWS,4)}, s{sO1b} offen sc1")
    N1 = I("s_nop 1"); N0 = I("s_nop 0")
    for par in range(2):
        P = f"_{par}"
        LM = L_MEM; LK = L_KX
        st = stamp if par == 0 else (lambda n="": None)
        A.label("L_step" + P)
        if stamps == 1 and par == 0:
            stamp("top")
            A(f"s_cmp_ge_u32 s{sStep}, {nsteps-3}")
            A("s_cbranch_scc1 L_team_end")
        st("top2")
        for j in range(nsets):
            delay(gapB if j else dA)
            if j == 0 or not bonly: ldA(); delay(gapAB)
            ldB()
        nfl = nsets + 1 if bonly else 2*nsets
        waited[0] = lg.n
        staged.clear(); staged.update({f: (r, 0) for f, (r, t) in pre_staged.items()})
        r, q = ma(0), ma(4)
        A.label("L_pollA" + P)
        A(f"s_waitcnt vmcnt({nfl-1})")
        A.label("L_pollA2" + P)
        A(f"v_max3_u32 v{vT0}, v{r}, v{r+1}, v{r+2}")
        A(f"v_max_u32 v{vT0}, v{vT0}, v{r+3}")
        A(f"v_cmp_eq_u32 vcc, -1, v{vT0}")
        tt = {}
        def rd(key, dst, addr, off): return lambda: tt.__setitem__(key, dsr(dst, addr, off))
        kx = lambda i, dst: rd(("kx", i), dst, vL16, LK + 1024*i)
        W = lambda key: (lambda: lwait(tt[key]))
        WS = lambda idx: (lambda: lwait(staged[LDSF[idx]][1]))
        twa = dsw(vT16, r, LM)
        st("ok")
        slots([SM("q",0,0), SM("q",1,0), SM("k",0,0), SM("k",1,0)],
              [[], [I(f"s_cbranch_vccnz L_retryA{P}"), I(f"s_waitcnt vmcnt({nfl-2})"), I(f"v_max3_u32 v{vT0}, v{q}, v{q+1}, v{q+2}")], [I(f"v_max_u32 v{vT0}, v{vT0}, v{q+3}")],
               [lambda: lwait(twa), I("s_barrier"), I(f"v_cmp_eq_u32 vcc, -1, v{vT0}")]])
        st("barM")
        rd(1, ma(1), vM1, LM)()
        SM("v",0,0)()
        A(f"s_cbranch_vccnz L_retryB{P}")
        A.label("L_okB" + P)
        st("okB")
        tw = dsw(vT16, q, LM + 4096)
        kvu = []
        slots([SM("v",1,0), SM("q",0,4), SM("q",1,4), SM("k",0,4), SM("k",1,4), SM("v",0,4), SM("v",1,4)],
              [[rd(2, ma(2), vM2, LM)], [rd(3, ma(3), vM3, LM)], [kx(4, STG)], [kx(5, STG+4)], [], [lambda: lwait(tw), I("s_barrier")], [rd(5, ma(5), vM1, LM+4096)]])
        st("barB")
        rst = [I(f"s_xor_b32 s{sTmp}, s{sO2}, {256<<10}"), I(f"s_add_u32 s{sTmp}, s{sTmp}, s{sRst2}"),
               I(f"buffer_store_dwordx4 {v(NEG,4)}, v{vT16}, {s(rWS,4)}, s{sTmp} offen")]
        rst2 = [I(f"s_add_u32 s{sTmp}, s{sTmp}, {128<<10}"),
               I(f"buffer_store_dwordx4 {v(NEG,4)}, v{vT16}, {s(rWS,4)}, s{sTmp} offen"),
               I(f"buffer_store_dword v{NEG}, v{PUB}, {s(rWS,4)}, s{sRst1} offen")]
        pubg = [I(f"buffer_store_dword v{vPD}, v{PUB}, {s(rWS,4)}, s{sMG} offen sc1"), I(f"s_add_u32 s{sMG}, s{sMG}, 8192")]
        bk = [I(x) for x in (
            f"s_add_u32 s{sStep}, s{sStep}, 1", f"s_add_u32 s{sRd}, s{sO2}, s{sRd2}", f"s_and_b32 s{sB}, s{sStep}, 3",
            f"s_lshl_b32 s{sB+1}, s{sB}, 13", f"s_add_u32 s{sO1}, s{sB+1}, {H1}", f"s_add_u32 s{sO1b}, s{sO1}, 4096",
            f"s_add_u32 s{sB+2}, s{sB+1}, s{sPubO}", f"s_xor_b32 s{sRst1}, s{sB+1}, {2<<13}", f"s_add_u32 s{sRst1}, s{sRst1}, s{sPubO}")]
        m0k = lambda: None
        dk = lambda j: I(f"buffer_load_dwordx4 {v(KST+4*j,4)}, v{vL16}, {s(rWS,4)}, s{sKV} offen offset:{1024*j} sc1")
        VX0, VX1 = ma(0), ma(4)
        lv = [I(f"buffer_load_dwordx4 {v(VX0,4)}, v{vT16}, {s(rWS,4)}, s{sMV+1} offen sc1"), I(f"s_add_u32 s{sTmp2}, s{sMV+1}, 4096"),
              I(f"buffer_load_dwordx4 {v(VX1,4)}, v{vT16}, {s(rWS,4)}, s{sTmp2} offen sc1"), I(f"s_add_u32 s{sMV+1}, s{sMV+1}, {32*16384}")]
        if "dma" in off: dk = lambda j: N0
        def kvbr():
            if kvchk:
                A(f"s_cmp_gt_u32 s{sRdy}, s{sStep}")
                A(f"s_cbranch_scc0 L_kvw{P}")
                A.label("L_kvok" + P)
        def kfissue():
            if not (kvchk and kfasync and par == 0): return
            A(f"""
            s_min_u32 s{sTmp}, s{sRdy}, 64
            s_lshl_b32 s{sTmp}, s{sTmp}, 8
            v_lshlrev_b32 v{VMR}, 4, v{vL16}
            s_add_u32 s{sTmp}, s{sTmp}, {CNT + C_KV}
            s_mov_b32 s{sKf}, s{sRdy}
            s_mov_b64 exec, 0xffff
            buffer_load_dword v{vPD}, v{VMR}, {s(rWS,4)}, s{sTmp} offen sc1
            s_mov_b64 exec, -1
            """)
        dmaseq = {ks: [m0k, kvbr], ks+1: [dk(0)], ks+3: [dk(1), I(f"s_add_u32 s{sKV}, s{sKV}, {32*16384}")]}
        slotno = [0]
        def slots2(ms, fill):
            fill = [list(f) for f in fill] + [[] for _ in range(len(ms) - len(fill))]
            for i in range(len(ms)):
                fill[i] = dmaseq.pop(slotno[0], []) + fill[i]; slotno[0] += 1
            slots(ms, fill)
        slots2([SM("q",0,1), SM("q",1,1), SM("k",0,1), SM("k",1,1), SM("q",0,2), SM("q",1,2), SM("k",0,2), SM("k",1,2),
               SM("q",1,3), SM("k",0,3), SM("q",0,3), SM("k",1,3), SM("q",0,5), SM("q",1,5), SM("q",0,6), SM("q",1,6), SM("q",0,7), SM("q",1,7)],
              [[rd(6, ma(6), vM2, LM+4096)] + lv[:2], [rd(7, ma(7), vM3, LM+4096), bk[0]], lv[2:], [W(3)] + rst[:2], [kx(6, STG+8)], [kx(7, STG+12)] + rst[2:], bk[1:3], [kx(0, FR)],
               [kx(1, FR+4)], rst2[:2], bk[3:6], [W(7), kx(2, FR+8)], rst2[2:], [kx(3, FR+12)], pubg, bk[6:9], [kfissue], []])
        st("qdone")
        if trace and par == 0:
            A(f"""
            s_memrealtime s[52:53]
            s_memtime s[54:55]
            s_lshl_b32 s56, s{sStep}, 2
            s_waitcnt lgkmcnt(0)
            v_writelane_b32 v{vT0}, s52, 0
            v_writelane_b32 v{vT0}, s54, 1
            s_lshl_b32 s57, s{sH}, 10
            s_add_u32 s56, s56, s57
            s_add_u32 s56, s56, {RES + 65536 - 4}
            v_lshrrev_b32 v{QB}, 2, v{vL16}
            s_mov_b64 exec, 3
            buffer_store_dword v{vT0}, v{QB}, {s(rWS,4)}, s56 offen
            s_mov_b64 exec, -1
            """)
        def epi_ops(acc):
            return [I(f"v_add_f32 v{acc}, v{acc}, v{acc+2}"), I(f"v_add_f32 v{acc+1}, v{acc+1}, v{acc+3}"),
                    I(f"v_add_f32 v{acc+4}, v{acc+4}, v{acc+6}"), I(f"v_add_f32 v{acc+5}, v{acc+5}, v{acc+7}"),
                    I(f"v_cvt_pk_bf16_f32 v{acc}, v{acc}, v{acc+4}"), I(f"v_cvt_pk_bf16_f32 v{acc+1}, v{acc+1}, v{acc+5}")]
        e = epi_ops(ACCA); ek = epi_ops(ACCB)
        wq = [lambda: dsw(vQW, ACCA, L_Q, 1), lambda: dsw(vQW, ACCA+1, L_Q + RS, 1)]
        wk = [lambda: dsw(vQW, ACCB, L_K, 1), lambda: tt.__setitem__("wk", dsw(vQW, ACCB+1, L_K + RS, 1))]
        slots2([SM("k",0,5), SM("k",0,6), SM("k",0,7), SM("k",1,5), SM("k",1,6), SM("k",1,7),
               SM("v",0,1), SM("v",1,1), SM("v",0,2), SM("v",1,2), SM("v",0,3), SM("v",1,3)],
              [[e[0]], [e[1]], [e[2]], [e[3]], [e[4]], [wq[0], e[5]],
               [wq[1], ek[0], ek[1]], [ek[2], ek[3]], [ek[4], ek[5]] + wk, [], [],
               []])
        lwait(tt["wk"]); A("s_barrier"); st("barQK")
        qr = lambda k: rd(("q", k), QB+4*k, vQR, L_Q + 64*k)
        KMR = ACCA
        kr = lambda k: rd(("km", k), KMR+4*k, vQR, L_K + 64*k)
        VXR = FR; OO = QB; LL = QB + 8; ONES = NEG
        ones = [I(f"v_mov_b32 v{ONES+i}, 0x3f803f80") for i in range(4)]
        nvm = 3 + (1 if kvchk and kfasync and par == 0 else 0) + (1 if trace and par == 0 else 0) - 2*("dma" in off)
        assert ks >= 15
        qr(0)()
        slots2([SM("v",0,5), SM("v",1,5), SM("v",0,6), SM("v",1,6), SM("v",0,7), SM("v",1,7)],
              [[qr(1), ones[0]], [qr(2), ones[1]], [qr(3), ones[2]], [kr(0), ones[3]], [kr(1)], [kr(2), W(("q",1))]])
        st("vdone")
        Sx = lambda t, k: (lambda: (lwait(tt[("q", k)]), mf(S+4*t, (FR if t == 0 else STG) + 4*k, QB+4*k, k == 0)))
        Sm = lambda k: (lambda: (lwait(tt[("km", k)]), mf(S+8, KMR+4*k, QB+4*k, k == 0)))
        ve = []
        for t in range(2):
            ve += [I(f"v_add_f32 v{va(t)}, v{va(t)}, v{va(t)+2}"), I(f"v_add_f32 v{va(t)+1}, v{va(t)+1}, v{va(t)+3}"),
                   I(f"v_cvt_pk_bf16_f32 v{VMR+2*t}, v{va(t)}, v{va(t)+1}")]
        zw = [I(f"v_mov_b64 {v(WA+i,2)}, 0") for i in range(0, 32, 2)]
        slots2([Sx(0,0), Sx(1,0), Sx(0,1), Sx(1,1), Sx(0,2), Sx(1,2), Sx(0,3), Sx(1,3), Sm(0), Sm(1), Sm(2), Sm(3)],
              [[kr(3)], [ve[0], ve[1]], [ve[2], ve[3]], [W(("q",3)), ve[4]],
               [G(11, FR, 0), ve[5]], [G(11, FR, 1)],
               [G(6, STG, 0)], [W(("km",3)), G(6, STG, 1)], [G(7, FR+8, 0), I(f"v_max3_f32 v{vT0}, v{S}, v{S+1}, v{S+2}")],
               [I(f"v_max3_f32 v{vT0}, v{vT0}, v{S+3}, v{S+4}"), I(f"v_max3_f32 v{vT0}, v{vT0}, v{S+5}, v{S+6}")],
               [G(7, FR+8, 1), I(f"v_max_f32 v{vT0}, v{vT0}, v{S+7}")],
               [G(9, ACCV, 0), zw[10], zw[11], G(9, ACCV, 1), zw[12], zw[13], zw[14]]])
        assert not dmaseq
        st("Smm")
        A(f"v_max3_f32 v{vT0}, v{vT0}, v{S+8}, v{S+9}")
        A(f"v_mov_b32 v{S+10}, v{vT0}")
        G(8, STG+8, 0)(); zw[15]()
        A(f"v_permlane32_swap_b32 v{vT0}, v{S+10}")
        A(f"v_max_f32 v{vT0}, v{vT0}, v{S+10}")
        A(f"v_mov_b32 v{S+10}, v{vT0}")
        G(8, STG+8, 1)()
        A(f"v_permlane16_swap_b32 v{vT0}, v{S+10}")
        A(f"v_max_f32 v{vT0}, v{vT0}, v{S+10}")
        A(f"v_mul_f32 v{S+10}, s{sC}, v{vT0}")
        for i in (8, 0, 2, 4, 6):
            A(f"v_pk_fma_f32 {v(S+i,2)}, {v(S+i,2)}, s[{sC}:{sC+1}], {v(S+10,2)} op_sel_hi:[1,0,0] neg_lo:[0,0,1] neg_hi:[0,0,1]")
        ex = lambda i: I(f"v_exp_f32 v{S+i}, v{S+i}")
        cv = lambda i: I(f"v_cvt_pk_bf16_f32 v{S+i}, v{S+2*i}, v{S+2*i+1}")
        ex(8)(); ex(9)(); ex(0)()
        A(f"v_cvt_pk_bf16_f32 v{S+8}, v{S+8}, v{S+9}"); A(f"v_mov_b32 v{S+9}, 0")
        ex(1)(); ex(2)()
        slots([lambda: mf(LL, ONES, S+8, True, True), lambda: mf(OO, VMR, S+8, True, True), lambda: mf(OO+4, VMR+2, S+8, True, True)],
              [[ex(3), cv(0)], [ex(4), ex(5)], [ex(6), ex(7), cv(1), cv(2), cv(3)]])
        st("exp")
        G(10, ACCB, 0)(); A(f"s_waitcnt vmcnt({nvm})")
        slots([lambda: mf(LL, ONES, S, False), lambda: mf(OO, VX0, S, False), lambda: mf(OO+4, VX1, S, False)],
              [[G(10, ACCB, 1), zw[4]], [zw[5], zw[6]], [zw[7]]])
        st("PV")
        A(f"v_rcp_f32 v{vT0}, v{LL}")
        zw[0]()
        for i in range(4): A(f"v_mul_f32 v{OO+i}, v{OO+i}, v{vT0}")
        A(f"v_pk_mul_f32 {v(OO+4,2)}, {v(OO+4,2)}, {v(vT0,2)} op_sel_hi:[1,0]")
        A(f"v_pk_mul_f32 {v(OO+6,2)}, {v(OO+6,2)}, {v(vT0,2)} op_sel_hi:[1,0]")
        for i in range(4): A(f"v_cvt_pk_bf16_f32 v{OO+i}, v{OO+i}, v{OO+4+i}")
        tw = dsw(vOW, OO, L_O)
        st("owr")
        for f in (zw[1], zw[2], zw[3], zw[8], zw[9]): f()
        FR_ = [NEG, NEG+1, NEG+2, NEG+3, vT0][:len(fsl)]
        if fsl:
            A(f"v_mov_b32 v{VMR}, s{sStep}")
            A(f"v_bfe_u32 v{VMR+2}, v{vL16}, 2, 5")
            A(f"v_lshlrev_b32 v{vT0}, 4, v{vL16}")
            A(f"s_mul_i32 s{sK+1}, s{sStep}, 0x01010101")
        lwait(tw); A("s_barrier"); st("barO")
        OA = ACCA
        to0 = dsr(OA, vOR, L_O)
        to = dsr(OA+4, vOR, L_O + 128)
        if fsl:
            A("s_mov_b64 exec, 0x3ff")
            A(f"buffer_store_byte v{VMR}, v{vT0}, {s(rWS,4)}, s{sFlS} offen")
            A("s_mov_b64 exec, -1")
        dmaseq.update({slotno[0] + sl: [I(f"buffer_load_dword v{FR_[i]}, v{VMR+2}, {s(rWS,4)}, s{sFl} offen offset:{256*i} sc1")] for i, sl in enumerate(fsl)})
        ad = lambda t: [I(f"v_add_f32 v{wa(t)}, v{wa(t)}, v{wa(t)+2}"), I(f"v_add_f32 v{wa(t)+1}, v{wa(t)+1}, v{wa(t)+3}")]
        cvp = lambda dst, t: [I(f"v_cvt_pk_bf16_f32 v{dst}, v{wa(t)}, v{wa(t+1)}"), I(f"v_cvt_pk_bf16_f32 v{dst+2}, v{wa(t)+1}, v{wa(t+1)+1}")]
        sto = lambda x, dst: [I(f"buffer_store_dwordx4 {v(dst,4)}, v{vSt2}, {s(rWS,4)}, s{sO2b if x else sO2} offen")]
        SO = lambda t, k: (lambda: sm("o", t, k, wa(t), OA+4*k))
        DA, DB = QB, QB + 4
        lwait(to0)
        st("ord")
        slots2([SO(t, k) for t in range(8) for k in range(2)],
              [[lambda: lwait(to), G(12, QB+8, 0)], [G(12, QB+8, 1)], [G(13, STG, 0)], [G(13, STG, 1), ad(0)[0]], [G(14, FR+8, 0), ad(0)[1]],
               [G(14, FR+8, 1), ad(1)[0]], [G(15, STG+8, 0), ad(1)[1]], [G(15, STG+8, 1), cvp(DA, 0)[0], cvp(DA, 0)[1]],
               [G(16, ACCV, 0)] + ad(2), [WS(13), G(16, ACCV, 1)] + ad(3), cvp(DA+1, 2), sto(0, DA) + [lambda: st("stA"), ad(4)[0]], [WS(15), ad(4)[1]],
               [WS(16)] + ad(5)[:1], ad(5)[1:], cvp(DB, 4) + ad(6)])
        for f in ad(7) + cvp(DB+1, 6) + sto(1, DB): f()
        st("stB")
        assert not staged, staged
        if bar1: A("s_barrier")
        st("bar1")
        dsr(SEL, vL16, L_ST)
        A(f"s_xor_b32 s{sO2}, s{sO2}, {256<<10}")
        A(f"s_xor_b32 s{sO2b}, s{sO2b}, {256<<10}")
        def red_block(role, nr):
            T_ = f"{role}{P}"
            A(f"v_add_u32 v{vT0}, s{sMK}, v{vL16}")
            A(f"s_waitcnt vmcnt({2*nr+2})")
            A(f"ds_write_b128 v{vT0}, {v(KST,4)}")
            A(f"ds_write_b128 v{vT0}, {v(KST+4,4)} offset:1024")
            if kvchk and kfasync and par == 0:
                A(f"""
                v_cmp_eq_u32 vcc, 32, v{vPD}
                s_and_b32 s{sTmp}, vcc_lo, 0xffff
                s_ff0_i32_b32 s{sTmp}, s{sTmp}
                s_min_u32 s{sKf}, s{sKf}, 64
                s_add_u32 s{sTmp}, s{sTmp}, s{sKf}
                s_max_u32 s{sRdy}, s{sRdy}, s{sTmp}
                """)
            A("s_waitcnt lgkmcnt(2)")
            A.label("L_pipe2" + T_)
            for u in range(2):
                r = R2 + 4*u
                A(f"s_waitcnt vmcnt({2*nr-1-u})")
                A(f"v_max3_u32 v{vT0}, v{r}, v{r+1}, {'v%d' % vT0 if u else 0}")
                A(f"v_max3_u32 v{vT0}, v{r+2}, v{r+3}, v{vT0}")
                mf(DD, SEL, r, u == 0)
            A(f"v_cmp_eq_u32 vcc, -1, v{vT0}")
            A("s_nop 5")
            A(f"s_cbranch_vccnz L_retryp{T_}")
            for rot in (4, 8):
                A(f"v_add_f32_dpp v{DD}, v{DD}, v{DD} row_ror:{rot} row_mask:0xf bank_mask:0xf")
                A(f"v_add_f32_dpp v{DD+1}, v{DD+1}, v{DD+1} row_ror:{rot} row_mask:0xf bank_mask:0xf")
            A(f"v_cvt_pk_bf16_f32 v{vPD}, v{DD}, v{DD+1}")
            A(f"v_min_u32 v{vPD}, 0xfffffffe, v{vPD}")
            A(f"buffer_store_dword v{vPD}, v{PUB}, {s(rWS,4)}, s{sB+2} offen")
        def feval():
            if not fsl: return
            A("s_waitcnt vmcnt(2)")
            for i, r_ in enumerate(FR_): A(f"v_cmp_ne_u32 s[{sCm+2*i}:{sCm+2*i+1}], s{sK+1}, v{r_}")
            A(f"s_mov_b32 s{sK}, 0")
            for i in range(len(FR_)):
                A(f"s_cmp_lg_u64 s[{sCm+2*i}:{sCm+2*i+1}], 0")
                A(f"s_addc_u32 s{sK}, s{sK}, 0")
            if stamps: A(f"s_add_u32 s{sRetA}, s{sRetA}, s{sK}")
        def fdelay(tag):
            if not fsl: return
            A(f"""
            L_fd{tag}{P}:
            s_sub_u32 s{sK}, s{sK}, 1
            s_cbranch_scc1 L_fe{tag}{P}
            s_nop {fnop}
            s_branch L_fd{tag}{P}
            L_fe{tag}{P}:
            """)
        chores(0, cpre)
        A(f"s_bitcmp1_b32 s{sW}, 0")
        A(f"s_cbranch_scc1 L_tailB{P}")
        chores(cpre, cs[0][0]); delay(dR[0]); ld2(); st("ld2")
        if fsl: A("s_waitcnt vmcnt(4)")
        chores(cs[0][0], 6); zero_accs(); set_neg()
        if na > 1: delay(dR[1]); ld2()
        red_block(0, na)
        A(f"s_branch L_tailj{P}")
        A.label(f"L_tailB{P}")
        staged.clear()
        if par == 0 and stamps == 1:
            nst[0] -= 1; names.pop()
        feval(); chores(cpre, cs[1][0]); delay(dR[2]); fdelay("b"); ld2(); st("ld2")
        chores(cs[1][0], 6); set_neg(); delay(dR[3])
        if n2 > 1: ld2()
        zero_accs()
        if n2 > 2: delay(d3r); ld2()
        red_block(1, n2)
        A.label(f"L_tailj{P}")
        st("red")
        if bar2: A("s_barrier")
        if par == (nsteps & 1):
            A(f"s_cmp_eq_u32 s{sStep}, {nsteps-1}")
            A("s_cbranch_scc1 L_last")
        if par == 1: A("s_branch L_step_0")
        staged.clear()
    def retry(lab, cnt, body, back):
        A.label(lab)
        A("s_mov_b64 exec, vcc")
        body()
        A("s_mov_b64 exec, -1")
        A(f"s_add_u32 s{cnt}, s{cnt}, 1")
        A(f"s_add_u32 s{sG}, s{sG}, 1")
        A(f"s_cmp_gt_u32 s{sG}, {SPIN}")
        A(f"s_cbranch_scc1 L_team_end")
        if back: A(f"s_branch {back}")
    for par in range(2):
        P = f"_{par}"
        if bonly:
            retry("L_retryA" + P, sRetA, ldA, None)
            A("s_nop 3")
            for i in range(0, 8, 2): A(f"v_mov_b64 {v(ACCA+i,2)}, 0")
            A("s_waitcnt vmcnt(0)")
            A(f"s_branch L_pollA2{P}")
            retry("L_retryB" + P, sRetB, ldB, None)
            A(f"s_waitcnt vmcnt({nsets-1})")
        else:
            retry("L_retryA" + P, sRetA, ld1, None)
            A("s_nop 3")
            for i in range(0, 8, 2): A(f"v_mov_b64 {v(ACCA+i,2)}, 0")
            A(f"s_branch L_pollA{P}")
            retry("L_retryB" + P, sRetB, ld1, None)
            A(f"s_waitcnt vmcnt({2*nsets-2})")
        chk(ma(4), "L_retryB" + P)
        A(f"s_branch L_okB{P}")
        retry("L_retryp0" + P, sRet2, ld2, "L_pipe20" + P)
        retry("L_retryp1" + P, sRet2, ld2, "L_pipe21" + P)
        if kvchk:
            kv_wait(P, vT0, VMR, f"s{sStep}")
            A(f"s_branch L_kvok{P}")
    A.label("L_last")
    A(f"buffer_store_dword v{vPD}, v{PUB}, {s(rWS,4)}, s{sMG} offen sc1")
    A("s_waitcnt vmcnt(0) lgkmcnt(0)")
    A.label("L_team_end")
    if stamps:
        if stamps == 2:
            A("s_memrealtime s[98:99]")
            A("s_memtime s[72:73]"); A("s_waitcnt lgkmcnt(0)")
            A("s_sub_u32 s72, s72, s76")
            vals = [72, sStep, sRetA, sRetB, sRet2, 76, 76, 76] + [90, 92, 94, 96, 98, 98, 98, 98]
        else:
            A("s_waitcnt lgkmcnt(0)")
            for c, (ra, rb) in enumerate(((44, 45), (46, 47))):
                A(f"""
                s_memrealtime s[16:17]
                s_waitcnt lgkmcnt(0)
                s_add_u32 s16, s16, {200 if c else 8}
                L_cal{c}:
                s_memrealtime s[18:19]
                s_memtime s[98:99]
                s_waitcnt lgkmcnt(0)
                s_cmp_lt_u32 s18, s16
                s_cbranch_scc1 L_cal{c}
                s_mov_b32 s{ra}, s18
                s_mov_b32 s{rb}, s98
                """)
            vals = [44, sStep, sRetA, sRetB, sRet2, 45, 46, 47] + list(range(52, 100, 2))
        A(f"s_lshl_b32 s{sTmp}, s{sH}, 2")
        A(f"s_add_u32 s{sTmp}, s{sTmp}, s{sW}")
        A(f"s_lshl_b32 s{sTmp}, s{sTmp}, 7")
        A(f"s_add_u32 s{sTmp}, s{sTmp}, {RES}")
        A("s_waitcnt vmcnt(0)")
        for i, r in enumerate(vals): A(f"v_mov_b32 v{16+i}, s{r}")
        A("v_mov_b32 v0, 0")
        A("s_mov_b64 exec, 1")
        for i in range(len(vals)//4): A(f"buffer_store_dwordx4 {v(16+4*i,4)}, v0, {s(rWS,4)}, s{sTmp} offen offset:{16*i}")
        if stamps == 2 and trace:
            A(f"""
            s_cmp_lg_u32 s{sH}, 0
            s_cbranch_scc1 L_nodbg
            s_cmp_lg_u32 s{sW}, 0
            s_cbranch_scc1 L_nodbg
            buffer_store_dword v24, v0, {s(rDBG,4)}, 0 offen offset:8 sc1
            buffer_store_dword v28, v0, {s(rDBG,4)}, 0 offen offset:12 sc1
            buffer_store_dword v20, v0, {s(rDBG,4)}, 0 offen offset:60 sc1
            buffer_store_dword v19, v0, {s(rDBG,4)}, 0 offen offset:56 sc1
            s_mov_b64 exec, 0xff
            v_lshlrev_b32 v40, 1, v{vL16}
            s_mov_b32 s{sTmp}, {RES + 65536}
            buffer_load_dword v41, v40, {s(rWS,4)}, s{sTmp} offen sc1
            v_lshrrev_b32 v40, 2, v{vL16}
            v_and_b32 v42, 16, v40
            v_lshrrev_b32 v42, 1, v42
            v_add_u32 v40, v40, v42
            s_waitcnt vmcnt(0)
            buffer_store_dword v41, v40, {s(rDBG,4)}, 0 offen offset:16 sc1
            L_nodbg:
            """)
    A("s_waitcnt vmcnt(0)")

def gen_standalone(**kw):
    A = Asm()
    A.raw(f"; @launch grid=(256,1,1) block=(256,1,1) lds=163840")
    A.raw('.amdgcn_target "amdgcn-amd-amdhsa--gfx950"')
    A.raw(".text")
    kernel_begin(A, NAME + "_kernel")
    A(f"""
    s_cmp_ge_u32 s2, 256
    s_cbranch_scc1 L_end
    s_memrealtime s[90:91]
    s_load_dwordx4 s[4:7], s[0:1], 104
    s_getreg_b32 s{sX}, hwreg(HW_REG_XCC_ID)
    s_and_b32 s{sX}, s{sX}, 7
    v_lshrrev_b32 v1, 6, v0
    v_readfirstlane_b32 s{sW}, v1
    s_waitcnt lgkmcnt(0)
    """)
    srd(A, rWS, 6, WS_BYTES)
    srd(A, rDBG, 4, 256)
    spf = kw.pop("spf", 0)
    role_select(A, "L_pfw" if spf else "L_end")
    team(A, **kw)
    A.label("L_end")
    A("s_endpgm")
    if spf:
        A.label("L_pfw")
        A(f"""
        s_lshr_b32 s{sTmp}, s2, 6
        s_lshl_b32 s{sTmp}, s{sTmp}, 3
        s_add_u32 s{sTmp}, s{sTmp}, 16
        s_load_dwordx2 s[80:81], s[0:1], s{sTmp}
        s_and_b32 s{sTmp}, s2, 62
        s_lshl_b32 s{sTmp}, s{sTmp}, 16
        v_lshlrev_b32 v3, 4, v0
        s_waitcnt lgkmcnt(0)
        """)
        srd(A, rW, 80, 4 << 20)
        for i in range(32):
            A(f"buffer_load_dwordx4 v[{128+4*(i&7)}:{131+4*(i&7)}], v3, {s(rW,4)}, s{sTmp} offen")
            A(f"s_add_u32 s{sTmp}, s{sTmp}, 4096")
        A("s_waitcnt vmcnt(0)")
        A("s_endpgm")
    A.raw('.section .rodata,"a"')
    A.raw(descriptor(NAME + "_kernel", 512, 102, 256))
    global STAMP_NAMES
    STAMP_NAMES = A.stamp_names
    return A.text()

if __name__ == "__main__":
    open("team.s", "w").write(gen_standalone(stamps=2))
```

```python
from asmlib import *
import team as T
from team import (rWS, rDBG, rW, sX, sW, sH, sTmp, sTmp2, sG, sPerm0, sPerm1, SPIN, Cnt,
                  D_INIT, D_LN, D_MOE, D_MOEDONE, CNT, C_KV, C_O, XN, KV, QX, MEMG)
import struct, math
XB = 4 << 20
RL = 6 << 20
MOEP = (6 << 20) + (64 << 10)
OX = 68 << 20
NR = 4
NG = 6
NH = 32*NR; M0 = NH; O0 = NH + 16
f2u = lambda x: struct.unpack("<I", struct.pack("<f", x))[0]
sI, sHd, sR, sSeg, sPrev, sA, sBq, sC = 24, 28, 29, 30, 31, 32, 33, 34
rX, rOUT = 44, 48
DPP = " row_mask:0xf bank_mask:0xf"

def allreduce(A, op, regs, tmps):
    for ctrl in ("quad_perm:[1,0,3,2]", "quad_perm:[2,3,0,1]", "row_half_mirror", "row_mirror"):
        for r in regs: A(f"{op}_dpp v{r}, v{r}, v{r} {ctrl}{DPP}")
    for sw in (16, 32):
        for r, t in zip(regs, tmps): A(f"v_mov_b32 v{t}, v{r}")
        for r, t in zip(regs, tmps): A(f"v_permlane{sw}_swap_b32 v{r}, v{t}")
        for r, t in zip(regs, tmps): A(f"{op} v{r}, v{r}, v{t}")

def rnd_bf(A, r):
    A(f"v_cvt_pk_bf16_f32 v{r}, v{r}, v{r}")
    A(f"v_and_b32 v{r}, 0xffff0000, v{r}")

def unpack(A, lo, hi, src):
    A(f"v_lshlrev_b32 v{lo}, 16, v{src}")
    A(f"v_and_b32 v{hi}, 0xffff0000, v{src}")

def wait_dword(A, tag, off, target, ta, tb, sleep=2, srdn=rDBG, soff="0"):
    A(f"""
    s_cmp_lg_u32 s{sW}, 0
    s_cbranch_scc1 L_wd{tag}_ok
    v_mov_b32 v{ta}, 0
    L_wd{tag}:
    buffer_load_dword v{tb}, v{ta}, {s(srdn,4)}, {soff} offen offset:{off} sc1
    s_waitcnt vmcnt(0)
    v_readfirstlane_b32 s{sTmp}, v{tb}
    s_cmp_ge_u32 s{sTmp}, {target}
    s_cbranch_scc1 L_wd{tag}_ok
    s_sleep {sleep}
    s_add_u32 s{sG}, s{sG}, 1
    s_cmp_lt_u32 s{sG}, {SPIN}
    s_cbranch_scc1 L_wd{tag}
    L_wd{tag}_ok:
    s_barrier
    s_nop 1
    """)

def signal(A, tag, body, ta, tb, ret=False, srdn=rDBG):
    A(f"s_cmp_lg_u32 s{sW}, 0")
    A(f"s_cbranch_scc1 L_sig{tag}")
    A("s_mov_b64 exec, 1")
    body()
    A(f"buffer_atomic_add v{tb}, v{ta}, {s(srdn,4)}, 0 offen" + (" sc0" if ret else ""))
    A("s_mov_b64 exec, -1")
    A.label(f"L_sig{tag}")

def seg_signal(A, tag, sseg, base, ta, tb):
    def body():
        A(f"""
        s_lshl_b32 s{sTmp}, s{sseg}, 8
        s_add_u32 s{sTmp}, s{sTmp}, {CNT + base}
        v_mov_b32 v{ta}, s{sTmp}
        v_mov_b32 v{tb}, 1
        """)
    signal(A, tag, body, ta, tb, srdn=rWS)

vL16, vT16, vC, vG = 1, 2, 3, 4
WST = [False]
WPF = [True]
OPF = [True]
SLP = [6, 3]
OPN = [3]
OSC = ['']
NOP2 = [False]
PRE1 = [True]
def wstamp(A, k):
    if not WST[0]: return
    A("s_memrealtime s[96:97]")
    A("s_waitcnt lgkmcnt(0)")
    A(f"s_mov_b32 s{[72,73,74,75,98,99,100,101][k]}, s96")

def common(A):
    if WST[0]:
        A("s_mov_b32 s72, s90")
        for r in (73,74,75,98,99,100,101): A(f"s_mov_b32 s{r}, 0")
    wstamp(A, 1)
    A(f"""
    s_sub_u32 s{sI}, s{sH}, 32
    s_cmp_ge_u32 s{sI}, 224
    s_cbranch_scc1 L_end
    s_load_dwordx2 s[76:77], s[0:1], 0
    s_load_dwordx4 s[80:83], s[0:1], 16
    s_load_dwordx4 s[84:87], s[0:1], 32
    s_load_dwordx8 s[88:95], s[0:1], 64
    s_load_dwordx2 s[78:79], s[0:1], 96
    v_and_b32 v5, 63, v0
    v_and_b32 v{vC}, 15, v0
    v_lshrrev_b32 v{vG}, 4, v5
    v_lshlrev_b32 v{vL16}, 4, v5
    v_lshlrev_b32 v{vT16}, 4, v0
    s_mov_b32 s{sPerm0}, 0x05040100
    s_mov_b32 s{sPerm1}, 0x07060302
    s_mov_b32 s{sG}, 0
    s_waitcnt lgkmcnt(0)
    """)
    srd(A, rX, 76, 2 << 20)
    srd(A, rOUT, 78, 2 << 20)

def pf_wo(A, first):
    if not OPF[0]: return
    A(f"s_sub_u32 s{sTmp}, s{sI}, {first}")
    A(f"s_lshl_b32 s{sTmp}, s{sTmp}, 17")
    srd(A, 52, 86, 4 << 20)
    for i in range(32):
        A(f"buffer_load_dwordx4 v[{128+4*(i&7)}:{131+4*(i&7)}], v{vT16}, s[52:55], s{sTmp} offen")
        A(f"s_add_u32 s{sTmp}, s{sTmp}, 4096")

def ln(A):
    X, WR, F, Sg, Tm, Mb, WF = 16, 32, 40, 72, 76, 80, 84
    A(f"s_cmp_lt_u32 s{sI}, {O0+64}")
    A("s_cbranch_scc1 L_ln_go")
    pf_wo(A, O0 + 64 - 16)
    A("s_branch L_ln_done")
    A.label("L_ln_go")
    srd(A, rW, 88, 1024)
    A(f"s_sub_u32 s{sA}, s{sI}, {O0}")
    A(f"s_lshl_b32 s{sA}, s{sA}, 3")
    A(f"s_add_u32 s{sA}, s{sA}, s{sW}")
    A(f"s_lshl_b32 s{sBq}, s{sA}, 4")
    A(f"s_lshl_b32 s{sA}, s{sA}, 12")
    A(f"buffer_load_dwordx4 {v(WR,4)}, v{vL16}, {s(rW,4)}, 0 offen")
    for j in range(4): A(f"buffer_load_dwordx4 {v(X+4*j,4)}, v{vL16}, {s(rX,4)}, s{sA} offen offset:{1024*j}")
    A(f"s_add_u32 s{sTmp}, s{sA}, 16384")
    for j in range(4): A(f"buffer_load_dwordx4 {v(100+4*j,4)}, v{vL16}, {s(rX,4)}, s{sTmp} offen offset:{1024*j}")
    A(f"s_sub_u32 s{sTmp}, s{sI}, {O0}")
    A(f"s_lshl_b32 s{sTmp}, s{sTmp}, 8")
    A(f"s_add_u32 s{sTmp}, s{sTmp}, {CNT}")
    A(f"v_lshrrev_b32 v5, 2, v{vL16}")
    A("v_mov_b32 v6, 0")
    A(f"buffer_store_dword v6, v5, {s(rWS,4)}, s{sTmp} offen sc1")
    A(f"s_mov_b32 s{sSeg}, 0")
    if OPF[0]:
        A(f"s_sub_u32 s{sTmp2}, s{sI}, {O0}")
        A(f"s_lshl_b32 s{sTmp2}, s{sTmp2}, 16")
        for mi, base in enumerate((80, 82, 84)[:OPN[0]]):
            srd(A, 52, base, 4 << 20)
            A(f"s_mov_b32 s{sTmp}, s{sTmp2}")
            for i in range(16):
                A(f"buffer_load_dwordx4 v[{128+4*(i&7)}:{131+4*(i&7)}], v{vT16}, s[52:55], s{sTmp} offen")
                A(f"s_add_u32 s{sTmp}, s{sTmp}, 4096")
    A(f"s_waitcnt vmcnt({5 + (16*OPN[0] if OPF[0] else 0)})")
    A.label("L_ln_pass")
    R4 = range(4)
    for j in R4:
        for d in range(4): unpack(A, F+8*j+2*d, F+8*j+2*d+1, X+4*j+d)
        A(f"v_add_f32 v{Sg+j}, v{F+8*j}, v{F+8*j+1}")
        for e in range(2, 8): A(f"v_add_f32 v{Sg+j}, v{Sg+j}, v{F+8*j+e}")
    allreduce(A, "v_add_f32", [Sg+j for j in R4], [Tm+j for j in R4])
    for j in R4: A(f"v_mul_f32 v{Mb+j}, {f2u(1/512):#x}, v{Sg+j}")
    for j in R4:
        for e in range(8):
            A(f"v_sub_f32 v{Tm}, v{F+8*j+e}, v{Mb+j}")
            if e == 0: A(f"v_mul_f32 v{Sg+j}, v{Tm}, v{Tm}")
            else: A(f"v_fmac_f32 v{Sg+j}, v{Tm}, v{Tm}")
    allreduce(A, "v_add_f32", [Sg+j for j in R4], [Tm+j for j in R4])
    for j in R4:
        rnd_bf(A, Mb+j)
        A(f"v_mul_f32 v{Sg+j}, {f2u(1/512):#x}, v{Sg+j}")
        rnd_bf(A, Sg+j)
        A(f"v_add_f32 v{Sg+j}, {f2u(1e-5):#x}, v{Sg+j}")
        rnd_bf(A, Sg+j)
        A(f"v_sqrt_f32 v{Sg+j}, v{Sg+j}")
        rnd_bf(A, Sg+j)
        A(f"v_rcp_f32 v{Tm+j}, v{Sg+j}")
    for d in range(4): unpack(A, WF+2*d, WF+2*d+1, WR+d)
    Q, E, RA = 92, 94, 96
    for j in R4:
        for d in range(4):
            f = F + 8*j + 2*d
            A(f"v_sub_f32 v{f}, v{f}, v{Mb+j}")
            A(f"v_sub_f32 v{f+1}, v{f+1}, v{Mb+j}")
            A(f"v_cvt_pk_bf16_f32 v{Q}, v{f}, v{f+1}")
            unpack(A, f, f+1, Q)
            for u in range(2):
                A(f"v_mul_f32 v{Q+u}, v{f+u}, v{Tm+j}")
                A(f"v_fma_f32 v{E+u}, -v{Q+u}, v{Sg+j}, v{f+u}")
                A(f"v_fmac_f32 v{Q+u}, v{E+u}, v{Tm+j}")
            A(f"v_cvt_pk_bf16_f32 v{X+4*j+d}, v{Q}, v{Q+1}")
            unpack(A, f, f+1, X+4*j+d)
            if d == 0: A(f"v_mul_f32 v{RA+j}, v{f}, v{WF}")
            else: A(f"v_fmac_f32 v{RA+j}, v{f}, v{WF+2*d}")
            A(f"v_fmac_f32 v{RA+j}, v{f+1}, v{WF+2*d+1}")
        A(f"s_add_u32 s{sTmp}, s{sA}, {XN}")
        A(f"buffer_store_dwordx4 {v(X+4*j,4)}, v{vL16}, {s(rWS,4)}, s{sTmp} offen offset:{1024*j} sc1")
        A(f"s_add_u32 s{sTmp}, s{sA}, {XB}")
        A(f"buffer_store_dwordx4 {v(X+4*j,4)}, v{vL16}, {s(rWS,4)}, s{sTmp} offen offset:{1024*j} sc1")
    allreduce(A, "v_add_f32", [RA+j for j in R4], [Tm+j for j in R4])
    for j in R4: rnd_bf(A, RA+j)
    A(f"s_add_u32 s{sTmp}, s{sBq}, {RL}")
    A("s_mov_b64 exec, 1")
    A(f"buffer_store_dwordx4 {v(RA,4)}, v{vL16}, {s(rWS,4)}, s{sTmp} offen sc1")
    A("s_mov_b64 exec, -1")
    A(f"s_cmp_lg_u32 s{sSeg}, 0")
    A("s_cbranch_scc1 L_ln_fin")
    A(f"s_mov_b32 s{sSeg}, 1")
    A(f"s_add_u32 s{sA}, s{sA}, 16384")
    A(f"s_add_u32 s{sBq}, s{sBq}, 64")
    A(f"s_waitcnt vmcnt({10 + (16*OPN[0] if OPF[0] else 0)})")
    for i in range(0, 16, 2): A(f"v_mov_b64 {v(X+i,2)}, {v(100+i,2)}")
    A("s_branch L_ln_pass")
    A.label("L_ln_fin")
    A("s_waitcnt vmcnt(0)")
    A("s_barrier")
    signal(A, "ln", lambda: A(f"v_mov_b32 v5, {D_LN}\nv_mov_b32 v6, 1"), 5, 6)
    A.label("L_ln_done")
    wstamp(A, 2)

def load_frags(A, nb, issue8, home, TB, PT, depth=3):
    vm = Cnt(A, "vmcnt", 63); toks = {}
    for bi in range(nb + depth):
        if bi >= depth:
            b = bi - depth; Tt = TB[b % len(TB)]
            vm.wait(toks[b])
            for half in range(2):
                for t in range(2):
                    kind, base = home(b, half, t)
                    for r in range(4):
                        lo, hi = Tt + 8*half + 2*r, Tt + 8*half + 2*r + 1
                        sel = sPerm1 if t else sPerm0
                        if kind == "v": A(f"v_perm_b32 v{base+r}, v{hi}, v{lo}, s{sel}")
                        else:
                            A(f"v_perm_b32 v{PT+(r&1)}, v{hi}, v{lo}, s{sel}")
                            A(f"v_accvgpr_write_b32 a{base+r}, v{PT+(r&1)}")
        if bi < nb:
            for half in range(2):
                issue8(bi, half, TB[bi % len(TB)] + 8*half)
                for _ in range(8): toks[bi] = vm.issue()

def hrole(A):
    MI = {"k": 0, "v": 1, "q": 2}
    def wf(m, t, k):
        n = (MI[m]*16 + k)*2 + t
        return ("a", 4*n) if n < 64 else ("v", 128 + 4*(n-64))
    def wop(m, t, k):
        kind, base = wf(m, t, k)
        return (a if kind == "a" else v)(base, 4)
    vWa, vXs, vXB = 5, 6, 7
    A(f"""
    s_lshr_b32 s{sHd}, s{sI}, 2
    s_and_b32 s{sR}, s{sI}, 3
    ; W voffset = g*65536 + h*256 + 64w + 4c
    v_lshlrev_b32 v{vWa}, 16, v{vG}
    v_lshl_add_u32 v{vWa}, v{vC}, 2, v{vWa}
    s_lshl_b32 s{sTmp}, s{sHd}, 8
    s_lshl_b32 s{sTmp2}, s{sW}, 6
    s_add_u32 s{sTmp}, s{sTmp}, s{sTmp2}
    v_add_u32 v{vWa}, s{sTmp}, v{vWa}
    v_lshlrev_b32 v{vXs}, 10, v{vC}
    v_lshl_add_u32 v{vXs}, v{vG}, 4, v{vXs}
    s_lshr_b32 s{sTmp}, s{sW}, 1
    s_lshl_b32 s{sTmp}, s{sTmp}, 14
    s_and_b32 s{sTmp2}, s{sW}, 1
    s_lshl_b32 s{sTmp2}, s{sTmp2}, 9
    s_add_u32 s{sTmp}, s{sTmp}, s{sTmp2}
    v_add_u32 v{vXs}, s{sTmp}, v{vXs}
    v_mov_b32 v{vXB}, v{vL16}
    """)
    if WPF[0]:
        A(f"""
        s_lshr_b32 s{sTmp}, s{sI}, 5
        s_lshl_b32 s{sTmp}, s{sTmp}, 3
        s_add_u32 s{sTmp}, s{sTmp}, 16
        s_load_dwordx2 s[68:69], s[0:1], s{sTmp}
        s_and_b32 s{sTmp}, s{sI}, 31
        s_lshl_b32 s{sTmp}, s{sTmp}, 17
        s_waitcnt lgkmcnt(0)
        """)
        srd(A, rW, 68, 4 << 20)
        for i in range(32):
            A(f"buffer_load_dwordx4 v[{128+4*(i&7)}:{131+4*(i&7)}], v{vT16}, {s(rW,4)}, s{sTmp} offen")
            A(f"s_add_u32 s{sTmp}, s{sTmp}, 4096")
        A("s_waitcnt vmcnt(12)")
    mats = "kvq"
    def issue8(b, half, Tt):
        m = mats[b // 8]; k = 2*(b % 8) + half
        if b % 8 == 0 and half == 0: srd(A, rW, {"q": 80, "k": 82, "v": 84}[m], 4 << 20)
        for j in range(8):
            A(f"s_mov_b32 s{sTmp}, {(32*k + j)*8192}")
            A(f"buffer_load_dword v{Tt+j}, v{vWa}, {s(rW,4)}, s{sTmp} offen")
    load_frags(A, 24, issue8, lambda b, half, t: wf(mats[b // 8], t, 2*(b % 8) + half), [16, 32, 48], 64)
    wstamp(A, 3)
    wait_dword(A, "ln", D_LN, 64, 8, 9)
    wstamp(A, 4)
    sM0 = 35
    def dma_x(sseg):
        A(f"s_lshl_b32 s{sTmp}, s{sseg}, 15")
        A(f"s_add_u32 s{sTmp}, s{sTmp}, {XN}")
        A(f"s_mov_b32 m0, s{sM0}")
        for k in range(8):
            if k: A(f"s_add_u32 m0, m0, 960")
            A(f"buffer_load_dwordx4 v{vXs}, {s(rWS,4)}, s{sTmp} offen offset:{64*k} sc1 lds")
        A(f"s_xor_b32 s{sM0}, s{sM0}, 32768")
    A(f"s_lshl_b32 s{sM0}, s{sW}, 13")
    A(f"s_mov_b32 s{sSeg}, s{sR}")
    A(f"s_mov_b32 s{sPrev}, 64")
    dma_x(sSeg)
    ACC, XF, PK = 16, 64, 80
    acc = lambda tile, m, t: ACC + 4*((tile*3 + MI[m])*2 + t)
    A("s_waitcnt vmcnt(0)")
    A.label("L_p1")
    A("s_barrier")
    A(f"s_add_u32 s{sA}, s{sSeg}, {NR}")
    A(f"s_cmp_ge_u32 s{sA}, 64")
    A(f"s_cselect_b32 s{sA}, s{sSeg}, s{sA}")
    dma_x(sA)
    lg = Cnt(A, "lgkmcnt", 15); tk = {}
    def rdx(i):
        A(f"ds_read_b128 {v(XF+4*(i&3),4)}, v{vXB} offset:{1024*i}"); tk[i] = lg.issue()
    for i in range(3): rdx(i)
    A(f"s_lshl_b32 s{sA}, s{sSeg}, 5")
    A(f"s_add_u32 s{sA}, s{sA}, s{sHd}")
    A(f"s_lshl_b32 s{sBq}, s{sA}, 13")
    A(f"s_add_u32 s{sBq}, s{sBq}, {QX}")
    A(f"s_lshl_b32 s{sA}, s{sA}, 14")
    A(f"s_add_u32 s{sA}, s{sA}, {KV}")
    def st_t(m, tile, pk, sbase):
        for i in range(4): A(f"v_cvt_pk_bf16_f32 v{pk+i}, v{acc(tile,m,0)+i}, v{acc(tile,m,1)+i}")
        A(f"s_add_u32 s{sTmp}, s{sbase}, {4096*tile}")
        A(f"buffer_store_dwordx4 {v(pk,4)}, v{vT16}, {s(rWS,4)}, s{sTmp} offen" + (" sc1" if m == "k" else ""))
    for i in range(32):
        tile, k = i >> 4, i & 15
        lg.wait(tk[i])
        xf = v(XF+4*(i&3), 4)
        n = 0
        for m in "kvq":
            for t in range(2):
                d = v(acc(tile, m, t), 4); c = 0 if k == 0 else d
                if m == "v": A(f"v_mfma_f32_16x16x32_bf16 {d}, {xf}, {wop(m,t,k)}, {c}")
                else: A(f"v_mfma_f32_16x16x32_bf16 {d}, {wop(m,t,k)}, {xf}, {c}")
                n += 1
                if n == 1 and i + 3 < 32: rdx(i + 3)
        if i == 12:
            A("s_waitcnt vmcnt(8)")
            A("s_barrier")
            A(f"s_cmp_ge_u32 s{sPrev}, 64")
            A("s_cbranch_scc1 L_p1_nosig")
            seg_signal(A, "kv", sPrev, C_KV, 8, 9)
            A.label("L_p1_nosig")
        if i == 17: st_t("k", 0, PK, sA)
        if i == 19: st_t("q", 0, PK+4, sBq)
    st_t("k", 1, PK+8, sA)
    for t in range(2):
        pk = PK + 12 + 4*t
        for tile in range(2):
            for u in range(2): A(f"v_cvt_pk_bf16_f32 v{pk+2*tile+u}, v{acc(tile,'v',t)+2*u}, v{acc(tile,'v',t)+2*u+1}")
        A(f"s_add_u32 s{sTmp}, s{sA}, {8192 + 4096*t}")
        A(f"buffer_store_dwordx4 {v(pk,4)}, v{vT16}, {s(rWS,4)}, s{sTmp} offen sc1")
    st_t("q", 1, PK+20, sBq)
    A(f"v_xor_b32 v{vXB}, 0x8000, v{vXB}")
    A(f"s_mov_b32 s{sPrev}, s{sSeg}")
    A(f"s_add_u32 s{sSeg}, s{sSeg}, {NR}")
    A(f"s_cmp_lt_u32 s{sPrev}, {NR}")
    A("s_cbranch_scc1 L_p1_full")
    A("s_waitcnt vmcnt(6)")
    A(f"s_cmp_lt_u32 s{sSeg}, 64")
    A("s_cbranch_scc1 L_p1")
    A.label("L_p1_full")
    A("s_waitcnt vmcnt(0)")
    A("s_barrier")
    seg_signal(A, "kv2", sPrev, C_KV, 8, 9)
    if WST[0]:
        A(f"s_cmp_ge_u32 s{sPrev}, {NR}")
        A("s_cbranch_scc1 L_nost2")
        wstamp(A, 2)
        A.label("L_nost2")
    A(f"s_mov_b32 s{sPrev}, 64")
    A(f"s_cmp_lt_u32 s{sSeg}, 64")
    A("s_cbranch_scc1 L_p1")
    A.label("L_p1_done")
    wstamp(A, 5)
    if NOP2[0]: A("s_branch L_end")
    RSM = 1056; L_MN = 0; L_KM = 8704; L_VM = L_KM + 4096
    vMW, vMR, vNI, vVR, vVW = 5, 6, 7, 8, 9
    sMask = 52
    sQo, sVo, sOo = 36, 37, 38
    A(f"""
    ; row(c)
    v_lshrrev_b32 v10, 2, v{vC}
    v_and_b32 v11, 1, v{vC}
    v_lshl_add_u32 v10, v10, 1, v11
    v_mul_u32_u24 v10, {RSM}, v10
    v_lshl_add_u32 v{vMR}, v{vG}, 4, v10
    v_lshl_add_u32 v{vMW}, v{vG}, 6, v10
    v_and_b32 v11, 2, v{vC}
    v_lshl_add_u32 v{vMW}, v11, 4, v{vMW}
    s_lshl_b32 s{sTmp}, s{sW}, 8
    v_add_u32 v{vMW}, s{sTmp}, v{vMW}
    v_mov_b32 v{vNI}, 0xff800000
    v_lshrrev_b32 v{vVW}, 1, v{vT16}
    v_lshrrev_b32 v{vVR}, 1, v{vL16}
    s_and_b32 s{sTmp}, s{sW}, 2
    s_lshl_b32 s{sVo}, s{sTmp}, 10
    s_lshl_b32 s{sTmp}, s{sTmp}, 9
    v_add_u32 v{vVR}, s{sTmp}, v{vVR}
    s_and_b32 s{sTmp}, s{sW}, 1
    s_lshl_b32 s{sQo}, s{sTmp}, 12
    s_lshl_b32 s{sOo}, s{sTmp}, 17
    s_add_u32 s{sOo}, s{sOo}, s{sVo}
    s_lshl_b32 s{sTmp2}, s{sHd}, 12
    s_add_u32 s{sOo}, s{sOo}, s{sTmp2}
    s_add_u32 s{sOo}, s{sOo}, {OX}
    s_lshl_b32 s{sTmp}, s{sTmp}, 4
    v_lshlrev_b32 v10, 2, v{vG}
    v_sub_u32 v10, v{vC}, v10
    v_add_u32 v10, s{sTmp}, v10
    s_mov_b32 s{sC}, {f2u((128 ** -0.5) * math.log2(math.e)):#x}
    """)
    for t in range(2):
        for i in range(4): A(f"v_cmp_le_i32 s[{sMask+2*(4*t+i)}:{sMask+2*(4*t+i)+1}], {16*t+i}, v10")
    wait_dword(A, "init", D_INIT, 32, 10, 11)
    QF, KF, VF, S, AM, MF = 16, 32, 64, 80, 92, 108
    t0, t1 = 10, 11
    A(f"s_mov_b32 s{sSeg}, s{sR}")
    A.label("L_p2")
    A(f"""
    s_lshl_b32 s{sA}, s{sSeg}, 5
    s_add_u32 s{sA}, s{sA}, s{sHd}
    s_lshl_b32 s{sBq}, s{sA}, 13
    s_add_u32 s{sBq}, s{sBq}, {QX}
    s_add_u32 s{sBq}, s{sBq}, s{sQo}
    s_lshl_b32 s{sA}, s{sA}, 14
    s_add_u32 s{sA}, s{sA}, {KV}
    """)
    for k in range(4): A(f"buffer_load_dwordx4 {v(QF+4*k,4)}, v{vL16}, {s(rWS,4)}, s{sBq} offen offset:{1024*k} sc1")
    for i in range(8):
        if i == 4: A(f"s_add_u32 s{sA}, s{sA}, 4096")
        A(f"buffer_load_dwordx4 {v(KF+4*i,4)}, v{vL16}, {s(rWS,4)}, s{sA} offen offset:{1024*(i&3)} sc1")
    A(f"s_add_u32 s{sA}, s{sA}, s{sVo}")
    for t in range(2):
        A(f"s_add_u32 s{sA}, s{sA}, 4096")
        for wp in range(2): A(f"buffer_load_dwordx4 {v(VF+4*(2*wp+t),4)}, v{vL16}, {s(rWS,4)}, s{sA} offen offset:{1024*wp} sc1")
    A("s_waitcnt vmcnt(4)")
    for k in range(4):
        for t in range(2):
            A(f"v_mfma_f32_16x16x32_bf16 {v(S+4*t,4)}, {v(KF+16*t+4*k,4)}, {v(QF+4*k,4)}, {v(S+4*t,4) if k else 0}")
    A(f"s_lshl_b32 s{sA}, s{sSeg}, 13")
    A(f"s_add_u32 s{sA}, s{sA}, {MEMG}")
    A(f"s_add_u32 s{sBq}, s{sA}, 4096")
    for i in range(8): A(f"v_cndmask_b32 v{S+i}, v{vNI}, v{S+i}, s[{sMask+2*i}:{sMask+2*i+1}]")
    A(f"v_max3_f32 v12, v{S}, v{S+1}, v{S+2}")
    A(f"v_max3_f32 v12, v12, v{S+3}, v{S+4}")
    A(f"v_max3_f32 v12, v12, v{S+5}, v{S+6}")
    A(f"v_max_f32 v12, v12, v{S+7}")
    if PRE1[0]:
        A(f"""
        s_cmp_lg_u32 s{sW}, 0
        s_cbranch_scc1 L_p2_pre_ok
        v_mov_b32 v{t1}, 0
        L_p2_pre:
        buffer_load_dword v{t0}, v{t1}, {s(rWS,4)}, s{sBq} offen sc1
        s_waitcnt vmcnt(0)
        v_cmp_eq_u32 vcc, -1, v{t0}
        s_cbranch_vccz L_p2_pre_ok
        s_sleep {SLP[0]}
        s_add_u32 s{sG}, s{sG}, 1
        s_cmp_lt_u32 s{sG}, {SPIN}
        s_cbranch_scc1 L_p2_pre
        L_p2_pre_ok:
        s_barrier
        """)
    A.label("L_p2_poll")
    A(f"buffer_load_dwordx4 {v(MF,4)}, v{vT16}, {s(rWS,4)}, s{sA} offen sc1")
    A(f"buffer_load_dwordx4 {v(MF+4,4)}, v{vT16}, {s(rWS,4)}, s{sBq} offen sc1")
    A(f"""
    s_waitcnt vmcnt(0)
    v_max3_u32 v{t0}, v{MF}, v{MF+1}, v{MF+2}
    v_max3_u32 v{t0}, v{t0}, v{MF+3}, v{MF+4}
    v_max3_u32 v{t0}, v{t0}, v{MF+5}, v{MF+6}
    v_max_u32 v{t0}, v{t0}, v{MF+7}
    v_cmp_eq_u32 vcc, -1, v{t0}
    s_cbranch_vccz L_p2_got
    s_sleep {1 if PRE1[0] else SLP[0]}
    s_add_u32 s{sG}, s{sG}, 1
    s_cmp_lt_u32 s{sG}, {SPIN}
    s_cbranch_scc1 L_p2_poll
    s_branch L_end
    L_p2_got:
    """)
    wstamp(A, 6)
    A(f"""
    ds_write2_b64 v{vMW}, {v(MF,2)}, {v(MF+2,2)} offset0:0 offset1:2
    ds_write2_b64 v{vMW}, {v(MF+4,2)}, {v(MF+6,2)} offset0:1 offset1:3
    s_waitcnt lgkmcnt(0)
    s_barrier
    """)
    lg = Cnt(A, "lgkmcnt", 15); tk = {}
    def rdm(k):
        A(f"ds_read_b128 {v(MF+4*(k&3),4)}, v{vMR} offset:{L_MN+64*k}"); tk[k] = lg.issue()
    for k in range(3): rdm(k)
    for k in range(16):
        lg.wait(tk[k]); xf = v(MF+4*(k&3), 4)
        for n, (m, t) in enumerate((("k",0),("k",1),("v",0),("v",1))):
            d = v(AM+4*n, 4); c = 0 if k == 0 else d
            if m == "v": A(f"v_mfma_f32_16x16x32_bf16 {d}, {xf}, {wop(m,t,k)}, {c}")
            else: A(f"v_mfma_f32_16x16x32_bf16 {d}, {wop(m,t,k)}, {xf}, {c}")
            if n == 0 and k + 3 < 16: rdm(k + 3)
    for i in range(4): A(f"v_cvt_pk_bf16_f32 v{AM+i}, v{AM+i}, v{AM+4+i}")
    A(f"ds_write_b128 v{vT16}, {v(AM,4)} offset:{L_KM}")
    A(f"v_cvt_pk_bf16_f32 v{AM+8}, v{AM+8}, v{AM+9}")
    A(f"v_cvt_pk_bf16_f32 v{AM+9}, v{AM+12}, v{AM+13}")
    A(f"ds_write_b64 v{vVW}, {v(AM+8,2)} offset:{L_VM}")
    KM, VMp, ONES, OO, LL = KF, KF+16, KF+24, AM, MF
    for i in range(4): A(f"v_mov_b32 v{ONES+i}, 0x3f803f80")
    A("s_waitcnt lgkmcnt(0)")
    A("s_barrier")
    for k in range(4): A(f"ds_read_b128 {v(KM+4*k,4)}, v{vL16} offset:{L_KM+1024*k}")
    for wp in range(2):
        for t in range(2):
            A(f"ds_read_b32 v{VMp+2*(2*wp+t)}, v{vVR} offset:{L_VM+512*wp+4*t}")
            A(f"v_mov_b32 v{VMp+2*(2*wp+t)+1}, 0")
    for k in range(4):
        A(f"s_waitcnt lgkmcnt({7-k})")
        A(f"v_mfma_f32_16x16x32_bf16 {v(S+8,4)}, {v(KM+4*k,4)}, {v(QF+4*k,4)}, {v(S+8,4) if k else 0}")
    A(f"v_max3_f32 v{t0}, v12, v{S+8}, v{S+9}")
    for sw in (32, 16):
        A(f"v_mov_b32 v{t1}, v{t0}")
        A(f"v_permlane{sw}_swap_b32 v{t0}, v{t1}")
        A(f"v_max_f32 v{t0}, v{t0}, v{t1}")
    A(f"v_mul_f32 v{t0}, s{sC}, v{t0}")
    for i in range(10): A(f"v_fma_f32 v{S+i}, v{S+i}, s{sC}, -v{t0}")
    for i in range(10): A(f"v_exp_f32 v{S+i}, v{S+i}")
    for i in range(4): A(f"v_cvt_pk_bf16_f32 v{S+i}, v{S+2*i}, v{S+2*i+1}")
    A(f"v_cvt_pk_bf16_f32 v{S+8}, v{S+8}, v{S+9}")
    A(f"v_mov_b32 v{S+9}, 0")
    A("s_waitcnt lgkmcnt(0)")
    A(f"v_mfma_f32_16x16x32_bf16 {v(LL,4)}, {v(ONES,4)}, {v(S,4)}, 0")
    for n in range(4): A(f"v_mfma_f32_16x16x32_bf16 {v(OO+4*n,4)}, {v(VF+4*n,4)}, {v(S,4)}, 0")
    A(f"v_mfma_f32_16x16x16_bf16 {v(LL,4)}, {v(ONES,2)}, {v(S+8,2)}, {v(LL,4)}")
    for n in range(4): A(f"v_mfma_f32_16x16x16_bf16 {v(OO+4*n,4)}, {v(VMp+2*n,2)}, {v(S+8,2)}, {v(OO+4*n,4)}")
    A(f"v_rcp_f32 v{t0}, v{LL}")
    A(f"s_lshl_b32 s{sA}, s{sSeg}, 18")
    A(f"s_add_u32 s{sA}, s{sA}, s{sOo}")
    for wp in range(2):
        for i in range(8): A(f"v_mul_f32 v{OO+8*wp+i}, v{OO+8*wp+i}, v{t0}")
        for i in range(4): A(f"v_cvt_pk_bf16_f32 v{OO+8*wp+i}, v{OO+8*wp+i}, v{OO+8*wp+4+i}")
        A(f"buffer_store_dwordx4 {v(OO+8*wp,4)}, v{vL16}, {s(rWS,4)}, s{sA} offen offset:{1024*wp} sc1")
    A("s_waitcnt vmcnt(0)")
    A("s_barrier")
    seg_signal(A, "o", sSeg, C_O, 10, 11)
    A(f"s_add_u32 s{sSeg}, s{sSeg}, {NR}")
    A(f"s_cmp_lt_u32 s{sSeg}, 64")
    A("s_cbranch_scc1 L_p2")
    A("s_branch L_end")

def orole(A):
    vWa, vWb, vXo, vRd = 5, 6, 7, 8
    sCs, sT_ = 28, 30
    A(f"""
    s_sub_u32 s{sTmp}, s{sI}, {M0}
    s_and_b32 s{sCs}, s{sTmp}, 15
    s_lshr_b32 s{sT_}, s{sTmp}, 4
    v_lshlrev_b32 v{vWa}, 13, v{vG}
    v_lshl_add_u32 v{vWa}, v{vC}, 2, v{vWa}
    s_lshl_b32 s{sTmp}, s{sW}, 20
    s_lshl_b32 s{sTmp2}, s{sCs}, 6
    s_add_u32 s{sTmp}, s{sTmp}, s{sTmp2}
    v_add_u32 v{vWa}, s{sTmp}, v{vWa}
    v_add_u32 v{vWb}, 4096, v{vWa}
    v_lshlrev_b32 v{vXo}, 12, v{vG}
    v_lshl_add_u32 v{vXo}, v{vC}, 2, v{vXo}
    s_lshl_b32 s{sTmp}, s{sW}, 10
    s_add_u32 s{sTmp}, s{sTmp}, s{sTmp2}
    v_add_u32 v{vXo}, s{sTmp}, v{vXo}
    s_lshl_b32 s{sTmp}, s{sW}, 2
    v_add_u32 v{vRd}, s{sTmp}, v{vL16}
    """)
    wait_dword(A, "moe", D_MOEDONE, 1, 10, 11, sleep=40)
    wstamp(A, 3)
    srd(A, rW, 86, 4 << 20)
    def issue8(b, half, Tt):
        ks = 2*b + half
        A(f"s_mov_b32 s{sTmp}, {ks*32768}")
        for j in range(8): A(f"buffer_load_dword v{Tt+j}, v{vWa if j < 4 else vWb}, {s(rW,4)}, s{sTmp} offen offset:{1024*(j&3)}")
    load_frags(A, 16, issue8, lambda b, half, t: ("a", 4*((2*b+half)*2 + t)), [16, 32, 48], 64)
    wstamp(A, 4)
    OF, D, XX, P = 128, 16, 24, 32
    A.label("L_o")
    A(f"""
    s_lshl_b32 s{sA}, s{sT_}, 14
    buffer_load_dword v{XX}, v{vXo}, {s(rX,4)}, s{sA} offen
    s_add_u32 s{sTmp}, s{sA}, {XB}
    buffer_load_dword v{XX+1}, v{vXo}, {s(rWS,4)}, s{sTmp} offen sc1
    s_lshr_b32 s{sPrev}, s{sT_}, 1
    s_lshl_b32 s{sPrev}, s{sPrev}, 8
    s_add_u32 s{sPrev}, s{sPrev}, {CNT}
    s_lshl_b32 s{sBq}, s{sT_}, 17
    s_lshl_b32 s{sTmp}, s{sW}, 15
    s_add_u32 s{sBq}, s{sBq}, s{sTmp}
    s_add_u32 s{sBq}, s{sBq}, {OX}
    """)
    wait_dword(A, "oc", C_O, 32, 10, 11, sleep=SLP[1], srdn=rWS, soff=f"s{sPrev}")
    wstamp(A, 6)
    for ks in range(32):
        if ks and ks % 4 == 0: A(f"s_add_u32 s{sBq}, s{sBq}, 4096")
        A(f"buffer_load_dwordx4 {v(OF+4*ks,4)}, v{vL16}, {s(rWS,4)}, s{sBq} offen offset:{1024*(ks&3)} sc1")
    for ks in range(32):
        A(f"s_waitcnt vmcnt({31-ks})")
        for t in range(2):
            A(f"v_mfma_f32_16x16x32_bf16 {v(D+4*t,4)}, {v(OF+4*ks,4)}, {a(4*(2*ks+t),4)}, {v(D+4*t,4) if ks else 0}")
    A(f"ds_write_b128 v{vT16}, {v(D,4)}")
    A(f"ds_write_b128 v{vT16}, {v(D+4,4)} offset:4096")
    A("s_waitcnt lgkmcnt(0)")
    A("s_barrier")
    for t in range(2):
        for w2 in range(4): A(f"ds_read_b32 v{P+4*t+w2}, v{vRd} offset:{4096*t+1024*w2}")
    unpack(A, XX+2, XX+3, XX); unpack(A, XX+4, XX+5, XX+1)
    A("s_waitcnt lgkmcnt(0)")
    A("s_barrier")
    for t in range(2):
        A(f"v_add_f32 v{P+4*t}, v{P+4*t}, v{P+4*t+1}")
        A(f"v_add_f32 v{P+4*t+2}, v{P+4*t+2}, v{P+4*t+3}")
        A(f"v_add_f32 v{P+4*t}, v{P+4*t}, v{P+4*t+2}")
    A(f"v_cvt_pk_bf16_f32 v{P+1}, v{P}, v{P+4}")
    unpack(A, P, P+4, P+1)
    A(f"v_add_f32 v{P}, v{P}, v{XX+2}")
    A(f"v_add_f32 v{P+4}, v{P+4}, v{XX+3}")
    A(f"v_cvt_pk_bf16_f32 v{P+1}, v{P}, v{P+4}")
    unpack(A, P, P+4, P+1)
    A(f"v_add_f32 v{P}, v{P}, v{XX+4}")
    A(f"v_add_f32 v{P+4}, v{P+4}, v{XX+5}")
    A(f"v_cvt_pk_bf16_f32 v{P+1}, v{P}, v{P+4}")
    A(f"buffer_store_dword v{P+1}, v{vXo}, {s(rOUT,4)}, s{sA} offen" + OSC[0])
    A(f"s_add_u32 s{sT_}, s{sT_}, {NG}")
    A(f"s_cmp_lt_u32 s{sT_}, 128")
    A("s_cbranch_scc1 L_o")
    A("s_branch L_end")

def mrole(A):
    sM, sI0, sI1 = 28, 29, 30
    vGa, vDa, vT4 = 5, 6, 7
    rU, rD = 52, 56
    A(f"""
    s_sub_u32 s{sM}, s{sI}, {M0}
    v_lshrrev_b32 v{vGa}, 2, v{vL16}
    s_mul_i32 s{sTmp}, s{sM}, 224
    s_mul_i32 s{sTmp2}, s{sW}, {128*3584}
    s_add_u32 s{sTmp}, s{sTmp}, s{sTmp2}
    v_add_u32 v{vGa}, s{sTmp}, v{vGa}
    v_lshlrev_b32 v{vT4}, 2, v0
    s_mul_i32 s{sTmp}, s{sM}, {112*1024}
    v_add_u32 v{vDa}, s{sTmp}, v{vT4}
    """)
    pf_wo(A, M0)
    srd(A, rW, 90, 512*3584); srd(A, rU, 92, 512*3584); srd(A, rD, 94, 1792*1024)
    wait_dword(A, "lnm", D_LN, 64, 10, 11, sleep=16)
    n = 0
    def throttle():
        nonlocal n
        n += 1
        if n % 16 == 0: A("s_waitcnt vmcnt(40)")
    for k in range(128):
        A(f"s_mov_b32 s{sTmp}, {k*3584}")
        A(f"buffer_load_dword v{128+k}, v{vGa}, {s(rW,4)}, s{sTmp} offen"); throttle()
        A(f"buffer_load_dword a{k}, v{vGa}, {s(rU,4)}, s{sTmp} offen"); throttle()
    for f in range(112):
        if f % 4 == 0: A(f"s_mov_b32 s{sTmp}, {f*1024}")
        A(f"buffer_load_dword a{128+f}, v{vDa}, {s(rD,4)}, s{sTmp} offen offset:{1024*(f&3)}"); throttle()
    K, Tm = 16, 24
    A(f"v_lshlrev_b32 v10, 5, v0")
    A(f"s_mov_b32 s{sTmp}, {RL}")
    A(f"buffer_load_dwordx4 {v(K,4)}, v10, {s(rWS,4)}, s{sTmp} offen sc1")
    A(f"buffer_load_dwordx4 {v(K+4,4)}, v10, {s(rWS,4)}, s{sTmp} offen offset:16 sc1")
    A(f"v_lshlrev_b32 v10, 3, v0")
    A(f"v_sub_u32 v10, 2047, v10")
    A("s_waitcnt vmcnt(0)")
    for e in range(8):
        A(f"v_ashrrev_i32 v11, 31, v{K+e}")
        A(f"v_or_b32 v11, 0x80000000, v11")
        A(f"v_xor_b32 v{K+e}, v{K+e}, v11")
        A(f"v_and_b32 v{K+e}, 0xffff0000, v{K+e}")
        A(f"v_subrev_u32 v11, {e}, v10")
        A(f"v_or_b32 v{K+e}, v{K+e}, v11")
    A(f"s_lshl_b32 s{sTmp}, s{sW}, 2")
    A(f"v_mov_b32 v13, s{sTmp}")
    A("v_mov_b32 v14, 0")
    for rnd, sk in enumerate((sI0, sI1)):
        A(f"v_max3_u32 v12, v{K}, v{K+1}, v{K+2}")
        A(f"v_max3_u32 v12, v12, v{K+3}, v{K+4}")
        A(f"v_max3_u32 v12, v12, v{K+5}, v{K+6}")
        A(f"v_max_u32 v12, v12, v{K+7}")
        allreduce(A, "v_max_u32", [12], [11])
        A(f"ds_write_b32 v13, v12 offset:{16*rnd}")
        A("s_waitcnt lgkmcnt(0)")
        A("s_barrier")
        A(f"ds_read_b128 {v(Tm,4)}, v14 offset:{16*rnd}")
        A("s_waitcnt lgkmcnt(0)")
        A(f"v_max3_u32 v12, v{Tm}, v{Tm+1}, v{Tm+2}")
        A(f"v_max_u32 v12, v12, v{Tm+3}")
        A(f"v_readfirstlane_b32 s{sk}, v12")
        if rnd == 0:
            for e in range(8):
                A(f"v_cmp_ne_u32 vcc, v12, v{K+e}")
                A(f"v_cndmask_b32 v{K+e}, 0, v{K+e}, vcc")
    for sk in (sI0, sI1):
        A(f"s_and_b32 s{sk}, s{sk}, 0x7ff")
        A(f"s_sub_u32 s{sk}, 2047, s{sk}")
    X0, X1, R0 = 16, 17, 18
    for sk, xr, rr in ((sI0, X0, R0), (sI1, X1, R0+1)):
        A(f"s_lshl_b32 s{sTmp}, s{sk}, 10")
        A(f"s_add_u32 s{sTmp}, s{sTmp}, {XN}")
        A(f"buffer_load_dword v{xr}, v{vT4}, {s(rWS,4)}, s{sTmp} offen sc1")
        A(f"s_lshl_b32 s{sTmp}, s{sk}, 2")
        A(f"s_add_u32 s{sTmp}, s{sTmp}, {RL}")
        A(f"buffer_load_dword v{rr}, v14, {s(rWS,4)}, s{sTmp} offen sc1")
    AC = 24
    for i in range(8): A(f"v_mov_b32 v{AC+i}, 0")
    A("s_waitcnt vmcnt(0)")
    U = 32
    for p in range(64):
        sx = 60 + 6*(p & 1)
        A(f"v_readlane_b32 s{sx}, v{X0}, {p}")
        A(f"v_readlane_b32 s{sx+1}, v{X1}, {p}")
        for u in range(2): A(f"v_accvgpr_read_b32 v{U+4+u}, a{2*p+u}")
        A(f"s_lshl_b32 s{sx+2}, s{sx}, 16"); A(f"s_lshl_b32 s{sx+3}, s{sx+1}, 16")
        A(f"s_and_b32 s{sx+4}, s{sx}, 0xffff0000"); A(f"s_and_b32 s{sx+5}, s{sx+1}, 0xffff0000")
        for u in range(2):
            for mat in range(2):
                unpack(A, U+2*mat, U+2*mat+1, (128+2*p+u) if mat == 0 else (U+4+u))
            for mat in range(2):
                for tok in range(2):
                    for col in range(2):
                        A(f"v_fmac_f32 v{AC+4*mat+2*tok+col}, s{sx+2+2*u+tok}, v{U+2*mat+col}")
    LR, LH = 64, 64 + 8192
    A(f"ds_write_b128 v{vT16}, {v(AC,4)} offset:{LR}")
    A(f"ds_write_b128 v{vT16}, {v(AC+4,4)} offset:{LR+4096}")
    A("s_waitcnt lgkmcnt(0)")
    A("s_barrier")
    Pp = 40
    for mat in range(2):
        for w2 in range(4): A(f"ds_read_b128 {v(Pp+16*mat+4*w2,4)}, v{vL16} offset:{LR+4096*mat+1024*w2}")
    A("s_waitcnt lgkmcnt(0)")
    for mat in range(2):
        for i in range(4):
            b = Pp + 16*mat + i
            A(f"v_add_f32 v{b}, v{b}, v{b+4}"); A(f"v_add_f32 v{b+8}, v{b+8}, v{b+12}"); A(f"v_add_f32 v{b}, v{b}, v{b+8}")
            rnd_bf(A, b)
    def sigmoid(dst, src):
        A(f"v_mul_f32 v{dst}, {f2u(-math.log2(math.e)):#x}, v{src}")
        A(f"v_exp_f32 v{dst}, v{dst}")
        A(f"v_add_f32 v{dst}, 1.0, v{dst}")
        A(f"v_rcp_f32 v{dst}, v{dst}")
    for i in range(4):
        sigmoid(Pp+4+i, Pp+i)
        A(f"v_mul_f32 v{Pp+i}, v{Pp+i}, v{Pp+4+i}")
        rnd_bf(A, Pp+i)
        A(f"v_mul_f32 v{Pp+i}, v{Pp+i}, v{Pp+16+i}")
        rnd_bf(A, Pp+i)
    A(f"ds_write_b128 v{vL16}, {v(Pp,4)} offset:{LH}")
    for i in range(4): A(f"v_mov_b32 v{AC+i}, 0")
    A("s_waitcnt lgkmcnt(0)")
    HB = 40
    for blk in range(7):
        for q in range(8): A(f"ds_read_b128 {v(HB+4*q,4)}, v14 offset:{LH+16*(8*blk+q)}")
        A("s_waitcnt lgkmcnt(0)")
        for q in range(8):
            for u in range(2):
                f = 2*(8*blk+q) + u
                A(f"v_accvgpr_read_b32 v{U+2}, a{128+f}")
                unpack(A, U, U+1, U+2)
                for tok in range(2):
                    for col in range(2):
                        A(f"v_fmac_f32 v{AC+2*tok+col}, v{HB+4*q+2*tok+u}, v{U+col}")
    A(f"s_lshl_b32 s{sTmp}, s{sM}, 12")
    A(f"s_add_u32 s{sTmp}, s{sTmp}, {MOEP}")
    A(f"buffer_store_dwordx4 {v(AC,4)}, v{vT16}, {s(rWS,4)}, s{sTmp} offen sc1")
    A("s_waitcnt vmcnt(0)")
    A("s_barrier")
    signal(A, "moe", lambda: A(f"v_mov_b32 v10, {D_MOE}\nv_mov_b32 v11, 1"), 10, 11, ret=True)
    A("s_waitcnt vmcnt(0)")
    A(f"s_cmp_lg_u32 s{sW}, 0")
    A("s_cbranch_scc1 L_m_w")
    A("s_mov_b64 exec, 1")
    A("ds_write_b32 v14, v11 offset:32")
    A("s_mov_b64 exec, -1")
    A.label("L_m_w")
    A("s_waitcnt lgkmcnt(0)")
    A("s_barrier")
    A("ds_read_b32 v11, v14 offset:32")
    A("s_waitcnt lgkmcnt(0)")
    A(f"v_readfirstlane_b32 s{sTmp}, v11")
    A(f"s_cmp_lg_u32 s{sTmp}, 15")
    A("s_cbranch_scc1 L_orole2")
    for m in range(16):
        A(f"s_mov_b32 s{sTmp}, {MOEP + 4096*m}")
        A(f"buffer_load_dwordx4 {v(40+4*m,4)}, v{vT16}, {s(rWS,4)}, s{sTmp} offen sc1")
    for tok in range(2):
        sigmoid(U+tok, R0+tok); rnd_bf(A, U+tok)
    A("s_waitcnt vmcnt(0)")
    for m in range(1, 16):
        for i in range(4): A(f"v_add_f32 v{40+i}, v{40+i}, v{40+4*m+i}")
    for tok, (sk, xr) in enumerate(((sI0, X0), (sI1, X1))):
        unpack(A, U+2, U+3, xr)
        for col in range(2):
            r = 40 + 2*tok + col
            rnd_bf(A, r)
            A(f"v_mul_f32 v{r}, v{r}, v{U+tok}")
            rnd_bf(A, r)
            A(f"v_add_f32 v{r}, v{r}, v{U+2+col}")
        A(f"v_cvt_pk_bf16_f32 v{48+tok}, v{40+2*tok}, v{41+2*tok}")
        A(f"s_lshl_b32 s{sTmp}, s{sk}, 10")
        A(f"s_add_u32 s{sTmp}, s{sTmp}, {XB}")
        A(f"buffer_store_dword v{48+tok}, v{vT4}, {s(rWS,4)}, s{sTmp} offen sc1")
    A("s_waitcnt vmcnt(0)")
    A("s_barrier")
    signal(A, "moed", lambda: A(f"v_mov_b32 v10, {D_MOEDONE}\nv_mov_b32 v11, 1"), 10, 11)
    A("s_branch L_orole2")

HEADER = open("cdna_kernels/" + NAME + ".s.ref").read().split("; Override launch geometry")[0] if __import__("os").path.exists("cdna_kernels/" + NAME + ".s.ref") else ""

def gen_full(**kw):
    A = Asm()
    WST[0] = kw.get("stamps") == 2
    for ln_ in HEADER.strip().split("\n"):
        if ln_: A.raw(ln_)
    A.raw(f"; @launch grid=(256,1,1) block=(256,1,1) lds=163840")
    A.raw('.amdgcn_target "amdgcn-amd-amdhsa--gfx950"')
    A.raw(".text")
    kernel_begin(A, NAME + "_kernel")
    A(f"""
    s_cmp_ge_u32 s2, 256
    s_cbranch_scc1 L_end0
    {"s_memrealtime s[90:91]" if kw.get("stamps") else ""}
    s_load_dwordx4 s[4:7], s[0:1], 104
    s_getreg_b32 s{sX}, hwreg(HW_REG_XCC_ID)
    s_and_b32 s{sX}, s{sX}, 7
    v_lshrrev_b32 v1, 6, v0
    v_readfirstlane_b32 s{sW}, v1
    s_waitcnt lgkmcnt(0)
    """)
    srd(A, rWS, 6, T.WS_BYTES)
    srd(A, rDBG, 4, 256)
    T.role_select(A, "L_worker", force=kw.pop("force", None))
    WPF[0] = kw.pop("wpf", False)
    OPF[0] = kw.pop("opf", True)
    SLP[:] = kw.pop("slp", [3, 3])
    OPN[0] = kw.pop("opn", 3)
    OSC[0] = kw.pop("osc", "")
    noo = kw.pop("noo", False)
    NOP2[0] = kw.pop("nop2", False)
    PRE1[0] = kw.pop("pre1", True)
    T.team(A, kvchk=True, **kw)
    A.label("L_end0")
    A("s_endpgm")
    A.label("L_worker")
    common(A)
    A(f"s_cmp_ge_u32 s{sI}, {O0}")
    A("s_cbranch_scc1 L_orole")
    A(f"s_cmp_ge_u32 s{sI}, {M0}")
    A("s_cbranch_scc1 L_mrole")
    hrole(A)
    A.label("L_orole")
    ln(A)
    A.label("L_orole2")
    if noo: A("s_branch L_end")
    orole(A)
    A.label("L_end")
    A("s_waitcnt vmcnt(0)")
    if WST[0]:
        wstamp(A, 7)
        A("s_mov_b64 exec, 1")
        for i, r in enumerate([72,73,74,75,98,99,100,101]): A(f"v_mov_b32 v{16+i}, s{r}")
        A(f"s_lshl_b32 s{sTmp}, s{sH}, 5")
        A(f"s_add_u32 s{sTmp}, s{sTmp}, {T.RES + 32768}")
        A("v_mov_b32 v0, 0")
        A(f"buffer_store_dwordx4 v[16:19], v0, {s(rWS,4)}, s{sTmp} offen")
        A(f"buffer_store_dwordx4 v[20:23], v0, {s(rWS,4)}, s{sTmp} offen offset:16")
        A("s_waitcnt vmcnt(0)")
    A("s_endpgm")
    A.label("L_mrole")
    mrole(A)
    A.raw('.section .rodata,"a"')
    A.raw(descriptor(NAME + "_kernel", 512, 102, 256))
    T.STAMP_NAMES = A.stamp_names
    return A.text()

if __name__ == "__main__":
    txt = gen_full()
    open("full.s", "w").write(txt)
    open("cdna_kernels/" + NAME + ".s", "w").write(txt)
```

```python
from asmlib import *

H2 = 0
H1 = 1 << 20
RES = (1 << 20) + (256 << 10)
XN = 2 << 20
KV = 16 << 20
QX = 50 << 20
MEMG = (1 << 20) + (512 << 10)
WS_BYTES = 256 << 20

L_MEM = 0; L_KX = 8192; L_VX = 16384; L_Q = 24576; L_K = 26880; L_O = 29184; L_ST = 31744; L_W = 32768
RS = 288; RSO = 320

rWS, rDBG, rW = 8, 12, 16
sX, sW, sT, sH = 20, 21, 22, 23
sStep, sTmp, sG, sTmp2 = 24, 25, 26, 27
sO1, sO1b, sO2, sO2b = 28, 29, 30, 31
sRd2, sPubO, sRst2, sRst1 = 32, 33, 34, 35
sKV, sMG, sC, sPerm0, sPerm1 = 36, 37, 38, 39, 40
sB = 44
sRetA, sRetB, sRet2 = 48, 49, 50
sMK, sMV, sRd, sPF = 41, 42, 100, 101
sSt = 56
SPIN = 400000
D_WIN, D_INIT, D_LN, D_MOE, D_MOEDONE = 4, 36, 68, 100, 132
CNT = (1 << 20) + (128 << 10)
C_KV, C_O = 0, 128
FLG = (1 << 20) + (64 << 10)
sFl, sFlS, sK = 62, 63, 64
sCm = 66
sRdy = 51

vIdx, vL16, vT16, vT16b, vT16c, vM1, vM2, vM3, vSt2, vQW, vQR, vOW, vOR = range(1, 14)
vT0, vT1, vPD = 0, 14, 15
MEMA = 16
ACCA = 48
ACCB = 56
STG = 64
POOL = 80
ACCV = 112
NEG = 120
S = MEMA + 4
VMR = 124

LDSF = [("q",1,0),("k",0,0),
        ("q",0,4),("k",1,4),
        ("k",0,2),("q",1,3)]
LDSF += [("o", i >> 1, i & 1) for i in (0, 1, 2, 4, 6, 8, 10, 12, 13, 15, 14)]
ALLF = [(m,t,sl) for m in "qkv" for sl in range(8) for t in range(2)] + [("o",t,k) for k in range(2) for t in range(8)]
HOME = {}
_n = 0
for f in ALLF:
    if f in LDSF: HOME[f] = ("l", LDSF.index(f))
    else:
        HOME[f] = ("a", 8*_n) if _n < 32 else ("v", 128 + 8*(_n-32)); _n += 1
assert _n == 47
KST = 248

def lds_frag_addr(idx, part):
    off = L_W + (2*idx + part) * 4096
    if idx == 16: off = L_VX + part * 4096
    if off < 65536: return vT16, off
    if off < 131072: return vT16b, off - 65536
    return vT16c, off - 131072

class Cnt:
    def __init__(self, A, name, cap): self.A, self.name, self.cap, self.n = A, name, cap, 0
    def issue(self): self.n += 1; return self.n
    def wait(self, tok):
        k = self.n - tok
        if k <= self.cap: self.A(f"s_waitcnt {self.name}({k})")
        else: self.A(f"s_waitcnt {self.name}({self.cap})")

def role_select(A, lab_worker, prefetch=False, force=None):
    if prefetch:
        A(f"""
        s_cmp_lt_u32 s{sW}, 2
        s_cbranch_scc1 L_nopf
        s_lshr_b32 s{sTmp}, s2, 6
        s_lshl_b32 s{sTmp}, s{sTmp}, 3
        s_add_u32 s{sTmp}, s{sTmp}, 16
        s_load_dwordx2 s[80:81], s[0:1], s{sTmp}
        s_and_b32 s{sTmp}, s2, 63
        s_lshl_b32 s{sTmp}, s{sTmp}, 16
        v_and_b32 v3, 127, v0
        v_lshlrev_b32 v3, 4, v3
        s_waitcnt lgkmcnt(0)
        """)
        srd(A, rW, 80, 4 << 20)
        for i in range(32):
            if i % 2 == 0 and i: A(f"s_add_u32 s{sTmp}, s{sTmp}, 4096")
            A(f"buffer_load_dwordx4 v[{128+4*(i&7)}:{131+4*(i&7)}], v3, {s(rW,4)}, s{sTmp} offen offset:{2048*(i&1)}")
        A.label("L_nopf")
    A(f"""
    s_cmp_lg_u32 s{sW}, 0
    s_cbranch_scc1 L_role_wait
    s_mov_b64 exec, 1
    v_mov_b32 v3, 1
    s_lshl_b32 s{sTmp}, s{sX}, 5
    v_mov_b32 v4, s{sTmp}
    buffer_atomic_add v3, v4, {s(rDBG,4)}, 0 offen sc0
    s_waitcnt vmcnt(0)
    v_readfirstlane_b32 s{sT}, v3
    s_add_u32 s{sTmp}, s{sX}, 1
    s_mov_b32 s{sH}, 0xffff
    s_cmp_gt_u32 s{sT}, 31
    s_cbranch_scc1 L_role_done
    v_mov_b32 v4, 0
    s_cmp_lg_u32 s{sT}, 31
    s_cbranch_scc1 L_poll_win
    {f"s_cmp_lg_u32 s{sX}, {force}" if force is not None else ""}
    {"s_cbranch_scc1 L_poll_win" if force is not None else ""}
    s_and_b32 s{sG}, s{sX}, 3
    s_cbranch_scc1 L_bid
    s_sleep 48
    L_bid:
    v_mov_b32 v6, s{sTmp}
    v_mov_b32 v7, 0
    buffer_atomic_cmpswap v[6:7], v4, {s(rDBG,4)}, 0 offen offset:{D_WIN}
    s_waitcnt vmcnt(0)
    L_poll_win:
    s_mov_b32 s{sG}, 0
    L_poll_win2:
    buffer_load_dword v3, v4, {s(rDBG,4)}, 0 offen offset:{D_WIN} sc1
    s_waitcnt vmcnt(0)
    v_readfirstlane_b32 s{sStep}, v3
    s_add_u32 s{sG}, s{sG}, 1
    s_cmp_gt_u32 s{sG}, {SPIN}
    s_cbranch_scc1 L_role_done
    s_cmp_eq_u32 s{sStep}, 0
    s_cbranch_scc1 L_poll_win2
    s_sub_u32 s{sStep}, s{sStep}, 1
    s_xor_b32 s{sStep}, s{sStep}, s{sX}
    s_sub_u32 s{sH}, s{sStep}, 3
    s_add_u32 s{sTmp}, s{sStep}, 4
    s_cmp_ge_u32 s{sStep}, 4
    s_cselect_b32 s{sH}, s{sH}, s{sTmp}
    s_cmp_eq_u32 s{sStep}, 0
    s_cselect_b32 s{sH}, 0, s{sH}
    s_lshl_b32 s{sH}, s{sH}, 5
    s_add_u32 s{sH}, s{sH}, s{sT}
    L_role_done:
    v_mov_b32 v3, s{sH}
    v_mov_b32 v4, 0
    ds_write_b32 v4, v3
    s_mov_b64 exec, -1
    L_role_wait:
    s_waitcnt lgkmcnt(0)
    s_barrier
    v_mov_b32 v4, 0
    ds_read_b32 v3, v4
    s_waitcnt lgkmcnt(0)
    v_readfirstlane_b32 s{sH}, v3
    s_barrier
    s_cmp_gt_u32 s{sH}, 31
    s_cbranch_scc1 {lab_worker}
    """)

def team(A, nsteps=64, stamps=False, dA=16, gapB=8, nsets=3, dR=(16,0,20,6), n2=2, dAA=0, bar1=1, bar2=1, pfd=0, usepk=True, rt=False, off="pf", cs=((3,6),(5,6)), kvchk=False, trace=False, gapAB=8, na=2, d3r=2, joint=True, bonly=False, fsl=(), fnop=3, cpre=0, fill_at=4, kfasync=True, lead=0, ks=28, linw=0, dmaw=True, wo_at=(1, 2, 3, 5)):
    nst = [0]
    names = []
    def stamp(name=""):
        if stamps != 1: return
        k = nst[0]; nst[0] += 1
        assert k < 23
        names.append(name)
        A(f"s_mem{'real' if rt else ''}time s[{52+2*k}:{53+2*k}]")
    A.stamp_names = names
    if stamps == 2: A("s_memrealtime s[92:93]")
    vC, vG, vLn = 16, 17, 18
    x0, x1, x2, x3 = 19, 20, 21, 22
    vWq, vWq2, vWv, vWv2, vWo = 23, 24, 25, 26, 27
    vPubT = 28
    A(f"""
    s_load_dwordx4 s[80:83], s[0:1], 16
    s_load_dwordx4 s[84:87], s[0:1], 32
    s_load_dwordx2 s[88:89], s[0:1], 8
    v_and_b32 v{vLn}, 63, v0
    v_and_b32 v{vC}, 15, v0
    v_lshrrev_b32 v{vG}, 4, v{vLn}
    v_lshlrev_b32 v{vL16}, 4, v{vLn}
    v_lshlrev_b32 v{vT16}, 4, v0
    v_add_u32 v{vT16b}, 0x10000, v{vT16}
    v_add_u32 v{vT16c}, 0x20000, v{vT16}
    v_xor_b32 v{vM1}, 1024, v{vT16}
    v_xor_b32 v{vM2}, 2048, v{vT16}
    v_xor_b32 v{vM3}, 3072, v{vT16}
    v_and_b32 v{x0}, 2, v{vC}
    v_cmp_ne_u32 vcc, 0, v{x0}
    v_mov_b32 v{x1}, 0x4444
    v_mov_b32 v{x2}, 0xeeee
    v_cndmask_b32 v{vIdx}, v{x1}, v{x2}, vcc
    ; row(c) = 2*(c>>2) + (c&1)
    v_lshrrev_b32 v{x1}, 2, v{vC}
    v_and_b32 v{x2}, 1, v{vC}
    v_lshl_add_u32 v{x1}, v{x1}, 1, v{x2}
    v_mul_u32_u24 v{x3}, {RSO}, v{x1}
    v_mul_u32_u24 v{x1}, {RS}, v{x1}
    v_lshl_add_u32 v{vQR}, v{vG}, 4, v{x1}
    s_lshl_b32 s{sTmp}, s{sW}, 6
    v_lshl_add_u32 v{vOW}, v{vG}, 4, v{x3}
    v_add_u32 v{vOW}, s{sTmp}, v{vOW}
    v_lshl_add_u32 v{vOR}, v{vG}, 5, v{x3}
    v_lshl_add_u32 v{vOR}, v{x0}, 3, v{vOR}
    v_mul_u32_u24 v{x1}, {2*RS}, v{vG}
    v_lshl_add_u32 v{x1}, v{vC}, 2, v{x1}
    v_add_u32 v{vQW}, s{sTmp}, v{x1}
    ; vSt2 = (8w + c>>1)*4096 + (g>>1)*2048 + h*64 + (2(g&1) + (c&1))*16
    v_lshrrev_b32 v{x1}, 1, v{vC}
    s_lshl_b32 s{sTmp}, s{sW}, 3
    v_add_u32 v{x1}, s{sTmp}, v{x1}
    v_lshlrev_b32 v{x1}, 12, v{x1}
    v_lshrrev_b32 v{x3}, 1, v{vG}
    v_lshl_add_u32 v{x1}, v{x3}, 11, v{x1}
    v_and_b32 v{x0}, 1, v{vG}
    v_lshl_add_u32 v{x1}, v{x0}, 5, v{x1}
    v_lshl_add_u32 v{x1}, v{x2}, 4, v{x1}
    s_lshl_b32 s{sTmp}, s{sH}, 6
    v_add_u32 v{vSt2}, s{sTmp}, v{x1}
    v_bfe_u32 v{x1}, v{vC}, 1, 1
    s_and_b32 s{sTmp}, s{sW}, 2
    v_add_u32 v{x1}, s{sTmp}, v{x1}
    v_lshl_add_u32 v30, v{x1}, 2, v{x3}
    v_lshlrev_b32 v30, 4, v30
    v_lshl_add_u32 v30, v{x2}, 3, v30
    v_lshl_add_u32 v30, v{x0}, 2, v30
    s_lshr_b32 s{sTmp}, s{sH}, 1
    s_lshl_b32 s{sTmp}, s{sTmp}, 8
    s_and_b32 s{sTmp2}, s{sH}, 1
    s_lshl_b32 s{sTmp2}, s{sTmp2}, 5
    s_add_u32 s{sTmp}, s{sTmp}, s{sTmp2}
    v_add_u32 v30, s{sTmp}, v30
    v_cmp_gt_u32 vcc, 4, v{vC}
    v_mov_b32 v{vPubT}, 0x7f000000
    v_cndmask_b32 v{vPubT}, v{vPubT}, v30, vcc
    v_mov_b32 v{vT1}, v{vPubT}
    v_lshl_add_u32 v{x1}, v{x1}, 1, v{x3}
    v_lshlrev_b32 v{x1}, 10, v{x1}
    v_lshl_add_u32 v{x1}, v{x2}, 4, v{x1}
    v_lshl_add_u32 v{x1}, v{x0}, 2, v{x1}
    s_lshl_b32 s{sTmp}, s{sH}, 5
    v_add_u32 v29, s{sTmp}, v{x1}
    v_lshlrev_b32 v{x2}, 4, v{x2}
    v_mov_b32 v{x3}, 0x3f80
    v_lshlrev_b32 v{x3}, v{x2}, v{x3}
    v_lshrrev_b32 v{x2}, 2, v{vC}
    """)
    for r in range(4):
        A(f"v_cmp_eq_u32 vcc, {r}, v{x2}")
        A(f"v_cndmask_b32 v{32+r}, 0, v{x3}, vcc")
    A(f"ds_write_b128 v{vL16}, v[32:35] offset:{L_ST}")
    A(f"""
    v_lshrrev_b32 v{x0}, 1, v{vG}
    v_and_b32 v{x1}, 1, v{vG}
    v_lshlrev_b32 v{x2}, 18, v{x0}
    v_lshl_add_u32 v{x2}, v{x1}, 16, v{x2}
    s_lshl_b32 s{sTmp}, s{sH}, 8
    s_lshl_b32 s{sTmp2}, s{sW}, 6
    s_add_u32 s{sTmp}, s{sTmp}, s{sTmp2}
    v_add_u32 v{x2}, s{sTmp}, v{x2}
    v_lshl_add_u32 v{vWq}, v{vC}, 2, v{x2}
    v_add_u32 v{vWq2}, 0x2000, v{vWq}
    ; Wo: (16(g>>1) + 4(g&1))*1024 + h*131072 + 256w + 16c
    v_lshlrev_b32 v{x2}, 12, v{x1}
    v_lshl_add_u32 v{x2}, v{x0}, 14, v{x2}
    v_lshl_add_u32 v{x2}, v{vC}, 4, v{x2}
    s_lshl_b32 s{sTmp}, s{sH}, 17
    s_lshl_b32 s{sTmp2}, s{sW}, 8
    s_add_u32 s{sTmp}, s{sTmp}, s{sTmp2}
    v_add_u32 v{vWo}, s{sTmp}, v{x2}
    s_mov_b32 s{sPerm0}, 0x05040100
    s_mov_b32 s{sPerm1}, 0x07060302
    v_lshrrev_b32 v{vWv}, 4, v0
    v_lshlrev_b32 v{vWv}, 13, v{vWv}
    v_lshl_add_u32 v{vWv}, v{vC}, 4, v{vWv}
    s_lshl_b32 s{sTmp}, s{sH}, 8
    v_add_u32 v{vWv}, s{sTmp}, v{vWv}
    """)
    for i in range(4):
        A(f"s_xor_b32 s{sB+i}, s{sW}, {i}")
        A(f"s_lshl_b32 s{sB+i}, s{sB+i}, 20")
    NG_ = 112
    for i in range(4): A(f"v_mov_b32 v{NG_+i}, -1")
    A(f"s_lshl_b32 s{sRst2}, s{sH}, 12")
    A(f"s_and_b32 s{sPubO}, s{sW}, 1")
    A(f"s_lshl_b32 s{sTmp2}, s{sPubO}, 3")
    A(f"s_lshl_b32 s{sPubO}, s{sPubO}, 12")
    A(f"s_add_u32 s{sMG}, s{sPubO}, {MEMG}")
    A(f"s_add_u32 s{sPubO}, s{sPubO}, {H1}")
    A("s_waitcnt lgkmcnt(0)")
    srd(A, rW, 88, 8192)
    A(f"buffer_load_dword v{vPD}, v29, {s(rW,4)}, s{sTmp2} offen")
    def fills():
        for sl in range(2):
            for x in range(2):
                A(f"s_add_u32 s{sTmp}, s{sRst2}, {H2 + sl*(256<<10) + x*(128<<10)}")
                A(f"buffer_store_dwordx4 {v(NG_,4)}, v{vT16}, {s(rWS,4)}, s{sTmp} offen"); vm.issue()
        A(f"s_lshl_b32 s{sTmp2}, s{sH}, 14")
        for i in range(4):
            A(f"s_add_u32 s{sTmp}, s{sTmp2}, {MEMG + i*4096}")
            A(f"buffer_store_dwordx4 {v(NG_,4)}, v{vT16}, {s(rWS,4)}, s{sTmp} offen sc1"); vm.issue()
        for sl in range(1, 4):
            A(f"s_add_u32 s{sTmp}, s{sPubO}, {sl*8192}")
            A(f"buffer_store_dword v{NG_}, v{vPubT}, {s(rWS,4)}, s{sTmp} offen"); vm.issue()
        A(f"v_min_u32 v{vPD}, 0xfffffffe, v{vPD}")
        A(f"buffer_store_dword v{vPD}, v{vPubT}, {s(rWS,4)}, s{sPubO} offen"); vm.issue()
        if not fsl: return
        A(f"s_lshr_b32 s{sFl}, s{sW}, 1")
        A(f"s_mul_i32 s{sFl}, s{sFl}, 1280")
        A(f"s_add_u32 s{sFl}, s{sFl}, {FLG}")
        A(f"s_bitcmp1_b32 s{sW}, 0")
        A(f"s_cselect_b32 s{sFl}, s{sFl}, 0x7f000000")
        A(f"s_add_u32 s{sFlS}, s{sH}, {FLG}")
        A(f"s_cmp_eq_u32 s{sW}, 0")
        A(f"s_cselect_b32 s{sFlS}, s{sFlS}, 0x7f000000")
        A(f"v_lshlrev_b32 v31, 4, v{vL16}")
        A("s_mov_b64 exec, 0x3ff")
        A(f"buffer_store_byte v{NG_}, v31, {s(rWS,4)}, s{sFlS} offen"); vm.issue()
        A("s_mov_b64 exec, -1")
    def arrive():
        A("s_barrier")
        A(f"""
        s_cmp_lg_u32 s{sW}, 0
        s_cbranch_scc1 L_t_arrived
        s_mov_b64 exec, 1
        v_mov_b32 v{NG_}, 1
        v_mov_b32 v{NG_+1}, 0
        buffer_atomic_add v{NG_}, v{NG_+1}, {s(rDBG,4)}, 0 offen offset:{D_INIT}
        s_mov_b64 exec, -1
        L_t_arrived:
        """)
    TB = [32, 48, 64, 80]
    PT = 96
    vm = Cnt(A, "vmcnt", 63)
    batches = []
    ob = [("o", k, bp) for k in range(2) for bp in range(4)]
    for mi, m in enumerate("qkv"):
        for sl in range(8):
            batches.append((m, sl))
            if (8*mi + sl) % 3 == 0: batches.append(ob.pop(0))
    TB = [32, 48, 64, 80, 116 - 4]
    rWo = 52
    srd(A, rWo, 86, 4 << 20)
    def issue(bi):
        b = batches[bi]; T = TB[bi % 4]
        if b[0] != "o":
            m, sl = b
            if sl == 0: srd(A, rW, {"q": 80, "k": 82, "v": 84}[m], 4 << 20)
            va, vb = vWq, vWq2
            if linw == 1:
                for j in range(4):
                    A(f"s_lshl_b32 s{sTmp}, s{sH}, 17")
                    A(f"s_add_u32 s{sTmp}, s{sTmp}, {sl*16384 + j*4096}")
                    A(f"buffer_load_dwordx4 {v(T+4*j,4)}, v{vT16}, {s(rW,4)}, s{sTmp} offen"); tok = vm.issue()
                return tok
            if linw == 2:
                for j in range(4):
                    A(f"s_mov_b32 s{sTmp}, {(sl*64 + j*16)*8192}")
                    A(f"buffer_load_dwordx4 {v(T+4*j,4)}, v{vWv}, {s(rW,4)}, s{sTmp} offen"); tok = vm.issue()
                return tok
            for be in range(8):
                row = 64*(be >> 2) + 16*(be & 1) + 4*(sl >> 2) + 2*((be >> 1) & 1)
                A(f"s_add_u32 s{sTmp}, s{sB+(sl&3)}, {row*8192}")
                A(f"buffer_load_dword v{T+2*be}, v{va}, {s(rW,4)}, s{sTmp} offen"); vm.issue()
                A(f"buffer_load_dword v{T+2*be+1}, v{vb}, {s(rW,4)}, s{sTmp} offen"); tok = vm.issue()
        else:
            _, k, bp = b
            for j in range(2):
                be = 2*bp + j
                row = 64*k + 32*(be >> 2) + 8*(be & 1) + 2*((be >> 1) & 1)
                A(f"s_mov_b32 s{sTmp}, {row*1024}")
                A(f"buffer_load_dwordx4 {v(T+8*j,4)}, v{vWo}, {s(rWo,4)}, s{sTmp} offen"); vm.issue()
                A(f"buffer_load_dwordx4 {v(T+8*j+4,4)}, v{vWo}, {s(rWo,4)}, s{sTmp} offen offset:1024"); tok = vm.issue()
        return tok
    def put(f, be, lo, hi, sel, tmp):
        kind, base = HOME[f]
        if kind == "v":
            A(f"v_perm_b32 v{base+be}, v{hi}, v{lo}, s{sel}")
        else:
            A(f"v_perm_b32 v{tmp}, v{hi}, v{lo}, s{sel}")
            if kind == "a": A(f"v_accvgpr_write_b32 a{base+be}, v{tmp}")
    def consume(bi):
        b = batches[bi]; T = TB[bi % 4]
        if b[0] != "o":
            m, sl = b
            for t in range(2):
                f = (m, t, sl)
                for be in range(8):
                    put(f, be, T+2*be, T+2*be+1, sPerm1 if t else sPerm0, PT + 8*t + be)
                if HOME[f][0] == "l":
                    for p in range(2):
                        ar, off = lds_frag_addr(HOME[f][1], p)
                        A(f"ds_write_b128 v{ar}, {v(PT+8*t+4*p,4)} offset:{off}")
            A("s_waitcnt lgkmcnt(0)")
        else:
            _, k, bp = b
            for t in range(8):
                f = ("o", t, k)
                for j in range(2):
                    be = 2*bp + j
                    put(f, be, T+8*j+(t >> 1), T+8*j+4+(t >> 1), sPerm1 if t & 1 else sPerm0, PT + 2*t + j)
                if HOME[f][0] == "l":
                    ar, off = lds_frag_addr(HOME[f][1], bp >> 1)
                    A(f"ds_write_b64 v{ar}, {v(PT+2*t,2)} offset:{off + 8*(bp & 1)}")
            A("s_waitcnt lgkmcnt(0)")
    toks = {}
    DEPTH = 4
    def flags1():
        A("v_mov_b32 v30, 0")
        A(f"buffer_load_dword v29, v30, {s(rDBG,4)}, 0 offen offset:{D_LN} sc1"); vm.issue()
        A(f"buffer_load_dword v31, v30, {s(rDBG,4)}, 0 offen offset:{D_INIT} sc1"); vm.issue()
    def flags2():
        A("v_readfirstlane_b32 s60, v29")
        A("v_readfirstlane_b32 s61, v31")
        A(f"v_lshlrev_b32 v30, 4, v{vL16}")
        A(f"s_mov_b32 s{sTmp}, {CNT + C_KV}")
        A(f"buffer_load_dword v29, v30, {s(rWS,4)}, s{sTmp} offen sc1"); vm.issue()
    if not dmaw:
        for bi in range(len(batches) + DEPTH):
            if bi >= DEPTH:
                vm.wait(toks[bi - DEPTH]); consume(bi - DEPTH)
            if bi == len(batches) - 5: flags1()
            if bi == len(batches) - 1: flags2()
            if bi == fill_at: fills()
            if bi == fill_at + DEPTH: arrive()
            if bi < len(batches): toks[bi] = issue(bi)
    else:
        STGB = L_W + 65536
        RA = 116
        RT = 120
        sM0w = 56
        A(f"""
        v_lshlrev_b32 v{vWv}, 13, v{vG}
        v_lshl_add_u32 v{vWv}, v{vC}, 4, v{vWv}
        s_lshl_b32 s{sTmp}, s{sH}, 8
        s_lshl_b32 s{sTmp2}, s{sW}, 20
        s_add_u32 s{sTmp}, s{sTmp}, s{sTmp2}
        v_add_u32 v{vWv}, s{sTmp}, v{vWv}
        v_lshlrev_b32 v{x0}, 10, v{vG}
        v_lshl_add_u32 v{x0}, v{vC}, 2, v{x0}
        s_lshl_b32 s{sTmp}, s{sW}, 6
        s_add_u32 s{sTmp}, s{sTmp}, {STGB}
        v_add_u32 v{x0}, s{sTmp}, v{x0}
        s_lshl_b32 s{sM0w}, s{sW}, 12
        s_add_u32 s{sM0w}, s{sM0w}, {STGB}
        """)
        for i in range(4):
            A(f"s_lshr_b32 s{sTmp}, s{sB+i}, 8")
            A(f"v_add_u32 v{RA+i}, s{sTmp}, v{x0}")
        chunks = [(m, b2, x, b0) for m in "qkv" for x in range(2) for b2 in range(2) for b0 in range(2)]
        def cissue(c):
            m, b2, x, b0 = chunks[c]
            if c % 8 == 0: srd(A, rW, {"q": 80, "k": 82, "v": 84}[m], 4 << 20)
            for g in range(4):
                A(f"s_add_u32 m0, s{sM0w}, {(c % 4)*16384 + g*1024}")
                A(f"s_mov_b32 s{sTmp}, {(64*b2 + 16*b0 + 4*x + 32*(g >> 1) + 8*(g & 1))*8192}")
                A(f"buffer_load_dwordx4 v{vWv}, {s(rW,4)}, s{sTmp} offen lds"); tok = vm.issue()
            return tok
        def cconsume(c):
            m, b2, x, b0 = chunks[c]
            for sp in range(4):
                for b1 in range(2):
                    dst = (PT if sp < 2 else RT - 8) + 4*sp + 2*b1
                    A(f"ds_read2st64_b32 {v(dst,2)}, v{RA+sp} offset0:{(c % 4)*64 + 2*b1} offset1:{(c % 4)*64 + 2*b1 + 1}")
            for sp in range(4):
                A(f"s_waitcnt lgkmcnt({6-2*sp})") if not wrote[0] else A("s_waitcnt lgkmcnt(0)")
                for b1 in range(2):
                    lo = (PT if sp < 2 else RT - 8) + 4*sp + 2*b1
                    be = 4*b2 + 2*b1 + b0
                    for t in range(2):
                        f = (m, t, 4*x + sp); tmp = PT + 8 + 2*b1 + t + 4*(sp & 1)
                        put(f, be, lo, lo+1, sPerm1 if t else sPerm0, tmp)
                        if HOME[f][0] == "l":
                            ar, off = lds_frag_addr(HOME[f][1], be >> 2)
                            A(f"ds_write_b32 v{ar}, v{tmp} offset:{off + 4*(be & 3)}"); wrote[0] = True
            wrote[0] = False
        wrote = [False]
        obs = [i for i, b in enumerate(batches) if b[0] == "o"]
        batches[:] = [batches[i] for i in obs]
        ct = {}
        for c in range(3): ct[c] = cissue(c)
        for c in range(24):
            vm.wait(ct[c])
            A("s_waitcnt lgkmcnt(0)")
            A("s_barrier")
            if c == 1: fills()
            if c == 4: arrive()
            if c + 3 < 24: ct[c+3] = cissue(c + 3)
            if c in wo_at: toks[wo_at.index(c)] = issue(wo_at.index(c))
            if c == 23: flags1()
            cconsume(c)
        A("s_waitcnt lgkmcnt(0)")
        A("s_barrier")
        for bi in range(8):
            vm.wait(toks[bi]); consume(bi)
            if bi == 4: flags2()
            if bi + 4 < 8: toks[bi+4] = issue(bi + 4)
        A("s_waitcnt vmcnt(0)")
    if stamps == 2: A("s_memrealtime s[94:95]")
    A(f"s_lshl_b32 s{sKV}, s{sH}, 14")
    A(f"s_lshl_b32 s{sTmp}, s{sW}, 11")
    A(f"s_add_u32 s{sKV}, s{sKV}, s{sTmp}")
    A(f"s_add_u32 s{sKV}, s{sKV}, {KV}")
    A(f"s_add_u32 s{sMK}, s{sTmp}, {L_KX}")
    A(f"s_add_u32 s{sMV}, s{sTmp}, {L_VX}")
    A(f"s_lshl_b32 s{sMV+1}, s{sH}, 14")
    A(f"s_add_u32 s{sMV+1}, s{sMV+1}, {KV + 8192}")
    A(f"s_add_u32 s{sPF}, s{sTmp}, {pfd*32*16384}")
    def dma(which, par, j):
        if j == 0:
            A(f"s_mov_b32 m0, s{sMK if which == 'k' else sMV + par}")
            if which == "v": A(f"s_add_u32 s{sTmp}, s{sKV}, 8192")
        A(f"buffer_load_dwordx4 v{vL16}, {s(rWS,4)}, s{sKV if which == 'k' else sTmp} offen offset:{1024*j} sc1 lds")
    def kv_wait(tag, ta, tb, need):
        A(f"""
        L_kvw{tag}:
        v_lshlrev_b32 v{ta}, 4, v{vL16}
        s_mov_b32 s{sTmp}, {CNT + C_KV}
        buffer_load_dword v{tb}, v{ta}, {s(rWS,4)}, s{sTmp} offen sc1
        s_waitcnt vmcnt(0)
        v_cmp_eq_u32 vcc, 32, v{tb}
        s_ff0_i32_b64 s{sRdy}, vcc
        s_add_u32 s{sG}, s{sG}, 1
        s_cmp_gt_u32 s{sG}, {SPIN}
        s_cbranch_scc1 L_team_end
        s_cmp_gt_u32 s{sRdy}, {need}
        s_cbranch_scc0 L_kvw{tag}
        """)
    A(f"s_mov_b32 s{sG}, 0")
    if kvchk:
        A(f"""
        v_cmp_eq_u32 vcc, 32, v29
        s_ff0_i32_b64 s{sRdy}, vcc
        s_cmp_ge_u32 s60, 64
        s_cselect_b32 s{sRdy}, s{sRdy}, 0
        s_cmp_lg_u32 s{sRdy}, 0
        s_cbranch_scc1 L_kv0ok
        v_mov_b32 v41, 0
        L_lnw:
        buffer_load_dword v40, v41, {s(rDBG,4)}, 0 offen offset:{D_LN} sc1
        s_waitcnt vmcnt(0)
        v_readfirstlane_b32 s{sTmp2}, v40
        s_add_u32 s{sG}, s{sG}, 1
        s_cmp_gt_u32 s{sG}, {SPIN}
        s_cbranch_scc1 L_team_end
        s_cmp_lt_u32 s{sTmp2}, 64
        s_cbranch_scc1 L_lnw
        """)
        kv_wait("0", 40, 41, "0")
        A.label("L_kv0ok")
    dma("k", 0, 0); dma("k", 0, 1)
    A(f"s_add_u32 s{sKV}, s{sKV}, {32*16384}")
    A(f"""
    s_cmp_ge_u32 s61, 32
    s_cbranch_scc1 L_init_wait
    s_cmp_lg_u32 s{sW}, 0
    s_cbranch_scc1 L_init_wait
    v_mov_b32 v41, 0
    s_mov_b32 s{sG}, 0
    L_init_poll:
    buffer_load_dword v40, v41, {s(rDBG,4)}, 0 offen offset:{D_INIT} sc1
    s_waitcnt vmcnt(0)
    v_readfirstlane_b32 s{sTmp}, v40
    s_add_u32 s{sG}, s{sG}, 1
    s_cmp_gt_u32 s{sG}, {SPIN}
    s_cbranch_scc1 L_init_wait
    s_cmp_lt_u32 s{sTmp}, 32
    s_cbranch_scc1 L_init_poll
    L_init_wait:
    s_waitcnt lgkmcnt(0)
    s_barrier
    s_mov_b32 s{sStep}, 0
    s_mov_b32 s{sG}, 0
    s_mov_b32 s{sRetA}, 0
    s_mov_b32 s{sRetB}, 0
    s_mov_b32 s{sRet2}, 0
    s_mov_b32 s{sC}, 0x3e0293ee
    v_mov_b32 v{VMR+1}, 0
    v_mov_b32 v{VMR+3}, 0
    s_lshl_b32 s{sRd2}, s{sW}, 17
    s_lshl_b32 s{sTmp}, s{sH}, 12
    s_add_u32 s{sRd2}, s{sRd2}, s{sTmp}
    """)
    import math, struct
    cval = struct.unpack("<I", struct.pack("<f", (128 ** -0.5) * math.log2(math.e)))[0]
    A(f"s_mov_b32 s{sC}, {cval:#x}")
    if stamps == 2:
        A("s_memrealtime s[96:97]")
        A("s_memtime s[76:77]"); A("s_waitcnt lgkmcnt(0)")
    assert not (stamps == 1 and fsl)
    if stamps == 1:
        for k in range(52, 100): A(f"s_mov_b32 s{k}, 0")

    lg = Cnt(A, "lgkmcnt", 15)
    staged = {}
    def stage(idx, reg):
        f = LDSF[idx]
        for p in range(2):
            ar, off = lds_frag_addr(idx, p)
            A(f"ds_read_b128 {v(reg+4*p,4)}, v{ar} offset:{off}"); tok = lg.issue()
        staged[f] = (reg, tok)
    waited = [0]
    def lwait(tok):
        if tok > waited[0]:
            lg.wait(tok); waited[0] = tok
    def sm(m, t, sl, acc, areg):
        f = (m, t, sl); kind, base = HOME[f]
        if kind == "l":
            reg, tok = staged.pop(f); lwait(tok); b = v(reg, 8)
        else:
            b = (a if kind == "a" else v)(base, 8)
        A(f"v_smfmac_f32_16x16x64_bf16 {v(acc,4)}, {v(areg,4)}, {b}, v{vIdx}")
    def dsr(dst, addr, off, n=4):
        A(f"ds_read_b{32*n} {v(dst,n)}, v{addr} offset:{off}"); return lg.issue()
    def dsw(addr, src, off, n=4):
        A(f"ds_write_b{32*n} v{addr}, {v(src,n)} offset:{off}"); return lg.issue()
    def chk(r, lab):
        A(f"v_max3_u32 v{vT0}, v{r}, v{r+1}, v{r+2}")
        A(f"v_max_u32 v{vT0}, v{vT0}, v{r+3}")
        A(f"v_cmp_eq_u32 vcc, -1, v{vT0}")
        A(f"s_cbranch_vccnz {lab}")
    qa = lambda t: ACCA + 4*t
    ka = lambda t: ACCB + 4*t
    ma = lambda sl: MEMA + 4*sl

    QB = POOL; FR = POOL + 16
    va = lambda t: ACCV + 4*t
    WA = MEMA
    wa = lambda t: WA + 4*t
    R2 = ma(5); SEL = ma(7); PUB = vT1; DD = ma(3)
    def stage1(idx, reg, p):
        f = LDSF[idx]
        ar, off = lds_frag_addr(idx, p)
        A(f"ds_read_b128 {v(reg+4*p,4)}, v{ar} offset:{off}"); tok = lg.issue()
        if p == 1: staged[f] = (reg, tok)
    G = lambda idx, reg, p: (lambda: stage1(idx, reg, p))
    def mf(d, a_, b_, first, k16=False):
        n = 2 if k16 else 4
        A(f"v_mfma_f32_16x16x{16 if k16 else 32}_bf16 {v(d,4)}, {v(a_,n)}, {v(b_,n)}, {0 if first else v(d,4)}")
    def slots(ms, fill):
        for i, m in enumerate(ms):
            m()
            if i < len(fill):
                for f in fill[i]: f()
        for fl in fill[len(ms):]:
            for f in fl: f()
    I = lambda txt: (lambda: A(txt))
    accf = {"q": qa, "k": ka, "v": va}
    SM = lambda m, t, sl, areg=None: (lambda: sm(m, t, sl, accf[m](t), ma(sl) if areg is None else areg))
    PRE = [(0, STG), (1, STG+8), (2, FR), (3, FR+8), (5, QB+8), (4, QB)]
    def chores(lo, hi):
        for idx, reg in PRE[lo:hi]: stage(idx, reg)
    def zero_accs():
        for i in range(0, 16, 2): A(f"v_mov_b64 {v(ACCA+i,2)}, 0")
        for i in range(0, 8, 2): A(f"v_mov_b64 {v(ACCV+i,2)}, 0")
    def set_neg():
        A(f"v_mov_b64 {v(NEG,2)}, -1"); A(f"v_mov_b64 {v(NEG+2,2)}, -1")
    def slot_offsets():
        A(f"""
        s_and_b32 s{sTmp}, s{sStep}, 3
        s_lshl_b32 s{sO1}, s{sTmp}, 13
        s_add_u32 s{sO1}, s{sO1}, {H1}
        s_add_u32 s{sO1b}, s{sO1}, 4096
        """)
    def ld1():
        A(f"buffer_load_dwordx4 {v(ma(0),4)}, v{vT16}, {s(rWS,4)}, s{sO1} offen sc1")
        A(f"buffer_load_dwordx4 {v(ma(4),4)}, v{vT16}, {s(rWS,4)}, s{sO1b} offen sc1")
    def ld2():
        for u in range(2):
            A(f"buffer_load_dwordx4 {v(R2+4*u,4)}, v{vL16}, {s(rWS,4)}, s{sRd} offen offset:{1024*u} sc1")
    def delay(n):
        while n > 0:
            A(f"s_nop {min(n,16)-1}"); n -= 16
    chores(0, 6); zero_accs(); set_neg(); slot_offsets()
    A(f"s_mov_b32 s{sO2}, {H2}"); A(f"s_mov_b32 s{sO2b}, {H2 + (128<<10)}")
    A(f"s_add_u32 s{sRst1}, s{sPubO}, {2*8192}")
    A(f"s_and_b32 s{sTmp}, s{sW}, 1")
    A(f"s_lshl_b32 s{sRd2}, s{sTmp}, 17")
    A(f"s_lshl_b32 s{sTmp}, s{sH}, 12")
    A(f"s_add_u32 s{sRd2}, s{sRd2}, s{sTmp}")
    A(f"s_lshr_b32 s{sTmp}, s{sW}, 1")
    A(f"s_lshl_b32 s{sTmp}, s{sTmp}, 11")
    A(f"s_add_u32 s{sRd2}, s{sRd2}, s{sTmp}")
    pre_staged = dict(staged)
    sKf = 47
    A(f"s_mov_b32 s{sKf}, 0")
    A(f"s_waitcnt lgkmcnt(0)")
    def ldA(): A(f"buffer_load_dwordx4 {v(ma(0),4)}, v{vT16}, {s(rWS,4)}, s{sO1} offen sc1")
    def ldB(): A(f"buffer_load_dwordx4 {v(ma(4),4)}, v{vT16}, {s(rWS,4)}, s{sO1b} offen sc1")
    N1 = I("s_nop 1"); N0 = I("s_nop 0")
    for par in range(2):
        P = f"_{par}"
        LM = L_MEM; LK = L_KX
        st = stamp if par == 0 else (lambda n="": None)
        A.label("L_step" + P)
        if stamps == 1 and par == 0:
            stamp("top")
            A(f"s_cmp_ge_u32 s{sStep}, {nsteps-3}")
            A("s_cbranch_scc1 L_team_end")
        st("top2")
        for j in range(nsets):
            delay(gapB if j else dA)
            if j == 0 or not bonly: ldA(); delay(gapAB)
            ldB()
        nfl = nsets + 1 if bonly else 2*nsets
        waited[0] = lg.n
        staged.clear(); staged.update({f: (r, 0) for f, (r, t) in pre_staged.items()})
        r, q = ma(0), ma(4)
        A.label("L_pollA" + P)
        A(f"s_waitcnt vmcnt({nfl-1})")
        A.label("L_pollA2" + P)
        A(f"v_max3_u32 v{vT0}, v{r}, v{r+1}, v{r+2}")
        A(f"v_max_u32 v{vT0}, v{vT0}, v{r+3}")
        A(f"v_cmp_eq_u32 vcc, -1, v{vT0}")
        tt = {}
        def rd(key, dst, addr, off): return lambda: tt.__setitem__(key, dsr(dst, addr, off))
        kx = lambda i, dst: rd(("kx", i), dst, vL16, LK + 1024*i)
        W = lambda key: (lambda: lwait(tt[key]))
        WS = lambda idx: (lambda: lwait(staged[LDSF[idx]][1]))
        twa = dsw(vT16, r, LM)
        st("ok")
        slots([SM("q",0,0), SM("q",1,0), SM("k",0,0), SM("k",1,0)],
              [[], [I(f"s_cbranch_vccnz L_retryA{P}"), I(f"s_waitcnt vmcnt({nfl-2})"), I(f"v_max3_u32 v{vT0}, v{q}, v{q+1}, v{q+2}")], [I(f"v_max_u32 v{vT0}, v{vT0}, v{q+3}")],
               [lambda: lwait(twa), I("s_barrier"), I(f"v_cmp_eq_u32 vcc, -1, v{vT0}")]])
        st("barM")
        rd(1, ma(1), vM1, LM)()
        SM("v",0,0)()
        A(f"s_cbranch_vccnz L_retryB{P}")
        A.label("L_okB" + P)
        st("okB")
        tw = dsw(vT16, q, LM + 4096)
        kvu = []
        slots([SM("v",1,0), SM("q",0,4), SM("q",1,4), SM("k",0,4), SM("k",1,4), SM("v",0,4), SM("v",1,4)],
              [[rd(2, ma(2), vM2, LM)], [rd(3, ma(3), vM3, LM)], [kx(4, STG)], [kx(5, STG+4)], [], [lambda: lwait(tw), I("s_barrier")], [rd(5, ma(5), vM1, LM+4096)]])
        st("barB")
        rst = [I(f"s_xor_b32 s{sTmp}, s{sO2}, {256<<10}"), I(f"s_add_u32 s{sTmp}, s{sTmp}, s{sRst2}"),
               I(f"buffer_store_dwordx4 {v(NEG,4)}, v{vT16}, {s(rWS,4)}, s{sTmp} offen")]
        rst2 = [I(f"s_add_u32 s{sTmp}, s{sTmp}, {128<<10}"),
               I(f"buffer_store_dwordx4 {v(NEG,4)}, v{vT16}, {s(rWS,4)}, s{sTmp} offen"),
               I(f"buffer_store_dword v{NEG}, v{PUB}, {s(rWS,4)}, s{sRst1} offen")]
        pubg = [I(f"buffer_store_dword v{vPD}, v{PUB}, {s(rWS,4)}, s{sMG} offen sc1"), I(f"s_add_u32 s{sMG}, s{sMG}, 8192")]
        bk = [I(x) for x in (
            f"s_add_u32 s{sStep}, s{sStep}, 1", f"s_add_u32 s{sRd}, s{sO2}, s{sRd2}", f"s_and_b32 s{sB}, s{sStep}, 3",
            f"s_lshl_b32 s{sB+1}, s{sB}, 13", f"s_add_u32 s{sO1}, s{sB+1}, {H1}", f"s_add_u32 s{sO1b}, s{sO1}, 4096",
            f"s_add_u32 s{sB+2}, s{sB+1}, s{sPubO}", f"s_xor_b32 s{sRst1}, s{sB+1}, {2<<13}", f"s_add_u32 s{sRst1}, s{sRst1}, s{sPubO}")]
        m0k = lambda: None
        dk = lambda j: I(f"buffer_load_dwordx4 {v(KST+4*j,4)}, v{vL16}, {s(rWS,4)}, s{sKV} offen offset:{1024*j} sc1")
        VX0, VX1 = ma(0), ma(4)
        lv = [I(f"buffer_load_dwordx4 {v(VX0,4)}, v{vT16}, {s(rWS,4)}, s{sMV+1} offen sc1"), I(f"s_add_u32 s{sTmp2}, s{sMV+1}, 4096"),
              I(f"buffer_load_dwordx4 {v(VX1,4)}, v{vT16}, {s(rWS,4)}, s{sTmp2} offen sc1"), I(f"s_add_u32 s{sMV+1}, s{sMV+1}, {32*16384}")]
        if "dma" in off: dk = lambda j: N0
        def kvbr():
            if kvchk:
                A(f"s_cmp_gt_u32 s{sRdy}, s{sStep}")
                A(f"s_cbranch_scc0 L_kvw{P}")
                A.label("L_kvok" + P)
        def kfissue():
            if not (kvchk and kfasync and par == 0): return
            A(f"""
            s_min_u32 s{sTmp}, s{sRdy}, 64
            s_lshl_b32 s{sTmp}, s{sTmp}, 8
            v_lshlrev_b32 v{VMR}, 4, v{vL16}
            s_add_u32 s{sTmp}, s{sTmp}, {CNT + C_KV}
            s_mov_b32 s{sKf}, s{sRdy}
            s_mov_b64 exec, 0xffff
            buffer_load_dword v{vPD}, v{VMR}, {s(rWS,4)}, s{sTmp} offen sc1
            s_mov_b64 exec, -1
            """)
        dmaseq = {ks: [m0k, kvbr], ks+1: [dk(0)], ks+3: [dk(1), I(f"s_add_u32 s{sKV}, s{sKV}, {32*16384}")]}
        slotno = [0]
        def slots2(ms, fill):
            fill = [list(f) for f in fill] + [[] for _ in range(len(ms) - len(fill))]
            for i in range(len(ms)):
                fill[i] = dmaseq.pop(slotno[0], []) + fill[i]; slotno[0] += 1
            slots(ms, fill)
        slots2([SM("q",0,1), SM("q",1,1), SM("k",0,1), SM("k",1,1), SM("q",0,2), SM("q",1,2), SM("k",0,2), SM("k",1,2),
               SM("q",1,3), SM("k",0,3), SM("q",0,3), SM("k",1,3), SM("q",0,5), SM("q",1,5), SM("q",0,6), SM("q",1,6), SM("q",0,7), SM("q",1,7)],
              [[rd(6, ma(6), vM2, LM+4096)] + lv[:2], [rd(7, ma(7), vM3, LM+4096), bk[0]], lv[2:], [W(3)] + rst[:2], [kx(6, STG+8)], [kx(7, STG+12)] + rst[2:], bk[1:3], [kx(0, FR)],
               [kx(1, FR+4)], rst2[:2], bk[3:6], [W(7), kx(2, FR+8)], rst2[2:], [kx(3, FR+12)], pubg, bk[6:9], [kfissue], []])
        st("qdone")
        if trace and par == 0:
            A(f"""
            s_memrealtime s[52:53]
            s_memtime s[54:55]
            s_lshl_b32 s56, s{sStep}, 2
            s_waitcnt lgkmcnt(0)
            v_writelane_b32 v{vT0}, s52, 0
            v_writelane_b32 v{vT0}, s54, 1
            s_lshl_b32 s57, s{sH}, 10
            s_add_u32 s56, s56, s57
            s_add_u32 s56, s56, {RES + 65536 - 4}
            v_lshrrev_b32 v{QB}, 2, v{vL16}
            s_mov_b64 exec, 3
            buffer_store_dword v{vT0}, v{QB}, {s(rWS,4)}, s56 offen
            s_mov_b64 exec, -1
            """)
        def epi_ops(acc):
            return [I(f"v_add_f32 v{acc}, v{acc}, v{acc+2}"), I(f"v_add_f32 v{acc+1}, v{acc+1}, v{acc+3}"),
                    I(f"v_add_f32 v{acc+4}, v{acc+4}, v{acc+6}"), I(f"v_add_f32 v{acc+5}, v{acc+5}, v{acc+7}"),
                    I(f"v_cvt_pk_bf16_f32 v{acc}, v{acc}, v{acc+4}"), I(f"v_cvt_pk_bf16_f32 v{acc+1}, v{acc+1}, v{acc+5}")]
        e = epi_ops(ACCA); ek = epi_ops(ACCB)
        wq = [lambda: dsw(vQW, ACCA, L_Q, 1), lambda: dsw(vQW, ACCA+1, L_Q + RS, 1)]
        wk = [lambda: dsw(vQW, ACCB, L_K, 1), lambda: tt.__setitem__("wk", dsw(vQW, ACCB+1, L_K + RS, 1))]
        slots2([SM("k",0,5), SM("k",0,6), SM("k",0,7), SM("k",1,5), SM("k",1,6), SM("k",1,7),
               SM("v",0,1), SM("v",1,1), SM("v",0,2), SM("v",1,2), SM("v",0,3), SM("v",1,3)],
              [[e[0]], [e[1]], [e[2]], [e[3]], [e[4]], [wq[0], e[5]],
               [wq[1], ek[0], ek[1]], [ek[2], ek[3]], [ek[4], ek[5]] + wk, [], [],
               []])
        lwait(tt["wk"]); A("s_barrier"); st("barQK")
        qr = lambda k: rd(("q", k), QB+4*k, vQR, L_Q + 64*k)
        KMR = ACCA
        kr = lambda k: rd(("km", k), KMR+4*k, vQR, L_K + 64*k)
        VXR = FR; OO = QB; LL = QB + 8; ONES = NEG
        ones = [I(f"v_mov_b32 v{ONES+i}, 0x3f803f80") for i in range(4)]
        nvm = 3 + (1 if kvchk and kfasync and par == 0 else 0) + (1 if trace and par == 0 else 0) - 2*("dma" in off)
        assert ks >= 15
        qr(0)()
        slots2([SM("v",0,5), SM("v",1,5), SM("v",0,6), SM("v",1,6), SM("v",0,7), SM("v",1,7)],
              [[qr(1), ones[0]], [qr(2), ones[1]], [qr(3), ones[2]], [kr(0), ones[3]], [kr(1)], [kr(2), W(("q",1))]])
        st("vdone")
        Sx = lambda t, k: (lambda: (lwait(tt[("q", k)]), mf(S+4*t, (FR if t == 0 else STG) + 4*k, QB+4*k, k == 0)))
        Sm = lambda k: (lambda: (lwait(tt[("km", k)]), mf(S+8, KMR+4*k, QB+4*k, k == 0)))
        ve = []
        for t in range(2):
            ve += [I(f"v_add_f32 v{va(t)}, v{va(t)}, v{va(t)+2}"), I(f"v_add_f32 v{va(t)+1}, v{va(t)+1}, v{va(t)+3}"),
                   I(f"v_cvt_pk_bf16_f32 v{VMR+2*t}, v{va(t)}, v{va(t)+1}")]
        zw = [I(f"v_mov_b64 {v(WA+i,2)}, 0") for i in range(0, 32, 2)]
        slots2([Sx(0,0), Sx(1,0), Sx(0,1), Sx(1,1), Sx(0,2), Sx(1,2), Sx(0,3), Sx(1,3), Sm(0), Sm(1), Sm(2), Sm(3)],
              [[kr(3)], [ve[0], ve[1]], [ve[2], ve[3]], [W(("q",3)), ve[4]],
               [G(11, FR, 0), ve[5]], [G(11, FR, 1)],
               [G(6, STG, 0)], [W(("km",3)), G(6, STG, 1)], [G(7, FR+8, 0), I(f"v_max3_f32 v{vT0}, v{S}, v{S+1}, v{S+2}")],
               [I(f"v_max3_f32 v{vT0}, v{vT0}, v{S+3}, v{S+4}"), I(f"v_max3_f32 v{vT0}, v{vT0}, v{S+5}, v{S+6}")],
               [G(7, FR+8, 1), I(f"v_max_f32 v{vT0}, v{vT0}, v{S+7}")],
               [G(9, ACCV, 0), zw[10], zw[11], G(9, ACCV, 1), zw[12], zw[13], zw[14]]])
        assert not dmaseq
        st("Smm")
        A(f"v_max3_f32 v{vT0}, v{vT0}, v{S+8}, v{S+9}")
        A(f"v_mov_b32 v{S+10}, v{vT0}")
        G(8, STG+8, 0)(); zw[15]()
        A(f"v_permlane32_swap_b32 v{vT0}, v{S+10}")
        A(f"v_max_f32 v{vT0}, v{vT0}, v{S+10}")
        A(f"v_mov_b32 v{S+10}, v{vT0}")
        G(8, STG+8, 1)()
        A(f"v_permlane16_swap_b32 v{vT0}, v{S+10}")
        A(f"v_max_f32 v{vT0}, v{vT0}, v{S+10}")
        A(f"v_mul_f32 v{S+10}, s{sC}, v{vT0}")
        for i in (8, 0, 2, 4, 6):
            A(f"v_pk_fma_f32 {v(S+i,2)}, {v(S+i,2)}, s[{sC}:{sC+1}], {v(S+10,2)} op_sel_hi:[1,0,0] neg_lo:[0,0,1] neg_hi:[0,0,1]")
        ex = lambda i: I(f"v_exp_f32 v{S+i}, v{S+i}")
        cv = lambda i: I(f"v_cvt_pk_bf16_f32 v{S+i}, v{S+2*i}, v{S+2*i+1}")
        ex(8)(); ex(9)(); ex(0)()
        A(f"v_cvt_pk_bf16_f32 v{S+8}, v{S+8}, v{S+9}"); A(f"v_mov_b32 v{S+9}, 0")
        ex(1)(); ex(2)()
        slots([lambda: mf(LL, ONES, S+8, True, True), lambda: mf(OO, VMR, S+8, True, True), lambda: mf(OO+4, VMR+2, S+8, True, True)],
              [[ex(3), cv(0)], [ex(4), ex(5)], [ex(6), ex(7), cv(1), cv(2), cv(3)]])
        st("exp")
        G(10, ACCB, 0)(); A(f"s_waitcnt vmcnt({nvm})")
        slots([lambda: mf(LL, ONES, S, False), lambda: mf(OO, VX0, S, False), lambda: mf(OO+4, VX1, S, False)],
              [[G(10, ACCB, 1), zw[4]], [zw[5], zw[6]], [zw[7]]])
        st("PV")
        A(f"v_rcp_f32 v{vT0}, v{LL}")
        zw[0]()
        for i in range(4): A(f"v_mul_f32 v{OO+i}, v{OO+i}, v{vT0}")
        A(f"v_pk_mul_f32 {v(OO+4,2)}, {v(OO+4,2)}, {v(vT0,2)} op_sel_hi:[1,0]")
        A(f"v_pk_mul_f32 {v(OO+6,2)}, {v(OO+6,2)}, {v(vT0,2)} op_sel_hi:[1,0]")
        for i in range(4): A(f"v_cvt_pk_bf16_f32 v{OO+i}, v{OO+i}, v{OO+4+i}")
        tw = dsw(vOW, OO, L_O)
        st("owr")
        for f in (zw[1], zw[2], zw[3], zw[8], zw[9]): f()
        FR_ = [NEG, NEG+1, NEG+2, NEG+3, vT0][:len(fsl)]
        if fsl:
            A(f"v_mov_b32 v{VMR}, s{sStep}")
            A(f"v_bfe_u32 v{VMR+2}, v{vL16}, 2, 5")
            A(f"v_lshlrev_b32 v{vT0}, 4, v{vL16}")
            A(f"s_mul_i32 s{sK+1}, s{sStep}, 0x01010101")
        lwait(tw); A("s_barrier"); st("barO")
        OA = ACCA
        to0 = dsr(OA, vOR, L_O)
        to = dsr(OA+4, vOR, L_O + 128)
        if fsl:
            A("s_mov_b64 exec, 0x3ff")
            A(f"buffer_store_byte v{VMR}, v{vT0}, {s(rWS,4)}, s{sFlS} offen")
            A("s_mov_b64 exec, -1")
        dmaseq.update({slotno[0] + sl: [I(f"buffer_load_dword v{FR_[i]}, v{VMR+2}, {s(rWS,4)}, s{sFl} offen offset:{256*i} sc1")] for i, sl in enumerate(fsl)})
        ad = lambda t: [I(f"v_add_f32 v{wa(t)}, v{wa(t)}, v{wa(t)+2}"), I(f"v_add_f32 v{wa(t)+1}, v{wa(t)+1}, v{wa(t)+3}")]
        cvp = lambda dst, t: [I(f"v_cvt_pk_bf16_f32 v{dst}, v{wa(t)}, v{wa(t+1)}"), I(f"v_cvt_pk_bf16_f32 v{dst+2}, v{wa(t)+1}, v{wa(t+1)+1}")]
        sto = lambda x, dst: [I(f"buffer_store_dwordx4 {v(dst,4)}, v{vSt2}, {s(rWS,4)}, s{sO2b if x else sO2} offen")]
        SO = lambda t, k: (lambda: sm("o", t, k, wa(t), OA+4*k))
        DA, DB = QB, QB + 4
        lwait(to0)
        st("ord")
        slots2([SO(t, k) for t in range(8) for k in range(2)],
              [[lambda: lwait(to), G(12, QB+8, 0)], [G(12, QB+8, 1)], [G(13, STG, 0)], [G(13, STG, 1), ad(0)[0]], [G(14, FR+8, 0), ad(0)[1]],
               [G(14, FR+8, 1), ad(1)[0]], [G(15, STG+8, 0), ad(1)[1]], [G(15, STG+8, 1), cvp(DA, 0)[0], cvp(DA, 0)[1]],
               [G(16, ACCV, 0)] + ad(2), [WS(13), G(16, ACCV, 1)] + ad(3), cvp(DA+1, 2), sto(0, DA) + [lambda: st("stA"), ad(4)[0]], [WS(15), ad(4)[1]],
               [WS(16)] + ad(5)[:1], ad(5)[1:], cvp(DB, 4) + ad(6)])
        for f in ad(7) + cvp(DB+1, 6) + sto(1, DB): f()
        st("stB")
        assert not staged, staged
        if bar1: A("s_barrier")
        st("bar1")
        dsr(SEL, vL16, L_ST)
        A(f"s_xor_b32 s{sO2}, s{sO2}, {256<<10}")
        A(f"s_xor_b32 s{sO2b}, s{sO2b}, {256<<10}")
        def red_block(role, nr):
            T_ = f"{role}{P}"
            A(f"v_add_u32 v{vT0}, s{sMK}, v{vL16}")
            A(f"s_waitcnt vmcnt({2*nr+2})")
            A(f"ds_write_b128 v{vT0}, {v(KST,4)}")
            A(f"ds_write_b128 v{vT0}, {v(KST+4,4)} offset:1024")
            if kvchk and kfasync and par == 0:
                A(f"""
                v_cmp_eq_u32 vcc, 32, v{vPD}
                s_and_b32 s{sTmp}, vcc_lo, 0xffff
                s_ff0_i32_b32 s{sTmp}, s{sTmp}
                s_min_u32 s{sKf}, s{sKf}, 64
                s_add_u32 s{sTmp}, s{sTmp}, s{sKf}
                s_max_u32 s{sRdy}, s{sRdy}, s{sTmp}
                """)
            A("s_waitcnt lgkmcnt(2)")
            A.label("L_pipe2" + T_)
            for u in range(2):
                r = R2 + 4*u
                A(f"s_waitcnt vmcnt({2*nr-1-u})")
                A(f"v_max3_u32 v{vT0}, v{r}, v{r+1}, {'v%d' % vT0 if u else 0}")
                A(f"v_max3_u32 v{vT0}, v{r+2}, v{r+3}, v{vT0}")
                mf(DD, SEL, r, u == 0)
            A(f"v_cmp_eq_u32 vcc, -1, v{vT0}")
            A("s_nop 5")
            A(f"s_cbranch_vccnz L_retryp{T_}")
            for rot in (4, 8):
                A(f"v_add_f32_dpp v{DD}, v{DD}, v{DD} row_ror:{rot} row_mask:0xf bank_mask:0xf")
                A(f"v_add_f32_dpp v{DD+1}, v{DD+1}, v{DD+1} row_ror:{rot} row_mask:0xf bank_mask:0xf")
            A(f"v_cvt_pk_bf16_f32 v{vPD}, v{DD}, v{DD+1}")
            A(f"v_min_u32 v{vPD}, 0xfffffffe, v{vPD}")
            A(f"buffer_store_dword v{vPD}, v{PUB}, {s(rWS,4)}, s{sB+2} offen")
        def feval():
            if not fsl: return
            A("s_waitcnt vmcnt(2)")
            for i, r_ in enumerate(FR_): A(f"v_cmp_ne_u32 s[{sCm+2*i}:{sCm+2*i+1}], s{sK+1}, v{r_}")
            A(f"s_mov_b32 s{sK}, 0")
            for i in range(len(FR_)):
                A(f"s_cmp_lg_u64 s[{sCm+2*i}:{sCm+2*i+1}], 0")
                A(f"s_addc_u32 s{sK}, s{sK}, 0")
            if stamps: A(f"s_add_u32 s{sRetA}, s{sRetA}, s{sK}")
        def fdelay(tag):
            if not fsl: return
            A(f"""
            L_fd{tag}{P}:
            s_sub_u32 s{sK}, s{sK}, 1
            s_cbranch_scc1 L_fe{tag}{P}
            s_nop {fnop}
            s_branch L_fd{tag}{P}
            L_fe{tag}{P}:
            """)
        chores(0, cpre)
        A(f"s_bitcmp1_b32 s{sW}, 0")
        A(f"s_cbranch_scc1 L_tailB{P}")
        chores(cpre, cs[0][0]); delay(dR[0]); ld2(); st("ld2")
        if fsl: A("s_waitcnt vmcnt(4)")
        chores(cs[0][0], 6); zero_accs(); set_neg()
        if na > 1: delay(dR[1]); ld2()
        red_block(0, na)
        A(f"s_branch L_tailj{P}")
        A.label(f"L_tailB{P}")
        staged.clear()
        if par == 0 and stamps == 1:
            nst[0] -= 1; names.pop()
        feval(); chores(cpre, cs[1][0]); delay(dR[2]); fdelay("b"); ld2(); st("ld2")
        chores(cs[1][0], 6); set_neg(); delay(dR[3])
        if n2 > 1: ld2()
        zero_accs()
        if n2 > 2: delay(d3r); ld2()
        red_block(1, n2)
        A.label(f"L_tailj{P}")
        st("red")
        if bar2: A("s_barrier")
        if par == (nsteps & 1):
            A(f"s_cmp_eq_u32 s{sStep}, {nsteps-1}")
            A("s_cbranch_scc1 L_last")
        if par == 1: A("s_branch L_step_0")
        staged.clear()
    def retry(lab, cnt, body, back):
        A.label(lab)
        A("s_mov_b64 exec, vcc")
        body()
        A("s_mov_b64 exec, -1")
        A(f"s_add_u32 s{cnt}, s{cnt}, 1")
        A(f"s_add_u32 s{sG}, s{sG}, 1")
        A(f"s_cmp_gt_u32 s{sG}, {SPIN}")
        A(f"s_cbranch_scc1 L_team_end")
        if back: A(f"s_branch {back}")
    for par in range(2):
        P = f"_{par}"
        if bonly:
            retry("L_retryA" + P, sRetA, ldA, None)
            A("s_nop 3")
            for i in range(0, 8, 2): A(f"v_mov_b64 {v(ACCA+i,2)}, 0")
            A("s_waitcnt vmcnt(0)")
            A(f"s_branch L_pollA2{P}")
            retry("L_retryB" + P, sRetB, ldB, None)
            A(f"s_waitcnt vmcnt({nsets-1})")
        else:
            retry("L_retryA" + P, sRetA, ld1, None)
            A("s_nop 3")
            for i in range(0, 8, 2): A(f"v_mov_b64 {v(ACCA+i,2)}, 0")
            A(f"s_branch L_pollA{P}")
            retry("L_retryB" + P, sRetB, ld1, None)
            A(f"s_waitcnt vmcnt({2*nsets-2})")
        chk(ma(4), "L_retryB" + P)
        A(f"s_branch L_okB{P}")
        retry("L_retryp0" + P, sRet2, ld2, "L_pipe20" + P)
        retry("L_retryp1" + P, sRet2, ld2, "L_pipe21" + P)
        if kvchk:
            kv_wait(P, vT0, VMR, f"s{sStep}")
            A(f"s_branch L_kvok{P}")
    A.label("L_last")
    A(f"buffer_store_dword v{vPD}, v{PUB}, {s(rWS,4)}, s{sMG} offen sc1")
    A("s_waitcnt vmcnt(0) lgkmcnt(0)")
    A.label("L_team_end")
    if stamps:
        if stamps == 2:
            A("s_memrealtime s[98:99]")
            A("s_memtime s[72:73]"); A("s_waitcnt lgkmcnt(0)")
            A("s_sub_u32 s72, s72, s76")
            vals = [72, sStep, sRetA, sRetB, sRet2, 76, 76, 76] + [90, 92, 94, 96, 98, 98, 98, 98]
        else:
            A("s_waitcnt lgkmcnt(0)")
            for c, (ra, rb) in enumerate(((44, 45), (46, 47))):
                A(f"""
                s_memrealtime s[16:17]
                s_waitcnt lgkmcnt(0)
                s_add_u32 s16, s16, {200 if c else 8}
                L_cal{c}:
                s_memrealtime s[18:19]
                s_memtime s[98:99]
                s_waitcnt lgkmcnt(0)
                s_cmp_lt_u32 s18, s16
                s_cbranch_scc1 L_cal{c}
                s_mov_b32 s{ra}, s18
                s_mov_b32 s{rb}, s98
                """)
            vals = [44, sStep, sRetA, sRetB, sRet2, 45, 46, 47] + list(range(52, 100, 2))
        A(f"s_lshl_b32 s{sTmp}, s{sH}, 2")
        A(f"s_add_u32 s{sTmp}, s{sTmp}, s{sW}")
        A(f"s_lshl_b32 s{sTmp}, s{sTmp}, 7")
        A(f"s_add_u32 s{sTmp}, s{sTmp}, {RES}")
        A("s_waitcnt vmcnt(0)")
        for i, r in enumerate(vals): A(f"v_mov_b32 v{16+i}, s{r}")
        A("v_mov_b32 v0, 0")
        A("s_mov_b64 exec, 1")
        for i in range(len(vals)//4): A(f"buffer_store_dwordx4 {v(16+4*i,4)}, v0, {s(rWS,4)}, s{sTmp} offen offset:{16*i}")
        if stamps == 2 and trace:
            A(f"""
            s_cmp_lg_u32 s{sH}, 0
            s_cbranch_scc1 L_nodbg
            s_cmp_lg_u32 s{sW}, 0
            s_cbranch_scc1 L_nodbg
            buffer_store_dword v24, v0, {s(rDBG,4)}, 0 offen offset:8 sc1
            buffer_store_dword v28, v0, {s(rDBG,4)}, 0 offen offset:12 sc1
            buffer_store_dword v20, v0, {s(rDBG,4)}, 0 offen offset:60 sc1
            buffer_store_dword v19, v0, {s(rDBG,4)}, 0 offen offset:56 sc1
            s_mov_b64 exec, 0xff
            v_lshlrev_b32 v40, 1, v{vL16}
            s_mov_b32 s{sTmp}, {RES + 65536}
            buffer_load_dword v41, v40, {s(rWS,4)}, s{sTmp} offen sc1
            v_lshrrev_b32 v40, 2, v{vL16}
            v_and_b32 v42, 16, v40
            v_lshrrev_b32 v42, 1, v42
            v_add_u32 v40, v40, v42
            s_waitcnt vmcnt(0)
            buffer_store_dword v41, v40, {s(rDBG,4)}, 0 offen offset:16 sc1
            L_nodbg:
            """)
    A("s_waitcnt vmcnt(0)")

def gen_standalone(**kw):
    A = Asm()
    A.raw(f"; @launch grid=(256,1,1) block=(256,1,1) lds=163840")
    A.raw('.amdgcn_target "amdgcn-amd-amdhsa--gfx950"')
    A.raw(".text")
    kernel_begin(A, NAME + "_kernel")
    A(f"""
    s_cmp_ge_u32 s2, 256
    s_cbranch_scc1 L_end
    s_memrealtime s[90:91]
    s_load_dwordx4 s[4:7], s[0:1], 104
    s_getreg_b32 s{sX}, hwreg(HW_REG_XCC_ID)
    s_and_b32 s{sX}, s{sX}, 7
    v_lshrrev_b32 v1, 6, v0
    v_readfirstlane_b32 s{sW}, v1
    s_waitcnt lgkmcnt(0)
    """)
    srd(A, rWS, 6, WS_BYTES)
    srd(A, rDBG, 4, 256)
    spf = kw.pop("spf", 0)
    role_select(A, "L_pfw" if spf else "L_end")
    team(A, **kw)
    A.label("L_end")
    A("s_endpgm")
    if spf:
        A.label("L_pfw")
        A(f"""
        s_lshr_b32 s{sTmp}, s2, 6
        s_lshl_b32 s{sTmp}, s{sTmp}, 3
        s_add_u32 s{sTmp}, s{sTmp}, 16
        s_load_dwordx2 s[80:81], s[0:1], s{sTmp}
        s_and_b32 s{sTmp}, s2, 62
        s_lshl_b32 s{sTmp}, s{sTmp}, 16
        v_lshlrev_b32 v3, 4, v0
        s_waitcnt lgkmcnt(0)
        """)
        srd(A, rW, 80, 4 << 20)
        for i in range(32):
            A(f"buffer_load_dwordx4 v[{128+4*(i&7)}:{131+4*(i&7)}], v3, {s(rW,4)}, s{sTmp} offen")
            A(f"s_add_u32 s{sTmp}, s{sTmp}, 4096")
        A("s_waitcnt vmcnt(0)")
        A("s_endpgm")
    A.raw('.section .rodata,"a"')
    A.raw(descriptor(NAME + "_kernel", 512, 102, 256))
    global STAMP_NAMES
    STAMP_NAMES = A.stamp_names
    return A.text()

if __name__ == "__main__":
    open("team.s", "w").write(gen_standalone(stamps=2))
```

```python
from asmlib import *
import team as T
from team import (rWS, rDBG, rW, sX, sW, sH, sTmp, sTmp2, sG, sPerm0, sPerm1, SPIN, Cnt,
                  D_INIT, D_LN, D_MOE, D_MOEDONE, CNT, C_KV, C_O, XN, KV, QX, MEMG)
import struct, math
XB = 4 << 20
RL = 6 << 20
MOEP = (6 << 20) + (64 << 10)
OX = 68 << 20
NR = 4
NG = 6
NH = 32*NR; M0 = NH; O0 = NH + 16
f2u = lambda x: struct.unpack("<I", struct.pack("<f", x))[0]
sI, sHd, sR, sSeg, sPrev, sA, sBq, sC = 24, 28, 29, 30, 31, 32, 33, 34
rX, rOUT = 44, 48
DPP = " row_mask:0xf bank_mask:0xf"

def allreduce(A, op, regs, tmps):
    for ctrl in ("quad_perm:[1,0,3,2]", "quad_perm:[2,3,0,1]", "row_half_mirror", "row_mirror"):
        for r in regs: A(f"{op}_dpp v{r}, v{r}, v{r} {ctrl}{DPP}")
    for sw in (16, 32):
        for r, t in zip(regs, tmps): A(f"v_mov_b32 v{t}, v{r}")
        for r, t in zip(regs, tmps): A(f"v_permlane{sw}_swap_b32 v{r}, v{t}")
        for r, t in zip(regs, tmps): A(f"{op} v{r}, v{r}, v{t}")

def rnd_bf(A, r):
    A(f"v_cvt_pk_bf16_f32 v{r}, v{r}, v{r}")
    A(f"v_and_b32 v{r}, 0xffff0000, v{r}")

def unpack(A, lo, hi, src):
    A(f"v_lshlrev_b32 v{lo}, 16, v{src}")
    A(f"v_and_b32 v{hi}, 0xffff0000, v{src}")

def wait_dword(A, tag, off, target, ta, tb, sleep=2, srdn=rDBG, soff="0"):
    A(f"""
    s_cmp_lg_u32 s{sW}, 0
    s_cbranch_scc1 L_wd{tag}_ok
    v_mov_b32 v{ta}, 0
    L_wd{tag}:
    buffer_load_dword v{tb}, v{ta}, {s(srdn,4)}, {soff} offen offset:{off} sc1
    s_waitcnt vmcnt(0)
    v_readfirstlane_b32 s{sTmp}, v{tb}
    s_cmp_ge_u32 s{sTmp}, {target}
    s_cbranch_scc1 L_wd{tag}_ok
    s_sleep {sleep}
    s_add_u32 s{sG}, s{sG}, 1
    s_cmp_lt_u32 s{sG}, {SPIN}
    s_cbranch_scc1 L_wd{tag}
    L_wd{tag}_ok:
    s_barrier
    s_nop 1
    """)

def signal(A, tag, body, ta, tb, ret=False, srdn=rDBG):
    A(f"s_cmp_lg_u32 s{sW}, 0")
    A(f"s_cbranch_scc1 L_sig{tag}")
    A("s_mov_b64 exec, 1")
    body()
    A(f"buffer_atomic_add v{tb}, v{ta}, {s(srdn,4)}, 0 offen" + (" sc0" if ret else ""))
    A("s_mov_b64 exec, -1")
    A.label(f"L_sig{tag}")

def seg_signal(A, tag, sseg, base, ta, tb):
    def body():
        A(f"""
        s_lshl_b32 s{sTmp}, s{sseg}, 8
        s_add_u32 s{sTmp}, s{sTmp}, {CNT + base}
        v_mov_b32 v{ta}, s{sTmp}
        v_mov_b32 v{tb}, 1
        """)
    signal(A, tag, body, ta, tb, srdn=rWS)

vL16, vT16, vC, vG = 1, 2, 3, 4
WST = [False]
WPF = [True]
OPF = [True]
SLP = [6, 3]
OPN = [3]
OSC = ['']
NOP2 = [False]
PRE1 = [True]
HDMA = [True]
WPW = [4]
def wstamp(A, k):
    if not WST[0]: return
    A("s_memrealtime s[96:97]")
    A("s_waitcnt lgkmcnt(0)")
    A(f"s_mov_b32 s{[72,73,74,75,98,99,100,101][k]}, s96")

def common(A):
    if WST[0]:
        A("s_mov_b32 s72, s90")
        for r in (73,74,75,98,99,100,101): A(f"s_mov_b32 s{r}, 0")
    wstamp(A, 1)
    A(f"""
    s_sub_u32 s{sI}, s{sH}, 32
    s_cmp_ge_u32 s{sI}, 224
    s_cbranch_scc1 L_end
    s_load_dwordx2 s[76:77], s[0:1], 0
    s_load_dwordx4 s[80:83], s[0:1], 16
    s_load_dwordx4 s[84:87], s[0:1], 32
    s_load_dwordx8 s[88:95], s[0:1], 64
    s_load_dwordx2 s[78:79], s[0:1], 96
    v_and_b32 v5, 63, v0
    v_and_b32 v{vC}, 15, v0
    v_lshrrev_b32 v{vG}, 4, v5
    v_lshlrev_b32 v{vL16}, 4, v5
    v_lshlrev_b32 v{vT16}, 4, v0
    s_mov_b32 s{sPerm0}, 0x05040100
    s_mov_b32 s{sPerm1}, 0x07060302
    s_mov_b32 s{sG}, 0
    s_waitcnt lgkmcnt(0)
    """)
    srd(A, rX, 76, 2 << 20)
    srd(A, rOUT, 78, 2 << 20)

def pf_wo(A, first):
    if not OPF[0]: return
    A(f"s_sub_u32 s{sTmp}, s{sI}, {first}")
    A(f"s_lshl_b32 s{sTmp}, s{sTmp}, 17")
    srd(A, 52, 86, 4 << 20)
    for i in range(32):
        A(f"buffer_load_dwordx4 v[{128+4*(i&7)}:{131+4*(i&7)}], v{vT16}, s[52:55], s{sTmp} offen")
        A(f"s_add_u32 s{sTmp}, s{sTmp}, 4096")

def ln(A):
    X, WR, F, Sg, Tm, Mb, WF = 16, 32, 40, 72, 76, 80, 84
    A(f"s_cmp_lt_u32 s{sI}, {O0+64}")
    A("s_cbranch_scc1 L_ln_go")
    pf_wo(A, O0 + 64 - 16)
    A("s_branch L_ln_done")
    A.label("L_ln_go")
    srd(A, rW, 88, 1024)
    A(f"s_sub_u32 s{sA}, s{sI}, {O0}")
    A(f"s_lshl_b32 s{sA}, s{sA}, 3")
    A(f"s_add_u32 s{sA}, s{sA}, s{sW}")
    A(f"s_lshl_b32 s{sBq}, s{sA}, 4")
    A(f"s_lshl_b32 s{sA}, s{sA}, 12")
    A(f"buffer_load_dwordx4 {v(WR,4)}, v{vL16}, {s(rW,4)}, 0 offen")
    for j in range(4): A(f"buffer_load_dwordx4 {v(X+4*j,4)}, v{vL16}, {s(rX,4)}, s{sA} offen offset:{1024*j}")
    A(f"s_add_u32 s{sTmp}, s{sA}, 16384")
    for j in range(4): A(f"buffer_load_dwordx4 {v(100+4*j,4)}, v{vL16}, {s(rX,4)}, s{sTmp} offen offset:{1024*j}")
    A(f"s_sub_u32 s{sTmp}, s{sI}, {O0}")
    A(f"s_lshl_b32 s{sTmp}, s{sTmp}, 8")
    A(f"s_add_u32 s{sTmp}, s{sTmp}, {CNT}")
    A(f"v_lshrrev_b32 v5, 2, v{vL16}")
    A("v_mov_b32 v6, 0")
    A(f"buffer_store_dword v6, v5, {s(rWS,4)}, s{sTmp} offen sc1")
    A(f"s_mov_b32 s{sSeg}, 0")
    if OPF[0]:
        A(f"s_sub_u32 s{sTmp2}, s{sI}, {O0}")
        A(f"s_lshl_b32 s{sTmp2}, s{sTmp2}, 16")
        for mi, base in enumerate((80, 82, 84)[:OPN[0]]):
            srd(A, 52, base, 4 << 20)
            A(f"s_mov_b32 s{sTmp}, s{sTmp2}")
            for i in range(16):
                A(f"buffer_load_dwordx4 v[{128+4*(i&7)}:{131+4*(i&7)}], v{vT16}, s[52:55], s{sTmp} offen")
                A(f"s_add_u32 s{sTmp}, s{sTmp}, 4096")
    A(f"s_waitcnt vmcnt({5 + (16*OPN[0] if OPF[0] else 0)})")
    A.label("L_ln_pass")
    R4 = range(4)
    for j in R4:
        for d in range(4): unpack(A, F+8*j+2*d, F+8*j+2*d+1, X+4*j+d)
        A(f"v_add_f32 v{Sg+j}, v{F+8*j}, v{F+8*j+1}")
        for e in range(2, 8): A(f"v_add_f32 v{Sg+j}, v{Sg+j}, v{F+8*j+e}")
    allreduce(A, "v_add_f32", [Sg+j for j in R4], [Tm+j for j in R4])
    for j in R4: A(f"v_mul_f32 v{Mb+j}, {f2u(1/512):#x}, v{Sg+j}")
    for j in R4:
        for e in range(8):
            A(f"v_sub_f32 v{Tm}, v{F+8*j+e}, v{Mb+j}")
            if e == 0: A(f"v_mul_f32 v{Sg+j}, v{Tm}, v{Tm}")
            else: A(f"v_fmac_f32 v{Sg+j}, v{Tm}, v{Tm}")
    allreduce(A, "v_add_f32", [Sg+j for j in R4], [Tm+j for j in R4])
    for j in R4:
        rnd_bf(A, Mb+j)
        A(f"v_mul_f32 v{Sg+j}, {f2u(1/512):#x}, v{Sg+j}")
        rnd_bf(A, Sg+j)
        A(f"v_add_f32 v{Sg+j}, {f2u(1e-5):#x}, v{Sg+j}")
        rnd_bf(A, Sg+j)
        A(f"v_sqrt_f32 v{Sg+j}, v{Sg+j}")
        rnd_bf(A, Sg+j)
        A(f"v_rcp_f32 v{Tm+j}, v{Sg+j}")
    for d in range(4): unpack(A, WF+2*d, WF+2*d+1, WR+d)
    Q, E, RA = 92, 94, 96
    for j in R4:
        for d in range(4):
            f = F + 8*j + 2*d
            A(f"v_sub_f32 v{f}, v{f}, v{Mb+j}")
            A(f"v_sub_f32 v{f+1}, v{f+1}, v{Mb+j}")
            A(f"v_cvt_pk_bf16_f32 v{Q}, v{f}, v{f+1}")
            unpack(A, f, f+1, Q)
            for u in range(2):
                A(f"v_mul_f32 v{Q+u}, v{f+u}, v{Tm+j}")
                A(f"v_fma_f32 v{E+u}, -v{Q+u}, v{Sg+j}, v{f+u}")
                A(f"v_fmac_f32 v{Q+u}, v{E+u}, v{Tm+j}")
            A(f"v_cvt_pk_bf16_f32 v{X+4*j+d}, v{Q}, v{Q+1}")
            unpack(A, f, f+1, X+4*j+d)
            if d == 0: A(f"v_mul_f32 v{RA+j}, v{f}, v{WF}")
            else: A(f"v_fmac_f32 v{RA+j}, v{f}, v{WF+2*d}")
            A(f"v_fmac_f32 v{RA+j}, v{f+1}, v{WF+2*d+1}")
        A(f"s_add_u32 s{sTmp}, s{sA}, {XN}")
        A(f"buffer_store_dwordx4 {v(X+4*j,4)}, v{vL16}, {s(rWS,4)}, s{sTmp} offen offset:{1024*j} sc1")
        A(f"s_add_u32 s{sTmp}, s{sA}, {XB}")
        A(f"buffer_store_dwordx4 {v(X+4*j,4)}, v{vL16}, {s(rWS,4)}, s{sTmp} offen offset:{1024*j} sc1")
    allreduce(A, "v_add_f32", [RA+j for j in R4], [Tm+j for j in R4])
    for j in R4: rnd_bf(A, RA+j)
    A(f"s_add_u32 s{sTmp}, s{sBq}, {RL}")
    A("s_mov_b64 exec, 1")
    A(f"buffer_store_dwordx4 {v(RA,4)}, v{vL16}, {s(rWS,4)}, s{sTmp} offen sc1")
    A("s_mov_b64 exec, -1")
    A(f"s_cmp_lg_u32 s{sSeg}, 0")
    A("s_cbranch_scc1 L_ln_fin")
    A(f"s_mov_b32 s{sSeg}, 1")
    A(f"s_add_u32 s{sA}, s{sA}, 16384")
    A(f"s_add_u32 s{sBq}, s{sBq}, 64")
    A(f"s_waitcnt vmcnt({10 + (16*OPN[0] if OPF[0] else 0)})")
    for i in range(0, 16, 2): A(f"v_mov_b64 {v(X+i,2)}, {v(100+i,2)}")
    A("s_branch L_ln_pass")
    A.label("L_ln_fin")
    A("s_waitcnt vmcnt(0)")
    A("s_barrier")
    signal(A, "ln", lambda: A(f"v_mov_b32 v5, {D_LN}\nv_mov_b32 v6, 1"), 5, 6)
    A.label("L_ln_done")
    wstamp(A, 2)

def load_frags(A, nb, issue8, home, TB, PT, depth=3):
    vm = Cnt(A, "vmcnt", 63); toks = {}
    for bi in range(nb + depth):
        if bi >= depth:
            b = bi - depth; Tt = TB[b % len(TB)]
            vm.wait(toks[b])
            for half in range(2):
                for t in range(2):
                    kind, base = home(b, half, t)
                    for r in range(4):
                        lo, hi = Tt + 8*half + 2*r, Tt + 8*half + 2*r + 1
                        sel = sPerm1 if t else sPerm0
                        if kind == "v": A(f"v_perm_b32 v{base+r}, v{hi}, v{lo}, s{sel}")
                        else:
                            A(f"v_perm_b32 v{PT+(r&1)}, v{hi}, v{lo}, s{sel}")
                            A(f"v_accvgpr_write_b32 a{base+r}, v{PT+(r&1)}")
        if bi < nb:
            for half in range(2):
                issue8(bi, half, TB[bi % len(TB)] + 8*half)
                for _ in range(8): toks[bi] = vm.issue()

def hrole(A):
    MI = {"k": 0, "v": 1, "q": 2}
    def wf(m, t, k):
        n = (MI[m]*16 + k)*2 + t
        return ("a", 4*n) if n < 64 else ("v", 128 + 4*(n-64))
    def wop(m, t, k):
        kind, base = wf(m, t, k)
        return (a if kind == "a" else v)(base, 4)
    vWa, vXs, vXB = 5, 6, 7
    A(f"""
    s_lshr_b32 s{sHd}, s{sI}, 2
    s_and_b32 s{sR}, s{sI}, 3
    ; W voffset = g*65536 + h*256 + 64w + 4c
    v_lshlrev_b32 v{vWa}, 16, v{vG}
    v_lshl_add_u32 v{vWa}, v{vC}, 2, v{vWa}
    s_lshl_b32 s{sTmp}, s{sHd}, 8
    s_lshl_b32 s{sTmp2}, s{sW}, 6
    s_add_u32 s{sTmp}, s{sTmp}, s{sTmp2}
    v_add_u32 v{vWa}, s{sTmp}, v{vWa}
    v_lshlrev_b32 v{vXs}, 10, v{vC}
    v_lshl_add_u32 v{vXs}, v{vG}, 4, v{vXs}
    s_lshr_b32 s{sTmp}, s{sW}, 1
    s_lshl_b32 s{sTmp}, s{sTmp}, 14
    s_and_b32 s{sTmp2}, s{sW}, 1
    s_lshl_b32 s{sTmp2}, s{sTmp2}, 9
    s_add_u32 s{sTmp}, s{sTmp}, s{sTmp2}
    v_add_u32 v{vXs}, s{sTmp}, v{vXs}
    v_mov_b32 v{vXB}, v{vL16}
    """)
    if WPF[0]:
        big = WPF[0] == 1
        A(f"""
        s_lshr_b32 s{sTmp}, s{sI}, {5 if big else 6}
        s_lshl_b32 s{sTmp}, s{sTmp}, 3
        s_add_u32 s{sTmp}, s{sTmp}, {16 if big else 24}
        s_load_dwordx2 s[68:69], s[0:1], s{sTmp}
        s_and_b32 s{sTmp}, s{sI}, {31 if big else 63}
        s_lshl_b32 s{sTmp}, s{sTmp}, {17 if big else 16}
        s_waitcnt lgkmcnt(0)
        """)
        srd(A, rW, 68, 4 << 20)
        for i in range(32 if big else 16):
            A(f"buffer_load_dwordx4 v[{128+4*(i&7)}:{131+4*(i&7)}], v{vT16}, {s(rW,4)}, s{sTmp} offen")
            A(f"s_add_u32 s{sTmp}, s{sTmp}, 4096")
        A(f"s_waitcnt vmcnt({WPW[0]})")
    mats = "kvq"
    def issue8(b, half, Tt):
        m = mats[b // 8]; k = 2*(b % 8) + half
        if b % 8 == 0 and half == 0: srd(A, rW, {"q": 80, "k": 82, "v": 84}[m], 4 << 20)
        for j in range(8):
            A(f"s_mov_b32 s{sTmp}, {(32*k + j)*8192}")
            A(f"buffer_load_dword v{Tt+j}, v{vWa}, {s(rW,4)}, s{sTmp} offen")
    if not HDMA[0]:
        load_frags(A, 24, issue8, lambda b, half, t: wf(mats[b // 8], t, 2*(b % 8) + half), [16, 32, 48], 64)
    else:
        NS = 6; SB = 65536; vS, vR0, vR1, sMw = 8, 9, 10, 36
        A(f"""
        v_lshlrev_b32 v{vS}, 13, v{vG}
        v_lshl_add_u32 v{vS}, v{vC}, 4, v{vS}
        s_lshl_b32 s{sTmp}, s{sHd}, 8
        s_lshl_b32 s{sTmp2}, s{sW}, 17
        s_add_u32 s{sTmp}, s{sTmp}, s{sTmp2}
        v_add_u32 v{vS}, s{sTmp}, v{vS}
        v_lshlrev_b32 v{vR0}, 11, v{vG}
        v_lshl_add_u32 v{vR0}, v{vC}, 2, v{vR0}
        s_lshl_b32 s{sTmp}, s{sW}, 6
        s_add_u32 s{sTmp}, s{sTmp}, {SB}
        v_add_u32 v{vR0}, s{sTmp}, v{vR0}
        v_add_u32 v{vR1}, {3*16384}, v{vR0}
        s_lshl_b32 s{sMw}, s{sW}, 12
        s_add_u32 s{sMw}, s{sMw}, {SB}
        """)
        vm = Cnt(A, "vmcnt", 63); ct = {}
        def cissue(c):
            if c % 8 == 0: srd(A, rW, {"q": 80, "k": 82, "v": 84}[mats[c // 8]], 4 << 20)
            for j in range(4):
                A(f"s_add_u32 m0, s{sMw}, {(c % NS)*16384 + j*1024}")
                A(f"s_mov_b32 s{sTmp}, {(64*(c % 8) + 4*j)*8192}")
                A(f"buffer_load_dwordx4 v{vS}, {s(rW,4)}, s{sTmp} offen lds"); tok = vm.issue()
            return tok
        for c in range(NS - 1): ct[c] = cissue(c)
        for c in range(24):
            vm.wait(ct[c])
            A("s_barrier")
            if c + NS - 1 < 24: ct[c+NS-1] = cissue(c + NS - 1)
            ra = vR0 if (c % NS) < 3 else vR1; so = ((c % NS) % 3) * 64
            for i in range(8):
                o = so + 32*(i >> 2) + 2*(i & 3)
                A(f"ds_read2st64_b32 {v(16+2*i,2)}, v{ra} offset0:{o} offset1:{o+1}")
            for i in range(8):
                if i % 2 == 0: A(f"s_waitcnt lgkmcnt({6-i})")
                for t in range(2):
                    kind, base = wf(mats[c // 8], t, 2*(c % 8) + (i >> 2))
                    sel = sPerm1 if t else sPerm0
                    if kind == "v": A(f"v_perm_b32 v{base+(i&3)}, v{17+2*i}, v{16+2*i}, s{sel}")
                    else:
                        A(f"v_perm_b32 v{32+t}, v{17+2*i}, v{16+2*i}, s{sel}")
                        A(f"v_accvgpr_write_b32 a{base+(i&3)}, v{32+t}")
    wstamp(A, 3)
    wait_dword(A, "ln", D_LN, 64, 8, 9)
    wstamp(A, 4)
    sM0 = 35
    def dma_x(sseg):
        A(f"s_lshl_b32 s{sTmp}, s{sseg}, 15")
        A(f"s_add_u32 s{sTmp}, s{sTmp}, {XN}")
        A(f"s_mov_b32 m0, s{sM0}")
        for k in range(8):
            if k: A(f"s_add_u32 m0, m0, 960")
            A(f"buffer_load_dwordx4 v{vXs}, {s(rWS,4)}, s{sTmp} offen offset:{64*k} sc1 lds")
        A(f"s_xor_b32 s{sM0}, s{sM0}, 32768")
    A(f"s_lshl_b32 s{sM0}, s{sW}, 13")
    A(f"s_mov_b32 s{sSeg}, s{sR}")
    A(f"s_mov_b32 s{sPrev}, 64")
    dma_x(sSeg)
    ACC, XF, PK = 16, 64, 80
    acc = lambda tile, m, t: ACC + 4*((tile*3 + MI[m])*2 + t)
    A("s_waitcnt vmcnt(0)")
    A.label("L_p1")
    A("s_barrier")
    A.label("L_p1b")
    A(f"s_add_u32 s{sA}, s{sSeg}, {NR}")
    A(f"s_cmp_ge_u32 s{sA}, 64")
    A(f"s_cselect_b32 s{sA}, s{sSeg}, s{sA}")
    dma_x(sA)
    lg = Cnt(A, "lgkmcnt", 15); tk = {}
    def rdx(i):
        A(f"ds_read_b128 {v(XF+4*(i&3),4)}, v{vXB} offset:{1024*(i&31)}"); tk[i] = lg.issue()
    for i in range(3): rdx(i)
    A(f"s_lshl_b32 s{sA}, s{sSeg}, 5")
    A(f"s_add_u32 s{sA}, s{sA}, s{sHd}")
    A(f"s_lshl_b32 s{sBq}, s{sA}, 13")
    A(f"s_add_u32 s{sBq}, s{sBq}, {QX}")
    A(f"s_lshl_b32 s{sA}, s{sA}, 14")
    A(f"s_add_u32 s{sA}, s{sA}, {KV}")
    def st_t(m, tile, pk, sbase):
        for i in range(4): A(f"v_cvt_pk_bf16_f32 v{pk+i}, v{acc(tile,m,0)+i}, v{acc(tile,m,1)+i}")
        A(f"s_add_u32 s{sTmp}, s{sbase}, {4096*tile}")
        A(f"buffer_store_dwordx4 {v(pk,4)}, v{vT16}, {s(rWS,4)}, s{sTmp} offen" + (" sc1" if m == "k" else ""))
    def st_v(t):
        pk = PK + 12 + 4*t
        for tile in range(2):
            for u in range(2): A(f"v_cvt_pk_bf16_f32 v{pk+2*tile+u}, v{acc(tile,'v',t)+2*u}, v{acc(tile,'v',t)+2*u+1}")
        A(f"s_add_u32 s{sTmp}, s{sA}, {8192 + 4096*t}")
        A(f"buffer_store_dwordx4 {v(pk,4)}, v{vT16}, {s(rWS,4)}, s{sTmp} offen sc1")
    for i in range(64):
        tile, k = (i >> 4) & 1, i & 15
        lg.wait(tk[i])
        xf = v(XF+4*(i&3), 4)
        n = 0
        for m in ("kv" if i < 32 else "q"):
            for t in range(2):
                d = v(acc(tile, m, t), 4); c = 0 if k == 0 else d
                if m == "v": A(f"v_mfma_f32_16x16x32_bf16 {d}, {xf}, {wop(m,t,k)}, {c}")
                else: A(f"v_mfma_f32_16x16x32_bf16 {d}, {wop(m,t,k)}, {xf}, {c}")
                n += 1
                if n == 1 and i + 3 < 64: rdx(i + 3)
        if i == 17: st_t("k", 0, PK, sA)
        if i == 32: st_t("k", 1, PK+8, sA)
        if i == 33: st_v(0)
        if i == 34: st_v(1)
        if i == 49: st_t("q", 0, PK+4, sBq)
    st_t("q", 1, PK+20, sBq)
    A(f"v_xor_b32 v{vXB}, 0x8000, v{vXB}")
    A("s_waitcnt vmcnt(2)")
    A("s_barrier")
    seg_signal(A, "kv2", sSeg, C_KV, 8, 9)
    if WST[0]:
        A(f"s_cmp_ge_u32 s{sSeg}, {NR}")
        A("s_cbranch_scc1 L_nost2")
        wstamp(A, 2)
        A.label("L_nost2")
    A(f"s_add_u32 s{sSeg}, s{sSeg}, {NR}")
    A(f"s_cmp_lt_u32 s{sSeg}, 64")
    A("s_cbranch_scc1 L_p1b")
    A("s_waitcnt vmcnt(0)")
    A("s_barrier")
    A.label("L_p1_done")
    wstamp(A, 5)
    if NOP2[0]: A("s_branch L_end")
    RSM = 1056; L_MN = 0; L_KM = 8704; L_VM = L_KM + 4096
    vMW, vMR, vNI, vVR, vVW = 5, 6, 7, 8, 9
    sMask = 52
    sQo, sVo, sOo = 36, 37, 38
    A(f"""
    ; row(c)
    v_lshrrev_b32 v10, 2, v{vC}
    v_and_b32 v11, 1, v{vC}
    v_lshl_add_u32 v10, v10, 1, v11
    v_mul_u32_u24 v10, {RSM}, v10
    v_lshl_add_u32 v{vMR}, v{vG}, 4, v10
    v_lshl_add_u32 v{vMW}, v{vG}, 6, v10
    v_and_b32 v11, 2, v{vC}
    v_lshl_add_u32 v{vMW}, v11, 4, v{vMW}
    s_lshl_b32 s{sTmp}, s{sW}, 8
    v_add_u32 v{vMW}, s{sTmp}, v{vMW}
    v_mov_b32 v{vNI}, 0xff800000
    v_lshrrev_b32 v{vVW}, 1, v{vT16}
    v_lshrrev_b32 v{vVR}, 1, v{vL16}
    s_and_b32 s{sTmp}, s{sW}, 2
    s_lshl_b32 s{sVo}, s{sTmp}, 10
    s_lshl_b32 s{sTmp}, s{sTmp}, 9
    v_add_u32 v{vVR}, s{sTmp}, v{vVR}
    s_and_b32 s{sTmp}, s{sW}, 1
    s_lshl_b32 s{sQo}, s{sTmp}, 12
    s_lshl_b32 s{sOo}, s{sTmp}, 17
    s_add_u32 s{sOo}, s{sOo}, s{sVo}
    s_lshl_b32 s{sTmp2}, s{sHd}, 12
    s_add_u32 s{sOo}, s{sOo}, s{sTmp2}
    s_add_u32 s{sOo}, s{sOo}, {OX}
    s_lshl_b32 s{sTmp}, s{sTmp}, 4
    v_lshlrev_b32 v10, 2, v{vG}
    v_sub_u32 v10, v{vC}, v10
    v_add_u32 v10, s{sTmp}, v10
    s_mov_b32 s{sC}, {f2u((128 ** -0.5) * math.log2(math.e)):#x}
    """)
    for t in range(2):
        for i in range(4): A(f"v_cmp_le_i32 s[{sMask+2*(4*t+i)}:{sMask+2*(4*t+i)+1}], {16*t+i}, v10")
    wait_dword(A, "init", D_INIT, 32, 10, 11)
    QF, KF, VF, S, AM, MF = 16, 32, 64, 80, 92, 108
    t0, t1 = 10, 11
    A(f"s_mov_b32 s{sSeg}, s{sR}")
    A.label("L_p2")
    A(f"""
    s_lshl_b32 s{sA}, s{sSeg}, 5
    s_add_u32 s{sA}, s{sA}, s{sHd}
    s_lshl_b32 s{sBq}, s{sA}, 13
    s_add_u32 s{sBq}, s{sBq}, {QX}
    s_add_u32 s{sBq}, s{sBq}, s{sQo}
    s_lshl_b32 s{sA}, s{sA}, 14
    s_add_u32 s{sA}, s{sA}, {KV}
    """)
    for k in range(4): A(f"buffer_load_dwordx4 {v(QF+4*k,4)}, v{vL16}, {s(rWS,4)}, s{sBq} offen offset:{1024*k} sc1")
    for i in range(8):
        if i == 4: A(f"s_add_u32 s{sA}, s{sA}, 4096")
        A(f"buffer_load_dwordx4 {v(KF+4*i,4)}, v{vL16}, {s(rWS,4)}, s{sA} offen offset:{1024*(i&3)} sc1")
    A(f"s_add_u32 s{sA}, s{sA}, s{sVo}")
    for t in range(2):
        A(f"s_add_u32 s{sA}, s{sA}, 4096")
        for wp in range(2): A(f"buffer_load_dwordx4 {v(VF+4*(2*wp+t),4)}, v{vL16}, {s(rWS,4)}, s{sA} offen offset:{1024*wp} sc1")
    A("s_waitcnt vmcnt(4)")
    for k in range(4):
        for t in range(2):
            A(f"v_mfma_f32_16x16x32_bf16 {v(S+4*t,4)}, {v(KF+16*t+4*k,4)}, {v(QF+4*k,4)}, {v(S+4*t,4) if k else 0}")
    A(f"s_lshl_b32 s{sA}, s{sSeg}, 13")
    A(f"s_add_u32 s{sA}, s{sA}, {MEMG}")
    A(f"s_add_u32 s{sBq}, s{sA}, 4096")
    for i in range(8): A(f"v_cndmask_b32 v{S+i}, v{vNI}, v{S+i}, s[{sMask+2*i}:{sMask+2*i+1}]")
    A(f"v_max3_f32 v12, v{S}, v{S+1}, v{S+2}")
    A(f"v_max3_f32 v12, v12, v{S+3}, v{S+4}")
    A(f"v_max3_f32 v12, v12, v{S+5}, v{S+6}")
    A(f"v_max_f32 v12, v12, v{S+7}")
    if PRE1[0]:
        A(f"""
        s_cmp_lg_u32 s{sW}, 0
        s_cbranch_scc1 L_p2_pre_ok
        v_mov_b32 v{t1}, 0
        s_sub_u32 s{sPrev}, s{sA}, 4096
        s_max_u32 s{sPrev}, s{sPrev}, {MEMG}
        L_p2_pre:
        buffer_load_dword v{t0}, v{t1}, {s(rWS,4)}, s{sPrev} offen sc1
        s_waitcnt vmcnt(0)
        v_cmp_eq_u32 vcc, -1, v{t0}
        s_cbranch_vccz L_p2_pre_ok
        s_sleep {SLP[0]}
        s_add_u32 s{sG}, s{sG}, 1
        s_cmp_lt_u32 s{sG}, {SPIN}
        s_cbranch_scc1 L_p2_pre
        L_p2_pre_ok:
        s_barrier
        """)
    A.label("L_p2_poll")
    A(f"buffer_load_dwordx4 {v(MF,4)}, v{vT16}, {s(rWS,4)}, s{sA} offen sc1")
    A(f"buffer_load_dwordx4 {v(MF+4,4)}, v{vT16}, {s(rWS,4)}, s{sBq} offen sc1")
    A(f"""
    s_waitcnt vmcnt(0)
    v_max3_u32 v{t0}, v{MF}, v{MF+1}, v{MF+2}
    v_max3_u32 v{t0}, v{t0}, v{MF+3}, v{MF+4}
    v_max3_u32 v{t0}, v{t0}, v{MF+5}, v{MF+6}
    v_max_u32 v{t0}, v{t0}, v{MF+7}
    v_cmp_eq_u32 vcc, -1, v{t0}
    s_cbranch_vccz L_p2_got
    s_sleep {2 if PRE1[0] else SLP[0]}
    s_add_u32 s{sG}, s{sG}, 1
    s_cmp_lt_u32 s{sG}, {SPIN}
    s_cbranch_scc1 L_p2_poll
    s_branch L_end
    L_p2_got:
    """)
    wstamp(A, 6)
    A(f"""
    ds_write2_b64 v{vMW}, {v(MF,2)}, {v(MF+2,2)} offset0:0 offset1:2
    ds_write2_b64 v{vMW}, {v(MF+4,2)}, {v(MF+6,2)} offset0:1 offset1:3
    s_waitcnt lgkmcnt(0)
    s_barrier
    """)
    lg = Cnt(A, "lgkmcnt", 15); tk = {}
    def rdm(k):
        A(f"ds_read_b128 {v(MF+4*(k&3),4)}, v{vMR} offset:{L_MN+64*k}"); tk[k] = lg.issue()
    for k in range(3): rdm(k)
    for k in range(16):
        lg.wait(tk[k]); xf = v(MF+4*(k&3), 4)
        for n, (m, t) in enumerate((("k",0),("k",1),("v",0),("v",1))):
            d = v(AM+4*n, 4); c = 0 if k == 0 else d
            if m == "v": A(f"v_mfma_f32_16x16x32_bf16 {d}, {xf}, {wop(m,t,k)}, {c}")
            else: A(f"v_mfma_f32_16x16x32_bf16 {d}, {wop(m,t,k)}, {xf}, {c}")
            if n == 0 and k + 3 < 16: rdm(k + 3)
    for i in range(4): A(f"v_cvt_pk_bf16_f32 v{AM+i}, v{AM+i}, v{AM+4+i}")
    A(f"ds_write_b128 v{vT16}, {v(AM,4)} offset:{L_KM}")
    A(f"v_cvt_pk_bf16_f32 v{AM+8}, v{AM+8}, v{AM+9}")
    A(f"v_cvt_pk_bf16_f32 v{AM+9}, v{AM+12}, v{AM+13}")
    A(f"ds_write_b64 v{vVW}, {v(AM+8,2)} offset:{L_VM}")
    KM, VMp, ONES, OO, LL = KF, KF+16, KF+24, AM, MF
    for i in range(4): A(f"v_mov_b32 v{ONES+i}, 0x3f803f80")
    A("s_waitcnt lgkmcnt(0)")
    A("s_barrier")
    for k in range(4): A(f"ds_read_b128 {v(KM+4*k,4)}, v{vL16} offset:{L_KM+1024*k}")
    for wp in range(2):
        for t in range(2):
            A(f"ds_read_b32 v{VMp+2*(2*wp+t)}, v{vVR} offset:{L_VM+512*wp+4*t}")
            A(f"v_mov_b32 v{VMp+2*(2*wp+t)+1}, 0")
    for k in range(4):
        A(f"s_waitcnt lgkmcnt({7-k})")
        A(f"v_mfma_f32_16x16x32_bf16 {v(S+8,4)}, {v(KM+4*k,4)}, {v(QF+4*k,4)}, {v(S+8,4) if k else 0}")
    A(f"v_max3_f32 v{t0}, v12, v{S+8}, v{S+9}")
    for sw in (32, 16):
        A(f"v_mov_b32 v{t1}, v{t0}")
        A(f"v_permlane{sw}_swap_b32 v{t0}, v{t1}")
        A(f"v_max_f32 v{t0}, v{t0}, v{t1}")
    A(f"v_mul_f32 v{t0}, s{sC}, v{t0}")
    for i in range(10): A(f"v_fma_f32 v{S+i}, v{S+i}, s{sC}, -v{t0}")
    for i in range(10): A(f"v_exp_f32 v{S+i}, v{S+i}")
    for i in range(4): A(f"v_cvt_pk_bf16_f32 v{S+i}, v{S+2*i}, v{S+2*i+1}")
    A(f"v_cvt_pk_bf16_f32 v{S+8}, v{S+8}, v{S+9}")
    A(f"v_mov_b32 v{S+9}, 0")
    A("s_waitcnt lgkmcnt(0)")
    A(f"v_mfma_f32_16x16x32_bf16 {v(LL,4)}, {v(ONES,4)}, {v(S,4)}, 0")
    for n in range(4): A(f"v_mfma_f32_16x16x32_bf16 {v(OO+4*n,4)}, {v(VF+4*n,4)}, {v(S,4)}, 0")
    A(f"v_mfma_f32_16x16x16_bf16 {v(LL,4)}, {v(ONES,2)}, {v(S+8,2)}, {v(LL,4)}")
    for n in range(4): A(f"v_mfma_f32_16x16x16_bf16 {v(OO+4*n,4)}, {v(VMp+2*n,2)}, {v(S+8,2)}, {v(OO+4*n,4)}")
    A(f"v_rcp_f32 v{t0}, v{LL}")
    A(f"s_lshl_b32 s{sA}, s{sSeg}, 18")
    A(f"s_add_u32 s{sA}, s{sA}, s{sOo}")
    for wp in range(2):
        for i in range(8): A(f"v_mul_f32 v{OO+8*wp+i}, v{OO+8*wp+i}, v{t0}")
        for i in range(4): A(f"v_cvt_pk_bf16_f32 v{OO+8*wp+i}, v{OO+8*wp+i}, v{OO+8*wp+4+i}")
        A(f"buffer_store_dwordx4 {v(OO+8*wp,4)}, v{vL16}, {s(rWS,4)}, s{sA} offen offset:{1024*wp} sc1")
    A("s_waitcnt vmcnt(0)")
    A("s_barrier")
    seg_signal(A, "o", sSeg, C_O, 10, 11)
    A(f"s_add_u32 s{sSeg}, s{sSeg}, {NR}")
    A(f"s_cmp_lt_u32 s{sSeg}, 64")
    A("s_cbranch_scc1 L_p2")
    A("s_branch L_end")

def orole(A):
    vWa, vWb, vXo, vRd = 5, 6, 7, 8
    sCs, sT_ = 28, 30
    A(f"""
    s_sub_u32 s{sTmp}, s{sI}, {M0}
    s_and_b32 s{sCs}, s{sTmp}, 15
    s_lshr_b32 s{sT_}, s{sTmp}, 4
    v_lshlrev_b32 v{vWa}, 13, v{vG}
    v_lshl_add_u32 v{vWa}, v{vC}, 2, v{vWa}
    s_lshl_b32 s{sTmp}, s{sW}, 20
    s_lshl_b32 s{sTmp2}, s{sCs}, 6
    s_add_u32 s{sTmp}, s{sTmp}, s{sTmp2}
    v_add_u32 v{vWa}, s{sTmp}, v{vWa}
    v_add_u32 v{vWb}, 4096, v{vWa}
    v_lshlrev_b32 v{vXo}, 12, v{vG}
    v_lshl_add_u32 v{vXo}, v{vC}, 2, v{vXo}
    s_lshl_b32 s{sTmp}, s{sW}, 10
    s_add_u32 s{sTmp}, s{sTmp}, s{sTmp2}
    v_add_u32 v{vXo}, s{sTmp}, v{vXo}
    s_lshl_b32 s{sTmp}, s{sW}, 2
    v_add_u32 v{vRd}, s{sTmp}, v{vL16}
    """)
    wait_dword(A, "moe", D_MOEDONE, 1, 10, 11, sleep=40)
    wstamp(A, 3)
    srd(A, rW, 86, 4 << 20)
    def issue8(b, half, Tt):
        ks = 2*b + half
        A(f"s_mov_b32 s{sTmp}, {ks*32768}")
        for j in range(8): A(f"buffer_load_dword v{Tt+j}, v{vWa if j < 4 else vWb}, {s(rW,4)}, s{sTmp} offen offset:{1024*(j&3)}")
    load_frags(A, 16, issue8, lambda b, half, t: ("a", 4*((2*b+half)*2 + t)), [16, 32, 48], 64)
    wstamp(A, 4)
    OF, D, XX, P = 128, 16, 24, 32
    A.label("L_o")
    A(f"""
    s_lshl_b32 s{sA}, s{sT_}, 14
    buffer_load_dword v{XX}, v{vXo}, {s(rX,4)}, s{sA} offen
    s_add_u32 s{sTmp}, s{sA}, {XB}
    buffer_load_dword v{XX+1}, v{vXo}, {s(rWS,4)}, s{sTmp} offen sc1
    s_lshr_b32 s{sPrev}, s{sT_}, 1
    s_lshl_b32 s{sPrev}, s{sPrev}, 8
    s_add_u32 s{sPrev}, s{sPrev}, {CNT}
    s_lshl_b32 s{sBq}, s{sT_}, 17
    s_lshl_b32 s{sTmp}, s{sW}, 15
    s_add_u32 s{sBq}, s{sBq}, s{sTmp}
    s_add_u32 s{sBq}, s{sBq}, {OX}
    """)
    wait_dword(A, "oc", C_O, 32, 10, 11, sleep=SLP[1], srdn=rWS, soff=f"s{sPrev}")
    wstamp(A, 6)
    for ks in range(32):
        if ks and ks % 4 == 0: A(f"s_add_u32 s{sBq}, s{sBq}, 4096")
        A(f"buffer_load_dwordx4 {v(OF+4*ks,4)}, v{vL16}, {s(rWS,4)}, s{sBq} offen offset:{1024*(ks&3)} sc1")
    for ks in range(32):
        A(f"s_waitcnt vmcnt({31-ks})")
        for t in range(2):
            A(f"v_mfma_f32_16x16x32_bf16 {v(D+4*t,4)}, {v(OF+4*ks,4)}, {a(4*(2*ks+t),4)}, {v(D+4*t,4) if ks else 0}")
    A(f"ds_write_b128 v{vT16}, {v(D,4)}")
    A(f"ds_write_b128 v{vT16}, {v(D+4,4)} offset:4096")
    A("s_waitcnt lgkmcnt(0)")
    A("s_barrier")
    for t in range(2):
        for w2 in range(4): A(f"ds_read_b32 v{P+4*t+w2}, v{vRd} offset:{4096*t+1024*w2}")
    unpack(A, XX+2, XX+3, XX); unpack(A, XX+4, XX+5, XX+1)
    A("s_waitcnt lgkmcnt(0)")
    A("s_barrier")
    for t in range(2):
        A(f"v_add_f32 v{P+4*t}, v{P+4*t}, v{P+4*t+1}")
        A(f"v_add_f32 v{P+4*t+2}, v{P+4*t+2}, v{P+4*t+3}")
        A(f"v_add_f32 v{P+4*t}, v{P+4*t}, v{P+4*t+2}")
    A(f"v_cvt_pk_bf16_f32 v{P+1}, v{P}, v{P+4}")
    unpack(A, P, P+4, P+1)
    A(f"v_add_f32 v{P}, v{P}, v{XX+2}")
    A(f"v_add_f32 v{P+4}, v{P+4}, v{XX+3}")
    A(f"v_cvt_pk_bf16_f32 v{P+1}, v{P}, v{P+4}")
    unpack(A, P, P+4, P+1)
    A(f"v_add_f32 v{P}, v{P}, v{XX+4}")
    A(f"v_add_f32 v{P+4}, v{P+4}, v{XX+5}")
    A(f"v_cvt_pk_bf16_f32 v{P+1}, v{P}, v{P+4}")
    A(f"buffer_store_dword v{P+1}, v{vXo}, {s(rOUT,4)}, s{sA} offen" + OSC[0])
    A(f"s_add_u32 s{sT_}, s{sT_}, {NG}")
    A(f"s_cmp_lt_u32 s{sT_}, 128")
    A("s_cbranch_scc1 L_o")
    A("s_branch L_end")

def mrole(A):
    sM, sI0, sI1 = 28, 29, 30
    vGa, vDa, vT4 = 5, 6, 7
    rU, rD = 52, 56
    A(f"""
    s_sub_u32 s{sM}, s{sI}, {M0}
    v_lshrrev_b32 v{vGa}, 2, v{vL16}
    s_mul_i32 s{sTmp}, s{sM}, 224
    s_mul_i32 s{sTmp2}, s{sW}, {128*3584}
    s_add_u32 s{sTmp}, s{sTmp}, s{sTmp2}
    v_add_u32 v{vGa}, s{sTmp}, v{vGa}
    v_lshlrev_b32 v{vT4}, 2, v0
    s_mul_i32 s{sTmp}, s{sM}, {112*1024}
    v_add_u32 v{vDa}, s{sTmp}, v{vT4}
    """)
    pf_wo(A, M0)
    srd(A, rW, 90, 512*3584); srd(A, rU, 92, 512*3584); srd(A, rD, 94, 1792*1024)
    wait_dword(A, "lnm", D_LN, 64, 10, 11, sleep=16)
    n = 0
    def throttle():
        nonlocal n
        n += 1
        if n % 16 == 0: A("s_waitcnt vmcnt(40)")
    for k in range(128):
        A(f"s_mov_b32 s{sTmp}, {k*3584}")
        A(f"buffer_load_dword v{128+k}, v{vGa}, {s(rW,4)}, s{sTmp} offen"); throttle()
        A(f"buffer_load_dword a{k}, v{vGa}, {s(rU,4)}, s{sTmp} offen"); throttle()
    for f in range(112):
        if f % 4 == 0: A(f"s_mov_b32 s{sTmp}, {f*1024}")
        A(f"buffer_load_dword a{128+f}, v{vDa}, {s(rD,4)}, s{sTmp} offen offset:{1024*(f&3)}"); throttle()
    K, Tm = 16, 24
    A(f"v_lshlrev_b32 v10, 5, v0")
    A(f"s_mov_b32 s{sTmp}, {RL}")
    A(f"buffer_load_dwordx4 {v(K,4)}, v10, {s(rWS,4)}, s{sTmp} offen sc1")
    A(f"buffer_load_dwordx4 {v(K+4,4)}, v10, {s(rWS,4)}, s{sTmp} offen offset:16 sc1")
    A(f"v_lshlrev_b32 v10, 3, v0")
    A(f"v_sub_u32 v10, 2047, v10")
    A("s_waitcnt vmcnt(0)")
    for e in range(8):
        A(f"v_ashrrev_i32 v11, 31, v{K+e}")
        A(f"v_or_b32 v11, 0x80000000, v11")
        A(f"v_xor_b32 v{K+e}, v{K+e}, v11")
        A(f"v_and_b32 v{K+e}, 0xffff0000, v{K+e}")
        A(f"v_subrev_u32 v11, {e}, v10")
        A(f"v_or_b32 v{K+e}, v{K+e}, v11")
    A(f"s_lshl_b32 s{sTmp}, s{sW}, 2")
    A(f"v_mov_b32 v13, s{sTmp}")
    A("v_mov_b32 v14, 0")
    for rnd, sk in enumerate((sI0, sI1)):
        A(f"v_max3_u32 v12, v{K}, v{K+1}, v{K+2}")
        A(f"v_max3_u32 v12, v12, v{K+3}, v{K+4}")
        A(f"v_max3_u32 v12, v12, v{K+5}, v{K+6}")
        A(f"v_max_u32 v12, v12, v{K+7}")
        allreduce(A, "v_max_u32", [12], [11])
        A(f"ds_write_b32 v13, v12 offset:{16*rnd}")
        A("s_waitcnt lgkmcnt(0)")
        A("s_barrier")
        A(f"ds_read_b128 {v(Tm,4)}, v14 offset:{16*rnd}")
        A("s_waitcnt lgkmcnt(0)")
        A(f"v_max3_u32 v12, v{Tm}, v{Tm+1}, v{Tm+2}")
        A(f"v_max_u32 v12, v12, v{Tm+3}")
        A(f"v_readfirstlane_b32 s{sk}, v12")
        if rnd == 0:
            for e in range(8):
                A(f"v_cmp_ne_u32 vcc, v12, v{K+e}")
                A(f"v_cndmask_b32 v{K+e}, 0, v{K+e}, vcc")
    for sk in (sI0, sI1):
        A(f"s_and_b32 s{sk}, s{sk}, 0x7ff")
        A(f"s_sub_u32 s{sk}, 2047, s{sk}")
    X0, X1, R0 = 16, 17, 18
    for sk, xr, rr in ((sI0, X0, R0), (sI1, X1, R0+1)):
        A(f"s_lshl_b32 s{sTmp}, s{sk}, 10")
        A(f"s_add_u32 s{sTmp}, s{sTmp}, {XN}")
        A(f"buffer_load_dword v{xr}, v{vT4}, {s(rWS,4)}, s{sTmp} offen sc1")
        A(f"s_lshl_b32 s{sTmp}, s{sk}, 2")
        A(f"s_add_u32 s{sTmp}, s{sTmp}, {RL}")
        A(f"buffer_load_dword v{rr}, v14, {s(rWS,4)}, s{sTmp} offen sc1")
    AC = 24
    for i in range(8): A(f"v_mov_b32 v{AC+i}, 0")
    A("s_waitcnt vmcnt(0)")
    U = 32
    for p in range(64):
        sx = 60 + 6*(p & 1)
        A(f"v_readlane_b32 s{sx}, v{X0}, {p}")
        A(f"v_readlane_b32 s{sx+1}, v{X1}, {p}")
        for u in range(2): A(f"v_accvgpr_read_b32 v{U+4+u}, a{2*p+u}")
        A(f"s_lshl_b32 s{sx+2}, s{sx}, 16"); A(f"s_lshl_b32 s{sx+3}, s{sx+1}, 16")
        A(f"s_and_b32 s{sx+4}, s{sx}, 0xffff0000"); A(f"s_and_b32 s{sx+5}, s{sx+1}, 0xffff0000")
        for u in range(2):
            for mat in range(2):
                unpack(A, U+2*mat, U+2*mat+1, (128+2*p+u) if mat == 0 else (U+4+u))
            for mat in range(2):
                for tok in range(2):
                    for col in range(2):
                        A(f"v_fmac_f32 v{AC+4*mat+2*tok+col}, s{sx+2+2*u+tok}, v{U+2*mat+col}")
    LR, LH = 64, 64 + 8192
    A(f"ds_write_b128 v{vT16}, {v(AC,4)} offset:{LR}")
    A(f"ds_write_b128 v{vT16}, {v(AC+4,4)} offset:{LR+4096}")
    A("s_waitcnt lgkmcnt(0)")
    A("s_barrier")
    Pp = 40
    for mat in range(2):
        for w2 in range(4): A(f"ds_read_b128 {v(Pp+16*mat+4*w2,4)}, v{vL16} offset:{LR+4096*mat+1024*w2}")
    A("s_waitcnt lgkmcnt(0)")
    for mat in range(2):
        for i in range(4):
            b = Pp + 16*mat + i
            A(f"v_add_f32 v{b}, v{b}, v{b+4}"); A(f"v_add_f32 v{b+8}, v{b+8}, v{b+12}"); A(f"v_add_f32 v{b}, v{b}, v{b+8}")
            rnd_bf(A, b)
    def sigmoid(dst, src):
        A(f"v_mul_f32 v{dst}, {f2u(-math.log2(math.e)):#x}, v{src}")
        A(f"v_exp_f32 v{dst}, v{dst}")
        A(f"v_add_f32 v{dst}, 1.0, v{dst}")
        A(f"v_rcp_f32 v{dst}, v{dst}")
    for i in range(4):
        sigmoid(Pp+4+i, Pp+i)
        A(f"v_mul_f32 v{Pp+i}, v{Pp+i}, v{Pp+4+i}")
        rnd_bf(A, Pp+i)
        A(f"v_mul_f32 v{Pp+i}, v{Pp+i}, v{Pp+16+i}")
        rnd_bf(A, Pp+i)
    A(f"ds_write_b128 v{vL16}, {v(Pp,4)} offset:{LH}")
    for i in range(4): A(f"v_mov_b32 v{AC+i}, 0")
    A("s_waitcnt lgkmcnt(0)")
    HB = 40
    for blk in range(7):
        for q in range(8): A(f"ds_read_b128 {v(HB+4*q,4)}, v14 offset:{LH+16*(8*blk+q)}")
        A("s_waitcnt lgkmcnt(0)")
        for q in range(8):
            for u in range(2):
                f = 2*(8*blk+q) + u
                A(f"v_accvgpr_read_b32 v{U+2}, a{128+f}")
                unpack(A, U, U+1, U+2)
                for tok in range(2):
                    for col in range(2):
                        A(f"v_fmac_f32 v{AC+2*tok+col}, v{HB+4*q+2*tok+u}, v{U+col}")
    A(f"s_lshl_b32 s{sTmp}, s{sM}, 12")
    A(f"s_add_u32 s{sTmp}, s{sTmp}, {MOEP}")
    A(f"buffer_store_dwordx4 {v(AC,4)}, v{vT16}, {s(rWS,4)}, s{sTmp} offen sc1")
    A("s_waitcnt vmcnt(0)")
    A("s_barrier")
    signal(A, "moe", lambda: A(f"v_mov_b32 v10, {D_MOE}\nv_mov_b32 v11, 1"), 10, 11, ret=True)
    A("s_waitcnt vmcnt(0)")
    A(f"s_cmp_lg_u32 s{sW}, 0")
    A("s_cbranch_scc1 L_m_w")
    A("s_mov_b64 exec, 1")
    A("ds_write_b32 v14, v11 offset:32")
    A("s_mov_b64 exec, -1")
    A.label("L_m_w")
    A("s_waitcnt lgkmcnt(0)")
    A("s_barrier")
    A("ds_read_b32 v11, v14 offset:32")
    A("s_waitcnt lgkmcnt(0)")
    A(f"v_readfirstlane_b32 s{sTmp}, v11")
    A(f"s_cmp_lg_u32 s{sTmp}, 15")
    A("s_cbranch_scc1 L_orole2")
    for m in range(16):
        A(f"s_mov_b32 s{sTmp}, {MOEP + 4096*m}")
        A(f"buffer_load_dwordx4 {v(40+4*m,4)}, v{vT16}, {s(rWS,4)}, s{sTmp} offen sc1")
    for tok in range(2):
        sigmoid(U+tok, R0+tok); rnd_bf(A, U+tok)
    A("s_waitcnt vmcnt(0)")
    for m in range(1, 16):
        for i in range(4): A(f"v_add_f32 v{40+i}, v{40+i}, v{40+4*m+i}")
    for tok, (sk, xr) in enumerate(((sI0, X0), (sI1, X1))):
        unpack(A, U+2, U+3, xr)
        for col in range(2):
            r = 40 + 2*tok + col
            rnd_bf(A, r)
            A(f"v_mul_f32 v{r}, v{r}, v{U+tok}")
            rnd_bf(A, r)
            A(f"v_add_f32 v{r}, v{r}, v{U+2+col}")
        A(f"v_cvt_pk_bf16_f32 v{48+tok}, v{40+2*tok}, v{41+2*tok}")
        A(f"s_lshl_b32 s{sTmp}, s{sk}, 10")
        A(f"s_add_u32 s{sTmp}, s{sTmp}, {XB}")
        A(f"buffer_store_dword v{48+tok}, v{vT4}, {s(rWS,4)}, s{sTmp} offen sc1")
    A("s_waitcnt vmcnt(0)")
    A("s_barrier")
    signal(A, "moed", lambda: A(f"v_mov_b32 v10, {D_MOEDONE}\nv_mov_b32 v11, 1"), 10, 11)
    A("s_branch L_orole2")

HEADER = open("cdna_kernels/" + NAME + ".s.ref").read().split("; Override launch geometry")[0] if __import__("os").path.exists("cdna_kernels/" + NAME + ".s.ref") else ""

def gen_full(**kw):
    A = Asm()
    WST[0] = kw.get("stamps") == 2
    for ln_ in HEADER.strip().split("\n"):
        if ln_: A.raw(ln_)
    A.raw(f"; @launch grid=(256,1,1) block=(256,1,1) lds=163840")
    A.raw('.amdgcn_target "amdgcn-amd-amdhsa--gfx950"')
    A.raw(".text")
    kernel_begin(A, NAME + "_kernel")
    A(f"""
    s_cmp_ge_u32 s2, 256
    s_cbranch_scc1 L_end0
    {"s_memrealtime s[90:91]" if kw.get("stamps") else ""}
    s_load_dwordx4 s[4:7], s[0:1], 104
    s_getreg_b32 s{sX}, hwreg(HW_REG_XCC_ID)
    s_and_b32 s{sX}, s{sX}, 7
    v_lshrrev_b32 v1, 6, v0
    v_readfirstlane_b32 s{sW}, v1
    s_waitcnt lgkmcnt(0)
    """)
    srd(A, rWS, 6, T.WS_BYTES)
    srd(A, rDBG, 4, 256)
    T.role_select(A, "L_worker", force=kw.pop("force", None))
    WPF[0] = kw.pop("wpf", False)
    OPF[0] = kw.pop("opf", True)
    SLP[:] = kw.pop("slp", [8, 2])
    OPN[0] = kw.pop("opn", 1)
    OSC[0] = kw.pop("osc", "")
    noo = kw.pop("noo", False)
    NOP2[0] = kw.pop("nop2", False)
    PRE1[0] = kw.pop("pre1", True)
    HDMA[0] = kw.pop("hdma", True)
    WPW[0] = kw.pop("wpw", 4)
    T.team(A, kvchk=True, **kw)
    A.label("L_end0")
    A("s_endpgm")
    A.label("L_worker")
    common(A)
    A(f"s_cmp_ge_u32 s{sI}, {O0}")
    A("s_cbranch_scc1 L_orole")
    A(f"s_cmp_ge_u32 s{sI}, {M0}")
    A("s_cbranch_scc1 L_mrole")
    hrole(A)
    A.label("L_orole")
    ln(A)
    A.label("L_orole2")
    if noo: A("s_branch L_end")
    orole(A)
    A.label("L_end")
    A("s_waitcnt vmcnt(0)")
    if WST[0]:
        wstamp(A, 7)
        A("s_mov_b64 exec, 1")
        for i, r in enumerate([72,73,74,75,98,99,100,101]): A(f"v_mov_b32 v{16+i}, s{r}")
        A(f"s_lshl_b32 s{sTmp}, s{sH}, 5")
        A(f"s_add_u32 s{sTmp}, s{sTmp}, {T.RES + 32768}")
        A("v_mov_b32 v0, 0")
        A(f"buffer_store_dwordx4 v[16:19], v0, {s(rWS,4)}, s{sTmp} offen")
        A(f"buffer_store_dwordx4 v[20:23], v0, {s(rWS,4)}, s{sTmp} offen offset:16")
        A("s_waitcnt vmcnt(0)")
    A("s_endpgm")
    A.label("L_mrole")
    mrole(A)
    A.raw('.section .rodata,"a"')
    A.raw(descriptor(NAME + "_kernel", 512, 102, 256))
    T.STAMP_NAMES = A.stamp_names
    return A.text()

if __name__ == "__main__":
    txt = gen_full()
    open("full.s", "w").write(txt)
    open("cdna_kernels/" + NAME + ".s", "w").write(txt)
```

```python
from asmlib import *

H2 = 0
H1 = 1 << 20
RES = (1 << 20) + (256 << 10)
XN = 2 << 20
KV = 16 << 20
QX = 50 << 20
MEMG = (1 << 20) + (512 << 10)
WS_BYTES = 256 << 20

L_MEM = 0; L_KX = 8192; L_VX = 16384; L_Q = 24576; L_K = 26880; L_O = 29184; L_ST = 31744; L_W = 32768
RS = 288; RSO = 320

rWS, rDBG, rW = 8, 12, 16
sX, sW, sT, sH = 20, 21, 22, 23
sStep, sTmp, sG, sTmp2 = 24, 25, 26, 27
sO1, sO1b, sO2, sO2b = 28, 29, 30, 31
sRd2, sPubO, sRst2, sRst1 = 32, 33, 34, 35
sKV, sMG, sC, sPerm0, sPerm1 = 36, 37, 38, 39, 40
sB = 44
sRetA, sRetB, sRet2 = 48, 49, 50
sMK, sMV, sRd, sPF = 41, 42, 100, 101
sSt = 56
SPIN = 400000
D_WIN, D_INIT, D_LN, D_MOE, D_MOEDONE = 4, 36, 68, 100, 132
CNT = (1 << 20) + (128 << 10)
C_KV, C_O = 0, 128
FLG = (1 << 20) + (64 << 10)
sFl, sFlS, sK = 62, 63, 64
sCm = 66
sRdy = 51

vIdx, vL16, vT16, vT16b, vT16c, vM1, vM2, vM3, vSt2, vQW, vQR, vOW, vOR = range(1, 14)
vT0, vT1, vPD = 0, 14, 15
MEMA = 16
ACCA = 48
ACCB = 56
STG = 64
POOL = 80
ACCV = 112
NEG = 120
S = MEMA + 4
VMR = 124

LDSF = [("q",1,0),("k",0,0),
        ("q",0,4),("k",1,4),
        ("k",0,2),("q",1,3)]
LDSF += [("o", i >> 1, i & 1) for i in (0, 1, 2, 4, 6, 8, 10, 12, 13, 15, 14)]
ALLF = [(m,t,sl) for m in "qkv" for sl in range(8) for t in range(2)] + [("o",t,k) for k in range(2) for t in range(8)]
HOME = {}
_n = 0
for f in ALLF:
    if f in LDSF: HOME[f] = ("l", LDSF.index(f))
    else:
        HOME[f] = ("a", 8*_n) if _n < 32 else ("v", 128 + 8*(_n-32)); _n += 1
assert _n == 47
KST = 248

def lds_frag_addr(idx, part):
    off = L_W + (2*idx + part) * 4096
    if idx == 16: off = L_VX + part * 4096
    if off < 65536: return vT16, off
    if off < 131072: return vT16b, off - 65536
    return vT16c, off - 131072

class Cnt:
    def __init__(self, A, name, cap): self.A, self.name, self.cap, self.n = A, name, cap, 0
    def issue(self): self.n += 1; return self.n
    def wait(self, tok):
        k = self.n - tok
        if k <= self.cap: self.A(f"s_waitcnt {self.name}({k})")
        else: self.A(f"s_waitcnt {self.name}({self.cap})")

def role_select(A, lab_worker, prefetch=False, force=None):
    if prefetch:
        A(f"""
        s_cmp_lt_u32 s{sW}, 2
        s_cbranch_scc1 L_nopf
        s_lshr_b32 s{sTmp}, s2, 6
        s_lshl_b32 s{sTmp}, s{sTmp}, 3
        s_add_u32 s{sTmp}, s{sTmp}, 16
        s_load_dwordx2 s[80:81], s[0:1], s{sTmp}
        s_and_b32 s{sTmp}, s2, 63
        s_lshl_b32 s{sTmp}, s{sTmp}, 16
        v_and_b32 v3, 127, v0
        v_lshlrev_b32 v3, 4, v3
        s_waitcnt lgkmcnt(0)
        """)
        srd(A, rW, 80, 4 << 20)
        for i in range(32):
            if i % 2 == 0 and i: A(f"s_add_u32 s{sTmp}, s{sTmp}, 4096")
            A(f"buffer_load_dwordx4 v[{128+4*(i&7)}:{131+4*(i&7)}], v3, {s(rW,4)}, s{sTmp} offen offset:{2048*(i&1)}")
        A.label("L_nopf")
    A(f"""
    s_cmp_lg_u32 s{sW}, 0
    s_cbranch_scc1 L_role_wait
    s_mov_b64 exec, 1
    v_mov_b32 v3, 1
    s_lshl_b32 s{sTmp}, s{sX}, 5
    v_mov_b32 v4, s{sTmp}
    buffer_atomic_add v3, v4, {s(rDBG,4)}, 0 offen sc0
    s_add_u32 s{sTmp}, s{sX}, 1
    v_mov_b32 v5, 0
    s_mov_b32 s{sG}, 0
    s_cmp_ge_u32 s2, 64
    s_cbranch_scc1 L_poll_win
    {f"s_cmp_eq_u32 s{sX}, {force}" if force is not None else f"s_and_b32 s{sStep}, s{sX}, 3"}
    s_cbranch_scc1 L_bid
    L_poll_win:
    buffer_load_dword v6, v5, {s(rDBG,4)}, 0 offen offset:{D_WIN} sc1
    s_waitcnt vmcnt(0)
    v_readfirstlane_b32 s{sStep}, v6
    s_cmp_lg_u32 s{sStep}, 0
    s_cbranch_scc1 L_have_win
    s_add_u32 s{sG}, s{sG}, 1
    s_cmp_lt_u32 s{sG}, {12 if force is None else 1000}
    s_cbranch_scc1 L_poll_win
    L_bid:
    v_mov_b32 v6, s{sTmp}
    v_mov_b32 v7, 0
    buffer_atomic_cmpswap v[6:7], v5, {s(rDBG,4)}, 0 offen offset:{D_WIN} sc0
    s_waitcnt vmcnt(0)
    v_readfirstlane_b32 s{sStep}, v6
    s_cmp_eq_u32 s{sStep}, 0
    s_cselect_b32 s{sStep}, s{sTmp}, s{sStep}
    L_have_win:
    v_readfirstlane_b32 s{sT}, v3
    s_mov_b32 s{sH}, 0xffff
    s_cmp_gt_u32 s{sT}, 31
    s_cbranch_scc1 L_role_done
    s_sub_u32 s{sStep}, s{sStep}, 1
    s_xor_b32 s{sStep}, s{sStep}, s{sX}
    s_sub_u32 s{sH}, s{sStep}, 3
    s_add_u32 s{sTmp}, s{sStep}, 4
    s_cmp_ge_u32 s{sStep}, 4
    s_cselect_b32 s{sH}, s{sH}, s{sTmp}
    s_cmp_eq_u32 s{sStep}, 0
    s_cselect_b32 s{sH}, 0, s{sH}
    s_lshl_b32 s{sH}, s{sH}, 5
    s_add_u32 s{sH}, s{sH}, s{sT}
    L_role_done:
    v_mov_b32 v3, s{sH}
    v_mov_b32 v4, 0
    ds_write_b32 v4, v3
    s_mov_b64 exec, -1
    L_role_wait:
    s_waitcnt lgkmcnt(0)
    s_barrier
    v_mov_b32 v4, 0
    ds_read_b32 v3, v4
    s_waitcnt lgkmcnt(0)
    v_readfirstlane_b32 s{sH}, v3
    s_barrier
    s_cmp_gt_u32 s{sH}, 31
    s_cbranch_scc1 {lab_worker}
    """)

def team(A, nsteps=64, stamps=False, ctl=6, z0=8, dA=0, gapB=2, nsets=3, dR=(16,4,20,8), n2=2, dAA=0, bar1=1, bar2=1, pfd=0, usepk=True, rt=False, off="pf", cs=((3,6),(5,6)), kvchk=False, trace=False, gapAB=2, na=2, d3r=2, joint=True, bonly=False, fsl=(), fnop=3, cpre=0, fill_at=4, kfasync=True, lead=0, ks=28, linw=0, dmaw=True, wo_at=(1, 2, 3, 5), ea=False, eb=6, dE=16, dE2=8):
    nst = [0]
    names = []
    def stamp(name=""):
        if stamps != 1: return
        k = nst[0]; nst[0] += 1
        assert k < 23
        names.append(name)
        A(f"s_mem{'real' if rt else ''}time s[{52+2*k}:{53+2*k}]")
    A.stamp_names = names
    if stamps == 2: A("s_memrealtime s[92:93]")
    vC, vG, vLn = 16, 17, 18
    x0, x1, x2, x3 = 19, 20, 21, 22
    vWq, vWq2, vWv, vWv2, vWo = 23, 24, 25, 26, 27
    vPubT = 28
    A(f"""
    {"s_mov_b32 s90, s3" if stamps == 2 else ""}
    v_and_b32 v{vLn}, 63, v0
    v_and_b32 v{vC}, 15, v0
    v_lshrrev_b32 v{vG}, 4, v{vLn}
    v_lshlrev_b32 v{vL16}, 4, v{vLn}
    v_lshlrev_b32 v{vT16}, 4, v0
    v_add_u32 v{vT16b}, 0x10000, v{vT16}
    v_add_u32 v{vT16c}, 0x20000, v{vT16}
    v_xor_b32 v{vM1}, 1024, v{vT16}
    v_xor_b32 v{vM2}, 2048, v{vT16}
    v_xor_b32 v{vM3}, 3072, v{vT16}
    v_and_b32 v{x0}, 2, v{vC}
    v_cmp_ne_u32 vcc, 0, v{x0}
    v_mov_b32 v{x1}, 0x4444
    v_mov_b32 v{x2}, 0xeeee
    v_cndmask_b32 v{vIdx}, v{x1}, v{x2}, vcc
    ; row(c) = 2*(c>>2) + (c&1)
    v_lshrrev_b32 v{x1}, 2, v{vC}
    v_and_b32 v{x2}, 1, v{vC}
    v_lshl_add_u32 v{x1}, v{x1}, 1, v{x2}
    v_mul_u32_u24 v{x3}, {RSO}, v{x1}
    v_mul_u32_u24 v{x1}, {RS}, v{x1}
    v_lshl_add_u32 v{vQR}, v{vG}, 4, v{x1}
    s_lshl_b32 s{sTmp}, s{sW}, 6
    v_lshl_add_u32 v{vOW}, v{vG}, 4, v{x3}
    v_add_u32 v{vOW}, s{sTmp}, v{vOW}
    v_lshl_add_u32 v{vOR}, v{vG}, 5, v{x3}
    v_lshl_add_u32 v{vOR}, v{x0}, 3, v{vOR}
    v_mul_u32_u24 v{x1}, {2*RS}, v{vG}
    v_lshl_add_u32 v{x1}, v{vC}, 2, v{x1}
    v_add_u32 v{vQW}, s{sTmp}, v{x1}
    ; vSt2 = (8w + c>>1)*4096 + (g>>1)*2048 + h*64 + (2(g&1) + (c&1))*16
    v_lshrrev_b32 v{x1}, 1, v{vC}
    s_lshl_b32 s{sTmp}, s{sW}, 3
    v_add_u32 v{x1}, s{sTmp}, v{x1}
    v_lshlrev_b32 v{x1}, 12, v{x1}
    v_lshrrev_b32 v{x3}, 1, v{vG}
    v_lshl_add_u32 v{x1}, v{x3}, 11, v{x1}
    v_and_b32 v{x0}, 1, v{vG}
    v_lshl_add_u32 v{x1}, v{x0}, 5, v{x1}
    v_lshl_add_u32 v{x1}, v{x2}, 4, v{x1}
    s_lshl_b32 s{sTmp}, s{sH}, 6
    v_add_u32 v{vSt2}, s{sTmp}, v{x1}
    v_bfe_u32 v{x1}, v{vC}, 1, 1
    s_and_b32 s{sTmp}, s{sW}, 2
    v_add_u32 v{x1}, s{sTmp}, v{x1}
    v_lshl_add_u32 v30, v{x1}, 2, v{x3}
    v_lshlrev_b32 v30, 4, v30
    v_lshl_add_u32 v30, v{x2}, 3, v30
    v_lshl_add_u32 v30, v{x0}, 2, v30
    s_lshr_b32 s{sTmp}, s{sH}, 1
    s_lshl_b32 s{sTmp}, s{sTmp}, 8
    s_and_b32 s{sTmp2}, s{sH}, 1
    s_lshl_b32 s{sTmp2}, s{sTmp2}, 5
    s_add_u32 s{sTmp}, s{sTmp}, s{sTmp2}
    v_add_u32 v30, s{sTmp}, v30
    v_cmp_gt_u32 vcc, 4, v{vC}
    v_mov_b32 v{vPubT}, 0x7f000000
    v_cndmask_b32 v{vPubT}, v{vPubT}, v30, vcc
    v_mov_b32 v{vT1}, v{vPubT}
    v_lshl_add_u32 v{x1}, v{x1}, 1, v{x3}
    v_lshlrev_b32 v{x1}, 10, v{x1}
    v_lshl_add_u32 v{x1}, v{x2}, 4, v{x1}
    v_lshl_add_u32 v{x1}, v{x0}, 2, v{x1}
    s_lshl_b32 s{sTmp}, s{sH}, 5
    v_add_u32 v29, s{sTmp}, v{x1}
    v_lshlrev_b32 v{x2}, 4, v{x2}
    v_mov_b32 v{x3}, 0x3f80
    v_lshlrev_b32 v{x3}, v{x2}, v{x3}
    v_lshrrev_b32 v{x2}, 2, v{vC}
    """)
    for r in range(4):
        A(f"v_cmp_eq_u32 vcc, {r}, v{x2}")
        A(f"v_cndmask_b32 v{32+r}, 0, v{x3}, vcc")
    A(f"ds_write_b128 v{vL16}, v[32:35] offset:{L_ST}")
    A(f"""
    v_lshrrev_b32 v{x0}, 1, v{vG}
    v_and_b32 v{x1}, 1, v{vG}
    v_lshlrev_b32 v{x2}, 18, v{x0}
    v_lshl_add_u32 v{x2}, v{x1}, 16, v{x2}
    s_lshl_b32 s{sTmp}, s{sH}, 8
    s_lshl_b32 s{sTmp2}, s{sW}, 6
    s_add_u32 s{sTmp}, s{sTmp}, s{sTmp2}
    v_add_u32 v{x2}, s{sTmp}, v{x2}
    v_lshl_add_u32 v{vWq}, v{vC}, 2, v{x2}
    v_add_u32 v{vWq2}, 0x2000, v{vWq}
    ; Wo: (16(g>>1) + 4(g&1))*1024 + h*131072 + 256w + 16c
    v_lshlrev_b32 v{x2}, 12, v{x1}
    v_lshl_add_u32 v{x2}, v{x0}, 14, v{x2}
    v_lshl_add_u32 v{x2}, v{vC}, 4, v{x2}
    s_lshl_b32 s{sTmp}, s{sH}, 17
    s_lshl_b32 s{sTmp2}, s{sW}, 8
    s_add_u32 s{sTmp}, s{sTmp}, s{sTmp2}
    v_add_u32 v{vWo}, s{sTmp}, v{x2}
    s_mov_b32 s{sPerm0}, 0x05040100
    s_mov_b32 s{sPerm1}, 0x07060302
    v_lshrrev_b32 v{vWv}, 4, v0
    v_lshlrev_b32 v{vWv}, 13, v{vWv}
    v_lshl_add_u32 v{vWv}, v{vC}, 4, v{vWv}
    s_lshl_b32 s{sTmp}, s{sH}, 8
    v_add_u32 v{vWv}, s{sTmp}, v{vWv}
    """)
    for i in range(4):
        A(f"s_xor_b32 s{sB+i}, s{sW}, {i}")
        A(f"s_lshl_b32 s{sB+i}, s{sB+i}, 20")
    NG_ = 112
    for i in range(4): A(f"v_mov_b32 v{NG_+i}, -1")
    A(f"s_lshl_b32 s{sRst2}, s{sH}, 12")
    A(f"s_and_b32 s{sPubO}, s{sW}, 1")
    A(f"s_lshl_b32 s{sTmp2}, s{sPubO}, 3")
    A(f"s_lshl_b32 s{sPubO}, s{sPubO}, 12")
    A(f"s_add_u32 s{sMG}, s{sPubO}, {MEMG}")
    A(f"s_add_u32 s{sPubO}, s{sPubO}, {H1}")
    A("s_waitcnt lgkmcnt(0)")
    srd(A, rW, 78, 8192)
    A(f"buffer_load_dword v{vPD}, v29, {s(rW,4)}, s{sTmp2} offen")
    def fills():
        for sl in range(2):
            for x in range(2):
                A(f"s_add_u32 s{sTmp}, s{sRst2}, {H2 + sl*(256<<10) + x*(128<<10)}")
                A(f"buffer_store_dwordx4 {v(NG_,4)}, v{vT16}, {s(rWS,4)}, s{sTmp} offen"); vm.issue()
        A(f"s_lshl_b32 s{sTmp2}, s{sH}, 14")
        for i in range(4):
            A(f"s_add_u32 s{sTmp}, s{sTmp2}, {MEMG + i*4096}")
            A(f"buffer_store_dwordx4 {v(NG_,4)}, v{vT16}, {s(rWS,4)}, s{sTmp} offen sc1"); vm.issue()
        for sl in range(1, 4):
            A(f"s_add_u32 s{sTmp}, s{sPubO}, {sl*8192}")
            A(f"buffer_store_dword v{NG_}, v{vPubT}, {s(rWS,4)}, s{sTmp} offen"); vm.issue()
        A(f"v_min_u32 v{vPD}, 0xfffffffe, v{vPD}")
        A(f"buffer_store_dword v{vPD}, v{vPubT}, {s(rWS,4)}, s{sPubO} offen"); vm.issue()
        if not fsl: return
        A(f"s_lshr_b32 s{sFl}, s{sW}, 1")
        A(f"s_mul_i32 s{sFl}, s{sFl}, 1280")
        A(f"s_add_u32 s{sFl}, s{sFl}, {FLG}")
        A(f"s_bitcmp1_b32 s{sW}, 0")
        A(f"s_cselect_b32 s{sFl}, s{sFl}, 0x7f000000")
        A(f"s_add_u32 s{sFlS}, s{sH}, {FLG}")
        A(f"s_cmp_eq_u32 s{sW}, 0")
        A(f"s_cselect_b32 s{sFlS}, s{sFlS}, 0x7f000000")
        A(f"v_lshlrev_b32 v31, 4, v{vL16}")
        A("s_mov_b64 exec, 0x3ff")
        A(f"buffer_store_byte v{NG_}, v31, {s(rWS,4)}, s{sFlS} offen"); vm.issue()
        A("s_mov_b64 exec, -1")
    def arrive():
        A("s_barrier")
        A(f"""
        s_cmp_lg_u32 s{sW}, 0
        s_cbranch_scc1 L_t_arrived
        s_mov_b64 exec, 1
        v_mov_b32 v{NG_}, 1
        v_mov_b32 v{NG_+1}, 0
        buffer_atomic_add v{NG_}, v{NG_+1}, {s(rDBG,4)}, 0 offen offset:{D_INIT}
        s_mov_b64 exec, -1
        L_t_arrived:
        """)
    TB = [32, 48, 64, 80]
    PT = 96
    vm = Cnt(A, "vmcnt", 63)
    batches = []
    ob = [("o", k, bp) for k in range(2) for bp in range(4)]
    for mi, m in enumerate("qkv"):
        for sl in range(8):
            batches.append((m, sl))
            if (8*mi + sl) % 3 == 0: batches.append(ob.pop(0))
    TB = [32, 48, 64, 80, 116 - 4]
    rWo = 52
    srd(A, rWo, 86, 4 << 20)
    def issue(bi):
        b = batches[bi]; T = TB[bi % 4]
        if b[0] != "o":
            m, sl = b
            if sl == 0: srd(A, rW, {"q": 80, "k": 82, "v": 84}[m], 4 << 20)
            va, vb = vWq, vWq2
            if linw == 1:
                for j in range(4):
                    A(f"s_lshl_b32 s{sTmp}, s{sH}, 17")
                    A(f"s_add_u32 s{sTmp}, s{sTmp}, {sl*16384 + j*4096}")
                    A(f"buffer_load_dwordx4 {v(T+4*j,4)}, v{vT16}, {s(rW,4)}, s{sTmp} offen"); tok = vm.issue()
                return tok
            if linw == 2:
                for j in range(4):
                    A(f"s_mov_b32 s{sTmp}, {(sl*64 + j*16)*8192}")
                    A(f"buffer_load_dwordx4 {v(T+4*j,4)}, v{vWv}, {s(rW,4)}, s{sTmp} offen"); tok = vm.issue()
                return tok
            for be in range(8):
                row = 64*(be >> 2) + 16*(be & 1) + 4*(sl >> 2) + 2*((be >> 1) & 1)
                A(f"s_add_u32 s{sTmp}, s{sB+(sl&3)}, {row*8192}")
                A(f"buffer_load_dword v{T+2*be}, v{va}, {s(rW,4)}, s{sTmp} offen"); vm.issue()
                A(f"buffer_load_dword v{T+2*be+1}, v{vb}, {s(rW,4)}, s{sTmp} offen"); tok = vm.issue()
        else:
            _, k, bp = b
            for j in range(2):
                be = 2*bp + j
                row = 64*k + 32*(be >> 2) + 8*(be & 1) + 2*((be >> 1) & 1)
                A(f"s_mov_b32 s{sTmp}, {row*1024}")
                A(f"buffer_load_dwordx4 {v(T+8*j,4)}, v{vWo}, {s(rWo,4)}, s{sTmp} offen"); vm.issue()
                A(f"buffer_load_dwordx4 {v(T+8*j+4,4)}, v{vWo}, {s(rWo,4)}, s{sTmp} offen offset:1024"); tok = vm.issue()
        return tok
    def put(f, be, lo, hi, sel, tmp):
        kind, base = HOME[f]
        if kind == "v":
            A(f"v_perm_b32 v{base+be}, v{hi}, v{lo}, s{sel}")
        else:
            A(f"v_perm_b32 v{tmp}, v{hi}, v{lo}, s{sel}")
            if kind == "a": A(f"v_accvgpr_write_b32 a{base+be}, v{tmp}")
    def consume(bi):
        b = batches[bi]; T = TB[bi % 4]
        if b[0] != "o":
            m, sl = b
            for t in range(2):
                f = (m, t, sl)
                for be in range(8):
                    put(f, be, T+2*be, T+2*be+1, sPerm1 if t else sPerm0, PT + 8*t + be)
                if HOME[f][0] == "l":
                    for p in range(2):
                        ar, off = lds_frag_addr(HOME[f][1], p)
                        A(f"ds_write_b128 v{ar}, {v(PT+8*t+4*p,4)} offset:{off}")
            A("s_waitcnt lgkmcnt(0)")
        else:
            _, k, bp = b
            for t in range(8):
                f = ("o", t, k)
                for j in range(2):
                    be = 2*bp + j
                    put(f, be, T+8*j+(t >> 1), T+8*j+4+(t >> 1), sPerm1 if t & 1 else sPerm0, PT + 2*t + j)
                if HOME[f][0] == "l":
                    ar, off = lds_frag_addr(HOME[f][1], bp >> 1)
                    A(f"ds_write_b64 v{ar}, {v(PT+2*t,2)} offset:{off + 8*(bp & 1)}")
            A("s_waitcnt lgkmcnt(0)")
    toks = {}
    DEPTH = 4
    def flags1():
        A("v_mov_b32 v30, 0")
        A(f"buffer_load_dword v29, v30, {s(rDBG,4)}, 0 offen offset:{D_LN} sc1"); vm.issue()
        A(f"buffer_load_dword v31, v30, {s(rDBG,4)}, 0 offen offset:{D_INIT} sc1"); vm.issue()
    def flags2():
        A("v_readfirstlane_b32 s60, v29")
        A("v_readfirstlane_b32 s61, v31")
        A(f"v_lshlrev_b32 v30, 4, v{vL16}")
        A(f"s_mov_b32 s{sTmp}, {CNT + C_KV}")
        A(f"buffer_load_dword v29, v30, {s(rWS,4)}, s{sTmp} offen sc1"); vm.issue()
    if not dmaw:
        for bi in range(len(batches) + DEPTH):
            if bi >= DEPTH:
                vm.wait(toks[bi - DEPTH]); consume(bi - DEPTH)
            if bi == len(batches) - 5: flags1()
            if bi == len(batches) - 1: flags2()
            if bi == fill_at: fills()
            if bi == fill_at + DEPTH: arrive()
            if bi < len(batches): toks[bi] = issue(bi)
    else:
        STGB = L_W + 65536
        RA = 116
        RT = 120
        sM0w = 56
        A(f"""
        v_lshlrev_b32 v{vWv}, 13, v{vG}
        v_lshl_add_u32 v{vWv}, v{vC}, 4, v{vWv}
        s_lshl_b32 s{sTmp}, s{sH}, 8
        s_lshl_b32 s{sTmp2}, s{sW}, 20
        s_add_u32 s{sTmp}, s{sTmp}, s{sTmp2}
        v_add_u32 v{vWv}, s{sTmp}, v{vWv}
        v_lshlrev_b32 v{x0}, 10, v{vG}
        v_lshl_add_u32 v{x0}, v{vC}, 2, v{x0}
        s_lshl_b32 s{sTmp}, s{sW}, 6
        s_add_u32 s{sTmp}, s{sTmp}, {STGB}
        v_add_u32 v{x0}, s{sTmp}, v{x0}
        s_lshl_b32 s{sM0w}, s{sW}, 12
        s_add_u32 s{sM0w}, s{sM0w}, {STGB}
        """)
        for i in range(4):
            A(f"s_lshr_b32 s{sTmp}, s{sB+i}, 8")
            A(f"v_add_u32 v{RA+i}, s{sTmp}, v{x0}")
        chunks = [(m, b2, x, b0) for m in "qkv" for x in range(2) for b2 in range(2) for b0 in range(2)]
        def cissue(c):
            m, b2, x, b0 = chunks[c]
            if c % 8 == 0: srd(A, rW, {"q": 80, "k": 82, "v": 84}[m], 4 << 20)
            for g in range(4):
                A(f"s_add_u32 m0, s{sM0w}, {(c % 4)*16384 + g*1024}")
                A(f"s_mov_b32 s{sTmp}, {(64*b2 + 16*b0 + 4*x + 32*(g >> 1) + 8*(g & 1))*8192}")
                A(f"buffer_load_dwordx4 v{vWv}, {s(rW,4)}, s{sTmp} offen lds"); tok = vm.issue()
            return tok
        def cconsume(c):
            m, b2, x, b0 = chunks[c]
            for sp in range(4):
                for b1 in range(2):
                    dst = (PT if sp < 2 else RT - 8) + 4*sp + 2*b1
                    A(f"ds_read2st64_b32 {v(dst,2)}, v{RA+sp} offset0:{(c % 4)*64 + 2*b1} offset1:{(c % 4)*64 + 2*b1 + 1}")
            for sp in range(4):
                A(f"s_waitcnt lgkmcnt({6-2*sp})") if not wrote[0] else A("s_waitcnt lgkmcnt(0)")
                for b1 in range(2):
                    lo = (PT if sp < 2 else RT - 8) + 4*sp + 2*b1
                    be = 4*b2 + 2*b1 + b0
                    for t in range(2):
                        f = (m, t, 4*x + sp); tmp = PT + 8 + 2*b1 + t + 4*(sp & 1)
                        put(f, be, lo, lo+1, sPerm1 if t else sPerm0, tmp)
                        if HOME[f][0] == "l":
                            ar, off = lds_frag_addr(HOME[f][1], be >> 2)
                            A(f"ds_write_b32 v{ar}, v{tmp} offset:{off + 4*(be & 3)}"); wrote[0] = True
            wrote[0] = False
        wrote = [False]
        obs = [i for i, b in enumerate(batches) if b[0] == "o"]
        batches[:] = [batches[i] for i in obs]
        ct = {}
        for c in range(3): ct[c] = cissue(c)
        for c in range(24):
            vm.wait(ct[c])
            A("s_waitcnt lgkmcnt(0)")
            A("s_barrier")
            if c == 1: fills()
            if c == 4: arrive()
            if c + 3 < 24: ct[c+3] = cissue(c + 3)
            if c in wo_at: toks[wo_at.index(c)] = issue(wo_at.index(c))
            if c == 23: flags1()
            cconsume(c)
        A("s_waitcnt lgkmcnt(0)")
        A("s_barrier")
        for bi in range(8):
            vm.wait(toks[bi]); consume(bi)
            if bi == 4: flags2()
            if bi + 4 < 8: toks[bi+4] = issue(bi + 4)
        A("s_waitcnt vmcnt(0)")
    if stamps == 2: A("s_memrealtime s[94:95]")
    A(f"s_lshl_b32 s{sKV}, s{sH}, 14")
    A(f"s_lshl_b32 s{sTmp}, s{sW}, 11")
    A(f"s_add_u32 s{sKV}, s{sKV}, s{sTmp}")
    A(f"s_add_u32 s{sKV}, s{sKV}, {KV}")
    A(f"s_add_u32 s{sMK}, s{sTmp}, {L_KX}")
    A(f"s_add_u32 s{sMV}, s{sTmp}, {L_VX}")
    A(f"s_lshl_b32 s{sMV+1}, s{sH}, 14")
    A(f"s_add_u32 s{sMV+1}, s{sMV+1}, {KV + 8192}")
    A(f"s_add_u32 s{sPF}, s{sTmp}, {pfd*32*16384}")
    def dma(which, par, j):
        if j == 0:
            A(f"s_mov_b32 m0, s{sMK if which == 'k' else sMV + par}")
            if which == "v": A(f"s_add_u32 s{sTmp}, s{sKV}, 8192")
        A(f"buffer_load_dwordx4 v{vL16}, {s(rWS,4)}, s{sKV if which == 'k' else sTmp} offen offset:{1024*j} sc1 lds")
    def kv_wait(tag, ta, tb, need):
        A(f"""
        L_kvw{tag}:
        v_lshlrev_b32 v{ta}, 4, v{vL16}
        s_mov_b32 s{sTmp}, {CNT + C_KV}
        buffer_load_dword v{tb}, v{ta}, {s(rWS,4)}, s{sTmp} offen sc1
        s_waitcnt vmcnt(0)
        v_cmp_eq_u32 vcc, 32, v{tb}
        s_ff0_i32_b64 s{sRdy}, vcc
        s_add_u32 s{sG}, s{sG}, 1
        s_cmp_gt_u32 s{sG}, {SPIN}
        s_cbranch_scc1 L_team_end
        s_cmp_gt_u32 s{sRdy}, {need}
        s_cbranch_scc0 L_kvw{tag}
        """)
    A(f"s_mov_b32 s{sG}, 0")
    if kvchk:
        A(f"""
        v_cmp_eq_u32 vcc, 32, v29
        s_ff0_i32_b64 s{sRdy}, vcc
        s_cmp_ge_u32 s60, 64
        s_cselect_b32 s{sRdy}, s{sRdy}, 0
        s_cmp_lg_u32 s{sRdy}, 0
        s_cbranch_scc1 L_kv0ok
        v_mov_b32 v41, 0
        L_lnw:
        buffer_load_dword v40, v41, {s(rDBG,4)}, 0 offen offset:{D_LN} sc1
        s_waitcnt vmcnt(0)
        v_readfirstlane_b32 s{sTmp2}, v40
        s_add_u32 s{sG}, s{sG}, 1
        s_cmp_gt_u32 s{sG}, {SPIN}
        s_cbranch_scc1 L_team_end
        s_cmp_lt_u32 s{sTmp2}, 64
        s_cbranch_scc1 L_lnw
        """)
        kv_wait("0", 40, 41, "0")
        A.label("L_kv0ok")
    for j in range(2): A(f"buffer_load_dwordx4 {v(KST+4*j,4)}, v{vL16}, {s(rWS,4)}, s{sKV} offen offset:{1024*j} sc1")
    A(f"s_add_u32 s{sKV}, s{sKV}, {32*16384}")
    A(f"""
    s_cmp_ge_u32 s61, 32
    s_cbranch_scc1 L_init_wait
    s_cmp_lg_u32 s{sW}, 0
    s_cbranch_scc1 L_init_wait
    v_mov_b32 v41, 0
    s_mov_b32 s{sG}, 0
    L_init_poll:
    buffer_load_dword v40, v41, {s(rDBG,4)}, 0 offen offset:{D_INIT} sc1
    s_waitcnt vmcnt(0)
    v_readfirstlane_b32 s{sTmp}, v40
    s_add_u32 s{sG}, s{sG}, 1
    s_cmp_gt_u32 s{sG}, {SPIN}
    s_cbranch_scc1 L_init_wait
    s_cmp_lt_u32 s{sTmp}, 32
    s_cbranch_scc1 L_init_poll
    L_init_wait:
    s_waitcnt lgkmcnt(0)
    s_barrier
    s_mov_b32 s{sStep}, 0
    s_mov_b32 s{sG}, 0
    s_mov_b32 s{sRetA}, 0
    s_mov_b32 s{sRetB}, 0
    s_mov_b32 s{sRet2}, 0
    s_mov_b32 s{sC}, 0x3e0293ee
    v_mov_b32 v{VMR+1}, 0
    v_mov_b32 v{VMR+3}, 0
    s_lshl_b32 s{sRd2}, s{sW}, 17
    s_lshl_b32 s{sTmp}, s{sH}, 12
    s_add_u32 s{sRd2}, s{sRd2}, s{sTmp}
    """)
    import math, struct
    cval = struct.unpack("<I", struct.pack("<f", (128 ** -0.5) * math.log2(math.e)))[0]
    A(f"s_mov_b32 s{sC}, {cval:#x}")
    if stamps == 2:
        A("s_memrealtime s[96:97]")
        A("s_memtime s[76:77]"); A("s_waitcnt lgkmcnt(0)")
    assert not (stamps == 1 and fsl)
    if stamps == 1:
        for k in range(52, 100): A(f"s_mov_b32 s{k}, 0")

    lg = Cnt(A, "lgkmcnt", 15)
    staged = {}
    def stage(idx, reg):
        f = LDSF[idx]
        for p in range(2):
            ar, off = lds_frag_addr(idx, p)
            A(f"ds_read_b128 {v(reg+4*p,4)}, v{ar} offset:{off}"); tok = lg.issue()
        staged[f] = (reg, tok)
    waited = [0]
    def lwait(tok):
        if tok > waited[0]:
            lg.wait(tok); waited[0] = tok
    def sm(m, t, sl, acc, areg):
        f = (m, t, sl); kind, base = HOME[f]
        if kind == "l":
            reg, tok = staged.pop(f); lwait(tok); b = v(reg, 8)
        else:
            b = (a if kind == "a" else v)(base, 8)
        A(f"v_smfmac_f32_16x16x64_bf16 {v(acc,4)}, {v(areg,4)}, {b}, v{vIdx}")
    def dsr(dst, addr, off, n=4):
        A(f"ds_read_b{32*n} {v(dst,n)}, v{addr} offset:{off}"); return lg.issue()
    def dsw(addr, src, off, n=4):
        A(f"ds_write_b{32*n} v{addr}, {v(src,n)} offset:{off}"); return lg.issue()
    def chk(r, lab):
        A(f"v_max3_u32 v{vT0}, v{r}, v{r+1}, v{r+2}")
        A(f"v_max_u32 v{vT0}, v{vT0}, v{r+3}")
        A(f"v_cmp_eq_u32 vcc, -1, v{vT0}")
        A(f"s_cbranch_vccnz {lab}")
    qa = lambda t: ACCA + 4*t
    ka = lambda t: ACCB + 4*t
    ma = lambda sl: MEMA + 4*sl

    QB = POOL; FR = POOL + 16
    va = lambda t: ACCV + 4*t
    WA = MEMA
    wa = lambda t: WA + 4*t
    R2 = ma(5); SEL = ma(7); PUB = vT1; DD = ma(3)
    def stage1(idx, reg, p):
        f = LDSF[idx]
        ar, off = lds_frag_addr(idx, p)
        A(f"ds_read_b128 {v(reg+4*p,4)}, v{ar} offset:{off}"); tok = lg.issue()
        if p == 1: staged[f] = (reg, tok)
    G = lambda idx, reg, p: (lambda: stage1(idx, reg, p))
    def mf(d, a_, b_, first, k16=False):
        n = 2 if k16 else 4
        A(f"v_mfma_f32_16x16x{16 if k16 else 32}_bf16 {v(d,4)}, {v(a_,n)}, {v(b_,n)}, {0 if first else v(d,4)}")
    def slots(ms, fill):
        for i, m in enumerate(ms):
            m()
            if i < len(fill):
                for f in fill[i]: f()
        for fl in fill[len(ms):]:
            for f in fl: f()
    I = lambda txt: (lambda: A(txt))
    accf = {"q": qa, "k": ka, "v": va}
    SM = lambda m, t, sl, areg=None: (lambda: sm(m, t, sl, accf[m](t), ma(sl) if areg is None else areg))
    PRE = [(0, STG), (1, STG+8), (2, FR), (3, FR+8), (5, QB+8), (4, QB)]
    def chores(lo, hi):
        for idx, reg in PRE[lo:hi]: stage(idx, reg)
    def zero_accs():
        for i in range(0, 16, 2): A(f"v_mov_b64 {v(ACCA+i,2)}, 0")
        for i in range(0, 8, 2): A(f"v_mov_b64 {v(ACCV+i,2)}, 0")
    def set_neg():
        A(f"v_mov_b64 {v(NEG,2)}, -1"); A(f"v_mov_b64 {v(NEG+2,2)}, -1")
    def slot_offsets():
        A(f"""
        s_and_b32 s{sTmp}, s{sStep}, 3
        s_lshl_b32 s{sO1}, s{sTmp}, 13
        s_add_u32 s{sO1}, s{sO1}, {H1}
        s_add_u32 s{sO1b}, s{sO1}, 4096
        """)
    def ld1():
        A(f"buffer_load_dwordx4 {v(ma(0),4)}, v{vT16}, {s(rWS,4)}, s{sO1} offen sc1")
        A(f"buffer_load_dwordx4 {v(ma(4),4)}, v{vT16}, {s(rWS,4)}, s{sO1b} offen sc1")
    def ld2():
        for u in range(2):
            A(f"buffer_load_dwordx4 {v(R2+4*u,4)}, v{vL16}, {s(rWS,4)}, s{sRd} offen offset:{1024*u} sc1")
    def delay(n):
        while n > 0:
            A(f"s_nop {min(n,16)-1}"); n -= 16
    chores(0, 6); zero_accs(); set_neg(); slot_offsets()
    A(f"s_mov_b32 s{sO2}, {H2}"); A(f"s_mov_b32 s{sO2b}, {H2 + (128<<10)}")
    A(f"s_add_u32 s{sRst1}, s{sPubO}, {2*8192}")
    A(f"s_and_b32 s{sTmp}, s{sW}, 1")
    A(f"s_lshl_b32 s{sRd2}, s{sTmp}, 17")
    A(f"s_lshl_b32 s{sTmp}, s{sH}, 12")
    A(f"s_add_u32 s{sRd2}, s{sRd2}, s{sTmp}")
    A(f"s_lshr_b32 s{sTmp}, s{sW}, 1")
    A(f"s_lshl_b32 s{sTmp}, s{sTmp}, 11")
    A(f"s_add_u32 s{sRd2}, s{sRd2}, s{sTmp}")
    pre_staged = dict(staged)
    sKf = 47
    A(f"s_mov_b32 s{sKf}, 0")
    A(f"s_waitcnt vmcnt(0) lgkmcnt(0)")
    A(f"v_add_u32 v{vT0}, s{sMK}, v{vL16}")
    A(f"ds_write_b128 v{vT0}, {v(KST,4)}")
    A(f"ds_write_b128 v{vT0}, {v(KST+4,4)} offset:1024")
    def ldA(): A(f"buffer_load_dwordx4 {v(ma(0),4)}, v{vT16}, {s(rWS,4)}, s{sO1} offen sc1")
    def ldB(): A(f"buffer_load_dwordx4 {v(ma(4),4)}, v{vT16}, {s(rWS,4)}, s{sO1b} offen sc1")
    N1 = I("s_nop 1"); N0 = I("s_nop 0")
    if ea: ldA(); ldA()
    for par in range(2):
        P = f"_{par}"
        LM = L_MEM; LK = L_KX
        st = stamp if par == 0 else (lambda n="": None)
        A.label("L_step" + P)
        if stamps == 1 and par == 0:
            stamp("top")
            A(f"s_cmp_ge_u32 s{sStep}, {nsteps-3}")
            A("s_cbranch_scc1 L_team_end")
        st("top2")
        def kxw():
            A(f"v_add_u32 v{vT0}, s{sMK}, v{vL16}")
            A(f"ds_write_b128 v{vT0}, {v(KST,4)}")
            A(f"ds_write_b128 v{vT0}, {v(KST+4,4)} offset:1024")
        staged.clear()
        zz = [I(f"v_mov_b64 {v(r_,2)}, 0") for r_ in list(range(ACCA, ACCA+16, 2)) + list(range(ACCV, ACCV+8, 2))] + [lambda: set_neg()]
        def zs(n):
            for _ in range(n):
                if zz: zz.pop(0)()
        zs(z0); delay(dA)
        for j in range(nsets):
            ldA(); zs(2); delay(gapAB); ldB(); zs(2)
            if j < nsets - 1: delay(gapB)
        zs(99)
        chores(ctl, 6)
        if ctl < 6: A("s_waitcnt lgkmcnt(0)")
        nfl = nsets + 1 if bonly else 2*nsets
        waited[0] = lg.n
        staged.clear(); staged.update({f: (r, 0) for f, (r, t) in pre_staged.items()})
        r, q = ma(0), ma(4)
        if ea:
            A(f"s_mov_b32 s{sK}, 1")
            A(f"s_waitcnt vmcnt({nfl+1})")
            A(f"s_branch L_pollA2{P}") if False else None
        else:
            A.label("L_pollA" + P)
            A(f"s_waitcnt vmcnt({nfl-1})")
        A.label("L_pollA2" + P)
        A(f"v_max3_u32 v{vT0}, v{r}, v{r+1}, v{r+2}")
        A(f"v_max_u32 v{vT0}, v{vT0}, v{r+3}")
        A(f"v_cmp_eq_u32 vcc, -1, v{vT0}")
        tt = {}
        def rd(key, dst, addr, off): return lambda: tt.__setitem__(key, dsr(dst, addr, off))
        kx = lambda i, dst: rd(("kx", i), dst, vL16, LK + 1024*i)
        W = lambda key: (lambda: lwait(tt[key]))
        WS = lambda idx: (lambda: lwait(staged[LDSF[idx]][1]))
        twa = dsw(vT16, r, LM)
        st("ok")
        bchk = [I(f"s_waitcnt vmcnt({nfl-2})"), I(f"v_max3_u32 v{vT0}, v{q}, v{q+1}, v{q+2}"), I(f"v_max_u32 v{vT0}, v{vT0}, v{q+3}"), I(f"v_cmp_eq_u32 vcc, -1, v{vT0}")]
        kvu = []
        if not ea:
            slots([SM("q",0,0), SM("q",1,0), SM("k",0,0), SM("k",1,0)],
                  [[], [I(f"s_cbranch_vccnz L_retryA{P}")] + bchk[:2], bchk[2:3], [lambda: lwait(twa), I("s_barrier"), bchk[3]]])
            st("barM")
            rd(1, ma(1), vM1, LM)()
            SM("v",0,0)()
            A(f"s_cbranch_vccnz L_retryB{P}")
            A.label("L_okB" + P)
            st("okB")
            tw = dsw(vT16, q, LM + 4096)
            slots([SM("v",1,0), SM("q",0,4), SM("q",1,4), SM("k",0,4), SM("k",1,4), SM("v",0,4), SM("v",1,4)],
                  [[rd(2, ma(2), vM2, LM)], [rd(3, ma(3), vM3, LM)], [kx(4, STG)], [kx(5, STG+4)], [], [lambda: lwait(tw), I("s_barrier")], [rd(5, ma(5), vM1, LM+4096)]])
            mid = [SM("q",0,1), SM("q",1,1), SM("k",0,1), SM("k",1,1), SM("q",0,2), SM("q",1,2), SM("k",0,2), SM("k",1,2)]
        else:
            slots([SM("q",0,0), SM("q",1,0)], [[], [I(f"s_cbranch_vccnz L_retryA{P}"), lambda: lwait(twa), I("s_barrier")]])
            st("barM")
            rd(1, ma(1), vM1, LM)()
            pre = [SM("k",0,0), SM("k",1,0), SM("v",0,0), SM("v",1,0), SM("q",0,1), SM("q",1,1), SM("k",0,1), SM("k",1,1), SM("q",0,2), SM("q",1,2)][:eb+3]
            fl = [[rd(2, ma(2), vM2, LM)], [rd(3, ma(3), vM3, LM)], [kx(4, STG)], [W(1)], [kx(5, STG+4)], [], [], [W(2)], [], []][:eb+3]
            fl[eb-1] = fl[eb-1] + bchk[:2]; fl[eb] = fl[eb] + bchk[2:3]; fl[eb+1] = fl[eb+1] + bchk[3:]
            slots(pre, fl)
            A(f"s_cbranch_vccnz L_retryB{P}")
            A.label("L_okB" + P)
            st("okB")
            tw = dsw(vT16, q, LM + 4096)
            allm = [SM("q",0,1), SM("q",1,1), SM("k",0,1), SM("k",1,1), SM("q",0,2), SM("q",1,2), SM("k",0,2), SM("k",1,2)][max(0, eb-1):]
            own = [SM("q",0,4), SM("q",1,4), SM("k",0,4), SM("k",1,4), SM("v",0,4), SM("v",1,4)]
            slots(own[:4], [[], [], [], [lambda: lwait(tw), I("s_barrier"), rd(5, ma(5), vM1, LM+4096)]])
            slots(own[4:], [[], []])
            mid = allm
        st("barB")
        rst = [I(f"s_xor_b32 s{sTmp}, s{sO2}, {256<<10}"), I(f"s_add_u32 s{sTmp}, s{sTmp}, s{sRst2}"),
               I(f"buffer_store_dwordx4 {v(NEG,4)}, v{vT16}, {s(rWS,4)}, s{sTmp} offen")]
        rst2 = [I(f"s_add_u32 s{sTmp}, s{sTmp}, {128<<10}"),
               I(f"buffer_store_dwordx4 {v(NEG,4)}, v{vT16}, {s(rWS,4)}, s{sTmp} offen"),
               I(f"buffer_store_dword v{NEG}, v{PUB}, {s(rWS,4)}, s{sRst1} offen")]
        pubg = [I(f"buffer_store_dword v{vPD}, v{PUB}, {s(rWS,4)}, s{sMG} offen sc1"), I(f"s_add_u32 s{sMG}, s{sMG}, 8192")]
        bk = [I(x) for x in (
            f"s_add_u32 s{sStep}, s{sStep}, 1", f"s_add_u32 s{sRd}, s{sO2}, s{sRd2}", f"s_and_b32 s{sB}, s{sStep}, 3",
            f"s_lshl_b32 s{sB+1}, s{sB}, 13", f"s_add_u32 s{sO1}, s{sB+1}, {H1}", f"s_add_u32 s{sO1b}, s{sO1}, 4096",
            f"s_add_u32 s{sB+2}, s{sB+1}, s{sPubO}", f"s_xor_b32 s{sRst1}, s{sB+1}, {2<<13}", f"s_add_u32 s{sRst1}, s{sRst1}, s{sPubO}")]
        m0k = lambda: None
        dk = lambda j: I(f"buffer_load_dwordx4 {v(KST+4*j,4)}, v{vL16}, {s(rWS,4)}, s{sKV} offen offset:{1024*j} sc1")
        VX0, VX1 = ma(0), ma(4)
        lv = [I(f"buffer_load_dwordx4 {v(VX0,4)}, v{vT16}, {s(rWS,4)}, s{sMV+1} offen sc1"), I(f"s_add_u32 s{sTmp2}, s{sMV+1}, 4096"),
              I(f"buffer_load_dwordx4 {v(VX1,4)}, v{vT16}, {s(rWS,4)}, s{sTmp2} offen sc1"), I(f"s_add_u32 s{sMV+1}, s{sMV+1}, {32*16384}")]
        if "dma" in off: dk = lambda j: N0
        def kvbr():
            if kvchk:
                A(f"s_cmp_gt_u32 s{sRdy}, s{sStep}")
                A(f"s_cbranch_scc0 L_kvw{P}")
                A.label("L_kvok" + P)
        def kfissue():
            if not (kvchk and kfasync and par == 0): return
            A(f"""
            s_min_u32 s{sTmp}, s{sRdy}, 64
            s_lshl_b32 s{sTmp}, s{sTmp}, 8
            v_lshlrev_b32 v{VMR}, 4, v{vL16}
            s_add_u32 s{sTmp}, s{sTmp}, {CNT + C_KV}
            s_mov_b32 s{sKf}, s{sRdy}
            s_mov_b64 exec, 0xffff
            buffer_load_dword v{vPD}, v{VMR}, {s(rWS,4)}, s{sTmp} offen sc1
            s_mov_b64 exec, -1
            """)
        dmaseq = {ks: [m0k, kvbr], ks+1: [dk(0)], ks+3: [dk(1), I(f"s_add_u32 s{sKV}, s{sKV}, {32*16384}")]}
        slotno = [0]
        def slots2(ms, fill):
            fill = [list(f) for f in fill] + [[] for _ in range(len(ms) - len(fill))]
            for i in range(len(ms)):
                fill[i] = dmaseq.pop(slotno[0], []) + fill[i]; slotno[0] += 1
            slots(ms, fill)
        mm = mid + [SM("q",1,3), SM("k",0,3), SM("q",0,3), SM("k",1,3), SM("q",0,5), SM("q",1,5), SM("q",0,6), SM("q",1,6), SM("q",0,7), SM("q",1,7)]
        ff = [[rd(6, ma(6), vM2, LM+4096)] + lv[:2], [rd(7, ma(7), vM3, LM+4096), bk[0]], lv[2:], [W(3)] + rst[:2], [kx(6, STG+8)], [kx(7, STG+12)] + rst[2:], bk[1:3], [kx(0, FR)],
               [kx(1, FR+4)], rst2[:2], bk[3:6], [W(7), kx(2, FR+8)], rst2[2:], [kx(3, FR+12)], pubg, bk[6:9], [kfissue], []]
        if ea:
            nm_ = len(mm)
            ff = [[rd(6, ma(6), vM2, LM+4096)] + lv[:2], [rd(7, ma(7), vM3, LM+4096), bk[0]] , [kx(6, STG+8)] + lv[2:], [kx(7, STG+12)] + rst[:2], [kx(0, FR)] + rst[2:], [kx(1, FR+4)] + bk[1:3],
                  [kx(2, FR+8)] + bk[3:5], [kx(3, FR+12)] + rst2[:2], [bk[5]], rst2[2:], pubg, bk[6:9], [kfissue]]
            extra = ff[nm_:]; ff = ff[:nm_] + [[] for _ in range(nm_ - len(ff))]
            for x_ in extra: ff[-1] = ff[-1] + x_
            ff[nm_-7] = [W(7)] + ff[nm_-7]
            slotno[0] = 18 - nm_
        slots2(mm, ff)
        st("qdone")
        if trace and par == 0:
            A(f"""
            s_memrealtime s[52:53]
            s_memtime s[54:55]
            s_lshl_b32 s56, s{sStep}, 2
            s_waitcnt lgkmcnt(0)
            v_writelane_b32 v{vT0}, s52, 0
            v_writelane_b32 v{vT0}, s54, 1
            s_lshl_b32 s57, s{sH}, 10
            s_add_u32 s56, s56, s57
            s_add_u32 s56, s56, {RES + 65536 - 4}
            v_lshrrev_b32 v{QB}, 2, v{vL16}
            s_mov_b64 exec, 3
            buffer_store_dword v{vT0}, v{QB}, {s(rWS,4)}, s56 offen
            s_mov_b64 exec, -1
            """)
        def epi_ops(acc):
            return [I(f"v_add_f32 v{acc}, v{acc}, v{acc+2}"), I(f"v_add_f32 v{acc+1}, v{acc+1}, v{acc+3}"),
                    I(f"v_add_f32 v{acc+4}, v{acc+4}, v{acc+6}"), I(f"v_add_f32 v{acc+5}, v{acc+5}, v{acc+7}"),
                    I(f"v_cvt_pk_bf16_f32 v{acc}, v{acc}, v{acc+4}"), I(f"v_cvt_pk_bf16_f32 v{acc+1}, v{acc+1}, v{acc+5}")]
        e = epi_ops(ACCA); ek = epi_ops(ACCB)
        wq = [lambda: dsw(vQW, ACCA, L_Q, 1), lambda: dsw(vQW, ACCA+1, L_Q + RS, 1)]
        wk = [lambda: dsw(vQW, ACCB, L_K, 1), lambda: tt.__setitem__("wk", dsw(vQW, ACCB+1, L_K + RS, 1))]
        slots2([SM("k",0,5), SM("k",0,6), SM("k",0,7), SM("k",1,5), SM("k",1,6), SM("k",1,7),
               SM("v",0,1), SM("v",1,1), SM("v",0,2), SM("v",1,2), SM("v",0,3), SM("v",1,3)],
              [[e[0]], [e[1]], [e[2]], [e[3]], [e[4]], [wq[0], e[5]],
               [wq[1], ek[0], ek[1]], [ek[2], ek[3]], [ek[4], ek[5]] + wk, [], [],
               []])
        lwait(tt["wk"]); A("s_barrier"); st("barQK")
        qr = lambda k: rd(("q", k), QB+4*k, vQR, L_Q + 64*k)
        KMR = ACCA
        kr = lambda k: rd(("km", k), KMR+4*k, vQR, L_K + 64*k)
        VXR = FR; OO = QB; LL = QB + 8; ONES = NEG
        ones = [I(f"v_mov_b32 v{ONES+i}, 0x3f803f80") for i in range(4)]
        nvm = 3 + (1 if kvchk and kfasync and par == 0 else 0) + (1 if trace and par == 0 else 0) - 2*("dma" in off)
        assert ks >= 15
        qr(0)()
        slots2([SM("v",0,5), SM("v",1,5), SM("v",0,6), SM("v",1,6), SM("v",0,7), SM("v",1,7)],
              [[qr(1), ones[0]], [qr(2), ones[1]], [qr(3), ones[2]], [kr(0), ones[3]], [kr(1)], [kr(2), W(("q",1))]])
        st("vdone")
        Sx = lambda t, k: (lambda: (lwait(tt[("q", k)]), mf(S+4*t, (FR if t == 0 else STG) + 4*k, QB+4*k, k == 0)))
        Sm = lambda k: (lambda: (lwait(tt[("km", k)]), mf(S+8, KMR+4*k, QB+4*k, k == 0)))
        ve = []
        for t in range(2):
            ve += [I(f"v_add_f32 v{va(t)}, v{va(t)}, v{va(t)+2}"), I(f"v_add_f32 v{va(t)+1}, v{va(t)+1}, v{va(t)+3}"),
                   I(f"v_cvt_pk_bf16_f32 v{VMR+2*t}, v{va(t)}, v{va(t)+1}")]
        zw = [I(f"v_mov_b64 {v(WA+i,2)}, 0") for i in range(0, 32, 2)]
        slots2([Sx(0,0), Sx(1,0), Sx(0,1), Sx(1,1), Sx(0,2), Sx(1,2), Sx(0,3), Sx(1,3), Sm(0), Sm(1), Sm(2), Sm(3)],
              [[kr(3)], [ve[0], ve[1]], [ve[2], ve[3]], [W(("q",3)), ve[4]],
               [G(11, FR, 0), ve[5]], [G(11, FR, 1)],
               [G(6, STG, 0)], [W(("km",3)), G(6, STG, 1)], [G(7, FR+8, 0), I(f"v_max3_f32 v{vT0}, v{S}, v{S+1}, v{S+2}")],
               [I(f"v_max3_f32 v{vT0}, v{vT0}, v{S+3}, v{S+4}"), I(f"v_max3_f32 v{vT0}, v{vT0}, v{S+5}, v{S+6}")],
               [G(7, FR+8, 1), I(f"v_max_f32 v{vT0}, v{vT0}, v{S+7}")],
               [G(9, ACCV, 0), zw[10], zw[11], G(9, ACCV, 1), zw[12], zw[13], zw[14]]])
        assert not dmaseq
        st("Smm")
        A(f"v_max3_f32 v{vT0}, v{vT0}, v{S+8}, v{S+9}")
        A(f"v_mov_b32 v{S+10}, v{vT0}")
        G(8, STG+8, 0)(); zw[15]()
        A(f"v_permlane32_swap_b32 v{vT0}, v{S+10}")
        A(f"v_max_f32 v{vT0}, v{vT0}, v{S+10}")
        A(f"v_mov_b32 v{S+10}, v{vT0}")
        G(8, STG+8, 1)()
        A(f"v_permlane16_swap_b32 v{vT0}, v{S+10}")
        A(f"v_max_f32 v{vT0}, v{vT0}, v{S+10}")
        A(f"v_mul_f32 v{S+10}, s{sC}, v{vT0}")
        for i in (8, 0, 2, 4, 6):
            A(f"v_pk_fma_f32 {v(S+i,2)}, {v(S+i,2)}, s[{sC}:{sC+1}], {v(S+10,2)} op_sel_hi:[1,0,0] neg_lo:[0,0,1] neg_hi:[0,0,1]")
        ex = lambda i: I(f"v_exp_f32 v{S+i}, v{S+i}")
        cv = lambda i: I(f"v_cvt_pk_bf16_f32 v{S+i}, v{S+2*i}, v{S+2*i+1}")
        ex(8)(); ex(9)(); ex(0)()
        A(f"v_cvt_pk_bf16_f32 v{S+8}, v{S+8}, v{S+9}"); A(f"v_mov_b32 v{S+9}, 0")
        ex(1)(); ex(2)()
        slots([lambda: mf(LL, ONES, S+8, True, True), lambda: mf(OO, VMR, S+8, True, True), lambda: mf(OO+4, VMR+2, S+8, True, True)],
              [[ex(3), cv(0)], [ex(4), ex(5)], [ex(6), ex(7), cv(1), cv(2), cv(3)]])
        st("exp")
        G(10, ACCB, 0)(); A(f"s_waitcnt vmcnt({nvm})")
        slots([lambda: mf(LL, ONES, S, False), lambda: mf(OO, VX0, S, False), lambda: mf(OO+4, VX1, S, False)],
              [[G(10, ACCB, 1), zw[4]], [zw[5], zw[6]], [zw[7]]])
        st("PV")
        A(f"v_rcp_f32 v{vT0}, v{LL}")
        zw[0]()
        for i in range(4): A(f"v_mul_f32 v{OO+i}, v{OO+i}, v{vT0}")
        A(f"v_pk_mul_f32 {v(OO+4,2)}, {v(OO+4,2)}, {v(vT0,2)} op_sel_hi:[1,0]")
        A(f"v_pk_mul_f32 {v(OO+6,2)}, {v(OO+6,2)}, {v(vT0,2)} op_sel_hi:[1,0]")
        for i in range(4): A(f"v_cvt_pk_bf16_f32 v{OO+i}, v{OO+i}, v{OO+4+i}")
        tw = dsw(vOW, OO, L_O)
        st("owr")
        for f in (zw[1], zw[2], zw[3], zw[8], zw[9]): f()
        FR_ = [NEG, NEG+1, NEG+2, NEG+3, vT0][:len(fsl)]
        if fsl:
            A(f"v_mov_b32 v{VMR}, s{sStep}")
            A(f"v_bfe_u32 v{VMR+2}, v{vL16}, 2, 5")
            A(f"v_lshlrev_b32 v{vT0}, 4, v{vL16}")
            A(f"s_mul_i32 s{sK+1}, s{sStep}, 0x01010101")
        lwait(tw); A("s_barrier"); st("barO")
        OA = ACCA
        to0 = dsr(OA, vOR, L_O)
        to = dsr(OA+4, vOR, L_O + 128)
        if fsl:
            A("s_mov_b64 exec, 0x3ff")
            A(f"buffer_store_byte v{VMR}, v{vT0}, {s(rWS,4)}, s{sFlS} offen")
            A("s_mov_b64 exec, -1")
        dmaseq.update({slotno[0] + sl: [I(f"buffer_load_dword v{FR_[i]}, v{VMR+2}, {s(rWS,4)}, s{sFl} offen offset:{256*i} sc1")] for i, sl in enumerate(fsl)})
        ad = lambda t: [I(f"v_add_f32 v{wa(t)}, v{wa(t)}, v{wa(t)+2}"), I(f"v_add_f32 v{wa(t)+1}, v{wa(t)+1}, v{wa(t)+3}")]
        cvp = lambda dst, t: [I(f"v_cvt_pk_bf16_f32 v{dst}, v{wa(t)}, v{wa(t+1)}"), I(f"v_cvt_pk_bf16_f32 v{dst+2}, v{wa(t)+1}, v{wa(t+1)+1}")]
        sto = lambda x, dst: [I(f"buffer_store_dwordx4 {v(dst,4)}, v{vSt2}, {s(rWS,4)}, s{sO2b if x else sO2} offen")]
        SO = lambda t, k: (lambda: sm("o", t, k, wa(t), OA+4*k))
        DA, DB = QB, QB + 4
        lwait(to0)
        st("ord")
        slots2([SO(t, k) for t in range(8) for k in range(2)],
              [[lambda: lwait(to), G(12, QB+8, 0)], [G(12, QB+8, 1)], [G(13, STG, 0)], [G(13, STG, 1), ad(0)[0]], [G(14, FR+8, 0), ad(0)[1]],
               [G(14, FR+8, 1), ad(1)[0]], [G(15, STG+8, 0), ad(1)[1]], [G(15, STG+8, 1), cvp(DA, 0)[0], cvp(DA, 0)[1]],
               [G(16, ACCV, 0)] + ad(2), [WS(13), G(16, ACCV, 1)] + ad(3), cvp(DA+1, 2), sto(0, DA) + [lambda: st("stA"), ad(4)[0]], [WS(15), ad(4)[1]],
               [WS(16)] + ad(5)[:1], ad(5)[1:], cvp(DB, 4) + ad(6)])
        for f in ad(7) + cvp(DB+1, 6) + sto(1, DB): f()
        st("stB")
        assert not staged, staged
        if bar1: A("s_barrier")
        st("bar1")
        dsr(SEL, vL16, L_ST)
        A(f"s_xor_b32 s{sO2}, s{sO2}, {256<<10}")
        A(f"s_xor_b32 s{sO2b}, s{sO2b}, {256<<10}")
        def red_block(role, nr):
            T_ = f"{role}{P}"
            A(f"s_waitcnt vmcnt({2*nr+2})")
            kxw()
            A("s_waitcnt lgkmcnt(2)")
            A.label("L_pipe2" + T_)
            for u in range(2):
                r = R2 + 4*u
                A(f"s_waitcnt vmcnt({2*nr-1-u})")
                A(f"v_max3_u32 v{vT0}, v{r}, v{r+1}, {'v%d' % vT0 if u else 0}")
                A(f"v_max3_u32 v{vT0}, v{r+2}, v{r+3}, v{vT0}")
                mf(DD, SEL, r, u == 0)
            A(f"v_cmp_eq_u32 vcc, -1, v{vT0}")
            A("s_nop 5")
            A(f"s_cbranch_vccnz L_retryp{T_}")
            if ea and role == 1: ldA()
            for rot in (4, 8):
                A(f"v_add_f32_dpp v{DD}, v{DD}, v{DD} row_ror:{rot} row_mask:0xf bank_mask:0xf")
                A(f"v_add_f32_dpp v{DD+1}, v{DD+1}, v{DD+1} row_ror:{rot} row_mask:0xf bank_mask:0xf")
            A(f"v_cvt_pk_bf16_f32 v{vPD}, v{DD}, v{DD+1}")
            A(f"v_min_u32 v{vPD}, 0xfffffffe, v{vPD}")
            A(f"buffer_store_dword v{vPD}, v{PUB}, {s(rWS,4)}, s{sB+2} offen")
        def feval():
            if not fsl: return
            A("s_waitcnt vmcnt(2)")
            for i, r_ in enumerate(FR_): A(f"v_cmp_ne_u32 s[{sCm+2*i}:{sCm+2*i+1}], s{sK+1}, v{r_}")
            A(f"s_mov_b32 s{sK}, 0")
            for i in range(len(FR_)):
                A(f"s_cmp_lg_u64 s[{sCm+2*i}:{sCm+2*i+1}], 0")
                A(f"s_addc_u32 s{sK}, s{sK}, 0")
            if stamps: A(f"s_add_u32 s{sRetA}, s{sRetA}, s{sK}")
        def fdelay(tag):
            if not fsl: return
            A(f"""
            L_fd{tag}{P}:
            s_sub_u32 s{sK}, s{sK}, 1
            s_cbranch_scc1 L_fe{tag}{P}
            s_nop {fnop}
            s_branch L_fd{tag}{P}
            L_fe{tag}{P}:
            """)
        if kvchk and kfasync and par == 0:
            A(f"""
            s_waitcnt vmcnt(2)
            v_cmp_eq_u32 vcc, 32, v{vPD}
            s_min_u32 s{sKf}, s{sKf}, 64
            """)
        chores(0, 1)
        if kvchk and kfasync and par == 0:
            A(f"""
            s_and_b32 s{sTmp}, vcc_lo, 0xffff
            s_ff0_i32_b32 s{sTmp}, s{sTmp}
            s_add_u32 s{sTmp}, s{sTmp}, s{sKf}
            s_max_u32 s{sRdy}, s{sRdy}, s{sTmp}
            """)
        A(f"s_bitcmp1_b32 s{sW}, 0")
        A(f"s_cbranch_scc1 L_tailB{P}")
        chores(1, cs[0][0]); delay(dR[0]); ld2(); st("ld2")
        chores(cs[0][0], ctl)
        if na > 1: delay(dR[1]); ld2()
        red_block(0, na)
        if ea:
            delay(dE); ldA(); delay(dE2); ldA()
        A(f"s_branch L_tailj{P}")
        A.label(f"L_tailB{P}")
        if par == 0 and stamps == 1:
            nst[0] -= 1; names.pop()
        chores(1, cs[1][0]); delay(dR[2]); ld2(); st("ld2")
        chores(cs[1][0], ctl)
        if n2 > 1: delay(dR[3]); ld2()
        if n2 > 2: delay(dR[3]); ld2()
        red_block(1, n2)
        A.label(f"L_tailj{P}")
        st("red")
        if bar2: A("s_barrier")
        if par == (nsteps & 1):
            A(f"s_cmp_eq_u32 s{sStep}, {nsteps-1}")
            A("s_cbranch_scc1 L_last")
        if par == 1: A("s_branch L_step_0")
        staged.clear()
    def retry(lab, cnt, body, back):
        A.label(lab)
        A("s_mov_b64 exec, vcc")
        body()
        A("s_mov_b64 exec, -1")
        A(f"s_add_u32 s{cnt}, s{cnt}, 1")
        A(f"s_add_u32 s{sG}, s{sG}, 1")
        A(f"s_cmp_gt_u32 s{sG}, {SPIN}")
        A(f"s_cbranch_scc1 L_team_end")
        if back: A(f"s_branch {back}")
    for par in range(2):
        P = f"_{par}"
        if bonly:
            retry("L_retryA" + P, sRetA, ldA, None)
            A("s_nop 3")
            for i in range(0, 8, 2): A(f"v_mov_b64 {v(ACCA+i,2)}, 0")
            A("s_waitcnt vmcnt(0)")
            A(f"s_branch L_pollA2{P}")
            retry("L_retryB" + P, sRetB, ldB, None)
            A(f"s_waitcnt vmcnt({nsets-1})")
        else:
            if ea:
                A.label("L_retryA" + P)
                A(f"s_cmp_eq_u32 s{sK}, 1")
                A(f"s_mov_b32 s{sK}, 0")
                A(f"s_cbranch_scc1 L_rA2{P}")
            retry(("L_retryAx" if ea else "L_retryA") + P, sRetA, ld1, None)
            A.label("L_rA2" + P)
            A("s_nop 6")
            for i in range(0, 8, 2): A(f"v_mov_b64 {v(ACCA+i,2)}, 0")
            A(f"s_waitcnt vmcnt({2*nsets-1})")
            A(f"s_branch L_pollA2{P}")
            retry("L_retryB" + P, sRetB, ld1, None)
            A(f"s_waitcnt vmcnt({2*nsets-2})")
        chk(ma(4), "L_retryB" + P)
        A(f"s_branch L_okB{P}")
        retry("L_retryp0" + P, sRet2, ld2, "L_pipe20" + P)
        retry("L_retryp1" + P, sRet2, ld2, "L_pipe21" + P)
        if kvchk:
            kv_wait(P, vT0, VMR, f"s{sStep}")
            A(f"s_branch L_kvok{P}")
    A.label("L_last")
    A(f"buffer_store_dword v{vPD}, v{PUB}, {s(rWS,4)}, s{sMG} offen sc1")
    A("s_waitcnt vmcnt(0) lgkmcnt(0)")
    A.label("L_team_end")
    if stamps:
        if stamps == 2:
            A("s_memrealtime s[98:99]")
            A("s_memtime s[72:73]"); A("s_waitcnt lgkmcnt(0)")
            A("s_sub_u32 s72, s72, s76")
            vals = [72, sStep, sRetA, sRetB, sRet2, 76, 76, 76] + [90, 92, 94, 96, 98, 98, 98, 98]
        else:
            A("s_waitcnt lgkmcnt(0)")
            for c, (ra, rb) in enumerate(((44, 45), (46, 47))):
                A(f"""
                s_memrealtime s[16:17]
                s_waitcnt lgkmcnt(0)
                s_add_u32 s16, s16, {200 if c else 8}
                L_cal{c}:
                s_memrealtime s[18:19]
                s_memtime s[98:99]
                s_waitcnt lgkmcnt(0)
                s_cmp_lt_u32 s18, s16
                s_cbranch_scc1 L_cal{c}
                s_mov_b32 s{ra}, s18
                s_mov_b32 s{rb}, s98
                """)
            vals = [44, sStep, sRetA, sRetB, sRet2, 45, 46, 47] + list(range(52, 100, 2))
        A(f"s_lshl_b32 s{sTmp}, s{sH}, 2")
        A(f"s_add_u32 s{sTmp}, s{sTmp}, s{sW}")
        A(f"s_lshl_b32 s{sTmp}, s{sTmp}, 7")
        A(f"s_add_u32 s{sTmp}, s{sTmp}, {RES}")
        A("s_waitcnt vmcnt(0)")
        for i, r in enumerate(vals): A(f"v_mov_b32 v{16+i}, s{r}")
        A("v_mov_b32 v0, 0")
        A("s_mov_b64 exec, 1")
        for i in range(len(vals)//4): A(f"buffer_store_dwordx4 {v(16+4*i,4)}, v0, {s(rWS,4)}, s{sTmp} offen offset:{16*i}")
        if stamps == 2 and trace:
            A(f"""
            s_cmp_lg_u32 s{sH}, 0
            s_cbranch_scc1 L_nodbg
            s_cmp_lg_u32 s{sW}, 0
            s_cbranch_scc1 L_nodbg
            buffer_store_dword v24, v0, {s(rDBG,4)}, 0 offen offset:8 sc1
            buffer_store_dword v28, v0, {s(rDBG,4)}, 0 offen offset:12 sc1
            buffer_store_dword v20, v0, {s(rDBG,4)}, 0 offen offset:60 sc1
            buffer_store_dword v19, v0, {s(rDBG,4)}, 0 offen offset:56 sc1
            s_mov_b64 exec, 0xff
            v_lshlrev_b32 v40, 1, v{vL16}
            s_mov_b32 s{sTmp}, {RES + 65536}
            buffer_load_dword v41, v40, {s(rWS,4)}, s{sTmp} offen sc1
            v_lshrrev_b32 v40, 2, v{vL16}
            v_and_b32 v42, 16, v40
            v_lshrrev_b32 v42, 1, v42
            v_add_u32 v40, v40, v42
            s_waitcnt vmcnt(0)
            buffer_store_dword v41, v40, {s(rDBG,4)}, 0 offen offset:16 sc1
            L_nodbg:
            """)
    A("s_waitcnt vmcnt(0)")

def entry(A, diag):
    A(f"""
    {"s_memrealtime s[68:69]" if diag else ""}
    s_load_dwordx4 s[4:7], s[0:1], 104
    s_load_dwordx4 s[76:79], s[0:1], 0
    s_load_dwordx8 s[80:87], s[0:1], 16
    s_load_dwordx8 s[88:95], s[0:1], 64
    s_load_dwordx2 s[70:71], s[0:1], 96
    s_getreg_b32 s{sX}, hwreg(HW_REG_XCC_ID)
    s_and_b32 s{sX}, s{sX}, 7
    v_lshrrev_b32 v1, 6, v0
    v_readfirstlane_b32 s{sW}, v1
    s_waitcnt lgkmcnt(0)
    {"s_mov_b32 s3, s68" if diag else ""}
    """)

def gen_standalone(**kw):
    A = Asm()
    A.raw(f"; @launch grid=(256,1,1) block=(256,1,1) lds=163840")
    A.raw('.amdgcn_target "amdgcn-amd-amdhsa--gfx950"')
    A.raw(".text")
    kernel_begin(A, NAME + "_kernel")
    A(f"""
    s_cmp_ge_u32 s2, 256
    s_cbranch_scc1 L_end
    """)
    entry(A, True)
    srd(A, rWS, 6, WS_BYTES)
    srd(A, rDBG, 4, 256)
    spf = kw.pop("spf", 0)
    role_select(A, "L_pfw" if spf else "L_end")
    team(A, **kw)
    A.label("L_end")
    A("s_endpgm")
    if spf:
        A.label("L_pfw")
        A(f"""
        s_lshr_b32 s{sTmp}, s2, 6
        s_lshl_b32 s{sTmp}, s{sTmp}, 3
        s_add_u32 s{sTmp}, s{sTmp}, 16
        s_load_dwordx2 s[80:81], s[0:1], s{sTmp}
        s_and_b32 s{sTmp}, s2, 62
        s_lshl_b32 s{sTmp}, s{sTmp}, 16
        v_lshlrev_b32 v3, 4, v0
        s_waitcnt lgkmcnt(0)
        """)
        srd(A, rW, 80, 4 << 20)
        for i in range(32):
            A(f"buffer_load_dwordx4 v[{128+4*(i&7)}:{131+4*(i&7)}], v3, {s(rW,4)}, s{sTmp} offen")
            A(f"s_add_u32 s{sTmp}, s{sTmp}, 4096")
        A("s_waitcnt vmcnt(0)")
        A("s_endpgm")
    A.raw('.section .rodata,"a"')
    A.raw(descriptor(NAME + "_kernel", 512, 102, 256))
    global STAMP_NAMES
    STAMP_NAMES = A.stamp_names
    return A.text()

if __name__ == "__main__":
    open("team.s", "w").write(gen_standalone(stamps=2))
```

```python
from asmlib import *
import team as T
from team import (rWS, rDBG, rW, sX, sW, sH, sTmp, sTmp2, sG, sPerm0, sPerm1, SPIN, Cnt,
                  D_INIT, D_LN, D_MOE, D_MOEDONE, CNT, C_KV, C_O, XN, KV, QX, MEMG)
import struct, math
XB = 4 << 20
RL = 6 << 20
MOEP = (6 << 20) + (64 << 10)
OX = 68 << 20
NR = 4
NG = 6
NH = 32*NR; M0 = NH; O0 = NH + 16
f2u = lambda x: struct.unpack("<I", struct.pack("<f", x))[0]
sI, sHd, sR, sSeg, sPrev, sA, sBq, sC = 24, 28, 29, 30, 31, 32, 33, 34
rX, rOUT = 44, 48
DPP = " row_mask:0xf bank_mask:0xf"

def allreduce(A, op, regs, tmps):
    for ctrl in ("quad_perm:[1,0,3,2]", "quad_perm:[2,3,0,1]", "row_half_mirror", "row_mirror"):
        for r in regs: A(f"{op}_dpp v{r}, v{r}, v{r} {ctrl}{DPP}")
    for sw in (16, 32):
        for r, t in zip(regs, tmps): A(f"v_mov_b32 v{t}, v{r}")
        for r, t in zip(regs, tmps): A(f"v_permlane{sw}_swap_b32 v{r}, v{t}")
        for r, t in zip(regs, tmps): A(f"{op} v{r}, v{r}, v{t}")

def rnd_bf(A, r):
    A(f"v_cvt_pk_bf16_f32 v{r}, v{r}, v{r}")
    A(f"v_and_b32 v{r}, 0xffff0000, v{r}")

def unpack(A, lo, hi, src):
    A(f"v_lshlrev_b32 v{lo}, 16, v{src}")
    A(f"v_and_b32 v{hi}, 0xffff0000, v{src}")

def wait_dword(A, tag, off, target, ta, tb, sleep=2, srdn=rDBG, soff="0"):
    A(f"""
    s_cmp_lg_u32 s{sW}, 0
    s_cbranch_scc1 L_wd{tag}_ok
    v_mov_b32 v{ta}, 0
    L_wd{tag}:
    buffer_load_dword v{tb}, v{ta}, {s(srdn,4)}, {soff} offen offset:{off} sc1
    s_waitcnt vmcnt(0)
    v_readfirstlane_b32 s{sTmp}, v{tb}
    s_cmp_ge_u32 s{sTmp}, {target}
    s_cbranch_scc1 L_wd{tag}_ok
    s_sleep {sleep}
    s_add_u32 s{sG}, s{sG}, 1
    s_cmp_lt_u32 s{sG}, {SPIN}
    s_cbranch_scc1 L_wd{tag}
    L_wd{tag}_ok:
    s_barrier
    s_nop 1
    """)

def signal(A, tag, body, ta, tb, ret=False, srdn=rDBG):
    A(f"s_cmp_lg_u32 s{sW}, 0")
    A(f"s_cbranch_scc1 L_sig{tag}")
    A("s_mov_b64 exec, 1")
    body()
    A(f"buffer_atomic_add v{tb}, v{ta}, {s(srdn,4)}, 0 offen" + (" sc0" if ret else ""))
    A("s_mov_b64 exec, -1")
    A.label(f"L_sig{tag}")

def seg_signal(A, tag, sseg, base, ta, tb):
    def body():
        A(f"""
        s_lshl_b32 s{sTmp}, s{sseg}, 8
        s_add_u32 s{sTmp}, s{sTmp}, {CNT + base}
        v_mov_b32 v{ta}, s{sTmp}
        v_mov_b32 v{tb}, 1
        """)
    signal(A, tag, body, ta, tb, srdn=rWS)

vL16, vT16, vC, vG = 1, 2, 3, 4
WST = [False]
WPF = [True]
OPF = [True]
SLP = [6, 3]
OPN = [3]
OSC = ['']
NOP2 = [False]
PRE1 = [True]
HDMA = [True]
WPW = [4]
QLATE = [True]
NQE = [3]
def wstamp(A, k):
    if not WST[0]: return
    A("s_memrealtime s[96:97]")
    A("s_waitcnt lgkmcnt(0)")
    A(f"s_mov_b32 s{[72,73,74,75,98,99,100,101][k]}, s96")

def common(A):
    if WST[0]:
        A("s_mov_b32 s72, s3")
        for r in (73,74,75,98,99,100,101): A(f"s_mov_b32 s{r}, 0")
    wstamp(A, 1)
    A(f"""
    s_sub_u32 s{sI}, s{sH}, 32
    s_cmp_ge_u32 s{sI}, 224
    s_cbranch_scc1 L_end
    v_and_b32 v5, 63, v0
    v_and_b32 v{vC}, 15, v0
    v_lshrrev_b32 v{vG}, 4, v5
    v_lshlrev_b32 v{vL16}, 4, v5
    v_lshlrev_b32 v{vT16}, 4, v0
    s_mov_b32 s{sPerm0}, 0x05040100
    s_mov_b32 s{sPerm1}, 0x07060302
    s_mov_b32 s{sG}, 0
    s_waitcnt lgkmcnt(0)
    """)
    srd(A, rX, 76, 2 << 20)
    srd(A, rOUT, 70, 2 << 20)

def pf_wo(A, first):
    if not OPF[0]: return
    A(f"s_sub_u32 s{sTmp}, s{sI}, {first}")
    A(f"s_lshl_b32 s{sTmp}, s{sTmp}, 17")
    srd(A, 52, 86, 4 << 20)
    for i in range(32):
        A(f"buffer_load_dwordx4 v[{128+4*(i&7)}:{131+4*(i&7)}], v{vT16}, s[52:55], s{sTmp} offen")
        A(f"s_add_u32 s{sTmp}, s{sTmp}, 4096")

def ln(A):
    X, WR, F, Sg, Tm, Mb, WF = 16, 32, 40, 72, 76, 80, 84
    A(f"s_cmp_lt_u32 s{sI}, {O0+64}")
    A("s_cbranch_scc1 L_ln_go")
    pf_wo(A, O0 + 64 - 16)
    A("s_branch L_ln_done")
    A.label("L_ln_go")
    srd(A, rW, 88, 1024)
    A(f"s_sub_u32 s{sA}, s{sI}, {O0}")
    A(f"s_lshl_b32 s{sA}, s{sA}, 3")
    A(f"s_add_u32 s{sA}, s{sA}, s{sW}")
    A(f"s_lshl_b32 s{sBq}, s{sA}, 4")
    A(f"s_lshl_b32 s{sA}, s{sA}, 12")
    A(f"buffer_load_dwordx4 {v(WR,4)}, v{vL16}, {s(rW,4)}, 0 offen")
    for j in range(4): A(f"buffer_load_dwordx4 {v(X+4*j,4)}, v{vL16}, {s(rX,4)}, s{sA} offen offset:{1024*j}")
    A(f"s_add_u32 s{sTmp}, s{sA}, 16384")
    for j in range(4): A(f"buffer_load_dwordx4 {v(100+4*j,4)}, v{vL16}, {s(rX,4)}, s{sTmp} offen offset:{1024*j}")
    A(f"s_sub_u32 s{sTmp}, s{sI}, {O0}")
    A(f"s_lshl_b32 s{sTmp}, s{sTmp}, 8")
    A(f"s_add_u32 s{sTmp}, s{sTmp}, {CNT}")
    A(f"v_lshrrev_b32 v5, 2, v{vL16}")
    A("v_mov_b32 v6, 0")
    A(f"buffer_store_dword v6, v5, {s(rWS,4)}, s{sTmp} offen sc1")
    A(f"s_mov_b32 s{sSeg}, 0")
    if OPF[0]:
        A(f"s_sub_u32 s{sTmp2}, s{sI}, {O0}")
        A(f"s_lshl_b32 s{sTmp2}, s{sTmp2}, 16")
        for mi, base in enumerate((80, 82, 84)[:OPN[0]]):
            srd(A, 52, base, 4 << 20)
            A(f"s_mov_b32 s{sTmp}, s{sTmp2}")
            for i in range(16):
                A(f"buffer_load_dwordx4 v[{128+4*(i&7)}:{131+4*(i&7)}], v{vT16}, s[52:55], s{sTmp} offen")
                A(f"s_add_u32 s{sTmp}, s{sTmp}, 4096")
    A(f"s_waitcnt vmcnt({5 + (16*OPN[0] if OPF[0] else 0)})")
    A.label("L_ln_pass")
    R4 = range(4)
    for j in R4:
        for d in range(4): unpack(A, F+8*j+2*d, F+8*j+2*d+1, X+4*j+d)
        A(f"v_add_f32 v{Sg+j}, v{F+8*j}, v{F+8*j+1}")
        for e in range(2, 8): A(f"v_add_f32 v{Sg+j}, v{Sg+j}, v{F+8*j+e}")
    allreduce(A, "v_add_f32", [Sg+j for j in R4], [Tm+j for j in R4])
    for j in R4: A(f"v_mul_f32 v{Mb+j}, {f2u(1/512):#x}, v{Sg+j}")
    for j in R4:
        for e in range(8):
            A(f"v_sub_f32 v{Tm}, v{F+8*j+e}, v{Mb+j}")
            if e == 0: A(f"v_mul_f32 v{Sg+j}, v{Tm}, v{Tm}")
            else: A(f"v_fmac_f32 v{Sg+j}, v{Tm}, v{Tm}")
    allreduce(A, "v_add_f32", [Sg+j for j in R4], [Tm+j for j in R4])
    for j in R4:
        rnd_bf(A, Mb+j)
        A(f"v_mul_f32 v{Sg+j}, {f2u(1/512):#x}, v{Sg+j}")
        rnd_bf(A, Sg+j)
        A(f"v_add_f32 v{Sg+j}, {f2u(1e-5):#x}, v{Sg+j}")
        rnd_bf(A, Sg+j)
        A(f"v_sqrt_f32 v{Sg+j}, v{Sg+j}")
        rnd_bf(A, Sg+j)
        A(f"v_rcp_f32 v{Tm+j}, v{Sg+j}")
    for d in range(4): unpack(A, WF+2*d, WF+2*d+1, WR+d)
    Q, E, RA = 92, 94, 96
    for j in R4:
        for d in range(4):
            f = F + 8*j + 2*d
            A(f"v_sub_f32 v{f}, v{f}, v{Mb+j}")
            A(f"v_sub_f32 v{f+1}, v{f+1}, v{Mb+j}")
            A(f"v_cvt_pk_bf16_f32 v{Q}, v{f}, v{f+1}")
            unpack(A, f, f+1, Q)
            for u in range(2):
                A(f"v_mul_f32 v{Q+u}, v{f+u}, v{Tm+j}")
                A(f"v_fma_f32 v{E+u}, -v{Q+u}, v{Sg+j}, v{f+u}")
                A(f"v_fmac_f32 v{Q+u}, v{E+u}, v{Tm+j}")
            A(f"v_cvt_pk_bf16_f32 v{X+4*j+d}, v{Q}, v{Q+1}")
            unpack(A, f, f+1, X+4*j+d)
            if d == 0: A(f"v_mul_f32 v{RA+j}, v{f}, v{WF}")
            else: A(f"v_fmac_f32 v{RA+j}, v{f}, v{WF+2*d}")
            A(f"v_fmac_f32 v{RA+j}, v{f+1}, v{WF+2*d+1}")
        A(f"s_add_u32 s{sTmp}, s{sA}, {XN}")
        A(f"buffer_store_dwordx4 {v(X+4*j,4)}, v{vL16}, {s(rWS,4)}, s{sTmp} offen offset:{1024*j} sc1")
        A(f"s_add_u32 s{sTmp}, s{sA}, {XB}")
        A(f"buffer_store_dwordx4 {v(X+4*j,4)}, v{vL16}, {s(rWS,4)}, s{sTmp} offen offset:{1024*j} sc1")
    allreduce(A, "v_add_f32", [RA+j for j in R4], [Tm+j for j in R4])
    for j in R4: rnd_bf(A, RA+j)
    A(f"s_add_u32 s{sTmp}, s{sBq}, {RL}")
    A("s_mov_b64 exec, 1")
    A(f"buffer_store_dwordx4 {v(RA,4)}, v{vL16}, {s(rWS,4)}, s{sTmp} offen sc1")
    A("s_mov_b64 exec, -1")
    A(f"s_cmp_lg_u32 s{sSeg}, 0")
    A("s_cbranch_scc1 L_ln_fin")
    A(f"s_mov_b32 s{sSeg}, 1")
    A(f"s_add_u32 s{sA}, s{sA}, 16384")
    A(f"s_add_u32 s{sBq}, s{sBq}, 64")
    A(f"s_waitcnt vmcnt({10 + (16*OPN[0] if OPF[0] else 0)})")
    for i in range(0, 16, 2): A(f"v_mov_b64 {v(X+i,2)}, {v(100+i,2)}")
    A("s_branch L_ln_pass")
    A.label("L_ln_fin")
    A("s_waitcnt vmcnt(0)")
    A("s_barrier")
    signal(A, "ln", lambda: A(f"v_mov_b32 v5, {D_LN}\nv_mov_b32 v6, 1"), 5, 6)
    A.label("L_ln_done")
    wstamp(A, 2)

def load_frags(A, nb, issue8, home, TB, PT, depth=3):
    vm = Cnt(A, "vmcnt", 63); toks = {}
    for bi in range(nb + depth):
        if bi >= depth:
            b = bi - depth; Tt = TB[b % len(TB)]
            vm.wait(toks[b])
            for half in range(2):
                for t in range(2):
                    kind, base = home(b, half, t)
                    for r in range(4):
                        lo, hi = Tt + 8*half + 2*r, Tt + 8*half + 2*r + 1
                        sel = sPerm1 if t else sPerm0
                        if kind == "v": A(f"v_perm_b32 v{base+r}, v{hi}, v{lo}, s{sel}")
                        else:
                            A(f"v_perm_b32 v{PT+(r&1)}, v{hi}, v{lo}, s{sel}")
                            A(f"v_accvgpr_write_b32 a{base+r}, v{PT+(r&1)}")
        if bi < nb:
            for half in range(2):
                issue8(bi, half, TB[bi % len(TB)] + 8*half)
                for _ in range(8): toks[bi] = vm.issue()

def hrole(A):
    MI = {"k": 0, "v": 1, "q": 2}
    def wf(m, t, k):
        n = (MI[m]*16 + k)*2 + t
        return ("a", 4*n) if n < 64 else ("v", 128 + 4*(n-64))
    def wop(m, t, k):
        kind, base = wf(m, t, k)
        return (a if kind == "a" else v)(base, 4)
    vWa, vXs, vXB = 5, 6, 7
    A(f"""
    s_lshr_b32 s{sHd}, s{sI}, 2
    s_and_b32 s{sR}, s{sI}, 3
    ; W voffset = g*65536 + h*256 + 64w + 4c
    v_lshlrev_b32 v{vWa}, 16, v{vG}
    v_lshl_add_u32 v{vWa}, v{vC}, 2, v{vWa}
    s_lshl_b32 s{sTmp}, s{sHd}, 8
    s_lshl_b32 s{sTmp2}, s{sW}, 6
    s_add_u32 s{sTmp}, s{sTmp}, s{sTmp2}
    v_add_u32 v{vWa}, s{sTmp}, v{vWa}
    v_lshlrev_b32 v{vXs}, 10, v{vC}
    v_lshl_add_u32 v{vXs}, v{vG}, 4, v{vXs}
    s_lshr_b32 s{sTmp}, s{sW}, 1
    s_lshl_b32 s{sTmp}, s{sTmp}, 14
    s_and_b32 s{sTmp2}, s{sW}, 1
    s_lshl_b32 s{sTmp2}, s{sTmp2}, 9
    s_add_u32 s{sTmp}, s{sTmp}, s{sTmp2}
    v_add_u32 v{vXs}, s{sTmp}, v{vXs}
    v_mov_b32 v{vXB}, v{vL16}
    """)
    if WPF[0]:
        big = WPF[0] == 1
        A(f"""
        s_lshr_b32 s{sTmp}, s{sI}, {5 if big else 6}
        s_lshl_b32 s{sTmp}, s{sTmp}, 3
        s_add_u32 s{sTmp}, s{sTmp}, {16 if big else 24}
        s_load_dwordx2 s[68:69], s[0:1], s{sTmp}
        s_and_b32 s{sTmp}, s{sI}, {31 if big else 63}
        s_lshl_b32 s{sTmp}, s{sTmp}, {17 if big else 16}
        s_waitcnt lgkmcnt(0)
        """)
        srd(A, rW, 68, 4 << 20)
        for i in range(32 if big else 16):
            A(f"buffer_load_dwordx4 v[{128+4*(i&7)}:{131+4*(i&7)}], v{vT16}, {s(rW,4)}, s{sTmp} offen")
            A(f"s_add_u32 s{sTmp}, s{sTmp}, 4096")
        A(f"s_waitcnt vmcnt({WPW[0]})")
    mats = "kvq"
    def issue8(b, half, Tt):
        m = mats[b // 8]; k = 2*(b % 8) + half
        if b % 8 == 0 and half == 0: srd(A, rW, {"q": 80, "k": 82, "v": 84}[m], 4 << 20)
        for j in range(8):
            A(f"s_mov_b32 s{sTmp}, {(32*k + j)*8192}")
            A(f"buffer_load_dword v{Tt+j}, v{vWa}, {s(rW,4)}, s{sTmp} offen")
    if not HDMA[0]:
        load_frags(A, 24, issue8, lambda b, half, t: wf(mats[b // 8], t, 2*(b % 8) + half), [16, 32, 48], 64)
    else:
        NS = 6; SB = 65536; vS, vR0, vR1, sMw = 12, 13, 14, 36
        A(f"""
        v_lshlrev_b32 v{vS}, 13, v{vG}
        v_lshl_add_u32 v{vS}, v{vC}, 4, v{vS}
        s_lshl_b32 s{sTmp}, s{sHd}, 8
        s_lshl_b32 s{sTmp2}, s{sW}, 17
        s_add_u32 s{sTmp}, s{sTmp}, s{sTmp2}
        v_add_u32 v{vS}, s{sTmp}, v{vS}
        v_lshlrev_b32 v{vR0}, 11, v{vG}
        v_lshl_add_u32 v{vR0}, v{vC}, 2, v{vR0}
        s_lshl_b32 s{sTmp}, s{sW}, 6
        s_add_u32 s{sTmp}, s{sTmp}, {SB}
        v_add_u32 v{vR0}, s{sTmp}, v{vR0}
        v_add_u32 v{vR1}, {3*16384}, v{vR0}
        s_lshl_b32 s{sMw}, s{sW}, 12
        s_add_u32 s{sMw}, s{sMw}, {SB}
        """)
        vm = Cnt(A, "vmcnt", 63); ct = {}
        def cissue(c):
            if c % 8 == 0: srd(A, rW, {"q": 80, "k": 82, "v": 84}[mats[c // 8]], 4 << 20)
            for j in range(4):
                A(f"s_add_u32 m0, s{sMw}, {(c % NS)*16384 + j*1024}")
                A(f"s_mov_b32 s{sTmp}, {(64*(c % 8) + 4*j)*8192}")
                A(f"buffer_load_dwordx4 v{vS}, {s(rW,4)}, s{sTmp} offen lds"); tok = vm.issue()
            return tok
        def cstep(c, exact=True):
            if exact: vm.wait(ct[c])
            A("s_barrier")
            if c + NS - 1 < 24 and not (QLATE[0] and 16 <= c + NS - 1 <= 21): ct[c+NS-1] = cissue(c + NS - 1)
            ra = vR0 if (c % NS) < 3 else vR1; so = ((c % NS) % 3) * 64
            for i in range(8):
                o = so + 32*(i >> 2) + 2*(i & 3)
                A(f"ds_read2st64_b32 {v(16+2*i,2)}, v{ra} offset0:{o} offset1:{o+1}")
            for i in range(8):
                if i % 2 == 0: A(f"s_waitcnt lgkmcnt({6-i})")
                for t in range(2):
                    kind, base = wf(mats[c // 8], t, 2*(c % 8) + (i >> 2))
                    sel = sPerm1 if t else sPerm0
                    if kind == "v": A(f"v_perm_b32 v{base+(i&3)}, v{17+2*i}, v{16+2*i}, s{sel}")
                    else:
                        A(f"v_perm_b32 v{32+t}, v{17+2*i}, v{16+2*i}, s{sel}")
                        A(f"v_accvgpr_write_b32 a{base+(i&3)}, v{32+t}")
        for c in range(NS - 1): ct[c] = cissue(c)
        for c in range(16 if QLATE[0] else 24): cstep(c)
    wstamp(A, 3)
    wait_dword(A, "ln", D_LN, 64, 8, 9)
    wstamp(A, 4)
    sM0 = 35
    def dma_x(sseg):
        A(f"s_lshl_b32 s{sTmp}, s{sseg}, 15")
        A(f"s_add_u32 s{sTmp}, s{sTmp}, {XN}")
        A(f"s_mov_b32 m0, s{sM0}")
        for k in range(8):
            if k: A(f"s_add_u32 m0, m0, 960")
            A(f"buffer_load_dwordx4 v{vXs}, {s(rWS,4)}, s{sTmp} offen offset:{64*k} sc1 lds")
        A(f"s_xor_b32 s{sM0}, s{sM0}, 32768")
    A(f"s_lshl_b32 s{sM0}, s{sW}, 13")
    A(f"s_mov_b32 s{sSeg}, s{sR}")
    A(f"s_mov_b32 s{sPrev}, 64")
    dma_x(sSeg)
    if QLATE[0]:
        for c in range(16, 16 + NQE[0]): cissue(c)
    ACC, XF, PK = 16, 64, 80
    acc = lambda tile, m, t: ACC + 4*((tile*3 + MI[m])*2 + t)
    A(f"s_waitcnt vmcnt({4*NQE[0] if QLATE[0] else 0})")
    A.label("L_p1")
    A("s_barrier")
    A.label("L_p1b")
    A(f"s_add_u32 s{sA}, s{sSeg}, {NR}")
    A(f"s_cmp_ge_u32 s{sA}, 64")
    A(f"s_cselect_b32 s{sA}, s{sSeg}, s{sA}")
    dma_x(sA)
    lg = Cnt(A, "lgkmcnt", 15); tk = {}
    def rdx(i):
        A(f"ds_read_b128 {v(XF+4*(i&3),4)}, v{vXB} offset:{1024*(i&31)}"); tk[i] = lg.issue()
    for i in range(3): rdx(i)
    A(f"s_lshl_b32 s{sA}, s{sSeg}, 5")
    A(f"s_add_u32 s{sA}, s{sA}, s{sHd}")
    A(f"s_lshl_b32 s{sBq}, s{sA}, 13")
    A(f"s_add_u32 s{sBq}, s{sBq}, {QX}")
    A(f"s_lshl_b32 s{sA}, s{sA}, 14")
    A(f"s_add_u32 s{sA}, s{sA}, {KV}")
    def st_t(m, tile, pk, sbase):
        for i in range(4): A(f"v_cvt_pk_bf16_f32 v{pk+i}, v{acc(tile,m,0)+i}, v{acc(tile,m,1)+i}")
        A(f"s_add_u32 s{sTmp}, s{sbase}, {4096*tile}")
        A(f"buffer_store_dwordx4 {v(pk,4)}, v{vT16}, {s(rWS,4)}, s{sTmp} offen" + (" sc1" if m == "k" else ""))
    def st_v(t):
        pk = PK + 12 + 4*t
        for tile in range(2):
            for u in range(2): A(f"v_cvt_pk_bf16_f32 v{pk+2*tile+u}, v{acc(tile,'v',t)+2*u}, v{acc(tile,'v',t)+2*u+1}")
        A(f"s_add_u32 s{sTmp}, s{sA}, {8192 + 4096*t}")
        A(f"buffer_store_dwordx4 {v(pk,4)}, v{vT16}, {s(rWS,4)}, s{sTmp} offen sc1")
    for i in range(64):
        tile, k = (i >> 4) & 1, i & 15
        lg.wait(tk[i])
        xf = v(XF+4*(i&3), 4)
        n = 0
        for m in ("kv" if i < 32 else "q"):
            for t in range(2):
                d = v(acc(tile, m, t), 4); c = 0 if k == 0 else d
                if m == "v": A(f"v_mfma_f32_16x16x32_bf16 {d}, {xf}, {wop(m,t,k)}, {c}")
                else: A(f"v_mfma_f32_16x16x32_bf16 {d}, {wop(m,t,k)}, {xf}, {c}")
                n += 1
                if n == 1 and i + 3 < 64: rdx(i + 3)
        if i == 17: st_t("k", 0, PK, sA)
        if i == 31:
            st_t("k", 1, PK+8, sA); st_v(0); st_v(1)
            if QLATE[0]:
                A(f"s_cmp_lt_u32 s{sSeg}, {NR}")
                A("s_cbranch_scc1 L_qload")
                A.label("L_qload_ret")
        if i == 49: st_t("q", 0, PK+4, sBq)
    st_t("q", 1, PK+20, sBq)
    A(f"v_xor_b32 v{vXB}, 0x8000, v{vXB}")
    A("s_waitcnt vmcnt(2)")
    A("s_barrier")
    if QLATE[0]:
        A(f"s_cmp_lt_u32 s{sSeg}, {NR}")
        A("s_cbranch_scc1 L_sigkv2")
    seg_signal(A, "kv2", sSeg, C_KV, 8, 9)
    if WST[0] and not QLATE[0]:
        A(f"s_cmp_ge_u32 s{sSeg}, {NR}")
        A("s_cbranch_scc1 L_nost2")
        wstamp(A, 2)
        A.label("L_nost2")
    A(f"s_add_u32 s{sSeg}, s{sSeg}, {NR}")
    A(f"s_cmp_lt_u32 s{sSeg}, 64")
    A("s_cbranch_scc1 L_p1b")
    A("s_waitcnt vmcnt(0)")
    A("s_barrier")
    A.label("L_p1_done")
    wstamp(A, 5)
    if NOP2[0]: A("s_branch L_end")
    RSM = 1056; L_MN = 0; L_KM = 8704; L_VM = L_KM + 4096
    vMW, vMR, vNI, vVR, vVW = 5, 6, 7, 8, 9
    sMask = 52
    sQo, sVo, sOo = 36, 37, 38
    A(f"""
    ; row(c)
    v_lshrrev_b32 v10, 2, v{vC}
    v_and_b32 v11, 1, v{vC}
    v_lshl_add_u32 v10, v10, 1, v11
    v_mul_u32_u24 v10, {RSM}, v10
    v_lshl_add_u32 v{vMR}, v{vG}, 4, v10
    v_lshl_add_u32 v{vMW}, v{vG}, 6, v10
    v_and_b32 v11, 2, v{vC}
    v_lshl_add_u32 v{vMW}, v11, 4, v{vMW}
    s_lshl_b32 s{sTmp}, s{sW}, 8
    v_add_u32 v{vMW}, s{sTmp}, v{vMW}
    v_mov_b32 v{vNI}, 0xff800000
    v_lshrrev_b32 v{vVW}, 1, v{vT16}
    v_lshrrev_b32 v{vVR}, 1, v{vL16}
    s_and_b32 s{sTmp}, s{sW}, 2
    s_lshl_b32 s{sVo}, s{sTmp}, 10
    s_lshl_b32 s{sTmp}, s{sTmp}, 9
    v_add_u32 v{vVR}, s{sTmp}, v{vVR}
    s_and_b32 s{sTmp}, s{sW}, 1
    s_lshl_b32 s{sQo}, s{sTmp}, 12
    s_lshl_b32 s{sOo}, s{sTmp}, 17
    s_add_u32 s{sOo}, s{sOo}, s{sVo}
    s_lshl_b32 s{sTmp2}, s{sHd}, 12
    s_add_u32 s{sOo}, s{sOo}, s{sTmp2}
    s_add_u32 s{sOo}, s{sOo}, {OX}
    s_lshl_b32 s{sTmp}, s{sTmp}, 4
    v_lshlrev_b32 v10, 2, v{vG}
    v_sub_u32 v10, v{vC}, v10
    v_add_u32 v10, s{sTmp}, v10
    s_mov_b32 s{sC}, {f2u((128 ** -0.5) * math.log2(math.e)):#x}
    """)
    for t in range(2):
        for i in range(4): A(f"v_cmp_le_i32 s[{sMask+2*(4*t+i)}:{sMask+2*(4*t+i)+1}], {16*t+i}, v10")
    wait_dword(A, "init", D_INIT, 32, 10, 11)
    QF, KF, VF, S, AM, MF = 16, 32, 64, 80, 92, 108
    t0, t1 = 10, 11
    A(f"s_mov_b32 s{sSeg}, s{sR}")
    A.label("L_p2")
    A(f"""
    s_lshl_b32 s{sA}, s{sSeg}, 5
    s_add_u32 s{sA}, s{sA}, s{sHd}
    s_lshl_b32 s{sBq}, s{sA}, 13
    s_add_u32 s{sBq}, s{sBq}, {QX}
    s_add_u32 s{sBq}, s{sBq}, s{sQo}
    s_lshl_b32 s{sA}, s{sA}, 14
    s_add_u32 s{sA}, s{sA}, {KV}
    """)
    for k in range(4): A(f"buffer_load_dwordx4 {v(QF+4*k,4)}, v{vL16}, {s(rWS,4)}, s{sBq} offen offset:{1024*k} sc1")
    for i in range(8):
        if i == 4: A(f"s_add_u32 s{sA}, s{sA}, 4096")
        A(f"buffer_load_dwordx4 {v(KF+4*i,4)}, v{vL16}, {s(rWS,4)}, s{sA} offen offset:{1024*(i&3)} sc1")
    A(f"s_add_u32 s{sA}, s{sA}, s{sVo}")
    for t in range(2):
        A(f"s_add_u32 s{sA}, s{sA}, 4096")
        for wp in range(2): A(f"buffer_load_dwordx4 {v(VF+4*(2*wp+t),4)}, v{vL16}, {s(rWS,4)}, s{sA} offen offset:{1024*wp} sc1")
    A("s_waitcnt vmcnt(4)")
    for k in range(4):
        for t in range(2):
            A(f"v_mfma_f32_16x16x32_bf16 {v(S+4*t,4)}, {v(KF+16*t+4*k,4)}, {v(QF+4*k,4)}, {v(S+4*t,4) if k else 0}")
    A(f"s_lshl_b32 s{sA}, s{sSeg}, 13")
    A(f"s_add_u32 s{sA}, s{sA}, {MEMG}")
    A(f"s_add_u32 s{sBq}, s{sA}, 4096")
    for i in range(8): A(f"v_cndmask_b32 v{S+i}, v{vNI}, v{S+i}, s[{sMask+2*i}:{sMask+2*i+1}]")
    A(f"v_max3_f32 v12, v{S}, v{S+1}, v{S+2}")
    A(f"v_max3_f32 v12, v12, v{S+3}, v{S+4}")
    A(f"v_max3_f32 v12, v12, v{S+5}, v{S+6}")
    A(f"v_max_f32 v12, v12, v{S+7}")
    if PRE1[0]:
        A(f"""
        s_cmp_lg_u32 s{sW}, 0
        s_cbranch_scc1 L_p2_pre_ok
        v_mov_b32 v{t1}, 0
        s_sub_u32 s{sPrev}, s{sA}, 4096
        s_max_u32 s{sPrev}, s{sPrev}, {MEMG}
        L_p2_pre:
        buffer_load_dword v{t0}, v{t1}, {s(rWS,4)}, s{sPrev} offen sc1
        s_waitcnt vmcnt(0)
        v_cmp_eq_u32 vcc, -1, v{t0}
        s_cbranch_vccz L_p2_pre_ok
        s_sleep {SLP[0]}
        s_add_u32 s{sG}, s{sG}, 1
        s_cmp_lt_u32 s{sG}, {SPIN}
        s_cbranch_scc1 L_p2_pre
        L_p2_pre_ok:
        s_barrier
        """)
    A.label("L_p2_poll")
    A(f"buffer_load_dwordx4 {v(MF,4)}, v{vT16}, {s(rWS,4)}, s{sA} offen sc1")
    A(f"buffer_load_dwordx4 {v(MF+4,4)}, v{vT16}, {s(rWS,4)}, s{sBq} offen sc1")
    A(f"""
    s_waitcnt vmcnt(0)
    v_max3_u32 v{t0}, v{MF}, v{MF+1}, v{MF+2}
    v_max3_u32 v{t0}, v{t0}, v{MF+3}, v{MF+4}
    v_max3_u32 v{t0}, v{t0}, v{MF+5}, v{MF+6}
    v_max_u32 v{t0}, v{t0}, v{MF+7}
    v_cmp_eq_u32 vcc, -1, v{t0}
    s_cbranch_vccz L_p2_got
    s_sleep {2 if PRE1[0] else SLP[0]}
    s_add_u32 s{sG}, s{sG}, 1
    s_cmp_lt_u32 s{sG}, {SPIN}
    s_cbranch_scc1 L_p2_poll
    s_branch L_end
    L_p2_got:
    """)
    wstamp(A, 6)
    A(f"""
    ds_write2_b64 v{vMW}, {v(MF,2)}, {v(MF+2,2)} offset0:0 offset1:2
    ds_write2_b64 v{vMW}, {v(MF+4,2)}, {v(MF+6,2)} offset0:1 offset1:3
    s_waitcnt lgkmcnt(0)
    s_barrier
    """)
    lg = Cnt(A, "lgkmcnt", 15); tk = {}
    def rdm(k):
        A(f"ds_read_b128 {v(MF+4*(k&3),4)}, v{vMR} offset:{L_MN+64*k}"); tk[k] = lg.issue()
    for k in range(3): rdm(k)
    for k in range(16):
        lg.wait(tk[k]); xf = v(MF+4*(k&3), 4)
        for n, (m, t) in enumerate((("k",0),("k",1),("v",0),("v",1))):
            d = v(AM+4*n, 4); c = 0 if k == 0 else d
            if m == "v": A(f"v_mfma_f32_16x16x32_bf16 {d}, {xf}, {wop(m,t,k)}, {c}")
            else: A(f"v_mfma_f32_16x16x32_bf16 {d}, {wop(m,t,k)}, {xf}, {c}")
            if n == 0 and k + 3 < 16: rdm(k + 3)
    for i in range(4): A(f"v_cvt_pk_bf16_f32 v{AM+i}, v{AM+i}, v{AM+4+i}")
    A(f"ds_write_b128 v{vT16}, {v(AM,4)} offset:{L_KM}")
    A(f"v_cvt_pk_bf16_f32 v{AM+8}, v{AM+8}, v{AM+9}")
    A(f"v_cvt_pk_bf16_f32 v{AM+9}, v{AM+12}, v{AM+13}")
    A(f"ds_write_b64 v{vVW}, {v(AM+8,2)} offset:{L_VM}")
    KM, VMp, ONES, OO, LL = KF, KF+16, KF+24, AM, MF
    for i in range(4): A(f"v_mov_b32 v{ONES+i}, 0x3f803f80")
    A("s_waitcnt lgkmcnt(0)")
    A("s_barrier")
    for k in range(4): A(f"ds_read_b128 {v(KM+4*k,4)}, v{vL16} offset:{L_KM+1024*k}")
    for wp in range(2):
        for t in range(2):
            A(f"ds_read_b32 v{VMp+2*(2*wp+t)}, v{vVR} offset:{L_VM+512*wp+4*t}")
            A(f"v_mov_b32 v{VMp+2*(2*wp+t)+1}, 0")
    for k in range(4):
        A(f"s_waitcnt lgkmcnt({7-k})")
        A(f"v_mfma_f32_16x16x32_bf16 {v(S+8,4)}, {v(KM+4*k,4)}, {v(QF+4*k,4)}, {v(S+8,4) if k else 0}")
    A(f"v_max3_f32 v{t0}, v12, v{S+8}, v{S+9}")
    for sw in (32, 16):
        A(f"v_mov_b32 v{t1}, v{t0}")
        A(f"v_permlane{sw}_swap_b32 v{t0}, v{t1}")
        A(f"v_max_f32 v{t0}, v{t0}, v{t1}")
    A(f"v_mul_f32 v{t0}, s{sC}, v{t0}")
    for i in range(10): A(f"v_fma_f32 v{S+i}, v{S+i}, s{sC}, -v{t0}")
    for i in range(10): A(f"v_exp_f32 v{S+i}, v{S+i}")
    for i in range(4): A(f"v_cvt_pk_bf16_f32 v{S+i}, v{S+2*i}, v{S+2*i+1}")
    A(f"v_cvt_pk_bf16_f32 v{S+8}, v{S+8}, v{S+9}")
    A(f"v_mov_b32 v{S+9}, 0")
    A("s_waitcnt lgkmcnt(0)")
    A(f"v_mfma_f32_16x16x32_bf16 {v(LL,4)}, {v(ONES,4)}, {v(S,4)}, 0")
    for n in range(4): A(f"v_mfma_f32_16x16x32_bf16 {v(OO+4*n,4)}, {v(VF+4*n,4)}, {v(S,4)}, 0")
    A(f"v_mfma_f32_16x16x16_bf16 {v(LL,4)}, {v(ONES,2)}, {v(S+8,2)}, {v(LL,4)}")
    for n in range(4): A(f"v_mfma_f32_16x16x16_bf16 {v(OO+4*n,4)}, {v(VMp+2*n,2)}, {v(S+8,2)}, {v(OO+4*n,4)}")
    A(f"v_rcp_f32 v{t0}, v{LL}")
    A(f"s_lshl_b32 s{sA}, s{sSeg}, 18")
    A(f"s_add_u32 s{sA}, s{sA}, s{sOo}")
    for wp in range(2):
        for i in range(8): A(f"v_mul_f32 v{OO+8*wp+i}, v{OO+8*wp+i}, v{t0}")
        for i in range(4): A(f"v_cvt_pk_bf16_f32 v{OO+8*wp+i}, v{OO+8*wp+i}, v{OO+8*wp+4+i}")
        A(f"buffer_store_dwordx4 {v(OO+8*wp,4)}, v{vL16}, {s(rWS,4)}, s{sA} offen offset:{1024*wp} sc1")
    A("s_waitcnt vmcnt(0)")
    A("s_barrier")
    seg_signal(A, "o", sSeg, C_O, 10, 11)
    A(f"s_add_u32 s{sSeg}, s{sSeg}, {NR}")
    A(f"s_cmp_lt_u32 s{sSeg}, 64")
    A("s_cbranch_scc1 L_p2")
    A("s_branch L_end")
    if QLATE[0]:
        A.label("L_qload")
        for c in range(16 + NQE[0], 22): ct[c] = cissue(c)
        A(f"s_waitcnt vmcnt({4*(6-NQE[0])}) lgkmcnt(0)")
        A("s_barrier")
        seg_signal(A, "kv3", sSeg, C_KV, 8, 9)
        wstamp(A, 2)
        for c in range(16, 24):
            cstep(c, exact=(c >= 16 + NQE[0]))
        A("s_branch L_qload_ret")

def orole(A):
    vWa, vWb, vXo, vRd = 5, 6, 7, 8
    sCs, sT_ = 28, 30
    A(f"""
    s_sub_u32 s{sTmp}, s{sI}, {M0}
    s_and_b32 s{sCs}, s{sTmp}, 15
    s_lshr_b32 s{sT_}, s{sTmp}, 4
    v_lshlrev_b32 v{vWa}, 13, v{vG}
    v_lshl_add_u32 v{vWa}, v{vC}, 2, v{vWa}
    s_lshl_b32 s{sTmp}, s{sW}, 20
    s_lshl_b32 s{sTmp2}, s{sCs}, 6
    s_add_u32 s{sTmp}, s{sTmp}, s{sTmp2}
    v_add_u32 v{vWa}, s{sTmp}, v{vWa}
    v_add_u32 v{vWb}, 4096, v{vWa}
    v_lshlrev_b32 v{vXo}, 12, v{vG}
    v_lshl_add_u32 v{vXo}, v{vC}, 2, v{vXo}
    s_lshl_b32 s{sTmp}, s{sW}, 10
    s_add_u32 s{sTmp}, s{sTmp}, s{sTmp2}
    v_add_u32 v{vXo}, s{sTmp}, v{vXo}
    s_lshl_b32 s{sTmp}, s{sW}, 2
    v_add_u32 v{vRd}, s{sTmp}, v{vL16}
    """)
    wait_dword(A, "moe", D_MOEDONE, 1, 10, 11, sleep=40)
    wstamp(A, 3)
    srd(A, rW, 86, 4 << 20)
    def issue8(b, half, Tt):
        ks = 2*b + half
        A(f"s_mov_b32 s{sTmp}, {ks*32768}")
        for j in range(8): A(f"buffer_load_dword v{Tt+j}, v{vWa if j < 4 else vWb}, {s(rW,4)}, s{sTmp} offen offset:{1024*(j&3)}")
    load_frags(A, 16, issue8, lambda b, half, t: ("a", 4*((2*b+half)*2 + t)), [16, 32, 48], 64)
    wstamp(A, 4)
    OF, D, XX, P = 128, 16, 24, 32
    A.label("L_o")
    A(f"""
    s_lshl_b32 s{sA}, s{sT_}, 14
    buffer_load_dword v{XX}, v{vXo}, {s(rX,4)}, s{sA} offen
    s_add_u32 s{sTmp}, s{sA}, {XB}
    buffer_load_dword v{XX+1}, v{vXo}, {s(rWS,4)}, s{sTmp} offen sc1
    s_lshr_b32 s{sPrev}, s{sT_}, 1
    s_lshl_b32 s{sPrev}, s{sPrev}, 8
    s_add_u32 s{sPrev}, s{sPrev}, {CNT}
    s_lshl_b32 s{sBq}, s{sT_}, 17
    s_lshl_b32 s{sTmp}, s{sW}, 15
    s_add_u32 s{sBq}, s{sBq}, s{sTmp}
    s_add_u32 s{sBq}, s{sBq}, {OX}
    """)
    wait_dword(A, "oc", C_O, 32, 10, 11, sleep=SLP[1], srdn=rWS, soff=f"s{sPrev}")
    wstamp(A, 6)
    for ks in range(32):
        if ks and ks % 4 == 0: A(f"s_add_u32 s{sBq}, s{sBq}, 4096")
        A(f"buffer_load_dwordx4 {v(OF+4*ks,4)}, v{vL16}, {s(rWS,4)}, s{sBq} offen offset:{1024*(ks&3)} sc1")
    for ks in range(32):
        A(f"s_waitcnt vmcnt({31-ks})")
        for t in range(2):
            A(f"v_mfma_f32_16x16x32_bf16 {v(D+4*t,4)}, {v(OF+4*ks,4)}, {a(4*(2*ks+t),4)}, {v(D+4*t,4) if ks else 0}")
    A(f"ds_write_b128 v{vT16}, {v(D,4)}")
    A(f"ds_write_b128 v{vT16}, {v(D+4,4)} offset:4096")
    A("s_waitcnt lgkmcnt(0)")
    A("s_barrier")
    for t in range(2):
        for w2 in range(4): A(f"ds_read_b32 v{P+4*t+w2}, v{vRd} offset:{4096*t+1024*w2}")
    unpack(A, XX+2, XX+3, XX); unpack(A, XX+4, XX+5, XX+1)
    A("s_waitcnt lgkmcnt(0)")
    A("s_barrier")
    for t in range(2):
        A(f"v_add_f32 v{P+4*t}, v{P+4*t}, v{P+4*t+1}")
        A(f"v_add_f32 v{P+4*t+2}, v{P+4*t+2}, v{P+4*t+3}")
        A(f"v_add_f32 v{P+4*t}, v{P+4*t}, v{P+4*t+2}")
    A(f"v_cvt_pk_bf16_f32 v{P+1}, v{P}, v{P+4}")
    unpack(A, P, P+4, P+1)
    A(f"v_add_f32 v{P}, v{P}, v{XX+2}")
    A(f"v_add_f32 v{P+4}, v{P+4}, v{XX+3}")
    A(f"v_cvt_pk_bf16_f32 v{P+1}, v{P}, v{P+4}")
    unpack(A, P, P+4, P+1)
    A(f"v_add_f32 v{P}, v{P}, v{XX+4}")
    A(f"v_add_f32 v{P+4}, v{P+4}, v{XX+5}")
    A(f"v_cvt_pk_bf16_f32 v{P+1}, v{P}, v{P+4}")
    A(f"buffer_store_dword v{P+1}, v{vXo}, {s(rOUT,4)}, s{sA} offen" + OSC[0])
    A(f"s_add_u32 s{sT_}, s{sT_}, {NG}")
    A(f"s_cmp_lt_u32 s{sT_}, 128")
    A("s_cbranch_scc1 L_o")
    A("s_branch L_end")

def mrole(A):
    sM, sI0, sI1 = 28, 29, 30
    vGa, vDa, vT4 = 5, 6, 7
    rU, rD = 52, 56
    A(f"""
    s_sub_u32 s{sM}, s{sI}, {M0}
    v_lshrrev_b32 v{vGa}, 2, v{vL16}
    s_mul_i32 s{sTmp}, s{sM}, 224
    s_mul_i32 s{sTmp2}, s{sW}, {128*3584}
    s_add_u32 s{sTmp}, s{sTmp}, s{sTmp2}
    v_add_u32 v{vGa}, s{sTmp}, v{vGa}
    v_lshlrev_b32 v{vT4}, 2, v0
    s_mul_i32 s{sTmp}, s{sM}, {112*1024}
    v_add_u32 v{vDa}, s{sTmp}, v{vT4}
    """)
    pf_wo(A, M0)
    srd(A, rW, 90, 512*3584); srd(A, rU, 92, 512*3584); srd(A, rD, 94, 1792*1024)
    wait_dword(A, "lnm", D_LN, 64, 10, 11, sleep=16)
    n = 0
    def throttle():
        nonlocal n
        n += 1
        if n % 16 == 0: A("s_waitcnt vmcnt(40)")
    for k in range(128):
        A(f"s_mov_b32 s{sTmp}, {k*3584}")
        A(f"buffer_load_dword v{128+k}, v{vGa}, {s(rW,4)}, s{sTmp} offen"); throttle()
        A(f"buffer_load_dword a{k}, v{vGa}, {s(rU,4)}, s{sTmp} offen"); throttle()
    for f in range(112):
        if f % 4 == 0: A(f"s_mov_b32 s{sTmp}, {f*1024}")
        A(f"buffer_load_dword a{128+f}, v{vDa}, {s(rD,4)}, s{sTmp} offen offset:{1024*(f&3)}"); throttle()
    K, Tm = 16, 24
    A(f"v_lshlrev_b32 v10, 5, v0")
    A(f"s_mov_b32 s{sTmp}, {RL}")
    A(f"buffer_load_dwordx4 {v(K,4)}, v10, {s(rWS,4)}, s{sTmp} offen sc1")
    A(f"buffer_load_dwordx4 {v(K+4,4)}, v10, {s(rWS,4)}, s{sTmp} offen offset:16 sc1")
    A(f"v_lshlrev_b32 v10, 3, v0")
    A(f"v_sub_u32 v10, 2047, v10")
    A("s_waitcnt vmcnt(0)")
    for e in range(8):
        A(f"v_ashrrev_i32 v11, 31, v{K+e}")
        A(f"v_or_b32 v11, 0x80000000, v11")
        A(f"v_xor_b32 v{K+e}, v{K+e}, v11")
        A(f"v_and_b32 v{K+e}, 0xffff0000, v{K+e}")
        A(f"v_subrev_u32 v11, {e}, v10")
        A(f"v_or_b32 v{K+e}, v{K+e}, v11")
    A(f"s_lshl_b32 s{sTmp}, s{sW}, 2")
    A(f"v_mov_b32 v13, s{sTmp}")
    A("v_mov_b32 v14, 0")
    for rnd, sk in enumerate((sI0, sI1)):
        A(f"v_max3_u32 v12, v{K}, v{K+1}, v{K+2}")
        A(f"v_max3_u32 v12, v12, v{K+3}, v{K+4}")
        A(f"v_max3_u32 v12, v12, v{K+5}, v{K+6}")
        A(f"v_max_u32 v12, v12, v{K+7}")
        allreduce(A, "v_max_u32", [12], [11])
        A(f"ds_write_b32 v13, v12 offset:{16*rnd}")
        A("s_waitcnt lgkmcnt(0)")
        A("s_barrier")
        A(f"ds_read_b128 {v(Tm,4)}, v14 offset:{16*rnd}")
        A("s_waitcnt lgkmcnt(0)")
        A(f"v_max3_u32 v12, v{Tm}, v{Tm+1}, v{Tm+2}")
        A(f"v_max_u32 v12, v12, v{Tm+3}")
        A(f"v_readfirstlane_b32 s{sk}, v12")
        if rnd == 0:
            for e in range(8):
                A(f"v_cmp_ne_u32 vcc, v12, v{K+e}")
                A(f"v_cndmask_b32 v{K+e}, 0, v{K+e}, vcc")
    for sk in (sI0, sI1):
        A(f"s_and_b32 s{sk}, s{sk}, 0x7ff")
        A(f"s_sub_u32 s{sk}, 2047, s{sk}")
    X0, X1, R0 = 16, 17, 18
    for sk, xr, rr in ((sI0, X0, R0), (sI1, X1, R0+1)):
        A(f"s_lshl_b32 s{sTmp}, s{sk}, 10")
        A(f"s_add_u32 s{sTmp}, s{sTmp}, {XN}")
        A(f"buffer_load_dword v{xr}, v{vT4}, {s(rWS,4)}, s{sTmp} offen sc1")
        A(f"s_lshl_b32 s{sTmp}, s{sk}, 2")
        A(f"s_add_u32 s{sTmp}, s{sTmp}, {RL}")
        A(f"buffer_load_dword v{rr}, v14, {s(rWS,4)}, s{sTmp} offen sc1")
    AC = 24
    for i in range(8): A(f"v_mov_b32 v{AC+i}, 0")
    A("s_waitcnt vmcnt(0)")
    U = 32
    for p in range(64):
        sx = 60 + 6*(p & 1)
        A(f"v_readlane_b32 s{sx}, v{X0}, {p}")
        A(f"v_readlane_b32 s{sx+1}, v{X1}, {p}")
        for u in range(2): A(f"v_accvgpr_read_b32 v{U+4+u}, a{2*p+u}")
        A(f"s_lshl_b32 s{sx+2}, s{sx}, 16"); A(f"s_lshl_b32 s{sx+3}, s{sx+1}, 16")
        A(f"s_and_b32 s{sx+4}, s{sx}, 0xffff0000"); A(f"s_and_b32 s{sx+5}, s{sx+1}, 0xffff0000")
        for u in range(2):
            for mat in range(2):
                unpack(A, U+2*mat, U+2*mat+1, (128+2*p+u) if mat == 0 else (U+4+u))
            for mat in range(2):
                for tok in range(2):
                    for col in range(2):
                        A(f"v_fmac_f32 v{AC+4*mat+2*tok+col}, s{sx+2+2*u+tok}, v{U+2*mat+col}")
    LR, LH = 64, 64 + 8192
    A(f"ds_write_b128 v{vT16}, {v(AC,4)} offset:{LR}")
    A(f"ds_write_b128 v{vT16}, {v(AC+4,4)} offset:{LR+4096}")
    A("s_waitcnt lgkmcnt(0)")
    A("s_barrier")
    Pp = 40
    for mat in range(2):
        for w2 in range(4): A(f"ds_read_b128 {v(Pp+16*mat+4*w2,4)}, v{vL16} offset:{LR+4096*mat+1024*w2}")
    A("s_waitcnt lgkmcnt(0)")
    for mat in range(2):
        for i in range(4):
            b = Pp + 16*mat + i
            A(f"v_add_f32 v{b}, v{b}, v{b+4}"); A(f"v_add_f32 v{b+8}, v{b+8}, v{b+12}"); A(f"v_add_f32 v{b}, v{b}, v{b+8}")
            rnd_bf(A, b)
    def sigmoid(dst, src):
        A(f"v_mul_f32 v{dst}, {f2u(-math.log2(math.e)):#x}, v{src}")
        A(f"v_exp_f32 v{dst}, v{dst}")
        A(f"v_add_f32 v{dst}, 1.0, v{dst}")
        A(f"v_rcp_f32 v{dst}, v{dst}")
    for i in range(4):
        sigmoid(Pp+4+i, Pp+i)
        A(f"v_mul_f32 v{Pp+i}, v{Pp+i}, v{Pp+4+i}")
        rnd_bf(A, Pp+i)
        A(f"v_mul_f32 v{Pp+i}, v{Pp+i}, v{Pp+16+i}")
        rnd_bf(A, Pp+i)
    A(f"ds_write_b128 v{vL16}, {v(Pp,4)} offset:{LH}")
    for i in range(4): A(f"v_mov_b32 v{AC+i}, 0")
    A("s_waitcnt lgkmcnt(0)")
    HB = 40
    for blk in range(7):
        for q in range(8): A(f"ds_read_b128 {v(HB+4*q,4)}, v14 offset:{LH+16*(8*blk+q)}")
        A("s_waitcnt lgkmcnt(0)")
        for q in range(8):
            for u in range(2):
                f = 2*(8*blk+q) + u
                A(f"v_accvgpr_read_b32 v{U+2}, a{128+f}")
                unpack(A, U, U+1, U+2)
                for tok in range(2):
                    for col in range(2):
                        A(f"v_fmac_f32 v{AC+2*tok+col}, v{HB+4*q+2*tok+u}, v{U+col}")
    A(f"s_lshl_b32 s{sTmp}, s{sM}, 12")
    A(f"s_add_u32 s{sTmp}, s{sTmp}, {MOEP}")
    A(f"buffer_store_dwordx4 {v(AC,4)}, v{vT16}, {s(rWS,4)}, s{sTmp} offen sc1")
    A("s_waitcnt vmcnt(0)")
    A("s_barrier")
    signal(A, "moe", lambda: A(f"v_mov_b32 v10, {D_MOE}\nv_mov_b32 v11, 1"), 10, 11, ret=True)
    A("s_waitcnt vmcnt(0)")
    A(f"s_cmp_lg_u32 s{sW}, 0")
    A("s_cbranch_scc1 L_m_w")
    A("s_mov_b64 exec, 1")
    A("ds_write_b32 v14, v11 offset:32")
    A("s_mov_b64 exec, -1")
    A.label("L_m_w")
    A("s_waitcnt lgkmcnt(0)")
    A("s_barrier")
    A("ds_read_b32 v11, v14 offset:32")
    A("s_waitcnt lgkmcnt(0)")
    A(f"v_readfirstlane_b32 s{sTmp}, v11")
    A(f"s_cmp_lg_u32 s{sTmp}, 15")
    A("s_cbranch_scc1 L_orole2")
    for m in range(16):
        A(f"s_mov_b32 s{sTmp}, {MOEP + 4096*m}")
        A(f"buffer_load_dwordx4 {v(40+4*m,4)}, v{vT16}, {s(rWS,4)}, s{sTmp} offen sc1")
    for tok in range(2):
        sigmoid(U+tok, R0+tok); rnd_bf(A, U+tok)
    A("s_waitcnt vmcnt(0)")
    for m in range(1, 16):
        for i in range(4): A(f"v_add_f32 v{40+i}, v{40+i}, v{40+4*m+i}")
    for tok, (sk, xr) in enumerate(((sI0, X0), (sI1, X1))):
        unpack(A, U+2, U+3, xr)
        for col in range(2):
            r = 40 + 2*tok + col
            rnd_bf(A, r)
            A(f"v_mul_f32 v{r}, v{r}, v{U+tok}")
            rnd_bf(A, r)
            A(f"v_add_f32 v{r}, v{r}, v{U+2+col}")
        A(f"v_cvt_pk_bf16_f32 v{48+tok}, v{40+2*tok}, v{41+2*tok}")
        A(f"s_lshl_b32 s{sTmp}, s{sk}, 10")
        A(f"s_add_u32 s{sTmp}, s{sTmp}, {XB}")
        A(f"buffer_store_dword v{48+tok}, v{vT4}, {s(rWS,4)}, s{sTmp} offen sc1")
    A("s_waitcnt vmcnt(0)")
    A("s_barrier")
    signal(A, "moed", lambda: A(f"v_mov_b32 v10, {D_MOEDONE}\nv_mov_b32 v11, 1"), 10, 11)
    A("s_branch L_orole2")

HEADER = open("cdna_kernels/" + NAME + ".s.ref").read().split("; Override launch geometry")[0] if __import__("os").path.exists("cdna_kernels/" + NAME + ".s.ref") else ""

def gen_full(**kw):
    A = Asm()
    WST[0] = kw.get("stamps") == 2
    for ln_ in HEADER.strip().split("\n"):
        if ln_: A.raw(ln_)
    A.raw(f"; @launch grid=(256,1,1) block=(256,1,1) lds=163840")
    A.raw('.amdgcn_target "amdgcn-amd-amdhsa--gfx950"')
    A.raw(".text")
    kernel_begin(A, NAME + "_kernel")
    A(f"""
    s_cmp_ge_u32 s2, 256
    s_cbranch_scc1 L_end0
    """)
    T.entry(A, bool(kw.get("stamps")))
    srd(A, rWS, 6, T.WS_BYTES)
    srd(A, rDBG, 4, 256)
    T.role_select(A, "L_worker", force=kw.pop("force", None))
    WPF[0] = kw.pop("wpf", False)
    OPF[0] = kw.pop("opf", True)
    SLP[:] = kw.pop("slp", [8, 2])
    OPN[0] = kw.pop("opn", 2)
    OSC[0] = kw.pop("osc", "")
    noo = kw.pop("noo", False)
    NOP2[0] = kw.pop("nop2", False)
    PRE1[0] = kw.pop("pre1", True)
    HDMA[0] = kw.pop("hdma", True)
    WPW[0] = kw.pop("wpw", 4)
    QLATE[0] = kw.pop("qlate", True)
    NQE[0] = kw.pop("nqe", 4)
    T.team(A, kvchk=True, **kw)
    A.label("L_end0")
    A("s_endpgm")
    A.label("L_worker")
    common(A)
    A(f"s_cmp_ge_u32 s{sI}, {O0}")
    A("s_cbranch_scc1 L_orole")
    A(f"s_cmp_ge_u32 s{sI}, {M0}")
    A("s_cbranch_scc1 L_mrole")
    hrole(A)
    A.label("L_orole")
    ln(A)
    A.label("L_orole2")
    if noo: A("s_branch L_end")
    orole(A)
    A.label("L_end")
    A("s_waitcnt vmcnt(0)")
    if WST[0]:
        wstamp(A, 7)
        A("s_mov_b64 exec, 1")
        for i, r in enumerate([72,73,74,75,98,99,100,101]): A(f"v_mov_b32 v{16+i}, s{r}")
        A(f"s_lshl_b32 s{sTmp}, s{sH}, 5")
        A(f"s_add_u32 s{sTmp}, s{sTmp}, {T.RES + 32768}")
        A("v_mov_b32 v0, 0")
        A(f"buffer_store_dwordx4 v[16:19], v0, {s(rWS,4)}, s{sTmp} offen")
        A(f"buffer_store_dwordx4 v[20:23], v0, {s(rWS,4)}, s{sTmp} offen offset:16")
        A("s_waitcnt vmcnt(0)")
    A("s_endpgm")
    A.label("L_mrole")
    mrole(A)
    A.raw('.section .rodata,"a"')
    A.raw(descriptor(NAME + "_kernel", 512, 102, 256))
    T.STAMP_NAMES = A.stamp_names
    return A.text()

if __name__ == "__main__":
    txt = gen_full()
    open("full.s", "w").write(txt)
    open("cdna_kernels/" + NAME + ".s", "w").write(txt)
```

```python
from asmlib import *

H2 = 0
H1 = 1 << 20
RES = (1 << 20) + (256 << 10)
XN = 2 << 20
KV = 16 << 20
QX = 50 << 20
MEMG = (1 << 20) + (512 << 10)
WS_BYTES = 256 << 20

L_MEM = 0; L_KX = 8192; L_VX = 16384; L_Q = 24576; L_K = 24576 + 288; L_O = 29184; L_ST = 31744; L_W = 32768
RS = 576; RSO = 320

rWS, rDBG, rW = 8, 12, 16
sX, sW, sT, sH = 20, 21, 22, 23
sStep, sTmp, sG, sTmp2 = 24, 25, 26, 27
sO1, sO1b, sO2, sO2b = 28, 29, 30, 31
sRd2, sPubO, sRst2, sRst1 = 32, 33, 34, 35
sKV, sMG, sC, sPerm0, sPerm1 = 36, 37, 38, 39, 40
sB = 44
sRetA, sRetB, sRet2 = 48, 49, 50
sMK, sMV, sRd, sPF = 41, 42, 100, 101
sSt = 56
SPIN = 400000
D_WIN, D_INIT, D_LN, D_MOE, D_MOEDONE = 4, 36, 68, 100, 132
CNT = (1 << 20) + (128 << 10)
C_KV, C_O = 0, 128
FLG = (1 << 20) + (64 << 10)
sFl, sFlS, sK = 62, 63, 64
sCm = 66
sRdy = 51

vIdx, vL16, vT16, vT16b, vT16c, vM1, vM2, vM3, vSt2, vQW, vQR, vOW, vOR = range(1, 14)
vT0, vT1, vPD = 0, 14, 15
MEMA = 16
ACCA = 48
ACCB = 56
STG = 64
POOL = 80
ACCV = 112
NEG = 120
S = MEMA + 4
VMR = 124

LDSF = [("q",1,0),("k",0,0),
        ("q",0,4),("k",1,4),
        ("k",0,2),("q",1,3)]
LDSF += [("o", i >> 1, i & 1) for i in (0, 1, 2, 4, 6, 8, 10, 12, 13, 15, 14)]
ALLF = [(m,t,sl) for m in "qkv" for sl in range(8) for t in range(2)] + [("o",t,k) for k in range(2) for t in range(8)]
HOME = {}
_n = 0
for f in ALLF:
    if f in LDSF: HOME[f] = ("l", LDSF.index(f))
    else:
        HOME[f] = ("a", 8*_n) if _n < 32 else ("v", 128 + 8*(_n-32)); _n += 1
assert _n == 47
KST = 248

def lds_frag_addr(idx, part):
    off = L_W + (2*idx + part) * 4096
    if idx == 16: off = L_VX + part * 4096
    if off < 65536: return vT16, off
    if off < 131072: return vT16b, off - 65536
    return vT16c, off - 131072

class Cnt:
    def __init__(self, A, name, cap): self.A, self.name, self.cap, self.n = A, name, cap, 0
    def issue(self): self.n += 1; return self.n
    def wait(self, tok):
        k = self.n - tok
        if k <= self.cap: self.A(f"s_waitcnt {self.name}({k})")
        else: self.A(f"s_waitcnt {self.name}({self.cap})")

def role_select(A, lab_worker, prefetch=False, force=None):
    if prefetch:
        A(f"""
        s_cmp_lt_u32 s{sW}, 2
        s_cbranch_scc1 L_nopf
        s_lshr_b32 s{sTmp}, s2, 6
        s_lshl_b32 s{sTmp}, s{sTmp}, 3
        s_add_u32 s{sTmp}, s{sTmp}, 16
        s_load_dwordx2 s[80:81], s[0:1], s{sTmp}
        s_and_b32 s{sTmp}, s2, 63
        s_lshl_b32 s{sTmp}, s{sTmp}, 16
        v_and_b32 v3, 127, v0
        v_lshlrev_b32 v3, 4, v3
        s_waitcnt lgkmcnt(0)
        """)
        srd(A, rW, 80, 4 << 20)
        for i in range(32):
            if i % 2 == 0 and i: A(f"s_add_u32 s{sTmp}, s{sTmp}, 4096")
            A(f"buffer_load_dwordx4 v[{128+4*(i&7)}:{131+4*(i&7)}], v3, {s(rW,4)}, s{sTmp} offen offset:{2048*(i&1)}")
        A.label("L_nopf")
    A(f"""
    s_cmp_lg_u32 s{sW}, 0
    s_cbranch_scc1 L_role_wait
    s_mov_b64 exec, 1
    v_mov_b32 v3, 1
    s_lshl_b32 s{sTmp}, s{sX}, 5
    v_mov_b32 v4, s{sTmp}
    buffer_atomic_add v3, v4, {s(rDBG,4)}, 0 offen sc0
    s_add_u32 s{sTmp}, s{sX}, 1
    v_mov_b32 v5, 0
    s_mov_b32 s{sG}, 0
    s_cmp_ge_u32 s2, 64
    s_cbranch_scc1 L_poll_win
    {f"s_cmp_eq_u32 s{sX}, {force}" if force is not None else f"s_and_b32 s{sStep}, s{sX}, 3"}
    s_cbranch_scc1 L_bid
    L_poll_win:
    buffer_load_dword v6, v5, {s(rDBG,4)}, 0 offen offset:{D_WIN} sc1
    s_waitcnt vmcnt(0)
    v_readfirstlane_b32 s{sStep}, v6
    s_cmp_lg_u32 s{sStep}, 0
    s_cbranch_scc1 L_have_win
    s_add_u32 s{sG}, s{sG}, 1
    s_cmp_lt_u32 s{sG}, {12 if force is None else 1000}
    s_cbranch_scc1 L_poll_win
    L_bid:
    v_mov_b32 v6, s{sTmp}
    v_mov_b32 v7, 0
    buffer_atomic_cmpswap v[6:7], v5, {s(rDBG,4)}, 0 offen offset:{D_WIN} sc0
    s_waitcnt vmcnt(0)
    v_readfirstlane_b32 s{sStep}, v6
    s_cmp_eq_u32 s{sStep}, 0
    s_cselect_b32 s{sStep}, s{sTmp}, s{sStep}
    L_have_win:
    v_readfirstlane_b32 s{sT}, v3
    s_mov_b32 s{sH}, 0xffff
    s_cmp_gt_u32 s{sT}, 31
    s_cbranch_scc1 L_role_done
    s_sub_u32 s{sStep}, s{sStep}, 1
    s_xor_b32 s{sStep}, s{sStep}, s{sX}
    s_sub_u32 s{sH}, s{sStep}, 3
    s_add_u32 s{sTmp}, s{sStep}, 4
    s_cmp_ge_u32 s{sStep}, 4
    s_cselect_b32 s{sH}, s{sH}, s{sTmp}
    s_cmp_eq_u32 s{sStep}, 0
    s_cselect_b32 s{sH}, 0, s{sH}
    s_lshl_b32 s{sH}, s{sH}, 5
    s_add_u32 s{sH}, s{sH}, s{sT}
    L_role_done:
    v_mov_b32 v3, s{sH}
    v_mov_b32 v4, 0
    ds_write_b32 v4, v3
    s_mov_b64 exec, -1
    L_role_wait:
    s_waitcnt lgkmcnt(0)
    s_barrier
    v_mov_b32 v4, 0
    ds_read_b32 v3, v4
    s_waitcnt lgkmcnt(0)
    v_readfirstlane_b32 s{sH}, v3
    s_barrier
    s_cmp_gt_u32 s{sH}, 31
    s_cbranch_scc1 {lab_worker}
    """)

def team(A, nsteps=64, stamps=False, ctl=6, z0=12, dA=0, gapB=6, nsets=2, dR=(24,4,16,12), n2=2, dAA=0, bar1=1, bar2=1, pfd=0, usepk=True, rt=False, off="pf", cs=((3,6),(5,6)), kvchk=False, trace=False, gapAB=2, na=2, d3r=2, joint=True, bonly=False, fsl=(), fnop=3, cpre=0, fill_at=4, kfasync=True, lead=0, ks=28, linw=0, dmaw=True, wo_at=(1, 2, 3, 5), ea=False, eb=6, dE=16, dE2=8, hseq="Az.B_A.BRSr", g2=0, ob64=True, one=True, nzo=2, shift=None, kxe=False, kep=0, vpre=7):
    nst = [0]
    names = []
    def stamp(name=""):
        if stamps != 1: return
        k = nst[0]; nst[0] += 1
        assert k < 23
        names.append(name)
        A(f"s_mem{'real' if rt else ''}time s[{52+2*k}:{53+2*k}]")
    A.stamp_names = names
    if stamps == 2: A("s_memrealtime s[92:93]")
    vC, vG, vLn = 16, 17, 18
    x0, x1, x2, x3 = 19, 20, 21, 22
    vWq, vWq2, vWv, vWv2, vWo = 23, 24, 25, 26, 27
    vPubT = 28
    A(f"""
    {"s_mov_b32 s90, s3" if stamps == 2 else ""}
    v_and_b32 v{vLn}, 63, v0
    v_and_b32 v{vC}, 15, v0
    v_lshrrev_b32 v{vG}, 4, v{vLn}
    v_lshlrev_b32 v{vL16}, 4, v{vLn}
    v_lshlrev_b32 v{vT16}, 4, v0
    v_add_u32 v{vT16b}, 0x10000, v{vT16}
    v_add_u32 v{vT16c}, 0x20000, v{vT16}
    v_xor_b32 v{vM1}, 1024, v{vT16}
    v_xor_b32 v{vM2}, 2048, v{vT16}
    v_xor_b32 v{vM3}, 3072, v{vT16}
    v_and_b32 v{x0}, 2, v{vC}
    v_cmp_ne_u32 vcc, 0, v{x0}
    v_mov_b32 v{x1}, 0x4444
    v_mov_b32 v{x2}, 0xeeee
    v_cndmask_b32 v{vIdx}, v{x1}, v{x2}, vcc
    ; row(c) = 2*(c>>2) + (c&1)
    v_lshrrev_b32 v{x1}, 2, v{vC}
    v_and_b32 v{x2}, 1, v{vC}
    v_lshl_add_u32 v{x1}, v{x1}, 1, v{x2}
    v_mul_u32_u24 v{x3}, {RSO}, v{x1}
    v_mul_u32_u24 v{x1}, {RS}, v{x1}
    v_lshl_add_u32 v{vQR}, v{vG}, 4, v{x1}
    s_lshl_b32 s{sTmp}, s{sW}, 6
    v_lshl_add_u32 v{vOW}, v{vG}, 4, v{x3}
    v_add_u32 v{vOW}, s{sTmp}, v{vOW}
    {f"v_lshl_add_u32 v{vOW}, v{x0}, 2, v{vOW}" if ob64 else ""}
    v_lshl_add_u32 v{vOR}, v{vG}, 5, v{x3}
    v_lshl_add_u32 v{vOR}, v{x0}, 3, v{vOR}
    v_mul_u32_u24 v{x1}, {2*RS}, v{vG}
    v_lshl_add_u32 v{x1}, v{vC}, 2, v{x1}
    v_add_u32 v{vQW}, s{sTmp}, v{x1}
    v_add_u32 v{vQW}, {L_Q}, v{vQW}
    ; vSt2 = (8w + c>>1)*4096 + (g>>1)*2048 + h*64 + (2(g&1) + (c&1))*16
    v_lshrrev_b32 v{x1}, 1, v{vC}
    s_lshl_b32 s{sTmp}, s{sW}, 3
    v_add_u32 v{x1}, s{sTmp}, v{x1}
    v_lshlrev_b32 v{x1}, 12, v{x1}
    v_lshrrev_b32 v{x3}, 1, v{vG}
    v_lshl_add_u32 v{x1}, v{x3}, 11, v{x1}
    v_and_b32 v{x0}, 1, v{vG}
    v_lshl_add_u32 v{x1}, v{x0}, 5, v{x1}
    v_lshl_add_u32 v{x1}, v{x2}, 4, v{x1}
    s_lshl_b32 s{sTmp}, s{sH}, 6
    v_add_u32 v{vSt2}, s{sTmp}, v{x1}
    v_bfe_u32 v{x1}, v{vC}, 1, 1
    s_and_b32 s{sTmp}, s{sW}, 2
    v_add_u32 v{x1}, s{sTmp}, v{x1}
    v_lshl_add_u32 v30, v{x1}, 2, v{x3}
    v_lshlrev_b32 v30, 4, v30
    v_lshl_add_u32 v30, v{x2}, 3, v30
    v_lshl_add_u32 v30, v{x0}, 2, v30
    s_lshr_b32 s{sTmp}, s{sH}, 1
    s_lshl_b32 s{sTmp}, s{sTmp}, 8
    s_and_b32 s{sTmp2}, s{sH}, 1
    s_lshl_b32 s{sTmp2}, s{sTmp2}, 5
    s_add_u32 s{sTmp}, s{sTmp}, s{sTmp2}
    v_add_u32 v30, s{sTmp}, v30
    v_cmp_gt_u32 vcc, 4, v{vC}
    v_mov_b32 v{vPubT}, 0x7f000000
    v_cndmask_b32 v{vPubT}, v{vPubT}, v30, vcc
    v_mov_b32 v{vT1}, v{vPubT}
    v_lshl_add_u32 v{x1}, v{x1}, 1, v{x3}
    v_lshlrev_b32 v{x1}, 10, v{x1}
    v_lshl_add_u32 v{x1}, v{x2}, 4, v{x1}
    v_lshl_add_u32 v{x1}, v{x0}, 2, v{x1}
    s_lshl_b32 s{sTmp}, s{sH}, 5
    v_add_u32 v29, s{sTmp}, v{x1}
    v_lshlrev_b32 v{x2}, 4, v{x2}
    v_mov_b32 v{x3}, 0x3f80
    v_lshlrev_b32 v{x3}, v{x2}, v{x3}
    v_lshrrev_b32 v{x2}, 2, v{vC}
    """)
    for r in range(4):
        A(f"v_cmp_eq_u32 vcc, {r}, v{x2}")
        A(f"v_cndmask_b32 v{32+r}, 0, v{x3}, vcc")
    A(f"ds_write_b128 v{vL16}, v[32:35] offset:{L_ST}")
    A(f"""
    v_lshrrev_b32 v{x0}, 1, v{vG}
    v_and_b32 v{x1}, 1, v{vG}
    v_lshlrev_b32 v{x2}, 18, v{x0}
    v_lshl_add_u32 v{x2}, v{x1}, 16, v{x2}
    s_lshl_b32 s{sTmp}, s{sH}, 8
    s_lshl_b32 s{sTmp2}, s{sW}, 6
    s_add_u32 s{sTmp}, s{sTmp}, s{sTmp2}
    v_add_u32 v{x2}, s{sTmp}, v{x2}
    v_lshl_add_u32 v{vWq}, v{vC}, 2, v{x2}
    v_add_u32 v{vWq2}, 0x2000, v{vWq}
    ; Wo: (16(g>>1) + 4(g&1))*1024 + h*131072 + 256w + 16c
    v_lshlrev_b32 v{x2}, 12, v{x1}
    v_lshl_add_u32 v{x2}, v{x0}, 14, v{x2}
    v_lshl_add_u32 v{x2}, v{vC}, 4, v{x2}
    s_lshl_b32 s{sTmp}, s{sH}, 17
    s_lshl_b32 s{sTmp2}, s{sW}, 8
    s_add_u32 s{sTmp}, s{sTmp}, s{sTmp2}
    v_add_u32 v{vWo}, s{sTmp}, v{x2}
    s_mov_b32 s{sPerm0}, 0x05040100
    s_mov_b32 s{sPerm1}, 0x07060302
    v_lshrrev_b32 v{vWv}, 4, v0
    v_lshlrev_b32 v{vWv}, 13, v{vWv}
    v_lshl_add_u32 v{vWv}, v{vC}, 4, v{vWv}
    s_lshl_b32 s{sTmp}, s{sH}, 8
    v_add_u32 v{vWv}, s{sTmp}, v{vWv}
    """)
    for i in range(4):
        A(f"s_xor_b32 s{sB+i}, s{sW}, {i}")
        A(f"s_lshl_b32 s{sB+i}, s{sB+i}, 20")
    NG_ = 112
    for i in range(4): A(f"v_mov_b32 v{NG_+i}, -1")
    A(f"s_lshl_b32 s{sRst2}, s{sH}, 12")
    A(f"s_and_b32 s{sPubO}, s{sW}, 1")
    A(f"s_lshl_b32 s{sTmp2}, s{sPubO}, 3")
    A(f"s_lshl_b32 s{sPubO}, s{sPubO}, 12")
    A(f"s_add_u32 s{sMG}, s{sPubO}, {MEMG}")
    A(f"s_add_u32 s{sPubO}, s{sPubO}, {H1}")
    A("s_waitcnt lgkmcnt(0)")
    srd(A, rW, 78, 8192)
    A(f"buffer_load_dword v{vPD}, v29, {s(rW,4)}, s{sTmp2} offen")
    def fills():
        for sl in range(2):
            for x in range(2):
                A(f"s_add_u32 s{sTmp}, s{sRst2}, {H2 + sl*(256<<10) + x*(128<<10)}")
                A(f"buffer_store_dwordx4 {v(NG_,4)}, v{vT16}, {s(rWS,4)}, s{sTmp} offen"); vm.issue()
        A(f"s_lshl_b32 s{sTmp2}, s{sH}, 14")
        for i in range(4):
            A(f"s_add_u32 s{sTmp}, s{sTmp2}, {MEMG + i*4096}")
            A(f"buffer_store_dwordx4 {v(NG_,4)}, v{vT16}, {s(rWS,4)}, s{sTmp} offen sc1"); vm.issue()
        for sl in range(1, 4):
            A(f"s_add_u32 s{sTmp}, s{sPubO}, {sl*8192}")
            A(f"buffer_store_dword v{NG_}, v{vPubT}, {s(rWS,4)}, s{sTmp} offen"); vm.issue()
        A(f"v_min_u32 v{vPD}, 0xfffffffe, v{vPD}")
        A(f"buffer_store_dword v{vPD}, v{vPubT}, {s(rWS,4)}, s{sPubO} offen"); vm.issue()
        if not fsl: return
        A(f"s_lshr_b32 s{sFl}, s{sW}, 1")
        A(f"s_mul_i32 s{sFl}, s{sFl}, 1280")
        A(f"s_add_u32 s{sFl}, s{sFl}, {FLG}")
        A(f"s_bitcmp1_b32 s{sW}, 0")
        A(f"s_cselect_b32 s{sFl}, s{sFl}, 0x7f000000")
        A(f"s_add_u32 s{sFlS}, s{sH}, {FLG}")
        A(f"s_cmp_eq_u32 s{sW}, 0")
        A(f"s_cselect_b32 s{sFlS}, s{sFlS}, 0x7f000000")
        A(f"v_lshlrev_b32 v31, 4, v{vL16}")
        A("s_mov_b64 exec, 0x3ff")
        A(f"buffer_store_byte v{NG_}, v31, {s(rWS,4)}, s{sFlS} offen"); vm.issue()
        A("s_mov_b64 exec, -1")
    def arrive():
        A("s_barrier")
        A(f"""
        s_cmp_lg_u32 s{sW}, 0
        s_cbranch_scc1 L_t_arrived
        s_mov_b64 exec, 1
        v_mov_b32 v{NG_}, 1
        v_mov_b32 v{NG_+1}, 0
        buffer_atomic_add v{NG_}, v{NG_+1}, {s(rDBG,4)}, 0 offen offset:{D_INIT}
        s_mov_b64 exec, -1
        L_t_arrived:
        """)
    TB = [32, 48, 64, 80]
    PT = 96
    vm = Cnt(A, "vmcnt", 63)
    batches = []
    ob = [("o", k, bp) for k in range(2) for bp in range(4)]
    for mi, m in enumerate("qkv"):
        for sl in range(8):
            batches.append((m, sl))
            if (8*mi + sl) % 3 == 0: batches.append(ob.pop(0))
    TB = [32, 48, 64, 80, 116 - 4]
    rWo = 52
    srd(A, rWo, 86, 4 << 20)
    def issue(bi):
        b = batches[bi]; T = TB[bi % 4]
        if b[0] != "o":
            m, sl = b
            if sl == 0: srd(A, rW, {"q": 80, "k": 82, "v": 84}[m], 4 << 20)
            va, vb = vWq, vWq2
            if linw == 1:
                for j in range(4):
                    A(f"s_lshl_b32 s{sTmp}, s{sH}, 17")
                    A(f"s_add_u32 s{sTmp}, s{sTmp}, {sl*16384 + j*4096}")
                    A(f"buffer_load_dwordx4 {v(T+4*j,4)}, v{vT16}, {s(rW,4)}, s{sTmp} offen"); tok = vm.issue()
                return tok
            if linw == 2:
                for j in range(4):
                    A(f"s_mov_b32 s{sTmp}, {(sl*64 + j*16)*8192}")
                    A(f"buffer_load_dwordx4 {v(T+4*j,4)}, v{vWv}, {s(rW,4)}, s{sTmp} offen"); tok = vm.issue()
                return tok
            for be in range(8):
                row = 64*(be >> 2) + 16*(be & 1) + 4*(sl >> 2) + 2*((be >> 1) & 1)
                A(f"s_add_u32 s{sTmp}, s{sB+(sl&3)}, {row*8192}")
                A(f"buffer_load_dword v{T+2*be}, v{va}, {s(rW,4)}, s{sTmp} offen"); vm.issue()
                A(f"buffer_load_dword v{T+2*be+1}, v{vb}, {s(rW,4)}, s{sTmp} offen"); tok = vm.issue()
        else:
            _, k, bp = b
            for j in range(2):
                be = 2*bp + j
                row = 64*k + 32*(be >> 2) + 8*(be & 1) + 2*((be >> 1) & 1)
                A(f"s_mov_b32 s{sTmp}, {row*1024}")
                A(f"buffer_load_dwordx4 {v(T+8*j,4)}, v{vWo}, {s(rWo,4)}, s{sTmp} offen"); vm.issue()
                A(f"buffer_load_dwordx4 {v(T+8*j+4,4)}, v{vWo}, {s(rWo,4)}, s{sTmp} offen offset:1024"); tok = vm.issue()
        return tok
    def put(f, be, lo, hi, sel, tmp):
        kind, base = HOME[f]
        if kind == "v":
            A(f"v_perm_b32 v{base+be}, v{hi}, v{lo}, s{sel}")
        else:
            A(f"v_perm_b32 v{tmp}, v{hi}, v{lo}, s{sel}")
            if kind == "a": A(f"v_accvgpr_write_b32 a{base+be}, v{tmp}")
    def consume(bi):
        b = batches[bi]; T = TB[bi % 4]
        if b[0] != "o":
            m, sl = b
            for t in range(2):
                f = (m, t, sl)
                for be in range(8):
                    put(f, be, T+2*be, T+2*be+1, sPerm1 if t else sPerm0, PT + 8*t + be)
                if HOME[f][0] == "l":
                    for p in range(2):
                        ar, off = lds_frag_addr(HOME[f][1], p)
                        A(f"ds_write_b128 v{ar}, {v(PT+8*t+4*p,4)} offset:{off}")
            A("s_waitcnt lgkmcnt(0)")
        else:
            _, k, bp = b
            for t in range(8):
                f = ("o", t, k)
                for j in range(2):
                    be = 2*bp + j
                    put(f, be, T+8*j+(t >> 1), T+8*j+4+(t >> 1), sPerm1 if t & 1 else sPerm0, PT + 2*t + j)
                if HOME[f][0] == "l":
                    ar, off = lds_frag_addr(HOME[f][1], bp >> 1)
                    A(f"ds_write_b64 v{ar}, {v(PT+2*t,2)} offset:{off + 8*(bp & 1)}")
            A("s_waitcnt lgkmcnt(0)")
    toks = {}
    DEPTH = 4
    def flags1():
        A("v_mov_b32 v30, 0")
        A(f"buffer_load_dword v29, v30, {s(rDBG,4)}, 0 offen offset:{D_LN} sc1"); vm.issue()
        A(f"buffer_load_dword v31, v30, {s(rDBG,4)}, 0 offen offset:{D_INIT} sc1"); vm.issue()
    def flags2():
        A("v_readfirstlane_b32 s60, v29")
        A("v_readfirstlane_b32 s61, v31")
        A(f"v_lshlrev_b32 v30, 4, v{vL16}")
        A(f"s_mov_b32 s{sTmp}, {CNT + C_KV}")
        A(f"buffer_load_dword v29, v30, {s(rWS,4)}, s{sTmp} offen sc1"); vm.issue()
    if not dmaw:
        for bi in range(len(batches) + DEPTH):
            if bi >= DEPTH:
                vm.wait(toks[bi - DEPTH]); consume(bi - DEPTH)
            if bi == len(batches) - 5: flags1()
            if bi == len(batches) - 1: flags2()
            if bi == fill_at: fills()
            if bi == fill_at + DEPTH: arrive()
            if bi < len(batches): toks[bi] = issue(bi)
    else:
        STGB = L_W + 65536
        RA = 116
        RT = 120
        sM0w = 56
        A(f"""
        v_lshlrev_b32 v{vWv}, 13, v{vG}
        v_lshl_add_u32 v{vWv}, v{vC}, 4, v{vWv}
        s_lshl_b32 s{sTmp}, s{sH}, 8
        s_lshl_b32 s{sTmp2}, s{sW}, 20
        s_add_u32 s{sTmp}, s{sTmp}, s{sTmp2}
        v_add_u32 v{vWv}, s{sTmp}, v{vWv}
        v_lshlrev_b32 v{x0}, 10, v{vG}
        v_lshl_add_u32 v{x0}, v{vC}, 2, v{x0}
        s_lshl_b32 s{sTmp}, s{sW}, 6
        s_add_u32 s{sTmp}, s{sTmp}, {STGB}
        v_add_u32 v{x0}, s{sTmp}, v{x0}
        s_lshl_b32 s{sM0w}, s{sW}, 12
        s_add_u32 s{sM0w}, s{sM0w}, {STGB}
        """)
        for i in range(4):
            A(f"s_lshr_b32 s{sTmp}, s{sB+i}, 8")
            A(f"v_add_u32 v{RA+i}, s{sTmp}, v{x0}")
        chunks = [(m, b2, x, b0) for m in "qkv" for x in range(2) for b2 in range(2) for b0 in range(2)]
        def cissue(c):
            m, b2, x, b0 = chunks[c]
            if c % 8 == 0: srd(A, rW, {"q": 80, "k": 82, "v": 84}[m], 4 << 20)
            for g in range(4):
                A(f"s_add_u32 m0, s{sM0w}, {(c % 4)*16384 + g*1024}")
                A(f"s_mov_b32 s{sTmp}, {(64*b2 + 16*b0 + 4*x + 32*(g >> 1) + 8*(g & 1))*8192}")
                A(f"buffer_load_dwordx4 v{vWv}, {s(rW,4)}, s{sTmp} offen lds"); tok = vm.issue()
            return tok
        def cconsume(c):
            m, b2, x, b0 = chunks[c]
            for sp in range(4):
                for b1 in range(2):
                    dst = (PT if sp < 2 else RT - 8) + 4*sp + 2*b1
                    A(f"ds_read2st64_b32 {v(dst,2)}, v{RA+sp} offset0:{(c % 4)*64 + 2*b1} offset1:{(c % 4)*64 + 2*b1 + 1}")
            for sp in range(4):
                A(f"s_waitcnt lgkmcnt({6-2*sp})") if not wrote[0] else A("s_waitcnt lgkmcnt(0)")
                for b1 in range(2):
                    lo = (PT if sp < 2 else RT - 8) + 4*sp + 2*b1
                    be = 4*b2 + 2*b1 + b0
                    for t in range(2):
                        f = (m, t, 4*x + sp); tmp = PT + 8 + 2*b1 + t + 4*(sp & 1)
                        put(f, be, lo, lo+1, sPerm1 if t else sPerm0, tmp)
                        if HOME[f][0] == "l":
                            ar, off = lds_frag_addr(HOME[f][1], be >> 2)
                            A(f"ds_write_b32 v{ar}, v{tmp} offset:{off + 4*(be & 3)}"); wrote[0] = True
            wrote[0] = False
        wrote = [False]
        obs = [i for i, b in enumerate(batches) if b[0] == "o"]
        batches[:] = [batches[i] for i in obs]
        ct = {}
        for c in range(3): ct[c] = cissue(c)
        for c in range(24):
            vm.wait(ct[c])
            A("s_waitcnt lgkmcnt(0)")
            A("s_barrier")
            if c == 1: fills()
            if c == 4: arrive()
            if c + 3 < 24: ct[c+3] = cissue(c + 3)
            if c in wo_at: toks[wo_at.index(c)] = issue(wo_at.index(c))
            if c == 23: flags1()
            cconsume(c)
        A("s_waitcnt lgkmcnt(0)")
        A("s_barrier")
        for bi in range(8):
            vm.wait(toks[bi]); consume(bi)
            if bi == 4: flags2()
            if bi + 4 < 8: toks[bi+4] = issue(bi + 4)
        A("s_waitcnt vmcnt(0)")
    if stamps == 2: A("s_memrealtime s[94:95]")
    A(f"s_lshl_b32 s{sKV}, s{sH}, 14")
    A(f"s_lshl_b32 s{sTmp}, s{sW}, 11")
    A(f"s_add_u32 s{sKV}, s{sKV}, s{sTmp}")
    A(f"s_add_u32 s{sKV}, s{sKV}, {KV}")
    A(f"s_add_u32 s{sMK}, s{sTmp}, {L_KX}")
    A(f"s_add_u32 s{sMV}, s{sTmp}, {L_VX}")
    A(f"s_lshl_b32 s{sMV+1}, s{sH}, 14")
    A(f"s_add_u32 s{sMV+1}, s{sMV+1}, {KV + 8192}")
    A(f"s_add_u32 s{sPF}, s{sTmp}, {pfd*32*16384}")
    def dma(which, par, j):
        if j == 0:
            A(f"s_mov_b32 m0, s{sMK if which == 'k' else sMV + par}")
            if which == "v": A(f"s_add_u32 s{sTmp}, s{sKV}, 8192")
        A(f"buffer_load_dwordx4 v{vL16}, {s(rWS,4)}, s{sKV if which == 'k' else sTmp} offen offset:{1024*j} sc1 lds")
    def kv_wait(tag, ta, tb, need):
        A(f"""
        L_kvw{tag}:
        v_lshlrev_b32 v{ta}, 4, v{vL16}
        s_mov_b32 s{sTmp}, {CNT + C_KV}
        buffer_load_dword v{tb}, v{ta}, {s(rWS,4)}, s{sTmp} offen sc1
        s_waitcnt vmcnt(0)
        v_cmp_eq_u32 vcc, 32, v{tb}
        s_ff0_i32_b64 s{sRdy}, vcc
        s_add_u32 s{sG}, s{sG}, 1
        s_cmp_gt_u32 s{sG}, {SPIN}
        s_cbranch_scc1 L_team_end
        s_cmp_gt_u32 s{sRdy}, {need}
        s_cbranch_scc0 L_kvw{tag}
        """)
    A(f"s_mov_b32 s{sG}, 0")
    if kvchk:
        A(f"""
        v_cmp_eq_u32 vcc, 32, v29
        s_ff0_i32_b64 s{sRdy}, vcc
        s_cmp_ge_u32 s60, 64
        s_cselect_b32 s{sRdy}, s{sRdy}, 0
        s_cmp_lg_u32 s{sRdy}, 0
        s_cbranch_scc1 L_kv0ok
        v_mov_b32 v41, 0
        L_lnw:
        buffer_load_dword v40, v41, {s(rDBG,4)}, 0 offen offset:{D_LN} sc1
        s_waitcnt vmcnt(0)
        v_readfirstlane_b32 s{sTmp2}, v40
        s_add_u32 s{sG}, s{sG}, 1
        s_cmp_gt_u32 s{sG}, {SPIN}
        s_cbranch_scc1 L_team_end
        s_cmp_lt_u32 s{sTmp2}, 64
        s_cbranch_scc1 L_lnw
        """)
        kv_wait("0", 40, 41, "0")
        A.label("L_kv0ok")
    for j in range(2): A(f"buffer_load_dwordx4 {v(KST+4*j,4)}, v{vL16}, {s(rWS,4)}, s{sKV} offen offset:{1024*j} sc1")
    A(f"s_add_u32 s{sKV}, s{sKV}, {32*16384}")
    A(f"""
    s_cmp_ge_u32 s61, 32
    s_cbranch_scc1 L_init_wait
    s_cmp_lg_u32 s{sW}, 0
    s_cbranch_scc1 L_init_wait
    v_mov_b32 v41, 0
    s_mov_b32 s{sG}, 0
    L_init_poll:
    buffer_load_dword v40, v41, {s(rDBG,4)}, 0 offen offset:{D_INIT} sc1
    s_waitcnt vmcnt(0)
    v_readfirstlane_b32 s{sTmp}, v40
    s_add_u32 s{sG}, s{sG}, 1
    s_cmp_gt_u32 s{sG}, {SPIN}
    s_cbranch_scc1 L_init_wait
    s_cmp_lt_u32 s{sTmp}, 32
    s_cbranch_scc1 L_init_poll
    L_init_wait:
    s_waitcnt lgkmcnt(0)
    s_barrier
    s_mov_b32 s{sStep}, 0
    s_mov_b32 s{sG}, 0
    s_mov_b32 s{sRetA}, 0
    s_mov_b32 s{sRetB}, 0
    s_mov_b32 s{sRet2}, 0
    s_mov_b32 s{sC}, 0x3e0293ee
    v_mov_b32 v{VMR+1}, 0
    v_mov_b32 v{VMR+3}, 0
    s_lshl_b32 s{sRd2}, s{sW}, 17
    s_lshl_b32 s{sTmp}, s{sH}, 12
    s_add_u32 s{sRd2}, s{sRd2}, s{sTmp}
    """)
    import math, struct
    cval = struct.unpack("<I", struct.pack("<f", (128 ** -0.5) * math.log2(math.e)))[0]
    A(f"s_mov_b32 s{sC}, {cval:#x}")
    if stamps == 2:
        A("s_memrealtime s[96:97]")
        A("s_memtime s[76:77]"); A("s_waitcnt lgkmcnt(0)")
    assert not (stamps == 1 and fsl)
    if stamps == 1:
        for k in range(52, 100): A(f"s_mov_b32 s{k}, 0")

    lg = Cnt(A, "lgkmcnt", 15)
    staged = {}
    def stage(idx, reg):
        f = LDSF[idx]
        for p in range(2):
            ar, off = lds_frag_addr(idx, p)
            A(f"ds_read_b128 {v(reg+4*p,4)}, v{ar} offset:{off}"); tok = lg.issue()
        staged[f] = (reg, tok)
    waited = [0]
    def lwait(tok):
        if tok > waited[0]:
            lg.wait(tok); waited[0] = tok
    def sm(m, t, sl, acc, areg):
        f = (m, t, sl); kind, base = HOME[f]
        if kind == "l":
            reg, tok = staged.pop(f); lwait(tok); b = v(reg, 8)
        else:
            b = (a if kind == "a" else v)(base, 8)
        A(f"v_smfmac_f32_16x16x64_bf16 {v(acc,4)}, {v(areg,4)}, {b}, v{vIdx}")
    def dsr(dst, addr, off, n=4):
        A(f"ds_read_b{32*n} {v(dst,n)}, v{addr} offset:{off}"); return lg.issue()
    def dsw(addr, src, off, n=4):
        A(f"ds_write_b{32*n} v{addr}, {v(src,n)} offset:{off}"); return lg.issue()
    def chk(r, lab):
        A(f"v_max3_u32 v{vT0}, v{r}, v{r+1}, v{r+2}")
        A(f"v_max_u32 v{vT0}, v{vT0}, v{r+3}")
        A(f"v_cmp_eq_u32 vcc, -1, v{vT0}")
        A(f"s_cbranch_vccnz {lab}")
    qa = lambda t: ACCA + 4*t
    ka = lambda t: ACCB + 4*t
    ma = lambda sl: MEMA + 4*sl

    QB = POOL; FR = POOL + 16
    va = lambda t: ACCV + 4*t
    WA = MEMA
    wa = lambda t: WA + 4*t
    R2 = ma(5); SEL = ma(7); PUB = vT1; DD = ma(3)
    def stage1(idx, reg, p):
        f = LDSF[idx]
        ar, off = lds_frag_addr(idx, p)
        A(f"ds_read_b128 {v(reg+4*p,4)}, v{ar} offset:{off}"); tok = lg.issue()
        if p == 1: staged[f] = (reg, tok)
    G = lambda idx, reg, p: (lambda: stage1(idx, reg, p))
    def mf(d, a_, b_, first, k16=False):
        n = 2 if k16 else 4
        A(f"v_mfma_f32_16x16x{16 if k16 else 32}_bf16 {v(d,4)}, {v(a_,n)}, {v(b_,n)}, {0 if first else v(d,4)}")
    def slots(ms, fill):
        for i, m in enumerate(ms):
            m()
            if i < len(fill):
                for f in fill[i]: f()
        for fl in fill[len(ms):]:
            for f in fl: f()
    I = lambda txt: (lambda: A(txt))
    accf = {"q": qa, "k": ka, "v": va}
    SM = lambda m, t, sl, areg=None: (lambda: sm(m, t, sl, accf[m](t), ma(sl) if areg is None else areg))
    PRE = [(0, STG), (1, STG+8), (2, FR), (3, FR+8), (5, QB+8), (4, QB)]
    def chores(lo, hi):
        for idx, reg in PRE[lo:hi]: stage(idx, reg)
    def zero_accs():
        for i in range(0, 16, 2): A(f"v_mov_b64 {v(ACCA+i,2)}, 0")
        for i in range(0, 8, 2): A(f"v_mov_b64 {v(ACCV+i,2)}, 0")
    def set_neg():
        A(f"v_mov_b64 {v(NEG,2)}, -1"); A(f"v_mov_b64 {v(NEG+2,2)}, -1")
    def slot_offsets():
        A(f"""
        s_and_b32 s{sTmp}, s{sStep}, 3
        s_lshl_b32 s{sO1}, s{sTmp}, 13
        s_add_u32 s{sO1}, s{sO1}, {H1}
        s_add_u32 s{sO1b}, s{sO1}, 4096
        """)
    def ld1():
        A(f"buffer_load_dwordx4 {v(ma(0),4)}, v{vT16}, {s(rWS,4)}, s{sO1} offen sc1")
        A(f"buffer_load_dwordx4 {v(ma(4),4)}, v{vT16}, {s(rWS,4)}, s{sO1b} offen sc1")
    def ld2():
        for u in range(2):
            if u and g2: A(f"s_nop {g2-1}")
            A(f"buffer_load_dwordx4 {v(R2+4*u,4)}, v{vL16}, {s(rWS,4)}, s{sRd} offen offset:{1024*u} sc1")
    def delay(n):
        while n > 0:
            A(f"s_nop {min(n,16)-1}"); n -= 16
    chores(0, 6); zero_accs(); set_neg(); slot_offsets()
    A(f"s_mov_b32 s{sO2}, {H2}"); A(f"s_mov_b32 s{sO2b}, {H2 + (128<<10)}")
    A(f"s_add_u32 s{sRst1}, s{sPubO}, {2*8192}")
    A(f"s_and_b32 s{sTmp}, s{sW}, 1")
    A(f"s_lshl_b32 s{sRd2}, s{sTmp}, 17")
    A(f"s_lshl_b32 s{sTmp}, s{sH}, 12")
    A(f"s_add_u32 s{sRd2}, s{sRd2}, s{sTmp}")
    A(f"s_lshr_b32 s{sTmp}, s{sW}, 1")
    A(f"s_lshl_b32 s{sTmp}, s{sTmp}, 11")
    A(f"s_add_u32 s{sRd2}, s{sRd2}, s{sTmp}")
    pre_staged = dict(staged)
    sKf = 47
    A(f"s_mov_b32 s{sCm}, 0xcccccccc"); A(f"s_mov_b32 s{sCm+1}, 0xcccccccc")
    A(f"s_mov_b32 s{sKf}, 0")
    A(f"s_waitcnt vmcnt(0) lgkmcnt(0)")
    A(f"v_add_u32 v{vT0}, s{sMK}, v{vL16}")
    A(f"ds_write_b128 v{vT0}, {v(KST,4)}")
    A(f"ds_write_b128 v{vT0}, {v(KST+4,4)} offset:1024")
    def ldA(): A(f"buffer_load_dwordx4 {v(ma(0),4)}, v{vT16}, {s(rWS,4)}, s{sO1} offen sc1")
    def ldB(): A(f"buffer_load_dwordx4 {v(ma(4),4)}, v{vT16}, {s(rWS,4)}, s{sO1b} offen sc1")
    N1 = I("s_nop 1"); N0 = I("s_nop 0")
    if ea: ldA(); ldA()
    if shift is not None:
        A.raw(".p2align 6")
        for _ in range(shift): A("s_nop 0")
    for par in range(2):
        P = f"_{par}"
        LM = L_MEM; LK = L_KX
        st = stamp if par == 0 else (lambda n="": None)
        A.label("L_step" + P)
        if stamps == 1 and par == 0:
            stamp("top")
            A(f"s_cmp_ge_u32 s{sStep}, {nsteps-3}")
            A("s_cbranch_scc1 L_team_end")
        st("top2")
        def kxw():
            A(f"v_add_u32 v{vT0}, s{sMK}, v{vL16}")
            A(f"ds_write_b128 v{vT0}, {v(KST,4)}")
            A(f"ds_write_b128 v{vT0}, {v(KST+4,4)} offset:1024")
        staged.clear()
        zz = [I(f"v_mov_b64 {v(r_,2)}, 0") for r_ in list(range(ACCA, ACCA+16, 2)) + list(range(ACCV, ACCV+8, 2))] + [lambda: set_neg()]
        def zs(n):
            for _ in range(n):
                if zz: zz.pop(0)()
        rst = [I(f"s_xor_b32 s{sTmp}, s{sO2}, {256<<10}"), I(f"s_add_u32 s{sTmp}, s{sTmp}, s{sRst2}"),
               I(f"buffer_store_dwordx4 {v(NEG,4)}, v{vT16}, {s(rWS,4)}, s{sTmp} offen")]
        rst2 = [I(f"s_add_u32 s{sTmp}, s{sTmp}, {128<<10}"),
               I(f"buffer_store_dwordx4 {v(NEG,4)}, v{vT16}, {s(rWS,4)}, s{sTmp} offen"),
               I(f"buffer_store_dword v{NEG}, v{PUB}, {s(rWS,4)}, s{sRst1} offen")]
        pubg = [I(f"buffer_store_dword v{vPD}, v{PUB}, {s(rWS,4)}, s{sMG} offen sc1"), I(f"s_add_u32 s{sMG}, s{sMG}, 8192")]
        nothing = lambda: None
        zs(z0); delay(dA)
        for ch in hseq:
            if ch == "A": ldA()
            elif ch == "B": ldB()
            elif ch == "z": zs(99)
            elif ch == "_": delay(gapB)
            elif ch == ".": delay(gapAB)
            elif ch == "R":
                zs(99)
                for f in rst: f()
                rst = [nothing]*3
            elif ch == "S":
                for f in rst2[:2]: f()
                rst2[0] = rst2[1] = nothing
            elif ch == "r":
                zs(99); rst2[2](); rst2[2] = nothing
        zs(99)
        ops = [ch for ch in hseq if ch in "ABRSr"]
        wA = len(ops) - 1 - ops.index("A"); wB = len(ops) - 1 - ops.index("B")
        assert wB < wA
        waited[0] = lg.n
        staged.clear(); staged.update({f: (r, 0) for f, (r, t) in pre_staged.items()})
        r, q = ma(0), ma(4)
        if ea:
            A(f"s_mov_b32 s{sK}, 1")
            A(f"s_waitcnt vmcnt({nfl+1})")
            A(f"s_branch L_pollA2{P}") if False else None
        else:
            A.label("L_pollA" + P)
            A(f"s_waitcnt vmcnt({wA})")
        A.label("L_pollA2" + P)
        A(f"v_max3_u32 v{vT0}, v{r}, v{r+1}, v{r+2}")
        A(f"v_max_u32 v{vT0}, v{vT0}, v{r+3}")
        if not one: A(f"v_cmp_eq_u32 vcc, -1, v{vT0}")
        tt = {}
        def rd(key, dst, addr, off): return lambda: tt.__setitem__(key, dsr(dst, addr, off))
        kx = lambda i, dst: rd(("kx", i), dst, vL16, LK + 1024*i)
        W = lambda key: (lambda: lwait(tt[key]))
        WS = lambda idx: (lambda: lwait(staged[LDSF[idx]][1]))
        twa = dsw(vT16, r, LM)
        st("ok")
        bchk = [I(f"s_waitcnt vmcnt({wB})"), I(f"v_max3_u32 v{vT0}, v{q}, v{q+1}, v{q+2}"), I(f"v_max_u32 v{vT0}, v{vT0}, v{q+3}"), I(f"v_cmp_eq_u32 vcc, -1, v{vT0}")]
        kvu = []
        if one:
            slots([SM("q",0,0), SM("q",1,0), SM("k",0,0), SM("k",1,0), SM("v",0,0), SM("v",1,0)],
                  [[bchk[0], I(f"v_max3_u32 v{vT0}, v{vT0}, v{q}, v{q+1}")], [I(f"v_max3_u32 v{vT0}, v{vT0}, v{q+2}, v{q+3}")],
                   [lambda: tt.__setitem__("wb", dsw(vT16, q, LM + 4096)), bchk[3]], [], [I(f"s_cbranch_vccnz L_retryA{P}")],
                   [W("wb"), I("s_barrier"), rd(1, ma(1), vM1, LM)]])
            A.label("L_okB" + P)
            slots([SM("q",0,4), SM("q",1,4), SM("k",0,4), SM("k",1,4), SM("v",0,4), SM("v",1,4)],
                  [[rd(2, ma(2), vM2, LM)], [rd(3, ma(3), vM3, LM)], [rd(5, ma(5), vM1, LM+4096)], [kx(4, STG)], [kx(5, STG+4)], [W(1)]])
            mid = [SM("q",0,1), SM("q",1,1), SM("k",0,1), SM("k",1,1), SM("q",0,2), SM("q",1,2), SM("k",0,2), SM("k",1,2)]
        elif not ea:
            slots([SM("q",0,0), SM("q",1,0), SM("k",0,0), SM("k",1,0)],
                  [[], [I(f"s_cbranch_vccnz L_retryA{P}")] + bchk[:2], bchk[2:3], [lambda: lwait(twa), I("s_barrier"), bchk[3]]])
            st("barM")
            rd(1, ma(1), vM1, LM)()
            SM("v",0,0)()
            A(f"s_cbranch_vccnz L_retryB{P}")
            A.label("L_okB" + P)
            st("okB")
            tw = dsw(vT16, q, LM + 4096)
            slots([SM("v",1,0), SM("q",0,4), SM("q",1,4), SM("k",0,4), SM("k",1,4), SM("v",0,4), SM("v",1,4)],
                  [[rd(2, ma(2), vM2, LM)], [rd(3, ma(3), vM3, LM)], [kx(4, STG)], [kx(5, STG+4)], [], [lambda: lwait(tw), I("s_barrier")], [rd(5, ma(5), vM1, LM+4096)]])
            mid = [SM("q",0,1), SM("q",1,1), SM("k",0,1), SM("k",1,1), SM("q",0,2), SM("q",1,2), SM("k",0,2), SM("k",1,2)]
        else:
            slots([SM("q",0,0), SM("q",1,0)], [[], [I(f"s_cbranch_vccnz L_retryA{P}"), lambda: lwait(twa), I("s_barrier")]])
            st("barM")
            rd(1, ma(1), vM1, LM)()
            pre = [SM("k",0,0), SM("k",1,0), SM("v",0,0), SM("v",1,0), SM("q",0,1), SM("q",1,1), SM("k",0,1), SM("k",1,1), SM("q",0,2), SM("q",1,2)][:eb+3]
            fl = [[rd(2, ma(2), vM2, LM)], [rd(3, ma(3), vM3, LM)], [kx(4, STG)], [W(1)], [kx(5, STG+4)], [], [], [W(2)], [], []][:eb+3]
            fl[eb-1] = fl[eb-1] + bchk[:2]; fl[eb] = fl[eb] + bchk[2:3]; fl[eb+1] = fl[eb+1] + bchk[3:]
            slots(pre, fl)
            A(f"s_cbranch_vccnz L_retryB{P}")
            A.label("L_okB" + P)
            st("okB")
            tw = dsw(vT16, q, LM + 4096)
            allm = [SM("q",0,1), SM("q",1,1), SM("k",0,1), SM("k",1,1), SM("q",0,2), SM("q",1,2), SM("k",0,2), SM("k",1,2)][max(0, eb-1):]
            own = [SM("q",0,4), SM("q",1,4), SM("k",0,4), SM("k",1,4), SM("v",0,4), SM("v",1,4)]
            slots(own[:4], [[], [], [], [lambda: lwait(tw), I("s_barrier"), rd(5, ma(5), vM1, LM+4096)]])
            slots(own[4:], [[], []])
            mid = allm
        st("barB")
        bk = [I(x) for x in (
            f"s_add_u32 s{sStep}, s{sStep}, 1", f"s_add_u32 s{sRd}, s{sO2}, s{sRd2}", f"s_and_b32 s{sB}, s{sStep}, 3",
            f"s_lshl_b32 s{sB+1}, s{sB}, 13", f"s_add_u32 s{sO1}, s{sB+1}, {H1}", f"s_add_u32 s{sO1b}, s{sO1}, 4096",
            f"s_add_u32 s{sB+2}, s{sB+1}, s{sPubO}", f"s_xor_b32 s{sRst1}, s{sB+1}, {2<<13}", f"s_add_u32 s{sRst1}, s{sRst1}, s{sPubO}")]
        m0k = lambda: None
        dk = lambda j: I(f"buffer_load_dwordx4 {v(KST+4*j,4)}, v{vL16}, {s(rWS,4)}, s{sKV} offen offset:{1024*j} sc1")
        VX0, VX1 = ma(0), ma(4)
        lv = [I(f"buffer_load_dwordx4 {v(VX0,4)}, v{vT16}, {s(rWS,4)}, s{sMV+1} offen sc1"), I(f"s_add_u32 s{sTmp2}, s{sMV+1}, 4096"),
              I(f"buffer_load_dwordx4 {v(VX1,4)}, v{vT16}, {s(rWS,4)}, s{sTmp2} offen sc1"), I(f"s_add_u32 s{sMV+1}, s{sMV+1}, {32*16384}")]
        if "dma" in off: dk = lambda j: N0
        def kvbr():
            if kvchk:
                A(f"s_cmp_gt_u32 s{sRdy}, s{sStep}")
                A(f"s_cbranch_scc0 L_kvw{P}")
                A.label("L_kvok" + P)
        def kfissue():
            if not (kvchk and kfasync and par == 0): return
            A(f"""
            s_min_u32 s{sTmp}, s{sRdy}, 64
            s_lshl_b32 s{sTmp}, s{sTmp}, 8
            v_lshlrev_b32 v{VMR}, 4, v{vL16}
            s_add_u32 s{sTmp}, s{sTmp}, {CNT + C_KV}
            s_mov_b32 s{sKf}, s{sRdy}
            s_mov_b64 exec, 0xffff
            buffer_load_dword v{vPD}, v{VMR}, {s(rWS,4)}, s{sTmp} offen sc1
            s_mov_b64 exec, -1
            """)
        dmaseq = {ks: [m0k, kvbr], ks+1: [dk(0)], ks+3: [dk(1), I(f"s_add_u32 s{sKV}, s{sKV}, {32*16384}")]}
        slotno = [0]
        def slots2(ms, fill):
            fill = [list(f) for f in fill][:max(len(ms), max([i+1 for i, f in enumerate(fill) if f] + [0]))] + [[] for _ in range(len(ms) - len(fill))]
            for i in range(len(ms)):
                fill[i] = dmaseq.pop(slotno[0], []) + fill[i]; slotno[0] += 1
            slots(ms, fill)
        mm = mid + [SM("q",1,3), SM("k",0,3), SM("q",0,3), SM("k",1,3), SM("q",0,5), SM("q",1,5), SM("q",0,6), SM("q",1,6), SM("q",0,7), SM("q",1,7)]
        ff = [[rd(6, ma(6), vM2, LM+4096)] + lv[:2], [rd(7, ma(7), vM3, LM+4096), bk[0]], lv[2:], [W(3)] + rst[:2], [kx(6, STG+8)], [kx(7, STG+12)] + rst[2:], bk[1:3], [kx(0, FR)],
               [kx(1, FR+4)], rst2[:2], bk[3:6], [W(7), kx(2, FR+8)], rst2[2:], [kx(3, FR+12)], pubg, bk[6:9], [kfissue], []]
        if ea:
            nm_ = len(mm)
            ff = [[rd(6, ma(6), vM2, LM+4096)] + lv[:2], [rd(7, ma(7), vM3, LM+4096), bk[0]] , [kx(6, STG+8)] + lv[2:], [kx(7, STG+12)] + rst[:2], [kx(0, FR)] + rst[2:], [kx(1, FR+4)] + bk[1:3],
                  [kx(2, FR+8)] + bk[3:5], [kx(3, FR+12)] + rst2[:2], [bk[5]], rst2[2:], pubg, bk[6:9], [kfissue]]
            extra = ff[nm_:]; ff = ff[:nm_] + [[] for _ in range(nm_ - len(ff))]
            for x_ in extra: ff[-1] = ff[-1] + x_
            ff[nm_-7] = [W(7)] + ff[nm_-7]
            slotno[0] = 18 - nm_
        slots2(mm, ff)
        st("qdone")
        if trace and par == 0:
            A(f"""
            s_memrealtime s[52:53]
            s_memtime s[54:55]
            s_lshl_b32 s56, s{sStep}, 2
            s_waitcnt lgkmcnt(0)
            v_writelane_b32 v{vT0}, s52, 0
            v_writelane_b32 v{vT0}, s54, 1
            s_lshl_b32 s57, s{sH}, 10
            s_add_u32 s56, s56, s57
            s_add_u32 s56, s56, {RES + 65536 - 4}
            v_lshrrev_b32 v{QB}, 2, v{vL16}
            s_mov_b64 exec, 3
            buffer_store_dword v{vT0}, v{QB}, {s(rWS,4)}, s56 offen
            s_mov_b64 exec, -1
            """)
        def epi_ops(acc):
            return [I(f"v_add_f32 v{acc}, v{acc}, v{acc+2}"), I(f"v_add_f32 v{acc+1}, v{acc+1}, v{acc+3}"),
                    I(f"v_add_f32 v{acc+4}, v{acc+4}, v{acc+6}"), I(f"v_add_f32 v{acc+5}, v{acc+5}, v{acc+7}"),
                    I(f"v_cvt_pk_bf16_f32 v{acc}, v{acc}, v{acc+4}"), I(f"v_cvt_pk_bf16_f32 v{acc+1}, v{acc+1}, v{acc+5}")]
        e = epi_ops(ACCA); ek = epi_ops(ACCB)
        def w2(acc, o):
            A(f"ds_write2_b32 v{vQW}, v{acc}, v{acc+1} offset0:{o} offset1:{o + RS//4}"); tt["wk"] = lg.issue()
        slots2([SM("k",0,5), SM("k",0,6), SM("k",0,7), SM("k",1,5), SM("k",1,6), SM("k",1,7),
               SM("v",0,1), SM("v",1,1), SM("v",0,2), SM("v",1,2), SM("v",0,3), SM("v",1,3)][:6+min(vpre,6)] + [SM("v",0,5), SM("v",1,5)][:max(0,vpre-6)],
              {0: [[e[0]], [e[1]], [e[2]], [e[3]], [e[4]], [e[5]],
                   [lambda: w2(ACCA, 0), ek[0], ek[1]], [ek[2], ek[3]], [ek[4], ek[5], lambda: w2(ACCB, 72)], [], [], []],
               1: [[e[0]], [e[1]], [e[2]], [e[3]], [e[4]], [e[5]],
                   [lambda: w2(ACCA, 0), ek[0], ek[1]], [ek[2], ek[3], ek[4], ek[5], lambda: w2(ACCB, 72)], [], [], [], []],
               2: [[e[0]], [e[1]], [e[2]], [e[3]], [e[4], ek[0]], [e[5], ek[1]],
                   [lambda: w2(ACCA, 0), N1, N0, ek[2], ek[3], ek[4], ek[5], lambda: w2(ACCB, 72)], [], [], [], [], []]}[kep])
        lwait(tt["wk"]); A("s_barrier"); st("barQK")
        qr = lambda k: rd(("q", k), QB+4*k, vQR, L_Q + 64*k)
        KMR = ACCA
        kr = lambda k: rd(("km", k), KMR+4*k, vQR, L_K + 64*k)
        VXR = FR; OO = QB; LL = QB + 8; ONES = NEG
        ones = [I(f"v_mov_b32 v{ONES+i}, 0x3f803f80") for i in range(4)]
        nvm = 3 + (1 if kvchk and kfasync and par == 0 else 0) + (1 if trace and par == 0 else 0) - 2*("dma" in off)
        assert ks >= 15
        qr(0)()
        post = [SM("v",0,3), SM("v",1,3)][2-max(0,6-vpre):] + [SM("v",0,5), SM("v",1,5), SM("v",0,6), SM("v",1,6), SM("v",0,7), SM("v",1,7)][max(0,vpre-6):]
        pf_ = [[qr(1), ones[0]], [qr(2), ones[1]], [qr(3), ones[2]], [kr(0), ones[3]], [kr(1)], [kr(2)]]
        while len(pf_) > len(post):
            x_ = pf_.pop(); pf_[-1] = x_ + pf_[-1]
        pf_ += [[] for _ in range(len(post) - len(pf_))]
        pf_[-1] = pf_[-1] + [W(("q",1))]
        slots2(post, pf_)
        st("vdone")
        Sx = lambda t, k: (lambda: (lwait(tt[("q", k)]), mf(S+4*t, (FR if t == 0 else STG) + 4*k, QB+4*k, k == 0)))
        Sm = lambda k: (lambda: (lwait(tt[("km", k)]), mf(S+8, KMR+4*k, QB+4*k, k == 0)))
        ve = []
        for t in range(2):
            ve += [I(f"v_add_f32 v{va(t)}, v{va(t)}, v{va(t)+2}"), I(f"v_add_f32 v{va(t)+1}, v{va(t)+1}, v{va(t)+3}"),
                   I(f"v_cvt_pk_bf16_f32 v{VMR+2*t}, v{va(t)}, v{va(t)+1}")]
        zw = [I(f"v_mov_b64 {v(WA+i,2)}, 0") for i in range(0, 32, 2)]
        slots2([Sx(0,0), Sx(1,0), Sx(0,1), Sx(1,1), Sx(0,2), Sx(1,2), Sx(0,3), Sx(1,3), Sm(0), Sm(1), Sm(2), Sm(3)],
              [[kr(3)], [ve[0], ve[1]], [ve[2], ve[3]], [W(("q",3)), ve[4]],
               [G(11, FR, 0), ve[5]], [G(11, FR, 1)],
               [G(6, STG, 0)], [W(("km",3)), G(6, STG, 1)], [G(7, FR+8, 0), I(f"v_max3_f32 v{vT0}, v{S}, v{S+1}, v{S+2}")],
               [I(f"v_max3_f32 v{vT0}, v{vT0}, v{S+3}, v{S+4}"), I(f"v_max3_f32 v{vT0}, v{vT0}, v{S+5}, v{S+6}")],
               [G(7, FR+8, 1), I(f"v_max_f32 v{vT0}, v{vT0}, v{S+7}")],
               [G(9, ACCV, 0), zw[10], zw[11], G(9, ACCV, 1), zw[12], zw[13], zw[14]]])
        assert not dmaseq
        st("Smm")
        A(f"v_max3_f32 v{vT0}, v{vT0}, v{S+8}, v{S+9}")
        A(f"v_mov_b32 v{S+10}, v{vT0}")
        G(8, STG+8, 0)(); zw[15]()
        A(f"v_permlane32_swap_b32 v{vT0}, v{S+10}")
        A(f"v_max_f32 v{vT0}, v{vT0}, v{S+10}")
        A(f"v_mov_b32 v{S+10}, v{vT0}")
        G(8, STG+8, 1)()
        A(f"v_permlane16_swap_b32 v{vT0}, v{S+10}")
        A(f"v_max_f32 v{vT0}, v{vT0}, v{S+10}")
        A(f"v_mul_f32 v{S+10}, s{sC}, v{vT0}")
        for i in (8, 0, 2, 4, 6):
            A(f"v_pk_fma_f32 {v(S+i,2)}, {v(S+i,2)}, s[{sC}:{sC+1}], {v(S+10,2)} op_sel_hi:[1,0,0] neg_lo:[0,0,1] neg_hi:[0,0,1]")
        ex = lambda i: I(f"v_exp_f32 v{S+i}, v{S+i}")
        cv = lambda i: I(f"v_cvt_pk_bf16_f32 v{S+i}, v{S+2*i}, v{S+2*i+1}")
        ex(8)(); ex(9)(); ex(0)()
        A(f"v_cvt_pk_bf16_f32 v{S+8}, v{S+8}, v{S+9}"); A(f"v_mov_b32 v{S+9}, 0")
        ex(1)(); ex(2)()
        slots([lambda: mf(LL, ONES, S+8, True, True), lambda: mf(OO, VMR, S+8, True, True), lambda: mf(OO+4, VMR+2, S+8, True, True)],
              [[ex(3), cv(0)], [ex(4), ex(5)], [ex(6), ex(7), cv(1), cv(2), cv(3)]])
        st("exp")
        G(10, ACCB, 0)(); A(f"s_waitcnt vmcnt({nvm})")
        slots([lambda: mf(LL, ONES, S, False), lambda: mf(OO, VX0, S, False), lambda: mf(OO+4, VX1, S, False)],
              [[G(10, ACCB, 1), zw[4]], [zw[5], zw[6]], [zw[7]]])
        st("PV")
        A(f"v_rcp_f32 v{vT0}, v{LL}")
        zw[0]()
        if ob64:
            for b_ in (0, 4):
                for i in range(2): A(f"v_cndmask_b32 v{OO+b_+i}, v{OO+b_+i}, v{OO+b_+2+i}, s[{sCm}:{sCm+1}]")
                if b_ == 0:
                    for i in range(2): A(f"v_mul_f32 v{OO+i}, v{OO+i}, v{vT0}")
            A(f"v_pk_mul_f32 {v(OO+4,2)}, {v(OO+4,2)}, {v(vT0,2)} op_sel_hi:[1,0]")
            for i in range(2): A(f"v_cvt_pk_bf16_f32 v{OO+i}, v{OO+i}, v{OO+4+i}")
            tw = dsw(vOW, OO, L_O, 2)
        else:
            for i in range(4): A(f"v_mul_f32 v{OO+i}, v{OO+i}, v{vT0}")
            A(f"v_pk_mul_f32 {v(OO+4,2)}, {v(OO+4,2)}, {v(vT0,2)} op_sel_hi:[1,0]")
            A(f"v_pk_mul_f32 {v(OO+6,2)}, {v(OO+6,2)}, {v(vT0,2)} op_sel_hi:[1,0]")
            for i in range(4): A(f"v_cvt_pk_bf16_f32 v{OO+i}, v{OO+i}, v{OO+4+i}")
            tw = dsw(vOW, OO, L_O)
        st("owr")
        for f in (zw[1], zw[2], zw[3], zw[8], zw[9])[:nzo]: f()
        FR_ = [NEG, NEG+1, NEG+2, NEG+3, vT0][:len(fsl)]
        if fsl:
            A(f"v_mov_b32 v{VMR}, s{sStep}")
            A(f"v_bfe_u32 v{VMR+2}, v{vL16}, 2, 5")
            A(f"v_lshlrev_b32 v{vT0}, 4, v{vL16}")
            A(f"s_mul_i32 s{sK+1}, s{sStep}, 0x01010101")
        lwait(tw); A("s_barrier"); st("barO")
        OA = ACCA
        to0 = dsr(OA, vOR, L_O)
        to = dsr(OA+4, vOR, L_O + 128)
        for f in (zw[1], zw[2], zw[3], zw[8], zw[9])[nzo:]: f()
        if fsl:
            A("s_mov_b64 exec, 0x3ff")
            A(f"buffer_store_byte v{VMR}, v{vT0}, {s(rWS,4)}, s{sFlS} offen")
            A("s_mov_b64 exec, -1")
        dmaseq.update({slotno[0] + sl: [I(f"buffer_load_dword v{FR_[i]}, v{VMR+2}, {s(rWS,4)}, s{sFl} offen offset:{256*i} sc1")] for i, sl in enumerate(fsl)})
        ad = lambda t: [I(f"v_add_f32 v{wa(t)}, v{wa(t)}, v{wa(t)+2}"), I(f"v_add_f32 v{wa(t)+1}, v{wa(t)+1}, v{wa(t)+3}")]
        cvp = lambda dst, t: [I(f"v_cvt_pk_bf16_f32 v{dst}, v{wa(t)}, v{wa(t+1)}"), I(f"v_cvt_pk_bf16_f32 v{dst+2}, v{wa(t)+1}, v{wa(t+1)+1}")]
        sto = lambda x, dst: [I(f"buffer_store_dwordx4 {v(dst,4)}, v{vSt2}, {s(rWS,4)}, s{sO2b if x else sO2} offen")]
        SO = lambda t, k: (lambda: sm("o", t, k, wa(t), OA+4*k))
        DA, DB = QB, QB + 4
        lwait(to0)
        st("ord")
        slots2([SO(t, k) for t in range(8) for k in range(2)],
              [[lambda: lwait(to), G(12, QB+8, 0)], [G(12, QB+8, 1)], [G(13, STG, 0)], [G(13, STG, 1), ad(0)[0]], [G(14, FR+8, 0), ad(0)[1]],
               [G(14, FR+8, 1), ad(1)[0]], [G(15, STG+8, 0), ad(1)[1]], [G(15, STG+8, 1), cvp(DA, 0)[0], cvp(DA, 0)[1]],
               [G(16, ACCV, 0)] + ad(2), [WS(13), G(16, ACCV, 1)] + ad(3), cvp(DA+1, 2), sto(0, DA) + [lambda: st("stA"), ad(4)[0]], [WS(15), ad(4)[1]],
               [WS(16)] + ad(5)[:1], ad(5)[1:], cvp(DB, 4) + ad(6)])
        for f in ad(7) + cvp(DB+1, 6) + sto(1, DB): f()
        st("stB")
        assert not staged, staged
        if bar1: A("s_barrier")
        st("bar1")
        dsr(SEL, vL16, L_ST)
        A(f"s_xor_b32 s{sO2}, s{sO2}, {256<<10}")
        A(f"s_xor_b32 s{sO2b}, s{sO2b}, {256<<10}")
        def red_block(role, nr):
            T_ = f"{role}{P}"
            if kxe:
                A("s_waitcnt lgkmcnt(0)")
            else:
                A(f"s_waitcnt vmcnt({2*nr+2})")
                kxw()
                A("s_waitcnt lgkmcnt(2)")
            A.label("L_pipe2" + T_)
            for u in range(2):
                r = R2 + 4*u
                A(f"s_waitcnt vmcnt({2*nr-1-u})")
                A(f"v_max3_u32 v{vT0}, v{r}, v{r+1}, {'v%d' % vT0 if u else 0}")
                A(f"v_max3_u32 v{vT0}, v{r+2}, v{r+3}, v{vT0}")
                mf(DD, SEL, r, u == 0)
            A(f"v_cmp_eq_u32 vcc, -1, v{vT0}")
            A("s_nop 5")
            A(f"s_cbranch_vccnz L_retryp{T_}")
            if ea and role == 1: ldA()
            for rot in (4, 8):
                A(f"v_add_f32_dpp v{DD}, v{DD}, v{DD} row_ror:{rot} row_mask:0xf bank_mask:0xf")
                A(f"v_add_f32_dpp v{DD+1}, v{DD+1}, v{DD+1} row_ror:{rot} row_mask:0xf bank_mask:0xf")
            A(f"v_cvt_pk_bf16_f32 v{vPD}, v{DD}, v{DD+1}")
            A(f"v_min_u32 v{vPD}, 0xfffffffe, v{vPD}")
            A(f"buffer_store_dword v{vPD}, v{PUB}, {s(rWS,4)}, s{sB+2} offen")
        def feval():
            if not fsl: return
            A("s_waitcnt vmcnt(2)")
            for i, r_ in enumerate(FR_): A(f"v_cmp_ne_u32 s[{sCm+2*i}:{sCm+2*i+1}], s{sK+1}, v{r_}")
            A(f"s_mov_b32 s{sK}, 0")
            for i in range(len(FR_)):
                A(f"s_cmp_lg_u64 s[{sCm+2*i}:{sCm+2*i+1}], 0")
                A(f"s_addc_u32 s{sK}, s{sK}, 0")
            if stamps: A(f"s_add_u32 s{sRetA}, s{sRetA}, s{sK}")
        def fdelay(tag):
            if not fsl: return
            A(f"""
            L_fd{tag}{P}:
            s_sub_u32 s{sK}, s{sK}, 1
            s_cbranch_scc1 L_fe{tag}{P}
            s_nop {fnop}
            s_branch L_fd{tag}{P}
            L_fe{tag}{P}:
            """)
        if kvchk and kfasync and par == 0:
            A(f"""
            s_waitcnt vmcnt(2)
            v_cmp_eq_u32 vcc, 32, v{vPD}
            s_min_u32 s{sKf}, s{sKf}, 64
            """)
        if kxe:
            A(f"v_add_u32 v{vT0}, s{sMK}, v{vL16}")
            A("s_waitcnt vmcnt(2)")
            A(f"ds_write_b128 v{vT0}, {v(KST,4)}")
        chores(0, 1)
        if kxe: A(f"ds_write_b128 v{vT0}, {v(KST+4,4)} offset:1024")
        if kvchk and kfasync and par == 0:
            A(f"""
            s_and_b32 s{sTmp}, vcc_lo, 0xffff
            s_ff0_i32_b32 s{sTmp}, s{sTmp}
            s_add_u32 s{sTmp}, s{sTmp}, s{sKf}
            s_max_u32 s{sRdy}, s{sRdy}, s{sTmp}
            """)
        A(f"s_bitcmp1_b32 s{sW}, 0")
        A(f"s_cbranch_scc1 L_tailB{P}")
        chores(1, cs[0][0]); delay(dR[0]); ld2(); st("ld2")
        chores(cs[0][0], ctl)
        if na > 1: delay(dR[1]); ld2()
        red_block(0, na)
        if ea:
            delay(dE); ldA(); delay(dE2); ldA()
        A(f"s_branch L_tailj{P}")
        A.label(f"L_tailB{P}")
        if par == 0 and stamps == 1:
            nst[0] -= 1; names.pop()
        chores(1, cs[1][0]); delay(dR[2]); ld2(); st("ld2")
        chores(cs[1][0], ctl)
        if n2 > 1: delay(dR[3]); ld2()
        if n2 > 2: delay(dR[3]); ld2()
        red_block(1, n2)
        A.label(f"L_tailj{P}")
        st("red")
        if bar2: A("s_barrier")
        if par == (nsteps & 1):
            A(f"s_cmp_eq_u32 s{sStep}, {nsteps-1}")
            A("s_cbranch_scc1 L_last")
        if par == 1: A("s_branch L_step_0")
        staged.clear()
    def retry(lab, cnt, body, back):
        A.label(lab)
        A("s_mov_b64 exec, vcc")
        body()
        A("s_mov_b64 exec, -1")
        A(f"s_add_u32 s{cnt}, s{cnt}, 1")
        A(f"s_add_u32 s{sG}, s{sG}, 1")
        A(f"s_cmp_gt_u32 s{sG}, {SPIN}")
        A(f"s_cbranch_scc1 L_team_end")
        if back: A(f"s_branch {back}")
    for par in range(2):
        P = f"_{par}"
        if bonly:
            retry("L_retryA" + P, sRetA, ldA, None)
            A("s_nop 3")
            for i in range(0, 8, 2): A(f"v_mov_b64 {v(ACCA+i,2)}, 0")
            A("s_waitcnt vmcnt(0)")
            A(f"s_branch L_pollA2{P}")
            retry("L_retryB" + P, sRetB, ldB, None)
            A(f"s_waitcnt vmcnt({nsets-1})")
        else:
            if ea:
                A.label("L_retryA" + P)
                A(f"s_cmp_eq_u32 s{sK}, 1")
                A(f"s_mov_b32 s{sK}, 0")
                A(f"s_cbranch_scc1 L_rA2{P}")
            retry(("L_retryAx" if ea else "L_retryA") + P, sRetA, ld1, None)
            A.label("L_rA2" + P)
            A("s_nop 6")
            for i in range(0, 16 if one else 8, 2): A(f"v_mov_b64 {v(ACCA+i,2)}, 0")
            if one:
                for i in range(0, 4, 2): A(f"v_mov_b64 {v(ACCV+i,2)}, 0")
            A(f"s_waitcnt vmcnt({wA})")
            A(f"s_branch L_pollA2{P}")
            retry("L_retryB" + P, sRetB, ld1, None)
            A(f"s_waitcnt vmcnt({wB})")
        chk(ma(4), "L_retryB" + P)
        A(f"s_branch L_okB{P}")
        retry("L_retryp0" + P, sRet2, ld2, "L_pipe20" + P)
        retry("L_retryp1" + P, sRet2, ld2, "L_pipe21" + P)
        if kvchk:
            kv_wait(P, vT0, VMR, f"s{sStep}")
            A(f"s_branch L_kvok{P}")
    A.label("L_last")
    A(f"buffer_store_dword v{vPD}, v{PUB}, {s(rWS,4)}, s{sMG} offen sc1")
    A("s_waitcnt vmcnt(0) lgkmcnt(0)")
    A.label("L_team_end")
    if stamps:
        if stamps == 2:
            A("s_memrealtime s[98:99]")
            A("s_memtime s[72:73]"); A("s_waitcnt lgkmcnt(0)")
            A("s_sub_u32 s72, s72, s76")
            vals = [72, sStep, sRetA, sRetB, sRet2, 76, 76, 76] + [90, 92, 94, 96, 98, 98, 98, 98]
        else:
            A("s_waitcnt lgkmcnt(0)")
            for c, (ra, rb) in enumerate(((44, 45), (46, 47))):
                A(f"""
                s_memrealtime s[16:17]
                s_waitcnt lgkmcnt(0)
                s_add_u32 s16, s16, {200 if c else 8}
                L_cal{c}:
                s_memrealtime s[18:19]
                s_memtime s[98:99]
                s_waitcnt lgkmcnt(0)
                s_cmp_lt_u32 s18, s16
                s_cbranch_scc1 L_cal{c}
                s_mov_b32 s{ra}, s18
                s_mov_b32 s{rb}, s98
                """)
            vals = [44, sStep, sRetA, sRetB, sRet2, 45, 46, 47] + list(range(52, 100, 2))
        A(f"s_lshl_b32 s{sTmp}, s{sH}, 2")
        A(f"s_add_u32 s{sTmp}, s{sTmp}, s{sW}")
        A(f"s_lshl_b32 s{sTmp}, s{sTmp}, 7")
        A(f"s_add_u32 s{sTmp}, s{sTmp}, {RES}")
        A("s_waitcnt vmcnt(0)")
        for i, r in enumerate(vals): A(f"v_mov_b32 v{16+i}, s{r}")
        A("v_mov_b32 v0, 0")
        A("s_mov_b64 exec, 1")
        for i in range(len(vals)//4): A(f"buffer_store_dwordx4 {v(16+4*i,4)}, v0, {s(rWS,4)}, s{sTmp} offen offset:{16*i}")
        if stamps == 2 and trace:
            A(f"""
            s_cmp_lg_u32 s{sH}, 0
            s_cbranch_scc1 L_nodbg
            s_cmp_lg_u32 s{sW}, 0
            s_cbranch_scc1 L_nodbg
            buffer_store_dword v24, v0, {s(rDBG,4)}, 0 offen offset:8 sc1
            buffer_store_dword v28, v0, {s(rDBG,4)}, 0 offen offset:12 sc1
            buffer_store_dword v20, v0, {s(rDBG,4)}, 0 offen offset:60 sc1
            buffer_store_dword v19, v0, {s(rDBG,4)}, 0 offen offset:56 sc1
            s_mov_b64 exec, 0xff
            v_lshlrev_b32 v40, 1, v{vL16}
            s_mov_b32 s{sTmp}, {RES + 65536}
            buffer_load_dword v41, v40, {s(rWS,4)}, s{sTmp} offen sc1
            v_lshrrev_b32 v40, 2, v{vL16}
            v_and_b32 v42, 16, v40
            v_lshrrev_b32 v42, 1, v42
            v_add_u32 v40, v40, v42
            s_waitcnt vmcnt(0)
            buffer_store_dword v41, v40, {s(rDBG,4)}, 0 offen offset:16 sc1
            L_nodbg:
            """)
    A("s_waitcnt vmcnt(0)")

def entry(A, diag):
    A(f"""
    {"s_memrealtime s[68:69]" if diag else ""}
    s_load_dwordx4 s[4:7], s[0:1], 104
    s_load_dwordx4 s[76:79], s[0:1], 0
    s_load_dwordx8 s[80:87], s[0:1], 16
    s_load_dwordx8 s[88:95], s[0:1], 64
    s_load_dwordx2 s[70:71], s[0:1], 96
    s_getreg_b32 s{sX}, hwreg(HW_REG_XCC_ID)
    s_and_b32 s{sX}, s{sX}, 7
    v_lshrrev_b32 v1, 6, v0
    v_readfirstlane_b32 s{sW}, v1
    s_waitcnt lgkmcnt(0)
    {"s_mov_b32 s3, s68" if diag else ""}
    """)

def gen_standalone(**kw):
    A = Asm()
    A.raw(f"; @launch grid=(256,1,1) block=(256,1,1) lds=163840")
    A.raw('.amdgcn_target "amdgcn-amd-amdhsa--gfx950"')
    A.raw(".text")
    kernel_begin(A, NAME + "_kernel")
    A(f"""
    s_cmp_ge_u32 s2, 256
    s_cbranch_scc1 L_end
    """)
    entry(A, True)
    srd(A, rWS, 6, WS_BYTES)
    srd(A, rDBG, 4, 256)
    spf = kw.pop("spf", 0)
    role_select(A, "L_pfw" if spf else "L_end")
    team(A, **kw)
    A.label("L_end")
    A("s_endpgm")
    if spf:
        A.label("L_pfw")
        A(f"""
        s_lshr_b32 s{sTmp}, s2, 6
        s_lshl_b32 s{sTmp}, s{sTmp}, 3
        s_add_u32 s{sTmp}, s{sTmp}, 16
        s_load_dwordx2 s[80:81], s[0:1], s{sTmp}
        s_and_b32 s{sTmp}, s2, 62
        s_lshl_b32 s{sTmp}, s{sTmp}, 16
        v_lshlrev_b32 v3, 4, v0
        s_waitcnt lgkmcnt(0)
        """)
        srd(A, rW, 80, 4 << 20)
        for i in range(32):
            A(f"buffer_load_dwordx4 v[{128+4*(i&7)}:{131+4*(i&7)}], v3, {s(rW,4)}, s{sTmp} offen")
            A(f"s_add_u32 s{sTmp}, s{sTmp}, 4096")
        A("s_waitcnt vmcnt(0)")
        A("s_endpgm")
    A.raw('.section .rodata,"a"')
    A.raw(descriptor(NAME + "_kernel", 512, 102, 256))
    global STAMP_NAMES
    STAMP_NAMES = A.stamp_names
    return A.text()

if __name__ == "__main__":
    open("team.s", "w").write(gen_standalone(stamps=2))
```

```python
from asmlib import *

H2 = 0
H1 = 1 << 20
RES = (1 << 20) + (256 << 10)
XN = 2 << 20
KV = 16 << 20
QX = 50 << 20
MEMG = (1 << 20) + (512 << 10)
WS_BYTES = 256 << 20

L_MEM = 0; L_KX = 8192; L_VX = 16384; L_Q = 24576; L_K = 24576 + 288; L_O = 29184; L_ST = 31744; L_W = 32768
RS = 576; RSO = 320

rWS, rDBG, rW = 8, 12, 16
sX, sW, sT, sH = 20, 21, 22, 23
sStep, sTmp, sG, sTmp2 = 24, 25, 26, 27
sO1, sO1b, sO2, sO2b = 28, 29, 30, 31
sRd2, sPubO, sRst2, sRst1 = 32, 33, 34, 35
sKV, sMG, sC, sPerm0, sPerm1 = 36, 37, 38, 39, 40
sB = 44
sRetA, sRetB, sRet2 = 48, 49, 50
sMK, sMV, sRd, sPF = 41, 42, 100, 101
sSt = 56
SPIN = 400000
D_WIN, D_INIT, D_LN, D_MOE, D_MOEDONE = 4, 36, 68, 100, 132
CNT = (1 << 20) + (128 << 10)
C_KV, C_O = 0, 128
FLG = (1 << 20) + (64 << 10)
sFl, sFlS, sK = 62, 63, 64
sCm = 66
sRdy = 51

vIdx, vL16, vT16, vT16b, vT16c, vM1, vM2, vM3, vSt2, vQW, vQR, vOW, vOR = range(1, 14)
vT0, vT1, vPD = 0, 14, 15
MEMA = 16
ACCA = 48
ACCB = 56
STG = 64
POOL = 80
ACCV = 112
NEG = 120
S = MEMA + 4
VMR = 124

LDSF = [("q",1,0),("k",0,0),
        ("q",0,4),("k",1,4),
        ("k",0,2),("q",1,3)]
LDSF += [("o", i >> 1, i & 1) for i in (0, 1, 2, 4, 6, 8, 10, 12, 13, 15, 14)]
ALLF = [(m,t,sl) for m in "qkv" for sl in range(8) for t in range(2)] + [("o",t,k) for k in range(2) for t in range(8)]
HOME = {}
_n = 0
for f in ALLF:
    if f in LDSF: HOME[f] = ("l", LDSF.index(f))
    else:
        HOME[f] = ("a", 8*_n) if _n < 32 else ("v", 128 + 8*(_n-32)); _n += 1
assert _n == 47
KST = 248

def lds_frag_addr(idx, part):
    off = L_W + (2*idx + part) * 4096
    if idx == 16: off = L_VX + part * 4096
    if off < 65536: return vT16, off
    if off < 131072: return vT16b, off - 65536
    return vT16c, off - 131072

class Cnt:
    def __init__(self, A, name, cap): self.A, self.name, self.cap, self.n = A, name, cap, 0
    def issue(self): self.n += 1; return self.n
    def wait(self, tok):
        k = self.n - tok
        if k <= self.cap: self.A(f"s_waitcnt {self.name}({k})")
        else: self.A(f"s_waitcnt {self.name}({self.cap})")

def role_select(A, lab_worker, prefetch=False, force=None):
    if prefetch:
        A(f"""
        s_cmp_lt_u32 s{sW}, 2
        s_cbranch_scc1 L_nopf
        s_lshr_b32 s{sTmp}, s2, 6
        s_lshl_b32 s{sTmp}, s{sTmp}, 3
        s_add_u32 s{sTmp}, s{sTmp}, 16
        s_load_dwordx2 s[80:81], s[0:1], s{sTmp}
        s_and_b32 s{sTmp}, s2, 63
        s_lshl_b32 s{sTmp}, s{sTmp}, 16
        v_and_b32 v3, 127, v0
        v_lshlrev_b32 v3, 4, v3
        s_waitcnt lgkmcnt(0)
        """)
        srd(A, rW, 80, 4 << 20)
        for i in range(32):
            if i % 2 == 0 and i: A(f"s_add_u32 s{sTmp}, s{sTmp}, 4096")
            A(f"buffer_load_dwordx4 v[{128+4*(i&7)}:{131+4*(i&7)}], v3, {s(rW,4)}, s{sTmp} offen offset:{2048*(i&1)}")
        A.label("L_nopf")
    A(f"""
    s_cmp_lg_u32 s{sW}, 0
    s_cbranch_scc1 L_role_wait
    s_mov_b64 exec, 1
    v_mov_b32 v3, 1
    s_lshl_b32 s{sTmp}, s{sX}, 5
    v_mov_b32 v4, s{sTmp}
    buffer_atomic_add v3, v4, {s(rDBG,4)}, 0 offen sc0
    s_add_u32 s{sTmp}, s{sX}, 1
    v_mov_b32 v5, 0
    s_mov_b32 s{sG}, 0
    s_cmp_ge_u32 s2, 64
    s_cbranch_scc1 L_poll_win
    {f"s_cmp_eq_u32 s{sX}, {force}" if force is not None else f"s_and_b32 s{sStep}, s{sX}, 3"}
    s_cbranch_scc1 L_bid
    L_poll_win:
    buffer_load_dword v6, v5, {s(rDBG,4)}, 0 offen offset:{D_WIN} sc1
    s_waitcnt vmcnt(0)
    v_readfirstlane_b32 s{sStep}, v6
    s_cmp_lg_u32 s{sStep}, 0
    s_cbranch_scc1 L_have_win
    s_add_u32 s{sG}, s{sG}, 1
    s_cmp_lt_u32 s{sG}, {12 if force is None else 1000}
    s_cbranch_scc1 L_poll_win
    L_bid:
    v_mov_b32 v6, s{sTmp}
    v_mov_b32 v7, 0
    buffer_atomic_cmpswap v[6:7], v5, {s(rDBG,4)}, 0 offen offset:{D_WIN} sc0
    s_waitcnt vmcnt(0)
    v_readfirstlane_b32 s{sStep}, v6
    s_cmp_eq_u32 s{sStep}, 0
    s_cselect_b32 s{sStep}, s{sTmp}, s{sStep}
    L_have_win:
    v_readfirstlane_b32 s{sT}, v3
    s_mov_b32 s{sH}, 0xffff
    s_cmp_gt_u32 s{sT}, 31
    s_cbranch_scc1 L_role_done
    s_sub_u32 s{sStep}, s{sStep}, 1
    s_xor_b32 s{sStep}, s{sStep}, s{sX}
    s_sub_u32 s{sH}, s{sStep}, 3
    s_add_u32 s{sTmp}, s{sStep}, 4
    s_cmp_ge_u32 s{sStep}, 4
    s_cselect_b32 s{sH}, s{sH}, s{sTmp}
    s_cmp_eq_u32 s{sStep}, 0
    s_cselect_b32 s{sH}, 0, s{sH}
    s_lshl_b32 s{sH}, s{sH}, 5
    s_add_u32 s{sH}, s{sH}, s{sT}
    L_role_done:
    v_mov_b32 v3, s{sH}
    v_mov_b32 v4, 0
    ds_write_b32 v4, v3
    s_mov_b64 exec, -1
    L_role_wait:
    s_waitcnt lgkmcnt(0)
    s_barrier
    v_mov_b32 v4, 0
    ds_read_b32 v3, v4
    s_waitcnt lgkmcnt(0)
    v_readfirstlane_b32 s{sH}, v3
    s_barrier
    s_cmp_gt_u32 s{sH}, 31
    s_cbranch_scc1 {lab_worker}
    """)

def team(A, nsteps=64, stamps=False, ctl=6, z0=12, dA=0, gapB=6, nsets=2, dR=(24,4,16,12), n2=2, dAA=0, bar1=1, bar2=1, pfd=0, usepk=True, rt=False, off="pf", cs=((3,6),(5,6)), kvchk=False, trace=False, gapAB=2, na=2, d3r=2, joint=True, bonly=False, fsl=(), fnop=3, cpre=0, fill_at=4, kfasync=True, lead=0, ks=28, linw=0, dmaw=True, wo_at=(1, 2, 3, 5), ea=False, eb=6, dE=16, dE2=8, hseq="Az.B_A.BRSr", g2=0, ob64=True, one=True, nzo=2, shift=None, kxe=False, kep=0, vpre=7, rsm=False, rt4=False, hv=1):
    nst = [0]
    names = []
    def stamp(name=""):
        if stamps != 1: return
        k = nst[0]; nst[0] += 1
        assert k < 23
        names.append(name)
        A(f"s_mem{'real' if rt else ''}time s[{52+2*k}:{53+2*k}]")
    A.stamp_names = names
    if stamps == 2: A("s_memrealtime s[92:93]")
    vC, vG, vLn = 16, 17, 18
    x0, x1, x2, x3 = 19, 20, 21, 22
    vWq, vWq2, vWv, vWv2, vWo = 23, 24, 25, 26, 27
    vPubT = 28
    A(f"""
    {"s_mov_b32 s90, s3" if stamps == 2 else ""}
    v_and_b32 v{vLn}, 63, v0
    v_and_b32 v{vC}, 15, v0
    v_lshrrev_b32 v{vG}, 4, v{vLn}
    v_lshlrev_b32 v{vL16}, 4, v{vLn}
    v_lshlrev_b32 v{vT16}, 4, v0
    v_add_u32 v{vT16b}, 0x10000, v{vT16}
    v_add_u32 v{vT16c}, 0x20000, v{vT16}
    v_xor_b32 v{vM1}, 1024, v{vT16}
    v_xor_b32 v{vM2}, 2048, v{vT16}
    v_xor_b32 v{vM3}, 3072, v{vT16}
    v_and_b32 v{x0}, 2, v{vC}
    v_cmp_ne_u32 vcc, 0, v{x0}
    v_mov_b32 v{x1}, 0x4444
    v_mov_b32 v{x2}, 0xeeee
    v_cndmask_b32 v{vIdx}, v{x1}, v{x2}, vcc
    v_and_b32 v{x3}, 4, v{vC}
    v_cmp_ne_u32 vcc, 0, v{x3}
    v_cndmask_b32 v{x1}, v{x1}, v{x2}, vcc
    v_lshl_or_b32 v{vIdx}, v{x1}, 16, v{vIdx}
    ; row(c) = 2*(c>>2) + (c&1)
    v_lshrrev_b32 v{x1}, 2, v{vC}
    v_and_b32 v{x2}, 1, v{vC}
    v_lshl_add_u32 v{x1}, v{x1}, 1, v{x2}
    v_mul_u32_u24 v{x3}, {RSO}, v{x1}
    v_mul_u32_u24 v{x1}, {RS}, v{x1}
    v_lshl_add_u32 v{vQR}, v{vG}, 4, v{x1}
    s_lshl_b32 s{sTmp}, s{sW}, 6
    v_lshl_add_u32 v{vOW}, v{vG}, 4, v{x3}
    v_add_u32 v{vOW}, s{sTmp}, v{vOW}
    {f"v_lshl_add_u32 v{vOW}, v{x0}, 2, v{vOW}" if ob64 else ""}
    v_lshl_add_u32 v{vOR}, v{vG}, 5, v{x3}
    v_lshl_add_u32 v{vOR}, v{x0}, 3, v{vOR}
    v_mul_u32_u24 v{x1}, {2*RS}, v{vG}
    v_lshl_add_u32 v{x1}, v{vC}, 2, v{x1}
    v_add_u32 v{vQW}, s{sTmp}, v{x1}
    v_add_u32 v{vQW}, {L_Q}, v{vQW}
    ; vSt2 = (8w + c>>1)*4096 + (g>>1)*2048 + h*64 + (2(g&1) + (c&1))*16
    v_lshrrev_b32 v{x1}, 1, v{vC}
    s_lshl_b32 s{sTmp}, s{sW}, 3
    v_add_u32 v{x1}, s{sTmp}, v{x1}
    v_lshlrev_b32 v{x1}, 12, v{x1}
    v_lshrrev_b32 v{x3}, 1, v{vG}
    v_lshl_add_u32 v{x1}, v{x3}, 11, v{x1}
    v_and_b32 v{x0}, 1, v{vG}
    v_lshl_add_u32 v{x1}, v{x0}, 5, v{x1}
    v_lshl_add_u32 v{x1}, v{x2}, 4, v{x1}
    s_lshl_b32 s{sTmp}, s{sH}, 6
    v_add_u32 v{vSt2}, s{sTmp}, v{x1}
    v_bfe_u32 v{x1}, v{vC}, 1, 1
    s_and_b32 s{sTmp}, s{sW}, 2
    v_add_u32 v{x1}, s{sTmp}, v{x1}
    v_lshl_add_u32 v30, v{x1}, 2, v{x3}
    v_lshlrev_b32 v30, 4, v30
    v_lshl_add_u32 v30, v{x2}, 3, v30
    v_lshl_add_u32 v30, v{x0}, 2, v30
    s_lshr_b32 s{sTmp}, s{sH}, 1
    s_lshl_b32 s{sTmp}, s{sTmp}, 8
    s_and_b32 s{sTmp2}, s{sH}, 1
    s_lshl_b32 s{sTmp2}, s{sTmp2}, 5
    s_add_u32 s{sTmp}, s{sTmp}, s{sTmp2}
    v_add_u32 v30, s{sTmp}, v30
    v_cmp_gt_u32 vcc, 4, v{vC}
    v_mov_b32 v{vPubT}, 0x7f000000
    v_cndmask_b32 v{vPubT}, v{vPubT}, v30, vcc
    v_mov_b32 v{vT1}, v{vPubT}
    v_lshl_add_u32 v{x1}, v{x1}, 1, v{x3}
    v_lshlrev_b32 v{x1}, 10, v{x1}
    v_lshl_add_u32 v{x1}, v{x2}, 4, v{x1}
    v_lshl_add_u32 v{x1}, v{x0}, 2, v{x1}
    s_lshl_b32 s{sTmp}, s{sH}, 5
    v_add_u32 v29, s{sTmp}, v{x1}
    v_lshlrev_b32 v{x2}, 4, v{x2}
    v_mov_b32 v{x3}, 0x3f80
    v_lshlrev_b32 v{x3}, v{x2}, v{x3}
    v_lshrrev_b32 v{x2}, {3 if rsm else 2}, v{vC}
    """)
    for r in range(4):
        A(f"v_cmp_eq_u32 vcc, {r & 1 if rsm else r}, v{x2}")
        A(f"v_cndmask_b32 v{32+r}, 0, v{x3}, vcc")
    A(f"ds_write_b128 v{vL16}, v[32:35] offset:{L_ST}")
    A(f"""
    v_lshrrev_b32 v{x0}, 1, v{vG}
    v_and_b32 v{x1}, 1, v{vG}
    v_lshlrev_b32 v{x2}, 18, v{x0}
    v_lshl_add_u32 v{x2}, v{x1}, 16, v{x2}
    s_lshl_b32 s{sTmp}, s{sH}, 8
    s_lshl_b32 s{sTmp2}, s{sW}, 6
    s_add_u32 s{sTmp}, s{sTmp}, s{sTmp2}
    v_add_u32 v{x2}, s{sTmp}, v{x2}
    v_lshl_add_u32 v{vWq}, v{vC}, 2, v{x2}
    v_add_u32 v{vWq2}, 0x2000, v{vWq}
    ; Wo: (16(g>>1) + 4(g&1))*1024 + h*131072 + 256w + 16c
    v_lshlrev_b32 v{x2}, 12, v{x1}
    v_lshl_add_u32 v{x2}, v{x0}, 14, v{x2}
    v_lshl_add_u32 v{x2}, v{vC}, 4, v{x2}
    s_lshl_b32 s{sTmp}, s{sH}, 17
    s_lshl_b32 s{sTmp2}, s{sW}, 8
    s_add_u32 s{sTmp}, s{sTmp}, s{sTmp2}
    v_add_u32 v{vWo}, s{sTmp}, v{x2}
    s_mov_b32 s{sPerm0}, 0x05040100
    s_mov_b32 s{sPerm1}, 0x07060302
    v_lshrrev_b32 v{vWv}, 4, v0
    v_lshlrev_b32 v{vWv}, 13, v{vWv}
    v_lshl_add_u32 v{vWv}, v{vC}, 4, v{vWv}
    s_lshl_b32 s{sTmp}, s{sH}, 8
    v_add_u32 v{vWv}, s{sTmp}, v{vWv}
    """)
    for i in range(4):
        A(f"s_xor_b32 s{sB+i}, s{sW}, {i}")
        A(f"s_lshl_b32 s{sB+i}, s{sB+i}, 20")
    NG_ = 112
    for i in range(4): A(f"v_mov_b32 v{NG_+i}, -1")
    A(f"s_lshl_b32 s{sRst2}, s{sH}, 12")
    A(f"s_and_b32 s{sPubO}, s{sW}, 1")
    A(f"s_lshl_b32 s{sTmp2}, s{sPubO}, 3")
    A(f"s_lshl_b32 s{sPubO}, s{sPubO}, 12")
    A(f"s_add_u32 s{sMG}, s{sPubO}, {MEMG}")
    A(f"s_add_u32 s{sPubO}, s{sPubO}, {H1}")
    A("s_waitcnt lgkmcnt(0)")
    srd(A, rW, 78, 8192)
    A(f"buffer_load_dword v{vPD}, v29, {s(rW,4)}, s{sTmp2} offen")
    def fills():
        for sl in range(4 if rt4 else 2):
            for x in range(2):
                A(f"s_add_u32 s{sTmp}, s{sRst2}, {H2 + sl*(256<<10) + x*(128<<10)}")
                A(f"buffer_store_dwordx4 {v(NG_,4)}, v{vT16}, {s(rWS,4)}, s{sTmp} offen"); vm.issue()
        A(f"s_lshl_b32 s{sTmp2}, s{sH}, 14")
        for i in range(4):
            A(f"s_add_u32 s{sTmp}, s{sTmp2}, {MEMG + i*4096}")
            A(f"buffer_store_dwordx4 {v(NG_,4)}, v{vT16}, {s(rWS,4)}, s{sTmp} offen sc1"); vm.issue()
        for sl in range(1, 4):
            A(f"s_add_u32 s{sTmp}, s{sPubO}, {sl*8192}")
            A(f"buffer_store_dword v{NG_}, v{vPubT}, {s(rWS,4)}, s{sTmp} offen"); vm.issue()
        A(f"v_min_u32 v{vPD}, 0xfffffffe, v{vPD}")
        A(f"buffer_store_dword v{vPD}, v{vPubT}, {s(rWS,4)}, s{sPubO} offen"); vm.issue()
        if not fsl: return
        A(f"s_lshr_b32 s{sFl}, s{sW}, 1")
        A(f"s_mul_i32 s{sFl}, s{sFl}, 1280")
        A(f"s_add_u32 s{sFl}, s{sFl}, {FLG}")
        A(f"s_bitcmp1_b32 s{sW}, 0")
        A(f"s_cselect_b32 s{sFl}, s{sFl}, 0x7f000000")
        A(f"s_add_u32 s{sFlS}, s{sH}, {FLG}")
        A(f"s_cmp_eq_u32 s{sW}, 0")
        A(f"s_cselect_b32 s{sFlS}, s{sFlS}, 0x7f000000")
        A(f"v_lshlrev_b32 v31, 4, v{vL16}")
        A("s_mov_b64 exec, 0x3ff")
        A(f"buffer_store_byte v{NG_}, v31, {s(rWS,4)}, s{sFlS} offen"); vm.issue()
        A("s_mov_b64 exec, -1")
    def arrive():
        A("s_barrier")
        A(f"""
        s_cmp_lg_u32 s{sW}, 0
        s_cbranch_scc1 L_t_arrived
        s_mov_b64 exec, 1
        v_mov_b32 v{NG_}, 1
        v_mov_b32 v{NG_+1}, 0
        buffer_atomic_add v{NG_}, v{NG_+1}, {s(rDBG,4)}, 0 offen offset:{D_INIT}
        s_mov_b64 exec, -1
        L_t_arrived:
        """)
    TB = [32, 48, 64, 80]
    PT = 96
    vm = Cnt(A, "vmcnt", 63)
    batches = []
    ob = [("o", k, bp) for k in range(2) for bp in range(4)]
    for mi, m in enumerate("qkv"):
        for sl in range(8):
            batches.append((m, sl))
            if (8*mi + sl) % 3 == 0: batches.append(ob.pop(0))
    TB = [32, 48, 64, 80, 116 - 4]
    rWo = 52
    srd(A, rWo, 86, 4 << 20)
    def issue(bi):
        b = batches[bi]; T = TB[bi % 4]
        if b[0] != "o":
            m, sl = b
            if sl == 0: srd(A, rW, {"q": 80, "k": 82, "v": 84}[m], 4 << 20)
            va, vb = vWq, vWq2
            if linw == 1:
                for j in range(4):
                    A(f"s_lshl_b32 s{sTmp}, s{sH}, 17")
                    A(f"s_add_u32 s{sTmp}, s{sTmp}, {sl*16384 + j*4096}")
                    A(f"buffer_load_dwordx4 {v(T+4*j,4)}, v{vT16}, {s(rW,4)}, s{sTmp} offen"); tok = vm.issue()
                return tok
            if linw == 2:
                for j in range(4):
                    A(f"s_mov_b32 s{sTmp}, {(sl*64 + j*16)*8192}")
                    A(f"buffer_load_dwordx4 {v(T+4*j,4)}, v{vWv}, {s(rW,4)}, s{sTmp} offen"); tok = vm.issue()
                return tok
            for be in range(8):
                row = 64*(be >> 2) + 16*(be & 1) + 4*(sl >> 2) + 2*((be >> 1) & 1)
                A(f"s_add_u32 s{sTmp}, s{sB+(sl&3)}, {row*8192}")
                A(f"buffer_load_dword v{T+2*be}, v{va}, {s(rW,4)}, s{sTmp} offen"); vm.issue()
                A(f"buffer_load_dword v{T+2*be+1}, v{vb}, {s(rW,4)}, s{sTmp} offen"); tok = vm.issue()
        else:
            _, k, bp = b
            for j in range(2):
                be = 2*bp + j
                row = 64*k + 32*(be >> 2) + 8*(be & 1) + 2*((be >> 1) & 1)
                A(f"s_mov_b32 s{sTmp}, {row*1024}")
                A(f"buffer_load_dwordx4 {v(T+8*j,4)}, v{vWo}, {s(rWo,4)}, s{sTmp} offen"); vm.issue()
                A(f"buffer_load_dwordx4 {v(T+8*j+4,4)}, v{vWo}, {s(rWo,4)}, s{sTmp} offen offset:1024"); tok = vm.issue()
        return tok
    def put(f, be, lo, hi, sel, tmp):
        kind, base = HOME[f]
        if kind == "v":
            A(f"v_perm_b32 v{base+be}, v{hi}, v{lo}, s{sel}")
        else:
            A(f"v_perm_b32 v{tmp}, v{hi}, v{lo}, s{sel}")
            if kind == "a": A(f"v_accvgpr_write_b32 a{base+be}, v{tmp}")
    def consume(bi):
        b = batches[bi]; T = TB[bi % 4]
        if b[0] != "o":
            m, sl = b
            for t in range(2):
                f = (m, t, sl)
                for be in range(8):
                    put(f, be, T+2*be, T+2*be+1, sPerm1 if t else sPerm0, PT + 8*t + be)
                if HOME[f][0] == "l":
                    for p in range(2):
                        ar, off = lds_frag_addr(HOME[f][1], p)
                        A(f"ds_write_b128 v{ar}, {v(PT+8*t+4*p,4)} offset:{off}")
            A("s_waitcnt lgkmcnt(0)")
        else:
            _, k, bp = b
            for t in range(8):
                f = ("o", t, k)
                for j in range(2):
                    be = 2*bp + j
                    put(f, be, T+8*j+(t >> 1), T+8*j+4+(t >> 1), sPerm1 if t & 1 else sPerm0, PT + 2*t + j)
                if HOME[f][0] == "l":
                    ar, off = lds_frag_addr(HOME[f][1], bp >> 1)
                    A(f"ds_write_b64 v{ar}, {v(PT+2*t,2)} offset:{off + 8*(bp & 1)}")
            A("s_waitcnt lgkmcnt(0)")
    toks = {}
    DEPTH = 4
    def flags1():
        A("v_mov_b32 v30, 0")
        A(f"buffer_load_dword v29, v30, {s(rDBG,4)}, 0 offen offset:{D_LN} sc1"); vm.issue()
        A(f"buffer_load_dword v31, v30, {s(rDBG,4)}, 0 offen offset:{D_INIT} sc1"); vm.issue()
    def flags2():
        A("v_readfirstlane_b32 s60, v29")
        A("v_readfirstlane_b32 s61, v31")
        A(f"v_lshlrev_b32 v30, 4, v{vL16}")
        A(f"s_mov_b32 s{sTmp}, {CNT + C_KV}")
        A(f"buffer_load_dword v29, v30, {s(rWS,4)}, s{sTmp} offen sc1"); vm.issue()
    if not dmaw:
        for bi in range(len(batches) + DEPTH):
            if bi >= DEPTH:
                vm.wait(toks[bi - DEPTH]); consume(bi - DEPTH)
            if bi == len(batches) - 5: flags1()
            if bi == len(batches) - 1: flags2()
            if bi == fill_at: fills()
            if bi == fill_at + DEPTH: arrive()
            if bi < len(batches): toks[bi] = issue(bi)
    else:
        STGB = L_W + 65536
        RA = 116
        RT = 120
        sM0w = 56
        A(f"""
        v_lshlrev_b32 v{vWv}, 13, v{vG}
        v_lshl_add_u32 v{vWv}, v{vC}, 4, v{vWv}
        s_lshl_b32 s{sTmp}, s{sH}, 8
        s_lshl_b32 s{sTmp2}, s{sW}, 20
        s_add_u32 s{sTmp}, s{sTmp}, s{sTmp2}
        v_add_u32 v{vWv}, s{sTmp}, v{vWv}
        v_lshlrev_b32 v{x0}, 10, v{vG}
        v_lshl_add_u32 v{x0}, v{vC}, 2, v{x0}
        s_lshl_b32 s{sTmp}, s{sW}, 6
        s_add_u32 s{sTmp}, s{sTmp}, {STGB}
        v_add_u32 v{x0}, s{sTmp}, v{x0}
        s_lshl_b32 s{sM0w}, s{sW}, 12
        s_add_u32 s{sM0w}, s{sM0w}, {STGB}
        """)
        for i in range(4):
            A(f"s_lshr_b32 s{sTmp}, s{sB+i}, 8")
            A(f"v_add_u32 v{RA+i}, s{sTmp}, v{x0}")
        chunks = [(m, b2, x, b0) for m in "qkv" for x in range(2) for b2 in range(2) for b0 in range(2)]
        def cissue(c):
            m, b2, x, b0 = chunks[c]
            if c % 8 == 0: srd(A, rW, {"q": 80, "k": 82, "v": 84}[m], 4 << 20)
            for g in range(4):
                A(f"s_add_u32 m0, s{sM0w}, {(c % 4)*16384 + g*1024}")
                A(f"s_mov_b32 s{sTmp}, {(64*b2 + 16*b0 + 4*x + 32*(g >> 1) + 8*(g & 1))*8192}")
                A(f"buffer_load_dwordx4 v{vWv}, {s(rW,4)}, s{sTmp} offen lds"); tok = vm.issue()
            return tok
        def cconsume(c):
            m, b2, x, b0 = chunks[c]
            for sp in range(4):
                for b1 in range(2):
                    dst = (PT if sp < 2 else RT - 8) + 4*sp + 2*b1
                    A(f"ds_read2st64_b32 {v(dst,2)}, v{RA+sp} offset0:{(c % 4)*64 + 2*b1} offset1:{(c % 4)*64 + 2*b1 + 1}")
            for sp in range(4):
                A(f"s_waitcnt lgkmcnt({6-2*sp})") if not wrote[0] else A("s_waitcnt lgkmcnt(0)")
                for b1 in range(2):
                    lo = (PT if sp < 2 else RT - 8) + 4*sp + 2*b1
                    be = 4*b2 + 2*b1 + b0
                    for t in range(2):
                        f = (m, t, 4*x + sp); tmp = PT + 8 + 2*b1 + t + 4*(sp & 1)
                        put(f, be, lo, lo+1, sPerm1 if t else sPerm0, tmp)
                        if HOME[f][0] == "l":
                            ar, off = lds_frag_addr(HOME[f][1], be >> 2)
                            A(f"ds_write_b32 v{ar}, v{tmp} offset:{off + 4*(be & 3)}"); wrote[0] = True
            wrote[0] = False
        wrote = [False]
        obs = [i for i, b in enumerate(batches) if b[0] == "o"]
        batches[:] = [batches[i] for i in obs]
        ct = {}
        for c in range(3): ct[c] = cissue(c)
        for c in range(24):
            vm.wait(ct[c])
            A("s_waitcnt lgkmcnt(0)")
            A("s_barrier")
            if c == 1: fills()
            if c == 4: arrive()
            if c + 3 < 24: ct[c+3] = cissue(c + 3)
            if c in wo_at: toks[wo_at.index(c)] = issue(wo_at.index(c))
            if c == 23: flags1()
            cconsume(c)
        A("s_waitcnt lgkmcnt(0)")
        A("s_barrier")
        for bi in range(8):
            vm.wait(toks[bi]); consume(bi)
            if bi == 4: flags2()
            if bi + 4 < 8: toks[bi+4] = issue(bi + 4)
        A("s_waitcnt vmcnt(0)")
    if stamps == 2: A("s_memrealtime s[94:95]")
    A(f"s_lshl_b32 s{sKV}, s{sH}, 14")
    A(f"s_lshl_b32 s{sTmp}, s{sW}, 11")
    A(f"s_add_u32 s{sKV}, s{sKV}, s{sTmp}")
    A(f"s_add_u32 s{sKV}, s{sKV}, {KV}")
    A(f"s_add_u32 s{sMK}, s{sTmp}, {L_KX}")
    A(f"s_add_u32 s{sMV}, s{sTmp}, {L_VX}")
    A(f"s_lshl_b32 s{sMV+1}, s{sH}, 14")
    A(f"s_add_u32 s{sMV+1}, s{sMV+1}, {KV + 8192}")
    A(f"s_add_u32 s{sPF}, s{sTmp}, {pfd*32*16384}")
    def dma(which, par, j):
        if j == 0:
            A(f"s_mov_b32 m0, s{sMK if which == 'k' else sMV + par}")
            if which == "v": A(f"s_add_u32 s{sTmp}, s{sKV}, 8192")
        A(f"buffer_load_dwordx4 v{vL16}, {s(rWS,4)}, s{sKV if which == 'k' else sTmp} offen offset:{1024*j} sc1 lds")
    def kv_wait(tag, ta, tb, need):
        A(f"""
        L_kvw{tag}:
        v_lshlrev_b32 v{ta}, 4, v{vL16}
        s_mov_b32 s{sTmp}, {CNT + C_KV}
        buffer_load_dword v{tb}, v{ta}, {s(rWS,4)}, s{sTmp} offen sc1
        s_waitcnt vmcnt(0)
        v_cmp_eq_u32 vcc, 32, v{tb}
        s_ff0_i32_b64 s{sRdy}, vcc
        s_add_u32 s{sG}, s{sG}, 1
        s_cmp_gt_u32 s{sG}, {SPIN}
        s_cbranch_scc1 L_team_end
        s_cmp_gt_u32 s{sRdy}, {need}
        s_cbranch_scc0 L_kvw{tag}
        """)
    A(f"s_mov_b32 s{sG}, 0")
    if kvchk:
        A(f"""
        v_cmp_eq_u32 vcc, 32, v29
        s_ff0_i32_b64 s{sRdy}, vcc
        s_cmp_ge_u32 s60, 64
        s_cselect_b32 s{sRdy}, s{sRdy}, 0
        s_cmp_lg_u32 s{sRdy}, 0
        s_cbranch_scc1 L_kv0ok
        v_mov_b32 v41, 0
        L_lnw:
        buffer_load_dword v40, v41, {s(rDBG,4)}, 0 offen offset:{D_LN} sc1
        s_waitcnt vmcnt(0)
        v_readfirstlane_b32 s{sTmp2}, v40
        s_add_u32 s{sG}, s{sG}, 1
        s_cmp_gt_u32 s{sG}, {SPIN}
        s_cbranch_scc1 L_team_end
        s_cmp_lt_u32 s{sTmp2}, 64
        s_cbranch_scc1 L_lnw
        """)
        kv_wait("0", 40, 41, "0")
        A.label("L_kv0ok")
    for j in range(2): A(f"buffer_load_dwordx4 {v(KST+4*j,4)}, v{vL16}, {s(rWS,4)}, s{sKV} offen offset:{1024*j} sc1")
    A(f"s_add_u32 s{sKV}, s{sKV}, {32*16384}")
    A(f"""
    s_cmp_ge_u32 s61, 32
    s_cbranch_scc1 L_init_wait
    s_cmp_lg_u32 s{sW}, 0
    s_cbranch_scc1 L_init_wait
    v_mov_b32 v41, 0
    s_mov_b32 s{sG}, 0
    L_init_poll:
    buffer_load_dword v40, v41, {s(rDBG,4)}, 0 offen offset:{D_INIT} sc1
    s_waitcnt vmcnt(0)
    v_readfirstlane_b32 s{sTmp}, v40
    s_add_u32 s{sG}, s{sG}, 1
    s_cmp_gt_u32 s{sG}, {SPIN}
    s_cbranch_scc1 L_init_wait
    s_cmp_lt_u32 s{sTmp}, 32
    s_cbranch_scc1 L_init_poll
    L_init_wait:
    s_waitcnt lgkmcnt(0)
    s_barrier
    s_mov_b32 s{sStep}, 0
    s_mov_b32 s{sG}, 0
    s_mov_b32 s{sRetA}, 0
    s_mov_b32 s{sRetB}, 0
    s_mov_b32 s{sRet2}, 0
    s_mov_b32 s{sC}, 0x3e0293ee
    v_mov_b32 v{VMR+1}, 0
    v_mov_b32 v{VMR+3}, 0
    s_lshl_b32 s{sRd2}, s{sW}, 17
    s_lshl_b32 s{sTmp}, s{sH}, 12
    s_add_u32 s{sRd2}, s{sRd2}, s{sTmp}
    """)
    import math, struct
    cval = struct.unpack("<I", struct.pack("<f", (128 ** -0.5) * math.log2(math.e)))[0]
    A(f"s_mov_b32 s{sC}, {cval:#x}")
    if stamps == 2:
        A("s_memrealtime s[96:97]")
        A("s_memtime s[76:77]"); A("s_waitcnt lgkmcnt(0)")
    assert not (stamps == 1 and fsl)
    if stamps == 1:
        for k in range(52, 100): A(f"s_mov_b32 s{k}, 0")

    lg = Cnt(A, "lgkmcnt", 15)
    staged = {}
    def stage(idx, reg):
        f = LDSF[idx]
        for p in range(2):
            ar, off = lds_frag_addr(idx, p)
            A(f"ds_read_b128 {v(reg+4*p,4)}, v{ar} offset:{off}"); tok = lg.issue()
        staged[f] = (reg, tok)
    waited = [0]
    def lwait(tok):
        if tok > waited[0]:
            lg.wait(tok); waited[0] = tok
    def sm(m, t, sl, acc, areg):
        f = (m, t, sl); kind, base = HOME[f]
        if kind == "l":
            reg, tok = staged.pop(f); lwait(tok); b = v(reg, 8)
        else:
            b = (a if kind == "a" else v)(base, 8)
        A(f"v_smfmac_f32_16x16x64_bf16 {v(acc,4)}, {v(areg,4)}, {b}, v{vIdx}")
    def dsr(dst, addr, off, n=4):
        A(f"ds_read_b{32*n} {v(dst,n)}, v{addr} offset:{off}"); return lg.issue()
    def dsw(addr, src, off, n=4):
        A(f"ds_write_b{32*n} v{addr}, {v(src,n)} offset:{off}"); return lg.issue()
    def chk(r, lab):
        A(f"v_max3_u32 v{vT0}, v{r}, v{r+1}, v{r+2}")
        A(f"v_max_u32 v{vT0}, v{vT0}, v{r+3}")
        A(f"v_cmp_eq_u32 vcc, -1, v{vT0}")
        A(f"s_cbranch_vccnz {lab}")
    qa = lambda t: ACCA + 4*t
    ka = lambda t: ACCB + 4*t
    ma = lambda sl: MEMA + 4*sl

    QB = POOL; FR = POOL + 16
    va = lambda t: ACCV + 4*t
    WA = MEMA
    wa = lambda t: WA + 4*t
    R2 = ma(5); SEL = ma(7); PUB = vT1; DD = ma(3)
    def stage1(idx, reg, p):
        f = LDSF[idx]
        ar, off = lds_frag_addr(idx, p)
        A(f"ds_read_b128 {v(reg+4*p,4)}, v{ar} offset:{off}"); tok = lg.issue()
        if p == 1: staged[f] = (reg, tok)
    G = lambda idx, reg, p: (lambda: stage1(idx, reg, p))
    def mf(d, a_, b_, first, k16=False):
        n = 2 if k16 else 4
        A(f"v_mfma_f32_16x16x{16 if k16 else 32}_bf16 {v(d,4)}, {v(a_,n)}, {v(b_,n)}, {0 if first else v(d,4)}")
    def slots(ms, fill):
        for i, m in enumerate(ms):
            m()
            if i < len(fill):
                for f in fill[i]: f()
        for fl in fill[len(ms):]:
            for f in fl: f()
    I = lambda txt: (lambda: A(txt))
    accf = {"q": qa, "k": ka, "v": va}
    SM = lambda m, t, sl, areg=None: (lambda: sm(m, t, sl, accf[m](t), ma(sl) if areg is None else areg))
    PRE = [(0, STG), (1, STG+8), (2, FR), (3, FR+8), (5, QB+8), (4, QB)]
    def chores(lo, hi):
        for idx, reg in PRE[lo:hi]: stage(idx, reg)
    def zero_accs():
        for i in range(0, 16, 2): A(f"v_mov_b64 {v(ACCA+i,2)}, 0")
        for i in range(0, 8, 2): A(f"v_mov_b64 {v(ACCV+i,2)}, 0")
    def set_neg():
        A(f"v_mov_b64 {v(NEG,2)}, -1"); A(f"v_mov_b64 {v(NEG+2,2)}, -1")
    def slot_offsets():
        A(f"""
        s_and_b32 s{sTmp}, s{sStep}, 3
        s_lshl_b32 s{sO1}, s{sTmp}, 13
        s_add_u32 s{sO1}, s{sO1}, {H1}
        s_add_u32 s{sO1b}, s{sO1}, 4096
        """)
    def ld1():
        A(f"buffer_load_dwordx4 {v(ma(0),4)}, v{vT16}, {s(rWS,4)}, s{sO1} offen sc1")
        A(f"buffer_load_dwordx4 {v(ma(4),4)}, v{vT16}, {s(rWS,4)}, s{sO1b} offen sc1")
    def ld2():
        for u in range(2):
            if u and g2: A(f"s_nop {g2-1}")
            A(f"buffer_load_dwordx4 {v(R2+4*u,4)}, v{vL16}, {s(rWS,4)}, s{sRd} offen offset:{1024*u} sc1")
    def delay(n):
        while n > 0:
            A(f"s_nop {min(n,16)-1}"); n -= 16
    chores(0, 6); zero_accs(); set_neg(); slot_offsets()
    A(f"s_mov_b32 s{sO2}, {H2}"); A(f"s_mov_b32 s{sO2b}, {H2 + (128<<10)}")
    A(f"s_add_u32 s{sRst1}, s{sPubO}, {2*8192}")
    A(f"s_and_b32 s{sTmp}, s{sW}, 1")
    A(f"s_lshl_b32 s{sRd2}, s{sTmp}, 17")
    A(f"s_lshl_b32 s{sTmp}, s{sH}, 12")
    A(f"s_add_u32 s{sRd2}, s{sRd2}, s{sTmp}")
    A(f"s_lshr_b32 s{sTmp}, s{sW}, 1")
    A(f"s_lshl_b32 s{sTmp}, s{sTmp}, 11")
    A(f"s_add_u32 s{sRd2}, s{sRd2}, s{sTmp}")
    pre_staged = dict(staged)
    sKf = 47
    A(f"s_mov_b32 s{sCm}, 0xcccccccc"); A(f"s_mov_b32 s{sCm+1}, 0xcccccccc")
    A(f"s_mov_b32 s{sKf}, 0")
    A(f"s_waitcnt vmcnt(0) lgkmcnt(0)")
    A(f"v_add_u32 v{vT0}, s{sMK}, v{vL16}")
    A(f"ds_write_b128 v{vT0}, {v(KST,4)}")
    A(f"ds_write_b128 v{vT0}, {v(KST+4,4)} offset:1024")
    def ldA(): A(f"buffer_load_dwordx4 {v(ma(0),4)}, v{vT16}, {s(rWS,4)}, s{sO1} offen sc1")
    def ldB(): A(f"buffer_load_dwordx4 {v(ma(4),4)}, v{vT16}, {s(rWS,4)}, s{sO1b} offen sc1")
    N1 = I("s_nop 1"); N0 = I("s_nop 0")
    if ea: ldA(); ldA()
    if shift is not None:
        A.raw(".p2align 6")
        for _ in range(shift): A("s_nop 0")
    for par in range(2):
        P = f"_{par}"
        LM = L_MEM; LK = L_KX
        st = stamp if par == 0 else (lambda n="": None)
        A.label("L_step" + P)
        if stamps == 1 and par == 0:
            stamp("top")
            A(f"s_cmp_ge_u32 s{sStep}, {nsteps-3}")
            A("s_cbranch_scc1 L_team_end")
        st("top2")
        def kxw():
            A(f"v_add_u32 v{vT0}, s{sMK}, v{vL16}")
            A(f"ds_write_b128 v{vT0}, {v(KST,4)}")
            A(f"ds_write_b128 v{vT0}, {v(KST+4,4)} offset:1024")
        staged.clear()
        zz = [I(f"v_mov_b64 {v(r_,2)}, 0") for r_ in list(range(ACCA, ACCA+16, 2)) + list(range(ACCV, ACCV+8, 2))] + [lambda: set_neg()]
        def zs(n):
            for _ in range(n):
                if zz: zz.pop(0)()
        rst = [I(f"s_xor_b32 s{sTmp}, s{sO2}, {256<<10}"), I(f"s_add_u32 s{sTmp}, s{sTmp}, s{sRst2}"),
               I(f"buffer_store_dwordx4 {v(NEG,4)}, v{vT16}, {s(rWS,4)}, s{sTmp} offen")]
        rst2 = [I(f"s_add_u32 s{sTmp}, s{sTmp}, {128<<10}"),
               I(f"buffer_store_dwordx4 {v(NEG,4)}, v{vT16}, {s(rWS,4)}, s{sTmp} offen"),
               I(f"buffer_store_dword v{NEG}, v{PUB}, {s(rWS,4)}, s{sRst1} offen")]
        pubg = [I(f"buffer_store_dword v{vPD}, v{PUB}, {s(rWS,4)}, s{sMG} offen sc1"), I(f"s_add_u32 s{sMG}, s{sMG}, 8192")]
        nothing = lambda: None
        if rt4:
            rst = [nothing]*3; rst2[0] = rst2[1] = nothing; zz.pop()
        if hseq[0] == "K": kxw()
        zs(z0); delay(dA)
        for ch in hseq:
            if ch == "A": ldA()
            elif ch == "y": zs(2)
            elif ch == "B": ldB()
            elif ch == "z": zs(99)
            elif ch == "_": delay(gapB)
            elif ch == ".": delay(gapAB)
            elif ch == "R":
                zs(99)
                for f in rst: f()
                rst = [nothing]*3
            elif ch == "S":
                for f in rst2[:2]: f()
                rst2[0] = rst2[1] = nothing
            elif ch == "r":
                if not rt4: zs(99)
                rst2[2](); rst2[2] = nothing
        zs(99)
        ops = [ch for ch in hseq if ch in "ABRSr"]
        wA = len(ops) - 1 - ops.index("A"); wB = len(ops) - 1 - ops.index("B")
        assert wB < wA
        waited[0] = lg.n
        staged.clear(); staged.update({f: (r, 0) for f, (r, t) in pre_staged.items()})
        r, q = ma(0), ma(4)
        if ea:
            A(f"s_mov_b32 s{sK}, 1")
            A(f"s_waitcnt vmcnt({nfl+1})")
            A(f"s_branch L_pollA2{P}") if False else None
        else:
            A.label("L_pollA" + P)
            A(f"s_waitcnt vmcnt({wA})")
        A.label("L_pollA2" + P)
        A(f"v_max3_u32 v{vT0}, v{r}, v{r+1}, v{r+2}")
        A(f"v_max_u32 v{vT0}, v{vT0}, v{r+3}")
        if not one: A(f"v_cmp_eq_u32 vcc, -1, v{vT0}")
        tt = {}
        def rd(key, dst, addr, off): return lambda: tt.__setitem__(key, dsr(dst, addr, off))
        kx = lambda i, dst: rd(("kx", i), dst, vL16, LK + 1024*i)
        W = lambda key: (lambda: lwait(tt[key]))
        WS = lambda idx: (lambda: lwait(staged[LDSF[idx]][1]))
        twa = dsw(vT16, r, LM)
        st("ok")
        bchk = [I(f"s_waitcnt vmcnt({wB})"), I(f"v_max3_u32 v{vT0}, v{q}, v{q+1}, v{q+2}"), I(f"v_max_u32 v{vT0}, v{vT0}, v{q+3}"), I(f"v_cmp_eq_u32 vcc, -1, v{vT0}")]
        kvu = []
        if one:
            slots([SM("q",0,0), SM("q",1,0), SM("k",0,0), SM("k",1,0), SM("v",0,0), SM("v",1,0)],
                  [[bchk[0], I(f"v_max3_u32 v{vT0}, v{vT0}, v{q}, v{q+1}")], [I(f"v_max3_u32 v{vT0}, v{vT0}, v{q+2}, v{q+3}")],
                   [lambda: tt.__setitem__("wb", dsw(vT16, q, LM + 4096)), bchk[3]], [], [I(f"s_cbranch_vccnz L_retryA{P}")],
                   [W("wb"), I("s_barrier"), rd(1, ma(1), vM1, LM)]] if hv == 0 else
                  [[bchk[0], I(f"v_max3_u32 v{vT0}, v{vT0}, v{q}, v{q+1}"), I(f"v_max3_u32 v{vT0}, v{vT0}, v{q+2}, v{q+3}")],
                   [lambda: tt.__setitem__("wb", dsw(vT16, q, LM + 4096)), bchk[3]], [], [I(f"s_cbranch_vccnz L_retryA{P}")],
                   [W("wb"), I("s_barrier"), rd(1, ma(1), vM1, LM)] if hv == 2 else [], [] if hv == 2 else [W("wb"), I("s_barrier"), rd(1, ma(1), vM1, LM)]])
            A.label("L_okB" + P)
            slots([SM("q",0,4), SM("q",1,4), SM("k",0,4), SM("k",1,4), SM("v",0,4), SM("v",1,4)],
                  [[rd(2, ma(2), vM2, LM)], [rd(3, ma(3), vM3, LM)], [rd(5, ma(5), vM1, LM+4096)], [kx(4, STG)], [kx(5, STG+4)], [W(1)]])
            mid = [SM("q",0,1), SM("q",1,1), SM("k",0,1), SM("k",1,1), SM("q",0,2), SM("q",1,2), SM("k",0,2), SM("k",1,2)]
        elif not ea:
            slots([SM("q",0,0), SM("q",1,0), SM("k",0,0), SM("k",1,0)],
                  [[], [I(f"s_cbranch_vccnz L_retryA{P}")] + bchk[:2], bchk[2:3], [lambda: lwait(twa), I("s_barrier"), bchk[3]]])
            st("barM")
            rd(1, ma(1), vM1, LM)()
            SM("v",0,0)()
            A(f"s_cbranch_vccnz L_retryB{P}")
            A.label("L_okB" + P)
            st("okB")
            tw = dsw(vT16, q, LM + 4096)
            slots([SM("v",1,0), SM("q",0,4), SM("q",1,4), SM("k",0,4), SM("k",1,4), SM("v",0,4), SM("v",1,4)],
                  [[rd(2, ma(2), vM2, LM)], [rd(3, ma(3), vM3, LM)], [kx(4, STG)], [kx(5, STG+4)], [], [lambda: lwait(tw), I("s_barrier")], [rd(5, ma(5), vM1, LM+4096)]])
            mid = [SM("q",0,1), SM("q",1,1), SM("k",0,1), SM("k",1,1), SM("q",0,2), SM("q",1,2), SM("k",0,2), SM("k",1,2)]
        else:
            slots([SM("q",0,0), SM("q",1,0)], [[], [I(f"s_cbranch_vccnz L_retryA{P}"), lambda: lwait(twa), I("s_barrier")]])
            st("barM")
            rd(1, ma(1), vM1, LM)()
            pre = [SM("k",0,0), SM("k",1,0), SM("v",0,0), SM("v",1,0), SM("q",0,1), SM("q",1,1), SM("k",0,1), SM("k",1,1), SM("q",0,2), SM("q",1,2)][:eb+3]
            fl = [[rd(2, ma(2), vM2, LM)], [rd(3, ma(3), vM3, LM)], [kx(4, STG)], [W(1)], [kx(5, STG+4)], [], [], [W(2)], [], []][:eb+3]
            fl[eb-1] = fl[eb-1] + bchk[:2]; fl[eb] = fl[eb] + bchk[2:3]; fl[eb+1] = fl[eb+1] + bchk[3:]
            slots(pre, fl)
            A(f"s_cbranch_vccnz L_retryB{P}")
            A.label("L_okB" + P)
            st("okB")
            tw = dsw(vT16, q, LM + 4096)
            allm = [SM("q",0,1), SM("q",1,1), SM("k",0,1), SM("k",1,1), SM("q",0,2), SM("q",1,2), SM("k",0,2), SM("k",1,2)][max(0, eb-1):]
            own = [SM("q",0,4), SM("q",1,4), SM("k",0,4), SM("k",1,4), SM("v",0,4), SM("v",1,4)]
            slots(own[:4], [[], [], [], [lambda: lwait(tw), I("s_barrier"), rd(5, ma(5), vM1, LM+4096)]])
            slots(own[4:], [[], []])
            mid = allm
        st("barB")
        bk = [I(x) for x in (
            f"s_add_u32 s{sStep}, s{sStep}, 1", f"s_add_u32 s{sRd}, s{sO2}, s{sRd2}", f"s_and_b32 s{sB}, s{sStep}, 3",
            f"s_lshl_b32 s{sB+1}, s{sB}, 13", f"s_add_u32 s{sO1}, s{sB+1}, {H1}", f"s_add_u32 s{sO1b}, s{sO1}, 4096",
            f"s_add_u32 s{sB+2}, s{sB+1}, s{sPubO}", f"s_xor_b32 s{sRst1}, s{sB+1}, {2<<13}", f"s_add_u32 s{sRst1}, s{sRst1}, s{sPubO}")]
        m0k = lambda: None
        dk = lambda j: I(f"buffer_load_dwordx4 {v(KST+4*j,4)}, v{vL16}, {s(rWS,4)}, s{sKV} offen offset:{1024*j} sc1")
        VX0, VX1 = ma(0), ma(4)
        lv = [I(f"buffer_load_dwordx4 {v(VX0,4)}, v{vT16}, {s(rWS,4)}, s{sMV+1} offen sc1"), I(f"s_add_u32 s{sTmp2}, s{sMV+1}, 4096"),
              I(f"buffer_load_dwordx4 {v(VX1,4)}, v{vT16}, {s(rWS,4)}, s{sTmp2} offen sc1"), I(f"s_add_u32 s{sMV+1}, s{sMV+1}, {32*16384}")]
        if "dma" in off: dk = lambda j: N0
        def kvbr():
            if kvchk:
                A(f"s_cmp_gt_u32 s{sRdy}, s{sStep}")
                A(f"s_cbranch_scc0 L_kvw{P}")
                A.label("L_kvok" + P)
        def kfissue():
            if not (kvchk and kfasync and par == 0): return
            A(f"""
            s_min_u32 s{sTmp}, s{sRdy}, 64
            s_lshl_b32 s{sTmp}, s{sTmp}, 8
            v_lshlrev_b32 v{VMR}, 4, v{vL16}
            s_add_u32 s{sTmp}, s{sTmp}, {CNT + C_KV}
            s_mov_b32 s{sKf}, s{sRdy}
            s_mov_b64 exec, 0xffff
            buffer_load_dword v{vPD}, v{VMR}, {s(rWS,4)}, s{sTmp} offen sc1
            s_mov_b64 exec, -1
            """)
        dmaseq = {ks: [m0k, kvbr], ks+1: [dk(0)], ks+3: [dk(1), I(f"s_add_u32 s{sKV}, s{sKV}, {32*16384}")]}
        slotno = [0]
        def slots2(ms, fill):
            fill = [list(f) for f in fill][:max(len(ms), max([i+1 for i, f in enumerate(fill) if f] + [0]))] + [[] for _ in range(len(ms) - len(fill))]
            for i in range(len(ms)):
                fill[i] = dmaseq.pop(slotno[0], []) + fill[i]; slotno[0] += 1
            slots(ms, fill)
        mm = mid + [SM("q",1,3), SM("k",0,3), SM("q",0,3), SM("k",1,3), SM("q",0,5), SM("q",1,5), SM("q",0,6), SM("q",1,6), SM("q",0,7), SM("q",1,7)]
        ff = [[rd(6, ma(6), vM2, LM+4096)] + lv[:2], [rd(7, ma(7), vM3, LM+4096), bk[0]], lv[2:], [W(3)] + rst[:2], [kx(6, STG+8)], [kx(7, STG+12)] + rst[2:], bk[1:3], [kx(0, FR)],
               [kx(1, FR+4)], rst2[:2], bk[3:6], [W(7), kx(2, FR+8)], rst2[2:], [kx(3, FR+12)], pubg, bk[6:9], [kfissue], []]
        if ea:
            nm_ = len(mm)
            ff = [[rd(6, ma(6), vM2, LM+4096)] + lv[:2], [rd(7, ma(7), vM3, LM+4096), bk[0]] , [kx(6, STG+8)] + lv[2:], [kx(7, STG+12)] + rst[:2], [kx(0, FR)] + rst[2:], [kx(1, FR+4)] + bk[1:3],
                  [kx(2, FR+8)] + bk[3:5], [kx(3, FR+12)] + rst2[:2], [bk[5]], rst2[2:], pubg, bk[6:9], [kfissue]]
            extra = ff[nm_:]; ff = ff[:nm_] + [[] for _ in range(nm_ - len(ff))]
            for x_ in extra: ff[-1] = ff[-1] + x_
            ff[nm_-7] = [W(7)] + ff[nm_-7]
            slotno[0] = 18 - nm_
        slots2(mm, ff)
        st("qdone")
        if trace and par == 0:
            A(f"""
            s_memrealtime s[52:53]
            s_memtime s[54:55]
            s_lshl_b32 s56, s{sStep}, 2
            s_waitcnt lgkmcnt(0)
            v_writelane_b32 v{vT0}, s52, 0
            v_writelane_b32 v{vT0}, s54, 1
            s_lshl_b32 s57, s{sH}, 10
            s_add_u32 s56, s56, s57
            s_add_u32 s56, s56, {RES + 65536 - 4}
            v_lshrrev_b32 v{QB}, 2, v{vL16}
            s_mov_b64 exec, 3
            buffer_store_dword v{vT0}, v{QB}, {s(rWS,4)}, s56 offen
            s_mov_b64 exec, -1
            """)
        def epi_ops(acc):
            return [I(f"v_add_f32 v{acc}, v{acc}, v{acc+2}"), I(f"v_add_f32 v{acc+1}, v{acc+1}, v{acc+3}"),
                    I(f"v_add_f32 v{acc+4}, v{acc+4}, v{acc+6}"), I(f"v_add_f32 v{acc+5}, v{acc+5}, v{acc+7}"),
                    I(f"v_cvt_pk_bf16_f32 v{acc}, v{acc}, v{acc+4}"), I(f"v_cvt_pk_bf16_f32 v{acc+1}, v{acc+1}, v{acc+5}")]
        e = epi_ops(ACCA); ek = epi_ops(ACCB)
        def w2(acc, o):
            A(f"ds_write2_b32 v{vQW}, v{acc}, v{acc+1} offset0:{o} offset1:{o + RS//4}"); tt["wk"] = lg.issue()
        slots2([SM("k",0,5), SM("k",0,6), SM("k",0,7), SM("k",1,5), SM("k",1,6), SM("k",1,7),
               SM("v",0,1), SM("v",1,1), SM("v",0,2), SM("v",1,2), SM("v",0,3), SM("v",1,3)][:6+min(vpre,6)] + [SM("v",0,5), SM("v",1,5)][:max(0,vpre-6)],
              {0: [[e[0]], [e[1]], [e[2]], [e[3]], [e[4]], [e[5]],
                   [lambda: w2(ACCA, 0), ek[0], ek[1]], [ek[2], ek[3]], [ek[4], ek[5], lambda: w2(ACCB, 72)], [], [], []],
               1: [[e[0]], [e[1]], [e[2]], [e[3]], [e[4]], [e[5]],
                   [lambda: w2(ACCA, 0), ek[0], ek[1]], [ek[2], ek[3], ek[4], ek[5], lambda: w2(ACCB, 72)], [], [], [], []],
               2: [[e[0]], [e[1]], [e[2]], [e[3]], [e[4], ek[0]], [e[5], ek[1]],
                   [lambda: w2(ACCA, 0), N1, N0, ek[2], ek[3], ek[4], ek[5], lambda: w2(ACCB, 72)], [], [], [], [], []]}[kep])
        lwait(tt["wk"]); A("s_barrier"); st("barQK")
        qr = lambda k: rd(("q", k), QB+4*k, vQR, L_Q + 64*k)
        KMR = ACCA
        kr = lambda k: rd(("km", k), KMR+4*k, vQR, L_K + 64*k)
        VXR = FR; OO = QB; LL = QB + 8; ONES = NEG
        ones = [I(f"v_mov_b32 v{ONES+i}, 0x3f803f80") for i in range(4)]
        nvm = 3 + (1 if kvchk and kfasync and par == 0 else 0) + (1 if trace and par == 0 else 0) - 2*("dma" in off)
        assert ks >= 15
        qr(0)()
        post = [SM("v",0,3), SM("v",1,3)][2-max(0,6-vpre):] + [SM("v",0,5), SM("v",1,5), SM("v",0,6), SM("v",1,6), SM("v",0,7), SM("v",1,7)][max(0,vpre-6):]
        pf_ = [[qr(1), ones[0]], [qr(2), ones[1]], [qr(3), ones[2]], [kr(0), ones[3]], [kr(1)], [kr(2)]]
        while len(pf_) > len(post):
            x_ = pf_.pop(); pf_[-1] = x_ + pf_[-1]
        pf_ += [[] for _ in range(len(post) - len(pf_))]
        pf_[-1] = pf_[-1] + [W(("q",1))]
        slots2(post, pf_)
        st("vdone")
        Sx = lambda t, k: (lambda: (lwait(tt[("q", k)]), mf(S+4*t, (FR if t == 0 else STG) + 4*k, QB+4*k, k == 0)))
        Sm = lambda k: (lambda: (lwait(tt[("km", k)]), mf(S+8, KMR+4*k, QB+4*k, k == 0)))
        ve = []
        for t in range(2):
            ve += [I(f"v_add_f32 v{va(t)}, v{va(t)}, v{va(t)+2}"), I(f"v_add_f32 v{va(t)+1}, v{va(t)+1}, v{va(t)+3}"),
                   I(f"v_cvt_pk_bf16_f32 v{VMR+2*t}, v{va(t)}, v{va(t)+1}")]
        zw = [I(f"v_mov_b64 {v(WA+i,2)}, 0") for i in range(0, 32, 2)]
        slots2([Sx(0,0), Sx(1,0), Sx(0,1), Sx(1,1), Sx(0,2), Sx(1,2), Sx(0,3), Sx(1,3), Sm(0), Sm(1), Sm(2), Sm(3)],
              [[kr(3)], [ve[0], ve[1]], [ve[2], ve[3]], [W(("q",3)), ve[4]],
               [G(11, FR, 0), ve[5]], [G(11, FR, 1)],
               [G(6, STG, 0)], [W(("km",3)), G(6, STG, 1)], [G(7, FR+8, 0), I(f"v_max3_f32 v{vT0}, v{S}, v{S+1}, v{S+2}")],
               [I(f"v_max3_f32 v{vT0}, v{vT0}, v{S+3}, v{S+4}"), I(f"v_max3_f32 v{vT0}, v{vT0}, v{S+5}, v{S+6}")],
               [G(7, FR+8, 1), I(f"v_max_f32 v{vT0}, v{vT0}, v{S+7}")],
               [G(9, ACCV, 0), zw[10], zw[11], G(9, ACCV, 1), zw[12], zw[13], zw[14]]])
        assert not dmaseq
        st("Smm")
        A(f"v_max3_f32 v{vT0}, v{vT0}, v{S+8}, v{S+9}")
        A(f"v_mov_b32 v{S+10}, v{vT0}")
        G(8, STG+8, 0)(); zw[15]()
        A(f"v_permlane32_swap_b32 v{vT0}, v{S+10}")
        A(f"v_max_f32 v{vT0}, v{vT0}, v{S+10}")
        A(f"v_mov_b32 v{S+10}, v{vT0}")
        G(8, STG+8, 1)()
        A(f"v_permlane16_swap_b32 v{vT0}, v{S+10}")
        A(f"v_max_f32 v{vT0}, v{vT0}, v{S+10}")
        A(f"v_mul_f32 v{S+10}, s{sC}, v{vT0}")
        for i in (8, 0, 2, 4, 6):
            A(f"v_pk_fma_f32 {v(S+i,2)}, {v(S+i,2)}, s[{sC}:{sC+1}], {v(S+10,2)} op_sel_hi:[1,0,0] neg_lo:[0,0,1] neg_hi:[0,0,1]")
        ex = lambda i: I(f"v_exp_f32 v{S+i}, v{S+i}")
        cv = lambda i: I(f"v_cvt_pk_bf16_f32 v{S+i}, v{S+2*i}, v{S+2*i+1}")
        ex(8)(); ex(9)(); ex(0)()
        A(f"v_cvt_pk_bf16_f32 v{S+8}, v{S+8}, v{S+9}"); A(f"v_mov_b32 v{S+9}, 0")
        ex(1)(); ex(2)()
        slots([lambda: mf(LL, ONES, S+8, True, True), lambda: mf(OO, VMR, S+8, True, True), lambda: mf(OO+4, VMR+2, S+8, True, True)],
              [[ex(3), cv(0)], [ex(4), ex(5)], [ex(6), ex(7), cv(1), cv(2), cv(3)]])
        st("exp")
        G(10, ACCB, 0)(); A(f"s_waitcnt vmcnt({nvm})")
        slots([lambda: mf(LL, ONES, S, False), lambda: mf(OO, VX0, S, False), lambda: mf(OO+4, VX1, S, False)],
              [[G(10, ACCB, 1), zw[4]], [zw[5], zw[6]], [zw[7]]])
        st("PV")
        A(f"v_rcp_f32 v{vT0}, v{LL}")
        zw[0]()
        if ob64:
            for b_ in (0, 4):
                for i in range(2): A(f"v_cndmask_b32 v{OO+b_+i}, v{OO+b_+i}, v{OO+b_+2+i}, s[{sCm}:{sCm+1}]")
                if b_ == 0:
                    for i in range(2): A(f"v_mul_f32 v{OO+i}, v{OO+i}, v{vT0}")
            A(f"v_pk_mul_f32 {v(OO+4,2)}, {v(OO+4,2)}, {v(vT0,2)} op_sel_hi:[1,0]")
            for i in range(2): A(f"v_cvt_pk_bf16_f32 v{OO+i}, v{OO+i}, v{OO+4+i}")
            tw = dsw(vOW, OO, L_O, 2)
        else:
            for i in range(4): A(f"v_mul_f32 v{OO+i}, v{OO+i}, v{vT0}")
            A(f"v_pk_mul_f32 {v(OO+4,2)}, {v(OO+4,2)}, {v(vT0,2)} op_sel_hi:[1,0]")
            A(f"v_pk_mul_f32 {v(OO+6,2)}, {v(OO+6,2)}, {v(vT0,2)} op_sel_hi:[1,0]")
            for i in range(4): A(f"v_cvt_pk_bf16_f32 v{OO+i}, v{OO+i}, v{OO+4+i}")
            tw = dsw(vOW, OO, L_O)
        st("owr")
        for f in (zw[1], zw[2], zw[3], zw[8], zw[9])[:nzo]: f()
        FR_ = [NEG, NEG+1, NEG+2, NEG+3, vT0][:len(fsl)]
        if fsl:
            A(f"v_mov_b32 v{VMR}, s{sStep}")
            A(f"v_bfe_u32 v{VMR+2}, v{vL16}, 2, 5")
            A(f"v_lshlrev_b32 v{vT0}, 4, v{vL16}")
            A(f"s_mul_i32 s{sK+1}, s{sStep}, 0x01010101")
        lwait(tw); A("s_barrier"); st("barO")
        OA = ACCA
        to0 = dsr(OA, vOR, L_O)
        to = dsr(OA+4, vOR, L_O + 128)
        for f in (zw[1], zw[2], zw[3], zw[8], zw[9])[nzo:]: f()
        if fsl:
            A("s_mov_b64 exec, 0x3ff")
            A(f"buffer_store_byte v{VMR}, v{vT0}, {s(rWS,4)}, s{sFlS} offen")
            A("s_mov_b64 exec, -1")
        dmaseq.update({slotno[0] + sl: [I(f"buffer_load_dword v{FR_[i]}, v{VMR+2}, {s(rWS,4)}, s{sFl} offen offset:{256*i} sc1")] for i, sl in enumerate(fsl)})
        ad = lambda t: [I(f"v_add_f32 v{wa(t)}, v{wa(t)}, v{wa(t)+2}"), I(f"v_add_f32 v{wa(t)+1}, v{wa(t)+1}, v{wa(t)+3}")]
        cvp = lambda dst, t: [I(f"v_cvt_pk_bf16_f32 v{dst}, v{wa(t)}, v{wa(t+1)}"), I(f"v_cvt_pk_bf16_f32 v{dst+2}, v{wa(t)+1}, v{wa(t+1)+1}")]
        sto = lambda x, dst: [I(f"buffer_store_dwordx4 {v(dst,4)}, v{vSt2}, {s(rWS,4)}, s{sO2b if x else sO2} offen")]
        SO = lambda t, k: (lambda: sm("o", t, k, wa(t), OA+4*k))
        DA, DB = QB, QB + 4
        lwait(to0)
        st("ord")
        slots2([SO(t, k) for t in range(8) for k in range(2)],
              [[lambda: lwait(to), G(12, QB+8, 0)], [G(12, QB+8, 1)], [G(13, STG, 0)], [G(13, STG, 1), ad(0)[0]], [G(14, FR+8, 0), ad(0)[1]],
               [G(14, FR+8, 1), ad(1)[0]], [G(15, STG+8, 0), ad(1)[1]], [G(15, STG+8, 1), cvp(DA, 0)[0], cvp(DA, 0)[1]],
               [G(16, ACCV, 0)] + ad(2), [WS(13), G(16, ACCV, 1)] + ad(3), cvp(DA+1, 2), sto(0, DA) + [lambda: st("stA"), ad(4)[0]], [WS(15), ad(4)[1]],
               [WS(16)] + ad(5)[:1], ad(5)[1:], cvp(DB, 4) + ad(6)])
        for f in ad(7) + cvp(DB+1, 6) + sto(1, DB): f()
        st("stB")
        assert not staged, staged
        if bar1: A("s_barrier")
        st("bar1")
        dsr(SEL, vL16, L_ST)
        if rt4:
            A(f"s_add_u32 s{sO2}, s{sO2}, {256<<10}")
            A(f"s_and_b32 s{sO2}, s{sO2}, {768<<10}")
            A(f"s_add_u32 s{sO2b}, s{sO2}, {128<<10}")
            set_neg()
        else:
            A(f"s_xor_b32 s{sO2}, s{sO2}, {256<<10}")
            A(f"s_xor_b32 s{sO2b}, s{sO2b}, {256<<10}")
        def red_block(role, nr):
            T_ = f"{role}{P}"
            ne = 0
            if rt4:
                A(f"s_xor_b32 s{sTmp}, s{sO2}, {512<<10}")
                A(f"s_add_u32 s{sTmp}, s{sTmp}, s{sRst2}")
                A(f"buffer_store_dwordx4 {v(NEG,4)}, v{vT16}, {s(rWS,4)}, s{sTmp} offen")
                A(f"s_add_u32 s{sTmp}, s{sTmp}, {128<<10}")
                A(f"buffer_store_dwordx4 {v(NEG,4)}, v{vT16}, {s(rWS,4)}, s{sTmp} offen")
                ne = 2
            if kxe or "K" in hseq:
                A("s_waitcnt lgkmcnt(0)")
            else:
                A(f"s_waitcnt vmcnt({2*nr+2+ne})")
                kxw()
                A("s_waitcnt lgkmcnt(2)")
            A.label("L_pipe2" + T_)
            if rsm:
                A(f"v_mov_b64 {v(DD,2)}, 0")
            for u in range(2):
                r = R2 + 4*u
                A(f"s_waitcnt vmcnt({2*nr-1-u+ne})")
                A(f"v_max3_u32 v{vT0}, v{r}, v{r+1}, {'v%d' % vT0 if u else 0}")
                A(f"v_max3_u32 v{vT0}, v{r+2}, v{r+3}, v{vT0}")
                if not rsm: mf(DD, SEL, r, u == 0)
            if rsm:
                A(f"v_smfmac_f32_16x16x64_bf16 {v(DD,4)}, {v(SEL,4)}, {v(R2,8)}, v{vIdx} abid:1")
            A(f"v_cmp_eq_u32 vcc, -1, v{vT0}")
            A("s_nop 5")
            A(f"s_cbranch_vccnz L_retryp{T_}")
            if ea and role == 1: ldA()
            for rot in (4, 8):
                A(f"v_add_f32_dpp v{DD}, v{DD}, v{DD} row_ror:{rot} row_mask:0xf bank_mask:0xf")
                A(f"v_add_f32_dpp v{DD+1}, v{DD+1}, v{DD+1} row_ror:{rot} row_mask:0xf bank_mask:0xf")
            A(f"v_cvt_pk_bf16_f32 v{vPD}, v{DD}, v{DD+1}")
            A(f"v_min_u32 v{vPD}, 0xfffffffe, v{vPD}")
            A(f"buffer_store_dword v{vPD}, v{PUB}, {s(rWS,4)}, s{sB+2} offen")
        def feval():
            if not fsl: return
            A("s_waitcnt vmcnt(2)")
            for i, r_ in enumerate(FR_): A(f"v_cmp_ne_u32 s[{sCm+2*i}:{sCm+2*i+1}], s{sK+1}, v{r_}")
            A(f"s_mov_b32 s{sK}, 0")
            for i in range(len(FR_)):
                A(f"s_cmp_lg_u64 s[{sCm+2*i}:{sCm+2*i+1}], 0")
                A(f"s_addc_u32 s{sK}, s{sK}, 0")
            if stamps: A(f"s_add_u32 s{sRetA}, s{sRetA}, s{sK}")
        def fdelay(tag):
            if not fsl: return
            A(f"""
            L_fd{tag}{P}:
            s_sub_u32 s{sK}, s{sK}, 1
            s_cbranch_scc1 L_fe{tag}{P}
            s_nop {fnop}
            s_branch L_fd{tag}{P}
            L_fe{tag}{P}:
            """)
        if kvchk and kfasync and par == 0:
            A(f"""
            s_waitcnt vmcnt(2)
            v_cmp_eq_u32 vcc, 32, v{vPD}
            s_min_u32 s{sKf}, s{sKf}, 64
            """)
        if kxe:
            A(f"v_add_u32 v{vT0}, s{sMK}, v{vL16}")
            A("s_waitcnt vmcnt(2)")
            A(f"ds_write_b128 v{vT0}, {v(KST,4)}")
        chores(0, 1)
        if kxe: A(f"ds_write_b128 v{vT0}, {v(KST+4,4)} offset:1024")
        if kvchk and kfasync and par == 0:
            A(f"""
            s_and_b32 s{sTmp}, vcc_lo, 0xffff
            s_ff0_i32_b32 s{sTmp}, s{sTmp}
            s_add_u32 s{sTmp}, s{sTmp}, s{sKf}
            s_max_u32 s{sRdy}, s{sRdy}, s{sTmp}
            """)
        A(f"s_bitcmp1_b32 s{sW}, 0")
        A(f"s_cbranch_scc1 L_tailB{P}")
        chores(1, cs[0][0]); delay(dR[0]); ld2(); st("ld2")
        chores(cs[0][0], ctl)
        if na > 1: delay(dR[1]); ld2()
        red_block(0, na)
        if ea:
            delay(dE); ldA(); delay(dE2); ldA()
        A(f"s_branch L_tailj{P}")
        A.label(f"L_tailB{P}")
        if par == 0 and stamps == 1:
            nst[0] -= 1; names.pop()
        chores(1, cs[1][0]); delay(dR[2]); ld2(); st("ld2")
        chores(cs[1][0], ctl)
        if n2 > 1: delay(dR[3]); ld2()
        if n2 > 2: delay(dR[3]); ld2()
        red_block(1, n2)
        A.label(f"L_tailj{P}")
        st("red")
        if bar2: A("s_barrier")
        if par == (nsteps & 1):
            A(f"s_cmp_eq_u32 s{sStep}, {nsteps-1}")
            A("s_cbranch_scc1 L_last")
        if par == 1: A("s_branch L_step_0")
        staged.clear()
    def retry(lab, cnt, body, back):
        A.label(lab)
        A("s_mov_b64 exec, vcc")
        body()
        A("s_mov_b64 exec, -1")
        A(f"s_add_u32 s{cnt}, s{cnt}, 1")
        A(f"s_add_u32 s{sG}, s{sG}, 1")
        A(f"s_cmp_gt_u32 s{sG}, {SPIN}")
        A(f"s_cbranch_scc1 L_team_end")
        if back: A(f"s_branch {back}")
    for par in range(2):
        P = f"_{par}"
        if bonly:
            retry("L_retryA" + P, sRetA, ldA, None)
            A("s_nop 3")
            for i in range(0, 8, 2): A(f"v_mov_b64 {v(ACCA+i,2)}, 0")
            A("s_waitcnt vmcnt(0)")
            A(f"s_branch L_pollA2{P}")
            retry("L_retryB" + P, sRetB, ldB, None)
            A(f"s_waitcnt vmcnt({nsets-1})")
        else:
            if ea:
                A.label("L_retryA" + P)
                A(f"s_cmp_eq_u32 s{sK}, 1")
                A(f"s_mov_b32 s{sK}, 0")
                A(f"s_cbranch_scc1 L_rA2{P}")
            retry(("L_retryAx" if ea else "L_retryA") + P, sRetA, ld1, None)
            A.label("L_rA2" + P)
            A("s_nop 6")
            for i in range(0, 16 if one else 8, 2): A(f"v_mov_b64 {v(ACCA+i,2)}, 0")
            if one and hv == 0:
                for i in range(0, 4, 2): A(f"v_mov_b64 {v(ACCV+i,2)}, 0")
            A(f"s_waitcnt vmcnt({wA})")
            A(f"s_branch L_pollA2{P}")
            retry("L_retryB" + P, sRetB, ld1, None)
            A(f"s_waitcnt vmcnt({wB})")
        chk(ma(4), "L_retryB" + P)
        A(f"s_branch L_okB{P}")
        retry("L_retryp0" + P, sRet2, ld2, "L_pipe20" + P)
        retry("L_retryp1" + P, sRet2, ld2, "L_pipe21" + P)
        if kvchk:
            kv_wait(P, vT0, VMR, f"s{sStep}")
            A(f"s_branch L_kvok{P}")
    A.label("L_last")
    A(f"buffer_store_dword v{vPD}, v{PUB}, {s(rWS,4)}, s{sMG} offen sc1")
    A("s_waitcnt vmcnt(0) lgkmcnt(0)")
    A.label("L_team_end")
    if stamps:
        if stamps == 2:
            A("s_memrealtime s[98:99]")
            A("s_memtime s[72:73]"); A("s_waitcnt lgkmcnt(0)")
            A("s_sub_u32 s72, s72, s76")
            vals = [72, sStep, sRetA, sRetB, sRet2, 76, 76, 76] + [90, 92, 94, 96, 98, 98, 98, 98]
        else:
            A("s_waitcnt lgkmcnt(0)")
            for c, (ra, rb) in enumerate(((44, 45), (46, 47))):
                A(f"""
                s_memrealtime s[16:17]
                s_waitcnt lgkmcnt(0)
                s_add_u32 s16, s16, {200 if c else 8}
                L_cal{c}:
                s_memrealtime s[18:19]
                s_memtime s[98:99]
                s_waitcnt lgkmcnt(0)
                s_cmp_lt_u32 s18, s16
                s_cbranch_scc1 L_cal{c}
                s_mov_b32 s{ra}, s18
                s_mov_b32 s{rb}, s98
                """)
            vals = [44, sStep, sRetA, sRetB, sRet2, 45, 46, 47] + list(range(52, 100, 2))
        A(f"s_lshl_b32 s{sTmp}, s{sH}, 2")
        A(f"s_add_u32 s{sTmp}, s{sTmp}, s{sW}")
        A(f"s_lshl_b32 s{sTmp}, s{sTmp}, 7")
        A(f"s_add_u32 s{sTmp}, s{sTmp}, {RES}")
        A("s_waitcnt vmcnt(0)")
        for i, r in enumerate(vals): A(f"v_mov_b32 v{16+i}, s{r}")
        A("v_mov_b32 v0, 0")
        A("s_mov_b64 exec, 1")
        for i in range(len(vals)//4): A(f"buffer_store_dwordx4 {v(16+4*i,4)}, v0, {s(rWS,4)}, s{sTmp} offen offset:{16*i}")
        if stamps == 2 and trace:
            A(f"""
            s_cmp_lg_u32 s{sH}, 0
            s_cbranch_scc1 L_nodbg
            s_cmp_lg_u32 s{sW}, 0
            s_cbranch_scc1 L_nodbg
            buffer_store_dword v24, v0, {s(rDBG,4)}, 0 offen offset:8 sc1
            buffer_store_dword v28, v0, {s(rDBG,4)}, 0 offen offset:12 sc1
            buffer_store_dword v20, v0, {s(rDBG,4)}, 0 offen offset:60 sc1
            buffer_store_dword v19, v0, {s(rDBG,4)}, 0 offen offset:56 sc1
            s_mov_b64 exec, 0xff
            v_lshlrev_b32 v40, 1, v{vL16}
            s_mov_b32 s{sTmp}, {RES + 65536}
            buffer_load_dword v41, v40, {s(rWS,4)}, s{sTmp} offen sc1
            v_lshrrev_b32 v40, 2, v{vL16}
            v_and_b32 v42, 16, v40
            v_lshrrev_b32 v42, 1, v42
            v_add_u32 v40, v40, v42
            s_waitcnt vmcnt(0)
            buffer_store_dword v41, v40, {s(rDBG,4)}, 0 offen offset:16 sc1
            L_nodbg:
            """)
    A("s_waitcnt vmcnt(0)")

def entry(A, diag):
    A(f"""
    {"s_memrealtime s[68:69]" if diag else ""}
    s_load_dwordx4 s[4:7], s[0:1], 104
    s_load_dwordx4 s[76:79], s[0:1], 0
    s_load_dwordx8 s[80:87], s[0:1], 16
    s_load_dwordx8 s[88:95], s[0:1], 64
    s_load_dwordx2 s[70:71], s[0:1], 96
    s_getreg_b32 s{sX}, hwreg(HW_REG_XCC_ID)
    s_and_b32 s{sX}, s{sX}, 7
    v_lshrrev_b32 v1, 6, v0
    v_readfirstlane_b32 s{sW}, v1
    s_waitcnt lgkmcnt(0)
    {"s_mov_b32 s3, s68" if diag else ""}
    """)

def gen_standalone(**kw):
    A = Asm()
    A.raw(f"; @launch grid=(256,1,1) block=(256,1,1) lds=163840")
    A.raw('.amdgcn_target "amdgcn-amd-amdhsa--gfx950"')
    A.raw(".text")
    kernel_begin(A, NAME + "_kernel")
    A(f"""
    s_cmp_ge_u32 s2, 256
    s_cbranch_scc1 L_end
    """)
    entry(A, True)
    srd(A, rWS, 6, WS_BYTES)
    srd(A, rDBG, 4, 256)
    spf = kw.pop("spf", 0)
    role_select(A, "L_pfw" if spf else "L_end")
    team(A, **kw)
    A.label("L_end")
    A("s_endpgm")
    if spf:
        A.label("L_pfw")
        A(f"""
        s_lshr_b32 s{sTmp}, s2, 6
        s_lshl_b32 s{sTmp}, s{sTmp}, 3
        s_add_u32 s{sTmp}, s{sTmp}, 16
        s_load_dwordx2 s[80:81], s[0:1], s{sTmp}
        s_and_b32 s{sTmp}, s2, 62
        s_lshl_b32 s{sTmp}, s{sTmp}, 16
        v_lshlrev_b32 v3, 4, v0
        s_waitcnt lgkmcnt(0)
        """)
        srd(A, rW, 80, 4 << 20)
        for i in range(32):
            A(f"buffer_load_dwordx4 v[{128+4*(i&7)}:{131+4*(i&7)}], v3, {s(rW,4)}, s{sTmp} offen")
            A(f"s_add_u32 s{sTmp}, s{sTmp}, 4096")
        A("s_waitcnt vmcnt(0)")
        A("s_endpgm")
    A.raw('.section .rodata,"a"')
    A.raw(descriptor(NAME + "_kernel", 512, 102, 256))
    global STAMP_NAMES
    STAMP_NAMES = A.stamp_names
    return A.text()

if __name__ == "__main__":
    open("team.s", "w").write(gen_standalone(stamps=2))
```

```python
from asmlib import *
import team as T
from team import (rWS, rDBG, rW, sX, sW, sH, sTmp, sTmp2, sG, sPerm0, sPerm1, SPIN, Cnt,
                  D_INIT, D_LN, D_MOE, D_MOEDONE, CNT, C_KV, C_O, XN, KV, QX, MEMG)
import struct, math
XB = 4 << 20
RL = 6 << 20
MOEP = (6 << 20) + (64 << 10)
OX = 68 << 20
NR = 4
NG = 6
NH = 32*NR; M0 = NH; O0 = NH + 16
f2u = lambda x: struct.unpack("<I", struct.pack("<f", x))[0]
sI, sHd, sR, sSeg, sPrev, sA, sBq, sC = 24, 28, 29, 30, 31, 32, 33, 34
rX, rOUT = 44, 48
DPP = " row_mask:0xf bank_mask:0xf"

def allreduce(A, op, regs, tmps):
    for ctrl in ("quad_perm:[1,0,3,2]", "quad_perm:[2,3,0,1]", "row_half_mirror", "row_mirror"):
        for r in regs: A(f"{op}_dpp v{r}, v{r}, v{r} {ctrl}{DPP}")
    for sw in (16, 32):
        for r, t in zip(regs, tmps): A(f"v_mov_b32 v{t}, v{r}")
        for r, t in zip(regs, tmps): A(f"v_permlane{sw}_swap_b32 v{r}, v{t}")
        for r, t in zip(regs, tmps): A(f"{op} v{r}, v{r}, v{t}")

def rnd_bf(A, r):
    A(f"v_cvt_pk_bf16_f32 v{r}, v{r}, v{r}")
    A(f"v_and_b32 v{r}, 0xffff0000, v{r}")

def unpack(A, lo, hi, src):
    A(f"v_lshlrev_b32 v{lo}, 16, v{src}")
    A(f"v_and_b32 v{hi}, 0xffff0000, v{src}")

def wait_dword(A, tag, off, target, ta, tb, sleep=2, srdn=rDBG, soff="0"):
    A(f"""
    s_cmp_lg_u32 s{sW}, 0
    s_cbranch_scc1 L_wd{tag}_ok
    v_mov_b32 v{ta}, 0
    L_wd{tag}:
    buffer_load_dword v{tb}, v{ta}, {s(srdn,4)}, {soff} offen offset:{off} sc1
    s_waitcnt vmcnt(0)
    v_readfirstlane_b32 s{sTmp}, v{tb}
    s_cmp_ge_u32 s{sTmp}, {target}
    s_cbranch_scc1 L_wd{tag}_ok
    s_sleep {sleep}
    s_add_u32 s{sG}, s{sG}, 1
    s_cmp_lt_u32 s{sG}, {SPIN}
    s_cbranch_scc1 L_wd{tag}
    L_wd{tag}_ok:
    s_barrier
    s_nop 1
    """)

def signal(A, tag, body, ta, tb, ret=False, srdn=rDBG):
    A(f"s_cmp_lg_u32 s{sW}, 0")
    A(f"s_cbranch_scc1 L_sig{tag}")
    A("s_mov_b64 exec, 1")
    body()
    A(f"buffer_atomic_add v{tb}, v{ta}, {s(srdn,4)}, 0 offen" + (" sc0" if ret else ""))
    A("s_mov_b64 exec, -1")
    A.label(f"L_sig{tag}")

def seg_signal(A, tag, sseg, base, ta, tb):
    def body():
        A(f"""
        s_lshl_b32 s{sTmp}, s{sseg}, 8
        s_add_u32 s{sTmp}, s{sTmp}, {CNT + base}
        v_mov_b32 v{ta}, s{sTmp}
        v_mov_b32 v{tb}, 1
        """)
    signal(A, tag, body, ta, tb, srdn=rWS)

vL16, vT16, vC, vG = 1, 2, 3, 4
WST = [False]
WPF = [True]
OPF = [True]
SLP = [6, 3]
OPN = [3]
OSC = ['']
NOP2 = [False]
PRE1 = [True]
HDMA = [True]
WPW = [4]
QLATE = [True]
NQE = [3]
def wstamp(A, k):
    if not WST[0]: return
    A("s_memrealtime s[96:97]")
    A("s_waitcnt lgkmcnt(0)")
    A(f"s_mov_b32 s{[72,73,74,75,98,99,100,101][k]}, s96")

def common(A):
    if WST[0]:
        A("s_mov_b32 s72, s3")
        for r in (73,74,75,98,99,100,101): A(f"s_mov_b32 s{r}, 0")
    wstamp(A, 1)
    A(f"""
    s_sub_u32 s{sI}, s{sH}, 32
    s_cmp_ge_u32 s{sI}, 224
    s_cbranch_scc1 L_end
    v_and_b32 v5, 63, v0
    v_and_b32 v{vC}, 15, v0
    v_lshrrev_b32 v{vG}, 4, v5
    v_lshlrev_b32 v{vL16}, 4, v5
    v_lshlrev_b32 v{vT16}, 4, v0
    s_mov_b32 s{sPerm0}, 0x05040100
    s_mov_b32 s{sPerm1}, 0x07060302
    s_mov_b32 s{sG}, 0
    s_waitcnt lgkmcnt(0)
    """)
    srd(A, rX, 76, 2 << 20)
    srd(A, rOUT, 70, 2 << 20)

def pf_wo(A, first):
    if not OPF[0]: return
    A(f"s_sub_u32 s{sTmp}, s{sI}, {first}")
    A(f"s_lshl_b32 s{sTmp}, s{sTmp}, 17")
    srd(A, 52, 86, 4 << 20)
    for i in range(32):
        A(f"buffer_load_dwordx4 v[{128+4*(i&7)}:{131+4*(i&7)}], v{vT16}, s[52:55], s{sTmp} offen")
        A(f"s_add_u32 s{sTmp}, s{sTmp}, 4096")

def ln(A):
    X, WR, F, Sg, Tm, Mb, WF = 16, 32, 40, 72, 76, 80, 84
    A(f"s_cmp_lt_u32 s{sI}, {O0+64}")
    A("s_cbranch_scc1 L_ln_go")
    pf_wo(A, O0 + 64 - 16)
    A("s_branch L_ln_done")
    A.label("L_ln_go")
    srd(A, rW, 88, 1024)
    A(f"s_sub_u32 s{sA}, s{sI}, {O0}")
    A(f"s_lshl_b32 s{sA}, s{sA}, 3")
    A(f"s_add_u32 s{sA}, s{sA}, s{sW}")
    A(f"s_lshl_b32 s{sBq}, s{sA}, 4")
    A(f"s_lshl_b32 s{sA}, s{sA}, 12")
    A(f"buffer_load_dwordx4 {v(WR,4)}, v{vL16}, {s(rW,4)}, 0 offen")
    for j in range(4): A(f"buffer_load_dwordx4 {v(X+4*j,4)}, v{vL16}, {s(rX,4)}, s{sA} offen offset:{1024*j}")
    A(f"s_add_u32 s{sTmp}, s{sA}, 16384")
    for j in range(4): A(f"buffer_load_dwordx4 {v(100+4*j,4)}, v{vL16}, {s(rX,4)}, s{sTmp} offen offset:{1024*j}")
    A(f"s_sub_u32 s{sTmp}, s{sI}, {O0}")
    A(f"s_lshl_b32 s{sTmp}, s{sTmp}, 8")
    A(f"s_add_u32 s{sTmp}, s{sTmp}, {CNT}")
    A(f"v_lshrrev_b32 v5, 2, v{vL16}")
    A("v_mov_b32 v6, 0")
    A(f"buffer_store_dword v6, v5, {s(rWS,4)}, s{sTmp} offen sc1")
    A(f"s_mov_b32 s{sSeg}, 0")
    if OPF[0]:
        A(f"s_sub_u32 s{sTmp2}, s{sI}, {O0}")
        A(f"s_lshl_b32 s{sTmp2}, s{sTmp2}, 16")
        for mi, base in enumerate((80, 82, 84)[:OPN[0]]):
            srd(A, 52, base, 4 << 20)
            A(f"s_mov_b32 s{sTmp}, s{sTmp2}")
            for i in range(16):
                A(f"buffer_load_dwordx4 v[{128+4*(i&7)}:{131+4*(i&7)}], v{vT16}, s[52:55], s{sTmp} offen")
                A(f"s_add_u32 s{sTmp}, s{sTmp}, 4096")
    A(f"s_waitcnt vmcnt({5 + (16*OPN[0] if OPF[0] else 0)})")
    A.label("L_ln_pass")
    R4 = range(4)
    for j in R4:
        for d in range(4): unpack(A, F+8*j+2*d, F+8*j+2*d+1, X+4*j+d)
        A(f"v_add_f32 v{Sg+j}, v{F+8*j}, v{F+8*j+1}")
        for e in range(2, 8): A(f"v_add_f32 v{Sg+j}, v{Sg+j}, v{F+8*j+e}")
    allreduce(A, "v_add_f32", [Sg+j for j in R4], [Tm+j for j in R4])
    for j in R4: A(f"v_mul_f32 v{Mb+j}, {f2u(1/512):#x}, v{Sg+j}")
    for j in R4:
        for e in range(8):
            A(f"v_sub_f32 v{Tm}, v{F+8*j+e}, v{Mb+j}")
            if e == 0: A(f"v_mul_f32 v{Sg+j}, v{Tm}, v{Tm}")
            else: A(f"v_fmac_f32 v{Sg+j}, v{Tm}, v{Tm}")
    allreduce(A, "v_add_f32", [Sg+j for j in R4], [Tm+j for j in R4])
    for j in R4:
        rnd_bf(A, Mb+j)
        A(f"v_mul_f32 v{Sg+j}, {f2u(1/512):#x}, v{Sg+j}")
        rnd_bf(A, Sg+j)
        A(f"v_add_f32 v{Sg+j}, {f2u(1e-5):#x}, v{Sg+j}")
        rnd_bf(A, Sg+j)
        A(f"v_sqrt_f32 v{Sg+j}, v{Sg+j}")
        rnd_bf(A, Sg+j)
        A(f"v_rcp_f32 v{Tm+j}, v{Sg+j}")
    for d in range(4): unpack(A, WF+2*d, WF+2*d+1, WR+d)
    Q, E, RA = 92, 94, 96
    for j in R4:
        for d in range(4):
            f = F + 8*j + 2*d
            A(f"v_sub_f32 v{f}, v{f}, v{Mb+j}")
            A(f"v_sub_f32 v{f+1}, v{f+1}, v{Mb+j}")
            A(f"v_cvt_pk_bf16_f32 v{Q}, v{f}, v{f+1}")
            unpack(A, f, f+1, Q)
            for u in range(2):
                A(f"v_mul_f32 v{Q+u}, v{f+u}, v{Tm+j}")
                A(f"v_fma_f32 v{E+u}, -v{Q+u}, v{Sg+j}, v{f+u}")
                A(f"v_fmac_f32 v{Q+u}, v{E+u}, v{Tm+j}")
            A(f"v_cvt_pk_bf16_f32 v{X+4*j+d}, v{Q}, v{Q+1}")
            unpack(A, f, f+1, X+4*j+d)
            if d == 0: A(f"v_mul_f32 v{RA+j}, v{f}, v{WF}")
            else: A(f"v_fmac_f32 v{RA+j}, v{f}, v{WF+2*d}")
            A(f"v_fmac_f32 v{RA+j}, v{f+1}, v{WF+2*d+1}")
        A(f"s_add_u32 s{sTmp}, s{sA}, {XN}")
        A(f"buffer_store_dwordx4 {v(X+4*j,4)}, v{vL16}, {s(rWS,4)}, s{sTmp} offen offset:{1024*j} sc1")
        A(f"s_add_u32 s{sTmp}, s{sA}, {XB}")
        A(f"buffer_store_dwordx4 {v(X+4*j,4)}, v{vL16}, {s(rWS,4)}, s{sTmp} offen offset:{1024*j} sc1")
    allreduce(A, "v_add_f32", [RA+j for j in R4], [Tm+j for j in R4])
    for j in R4: rnd_bf(A, RA+j)
    A(f"s_add_u32 s{sTmp}, s{sBq}, {RL}")
    A("s_mov_b64 exec, 1")
    A(f"buffer_store_dwordx4 {v(RA,4)}, v{vL16}, {s(rWS,4)}, s{sTmp} offen sc1")
    A("s_mov_b64 exec, -1")
    A(f"s_cmp_lg_u32 s{sSeg}, 0")
    A("s_cbranch_scc1 L_ln_fin")
    A(f"s_mov_b32 s{sSeg}, 1")
    A(f"s_add_u32 s{sA}, s{sA}, 16384")
    A(f"s_add_u32 s{sBq}, s{sBq}, 64")
    A(f"s_waitcnt vmcnt({10 + (16*OPN[0] if OPF[0] else 0)})")
    for i in range(0, 16, 2): A(f"v_mov_b64 {v(X+i,2)}, {v(100+i,2)}")
    A("s_branch L_ln_pass")
    A.label("L_ln_fin")
    A("s_waitcnt vmcnt(0)")
    A("s_barrier")
    signal(A, "ln", lambda: A(f"v_mov_b32 v5, {D_LN}\nv_mov_b32 v6, 1"), 5, 6)
    A.label("L_ln_done")
    wstamp(A, 2)

def load_frags(A, nb, issue8, home, TB, PT, depth=3):
    vm = Cnt(A, "vmcnt", 63); toks = {}
    for bi in range(nb + depth):
        if bi >= depth:
            b = bi - depth; Tt = TB[b % len(TB)]
            vm.wait(toks[b])
            for half in range(2):
                for t in range(2):
                    kind, base = home(b, half, t)
                    for r in range(4):
                        lo, hi = Tt + 8*half + 2*r, Tt + 8*half + 2*r + 1
                        sel = sPerm1 if t else sPerm0
                        if kind == "v": A(f"v_perm_b32 v{base+r}, v{hi}, v{lo}, s{sel}")
                        else:
                            A(f"v_perm_b32 v{PT+(r&1)}, v{hi}, v{lo}, s{sel}")
                            A(f"v_accvgpr_write_b32 a{base+r}, v{PT+(r&1)}")
        if bi < nb:
            for half in range(2):
                issue8(bi, half, TB[bi % len(TB)] + 8*half)
                for _ in range(8): toks[bi] = vm.issue()

def hrole(A):
    MI = {"k": 0, "v": 1, "q": 2}
    def wf(m, t, k):
        n = (MI[m]*16 + k)*2 + t
        return ("a", 4*n) if n < 64 else ("v", 128 + 4*(n-64))
    def wop(m, t, k):
        kind, base = wf(m, t, k)
        return (a if kind == "a" else v)(base, 4)
    vWa, vXs, vXB = 5, 6, 7
    A(f"""
    s_lshr_b32 s{sHd}, s{sI}, 2
    s_and_b32 s{sR}, s{sI}, 3
    ; W voffset = g*65536 + h*256 + 64w + 4c
    v_lshlrev_b32 v{vWa}, 16, v{vG}
    v_lshl_add_u32 v{vWa}, v{vC}, 2, v{vWa}
    s_lshl_b32 s{sTmp}, s{sHd}, 8
    s_lshl_b32 s{sTmp2}, s{sW}, 6
    s_add_u32 s{sTmp}, s{sTmp}, s{sTmp2}
    v_add_u32 v{vWa}, s{sTmp}, v{vWa}
    v_lshlrev_b32 v{vXs}, 10, v{vC}
    v_lshl_add_u32 v{vXs}, v{vG}, 4, v{vXs}
    s_lshr_b32 s{sTmp}, s{sW}, 1
    s_lshl_b32 s{sTmp}, s{sTmp}, 14
    s_and_b32 s{sTmp2}, s{sW}, 1
    s_lshl_b32 s{sTmp2}, s{sTmp2}, 9
    s_add_u32 s{sTmp}, s{sTmp}, s{sTmp2}
    v_add_u32 v{vXs}, s{sTmp}, v{vXs}
    v_mov_b32 v{vXB}, v{vL16}
    """)
    if WPF[0]:
        big = WPF[0] == 1
        A(f"""
        s_lshr_b32 s{sTmp}, s{sI}, {5 if big else 6}
        s_lshl_b32 s{sTmp}, s{sTmp}, 3
        s_add_u32 s{sTmp}, s{sTmp}, {16 if big else 24}
        s_load_dwordx2 s[68:69], s[0:1], s{sTmp}
        s_and_b32 s{sTmp}, s{sI}, {31 if big else 63}
        s_lshl_b32 s{sTmp}, s{sTmp}, {17 if big else 16}
        s_waitcnt lgkmcnt(0)
        """)
        srd(A, rW, 68, 4 << 20)
        for i in range(32 if big else 16):
            A(f"buffer_load_dwordx4 v[{128+4*(i&7)}:{131+4*(i&7)}], v{vT16}, {s(rW,4)}, s{sTmp} offen")
            A(f"s_add_u32 s{sTmp}, s{sTmp}, 4096")
        A(f"s_waitcnt vmcnt({WPW[0]})")
    mats = "kvq"
    def issue8(b, half, Tt):
        m = mats[b // 8]; k = 2*(b % 8) + half
        if b % 8 == 0 and half == 0: srd(A, rW, {"q": 80, "k": 82, "v": 84}[m], 4 << 20)
        for j in range(8):
            A(f"s_mov_b32 s{sTmp}, {(32*k + j)*8192}")
            A(f"buffer_load_dword v{Tt+j}, v{vWa}, {s(rW,4)}, s{sTmp} offen")
    if not HDMA[0]:
        load_frags(A, 24, issue8, lambda b, half, t: wf(mats[b // 8], t, 2*(b % 8) + half), [16, 32, 48], 64)
    else:
        NS = 6; SB = 65536; vS, vR0, vR1, sMw = 12, 13, 14, 36
        A(f"""
        v_lshlrev_b32 v{vS}, 13, v{vG}
        v_lshl_add_u32 v{vS}, v{vC}, 4, v{vS}
        s_lshl_b32 s{sTmp}, s{sHd}, 8
        s_lshl_b32 s{sTmp2}, s{sW}, 17
        s_add_u32 s{sTmp}, s{sTmp}, s{sTmp2}
        v_add_u32 v{vS}, s{sTmp}, v{vS}
        v_lshlrev_b32 v{vR0}, 11, v{vG}
        v_lshl_add_u32 v{vR0}, v{vC}, 2, v{vR0}
        s_lshl_b32 s{sTmp}, s{sW}, 6
        s_add_u32 s{sTmp}, s{sTmp}, {SB}
        v_add_u32 v{vR0}, s{sTmp}, v{vR0}
        v_add_u32 v{vR1}, {3*16384}, v{vR0}
        s_lshl_b32 s{sMw}, s{sW}, 12
        s_add_u32 s{sMw}, s{sMw}, {SB}
        """)
        vm = Cnt(A, "vmcnt", 63); ct = {}
        def cissue(c):
            if c % 8 == 0: srd(A, rW, {"q": 80, "k": 82, "v": 84}[mats[c // 8]], 4 << 20)
            for j in range(4):
                A(f"s_add_u32 m0, s{sMw}, {(c % NS)*16384 + j*1024}")
                A(f"s_mov_b32 s{sTmp}, {(64*(c % 8) + 4*j)*8192}")
                A(f"buffer_load_dwordx4 v{vS}, {s(rW,4)}, s{sTmp} offen lds"); tok = vm.issue()
            return tok
        def cstep(c, exact=True):
            if exact: vm.wait(ct[c])
            A("s_barrier")
            if c + NS - 1 < 24 and not (QLATE[0] and 16 <= c + NS - 1 <= 21): ct[c+NS-1] = cissue(c + NS - 1)
            ra = vR0 if (c % NS) < 3 else vR1; so = ((c % NS) % 3) * 64
            for i in range(8):
                o = so + 32*(i >> 2) + 2*(i & 3)
                A(f"ds_read2st64_b32 {v(16+2*i,2)}, v{ra} offset0:{o} offset1:{o+1}")
            for i in range(8):
                if i % 2 == 0: A(f"s_waitcnt lgkmcnt({6-i})")
                for t in range(2):
                    kind, base = wf(mats[c // 8], t, 2*(c % 8) + (i >> 2))
                    sel = sPerm1 if t else sPerm0
                    if kind == "v": A(f"v_perm_b32 v{base+(i&3)}, v{17+2*i}, v{16+2*i}, s{sel}")
                    else:
                        A(f"v_perm_b32 v{32+t}, v{17+2*i}, v{16+2*i}, s{sel}")
                        A(f"v_accvgpr_write_b32 a{base+(i&3)}, v{32+t}")
        for c in range(NS - 1): ct[c] = cissue(c)
        for c in range(16 if QLATE[0] else 24): cstep(c)
    wstamp(A, 3)
    wait_dword(A, "ln", D_LN, 64, 8, 9)
    wstamp(A, 4)
    sM0 = 35
    def dma_x(sseg):
        A(f"s_lshl_b32 s{sTmp}, s{sseg}, 15")
        A(f"s_add_u32 s{sTmp}, s{sTmp}, {XN}")
        A(f"s_mov_b32 m0, s{sM0}")
        for k in range(8):
            if k: A(f"s_add_u32 m0, m0, 960")
            A(f"buffer_load_dwordx4 v{vXs}, {s(rWS,4)}, s{sTmp} offen offset:{64*k} sc1 lds")
        A(f"s_xor_b32 s{sM0}, s{sM0}, 32768")
    A(f"s_lshl_b32 s{sM0}, s{sW}, 13")
    A(f"s_mov_b32 s{sSeg}, s{sR}")
    A(f"s_mov_b32 s{sPrev}, 64")
    dma_x(sSeg)
    if QLATE[0]:
        for c in range(16, 16 + NQE[0]): cissue(c)
    ACC, XF, PK = 16, 64, 80
    acc = lambda tile, m, t: ACC + 4*((tile*3 + MI[m])*2 + t)
    A(f"s_waitcnt vmcnt({4*NQE[0] if QLATE[0] else 0})")
    A.label("L_p1")
    A("s_barrier")
    A.label("L_p1b")
    A(f"s_add_u32 s{sA}, s{sSeg}, {NR}")
    A(f"s_cmp_ge_u32 s{sA}, 64")
    A(f"s_cselect_b32 s{sA}, s{sSeg}, s{sA}")
    dma_x(sA)
    lg = Cnt(A, "lgkmcnt", 15); tk = {}
    def rdx(i):
        A(f"ds_read_b128 {v(XF+4*(i&3),4)}, v{vXB} offset:{1024*(i&31)}"); tk[i] = lg.issue()
    for i in range(3): rdx(i)
    A(f"s_lshl_b32 s{sA}, s{sSeg}, 5")
    A(f"s_add_u32 s{sA}, s{sA}, s{sHd}")
    A(f"s_lshl_b32 s{sBq}, s{sA}, 13")
    A(f"s_add_u32 s{sBq}, s{sBq}, {QX}")
    A(f"s_lshl_b32 s{sA}, s{sA}, 14")
    A(f"s_add_u32 s{sA}, s{sA}, {KV}")
    def st_t(m, tile, pk, sbase):
        for i in range(4): A(f"v_cvt_pk_bf16_f32 v{pk+i}, v{acc(tile,m,0)+i}, v{acc(tile,m,1)+i}")
        A(f"s_add_u32 s{sTmp}, s{sbase}, {4096*tile}")
        A(f"buffer_store_dwordx4 {v(pk,4)}, v{vT16}, {s(rWS,4)}, s{sTmp} offen" + (" sc1" if m == "k" else ""))
    def st_v(t):
        pk = PK + 12 + 4*t
        for tile in range(2):
            for u in range(2): A(f"v_cvt_pk_bf16_f32 v{pk+2*tile+u}, v{acc(tile,'v',t)+2*u}, v{acc(tile,'v',t)+2*u+1}")
        A(f"s_add_u32 s{sTmp}, s{sA}, {8192 + 4096*t}")
        A(f"buffer_store_dwordx4 {v(pk,4)}, v{vT16}, {s(rWS,4)}, s{sTmp} offen sc1")
    for i in range(64):
        tile, k = (i >> 4) & 1, i & 15
        lg.wait(tk[i])
        xf = v(XF+4*(i&3), 4)
        n = 0
        for m in ("kv" if i < 32 else "q"):
            for t in range(2):
                d = v(acc(tile, m, t), 4); c = 0 if k == 0 else d
                if m == "v": A(f"v_mfma_f32_16x16x32_bf16 {d}, {xf}, {wop(m,t,k)}, {c}")
                else: A(f"v_mfma_f32_16x16x32_bf16 {d}, {wop(m,t,k)}, {xf}, {c}")
                n += 1
                if n == 1 and i + 3 < 64: rdx(i + 3)
        if i == 17: st_t("k", 0, PK, sA)
        if i == 31:
            st_t("k", 1, PK+8, sA); st_v(0); st_v(1)
            if QLATE[0]:
                A(f"s_cmp_lt_u32 s{sSeg}, {NR}")
                A("s_cbranch_scc1 L_qload")
                A.label("L_qload_ret")
        if i == 49: st_t("q", 0, PK+4, sBq)
    st_t("q", 1, PK+20, sBq)
    A(f"v_xor_b32 v{vXB}, 0x8000, v{vXB}")
    A("s_waitcnt vmcnt(2)")
    A("s_barrier")
    if QLATE[0]:
        A(f"s_cmp_lt_u32 s{sSeg}, {NR}")
        A("s_cbranch_scc1 L_sigkv2")
    seg_signal(A, "kv2", sSeg, C_KV, 8, 9)
    if WST[0] and not QLATE[0]:
        A(f"s_cmp_ge_u32 s{sSeg}, {NR}")
        A("s_cbranch_scc1 L_nost2")
        wstamp(A, 2)
        A.label("L_nost2")
    A(f"s_add_u32 s{sSeg}, s{sSeg}, {NR}")
    A(f"s_cmp_lt_u32 s{sSeg}, 64")
    A("s_cbranch_scc1 L_p1b")
    A("s_waitcnt vmcnt(0)")
    A("s_barrier")
    A.label("L_p1_done")
    wstamp(A, 5)
    if NOP2[0]: A("s_branch L_end")
    RSM = 1056; L_MN = 0; L_KM = 8704; L_VM = L_KM + 4096
    vMW, vMR, vNI, vVR, vVW = 5, 6, 7, 8, 9
    sMask = 52
    sQo, sVo, sOo = 36, 37, 38
    A(f"""
    ; row(c)
    v_lshrrev_b32 v10, 2, v{vC}
    v_and_b32 v11, 1, v{vC}
    v_lshl_add_u32 v10, v10, 1, v11
    v_mul_u32_u24 v10, {RSM}, v10
    v_lshl_add_u32 v{vMR}, v{vG}, 4, v10
    v_lshl_add_u32 v{vMW}, v{vG}, 6, v10
    v_and_b32 v11, 2, v{vC}
    v_lshl_add_u32 v{vMW}, v11, 4, v{vMW}
    s_lshl_b32 s{sTmp}, s{sW}, 8
    v_add_u32 v{vMW}, s{sTmp}, v{vMW}
    v_mov_b32 v{vNI}, 0xff800000
    v_lshrrev_b32 v{vVW}, 1, v{vT16}
    v_lshrrev_b32 v{vVR}, 1, v{vL16}
    s_and_b32 s{sTmp}, s{sW}, 2
    s_lshl_b32 s{sVo}, s{sTmp}, 10
    s_lshl_b32 s{sTmp}, s{sTmp}, 9
    v_add_u32 v{vVR}, s{sTmp}, v{vVR}
    s_and_b32 s{sTmp}, s{sW}, 1
    s_lshl_b32 s{sQo}, s{sTmp}, 12
    s_lshl_b32 s{sOo}, s{sTmp}, 17
    s_add_u32 s{sOo}, s{sOo}, s{sVo}
    s_lshl_b32 s{sTmp2}, s{sHd}, 12
    s_add_u32 s{sOo}, s{sOo}, s{sTmp2}
    s_add_u32 s{sOo}, s{sOo}, {OX}
    s_lshl_b32 s{sTmp}, s{sTmp}, 4
    v_lshlrev_b32 v10, 2, v{vG}
    v_sub_u32 v10, v{vC}, v10
    v_add_u32 v10, s{sTmp}, v10
    s_mov_b32 s{sC}, {f2u((128 ** -0.5) * math.log2(math.e)):#x}
    """)
    for t in range(2):
        for i in range(4): A(f"v_cmp_le_i32 s[{sMask+2*(4*t+i)}:{sMask+2*(4*t+i)+1}], {16*t+i}, v10")
    wait_dword(A, "init", D_INIT, 32, 10, 11)
    QF, KF, VF, S, AM, MF = 16, 32, 64, 80, 92, 108
    t0, t1 = 10, 11
    A(f"s_mov_b32 s{sSeg}, s{sR}")
    A.label("L_p2")
    A(f"""
    s_lshl_b32 s{sA}, s{sSeg}, 5
    s_add_u32 s{sA}, s{sA}, s{sHd}
    s_lshl_b32 s{sBq}, s{sA}, 13
    s_add_u32 s{sBq}, s{sBq}, {QX}
    s_add_u32 s{sBq}, s{sBq}, s{sQo}
    s_lshl_b32 s{sA}, s{sA}, 14
    s_add_u32 s{sA}, s{sA}, {KV}
    """)
    for k in range(4): A(f"buffer_load_dwordx4 {v(QF+4*k,4)}, v{vL16}, {s(rWS,4)}, s{sBq} offen offset:{1024*k} sc1")
    for i in range(8):
        if i == 4: A(f"s_add_u32 s{sA}, s{sA}, 4096")
        A(f"buffer_load_dwordx4 {v(KF+4*i,4)}, v{vL16}, {s(rWS,4)}, s{sA} offen offset:{1024*(i&3)} sc1")
    A(f"s_add_u32 s{sA}, s{sA}, s{sVo}")
    for t in range(2):
        A(f"s_add_u32 s{sA}, s{sA}, 4096")
        for wp in range(2): A(f"buffer_load_dwordx4 {v(VF+4*(2*wp+t),4)}, v{vL16}, {s(rWS,4)}, s{sA} offen offset:{1024*wp} sc1")
    A("s_waitcnt vmcnt(4)")
    for k in range(4):
        for t in range(2):
            A(f"v_mfma_f32_16x16x32_bf16 {v(S+4*t,4)}, {v(KF+16*t+4*k,4)}, {v(QF+4*k,4)}, {v(S+4*t,4) if k else 0}")
    A(f"s_lshl_b32 s{sA}, s{sSeg}, 13")
    A(f"s_add_u32 s{sA}, s{sA}, {MEMG}")
    A(f"s_add_u32 s{sBq}, s{sA}, 4096")
    for i in range(8): A(f"v_cndmask_b32 v{S+i}, v{vNI}, v{S+i}, s[{sMask+2*i}:{sMask+2*i+1}]")
    A(f"v_max3_f32 v12, v{S}, v{S+1}, v{S+2}")
    A(f"v_max3_f32 v12, v12, v{S+3}, v{S+4}")
    A(f"v_max3_f32 v12, v12, v{S+5}, v{S+6}")
    A(f"v_max_f32 v12, v12, v{S+7}")
    if PRE1[0]:
        A(f"""
        s_cmp_lg_u32 s{sW}, 0
        s_cbranch_scc1 L_p2_pre_ok
        v_mov_b32 v{t1}, 0
        s_sub_u32 s{sPrev}, s{sA}, 4096
        s_max_u32 s{sPrev}, s{sPrev}, {MEMG}
        L_p2_pre:
        buffer_load_dword v{t0}, v{t1}, {s(rWS,4)}, s{sPrev} offen sc1
        s_waitcnt vmcnt(0)
        v_cmp_eq_u32 vcc, -1, v{t0}
        s_cbranch_vccz L_p2_pre_ok
        s_sleep {SLP[0]}
        s_add_u32 s{sG}, s{sG}, 1
        s_cmp_lt_u32 s{sG}, {SPIN}
        s_cbranch_scc1 L_p2_pre
        L_p2_pre_ok:
        s_barrier
        """)
    A.label("L_p2_poll")
    A(f"buffer_load_dwordx4 {v(MF,4)}, v{vT16}, {s(rWS,4)}, s{sA} offen sc1")
    A(f"buffer_load_dwordx4 {v(MF+4,4)}, v{vT16}, {s(rWS,4)}, s{sBq} offen sc1")
    A(f"""
    s_waitcnt vmcnt(0)
    v_max3_u32 v{t0}, v{MF}, v{MF+1}, v{MF+2}
    v_max3_u32 v{t0}, v{t0}, v{MF+3}, v{MF+4}
    v_max3_u32 v{t0}, v{t0}, v{MF+5}, v{MF+6}
    v_max_u32 v{t0}, v{t0}, v{MF+7}
    v_cmp_eq_u32 vcc, -1, v{t0}
    s_cbranch_vccz L_p2_got
    s_sleep {2 if PRE1[0] else SLP[0]}
    s_add_u32 s{sG}, s{sG}, 1
    s_cmp_lt_u32 s{sG}, {SPIN}
    s_cbranch_scc1 L_p2_poll
    s_branch L_end
    L_p2_got:
    """)
    wstamp(A, 6)
    A(f"""
    ds_write2_b64 v{vMW}, {v(MF,2)}, {v(MF+2,2)} offset0:0 offset1:2
    ds_write2_b64 v{vMW}, {v(MF+4,2)}, {v(MF+6,2)} offset0:1 offset1:3
    s_waitcnt lgkmcnt(0)
    s_barrier
    """)
    lg = Cnt(A, "lgkmcnt", 15); tk = {}
    def rdm(k):
        A(f"ds_read_b128 {v(MF+4*(k&3),4)}, v{vMR} offset:{L_MN+64*k}"); tk[k] = lg.issue()
    for k in range(3): rdm(k)
    for k in range(16):
        lg.wait(tk[k]); xf = v(MF+4*(k&3), 4)
        for n, (m, t) in enumerate((("k",0),("k",1),("v",0),("v",1))):
            d = v(AM+4*n, 4); c = 0 if k == 0 else d
            if m == "v": A(f"v_mfma_f32_16x16x32_bf16 {d}, {xf}, {wop(m,t,k)}, {c}")
            else: A(f"v_mfma_f32_16x16x32_bf16 {d}, {wop(m,t,k)}, {xf}, {c}")
            if n == 0 and k + 3 < 16: rdm(k + 3)
    for i in range(4): A(f"v_cvt_pk_bf16_f32 v{AM+i}, v{AM+i}, v{AM+4+i}")
    A(f"ds_write_b128 v{vT16}, {v(AM,4)} offset:{L_KM}")
    A(f"v_cvt_pk_bf16_f32 v{AM+8}, v{AM+8}, v{AM+9}")
    A(f"v_cvt_pk_bf16_f32 v{AM+9}, v{AM+12}, v{AM+13}")
    A(f"ds_write_b64 v{vVW}, {v(AM+8,2)} offset:{L_VM}")
    KM, VMp, ONES, OO, LL = KF, KF+16, KF+24, AM, MF
    for i in range(4): A(f"v_mov_b32 v{ONES+i}, 0x3f803f80")
    A("s_waitcnt lgkmcnt(0)")
    A("s_barrier")
    for k in range(4): A(f"ds_read_b128 {v(KM+4*k,4)}, v{vL16} offset:{L_KM+1024*k}")
    for wp in range(2):
        for t in range(2):
            A(f"ds_read_b32 v{VMp+2*(2*wp+t)}, v{vVR} offset:{L_VM+512*wp+4*t}")
            A(f"v_mov_b32 v{VMp+2*(2*wp+t)+1}, 0")
    for k in range(4):
        A(f"s_waitcnt lgkmcnt({7-k})")
        A(f"v_mfma_f32_16x16x32_bf16 {v(S+8,4)}, {v(KM+4*k,4)}, {v(QF+4*k,4)}, {v(S+8,4) if k else 0}")
    A(f"v_max3_f32 v{t0}, v12, v{S+8}, v{S+9}")
    for sw in (32, 16):
        A(f"v_mov_b32 v{t1}, v{t0}")
        A(f"v_permlane{sw}_swap_b32 v{t0}, v{t1}")
        A(f"v_max_f32 v{t0}, v{t0}, v{t1}")
    A(f"v_mul_f32 v{t0}, s{sC}, v{t0}")
    for i in range(10): A(f"v_fma_f32 v{S+i}, v{S+i}, s{sC}, -v{t0}")
    for i in range(10): A(f"v_exp_f32 v{S+i}, v{S+i}")
    for i in range(4): A(f"v_cvt_pk_bf16_f32 v{S+i}, v{S+2*i}, v{S+2*i+1}")
    A(f"v_cvt_pk_bf16_f32 v{S+8}, v{S+8}, v{S+9}")
    A(f"v_mov_b32 v{S+9}, 0")
    A("s_waitcnt lgkmcnt(0)")
    A(f"v_mfma_f32_16x16x32_bf16 {v(LL,4)}, {v(ONES,4)}, {v(S,4)}, 0")
    for n in range(4): A(f"v_mfma_f32_16x16x32_bf16 {v(OO+4*n,4)}, {v(VF+4*n,4)}, {v(S,4)}, 0")
    A(f"v_mfma_f32_16x16x16_bf16 {v(LL,4)}, {v(ONES,2)}, {v(S+8,2)}, {v(LL,4)}")
    for n in range(4): A(f"v_mfma_f32_16x16x16_bf16 {v(OO+4*n,4)}, {v(VMp+2*n,2)}, {v(S+8,2)}, {v(OO+4*n,4)}")
    A(f"v_rcp_f32 v{t0}, v{LL}")
    A(f"s_lshl_b32 s{sA}, s{sSeg}, 18")
    A(f"s_add_u32 s{sA}, s{sA}, s{sOo}")
    for wp in range(2):
        for i in range(8): A(f"v_mul_f32 v{OO+8*wp+i}, v{OO+8*wp+i}, v{t0}")
        for i in range(4): A(f"v_cvt_pk_bf16_f32 v{OO+8*wp+i}, v{OO+8*wp+i}, v{OO+8*wp+4+i}")
        A(f"buffer_store_dwordx4 {v(OO+8*wp,4)}, v{vL16}, {s(rWS,4)}, s{sA} offen offset:{1024*wp} sc1")
    A("s_waitcnt vmcnt(0)")
    A("s_barrier")
    seg_signal(A, "o", sSeg, C_O, 10, 11)
    A(f"s_add_u32 s{sSeg}, s{sSeg}, {NR}")
    A(f"s_cmp_lt_u32 s{sSeg}, 64")
    A("s_cbranch_scc1 L_p2")
    A("s_branch L_end")
    if QLATE[0]:
        A.label("L_qload")
        for c in range(16 + NQE[0], 22): ct[c] = cissue(c)
        A(f"s_waitcnt vmcnt({4*(6-NQE[0])}) lgkmcnt(0)")
        A("s_barrier")
        seg_signal(A, "kv3", sSeg, C_KV, 8, 9)
        wstamp(A, 2)
        for c in range(16, 24):
            cstep(c, exact=(c >= 16 + NQE[0]))
        A("s_branch L_qload_ret")

def orole(A):
    vWa, vWb, vXo, vRd = 5, 6, 7, 8
    sCs, sT_ = 28, 30
    A(f"""
    s_sub_u32 s{sTmp}, s{sI}, {M0}
    s_and_b32 s{sCs}, s{sTmp}, 15
    s_lshr_b32 s{sT_}, s{sTmp}, 4
    v_lshlrev_b32 v{vWa}, 13, v{vG}
    v_lshl_add_u32 v{vWa}, v{vC}, 2, v{vWa}
    s_lshl_b32 s{sTmp}, s{sW}, 20
    s_lshl_b32 s{sTmp2}, s{sCs}, 6
    s_add_u32 s{sTmp}, s{sTmp}, s{sTmp2}
    v_add_u32 v{vWa}, s{sTmp}, v{vWa}
    v_add_u32 v{vWb}, 4096, v{vWa}
    v_lshlrev_b32 v{vXo}, 12, v{vG}
    v_lshl_add_u32 v{vXo}, v{vC}, 2, v{vXo}
    s_lshl_b32 s{sTmp}, s{sW}, 10
    s_add_u32 s{sTmp}, s{sTmp}, s{sTmp2}
    v_add_u32 v{vXo}, s{sTmp}, v{vXo}
    s_lshl_b32 s{sTmp}, s{sW}, 2
    v_add_u32 v{vRd}, s{sTmp}, v{vL16}
    """)
    wait_dword(A, "moe", D_MOEDONE, 1, 10, 11, sleep=40)
    wstamp(A, 3)
    srd(A, rW, 86, 4 << 20)
    def issue8(b, half, Tt):
        ks = 2*b + half
        A(f"s_mov_b32 s{sTmp}, {ks*32768}")
        for j in range(8): A(f"buffer_load_dword v{Tt+j}, v{vWa if j < 4 else vWb}, {s(rW,4)}, s{sTmp} offen offset:{1024*(j&3)}")
    load_frags(A, 16, issue8, lambda b, half, t: ("a", 4*((2*b+half)*2 + t)), [16, 32, 48], 64)
    wstamp(A, 4)
    OF, D, XX, P = 128, 16, 24, 32
    A.label("L_o")
    A(f"""
    s_lshl_b32 s{sA}, s{sT_}, 14
    buffer_load_dword v{XX}, v{vXo}, {s(rX,4)}, s{sA} offen
    s_add_u32 s{sTmp}, s{sA}, {XB}
    buffer_load_dword v{XX+1}, v{vXo}, {s(rWS,4)}, s{sTmp} offen sc1
    s_lshr_b32 s{sPrev}, s{sT_}, 1
    s_lshl_b32 s{sPrev}, s{sPrev}, 8
    s_add_u32 s{sPrev}, s{sPrev}, {CNT}
    s_lshl_b32 s{sBq}, s{sT_}, 17
    s_lshl_b32 s{sTmp}, s{sW}, 15
    s_add_u32 s{sBq}, s{sBq}, s{sTmp}
    s_add_u32 s{sBq}, s{sBq}, {OX}
    """)
    wait_dword(A, "oc", C_O, 32, 10, 11, sleep=SLP[1], srdn=rWS, soff=f"s{sPrev}")
    wstamp(A, 6)
    for ks in range(32):
        if ks and ks % 4 == 0: A(f"s_add_u32 s{sBq}, s{sBq}, 4096")
        A(f"buffer_load_dwordx4 {v(OF+4*ks,4)}, v{vL16}, {s(rWS,4)}, s{sBq} offen offset:{1024*(ks&3)} sc1")
    for ks in range(32):
        A(f"s_waitcnt vmcnt({31-ks})")
        for t in range(2):
            A(f"v_mfma_f32_16x16x32_bf16 {v(D+4*t,4)}, {v(OF+4*ks,4)}, {a(4*(2*ks+t),4)}, {v(D+4*t,4) if ks else 0}")
    A(f"ds_write_b128 v{vT16}, {v(D,4)}")
    A(f"ds_write_b128 v{vT16}, {v(D+4,4)} offset:4096")
    A("s_waitcnt lgkmcnt(0)")
    A("s_barrier")
    for t in range(2):
        for w2 in range(4): A(f"ds_read_b32 v{P+4*t+w2}, v{vRd} offset:{4096*t+1024*w2}")
    unpack(A, XX+2, XX+3, XX); unpack(A, XX+4, XX+5, XX+1)
    A("s_waitcnt lgkmcnt(0)")
    A("s_barrier")
    for t in range(2):
        A(f"v_add_f32 v{P+4*t}, v{P+4*t}, v{P+4*t+1}")
        A(f"v_add_f32 v{P+4*t+2}, v{P+4*t+2}, v{P+4*t+3}")
        A(f"v_add_f32 v{P+4*t}, v{P+4*t}, v{P+4*t+2}")
    A(f"v_cvt_pk_bf16_f32 v{P+1}, v{P}, v{P+4}")
    unpack(A, P, P+4, P+1)
    A(f"v_add_f32 v{P}, v{P}, v{XX+2}")
    A(f"v_add_f32 v{P+4}, v{P+4}, v{XX+3}")
    A(f"v_cvt_pk_bf16_f32 v{P+1}, v{P}, v{P+4}")
    unpack(A, P, P+4, P+1)
    A(f"v_add_f32 v{P}, v{P}, v{XX+4}")
    A(f"v_add_f32 v{P+4}, v{P+4}, v{XX+5}")
    A(f"v_cvt_pk_bf16_f32 v{P+1}, v{P}, v{P+4}")
    A(f"buffer_store_dword v{P+1}, v{vXo}, {s(rOUT,4)}, s{sA} offen" + OSC[0])
    A(f"s_add_u32 s{sT_}, s{sT_}, {NG}")
    A(f"s_cmp_lt_u32 s{sT_}, 128")
    A("s_cbranch_scc1 L_o")
    A("s_branch L_end")

def mrole(A):
    sM, sI0, sI1 = 28, 29, 30
    vGa, vDa, vT4 = 5, 6, 7
    rU, rD = 52, 56
    A(f"""
    s_sub_u32 s{sM}, s{sI}, {M0}
    v_lshrrev_b32 v{vGa}, 2, v{vL16}
    s_mul_i32 s{sTmp}, s{sM}, 224
    s_mul_i32 s{sTmp2}, s{sW}, {128*3584}
    s_add_u32 s{sTmp}, s{sTmp}, s{sTmp2}
    v_add_u32 v{vGa}, s{sTmp}, v{vGa}
    v_lshlrev_b32 v{vT4}, 2, v0
    s_mul_i32 s{sTmp}, s{sM}, {112*1024}
    v_add_u32 v{vDa}, s{sTmp}, v{vT4}
    """)
    pf_wo(A, M0)
    srd(A, rW, 90, 512*3584); srd(A, rU, 92, 512*3584); srd(A, rD, 94, 1792*1024)
    wait_dword(A, "lnm", D_LN, 64, 10, 11, sleep=16)
    n = 0
    def throttle():
        nonlocal n
        n += 1
        if n % 16 == 0: A("s_waitcnt vmcnt(40)")
    for k in range(128):
        A(f"s_mov_b32 s{sTmp}, {k*3584}")
        A(f"buffer_load_dword v{128+k}, v{vGa}, {s(rW,4)}, s{sTmp} offen"); throttle()
        A(f"buffer_load_dword a{k}, v{vGa}, {s(rU,4)}, s{sTmp} offen"); throttle()
    for f in range(112):
        if f % 4 == 0: A(f"s_mov_b32 s{sTmp}, {f*1024}")
        A(f"buffer_load_dword a{128+f}, v{vDa}, {s(rD,4)}, s{sTmp} offen offset:{1024*(f&3)}"); throttle()
    K, Tm = 16, 24
    A(f"v_lshlrev_b32 v10, 5, v0")
    A(f"s_mov_b32 s{sTmp}, {RL}")
    A(f"buffer_load_dwordx4 {v(K,4)}, v10, {s(rWS,4)}, s{sTmp} offen sc1")
    A(f"buffer_load_dwordx4 {v(K+4,4)}, v10, {s(rWS,4)}, s{sTmp} offen offset:16 sc1")
    A(f"v_lshlrev_b32 v10, 3, v0")
    A(f"v_sub_u32 v10, 2047, v10")
    A("s_waitcnt vmcnt(0)")
    for e in range(8):
        A(f"v_ashrrev_i32 v11, 31, v{K+e}")
        A(f"v_or_b32 v11, 0x80000000, v11")
        A(f"v_xor_b32 v{K+e}, v{K+e}, v11")
        A(f"v_and_b32 v{K+e}, 0xffff0000, v{K+e}")
        A(f"v_subrev_u32 v11, {e}, v10")
        A(f"v_or_b32 v{K+e}, v{K+e}, v11")
    A(f"s_lshl_b32 s{sTmp}, s{sW}, 2")
    A(f"v_mov_b32 v13, s{sTmp}")
    A("v_mov_b32 v14, 0")
    for rnd, sk in enumerate((sI0, sI1)):
        A(f"v_max3_u32 v12, v{K}, v{K+1}, v{K+2}")
        A(f"v_max3_u32 v12, v12, v{K+3}, v{K+4}")
        A(f"v_max3_u32 v12, v12, v{K+5}, v{K+6}")
        A(f"v_max_u32 v12, v12, v{K+7}")
        allreduce(A, "v_max_u32", [12], [11])
        A(f"ds_write_b32 v13, v12 offset:{16*rnd}")
        A("s_waitcnt lgkmcnt(0)")
        A("s_barrier")
        A(f"ds_read_b128 {v(Tm,4)}, v14 offset:{16*rnd}")
        A("s_waitcnt lgkmcnt(0)")
        A(f"v_max3_u32 v12, v{Tm}, v{Tm+1}, v{Tm+2}")
        A(f"v_max_u32 v12, v12, v{Tm+3}")
        A(f"v_readfirstlane_b32 s{sk}, v12")
        if rnd == 0:
            for e in range(8):
                A(f"v_cmp_ne_u32 vcc, v12, v{K+e}")
                A(f"v_cndmask_b32 v{K+e}, 0, v{K+e}, vcc")
    for sk in (sI0, sI1):
        A(f"s_and_b32 s{sk}, s{sk}, 0x7ff")
        A(f"s_sub_u32 s{sk}, 2047, s{sk}")
    X0, X1, R0 = 16, 17, 18
    for sk, xr, rr in ((sI0, X0, R0), (sI1, X1, R0+1)):
        A(f"s_lshl_b32 s{sTmp}, s{sk}, 10")
        A(f"s_add_u32 s{sTmp}, s{sTmp}, {XN}")
        A(f"buffer_load_dword v{xr}, v{vT4}, {s(rWS,4)}, s{sTmp} offen sc1")
        A(f"s_lshl_b32 s{sTmp}, s{sk}, 2")
        A(f"s_add_u32 s{sTmp}, s{sTmp}, {RL}")
        A(f"buffer_load_dword v{rr}, v14, {s(rWS,4)}, s{sTmp} offen sc1")
    AC = 24
    for i in range(8): A(f"v_mov_b32 v{AC+i}, 0")
    A("s_waitcnt vmcnt(0)")
    U = 32
    for p in range(64):
        sx = 60 + 6*(p & 1)
        A(f"v_readlane_b32 s{sx}, v{X0}, {p}")
        A(f"v_readlane_b32 s{sx+1}, v{X1}, {p}")
        for u in range(2): A(f"v_accvgpr_read_b32 v{U+4+u}, a{2*p+u}")
        A(f"s_lshl_b32 s{sx+2}, s{sx}, 16"); A(f"s_lshl_b32 s{sx+3}, s{sx+1}, 16")
        A(f"s_and_b32 s{sx+4}, s{sx}, 0xffff0000"); A(f"s_and_b32 s{sx+5}, s{sx+1}, 0xffff0000")
        for u in range(2):
            for mat in range(2):
                unpack(A, U+2*mat, U+2*mat+1, (128+2*p+u) if mat == 0 else (U+4+u))
            for mat in range(2):
                for tok in range(2):
                    for col in range(2):
                        A(f"v_fmac_f32 v{AC+4*mat+2*tok+col}, s{sx+2+2*u+tok}, v{U+2*mat+col}")
    LR, LH = 64, 64 + 8192
    A(f"ds_write_b128 v{vT16}, {v(AC,4)} offset:{LR}")
    A(f"ds_write_b128 v{vT16}, {v(AC+4,4)} offset:{LR+4096}")
    A("s_waitcnt lgkmcnt(0)")
    A("s_barrier")
    Pp = 40
    for mat in range(2):
        for w2 in range(4): A(f"ds_read_b128 {v(Pp+16*mat+4*w2,4)}, v{vL16} offset:{LR+4096*mat+1024*w2}")
    A("s_waitcnt lgkmcnt(0)")
    for mat in range(2):
        for i in range(4):
            b = Pp + 16*mat + i
            A(f"v_add_f32 v{b}, v{b}, v{b+4}"); A(f"v_add_f32 v{b+8}, v{b+8}, v{b+12}"); A(f"v_add_f32 v{b}, v{b}, v{b+8}")
            rnd_bf(A, b)
    def sigmoid(dst, src):
        A(f"v_mul_f32 v{dst}, {f2u(-math.log2(math.e)):#x}, v{src}")
        A(f"v_exp_f32 v{dst}, v{dst}")
        A(f"v_add_f32 v{dst}, 1.0, v{dst}")
        A(f"v_rcp_f32 v{dst}, v{dst}")
    for i in range(4):
        sigmoid(Pp+4+i, Pp+i)
        A(f"v_mul_f32 v{Pp+i}, v{Pp+i}, v{Pp+4+i}")
        rnd_bf(A, Pp+i)
        A(f"v_mul_f32 v{Pp+i}, v{Pp+i}, v{Pp+16+i}")
        rnd_bf(A, Pp+i)
    A(f"ds_write_b128 v{vL16}, {v(Pp,4)} offset:{LH}")
    for i in range(4): A(f"v_mov_b32 v{AC+i}, 0")
    A("s_waitcnt lgkmcnt(0)")
    HB = 40
    for blk in range(7):
        for q in range(8): A(f"ds_read_b128 {v(HB+4*q,4)}, v14 offset:{LH+16*(8*blk+q)}")
        A("s_waitcnt lgkmcnt(0)")
        for q in range(8):
            for u in range(2):
                f = 2*(8*blk+q) + u
                A(f"v_accvgpr_read_b32 v{U+2}, a{128+f}")
                unpack(A, U, U+1, U+2)
                for tok in range(2):
                    for col in range(2):
                        A(f"v_fmac_f32 v{AC+2*tok+col}, v{HB+4*q+2*tok+u}, v{U+col}")
    A(f"s_lshl_b32 s{sTmp}, s{sM}, 12")
    A(f"s_add_u32 s{sTmp}, s{sTmp}, {MOEP}")
    A(f"buffer_store_dwordx4 {v(AC,4)}, v{vT16}, {s(rWS,4)}, s{sTmp} offen sc1")
    A("s_waitcnt vmcnt(0)")
    A("s_barrier")
    signal(A, "moe", lambda: A(f"v_mov_b32 v10, {D_MOE}\nv_mov_b32 v11, 1"), 10, 11, ret=True)
    A("s_waitcnt vmcnt(0)")
    A(f"s_cmp_lg_u32 s{sW}, 0")
    A("s_cbranch_scc1 L_m_w")
    A("s_mov_b64 exec, 1")
    A("ds_write_b32 v14, v11 offset:32")
    A("s_mov_b64 exec, -1")
    A.label("L_m_w")
    A("s_waitcnt lgkmcnt(0)")
    A("s_barrier")
    A("ds_read_b32 v11, v14 offset:32")
    A("s_waitcnt lgkmcnt(0)")
    A(f"v_readfirstlane_b32 s{sTmp}, v11")
    A(f"s_cmp_lg_u32 s{sTmp}, 15")
    A("s_cbranch_scc1 L_orole2")
    for m in range(16):
        A(f"s_mov_b32 s{sTmp}, {MOEP + 4096*m}")
        A(f"buffer_load_dwordx4 {v(40+4*m,4)}, v{vT16}, {s(rWS,4)}, s{sTmp} offen sc1")
    for tok in range(2):
        sigmoid(U+tok, R0+tok); rnd_bf(A, U+tok)
    A("s_waitcnt vmcnt(0)")
    for m in range(1, 16):
        for i in range(4): A(f"v_add_f32 v{40+i}, v{40+i}, v{40+4*m+i}")
    for tok, (sk, xr) in enumerate(((sI0, X0), (sI1, X1))):
        unpack(A, U+2, U+3, xr)
        for col in range(2):
            r = 40 + 2*tok + col
            rnd_bf(A, r)
            A(f"v_mul_f32 v{r}, v{r}, v{U+tok}")
            rnd_bf(A, r)
            A(f"v_add_f32 v{r}, v{r}, v{U+2+col}")
        A(f"v_cvt_pk_bf16_f32 v{48+tok}, v{40+2*tok}, v{41+2*tok}")
        A(f"s_lshl_b32 s{sTmp}, s{sk}, 10")
        A(f"s_add_u32 s{sTmp}, s{sTmp}, {XB}")
        A(f"buffer_store_dword v{48+tok}, v{vT4}, {s(rWS,4)}, s{sTmp} offen sc1")
    A("s_waitcnt vmcnt(0)")
    A("s_barrier")
    signal(A, "moed", lambda: A(f"v_mov_b32 v10, {D_MOEDONE}\nv_mov_b32 v11, 1"), 10, 11)
    A("s_branch L_orole2")

HEADER = open("cdna_kernels/" + NAME + ".s.ref").read().split("; Override launch geometry")[0] if __import__("os").path.exists("cdna_kernels/" + NAME + ".s.ref") else ""

DOC = """
Persistent kernel, one 256-thread workgroup per CU; roles are chosen at run time from HW_REG_XCC_ID + tickets in d_debug.
 team (the 32 workgroups found on one XCD, one head each): the 63-step memory recurrence. Wq/Wk/Wv/Wo of the head stay in
   registers + LDS; the 8 memory rows use the 2:4-sparse MFMA (two K halves per row pair). Per step two hand-offs through
   that XCD's own L2 (partials -> reduce -> new memory), every dword validated against an all-ones sentinel.
 H workers (4 per head): Q/K/V projection of the tokens, then token attention once mem_s is published (sc1 hand-offs).
 O workers: layernorm + router logits first, later Wo projection + residual adds.  M workers: top-2 + expert FFN, then O.
All waits are bounded spins.  Generated by a python script (register maps / schedules written by hand).
"""

def gen_full(**kw):
    A = Asm()
    WST[0] = kw.get("stamps") == 2
    for ln_ in HEADER.strip().split("\n"):
        if ln_: A.raw(ln_)
    A.raw(f"; @launch grid=(256,1,1) block=(256,1,1) lds=163840")
    A.raw('.amdgcn_target "amdgcn-amd-amdhsa--gfx950"')
    for ln_ in DOC.strip("\n").split("\n"): A.raw("; " + ln_)
    A.raw(".text")
    kernel_begin(A, NAME + "_kernel")
    A(f"""
    s_cmp_ge_u32 s2, 256
    s_cbranch_scc1 L_end0
    """)
    T.entry(A, bool(kw.get("stamps")))
    srd(A, rWS, 6, T.WS_BYTES)
    srd(A, rDBG, 4, 256)
    T.role_select(A, "L_worker", force=kw.pop("force", None))
    WPF[0] = kw.pop("wpf", False)
    OPF[0] = kw.pop("opf", True)
    SLP[:] = kw.pop("slp", [8, 2])
    OPN[0] = kw.pop("opn", 2)
    OSC[0] = kw.pop("osc", "")
    noo = kw.pop("noo", False)
    NOP2[0] = kw.pop("nop2", False)
    PRE1[0] = kw.pop("pre1", True)
    HDMA[0] = kw.pop("hdma", True)
    WPW[0] = kw.pop("wpw", 4)
    QLATE[0] = kw.pop("qlate", True)
    NQE[0] = kw.pop("nqe", 4)
    T.team(A, kvchk=True, **kw)
    A.label("L_end0")
    A("s_endpgm")
    A.label("L_worker")
    common(A)
    A(f"s_cmp_ge_u32 s{sI}, {O0}")
    A("s_cbranch_scc1 L_orole")
    A(f"s_cmp_ge_u32 s{sI}, {M0}")
    A("s_cbranch_scc1 L_mrole")
    hrole(A)
    A.label("L_orole")
    ln(A)
    A.label("L_orole2")
    if noo: A("s_branch L_end")
    orole(A)
    A.label("L_end")
    A("s_waitcnt vmcnt(0)")
    if WST[0]:
        wstamp(A, 7)
        A("s_mov_b64 exec, 1")
        for i, r in enumerate([72,73,74,75,98,99,100,101]): A(f"v_mov_b32 v{16+i}, s{r}")
        A(f"s_lshl_b32 s{sTmp}, s{sH}, 5")
        A(f"s_add_u32 s{sTmp}, s{sTmp}, {T.RES + 32768}")
        A("v_mov_b32 v0, 0")
        A(f"buffer_store_dwordx4 v[16:19], v0, {s(rWS,4)}, s{sTmp} offen")
        A(f"buffer_store_dwordx4 v[20:23], v0, {s(rWS,4)}, s{sTmp} offen offset:16")
        A("s_waitcnt vmcnt(0)")
    A("s_endpgm")
    A.label("L_mrole")
    mrole(A)
    A.raw('.section .rodata,"a"')
    A.raw(descriptor(NAME + "_kernel", 512, 102, 256))
    T.STAMP_NAMES = A.stamp_names
    return A.text()

if __name__ == "__main__":
    txt = gen_full()
    open("full.s", "w").write(txt)
    open("cdna_kernels/" + NAME + ".s", "w").write(txt)
```

```python
from asmlib import *

H2 = 0
H1 = 1 << 20
RES = (1 << 20) + (256 << 10)
XN = 2 << 20
KV = 16 << 20
QX = 50 << 20
MEMG = (1 << 20) + (512 << 10)
WS_BYTES = 256 << 20

L_MEM = 0; L_KX = 8192; L_VX = 16384; L_Q = 24576; L_K = 24576 + 288; L_O = 29184; L_ST = 31744; L_W = 32768
RS = 576; RSO = 320

rWS, rDBG, rW = 8, 12, 16
sX, sW, sT, sH = 20, 21, 22, 23
sStep, sTmp, sG, sTmp2 = 24, 25, 26, 27
sO1, sO1b, sO2, sO2b = 28, 29, 30, 31
sRd2, sPubO, sRst2, sRst1 = 32, 33, 34, 35
sKV, sMG, sC, sPerm0, sPerm1 = 36, 37, 38, 39, 40
sB = 44
sRetA, sRetB, sRet2 = 48, 49, 50
sMK, sMV, sRd, sPF = 41, 42, 100, 101
sSt = 56
SPIN = 400000
D_WIN, D_INIT, D_LN, D_MOE, D_MOEDONE = 4, 36, 68, 100, 132
CNT = (1 << 20) + (128 << 10)
C_KV, C_O = 0, 128
FLG = (1 << 20) + (64 << 10)
sFl, sFlS, sK = 62, 63, 64
sCm = 66
sRdy = 51

vIdx, vL16, vT16, vT16b, vT16c, vM1, vM2, vM3, vSt2, vQW, vQR, vOW, vOR = range(1, 14)
vT0, vT1, vPD = 0, 14, 15
MEMA = 16
ACCA = 48
ACCB = 56
STG = 64
POOL = 80
ACCV = 112
NEG = 120
S = MEMA + 4
VMR = 124

LDSF = [("q",1,0),("k",0,0),
        ("q",0,4),("k",1,4),
        ("k",0,2),("q",1,3)]
LDSF += [("o", i >> 1, i & 1) for i in (0, 1, 2, 4, 6, 8, 10, 12, 13, 15, 14)]
ALLF = [(m,t,sl) for m in "qkv" for sl in range(8) for t in range(2)] + [("o",t,k) for k in range(2) for t in range(8)]
HOME = {}
_n = 0
for f in ALLF:
    if f in LDSF: HOME[f] = ("l", LDSF.index(f))
    else:
        HOME[f] = ("a", 8*_n) if _n < 32 else ("v", 128 + 8*(_n-32)); _n += 1
assert _n == 47
KST = 248

def lds_frag_addr(idx, part):
    off = L_W + (2*idx + part) * 4096
    if idx == 16: off = L_VX + part * 4096
    if off < 65536: return vT16, off
    if off < 131072: return vT16b, off - 65536
    return vT16c, off - 131072

class Cnt:
    def __init__(self, A, name, cap): self.A, self.name, self.cap, self.n = A, name, cap, 0
    def issue(self): self.n += 1; return self.n
    def wait(self, tok):
        k = self.n - tok
        if k <= self.cap: self.A(f"s_waitcnt {self.name}({k})")
        else: self.A(f"s_waitcnt {self.name}({self.cap})")

def role_select(A, lab_worker, prefetch=False, force=None):
    if prefetch:
        A(f"""
        s_cmp_lt_u32 s{sW}, 2
        s_cbranch_scc1 L_nopf
        s_lshr_b32 s{sTmp}, s2, 6
        s_lshl_b32 s{sTmp}, s{sTmp}, 3
        s_add_u32 s{sTmp}, s{sTmp}, 16
        s_load_dwordx2 s[80:81], s[0:1], s{sTmp}
        s_and_b32 s{sTmp}, s2, 63
        s_lshl_b32 s{sTmp}, s{sTmp}, 16
        v_and_b32 v3, 127, v0
        v_lshlrev_b32 v3, 4, v3
        s_waitcnt lgkmcnt(0)
        """)
        srd(A, rW, 80, 4 << 20)
        for i in range(32):
            if i % 2 == 0 and i: A(f"s_add_u32 s{sTmp}, s{sTmp}, 4096")
            A(f"buffer_load_dwordx4 v[{128+4*(i&7)}:{131+4*(i&7)}], v3, {s(rW,4)}, s{sTmp} offen offset:{2048*(i&1)}")
        A.label("L_nopf")
    A(f"""
    s_cmp_lg_u32 s{sW}, 0
    s_cbranch_scc1 L_role_wait
    s_mov_b64 exec, 1
    v_mov_b32 v3, 1
    s_lshl_b32 s{sTmp}, s{sX}, 5
    v_mov_b32 v4, s{sTmp}
    buffer_atomic_add v3, v4, {s(rDBG,4)}, 0 offen sc0
    s_add_u32 s{sTmp}, s{sX}, 1
    v_mov_b32 v5, 0
    s_mov_b32 s{sG}, 0
    s_cmp_ge_u32 s2, 64
    s_cbranch_scc1 L_poll_win
    {f"s_cmp_eq_u32 s{sX}, {force}" if force is not None else f"s_and_b32 s{sStep}, s{sX}, 3"}
    s_cbranch_scc1 L_bid
    L_poll_win:
    buffer_load_dword v6, v5, {s(rDBG,4)}, 0 offen offset:{D_WIN} sc1
    s_waitcnt vmcnt(0)
    v_readfirstlane_b32 s{sStep}, v6
    s_cmp_lg_u32 s{sStep}, 0
    s_cbranch_scc1 L_have_win
    s_add_u32 s{sG}, s{sG}, 1
    s_cmp_lt_u32 s{sG}, {12 if force is None else 1000}
    s_cbranch_scc1 L_poll_win
    L_bid:
    v_mov_b32 v6, s{sTmp}
    v_mov_b32 v7, 0
    buffer_atomic_cmpswap v[6:7], v5, {s(rDBG,4)}, 0 offen offset:{D_WIN} sc0
    s_waitcnt vmcnt(0)
    v_readfirstlane_b32 s{sStep}, v6
    s_cmp_eq_u32 s{sStep}, 0
    s_cselect_b32 s{sStep}, s{sTmp}, s{sStep}
    L_have_win:
    v_readfirstlane_b32 s{sT}, v3
    s_mov_b32 s{sH}, 0xffff
    s_cmp_gt_u32 s{sT}, 31
    s_cbranch_scc1 L_role_done
    s_sub_u32 s{sStep}, s{sStep}, 1
    s_xor_b32 s{sStep}, s{sStep}, s{sX}
    s_sub_u32 s{sH}, s{sStep}, 3
    s_add_u32 s{sTmp}, s{sStep}, 4
    s_cmp_ge_u32 s{sStep}, 4
    s_cselect_b32 s{sH}, s{sH}, s{sTmp}
    s_cmp_eq_u32 s{sStep}, 0
    s_cselect_b32 s{sH}, 0, s{sH}
    s_lshl_b32 s{sH}, s{sH}, 5
    s_add_u32 s{sH}, s{sH}, s{sT}
    L_role_done:
    v_mov_b32 v3, s{sH}
    v_mov_b32 v4, 0
    ds_write_b32 v4, v3
    s_mov_b64 exec, -1
    L_role_wait:
    s_waitcnt lgkmcnt(0)
    s_barrier
    v_mov_b32 v4, 0
    ds_read_b32 v3, v4
    s_waitcnt lgkmcnt(0)
    v_readfirstlane_b32 s{sH}, v3
    s_barrier
    s_cmp_gt_u32 s{sH}, 31
    s_cbranch_scc1 {lab_worker}
    """)

def team(A, nsteps=64, stamps=False, ctl=6, z0=13, dA=0, gapB=6, nsets=2, dR=(24,4,16,12), n2=2, dAA=0, bar1=1, bar2=1, pfd=0, usepk=True, rt=False, off="pf", cs=((3,6),(5,6)), kvchk=False, trace=False, gapAB=2, na=2, d3r=2, joint=True, bonly=False, fsl=(), fnop=3, cpre=0, fill_at=4, kfasync=True, lead=0, ks=28, linw=0, dmaw=True, wo_at=(1, 2, 3, 5), ea=False, eb=6, dE=16, dE2=8, hseq="Az.B_A.BRSr", g2=0, ob64=True, one=True, nzo=2, shift=3, kxe=False, kep=0, vpre=7, rsm=False, rt4=False, hv=1, vpf=False, ltrace=False, retouch=True, kfd=5):
    nst = [0]
    names = []
    def stamp(name=""):
        if stamps != 1: return
        k = nst[0]; nst[0] += 1
        assert k < 23
        names.append(name)
        A(f"s_mem{'real' if rt else ''}time s[{52+2*k}:{53+2*k}]")
    A.stamp_names = names
    if stamps == 2: A("s_memrealtime s[92:93]")
    vC, vG, vLn = 16, 17, 18
    x0, x1, x2, x3 = 19, 20, 21, 22
    vWq, vWq2, vWv, vWv2, vWo = 23, 24, 25, 26, 27
    vPubT = 28
    A(f"""
    {"s_mov_b32 s90, s3" if stamps == 2 else ""}
    v_and_b32 v{vLn}, 63, v0
    v_and_b32 v{vC}, 15, v0
    v_lshrrev_b32 v{vG}, 4, v{vLn}
    v_lshlrev_b32 v{vL16}, 4, v{vLn}
    v_lshlrev_b32 v{vT16}, 4, v0
    v_add_u32 v{vT16b}, 0x10000, v{vT16}
    v_add_u32 v{vT16c}, 0x20000, v{vT16}
    v_xor_b32 v{vM1}, 1024, v{vT16}
    v_xor_b32 v{vM2}, 2048, v{vT16}
    v_xor_b32 v{vM3}, 3072, v{vT16}
    v_and_b32 v{x0}, 2, v{vC}
    v_cmp_ne_u32 vcc, 0, v{x0}
    v_mov_b32 v{x1}, 0x4444
    v_mov_b32 v{x2}, 0xeeee
    v_cndmask_b32 v{vIdx}, v{x1}, v{x2}, vcc
    v_and_b32 v{x3}, 4, v{vC}
    v_cmp_ne_u32 vcc, 0, v{x3}
    v_cndmask_b32 v{x1}, v{x1}, v{x2}, vcc
    v_lshl_or_b32 v{vIdx}, v{x1}, 16, v{vIdx}
    ; row(c) = 2*(c>>2) + (c&1)
    v_lshrrev_b32 v{x1}, 2, v{vC}
    v_and_b32 v{x2}, 1, v{vC}
    v_lshl_add_u32 v{x1}, v{x1}, 1, v{x2}
    v_mul_u32_u24 v{x3}, {RSO}, v{x1}
    v_mul_u32_u24 v{x1}, {RS}, v{x1}
    v_lshl_add_u32 v{vQR}, v{vG}, 4, v{x1}
    s_lshl_b32 s{sTmp}, s{sW}, 6
    v_lshl_add_u32 v{vOW}, v{vG}, 4, v{x3}
    v_add_u32 v{vOW}, s{sTmp}, v{vOW}
    {f"v_lshl_add_u32 v{vOW}, v{x0}, 2, v{vOW}" if ob64 else ""}
    v_lshl_add_u32 v{vOR}, v{vG}, 5, v{x3}
    v_lshl_add_u32 v{vOR}, v{x0}, 3, v{vOR}
    v_mul_u32_u24 v{x1}, {2*RS}, v{vG}
    v_lshl_add_u32 v{x1}, v{vC}, 2, v{x1}
    v_add_u32 v{vQW}, s{sTmp}, v{x1}
    v_add_u32 v{vQW}, {L_Q}, v{vQW}
    ; vSt2 = (8w + c>>1)*4096 + (g>>1)*2048 + h*64 + (2(g&1) + (c&1))*16
    v_lshrrev_b32 v{x1}, 1, v{vC}
    s_lshl_b32 s{sTmp}, s{sW}, 3
    v_add_u32 v{x1}, s{sTmp}, v{x1}
    v_lshlrev_b32 v{x1}, 12, v{x1}
    v_lshrrev_b32 v{x3}, 1, v{vG}
    v_lshl_add_u32 v{x1}, v{x3}, 11, v{x1}
    v_and_b32 v{x0}, 1, v{vG}
    v_lshl_add_u32 v{x1}, v{x0}, 5, v{x1}
    v_lshl_add_u32 v{x1}, v{x2}, 4, v{x1}
    s_lshl_b32 s{sTmp}, s{sH}, 6
    v_add_u32 v{vSt2}, s{sTmp}, v{x1}
    v_bfe_u32 v{x1}, v{vC}, 1, 1
    s_and_b32 s{sTmp}, s{sW}, 2
    v_add_u32 v{x1}, s{sTmp}, v{x1}
    v_lshl_add_u32 v30, v{x1}, 2, v{x3}
    v_lshlrev_b32 v30, 4, v30
    v_lshl_add_u32 v30, v{x2}, 3, v30
    v_lshl_add_u32 v30, v{x0}, 2, v30
    s_lshr_b32 s{sTmp}, s{sH}, 1
    s_lshl_b32 s{sTmp}, s{sTmp}, 8
    s_and_b32 s{sTmp2}, s{sH}, 1
    s_lshl_b32 s{sTmp2}, s{sTmp2}, 5
    s_add_u32 s{sTmp}, s{sTmp}, s{sTmp2}
    v_add_u32 v30, s{sTmp}, v30
    v_cmp_gt_u32 vcc, 4, v{vC}
    v_mov_b32 v{vPubT}, 0x7f000000
    v_cndmask_b32 v{vPubT}, v{vPubT}, v30, vcc
    v_mov_b32 v{vT1}, v{vPubT}
    v_lshl_add_u32 v{x1}, v{x1}, 1, v{x3}
    v_lshlrev_b32 v{x1}, 10, v{x1}
    v_lshl_add_u32 v{x1}, v{x2}, 4, v{x1}
    v_lshl_add_u32 v{x1}, v{x0}, 2, v{x1}
    s_lshl_b32 s{sTmp}, s{sH}, 5
    v_add_u32 v29, s{sTmp}, v{x1}
    v_lshlrev_b32 v{x2}, 4, v{x2}
    v_mov_b32 v{x3}, 0x3f80
    v_lshlrev_b32 v{x3}, v{x2}, v{x3}
    v_lshrrev_b32 v{x2}, {3 if rsm else 2}, v{vC}
    """)
    for r in range(4):
        A(f"v_cmp_eq_u32 vcc, {r & 1 if rsm else r}, v{x2}")
        A(f"v_cndmask_b32 v{32+r}, 0, v{x3}, vcc")
    A(f"ds_write_b128 v{vL16}, v[32:35] offset:{L_ST}")
    A(f"""
    v_lshrrev_b32 v{x0}, 1, v{vG}
    v_and_b32 v{x1}, 1, v{vG}
    v_lshlrev_b32 v{x2}, 18, v{x0}
    v_lshl_add_u32 v{x2}, v{x1}, 16, v{x2}
    s_lshl_b32 s{sTmp}, s{sH}, 8
    s_lshl_b32 s{sTmp2}, s{sW}, 6
    s_add_u32 s{sTmp}, s{sTmp}, s{sTmp2}
    v_add_u32 v{x2}, s{sTmp}, v{x2}
    v_lshl_add_u32 v{vWq}, v{vC}, 2, v{x2}
    v_add_u32 v{vWq2}, 0x2000, v{vWq}
    ; Wo: (16(g>>1) + 4(g&1))*1024 + h*131072 + 256w + 16c
    v_lshlrev_b32 v{x2}, 12, v{x1}
    v_lshl_add_u32 v{x2}, v{x0}, 14, v{x2}
    v_lshl_add_u32 v{x2}, v{vC}, 4, v{x2}
    s_lshl_b32 s{sTmp}, s{sH}, 17
    s_lshl_b32 s{sTmp2}, s{sW}, 8
    s_add_u32 s{sTmp}, s{sTmp}, s{sTmp2}
    v_add_u32 v{vWo}, s{sTmp}, v{x2}
    s_mov_b32 s{sPerm0}, 0x05040100
    s_mov_b32 s{sPerm1}, 0x07060302
    v_lshrrev_b32 v{vWv}, 4, v0
    v_lshlrev_b32 v{vWv}, 13, v{vWv}
    v_lshl_add_u32 v{vWv}, v{vC}, 4, v{vWv}
    s_lshl_b32 s{sTmp}, s{sH}, 8
    v_add_u32 v{vWv}, s{sTmp}, v{vWv}
    """)
    for i in range(4):
        A(f"s_xor_b32 s{sB+i}, s{sW}, {i}")
        A(f"s_lshl_b32 s{sB+i}, s{sB+i}, 20")
    NG_ = 112
    for i in range(4): A(f"v_mov_b32 v{NG_+i}, -1")
    A(f"s_lshl_b32 s{sRst2}, s{sH}, 12")
    A(f"s_and_b32 s{sPubO}, s{sW}, 1")
    A(f"s_lshl_b32 s{sTmp2}, s{sPubO}, 3")
    A(f"s_lshl_b32 s{sPubO}, s{sPubO}, 12")
    A(f"s_add_u32 s{sMG}, s{sPubO}, {MEMG}")
    A(f"s_add_u32 s{sPubO}, s{sPubO}, {H1}")
    A("s_waitcnt lgkmcnt(0)")
    srd(A, rW, 78, 8192)
    A(f"buffer_load_dword v{vPD}, v29, {s(rW,4)}, s{sTmp2} offen")
    def fills():
        for sl in range(4 if rt4 else 2):
            for x in range(2):
                A(f"s_add_u32 s{sTmp}, s{sRst2}, {H2 + sl*(256<<10) + x*(128<<10)}")
                A(f"buffer_store_dwordx4 {v(NG_,4)}, v{vT16}, {s(rWS,4)}, s{sTmp} offen"); vm.issue()
        A(f"s_lshl_b32 s{sTmp2}, s{sH}, 14")
        for i in range(4):
            A(f"s_add_u32 s{sTmp}, s{sTmp2}, {MEMG + i*4096}")
            A(f"buffer_store_dwordx4 {v(NG_,4)}, v{vT16}, {s(rWS,4)}, s{sTmp} offen sc1"); vm.issue()
        for sl in range(1, 4):
            A(f"s_add_u32 s{sTmp}, s{sPubO}, {sl*8192}")
            A(f"buffer_store_dword v{NG_}, v{vPubT}, {s(rWS,4)}, s{sTmp} offen"); vm.issue()
        A(f"v_min_u32 v{vPD}, 0xfffffffe, v{vPD}")
        A(f"buffer_store_dword v{vPD}, v{vPubT}, {s(rWS,4)}, s{sPubO} offen"); vm.issue()
        if not fsl: return
        A(f"s_lshr_b32 s{sFl}, s{sW}, 1")
        A(f"s_mul_i32 s{sFl}, s{sFl}, 1280")
        A(f"s_add_u32 s{sFl}, s{sFl}, {FLG}")
        A(f"s_bitcmp1_b32 s{sW}, 0")
        A(f"s_cselect_b32 s{sFl}, s{sFl}, 0x7f000000")
        A(f"s_add_u32 s{sFlS}, s{sH}, {FLG}")
        A(f"s_cmp_eq_u32 s{sW}, 0")
        A(f"s_cselect_b32 s{sFlS}, s{sFlS}, 0x7f000000")
        A(f"v_lshlrev_b32 v31, 4, v{vL16}")
        A("s_mov_b64 exec, 0x3ff")
        A(f"buffer_store_byte v{NG_}, v31, {s(rWS,4)}, s{sFlS} offen"); vm.issue()
        A("s_mov_b64 exec, -1")
    def arrive():
        A("s_barrier")
        A(f"""
        s_cmp_lg_u32 s{sW}, 0
        s_cbranch_scc1 L_t_arrived
        s_mov_b64 exec, 1
        v_mov_b32 v{NG_}, 1
        v_mov_b32 v{NG_+1}, 0
        buffer_atomic_add v{NG_}, v{NG_+1}, {s(rDBG,4)}, 0 offen offset:{D_INIT}
        s_mov_b64 exec, -1
        L_t_arrived:
        """)
    TB = [32, 48, 64, 80]
    PT = 96
    vm = Cnt(A, "vmcnt", 63)
    batches = []
    ob = [("o", k, bp) for k in range(2) for bp in range(4)]
    for mi, m in enumerate("qkv"):
        for sl in range(8):
            batches.append((m, sl))
            if (8*mi + sl) % 3 == 0: batches.append(ob.pop(0))
    TB = [32, 48, 64, 80, 116 - 4]
    rWo = 52
    srd(A, rWo, 86, 4 << 20)
    def issue(bi):
        b = batches[bi]; T = TB[bi % 4]
        if b[0] != "o":
            m, sl = b
            if sl == 0: srd(A, rW, {"q": 80, "k": 82, "v": 84}[m], 4 << 20)
            va, vb = vWq, vWq2
            if linw == 1:
                for j in range(4):
                    A(f"s_lshl_b32 s{sTmp}, s{sH}, 17")
                    A(f"s_add_u32 s{sTmp}, s{sTmp}, {sl*16384 + j*4096}")
                    A(f"buffer_load_dwordx4 {v(T+4*j,4)}, v{vT16}, {s(rW,4)}, s{sTmp} offen"); tok = vm.issue()
                return tok
            if linw == 2:
                for j in range(4):
                    A(f"s_mov_b32 s{sTmp}, {(sl*64 + j*16)*8192}")
                    A(f"buffer_load_dwordx4 {v(T+4*j,4)}, v{vWv}, {s(rW,4)}, s{sTmp} offen"); tok = vm.issue()
                return tok
            for be in range(8):
                row = 64*(be >> 2) + 16*(be & 1) + 4*(sl >> 2) + 2*((be >> 1) & 1)
                A(f"s_add_u32 s{sTmp}, s{sB+(sl&3)}, {row*8192}")
                A(f"buffer_load_dword v{T+2*be}, v{va}, {s(rW,4)}, s{sTmp} offen"); vm.issue()
                A(f"buffer_load_dword v{T+2*be+1}, v{vb}, {s(rW,4)}, s{sTmp} offen"); tok = vm.issue()
        else:
            _, k, bp = b
            for j in range(2):
                be = 2*bp + j
                row = 64*k + 32*(be >> 2) + 8*(be & 1) + 2*((be >> 1) & 1)
                A(f"s_mov_b32 s{sTmp}, {row*1024}")
                A(f"buffer_load_dwordx4 {v(T+8*j,4)}, v{vWo}, {s(rWo,4)}, s{sTmp} offen"); vm.issue()
                A(f"buffer_load_dwordx4 {v(T+8*j+4,4)}, v{vWo}, {s(rWo,4)}, s{sTmp} offen offset:1024"); tok = vm.issue()
        return tok
    def put(f, be, lo, hi, sel, tmp):
        kind, base = HOME[f]
        if kind == "v":
            A(f"v_perm_b32 v{base+be}, v{hi}, v{lo}, s{sel}")
        else:
            A(f"v_perm_b32 v{tmp}, v{hi}, v{lo}, s{sel}")
            if kind == "a": A(f"v_accvgpr_write_b32 a{base+be}, v{tmp}")
    def consume(bi):
        b = batches[bi]; T = TB[bi % 4]
        if b[0] != "o":
            m, sl = b
            for t in range(2):
                f = (m, t, sl)
                for be in range(8):
                    put(f, be, T+2*be, T+2*be+1, sPerm1 if t else sPerm0, PT + 8*t + be)
                if HOME[f][0] == "l":
                    for p in range(2):
                        ar, off = lds_frag_addr(HOME[f][1], p)
                        A(f"ds_write_b128 v{ar}, {v(PT+8*t+4*p,4)} offset:{off}")
            A("s_waitcnt lgkmcnt(0)")
        else:
            _, k, bp = b
            for t in range(8):
                f = ("o", t, k)
                for j in range(2):
                    be = 2*bp + j
                    put(f, be, T+8*j+(t >> 1), T+8*j+4+(t >> 1), sPerm1 if t & 1 else sPerm0, PT + 2*t + j)
                if HOME[f][0] == "l":
                    ar, off = lds_frag_addr(HOME[f][1], bp >> 1)
                    A(f"ds_write_b64 v{ar}, {v(PT+2*t,2)} offset:{off + 8*(bp & 1)}")
            A("s_waitcnt lgkmcnt(0)")
    toks = {}
    DEPTH = 4
    def flags1():
        A("v_mov_b32 v30, 0")
        A(f"buffer_load_dword v29, v30, {s(rDBG,4)}, 0 offen offset:{D_LN} sc1"); vm.issue()
        A(f"buffer_load_dword v31, v30, {s(rDBG,4)}, 0 offen offset:{D_INIT} sc1"); vm.issue()
    def flags2():
        A("v_readfirstlane_b32 s60, v29")
        A("v_readfirstlane_b32 s61, v31")
        A(f"v_lshlrev_b32 v30, 4, v{vL16}")
        A(f"s_mov_b32 s{sTmp}, {CNT + C_KV}")
        A(f"buffer_load_dword v29, v30, {s(rWS,4)}, s{sTmp} offen sc1"); vm.issue()
    if not dmaw:
        for bi in range(len(batches) + DEPTH):
            if bi >= DEPTH:
                vm.wait(toks[bi - DEPTH]); consume(bi - DEPTH)
            if bi == len(batches) - 5: flags1()
            if bi == len(batches) - 1: flags2()
            if bi == fill_at: fills()
            if bi == fill_at + DEPTH: arrive()
            if bi < len(batches): toks[bi] = issue(bi)
    else:
        STGB = L_W + 65536
        RA = 116
        RT = 120
        sM0w = 56
        A(f"""
        v_lshlrev_b32 v{vWv}, 13, v{vG}
        v_lshl_add_u32 v{vWv}, v{vC}, 4, v{vWv}
        s_lshl_b32 s{sTmp}, s{sH}, 8
        s_lshl_b32 s{sTmp2}, s{sW}, 20
        s_add_u32 s{sTmp}, s{sTmp}, s{sTmp2}
        v_add_u32 v{vWv}, s{sTmp}, v{vWv}
        v_lshlrev_b32 v{x0}, 10, v{vG}
        v_lshl_add_u32 v{x0}, v{vC}, 2, v{x0}
        s_lshl_b32 s{sTmp}, s{sW}, 6
        s_add_u32 s{sTmp}, s{sTmp}, {STGB}
        v_add_u32 v{x0}, s{sTmp}, v{x0}
        s_lshl_b32 s{sM0w}, s{sW}, 12
        s_add_u32 s{sM0w}, s{sM0w}, {STGB}
        """)
        for i in range(4):
            A(f"s_lshr_b32 s{sTmp}, s{sB+i}, 8")
            A(f"v_add_u32 v{RA+i}, s{sTmp}, v{x0}")
        chunks = [(m, b2, x, b0) for m in "qkv" for x in range(2) for b2 in range(2) for b0 in range(2)]
        def cissue(c):
            m, b2, x, b0 = chunks[c]
            if c % 8 == 0: srd(A, rW, {"q": 80, "k": 82, "v": 84}[m], 4 << 20)
            for g in range(4):
                A(f"s_add_u32 m0, s{sM0w}, {(c % 4)*16384 + g*1024}")
                A(f"s_mov_b32 s{sTmp}, {(64*b2 + 16*b0 + 4*x + 32*(g >> 1) + 8*(g & 1))*8192}")
                A(f"buffer_load_dwordx4 v{vWv}, {s(rW,4)}, s{sTmp} offen lds"); tok = vm.issue()
            return tok
        def cconsume(c):
            m, b2, x, b0 = chunks[c]
            for sp in range(4):
                for b1 in range(2):
                    dst = (PT if sp < 2 else RT - 8) + 4*sp + 2*b1
                    A(f"ds_read2st64_b32 {v(dst,2)}, v{RA+sp} offset0:{(c % 4)*64 + 2*b1} offset1:{(c % 4)*64 + 2*b1 + 1}")
            for sp in range(4):
                A(f"s_waitcnt lgkmcnt({6-2*sp})") if not wrote[0] else A("s_waitcnt lgkmcnt(0)")
                for b1 in range(2):
                    lo = (PT if sp < 2 else RT - 8) + 4*sp + 2*b1
                    be = 4*b2 + 2*b1 + b0
                    for t in range(2):
                        f = (m, t, 4*x + sp); tmp = PT + 8 + 2*b1 + t + 4*(sp & 1)
                        put(f, be, lo, lo+1, sPerm1 if t else sPerm0, tmp)
                        if HOME[f][0] == "l":
                            ar, off = lds_frag_addr(HOME[f][1], be >> 2)
                            A(f"ds_write_b32 v{ar}, v{tmp} offset:{off + 4*(be & 3)}"); wrote[0] = True
            wrote[0] = False
        wrote = [False]
        obs = [i for i, b in enumerate(batches) if b[0] == "o"]
        batches[:] = [batches[i] for i in obs]
        ct = {}
        for c in range(3): ct[c] = cissue(c)
        for c in range(24):
            vm.wait(ct[c])
            A("s_waitcnt lgkmcnt(0)")
            A("s_barrier")
            if c == 1: fills()
            if c == 4: arrive()
            if c + 3 < 24: ct[c+3] = cissue(c + 3)
            if c in wo_at: toks[wo_at.index(c)] = issue(wo_at.index(c))
            if c == 23: flags1()
            cconsume(c)
        A("s_waitcnt lgkmcnt(0)")
        A("s_barrier")
        for bi in range(8):
            vm.wait(toks[bi]); consume(bi)
            if bi == 4: flags2()
            if bi == 5 and retouch:
                for sl in range(2):
                    for x in range(2):
                        A(f"s_add_u32 s{sTmp}, s{sRst2}, {H2 + sl*(256<<10) + x*(128<<10)}")
                        A(f"buffer_load_dwordx4 {v(NG_,4)}, v{vT16}, {s(rWS,4)}, s{sTmp} offen sc1"); vm.issue()
                A(f"s_and_b32 s{sTmp}, s{sRst2}, 0x7000")
                A(f"s_add_u32 s{sTmp}, s{sTmp}, {H1}")
                A(f"buffer_load_dwordx4 {v(NG_,4)}, v{vT16}, {s(rWS,4)}, s{sTmp} offen sc1"); vm.issue()
            if bi + 4 < 8: toks[bi+4] = issue(bi + 4)
        A("s_waitcnt vmcnt(0)")
    if stamps == 2: A("s_memrealtime s[94:95]")
    A(f"s_lshl_b32 s{sKV}, s{sH}, 14")
    A(f"s_lshl_b32 s{sTmp}, s{sW}, 11")
    A(f"s_add_u32 s{sKV}, s{sKV}, s{sTmp}")
    A(f"s_add_u32 s{sKV}, s{sKV}, {KV}")
    A(f"s_add_u32 s{sMK}, s{sTmp}, {L_KX}")
    A(f"s_add_u32 s{sMV}, s{sTmp}, {L_VX}")
    A(f"s_lshl_b32 s{sMV+1}, s{sH}, 14")
    A(f"s_add_u32 s{sMV+1}, s{sMV+1}, {KV + 8192}")
    A(f"s_add_u32 s{sPF}, s{sTmp}, {pfd*32*16384}")
    def dma(which, par, j):
        if j == 0:
            A(f"s_mov_b32 m0, s{sMK if which == 'k' else sMV + par}")
            if which == "v": A(f"s_add_u32 s{sTmp}, s{sKV}, 8192")
        A(f"buffer_load_dwordx4 v{vL16}, {s(rWS,4)}, s{sKV if which == 'k' else sTmp} offen offset:{1024*j} sc1 lds")
    def kv_wait(tag, ta, tb, need):
        A(f"""
        L_kvw{tag}:
        v_lshlrev_b32 v{ta}, 4, v{vL16}
        s_mov_b32 s{sTmp}, {CNT + C_KV}
        buffer_load_dword v{tb}, v{ta}, {s(rWS,4)}, s{sTmp} offen sc1
        s_waitcnt vmcnt(0)
        v_cmp_eq_u32 vcc, 32, v{tb}
        s_ff0_i32_b64 s{sRdy}, vcc
        s_add_u32 s{sG}, s{sG}, 1
        s_cmp_gt_u32 s{sG}, {SPIN}
        s_cbranch_scc1 L_team_end
        s_cmp_gt_u32 s{sRdy}, {need}
        s_cbranch_scc0 L_kvw{tag}
        """)
    A(f"s_mov_b32 s{sG}, 0")
    if kvchk:
        A(f"""
        v_cmp_eq_u32 vcc, 32, v29
        s_ff0_i32_b64 s{sRdy}, vcc
        s_cmp_ge_u32 s60, 64
        s_cselect_b32 s{sRdy}, s{sRdy}, 0
        s_cmp_lg_u32 s{sRdy}, 0
        s_cbranch_scc1 L_kv0ok
        v_mov_b32 v41, 0
        L_lnw:
        buffer_load_dword v40, v41, {s(rDBG,4)}, 0 offen offset:{D_LN} sc1
        s_waitcnt vmcnt(0)
        v_readfirstlane_b32 s{sTmp2}, v40
        s_add_u32 s{sG}, s{sG}, 1
        s_cmp_gt_u32 s{sG}, {SPIN}
        s_cbranch_scc1 L_team_end
        s_cmp_lt_u32 s{sTmp2}, 64
        s_cbranch_scc1 L_lnw
        """)
        kv_wait("0", 40, 41, "0")
        A.label("L_kv0ok")
    for j in range(2): A(f"buffer_load_dwordx4 {v(KST+4*j,4)}, v{vL16}, {s(rWS,4)}, s{sKV} offen offset:{1024*j} sc1")
    A(f"s_add_u32 s{sKV}, s{sKV}, {32*16384}")
    A(f"""
    s_cmp_ge_u32 s61, 32
    s_cbranch_scc1 L_init_wait
    s_cmp_lg_u32 s{sW}, 0
    s_cbranch_scc1 L_init_wait
    v_mov_b32 v41, 0
    s_mov_b32 s{sG}, 0
    L_init_poll:
    buffer_load_dword v40, v41, {s(rDBG,4)}, 0 offen offset:{D_INIT} sc1
    s_waitcnt vmcnt(0)
    v_readfirstlane_b32 s{sTmp}, v40
    s_add_u32 s{sG}, s{sG}, 1
    s_cmp_gt_u32 s{sG}, {SPIN}
    s_cbranch_scc1 L_init_wait
    s_cmp_lt_u32 s{sTmp}, 32
    s_cbranch_scc1 L_init_poll
    L_init_wait:
    s_waitcnt lgkmcnt(0)
    s_barrier
    s_mov_b32 s{sStep}, 0
    s_mov_b32 s{sG}, 0
    s_mov_b32 s{sRetA}, 0
    s_mov_b32 s{sRetB}, 0
    s_mov_b32 s{sRet2}, 0
    s_mov_b32 s{sC}, 0x3e0293ee
    v_mov_b32 v{VMR+1}, 0
    v_mov_b32 v{VMR+3}, 0
    s_lshl_b32 s{sRd2}, s{sW}, 17
    s_lshl_b32 s{sTmp}, s{sH}, 12
    s_add_u32 s{sRd2}, s{sRd2}, s{sTmp}
    """)
    import math, struct
    cval = struct.unpack("<I", struct.pack("<f", (128 ** -0.5) * math.log2(math.e)))[0]
    A(f"s_mov_b32 s{sC}, {cval:#x}")
    if stamps == 2:
        A("s_memrealtime s[96:97]")
        A("s_memtime s[76:77]"); A("s_waitcnt lgkmcnt(0)")
    assert not (stamps == 1 and fsl)
    if stamps == 1:
        for k in range(52, 100): A(f"s_mov_b32 s{k}, 0")

    lg = Cnt(A, "lgkmcnt", 15)
    staged = {}
    def stage(idx, reg):
        f = LDSF[idx]
        for p in range(2):
            ar, off = lds_frag_addr(idx, p)
            A(f"ds_read_b128 {v(reg+4*p,4)}, v{ar} offset:{off}"); tok = lg.issue()
        staged[f] = (reg, tok)
    waited = [0]
    def lwait(tok):
        if tok > waited[0]:
            lg.wait(tok); waited[0] = tok
    def sm(m, t, sl, acc, areg):
        f = (m, t, sl); kind, base = HOME[f]
        if kind == "l":
            reg, tok = staged.pop(f); lwait(tok); b = v(reg, 8)
        else:
            b = (a if kind == "a" else v)(base, 8)
        A(f"v_smfmac_f32_16x16x64_bf16 {v(acc,4)}, {v(areg,4)}, {b}, v{vIdx}")
    def dsr(dst, addr, off, n=4):
        A(f"ds_read_b{32*n} {v(dst,n)}, v{addr} offset:{off}"); return lg.issue()
    def dsw(addr, src, off, n=4):
        A(f"ds_write_b{32*n} v{addr}, {v(src,n)} offset:{off}"); return lg.issue()
    def chk(r, lab):
        A(f"v_max3_u32 v{vT0}, v{r}, v{r+1}, v{r+2}")
        A(f"v_max_u32 v{vT0}, v{vT0}, v{r+3}")
        A(f"v_cmp_eq_u32 vcc, -1, v{vT0}")
        A(f"s_cbranch_vccnz {lab}")
    qa = lambda t: ACCA + 4*t
    ka = lambda t: ACCB + 4*t
    ma = lambda sl: MEMA + 4*sl

    QB = POOL; FR = POOL + 16
    va = lambda t: ACCV + 4*t
    WA = MEMA
    wa = lambda t: WA + 4*t
    R2 = ma(5); SEL = ma(7); PUB = vT1; DD = ma(3)
    def stage1(idx, reg, p):
        f = LDSF[idx]
        ar, off = lds_frag_addr(idx, p)
        A(f"ds_read_b128 {v(reg+4*p,4)}, v{ar} offset:{off}"); tok = lg.issue()
        if p == 1: staged[f] = (reg, tok)
    G = lambda idx, reg, p: (lambda: stage1(idx, reg, p))
    def mf(d, a_, b_, first, k16=False):
        n = 2 if k16 else 4
        A(f"v_mfma_f32_16x16x{16 if k16 else 32}_bf16 {v(d,4)}, {v(a_,n)}, {v(b_,n)}, {0 if first else v(d,4)}")
    def slots(ms, fill):
        for i, m in enumerate(ms):
            m()
            if i < len(fill):
                for f in fill[i]: f()
        for fl in fill[len(ms):]:
            for f in fl: f()
    I = lambda txt: (lambda: A(txt))
    accf = {"q": qa, "k": ka, "v": va}
    SM = lambda m, t, sl, areg=None: (lambda: sm(m, t, sl, accf[m](t), ma(sl) if areg is None else areg))
    PRE = [(0, STG), (1, STG+8), (2, FR), (3, FR+8), (5, QB+8), (4, QB)]
    def chores(lo, hi):
        for idx, reg in PRE[lo:hi]: stage(idx, reg)
    def zero_accs():
        for i in range(0, 16, 2): A(f"v_mov_b64 {v(ACCA+i,2)}, 0")
        for i in range(0, 8, 2): A(f"v_mov_b64 {v(ACCV+i,2)}, 0")
    def set_neg():
        A(f"v_mov_b64 {v(NEG,2)}, -1"); A(f"v_mov_b64 {v(NEG+2,2)}, -1")
    def slot_offsets():
        A(f"""
        s_and_b32 s{sTmp}, s{sStep}, 3
        s_lshl_b32 s{sO1}, s{sTmp}, 13
        s_add_u32 s{sO1}, s{sO1}, {H1}
        s_add_u32 s{sO1b}, s{sO1}, 4096
        """)
    def ld1():
        A(f"buffer_load_dwordx4 {v(ma(0),4)}, v{vT16}, {s(rWS,4)}, s{sO1} offen sc1")
        A(f"buffer_load_dwordx4 {v(ma(4),4)}, v{vT16}, {s(rWS,4)}, s{sO1b} offen sc1")
    def ld2():
        for u in range(2):
            if u and g2: A(f"s_nop {g2-1}")
            A(f"buffer_load_dwordx4 {v(R2+4*u,4)}, v{vL16}, {s(rWS,4)}, s{sRd} offen offset:{1024*u} sc1")
    def delay(n):
        while n > 0:
            A(f"s_nop {min(n,16)-1}"); n -= 16
    chores(0, 6); zero_accs(); set_neg(); slot_offsets()
    A(f"s_mov_b32 s{sO2}, {H2}"); A(f"s_mov_b32 s{sO2b}, {H2 + (128<<10)}")
    A(f"s_add_u32 s{sRst1}, s{sPubO}, {2*8192}")
    A(f"s_and_b32 s{sTmp}, s{sW}, 1")
    A(f"s_lshl_b32 s{sRd2}, s{sTmp}, 17")
    A(f"s_lshl_b32 s{sTmp}, s{sH}, 12")
    A(f"s_add_u32 s{sRd2}, s{sRd2}, s{sTmp}")
    A(f"s_lshr_b32 s{sTmp}, s{sW}, 1")
    A(f"s_lshl_b32 s{sTmp}, s{sTmp}, 11")
    A(f"s_add_u32 s{sRd2}, s{sRd2}, s{sTmp}")
    pre_staged = dict(staged)
    sKf = 47
    A(f"s_mov_b32 s{sCm}, 0xcccccccc"); A(f"s_mov_b32 s{sCm+1}, 0xcccccccc")
    A(f"s_mov_b32 s{sK}, 0")
    A(f"s_waitcnt vmcnt(0) lgkmcnt(0)")
    A(f"v_add_u32 v{vT0}, s{sMK}, v{vL16}")
    A(f"ds_write_b128 v{vT0}, {v(KST,4)}")
    A(f"ds_write_b128 v{vT0}, {v(KST+4,4)} offset:1024")
    def ldA(): A(f"buffer_load_dwordx4 {v(ma(0),4)}, v{vT16}, {s(rWS,4)}, s{sO1} offen sc1")
    def ldB(): A(f"buffer_load_dwordx4 {v(ma(4),4)}, v{vT16}, {s(rWS,4)}, s{sO1b} offen sc1")
    N1 = I("s_nop 1"); N0 = I("s_nop 0")
    if ea: ldA(); ldA()
    if ltrace: A("s_mov_b32 m0, 0")
    if shift is not None:
        A.raw(".p2align 6")
        for _ in range(shift): A("s_nop 0")
    for par in range(2):
        P = f"_{par}"
        LM = L_MEM; LK = L_KX
        st = stamp if par == 0 else (lambda n="": None)
        A.label("L_step" + P)
        if stamps == 1 and par == 0:
            stamp("top")
            A(f"s_cmp_ge_u32 s{sStep}, {nsteps-3}")
            A("s_cbranch_scc1 L_team_end")
        st("top2")
        if ltrace and par == 0: A("s_memtime s[52:53]")
        def kxw():
            A(f"v_add_u32 v{vT0}, s{sMK}, v{vL16}")
            A(f"ds_write_b128 v{vT0}, {v(KST,4)}")
            A(f"ds_write_b128 v{vT0}, {v(KST+4,4)} offset:1024")
        staged.clear()
        zz = [I(f"v_mov_b64 {v(r_,2)}, 0") for r_ in list(range(ACCA, ACCA+16, 2)) + list(range(ACCV, ACCV+8, 2))] + [lambda: set_neg()]
        def zs(n):
            for _ in range(n):
                if zz: zz.pop(0)()
        rst = [I(f"s_xor_b32 s{sTmp}, s{sO2}, {256<<10}"), I(f"s_add_u32 s{sTmp}, s{sTmp}, s{sRst2}"),
               I(f"buffer_store_dwordx4 {v(NEG,4)}, v{vT16}, {s(rWS,4)}, s{sTmp} offen")]
        rst2 = [I(f"s_add_u32 s{sTmp}, s{sTmp}, {128<<10}"),
               I(f"buffer_store_dwordx4 {v(NEG,4)}, v{vT16}, {s(rWS,4)}, s{sTmp} offen"),
               I(f"buffer_store_dword v{NEG}, v{PUB}, {s(rWS,4)}, s{sRst1} offen")]
        pubg = [I(f"buffer_store_dword v{vPD}, v{PUB}, {s(rWS,4)}, s{sMG} offen sc1"), I(f"s_add_u32 s{sMG}, s{sMG}, 8192")]
        nothing = lambda: None
        if rt4:
            rst = [nothing]*3; rst2[0] = rst2[1] = nothing; zz.pop()
        if hseq[0] == "K": kxw()
        zs(z0); delay(dA)
        for ch in hseq:
            if ch == "A": ldA()
            elif ch == "y": zs(2)
            elif ch == "B": ldB()
            elif ch == "z": zs(99)
            elif ch == "_": delay(gapB)
            elif ch == ".": delay(gapAB)
            elif ch == "R":
                zs(99)
                for f in rst: f()
                rst = [nothing]*3
            elif ch == "S":
                for f in rst2[:2]: f()
                rst2[0] = rst2[1] = nothing
            elif ch == "r":
                if not rt4: zs(99)
                rst2[2](); rst2[2] = nothing
        zs(99)
        ops = [ch for ch in hseq if ch in "ABRSr"]
        wA = len(ops) - 1 - ops.index("A"); wB = len(ops) - 1 - ops.index("B")
        assert wB < wA
        waited[0] = lg.n
        staged.clear(); staged.update({f: (r, 0) for f, (r, t) in pre_staged.items()})
        r, q = ma(0), ma(4)
        if ea:
            A(f"s_mov_b32 s{sK}, 1")
            A(f"s_waitcnt vmcnt({nfl+1})")
            A(f"s_branch L_pollA2{P}") if False else None
        else:
            A.label("L_pollA" + P)
            A(f"s_waitcnt vmcnt({wA})")
        A.label("L_pollA2" + P)
        A(f"v_max3_u32 v{vT0}, v{r}, v{r+1}, v{r+2}")
        A(f"v_max_u32 v{vT0}, v{vT0}, v{r+3}")
        if not one: A(f"v_cmp_eq_u32 vcc, -1, v{vT0}")
        tt = {}
        def rd(key, dst, addr, off): return lambda: tt.__setitem__(key, dsr(dst, addr, off))
        kx = lambda i, dst: rd(("kx", i), dst, vL16, LK + 1024*i)
        W = lambda key: (lambda: lwait(tt[key]))
        WS = lambda idx: (lambda: lwait(staged[LDSF[idx]][1]))
        twa = dsw(vT16, r, LM)
        st("ok")
        bchk = [I(f"s_waitcnt vmcnt({wB})"), I(f"v_max3_u32 v{vT0}, v{q}, v{q+1}, v{q+2}"), I(f"v_max_u32 v{vT0}, v{vT0}, v{q+3}"), I(f"v_cmp_eq_u32 vcc, -1, v{vT0}")]
        kvu = []
        if one:
            slots([SM("q",0,0), SM("q",1,0), SM("k",0,0), SM("k",1,0), SM("v",0,0), SM("v",1,0)],
                  [[bchk[0], I(f"v_max3_u32 v{vT0}, v{vT0}, v{q}, v{q+1}")], [I(f"v_max3_u32 v{vT0}, v{vT0}, v{q+2}, v{q+3}")],
                   [lambda: tt.__setitem__("wb", dsw(vT16, q, LM + 4096)), bchk[3]], [], [I(f"s_cbranch_vccnz L_retryA{P}")],
                   [W("wb"), I("s_barrier"), rd(1, ma(1), vM1, LM)]] if hv == 0 else
                  [[bchk[0], I(f"v_max3_u32 v{vT0}, v{vT0}, v{q}, v{q+1}"), I(f"v_max3_u32 v{vT0}, v{vT0}, v{q+2}, v{q+3}")],
                   [lambda: tt.__setitem__("wb", dsw(vT16, q, LM + 4096)), bchk[3]], [], [I(f"s_cbranch_vccnz L_retryA{P}")],
                   [W("wb"), I("s_barrier"), rd(1, ma(1), vM1, LM)] if hv == 2 else [], [] if hv == 2 else [W("wb"), I("s_barrier"), rd(1, ma(1), vM1, LM)]])
            A.label("L_okB" + P)
            slots([SM("q",0,4), SM("q",1,4), SM("k",0,4), SM("k",1,4), SM("v",0,4), SM("v",1,4)],
                  [[rd(2, ma(2), vM2, LM)], [rd(3, ma(3), vM3, LM)], [rd(5, ma(5), vM1, LM+4096)], [kx(4, STG)], [kx(5, STG+4)], [W(1)]])
            mid = [SM("q",0,1), SM("q",1,1), SM("k",0,1), SM("k",1,1), SM("q",0,2), SM("q",1,2), SM("k",0,2), SM("k",1,2)]
        elif not ea:
            slots([SM("q",0,0), SM("q",1,0), SM("k",0,0), SM("k",1,0)],
                  [[], [I(f"s_cbranch_vccnz L_retryA{P}")] + bchk[:2], bchk[2:3], [lambda: lwait(twa), I("s_barrier"), bchk[3]]])
            st("barM")
            rd(1, ma(1), vM1, LM)()
            SM("v",0,0)()
            A(f"s_cbranch_vccnz L_retryB{P}")
            A.label("L_okB" + P)
            st("okB")
            tw = dsw(vT16, q, LM + 4096)
            slots([SM("v",1,0), SM("q",0,4), SM("q",1,4), SM("k",0,4), SM("k",1,4), SM("v",0,4), SM("v",1,4)],
                  [[rd(2, ma(2), vM2, LM)], [rd(3, ma(3), vM3, LM)], [kx(4, STG)], [kx(5, STG+4)], [], [lambda: lwait(tw), I("s_barrier")], [rd(5, ma(5), vM1, LM+4096)]])
            mid = [SM("q",0,1), SM("q",1,1), SM("k",0,1), SM("k",1,1), SM("q",0,2), SM("q",1,2), SM("k",0,2), SM("k",1,2)]
        else:
            slots([SM("q",0,0), SM("q",1,0)], [[], [I(f"s_cbranch_vccnz L_retryA{P}"), lambda: lwait(twa), I("s_barrier")]])
            st("barM")
            rd(1, ma(1), vM1, LM)()
            pre = [SM("k",0,0), SM("k",1,0), SM("v",0,0), SM("v",1,0), SM("q",0,1), SM("q",1,1), SM("k",0,1), SM("k",1,1), SM("q",0,2), SM("q",1,2)][:eb+3]
            fl = [[rd(2, ma(2), vM2, LM)], [rd(3, ma(3), vM3, LM)], [kx(4, STG)], [W(1)], [kx(5, STG+4)], [], [], [W(2)], [], []][:eb+3]
            fl[eb-1] = fl[eb-1] + bchk[:2]; fl[eb] = fl[eb] + bchk[2:3]; fl[eb+1] = fl[eb+1] + bchk[3:]
            slots(pre, fl)
            A(f"s_cbranch_vccnz L_retryB{P}")
            A.label("L_okB" + P)
            st("okB")
            tw = dsw(vT16, q, LM + 4096)
            allm = [SM("q",0,1), SM("q",1,1), SM("k",0,1), SM("k",1,1), SM("q",0,2), SM("q",1,2), SM("k",0,2), SM("k",1,2)][max(0, eb-1):]
            own = [SM("q",0,4), SM("q",1,4), SM("k",0,4), SM("k",1,4), SM("v",0,4), SM("v",1,4)]
            slots(own[:4], [[], [], [], [lambda: lwait(tw), I("s_barrier"), rd(5, ma(5), vM1, LM+4096)]])
            slots(own[4:], [[], []])
            mid = allm
        st("barB")
        bk = [I(x) for x in (
            f"s_add_u32 s{sStep}, s{sStep}, 1", f"s_add_u32 s{sRd}, s{sO2}, s{sRd2}", f"s_and_b32 s{sB}, s{sStep}, 3",
            f"s_lshl_b32 s{sB+1}, s{sB}, 13", f"s_add_u32 s{sO1}, s{sB+1}, {H1}", f"s_add_u32 s{sO1b}, s{sO1}, 4096",
            f"s_add_u32 s{sB+2}, s{sB+1}, s{sPubO}", f"s_xor_b32 s{sRst1}, s{sB+1}, {2<<13}", f"s_add_u32 s{sRst1}, s{sRst1}, s{sPubO}")]
        m0k = lambda: None
        dk = lambda j: I(f"buffer_load_dwordx4 {v(KST+4*j,4)}, v{vL16}, {s(rWS,4)}, s{sKV} offen offset:{1024*j} sc1")
        VX0, VX1 = ma(0), ma(4)
        lv = [I(f"buffer_load_dwordx4 {v(VX0,4)}, v{vT16}, {s(rWS,4)}, s{sMV+1} offen sc1"), I(f"s_add_u32 s{sTmp2}, s{sMV+1}, 4096"),
              I(f"buffer_load_dwordx4 {v(VX1,4)}, v{vT16}, {s(rWS,4)}, s{sTmp2} offen sc1"), I(f"s_add_u32 s{sMV+1}, s{sMV+1}, {32*16384}")]
        if "dma" in off: dk = lambda j: N0
        def kvbr():
            if kvchk:
                A(f"s_cmp_gt_u32 s{sRdy}, s{sStep}")
                A(f"s_cbranch_scc0 L_kvw{P}")
                A.label("L_kvok" + P)
        kfa = [I(f"v_cmp_eq_u32 vcc, 32, v{VMR}")] if (kvchk and kfasync) else []
        kfb = [I(f"s_and_b32 s{sTmp}, vcc_lo, s{sK}"), I(f"s_ff0_i32_b32 s{sTmp}, s{sTmp}"), I(f"s_add_u32 s{sRdy}, s{sRdy}, s{sTmp}")] if (kvchk and kfasync) else []
        kfc = [I(f"s_add_u32 s{sTmp}, s{sStep}, {kfd}"), I(f"s_min_u32 s{sTmp}, s{sTmp}, 63"),
               I(f"s_cmp_gt_u32 s{sRdy}, s{sTmp}"), I(f"s_cselect_b32 s{sK}, 0, 0xffff")] if (kvchk and kfasync) else []
        def kfissue():
            if not (kvchk and kfasync): return
            A(f"s_cmp_lg_u32 s{sK}, 0")
            A(f"s_cbranch_scc1 L_kfgo{P}")
            A.label(f"L_nokf{P}")
        dmaseq = {ks: [m0k, kvbr], ks+1: [dk(0)], ks+3: [dk(1), I(f"s_add_u32 s{sKV}, s{sKV}, {32*16384}")]}
        if vpf:
            dmaseq = {ks: [kvbr, I(f"v_lshlrev_b32 v{VMR+2}, 3, v{vL16}")],
                      ks+1: [I(f"s_add_u32 s{sTmp2}, s{sKV}, 8192"), I("s_mov_b64 exec, 0xffff"),
                             I(f"buffer_load_dword v{KST}, v{VMR+2}, {s(rWS,4)}, s{sTmp2} offen sc1"), I("s_mov_b64 exec, -1")],
                      ks+2: [dk(0)], ks+4: [dk(1), I(f"s_add_u32 s{sKV}, s{sKV}, {32*16384}")]}
        slotno = [0]
        def slots2(ms, fill):
            fill = [list(f) for f in fill][:max(len(ms), max([i+1 for i, f in enumerate(fill) if f] + [0]))] + [[] for _ in range(len(ms) - len(fill))]
            for i in range(len(ms)):
                fill[i] = dmaseq.pop(slotno[0], []) + fill[i]; slotno[0] += 1
            slots(ms, fill)
        mm = mid + [SM("q",1,3), SM("k",0,3), SM("q",0,3), SM("k",1,3), SM("q",0,5), SM("q",1,5), SM("q",0,6), SM("q",1,6), SM("q",0,7), SM("q",1,7)]
        ff = [[rd(6, ma(6), vM2, LM+4096)] + lv[:2], [rd(7, ma(7), vM3, LM+4096), bk[0]], lv[2:], [W(3)] + rst[:2], [kx(6, STG+8)], [kx(7, STG+12)] + rst[2:], bk[1:3], [kx(0, FR)],
               [kx(1, FR+4)], rst2[:2] + kfa, bk[3:6], [W(7), kx(2, FR+8)], rst2[2:] + kfb, [kx(3, FR+12)], pubg, bk[6:9], kfc[:2], kfc[2:]]
        if ea:
            nm_ = len(mm)
            ff = [[rd(6, ma(6), vM2, LM+4096)] + lv[:2], [rd(7, ma(7), vM3, LM+4096), bk[0]] , [kx(6, STG+8)] + lv[2:], [kx(7, STG+12)] + rst[:2], [kx(0, FR)] + rst[2:], [kx(1, FR+4)] + bk[1:3],
                  [kx(2, FR+8)] + bk[3:5], [kx(3, FR+12)] + rst2[:2], [bk[5]], rst2[2:], pubg, bk[6:9], [kfissue]]
            extra = ff[nm_:]; ff = ff[:nm_] + [[] for _ in range(nm_ - len(ff))]
            for x_ in extra: ff[-1] = ff[-1] + x_
            ff[nm_-7] = [W(7)] + ff[nm_-7]
            slotno[0] = 18 - nm_
        slots2(mm, ff)
        st("qdone")
        if trace and par == 0:
            A(f"""
            s_memrealtime s[52:53]
            s_memtime s[54:55]
            s_lshl_b32 s56, s{sStep}, 2
            s_waitcnt lgkmcnt(0)
            v_writelane_b32 v{vT0}, s52, 0
            v_writelane_b32 v{vT0}, s54, 1
            s_lshl_b32 s57, s{sH}, 10
            s_add_u32 s56, s56, s57
            s_add_u32 s56, s56, {RES + 65536 - 4}
            v_lshrrev_b32 v{QB}, 2, v{vL16}
            s_mov_b64 exec, 3
            buffer_store_dword v{vT0}, v{QB}, {s(rWS,4)}, s56 offen
            s_mov_b64 exec, -1
            """)
        def epi_ops(acc):
            return [I(f"v_add_f32 v{acc}, v{acc}, v{acc+2}"), I(f"v_add_f32 v{acc+1}, v{acc+1}, v{acc+3}"),
                    I(f"v_add_f32 v{acc+4}, v{acc+4}, v{acc+6}"), I(f"v_add_f32 v{acc+5}, v{acc+5}, v{acc+7}"),
                    I(f"v_cvt_pk_bf16_f32 v{acc}, v{acc}, v{acc+4}"), I(f"v_cvt_pk_bf16_f32 v{acc+1}, v{acc+1}, v{acc+5}")]
        e = epi_ops(ACCA); ek = epi_ops(ACCB)
        def w2(acc, o):
            A(f"ds_write2_b32 v{vQW}, v{acc}, v{acc+1} offset0:{o} offset1:{o + RS//4}"); tt["wk"] = lg.issue()
        slots2([SM("k",0,5), SM("k",0,6), SM("k",0,7), SM("k",1,5), SM("k",1,6), SM("k",1,7),
               SM("v",0,1), SM("v",1,1), SM("v",0,2), SM("v",1,2), SM("v",0,3), SM("v",1,3)][:6+min(vpre,6)] + [SM("v",0,5), SM("v",1,5)][:max(0,vpre-6)],
              {0: [[e[0]], [e[1]], [e[2]], [e[3]], [e[4]], [e[5]],
                   [lambda: w2(ACCA, 0), ek[0], ek[1]], [ek[2], ek[3]], [ek[4], ek[5], lambda: w2(ACCB, 72)], [], [], []],
               1: [[e[0]], [e[1]], [e[2]], [e[3]], [e[4]], [e[5]],
                   [lambda: w2(ACCA, 0), ek[0], ek[1]], [ek[2], ek[3], ek[4], ek[5], lambda: w2(ACCB, 72)], [], [], [], []],
               2: [[e[0]], [e[1]], [e[2]], [e[3]], [e[4], ek[0]], [e[5], ek[1]],
                   [lambda: w2(ACCA, 0), N1, N0, ek[2], ek[3], ek[4], ek[5], lambda: w2(ACCB, 72)], [], [], [], [], []]}[kep])
        lwait(tt["wk"]); A("s_barrier"); st("barQK")
        if ltrace and par == 0:
            A("v_writelane_b32 v247, s52, m0") if False else None
            A("s_movreld_b32 s54, s52")
            A("s_add_u32 m0, m0, 1")
            A("s_cmp_eq_u32 m0, 8")
            A("s_cselect_b32 m0, 14, m0")
        qr = lambda k: rd(("q", k), QB+4*k, vQR, L_Q + 64*k)
        KMR = ACCA
        kr = lambda k: rd(("km", k), KMR+4*k, vQR, L_K + 64*k)
        VXR = FR; OO = QB; LL = QB + 8; ONES = NEG
        ones = [I(f"v_mov_b32 v{ONES+i}, 0x3f803f80") for i in range(4)]
        nvm = 3 + (1 if vpf else 0) + (1 if trace and par == 0 else 0) - 2*("dma" in off)
        assert ks >= 15
        qr(0)()
        post = [SM("v",0,3), SM("v",1,3)][2-max(0,6-vpre):] + [SM("v",0,5), SM("v",1,5), SM("v",0,6), SM("v",1,6), SM("v",0,7), SM("v",1,7)][max(0,vpre-6):]
        pf_ = [[qr(1), ones[0]], [qr(2), ones[1]], [qr(3), ones[2]], [kr(0), ones[3]], [kr(1)], [kr(2)]]
        while len(pf_) > len(post):
            x_ = pf_.pop(); pf_[-1] = x_ + pf_[-1]
        pf_ += [[] for _ in range(len(post) - len(pf_))]
        pf_[-1] = pf_[-1] + [W(("q",1))]
        slots2(post, pf_)
        st("vdone")
        Sx = lambda t, k: (lambda: (lwait(tt[("q", k)]), mf(S+4*t, (FR if t == 0 else STG) + 4*k, QB+4*k, k == 0)))
        Sm = lambda k: (lambda: (lwait(tt[("km", k)]), mf(S+8, KMR+4*k, QB+4*k, k == 0)))
        ve = []
        for t in range(2):
            ve += [I(f"v_add_f32 v{va(t)}, v{va(t)}, v{va(t)+2}"), I(f"v_add_f32 v{va(t)+1}, v{va(t)+1}, v{va(t)+3}"),
                   I(f"v_cvt_pk_bf16_f32 v{VMR+2*t}, v{va(t)}, v{va(t)+1}")]
        zw = [I(f"v_mov_b64 {v(WA+i,2)}, 0") for i in range(0, 32, 2)]
        slots2([Sx(0,0), Sx(1,0), Sx(0,1), Sx(1,1), Sx(0,2), Sx(1,2), Sx(0,3), Sx(1,3), Sm(0), Sm(1), Sm(2), Sm(3)],
              [[kr(3)], [ve[0], ve[1]], [ve[2], ve[3]], [W(("q",3)), ve[4]],
               [G(11, FR, 0), ve[5]], [G(11, FR, 1)],
               [G(6, STG, 0)], [W(("km",3)), G(6, STG, 1)], [G(7, FR+8, 0), I(f"v_max3_f32 v{vT0}, v{S}, v{S+1}, v{S+2}")],
               [I(f"v_max3_f32 v{vT0}, v{vT0}, v{S+3}, v{S+4}"), I(f"v_max3_f32 v{vT0}, v{vT0}, v{S+5}, v{S+6}")],
               [G(7, FR+8, 1), I(f"v_max_f32 v{vT0}, v{vT0}, v{S+7}")],
               [G(9, ACCV, 0), zw[10], zw[11], G(9, ACCV, 1), zw[12], zw[13], zw[14]]])
        assert not dmaseq
        st("Smm")
        A(f"v_max3_f32 v{vT0}, v{vT0}, v{S+8}, v{S+9}")
        A(f"v_mov_b32 v{S+10}, v{vT0}")
        G(8, STG+8, 0)(); zw[15]()
        A(f"v_permlane32_swap_b32 v{vT0}, v{S+10}")
        A(f"v_max_f32 v{vT0}, v{vT0}, v{S+10}")
        A(f"v_mov_b32 v{S+10}, v{vT0}")
        G(8, STG+8, 1)()
        A(f"v_permlane16_swap_b32 v{vT0}, v{S+10}")
        A(f"v_max_f32 v{vT0}, v{vT0}, v{S+10}")
        A(f"v_mul_f32 v{S+10}, s{sC}, v{vT0}")
        for i in (8, 0, 2, 4, 6):
            A(f"v_pk_fma_f32 {v(S+i,2)}, {v(S+i,2)}, s[{sC}:{sC+1}], {v(S+10,2)} op_sel_hi:[1,0,0] neg_lo:[0,0,1] neg_hi:[0,0,1]")
        ex = lambda i: I(f"v_exp_f32 v{S+i}, v{S+i}")
        cv = lambda i: I(f"v_cvt_pk_bf16_f32 v{S+i}, v{S+2*i}, v{S+2*i+1}")
        ex(8)(); ex(9)(); ex(0)()
        A(f"v_cvt_pk_bf16_f32 v{S+8}, v{S+8}, v{S+9}"); A(f"v_mov_b32 v{S+9}, 0")
        ex(1)(); ex(2)()
        slots([lambda: mf(LL, ONES, S+8, True, True), lambda: mf(OO, VMR, S+8, True, True), lambda: mf(OO+4, VMR+2, S+8, True, True)],
              [[ex(3), cv(0)], [ex(4), ex(5)], [ex(6), ex(7), cv(1), cv(2), cv(3)]])
        st("exp")
        G(10, ACCB, 0)(); A(f"s_waitcnt vmcnt({nvm})")
        slots([lambda: mf(LL, ONES, S, False), lambda: mf(OO, VX0, S, False), lambda: mf(OO+4, VX1, S, False)],
              [[G(10, ACCB, 1), zw[4]], [zw[5], zw[6]], [zw[7]]])
        st("PV")
        A(f"v_rcp_f32 v{vT0}, v{LL}")
        zw[0]()
        if ob64:
            for b_ in (0, 4):
                for i in range(2): A(f"v_cndmask_b32 v{OO+b_+i}, v{OO+b_+i}, v{OO+b_+2+i}, s[{sCm}:{sCm+1}]")
                if b_ == 0:
                    for i in range(2): A(f"v_mul_f32 v{OO+i}, v{OO+i}, v{vT0}")
            A(f"v_pk_mul_f32 {v(OO+4,2)}, {v(OO+4,2)}, {v(vT0,2)} op_sel_hi:[1,0]")
            for i in range(2): A(f"v_cvt_pk_bf16_f32 v{OO+i}, v{OO+i}, v{OO+4+i}")
            tw = dsw(vOW, OO, L_O, 2)
        else:
            for i in range(4): A(f"v_mul_f32 v{OO+i}, v{OO+i}, v{vT0}")
            A(f"v_pk_mul_f32 {v(OO+4,2)}, {v(OO+4,2)}, {v(vT0,2)} op_sel_hi:[1,0]")
            A(f"v_pk_mul_f32 {v(OO+6,2)}, {v(OO+6,2)}, {v(vT0,2)} op_sel_hi:[1,0]")
            for i in range(4): A(f"v_cvt_pk_bf16_f32 v{OO+i}, v{OO+i}, v{OO+4+i}")
            tw = dsw(vOW, OO, L_O)
        st("owr")
        for f in (zw[1], zw[2], zw[3], zw[8], zw[9])[:nzo]: f()
        FR_ = [NEG, NEG+1, NEG+2, NEG+3, vT0][:len(fsl)]
        if fsl:
            A(f"v_mov_b32 v{VMR}, s{sStep}")
            A(f"v_bfe_u32 v{VMR+2}, v{vL16}, 2, 5")
            A(f"v_lshlrev_b32 v{vT0}, 4, v{vL16}")
            A(f"s_mul_i32 s{sK+1}, s{sStep}, 0x01010101")
        lwait(tw); A("s_barrier"); st("barO")
        OA = ACCA
        to0 = dsr(OA, vOR, L_O)
        to = dsr(OA+4, vOR, L_O + 128)
        for f in (zw[1], zw[2], zw[3], zw[8], zw[9])[nzo:]: f()
        kfissue()
        if fsl:
            A("s_mov_b64 exec, 0x3ff")
            A(f"buffer_store_byte v{VMR}, v{vT0}, {s(rWS,4)}, s{sFlS} offen")
            A("s_mov_b64 exec, -1")
        dmaseq.update({slotno[0] + sl: [I(f"buffer_load_dword v{FR_[i]}, v{VMR+2}, {s(rWS,4)}, s{sFl} offen offset:{256*i} sc1")] for i, sl in enumerate(fsl)})
        ad = lambda t: [I(f"v_add_f32 v{wa(t)}, v{wa(t)}, v{wa(t)+2}"), I(f"v_add_f32 v{wa(t)+1}, v{wa(t)+1}, v{wa(t)+3}")]
        cvp = lambda dst, t: [I(f"v_cvt_pk_bf16_f32 v{dst}, v{wa(t)}, v{wa(t+1)}"), I(f"v_cvt_pk_bf16_f32 v{dst+2}, v{wa(t)+1}, v{wa(t+1)+1}")]
        sto = lambda x, dst: [I(f"buffer_store_dwordx4 {v(dst,4)}, v{vSt2}, {s(rWS,4)}, s{sO2b if x else sO2} offen")]
        SO = lambda t, k: (lambda: sm("o", t, k, wa(t), OA+4*k))
        DA, DB = QB, QB + 4
        lwait(to0)
        st("ord")
        slots2([SO(t, k) for t in range(8) for k in range(2)],
              [[lambda: lwait(to), G(12, QB+8, 0)], [G(12, QB+8, 1)], [G(13, STG, 0)], [G(13, STG, 1), ad(0)[0]], [G(14, FR+8, 0), ad(0)[1]],
               [G(14, FR+8, 1), ad(1)[0]], [G(15, STG+8, 0), ad(1)[1]], [G(15, STG+8, 1), cvp(DA, 0)[0], cvp(DA, 0)[1]],
               [G(16, ACCV, 0)] + ad(2), [WS(13), G(16, ACCV, 1)] + ad(3), cvp(DA+1, 2), sto(0, DA) + [lambda: st("stA"), ad(4)[0]], [WS(15), ad(4)[1]],
               [WS(16)] + ad(5)[:1], ad(5)[1:], cvp(DB, 4) + ad(6)])
        for f in ad(7) + cvp(DB+1, 6) + sto(1, DB): f()
        st("stB")
        assert not staged, staged
        if bar1: A("s_barrier")
        st("bar1")
        dsr(SEL, vL16, L_ST)
        if rt4:
            A(f"s_add_u32 s{sO2}, s{sO2}, {256<<10}")
            A(f"s_and_b32 s{sO2}, s{sO2}, {768<<10}")
            A(f"s_add_u32 s{sO2b}, s{sO2}, {128<<10}")
            set_neg()
        else:
            A(f"s_xor_b32 s{sO2}, s{sO2}, {256<<10}")
            A(f"s_xor_b32 s{sO2b}, s{sO2b}, {256<<10}")
        def red_block(role, nr):
            T_ = f"{role}{P}"
            ne = 0
            if rt4:
                A(f"s_xor_b32 s{sTmp}, s{sO2}, {512<<10}")
                A(f"s_add_u32 s{sTmp}, s{sTmp}, s{sRst2}")
                A(f"buffer_store_dwordx4 {v(NEG,4)}, v{vT16}, {s(rWS,4)}, s{sTmp} offen")
                A(f"s_add_u32 s{sTmp}, s{sTmp}, {128<<10}")
                A(f"buffer_store_dwordx4 {v(NEG,4)}, v{vT16}, {s(rWS,4)}, s{sTmp} offen")
                ne = 2
            if kxe or "K" in hseq:
                A("s_waitcnt lgkmcnt(0)")
            else:
                A(f"s_waitcnt vmcnt({2*nr+2+ne})")
                kxw()
                A("s_waitcnt lgkmcnt(2)")
            A.label("L_pipe2" + T_)
            if rsm:
                A(f"v_mov_b64 {v(DD,2)}, 0")
            for u in range(2):
                r = R2 + 4*u
                A(f"s_waitcnt vmcnt({2*nr-1-u+ne})")
                A(f"v_max3_u32 v{vT0}, v{r}, v{r+1}, {'v%d' % vT0 if u else 0}")
                A(f"v_max3_u32 v{vT0}, v{r+2}, v{r+3}, v{vT0}")
                if not rsm: mf(DD, SEL, r, u == 0)
            if rsm:
                A(f"v_smfmac_f32_16x16x64_bf16 {v(DD,4)}, {v(SEL,4)}, {v(R2,8)}, v{vIdx} abid:1")
            A(f"v_cmp_eq_u32 vcc, -1, v{vT0}")
            A("s_nop 5")
            A(f"s_cbranch_vccnz L_retryp{T_}")
            if ea and role == 1: ldA()
            for rot in (4, 8):
                A(f"v_add_f32_dpp v{DD}, v{DD}, v{DD} row_ror:{rot} row_mask:0xf bank_mask:0xf")
                A(f"v_add_f32_dpp v{DD+1}, v{DD+1}, v{DD+1} row_ror:{rot} row_mask:0xf bank_mask:0xf")
            A(f"v_cvt_pk_bf16_f32 v{vPD}, v{DD}, v{DD+1}")
            A(f"v_min_u32 v{vPD}, 0xfffffffe, v{vPD}")
            A(f"buffer_store_dword v{vPD}, v{PUB}, {s(rWS,4)}, s{sB+2} offen")
        def feval():
            if not fsl: return
            A("s_waitcnt vmcnt(2)")
            for i, r_ in enumerate(FR_): A(f"v_cmp_ne_u32 s[{sCm+2*i}:{sCm+2*i+1}], s{sK+1}, v{r_}")
            A(f"s_mov_b32 s{sK}, 0")
            for i in range(len(FR_)):
                A(f"s_cmp_lg_u64 s[{sCm+2*i}:{sCm+2*i+1}], 0")
                A(f"s_addc_u32 s{sK}, s{sK}, 0")
            if stamps: A(f"s_add_u32 s{sRetA}, s{sRetA}, s{sK}")
        def fdelay(tag):
            if not fsl: return
            A(f"""
            L_fd{tag}{P}:
            s_sub_u32 s{sK}, s{sK}, 1
            s_cbranch_scc1 L_fe{tag}{P}
            s_nop {fnop}
            s_branch L_fd{tag}{P}
            L_fe{tag}{P}:
            """)
        if kxe:
            A(f"v_add_u32 v{vT0}, s{sMK}, v{vL16}")
            A("s_waitcnt vmcnt(2)")
            A(f"ds_write_b128 v{vT0}, {v(KST,4)}")
        chores(0, 1)
        if kxe: A(f"ds_write_b128 v{vT0}, {v(KST+4,4)} offset:1024")
        A(f"s_bitcmp1_b32 s{sW}, 0")
        A(f"s_cbranch_scc1 L_tailB{P}")
        chores(1, cs[0][0]); delay(dR[0]); ld2(); st("ld2")
        chores(cs[0][0], ctl)
        if na > 1: delay(dR[1]); ld2()
        red_block(0, na)
        if ea:
            delay(dE); ldA(); delay(dE2); ldA()
        A(f"s_branch L_tailj{P}")
        A.label(f"L_tailB{P}")
        if par == 0 and stamps == 1:
            nst[0] -= 1; names.pop()
        chores(1, cs[1][0]); delay(dR[2]); ld2(); st("ld2")
        chores(cs[1][0], ctl)
        if n2 > 1: delay(dR[3]); ld2()
        if n2 > 2: delay(dR[3]); ld2()
        red_block(1, n2)
        A.label(f"L_tailj{P}")
        st("red")
        if bar2: A("s_barrier")
        if par == (nsteps & 1):
            A(f"s_cmp_eq_u32 s{sStep}, {nsteps-1}")
            A("s_cbranch_scc1 L_last")
        if par == 1: A("s_branch L_step_0")
        staged.clear()
    def retry(lab, cnt, body, back):
        A.label(lab)
        A("s_mov_b64 exec, vcc")
        body()
        A("s_mov_b64 exec, -1")
        A(f"s_add_u32 s{cnt}, s{cnt}, 1")
        A(f"s_add_u32 s{sG}, s{sG}, 1")
        A(f"s_cmp_gt_u32 s{sG}, {SPIN}")
        A(f"s_cbranch_scc1 L_team_end")
        if back: A(f"s_branch {back}")
    for par in range(2):
        P = f"_{par}"
        if bonly:
            retry("L_retryA" + P, sRetA, ldA, None)
            A("s_nop 3")
            for i in range(0, 8, 2): A(f"v_mov_b64 {v(ACCA+i,2)}, 0")
            A("s_waitcnt vmcnt(0)")
            A(f"s_branch L_pollA2{P}")
            retry("L_retryB" + P, sRetB, ldB, None)
            A(f"s_waitcnt vmcnt({nsets-1})")
        else:
            if ea:
                A.label("L_retryA" + P)
                A(f"s_cmp_eq_u32 s{sK}, 1")
                A(f"s_mov_b32 s{sK}, 0")
                A(f"s_cbranch_scc1 L_rA2{P}")
            retry(("L_retryAx" if ea else "L_retryA") + P, sRetA, ld1, None)
            A.label("L_rA2" + P)
            A("s_nop 6")
            for i in range(0, 16 if one else 8, 2): A(f"v_mov_b64 {v(ACCA+i,2)}, 0")
            if one and hv == 0:
                for i in range(0, 4, 2): A(f"v_mov_b64 {v(ACCV+i,2)}, 0")
            A(f"s_waitcnt vmcnt({wA})")
            A(f"s_branch L_pollA2{P}")
            retry("L_retryB" + P, sRetB, ld1, None)
            A(f"s_waitcnt vmcnt({wB})")
        chk(ma(4), "L_retryB" + P)
        A(f"s_branch L_okB{P}")
        retry("L_retryp0" + P, sRet2, ld2, "L_pipe20" + P)
        retry("L_retryp1" + P, sRet2, ld2, "L_pipe21" + P)
        if kvchk and kfasync:
            A(f"""
            L_kfgo{P}:
            s_min_u32 s{sRdy}, s{sRdy}, 64
            s_lshl_b32 s{sTmp}, s{sRdy}, 8
            v_lshlrev_b32 v{VMR+2}, 4, v{vL16}
            s_add_u32 s{sTmp}, s{sTmp}, {CNT + C_KV}
            s_mov_b64 exec, 0xffff
            buffer_load_dword v{VMR}, v{VMR+2}, {s(rWS,4)}, s{sTmp} offen sc1
            s_mov_b64 exec, -1
            s_branch L_nokf{P}
            """)
        if kvchk:
            kv_wait(P, vT0, VMR, f"s{sStep}")
            A(f"s_branch L_kvok{P}")
    A.label("L_last")
    A(f"buffer_store_dword v{vPD}, v{PUB}, {s(rWS,4)}, s{sMG} offen sc1")
    A("s_waitcnt vmcnt(0) lgkmcnt(0)")
    A.label("L_team_end")
    if stamps:
        if stamps == 2:
            A("s_memrealtime s[98:99]")
            if not ltrace:
                A("s_memtime s[72:73]"); A("s_waitcnt lgkmcnt(0)")
                A("s_sub_u32 s72, s72, s76")
            vals = [72, sStep, sRetA, sRetB, sRet2, 76, 76, 76] + [90, 92, 94, 96, 98, 98, 98, 98]
            if ltrace: vals = list(range(54, 62)) + list(range(68, 92))
        else:
            A("s_waitcnt lgkmcnt(0)")
            for c, (ra, rb) in enumerate(((44, 45), (46, 47))):
                A(f"""
                s_memrealtime s[16:17]
                s_waitcnt lgkmcnt(0)
                s_add_u32 s16, s16, {200 if c else 8}
                L_cal{c}:
                s_memrealtime s[18:19]
                s_memtime s[98:99]
                s_waitcnt lgkmcnt(0)
                s_cmp_lt_u32 s18, s16
                s_cbranch_scc1 L_cal{c}
                s_mov_b32 s{ra}, s18
                s_mov_b32 s{rb}, s98
                """)
            vals = [44, sStep, sRetA, sRetB, sRet2, 45, 46, 47] + list(range(52, 100, 2))
        A(f"s_lshl_b32 s{sTmp}, s{sH}, 2")
        A(f"s_add_u32 s{sTmp}, s{sTmp}, s{sW}")
        A(f"s_lshl_b32 s{sTmp}, s{sTmp}, 7")
        A(f"s_add_u32 s{sTmp}, s{sTmp}, {RES}")
        A("s_waitcnt vmcnt(0)")
        for i, r in enumerate(vals): A(f"v_mov_b32 v{16+i}, s{r}")
        A("v_mov_b32 v0, 0")
        A("s_mov_b64 exec, 1")
        for i in range(len(vals)//4): A(f"buffer_store_dwordx4 {v(16+4*i,4)}, v0, {s(rWS,4)}, s{sTmp} offen offset:{16*i}")
        if stamps == 2 and trace:
            A(f"""
            s_cmp_lg_u32 s{sH}, 0
            s_cbranch_scc1 L_nodbg
            s_cmp_lg_u32 s{sW}, 0
            s_cbranch_scc1 L_nodbg
            buffer_store_dword v24, v0, {s(rDBG,4)}, 0 offen offset:8 sc1
            buffer_store_dword v28, v0, {s(rDBG,4)}, 0 offen offset:12 sc1
            buffer_store_dword v20, v0, {s(rDBG,4)}, 0 offen offset:60 sc1
            buffer_store_dword v19, v0, {s(rDBG,4)}, 0 offen offset:56 sc1
            s_mov_b64 exec, 0xff
            v_lshlrev_b32 v40, 1, v{vL16}
            s_mov_b32 s{sTmp}, {RES + 65536}
            buffer_load_dword v41, v40, {s(rWS,4)}, s{sTmp} offen sc1
            v_lshrrev_b32 v40, 2, v{vL16}
            v_and_b32 v42, 16, v40
            v_lshrrev_b32 v42, 1, v42
            v_add_u32 v40, v40, v42
            s_waitcnt vmcnt(0)
            buffer_store_dword v41, v40, {s(rDBG,4)}, 0 offen offset:16 sc1
            L_nodbg:
            """)
    A("s_waitcnt vmcnt(0)")

def entry(A, diag):
    A(f"""
    {"s_memrealtime s[68:69]" if diag else ""}
    s_load_dwordx4 s[4:7], s[0:1], 104
    s_load_dwordx4 s[76:79], s[0:1], 0
    s_load_dwordx8 s[80:87], s[0:1], 16
    s_load_dwordx8 s[88:95], s[0:1], 64
    s_load_dwordx2 s[70:71], s[0:1], 96
    s_getreg_b32 s{sX}, hwreg(HW_REG_XCC_ID)
    s_and_b32 s{sX}, s{sX}, 7
    v_lshrrev_b32 v1, 6, v0
    v_readfirstlane_b32 s{sW}, v1
    s_waitcnt lgkmcnt(0)
    {"s_mov_b32 s3, s68" if diag else ""}
    """)

def gen_standalone(**kw):
    A = Asm()
    A.raw(f"; @launch grid=(256,1,1) block=(256,1,1) lds=163840")
    A.raw('.amdgcn_target "amdgcn-amd-amdhsa--gfx950"')
    A.raw(".text")
    kernel_begin(A, NAME + "_kernel")
    A(f"""
    s_cmp_ge_u32 s2, 256
    s_cbranch_scc1 L_end
    """)
    entry(A, True)
    srd(A, rWS, 6, WS_BYTES)
    srd(A, rDBG, 4, 256)
    spf = kw.pop("spf", 0)
    role_select(A, "L_pfw" if spf else "L_end")
    team(A, **kw)
    A.label("L_end")
    A("s_endpgm")
    if spf:
        A.label("L_pfw")
        A(f"""
        s_lshr_b32 s{sTmp}, s2, 6
        s_lshl_b32 s{sTmp}, s{sTmp}, 3
        s_add_u32 s{sTmp}, s{sTmp}, 16
        s_load_dwordx2 s[80:81], s[0:1], s{sTmp}
        s_and_b32 s{sTmp}, s2, 62
        s_lshl_b32 s{sTmp}, s{sTmp}, 16
        v_lshlrev_b32 v3, 4, v0
        s_waitcnt lgkmcnt(0)
        """)
        srd(A, rW, 80, 4 << 20)
        for i in range(32):
            A(f"buffer_load_dwordx4 v[{128+4*(i&7)}:{131+4*(i&7)}], v3, {s(rW,4)}, s{sTmp} offen")
            A(f"s_add_u32 s{sTmp}, s{sTmp}, 4096")
        A("s_waitcnt vmcnt(0)")
        A("s_endpgm")
    A.raw('.section .rodata,"a"')
    A.raw(descriptor(NAME + "_kernel", 512, 102, 256))
    global STAMP_NAMES
    STAMP_NAMES = A.stamp_names
    return A.text()

if __name__ == "__main__":
    open("team.s", "w").write(gen_standalone(stamps=2))
```

```python
from asmlib import *
import team as T
from team import (rWS, rDBG, rW, sX, sW, sH, sTmp, sTmp2, sG, sPerm0, sPerm1, SPIN, Cnt,
                  D_INIT, D_LN, D_MOE, D_MOEDONE, CNT, C_KV, C_O, XN, KV, QX, MEMG)
import struct, math
XB = 4 << 20
RL = 6 << 20
MOEP = (6 << 20) + (64 << 10)
OX = 68 << 20
NR = 4
NG = 6
NH = 32*NR; M0 = NH; O0 = NH + 16
f2u = lambda x: struct.unpack("<I", struct.pack("<f", x))[0]
sI, sHd, sR, sSeg, sPrev, sA, sBq, sC = 24, 28, 29, 30, 31, 32, 33, 34
rX, rOUT = 44, 48
DPP = " row_mask:0xf bank_mask:0xf"

def allreduce(A, op, regs, tmps):
    for ctrl in ("quad_perm:[1,0,3,2]", "quad_perm:[2,3,0,1]", "row_half_mirror", "row_mirror"):
        for r in regs: A(f"{op}_dpp v{r}, v{r}, v{r} {ctrl}{DPP}")
    for sw in (16, 32):
        for r, t in zip(regs, tmps): A(f"v_mov_b32 v{t}, v{r}")
        for r, t in zip(regs, tmps): A(f"v_permlane{sw}_swap_b32 v{r}, v{t}")
        for r, t in zip(regs, tmps): A(f"{op} v{r}, v{r}, v{t}")

def rnd_bf(A, r):
    A(f"v_cvt_pk_bf16_f32 v{r}, v{r}, v{r}")
    A(f"v_and_b32 v{r}, 0xffff0000, v{r}")

def unpack(A, lo, hi, src):
    A(f"v_lshlrev_b32 v{lo}, 16, v{src}")
    A(f"v_and_b32 v{hi}, 0xffff0000, v{src}")

def wait_dword(A, tag, off, target, ta, tb, sleep=2, srdn=rDBG, soff="0"):
    A(f"""
    s_cmp_lg_u32 s{sW}, 0
    s_cbranch_scc1 L_wd{tag}_ok
    v_mov_b32 v{ta}, 0
    L_wd{tag}:
    buffer_load_dword v{tb}, v{ta}, {s(srdn,4)}, {soff} offen offset:{off} sc1
    s_waitcnt vmcnt(0)
    v_readfirstlane_b32 s{sTmp}, v{tb}
    s_cmp_ge_u32 s{sTmp}, {target}
    s_cbranch_scc1 L_wd{tag}_ok
    s_sleep {sleep}
    s_add_u32 s{sG}, s{sG}, 1
    s_cmp_lt_u32 s{sG}, {SPIN}
    s_cbranch_scc1 L_wd{tag}
    L_wd{tag}_ok:
    s_barrier
    s_nop 1
    """)

def signal(A, tag, body, ta, tb, ret=False, srdn=rDBG):
    A(f"s_cmp_lg_u32 s{sW}, 0")
    A(f"s_cbranch_scc1 L_sig{tag}")
    A("s_mov_b64 exec, 1")
    body()
    A(f"buffer_atomic_add v{tb}, v{ta}, {s(srdn,4)}, 0 offen" + (" sc0" if ret else ""))
    A("s_mov_b64 exec, -1")
    A.label(f"L_sig{tag}")

def seg_signal(A, tag, sseg, base, ta, tb):
    def body():
        A(f"""
        s_lshl_b32 s{sTmp}, s{sseg}, 8
        s_add_u32 s{sTmp}, s{sTmp}, {CNT + base}
        v_mov_b32 v{ta}, s{sTmp}
        v_mov_b32 v{tb}, 1
        """)
    signal(A, tag, body, ta, tb, srdn=rWS)

vL16, vT16, vC, vG = 1, 2, 3, 4
WST = [False]
WPF = [True]
OPF = [True]
SLP = [6, 3]
OPN = [3]
OSC = ['']
NOP2 = [False]
PRE1 = [True]
HDMA = [True]
WPW = [4]
QLATE = [True]
NQE = [3]
LEAD = [16]
OEARLY = [False]
Q2 = [True]
def wstamp(A, k):
    if not WST[0]: return
    A("s_memrealtime s[96:97]")
    A("s_waitcnt lgkmcnt(0)")
    A(f"s_mov_b32 s{[72,73,74,75,98,99,100,101][k]}, s96")

def common(A):
    if WST[0]:
        A("s_mov_b32 s72, s3")
        for r in (73,74,75,98,99,100,101): A(f"s_mov_b32 s{r}, 0")
    wstamp(A, 1)
    A(f"""
    s_sub_u32 s{sI}, s{sH}, 32
    s_cmp_ge_u32 s{sI}, 224
    s_cbranch_scc1 L_end
    v_and_b32 v5, 63, v0
    v_and_b32 v{vC}, 15, v0
    v_lshrrev_b32 v{vG}, 4, v5
    v_lshlrev_b32 v{vL16}, 4, v5
    v_lshlrev_b32 v{vT16}, 4, v0
    s_mov_b32 s{sPerm0}, 0x05040100
    s_mov_b32 s{sPerm1}, 0x07060302
    s_mov_b32 s{sG}, 0
    s_waitcnt lgkmcnt(0)
    """)
    srd(A, rX, 76, 2 << 20)
    srd(A, rOUT, 70, 2 << 20)

def pf_wo(A, first):
    if not OPF[0]: return
    A(f"s_sub_u32 s{sTmp}, s{sI}, {first}")
    A(f"s_lshl_b32 s{sTmp}, s{sTmp}, 17")
    srd(A, 52, 86, 4 << 20)
    for i in range(32):
        A(f"buffer_load_dwordx4 v[{128+4*(i&7)}:{131+4*(i&7)}], v{vT16}, s[52:55], s{sTmp} offen")
        A(f"s_add_u32 s{sTmp}, s{sTmp}, 4096")

def ln(A):
    X, WR, F, Sg, Tm, Mb, WF = 16, 32, 40, 72, 76, 80, 84
    A(f"s_cmp_lt_u32 s{sI}, {O0+64}")
    A("s_cbranch_scc1 L_ln_go")
    pf_wo(A, O0 + 64 - 16)
    A("s_branch L_ln_done")
    A.label("L_ln_go")
    srd(A, rW, 88, 1024)
    A(f"s_sub_u32 s{sA}, s{sI}, {O0}")
    A(f"s_lshl_b32 s{sA}, s{sA}, 3")
    A(f"s_add_u32 s{sA}, s{sA}, s{sW}")
    A(f"s_lshl_b32 s{sBq}, s{sA}, 4")
    A(f"s_lshl_b32 s{sA}, s{sA}, 12")
    A(f"buffer_load_dwordx4 {v(WR,4)}, v{vL16}, {s(rW,4)}, 0 offen")
    for j in range(4): A(f"buffer_load_dwordx4 {v(X+4*j,4)}, v{vL16}, {s(rX,4)}, s{sA} offen offset:{1024*j}")
    A(f"s_add_u32 s{sTmp}, s{sA}, 16384")
    for j in range(4): A(f"buffer_load_dwordx4 {v(100+4*j,4)}, v{vL16}, {s(rX,4)}, s{sTmp} offen offset:{1024*j}")
    A(f"s_sub_u32 s{sTmp}, s{sI}, {O0}")
    A(f"s_lshl_b32 s{sTmp}, s{sTmp}, 8")
    A(f"s_add_u32 s{sTmp}, s{sTmp}, {CNT}")
    A(f"v_lshrrev_b32 v5, 2, v{vL16}")
    A("v_mov_b32 v6, 0")
    A(f"buffer_store_dword v6, v5, {s(rWS,4)}, s{sTmp} offen sc1")
    A(f"s_mov_b32 s{sSeg}, 0")
    if OPF[0]:
        A(f"s_sub_u32 s{sTmp2}, s{sI}, {O0}")
        A(f"s_lshl_b32 s{sTmp2}, s{sTmp2}, 16")
        for mi, base in enumerate((80, 82, 84)[:OPN[0]]):
            srd(A, 52, base, 4 << 20)
            A(f"s_mov_b32 s{sTmp}, s{sTmp2}")
            for i in range(16):
                A(f"buffer_load_dwordx4 v[{128+4*(i&7)}:{131+4*(i&7)}], v{vT16}, s[52:55], s{sTmp} offen")
                A(f"s_add_u32 s{sTmp}, s{sTmp}, 4096")
    A(f"s_waitcnt vmcnt({5 + (16*OPN[0] if OPF[0] else 0)})")
    A.label("L_ln_pass")
    R4 = range(4)
    for j in R4:
        for d in range(4): unpack(A, F+8*j+2*d, F+8*j+2*d+1, X+4*j+d)
        A(f"v_add_f32 v{Sg+j}, v{F+8*j}, v{F+8*j+1}")
        for e in range(2, 8): A(f"v_add_f32 v{Sg+j}, v{Sg+j}, v{F+8*j+e}")
    allreduce(A, "v_add_f32", [Sg+j for j in R4], [Tm+j for j in R4])
    for j in R4: A(f"v_mul_f32 v{Mb+j}, {f2u(1/512):#x}, v{Sg+j}")
    for j in R4:
        for e in range(8):
            A(f"v_sub_f32 v{Tm}, v{F+8*j+e}, v{Mb+j}")
            if e == 0: A(f"v_mul_f32 v{Sg+j}, v{Tm}, v{Tm}")
            else: A(f"v_fmac_f32 v{Sg+j}, v{Tm}, v{Tm}")
    allreduce(A, "v_add_f32", [Sg+j for j in R4], [Tm+j for j in R4])
    for j in R4:
        rnd_bf(A, Mb+j)
        A(f"v_mul_f32 v{Sg+j}, {f2u(1/512):#x}, v{Sg+j}")
        rnd_bf(A, Sg+j)
        A(f"v_add_f32 v{Sg+j}, {f2u(1e-5):#x}, v{Sg+j}")
        rnd_bf(A, Sg+j)
        A(f"v_sqrt_f32 v{Sg+j}, v{Sg+j}")
        rnd_bf(A, Sg+j)
        A(f"v_rcp_f32 v{Tm+j}, v{Sg+j}")
    for d in range(4): unpack(A, WF+2*d, WF+2*d+1, WR+d)
    Q, E, RA = 92, 94, 96
    for j in R4:
        for d in range(4):
            f = F + 8*j + 2*d
            A(f"v_sub_f32 v{f}, v{f}, v{Mb+j}")
            A(f"v_sub_f32 v{f+1}, v{f+1}, v{Mb+j}")
            A(f"v_cvt_pk_bf16_f32 v{Q}, v{f}, v{f+1}")
            unpack(A, f, f+1, Q)
            for u in range(2):
                A(f"v_mul_f32 v{Q+u}, v{f+u}, v{Tm+j}")
                A(f"v_fma_f32 v{E+u}, -v{Q+u}, v{Sg+j}, v{f+u}")
                A(f"v_fmac_f32 v{Q+u}, v{E+u}, v{Tm+j}")
            A(f"v_cvt_pk_bf16_f32 v{X+4*j+d}, v{Q}, v{Q+1}")
            unpack(A, f, f+1, X+4*j+d)
            if d == 0: A(f"v_mul_f32 v{RA+j}, v{f}, v{WF}")
            else: A(f"v_fmac_f32 v{RA+j}, v{f}, v{WF+2*d}")
            A(f"v_fmac_f32 v{RA+j}, v{f+1}, v{WF+2*d+1}")
        A(f"s_add_u32 s{sTmp}, s{sA}, {XN}")
        A(f"buffer_store_dwordx4 {v(X+4*j,4)}, v{vL16}, {s(rWS,4)}, s{sTmp} offen offset:{1024*j} sc1")
        A(f"s_add_u32 s{sTmp}, s{sA}, {XB}")
        A(f"buffer_store_dwordx4 {v(X+4*j,4)}, v{vL16}, {s(rWS,4)}, s{sTmp} offen offset:{1024*j} sc1")
    allreduce(A, "v_add_f32", [RA+j for j in R4], [Tm+j for j in R4])
    for j in R4: rnd_bf(A, RA+j)
    A(f"s_add_u32 s{sTmp}, s{sBq}, {RL}")
    A("s_mov_b64 exec, 1")
    A(f"buffer_store_dwordx4 {v(RA,4)}, v{vL16}, {s(rWS,4)}, s{sTmp} offen sc1")
    A("s_mov_b64 exec, -1")
    A(f"s_cmp_lg_u32 s{sSeg}, 0")
    A("s_cbranch_scc1 L_ln_fin")
    A(f"s_mov_b32 s{sSeg}, 1")
    A(f"s_add_u32 s{sA}, s{sA}, 16384")
    A(f"s_add_u32 s{sBq}, s{sBq}, 64")
    A(f"s_waitcnt vmcnt({10 + (16*OPN[0] if OPF[0] else 0)})")
    for i in range(0, 16, 2): A(f"v_mov_b64 {v(X+i,2)}, {v(100+i,2)}")
    A("s_branch L_ln_pass")
    A.label("L_ln_fin")
    A("s_waitcnt vmcnt(0)")
    A("s_barrier")
    signal(A, "ln", lambda: A(f"v_mov_b32 v5, {D_LN}\nv_mov_b32 v6, 1"), 5, 6)
    A.label("L_ln_done")
    wstamp(A, 2)

def load_frags(A, nb, issue8, home, TB, PT, depth=3):
    vm = Cnt(A, "vmcnt", 63); toks = {}
    for bi in range(nb + depth):
        if bi >= depth:
            b = bi - depth; Tt = TB[b % len(TB)]
            vm.wait(toks[b])
            for half in range(2):
                for t in range(2):
                    kind, base = home(b, half, t)
                    for r in range(4):
                        lo, hi = Tt + 8*half + 2*r, Tt + 8*half + 2*r + 1
                        sel = sPerm1 if t else sPerm0
                        if kind == "v": A(f"v_perm_b32 v{base+r}, v{hi}, v{lo}, s{sel}")
                        else:
                            A(f"v_perm_b32 v{PT+(r&1)}, v{hi}, v{lo}, s{sel}")
                            A(f"v_accvgpr_write_b32 a{base+r}, v{PT+(r&1)}")
        if bi < nb:
            for half in range(2):
                issue8(bi, half, TB[bi % len(TB)] + 8*half)
                for _ in range(8): toks[bi] = vm.issue()

def hrole(A):
    MI = {"k": 0, "v": 1, "q": 2}
    def wf(m, t, k):
        n = (MI[m]*16 + k)*2 + t
        return ("a", 4*n) if n < 64 else ("v", 128 + 4*(n-64))
    def wop(m, t, k):
        kind, base = wf(m, t, k)
        return (a if kind == "a" else v)(base, 4)
    vWa, vXs, vXB = 5, 6, 7
    A(f"""
    s_lshr_b32 s{sHd}, s{sI}, 2
    s_and_b32 s{sR}, s{sI}, 3
    ; W voffset = g*65536 + h*256 + 64w + 4c
    v_lshlrev_b32 v{vWa}, 16, v{vG}
    v_lshl_add_u32 v{vWa}, v{vC}, 2, v{vWa}
    s_lshl_b32 s{sTmp}, s{sHd}, 8
    s_lshl_b32 s{sTmp2}, s{sW}, 6
    s_add_u32 s{sTmp}, s{sTmp}, s{sTmp2}
    v_add_u32 v{vWa}, s{sTmp}, v{vWa}
    v_lshlrev_b32 v{vXs}, 10, v{vC}
    v_lshl_add_u32 v{vXs}, v{vG}, 4, v{vXs}
    s_lshr_b32 s{sTmp}, s{sW}, 1
    s_lshl_b32 s{sTmp}, s{sTmp}, 14
    s_and_b32 s{sTmp2}, s{sW}, 1
    s_lshl_b32 s{sTmp2}, s{sTmp2}, 9
    s_add_u32 s{sTmp}, s{sTmp}, s{sTmp2}
    v_add_u32 v{vXs}, s{sTmp}, v{vXs}
    v_add_u32 v{vXB}, 16384, v{vL16}
    """)
    if WPF[0]:
        big = WPF[0] == 1
        A(f"""
        s_lshr_b32 s{sTmp}, s{sI}, {5 if big else 6}
        s_lshl_b32 s{sTmp}, s{sTmp}, 3
        s_add_u32 s{sTmp}, s{sTmp}, {16 if big else 24}
        s_load_dwordx2 s[68:69], s[0:1], s{sTmp}
        s_and_b32 s{sTmp}, s{sI}, {31 if big else 63}
        s_lshl_b32 s{sTmp}, s{sTmp}, {17 if big else 16}
        s_waitcnt lgkmcnt(0)
        """)
        srd(A, rW, 68, 4 << 20)
        for i in range(32 if big else 16):
            A(f"buffer_load_dwordx4 v[{128+4*(i&7)}:{131+4*(i&7)}], v{vT16}, {s(rW,4)}, s{sTmp} offen")
            A(f"s_add_u32 s{sTmp}, s{sTmp}, 4096")
        A(f"s_waitcnt vmcnt({WPW[0]})")
    mats = "kvq"
    def issue8(b, half, Tt):
        m = mats[b // 8]; k = 2*(b % 8) + half
        if b % 8 == 0 and half == 0: srd(A, rW, {"q": 80, "k": 82, "v": 84}[m], 4 << 20)
        for j in range(8):
            A(f"s_mov_b32 s{sTmp}, {(32*k + j)*8192}")
            A(f"buffer_load_dword v{Tt+j}, v{vWa}, {s(rW,4)}, s{sTmp} offen")
    if not HDMA[0]:
        load_frags(A, 24, issue8, lambda b, half, t: wf(mats[b // 8], t, 2*(b % 8) + half), [16, 32, 48], 64)
    else:
        NS = 5; SB = 81920; vS, vR0, vR1, sMw = 12, 13, 14, 36
        A(f"""
        v_lshlrev_b32 v{vS}, 13, v{vG}
        v_lshl_add_u32 v{vS}, v{vC}, 4, v{vS}
        s_lshl_b32 s{sTmp}, s{sHd}, 8
        s_lshl_b32 s{sTmp2}, s{sW}, 17
        s_add_u32 s{sTmp}, s{sTmp}, s{sTmp2}
        v_add_u32 v{vS}, s{sTmp}, v{vS}
        v_lshlrev_b32 v{vR0}, 11, v{vG}
        v_lshl_add_u32 v{vR0}, v{vC}, 2, v{vR0}
        s_lshl_b32 s{sTmp}, s{sW}, 6
        s_add_u32 s{sTmp}, s{sTmp}, {SB}
        v_add_u32 v{vR0}, s{sTmp}, v{vR0}
        v_add_u32 v{vR1}, {3*16384}, v{vR0}
        s_lshl_b32 s{sMw}, s{sW}, 12
        s_add_u32 s{sMw}, s{sMw}, {SB}
        """)
        vm = Cnt(A, "vmcnt", 63); ct = {}
        def cissue(c):
            if c % 8 == 0: srd(A, rW, {"q": 80, "k": 82, "v": 84}[mats[c // 8]], 4 << 20)
            for j in range(4):
                A(f"s_add_u32 m0, s{sMw}, {(c % NS)*16384 + j*1024}")
                A(f"s_mov_b32 s{sTmp}, {(64*(c % 8) + 4*j)*8192}")
                A(f"buffer_load_dwordx4 v{vS}, {s(rW,4)}, s{sTmp} offen lds"); tok = vm.issue()
            return tok
        def cstep(c, exact=True):
            if exact: vm.wait(ct[c])
            A("s_barrier")
            if c + NS - 1 < 24 and not (QLATE[0] and 16 <= c + NS - 1 <= 15 + NS): ct[c+NS-1] = cissue(c + NS - 1)
            ra = vR0 if (c % NS) < 3 else vR1; so = ((c % NS) % 3) * 64
            for i in range(8):
                o = so + 32*(i >> 2) + 2*(i & 3)
                A(f"ds_read2st64_b32 {v(16+2*i,2)}, v{ra} offset0:{o} offset1:{o+1}")
            for i in range(8):
                if i % 2 == 0: A(f"s_waitcnt lgkmcnt({6-i})")
                for t in range(2):
                    kind, base = wf(mats[c // 8], t, 2*(c % 8) + (i >> 2))
                    sel = sPerm1 if t else sPerm0
                    if kind == "v": A(f"v_perm_b32 v{base+(i&3)}, v{17+2*i}, v{16+2*i}, s{sel}")
                    else:
                        A(f"v_perm_b32 v{32+t}, v{17+2*i}, v{16+2*i}, s{sel}")
                        A(f"v_accvgpr_write_b32 a{base+(i&3)}, v{32+t}")
        for c in range(NS - 1): ct[c] = cissue(c)
        for c in range(16 if QLATE[0] else 24): cstep(c)
    wstamp(A, 3)
    wait_dword(A, "ln", D_LN, 64, 8, 9)
    wstamp(A, 4)
    sM0 = 35
    def dma_x(sseg):
        A(f"s_lshl_b32 s{sTmp}, s{sseg}, 15")
        A(f"s_add_u32 s{sTmp}, s{sTmp}, {XN}")
        A(f"s_add_u32 m0, s{sM0}, 16384")
        for k in range(8):
            if k: A(f"s_add_u32 m0, m0, 960")
            A(f"buffer_load_dwordx4 v{vXs}, {s(rWS,4)}, s{sTmp} offen offset:{64*k} sc1 lds")
        A(f"s_xor_b32 s{sM0}, s{sM0}, 32768")
    A(f"s_lshl_b32 s{sM0}, s{sW}, 13")
    A(f"s_mov_b32 s{sSeg}, s{sR}")
    A(f"s_mov_b32 s{sPrev}, 64")
    dma_x(sSeg)
    if QLATE[0]:
        for c in range(16, 16 + NQE[0]): cissue(c)
    ACC, XF, PK = 16, 64, 80
    acc = lambda tile, m, t: ACC + 4*((tile*3 + MI[m])*2 + t)
    A(f"s_waitcnt vmcnt({4*NQE[0] if QLATE[0] else 0})")
    A.label("L_p1")
    A("s_barrier")
    A.label("L_p1b")
    A(f"s_add_u32 s{sA}, s{sSeg}, {NR}")
    A(f"s_cmp_ge_u32 s{sA}, 64")
    A(f"s_cselect_b32 s{sA}, s{sR}, s{sA}")
    dma_x(sA)
    lg = Cnt(A, "lgkmcnt", 15); tk = {}
    def rdx(i):
        A(f"ds_read_b128 {v(XF+4*(i&3),4)}, v{vXB} offset:{1024*(i&31)}"); tk[i] = lg.issue()
    for i in range(3): rdx(i)
    A(f"s_lshl_b32 s{sA}, s{sSeg}, 5")
    A(f"s_add_u32 s{sA}, s{sA}, s{sHd}")
    A(f"s_lshl_b32 s{sBq}, s{sA}, 13")
    A(f"s_add_u32 s{sBq}, s{sBq}, {QX}")
    A(f"s_lshl_b32 s{sA}, s{sA}, 14")
    A(f"s_add_u32 s{sA}, s{sA}, {KV}")
    def st_t(m, tile, pk, sbase):
        for i in range(4): A(f"v_cvt_pk_bf16_f32 v{pk+i}, v{acc(tile,m,0)+i}, v{acc(tile,m,1)+i}")
        A(f"s_add_u32 s{sTmp}, s{sbase}, {4096*tile}")
        A(f"buffer_store_dwordx4 {v(pk,4)}, v{vT16}, {s(rWS,4)}, s{sTmp} offen" + (" sc1" if m == "k" else ""))
    def st_v(t):
        pk = PK + 12 + 4*t
        for tile in range(2):
            for u in range(2): A(f"v_cvt_pk_bf16_f32 v{pk+2*tile+u}, v{acc(tile,'v',t)+2*u}, v{acc(tile,'v',t)+2*u+1}")
        A(f"s_add_u32 s{sTmp}, s{sA}, {8192 + 4096*t}")
        A(f"buffer_store_dwordx4 {v(pk,4)}, v{vT16}, {s(rWS,4)}, s{sTmp} offen sc1")
    for i in range(64):
        tile, k = (i >> 4) & 1, i & 15
        lg.wait(tk[i])
        xf = v(XF+4*(i&3), 4)
        n = 0
        for m in ("kv" if i < 32 else "q"):
            for t in range(2):
                d = v(acc(tile, m, t), 4); c = 0 if k == 0 else d
                if m == "v": A(f"v_mfma_f32_16x16x32_bf16 {d}, {xf}, {wop(m,t,k)}, {c}")
                else: A(f"v_mfma_f32_16x16x32_bf16 {d}, {wop(m,t,k)}, {xf}, {c}")
                n += 1
                if n == 1 and i + 3 < 64: rdx(i + 3)
        if i == 17: st_t("k", 0, PK, sA)
        if i == 31:
            st_t("k", 1, PK+8, sA); st_v(0); st_v(1)
            if QLATE[0]:
                A(f"s_cmp_lt_u32 s{sSeg}, {2*NR if Q2[0] else NR}")
                A("s_cbranch_scc1 L_qload")
                A.label("L_qload_ret")
        if i == 49: st_t("q", 0, PK+4, sBq)
    st_t("q", 1, PK+20, sBq)
    A(f"v_xor_b32 v{vXB}, 0x8000, v{vXB}")
    A("s_waitcnt vmcnt(2)")
    A("s_barrier")
    if QLATE[0]:
        A(f"s_sub_u32 s{sTmp}, s{sSeg}, {2*NR if Q2[0] else NR}")
        A(f"s_cmp_ge_u32 s{sTmp}, {64 - (2*NR if Q2[0] else NR)}")
        A("s_cbranch_scc1 L_sigkv2")
    seg_signal(A, "kv2", sSeg, C_KV, 8, 9)
    if WST[0] and not QLATE[0]:
        A(f"s_cmp_ge_u32 s{sSeg}, {NR}")
        A("s_cbranch_scc1 L_nost2")
        wstamp(A, 2)
        A.label("L_nost2")
    A(f"s_add_u32 s{sSeg}, s{sSeg}, {NR}")
    A(f"s_cmp_lt_u32 s{sSeg}, {NR*LEAD[0]}")
    A("s_cbranch_scc1 L_p1b")
    A(f"s_cmp_lt_u32 s{sSeg}, 64")
    A("s_cbranch_scc1 L_p1_more")
    if Q2[0]:
        assert LEAD[0] == 16
        A(f"s_cmp_ge_u32 s{sSeg}, {64 + NR}")
        A("s_cbranch_scc1 L_p1_fin")
        A(f"s_lshl_b32 s{sBq}, s{sR}, 5")
        A(f"s_add_u32 s{sBq}, s{sBq}, s{sHd}")
        A(f"s_lshl_b32 s{sBq}, s{sBq}, 13")
        A(f"s_add_u32 s{sBq}, s{sBq}, {QX}")
        for i in range(3): A(f"ds_read_b128 {v(XF+4*i,4)}, v{vXB} offset:{1024*i}")
        A("s_branch L_qload_ret")
        A.label("L_p1_fin")
    A("s_waitcnt vmcnt(0)")
    A("s_barrier")
    wstamp(A, 5)
    A.label("L_p1_more")
    if not Q2[0]:
        A(f"s_cmp_ge_u32 s{sSeg}, {NR*LEAD[0]+NR}")
        A("s_cbranch_scc1 L_p2")
    if NOP2[0]: A("s_branch L_end")
    RSM = 1056; L_MN = 0; L_KM = 8704; L_VM = L_KM + 4096
    vMW, vMR, vNI, vVR, vVW = 5, 13, 14, 15, 124
    sS2 = 41
    sMask = 52
    sQo, sVo, sOo = 36, 37, 38
    A(f"""
    ; row(c)
    v_lshrrev_b32 v10, 2, v{vC}
    v_and_b32 v11, 1, v{vC}
    v_lshl_add_u32 v10, v10, 1, v11
    v_mul_u32_u24 v10, {RSM}, v10
    v_lshl_add_u32 v{vMR}, v{vG}, 4, v10
    v_lshl_add_u32 v{vMW}, v{vG}, 6, v10
    v_and_b32 v11, 2, v{vC}
    v_lshl_add_u32 v{vMW}, v11, 4, v{vMW}
    s_lshl_b32 s{sTmp}, s{sW}, 8
    v_add_u32 v{vMW}, s{sTmp}, v{vMW}
    v_mov_b32 v{vNI}, 0xff800000
    v_lshrrev_b32 v{vVW}, 1, v{vT16}
    v_lshrrev_b32 v{vVR}, 1, v{vL16}
    s_and_b32 s{sTmp}, s{sW}, 2
    s_lshl_b32 s{sVo}, s{sTmp}, 10
    s_lshl_b32 s{sTmp}, s{sTmp}, 9
    v_add_u32 v{vVR}, s{sTmp}, v{vVR}
    s_and_b32 s{sTmp}, s{sW}, 1
    s_lshl_b32 s{sQo}, s{sTmp}, 12
    s_lshl_b32 s{sOo}, s{sTmp}, 17
    s_add_u32 s{sOo}, s{sOo}, s{sVo}
    s_lshl_b32 s{sTmp2}, s{sHd}, 12
    s_add_u32 s{sOo}, s{sOo}, s{sTmp2}
    s_add_u32 s{sOo}, s{sOo}, {OX}
    s_lshl_b32 s{sTmp}, s{sTmp}, 4
    v_lshlrev_b32 v10, 2, v{vG}
    v_sub_u32 v10, v{vC}, v10
    v_add_u32 v10, s{sTmp}, v10
    s_mov_b32 s{sC}, {f2u((128 ** -0.5) * math.log2(math.e)):#x}
    """)
    for t in range(2):
        for i in range(4): A(f"v_cmp_le_i32 s[{sMask+2*(4*t+i)}:{sMask+2*(4*t+i)+1}], {16*t+i}, v10")
    wait_dword(A, "init", D_INIT, 32, 10, 11)
    QF, KF, VF, S, AM, MF = 16, 32, 64, 80, 92, 108
    t0, t1 = 10, 11
    A(f"s_mov_b32 s{sS2}, s{sR}")
    A.label("L_p2")
    A(f"""
    s_lshl_b32 s{sA}, s{sS2}, 5
    s_add_u32 s{sA}, s{sA}, s{sHd}
    s_lshl_b32 s{sBq}, s{sA}, 13
    s_add_u32 s{sBq}, s{sBq}, {QX}
    s_add_u32 s{sBq}, s{sBq}, s{sQo}
    s_lshl_b32 s{sA}, s{sA}, 14
    s_add_u32 s{sA}, s{sA}, {KV}
    """)
    for k in range(4): A(f"buffer_load_dwordx4 {v(QF+4*k,4)}, v{vL16}, {s(rWS,4)}, s{sBq} offen offset:{1024*k} sc1")
    for i in range(8):
        if i == 4: A(f"s_add_u32 s{sA}, s{sA}, 4096")
        A(f"buffer_load_dwordx4 {v(KF+4*i,4)}, v{vL16}, {s(rWS,4)}, s{sA} offen offset:{1024*(i&3)} sc1")
    A(f"s_add_u32 s{sA}, s{sA}, s{sVo}")
    for t in range(2):
        A(f"s_add_u32 s{sA}, s{sA}, 4096")
        for wp in range(2): A(f"buffer_load_dwordx4 {v(VF+4*(2*wp+t),4)}, v{vL16}, {s(rWS,4)}, s{sA} offen offset:{1024*wp} sc1")
    A("s_waitcnt vmcnt(4)")
    for k in range(4):
        for t in range(2):
            A(f"v_mfma_f32_16x16x32_bf16 {v(S+4*t,4)}, {v(KF+16*t+4*k,4)}, {v(QF+4*k,4)}, {v(S+4*t,4) if k else 0}")
    A(f"s_lshl_b32 s{sA}, s{sS2}, 13")
    A(f"s_add_u32 s{sA}, s{sA}, {MEMG}")
    A(f"s_add_u32 s{sBq}, s{sA}, 4096")
    for i in range(8): A(f"v_cndmask_b32 v{S+i}, v{vNI}, v{S+i}, s[{sMask+2*i}:{sMask+2*i+1}]")
    A(f"v_max3_f32 v12, v{S}, v{S+1}, v{S+2}")
    A(f"v_max3_f32 v12, v12, v{S+3}, v{S+4}")
    A(f"v_max3_f32 v12, v12, v{S+5}, v{S+6}")
    A(f"v_max_f32 v12, v12, v{S+7}")
    if PRE1[0]:
        A(f"""
        s_cmp_lg_u32 s{sW}, 0
        s_cbranch_scc1 L_p2_pre_ok
        v_mov_b32 v{t1}, 0
        s_sub_u32 s{sPrev}, s{sA}, 4096
        s_max_u32 s{sPrev}, s{sPrev}, {MEMG}
        L_p2_pre:
        buffer_load_dword v{t0}, v{t1}, {s(rWS,4)}, s{sPrev} offen sc1
        s_waitcnt vmcnt(0)
        v_cmp_eq_u32 vcc, -1, v{t0}
        s_cbranch_vccz L_p2_pre_ok
        s_sleep {SLP[0]}
        s_add_u32 s{sG}, s{sG}, 1
        s_cmp_lt_u32 s{sG}, {SPIN}
        s_cbranch_scc1 L_p2_pre
        L_p2_pre_ok:
        s_barrier
        """)
    A.label("L_p2_poll")
    A(f"buffer_load_dwordx4 {v(MF,4)}, v{vT16}, {s(rWS,4)}, s{sA} offen sc1")
    A(f"buffer_load_dwordx4 {v(MF+4,4)}, v{vT16}, {s(rWS,4)}, s{sBq} offen sc1")
    A(f"""
    s_waitcnt vmcnt(0)
    v_max3_u32 v{t0}, v{MF}, v{MF+1}, v{MF+2}
    v_max3_u32 v{t0}, v{t0}, v{MF+3}, v{MF+4}
    v_max3_u32 v{t0}, v{t0}, v{MF+5}, v{MF+6}
    v_max_u32 v{t0}, v{t0}, v{MF+7}
    v_cmp_eq_u32 vcc, -1, v{t0}
    s_cbranch_vccz L_p2_got
    s_sleep {2 if PRE1[0] else SLP[0]}
    s_add_u32 s{sG}, s{sG}, 1
    s_cmp_lt_u32 s{sG}, {SPIN}
    s_cbranch_scc1 L_p2_poll
    s_branch L_end
    L_p2_got:
    """)
    wstamp(A, 6)
    A(f"""
    ds_write2_b64 v{vMW}, {v(MF,2)}, {v(MF+2,2)} offset0:0 offset1:2
    ds_write2_b64 v{vMW}, {v(MF+4,2)}, {v(MF+6,2)} offset0:1 offset1:3
    s_waitcnt lgkmcnt(0)
    s_barrier
    """)
    lg = Cnt(A, "lgkmcnt", 15); tk = {}
    def rdm(k):
        A(f"ds_read_b128 {v(MF+4*(k&3),4)}, v{vMR} offset:{L_MN+64*k}"); tk[k] = lg.issue()
    for k in range(3): rdm(k)
    for k in range(16):
        lg.wait(tk[k]); xf = v(MF+4*(k&3), 4)
        for n, (m, t) in enumerate((("k",0),("k",1),("v",0),("v",1))):
            d = v(AM+4*n, 4); c = 0 if k == 0 else d
            if m == "v": A(f"v_mfma_f32_16x16x32_bf16 {d}, {xf}, {wop(m,t,k)}, {c}")
            else: A(f"v_mfma_f32_16x16x32_bf16 {d}, {wop(m,t,k)}, {xf}, {c}")
            if n == 0 and k + 3 < 16: rdm(k + 3)
    for i in range(4): A(f"v_cvt_pk_bf16_f32 v{AM+i}, v{AM+i}, v{AM+4+i}")
    A(f"ds_write_b128 v{vT16}, {v(AM,4)} offset:{L_KM}")
    A(f"v_cvt_pk_bf16_f32 v{AM+8}, v{AM+8}, v{AM+9}")
    A(f"v_cvt_pk_bf16_f32 v{AM+9}, v{AM+12}, v{AM+13}")
    A(f"ds_write_b64 v{vVW}, {v(AM+8,2)} offset:{L_VM}")
    KM, VMp, ONES, OO, LL = KF, KF+16, KF+24, AM, MF
    for i in range(4): A(f"v_mov_b32 v{ONES+i}, 0x3f803f80")
    A("s_waitcnt lgkmcnt(0)")
    A("s_barrier")
    for k in range(4): A(f"ds_read_b128 {v(KM+4*k,4)}, v{vL16} offset:{L_KM+1024*k}")
    for wp in range(2):
        for t in range(2):
            A(f"ds_read_b32 v{VMp+2*(2*wp+t)}, v{vVR} offset:{L_VM+512*wp+4*t}")
            A(f"v_mov_b32 v{VMp+2*(2*wp+t)+1}, 0")
    for k in range(4):
        A(f"s_waitcnt lgkmcnt({7-k})")
        A(f"v_mfma_f32_16x16x32_bf16 {v(S+8,4)}, {v(KM+4*k,4)}, {v(QF+4*k,4)}, {v(S+8,4) if k else 0}")
    A(f"v_max3_f32 v{t0}, v12, v{S+8}, v{S+9}")
    for sw in (32, 16):
        A(f"v_mov_b32 v{t1}, v{t0}")
        A(f"v_permlane{sw}_swap_b32 v{t0}, v{t1}")
        A(f"v_max_f32 v{t0}, v{t0}, v{t1}")
    A(f"v_mul_f32 v{t0}, s{sC}, v{t0}")
    for i in range(10): A(f"v_fma_f32 v{S+i}, v{S+i}, s{sC}, -v{t0}")
    for i in range(10): A(f"v_exp_f32 v{S+i}, v{S+i}")
    for i in range(4): A(f"v_cvt_pk_bf16_f32 v{S+i}, v{S+2*i}, v{S+2*i+1}")
    A(f"v_cvt_pk_bf16_f32 v{S+8}, v{S+8}, v{S+9}")
    A(f"v_mov_b32 v{S+9}, 0")
    A("s_waitcnt lgkmcnt(0)")
    A(f"v_mfma_f32_16x16x32_bf16 {v(LL,4)}, {v(ONES,4)}, {v(S,4)}, 0")
    for n in range(4): A(f"v_mfma_f32_16x16x32_bf16 {v(OO+4*n,4)}, {v(VF+4*n,4)}, {v(S,4)}, 0")
    A(f"v_mfma_f32_16x16x16_bf16 {v(LL,4)}, {v(ONES,2)}, {v(S+8,2)}, {v(LL,4)}")
    for n in range(4): A(f"v_mfma_f32_16x16x16_bf16 {v(OO+4*n,4)}, {v(VMp+2*n,2)}, {v(S+8,2)}, {v(OO+4*n,4)}")
    A(f"v_rcp_f32 v{t0}, v{LL}")
    A(f"s_lshl_b32 s{sA}, s{sS2}, 18")
    A(f"s_add_u32 s{sA}, s{sA}, s{sOo}")
    for wp in range(2):
        for i in range(8): A(f"v_mul_f32 v{OO+8*wp+i}, v{OO+8*wp+i}, v{t0}")
        for i in range(4): A(f"v_cvt_pk_bf16_f32 v{OO+8*wp+i}, v{OO+8*wp+i}, v{OO+8*wp+4+i}")
        A(f"buffer_store_dwordx4 {v(OO+8*wp,4)}, v{vL16}, {s(rWS,4)}, s{sA} offen offset:{1024*wp} sc1")
    A("s_waitcnt vmcnt(0)")
    A("s_barrier")
    seg_signal(A, "o", sS2, C_O, 10, 11)
    A(f"s_add_u32 s{sS2}, s{sS2}, {NR}")
    A(f"s_cmp_lt_u32 s{sSeg}, 64")
    A("s_cbranch_scc1 L_p1b")
    A(f"s_cmp_lt_u32 s{sS2}, 64")
    A("s_cbranch_scc1 L_p2")
    A("s_branch L_end")
    if QLATE[0]:
        A.label("L_qload")
        if Q2[0]:
            A(f"s_cmp_ge_u32 s{sSeg}, {NR}")
            A("s_cbranch_scc1 L_qload2")
            for c in range(16 + NQE[0], 16 + NS): cissue(c)
            A(f"s_waitcnt vmcnt({4*(NS-NQE[0])}) lgkmcnt(0)")
            A("s_barrier")
            seg_signal(A, "kv4", sSeg, C_KV, 8, 9)
            wstamp(A, 2)
            A(f"v_xor_b32 v{vXB}, 0x8000, v{vXB}")
            A(f"s_add_u32 s{sSeg}, s{sSeg}, {NR}")
            A("s_branch L_p1b")
            A.label("L_qload2")
            NQE[0] = NS
        for c in range(16 + NQE[0], 16 + NS): ct[c] = cissue(c)
        A(f"s_waitcnt vmcnt({4*(NS-NQE[0])}) lgkmcnt(0)")
        A("s_barrier")
        seg_signal(A, "kv3", sSeg, C_KV, 8, 9)
        if not Q2[0]: wstamp(A, 2)
        for c in range(16, 24):
            cstep(c, exact=(c >= 16 + NQE[0]))
        A("s_branch L_qload_ret")

def orole(A):
    vWa, vWb, vXo, vRd = 5, 6, 7, 8
    sCs, sT_ = 28, 30
    A(f"""
    s_sub_u32 s{sTmp}, s{sI}, {M0}
    s_and_b32 s{sCs}, s{sTmp}, 15
    s_lshr_b32 s{sT_}, s{sTmp}, 4
    v_lshlrev_b32 v{vWa}, 13, v{vG}
    v_lshl_add_u32 v{vWa}, v{vC}, 2, v{vWa}
    s_lshl_b32 s{sTmp}, s{sW}, 20
    s_lshl_b32 s{sTmp2}, s{sCs}, 6
    s_add_u32 s{sTmp}, s{sTmp}, s{sTmp2}
    v_add_u32 v{vWa}, s{sTmp}, v{vWa}
    v_add_u32 v{vWb}, 4096, v{vWa}
    v_lshlrev_b32 v{vXo}, 12, v{vG}
    v_lshl_add_u32 v{vXo}, v{vC}, 2, v{vXo}
    s_lshl_b32 s{sTmp}, s{sW}, 10
    s_add_u32 s{sTmp}, s{sTmp}, s{sTmp2}
    v_add_u32 v{vXo}, s{sTmp}, v{vXo}
    s_lshl_b32 s{sTmp}, s{sW}, 2
    v_add_u32 v{vRd}, s{sTmp}, v{vL16}
    """)
    if OEARLY[0]:
        wait_dword(A, "oln", D_LN, 64, 10, 11, sleep=40)
        A(f"s_mov_b32 s{sPrev}, {CNT + 4*256}")
        wait_dword(A, "okv", C_KV, 32, 10, 11, sleep=40, srdn=rWS, soff=f"s{sPrev}")
    else:
        wait_dword(A, "moe", D_MOEDONE, 1, 10, 11, sleep=40)
    wstamp(A, 3)
    srd(A, rW, 86, 4 << 20)
    def issue8(b, half, Tt):
        ks = 2*b + half
        A(f"s_mov_b32 s{sTmp}, {ks*32768}")
        for j in range(8): A(f"buffer_load_dword v{Tt+j}, v{vWa if j < 4 else vWb}, {s(rW,4)}, s{sTmp} offen offset:{1024*(j&3)}")
    load_frags(A, 16, issue8, lambda b, half, t: ("a", 4*((2*b+half)*2 + t)), [16, 32, 48], 64)
    if OEARLY[0]: wait_dword(A, "moe", D_MOEDONE, 1, 10, 11, sleep=40)
    wstamp(A, 4)
    OF, D, XX, P = 128, 16, 24, 32
    A.label("L_o")
    A(f"""
    s_lshl_b32 s{sA}, s{sT_}, 14
    buffer_load_dword v{XX}, v{vXo}, {s(rX,4)}, s{sA} offen
    s_add_u32 s{sTmp}, s{sA}, {XB}
    buffer_load_dword v{XX+1}, v{vXo}, {s(rWS,4)}, s{sTmp} offen sc1
    s_lshr_b32 s{sPrev}, s{sT_}, 1
    s_lshl_b32 s{sPrev}, s{sPrev}, 8
    s_add_u32 s{sPrev}, s{sPrev}, {CNT}
    s_lshl_b32 s{sBq}, s{sT_}, 17
    s_lshl_b32 s{sTmp}, s{sW}, 15
    s_add_u32 s{sBq}, s{sBq}, s{sTmp}
    s_add_u32 s{sBq}, s{sBq}, {OX}
    """)
    wait_dword(A, "oc", C_O, 32, 10, 11, sleep=SLP[1], srdn=rWS, soff=f"s{sPrev}")
    wstamp(A, 6)
    for ks in range(32):
        if ks and ks % 4 == 0: A(f"s_add_u32 s{sBq}, s{sBq}, 4096")
        A(f"buffer_load_dwordx4 {v(OF+4*ks,4)}, v{vL16}, {s(rWS,4)}, s{sBq} offen offset:{1024*(ks&3)} sc1")
    for ks in range(32):
        A(f"s_waitcnt vmcnt({31-ks})")
        for t in range(2):
            A(f"v_mfma_f32_16x16x32_bf16 {v(D+4*t,4)}, {v(OF+4*ks,4)}, {a(4*(2*ks+t),4)}, {v(D+4*t,4) if ks else 0}")
    A(f"ds_write_b128 v{vT16}, {v(D,4)}")
    A(f"ds_write_b128 v{vT16}, {v(D+4,4)} offset:4096")
    A("s_waitcnt lgkmcnt(0)")
    A("s_barrier")
    for t in range(2):
        for w2 in range(4): A(f"ds_read_b32 v{P+4*t+w2}, v{vRd} offset:{4096*t+1024*w2}")
    unpack(A, XX+2, XX+3, XX); unpack(A, XX+4, XX+5, XX+1)
    A("s_waitcnt lgkmcnt(0)")
    A("s_barrier")
    for t in range(2):
        A(f"v_add_f32 v{P+4*t}, v{P+4*t}, v{P+4*t+1}")
        A(f"v_add_f32 v{P+4*t+2}, v{P+4*t+2}, v{P+4*t+3}")
        A(f"v_add_f32 v{P+4*t}, v{P+4*t}, v{P+4*t+2}")
    A(f"v_cvt_pk_bf16_f32 v{P+1}, v{P}, v{P+4}")
    unpack(A, P, P+4, P+1)
    A(f"v_add_f32 v{P}, v{P}, v{XX+2}")
    A(f"v_add_f32 v{P+4}, v{P+4}, v{XX+3}")
    A(f"v_cvt_pk_bf16_f32 v{P+1}, v{P}, v{P+4}")
    unpack(A, P, P+4, P+1)
    A(f"v_add_f32 v{P}, v{P}, v{XX+4}")
    A(f"v_add_f32 v{P+4}, v{P+4}, v{XX+5}")
    A(f"v_cvt_pk_bf16_f32 v{P+1}, v{P}, v{P+4}")
    A(f"buffer_store_dword v{P+1}, v{vXo}, {s(rOUT,4)}, s{sA} offen" + OSC[0])
    A(f"s_add_u32 s{sT_}, s{sT_}, {NG}")
    A(f"s_cmp_lt_u32 s{sT_}, 128")
    A("s_cbranch_scc1 L_o")
    A("s_branch L_end")

def mrole(A):
    sM, sI0, sI1 = 28, 29, 30
    vGa, vDa, vT4 = 5, 6, 7
    rU, rD = 52, 56
    A(f"""
    s_sub_u32 s{sM}, s{sI}, {M0}
    v_lshrrev_b32 v{vGa}, 2, v{vL16}
    s_mul_i32 s{sTmp}, s{sM}, 224
    s_mul_i32 s{sTmp2}, s{sW}, {128*3584}
    s_add_u32 s{sTmp}, s{sTmp}, s{sTmp2}
    v_add_u32 v{vGa}, s{sTmp}, v{vGa}
    v_lshlrev_b32 v{vT4}, 2, v0
    s_mul_i32 s{sTmp}, s{sM}, {112*1024}
    v_add_u32 v{vDa}, s{sTmp}, v{vT4}
    """)
    pf_wo(A, M0)
    srd(A, rW, 90, 512*3584); srd(A, rU, 92, 512*3584); srd(A, rD, 94, 1792*1024)
    wait_dword(A, "lnm", D_LN, 64, 10, 11, sleep=16)
    n = 0
    def throttle():
        nonlocal n
        n += 1
        if n % 16 == 0: A("s_waitcnt vmcnt(40)")
    for k in range(128):
        A(f"s_mov_b32 s{sTmp}, {k*3584}")
        A(f"buffer_load_dword v{128+k}, v{vGa}, {s(rW,4)}, s{sTmp} offen"); throttle()
        A(f"buffer_load_dword a{k}, v{vGa}, {s(rU,4)}, s{sTmp} offen"); throttle()
    for f in range(112):
        if f % 4 == 0: A(f"s_mov_b32 s{sTmp}, {f*1024}")
        A(f"buffer_load_dword a{128+f}, v{vDa}, {s(rD,4)}, s{sTmp} offen offset:{1024*(f&3)}"); throttle()
    K, Tm = 16, 24
    A(f"v_lshlrev_b32 v10, 5, v0")
    A(f"s_mov_b32 s{sTmp}, {RL}")
    A(f"buffer_load_dwordx4 {v(K,4)}, v10, {s(rWS,4)}, s{sTmp} offen sc1")
    A(f"buffer_load_dwordx4 {v(K+4,4)}, v10, {s(rWS,4)}, s{sTmp} offen offset:16 sc1")
    A(f"v_lshlrev_b32 v10, 3, v0")
    A(f"v_sub_u32 v10, 2047, v10")
    A("s_waitcnt vmcnt(0)")
    for e in range(8):
        A(f"v_ashrrev_i32 v11, 31, v{K+e}")
        A(f"v_or_b32 v11, 0x80000000, v11")
        A(f"v_xor_b32 v{K+e}, v{K+e}, v11")
        A(f"v_and_b32 v{K+e}, 0xffff0000, v{K+e}")
        A(f"v_subrev_u32 v11, {e}, v10")
        A(f"v_or_b32 v{K+e}, v{K+e}, v11")
    A(f"s_lshl_b32 s{sTmp}, s{sW}, 2")
    A(f"v_mov_b32 v13, s{sTmp}")
    A("v_mov_b32 v14, 0")
    for rnd, sk in enumerate((sI0, sI1)):
        A(f"v_max3_u32 v12, v{K}, v{K+1}, v{K+2}")
        A(f"v_max3_u32 v12, v12, v{K+3}, v{K+4}")
        A(f"v_max3_u32 v12, v12, v{K+5}, v{K+6}")
        A(f"v_max_u32 v12, v12, v{K+7}")
        allreduce(A, "v_max_u32", [12], [11])
        A(f"ds_write_b32 v13, v12 offset:{16*rnd}")
        A("s_waitcnt lgkmcnt(0)")
        A("s_barrier")
        A(f"ds_read_b128 {v(Tm,4)}, v14 offset:{16*rnd}")
        A("s_waitcnt lgkmcnt(0)")
        A(f"v_max3_u32 v12, v{Tm}, v{Tm+1}, v{Tm+2}")
        A(f"v_max_u32 v12, v12, v{Tm+3}")
        A(f"v_readfirstlane_b32 s{sk}, v12")
        if rnd == 0:
            for e in range(8):
                A(f"v_cmp_ne_u32 vcc, v12, v{K+e}")
                A(f"v_cndmask_b32 v{K+e}, 0, v{K+e}, vcc")
    for sk in (sI0, sI1):
        A(f"s_and_b32 s{sk}, s{sk}, 0x7ff")
        A(f"s_sub_u32 s{sk}, 2047, s{sk}")
    X0, X1, R0 = 16, 17, 18
    for sk, xr, rr in ((sI0, X0, R0), (sI1, X1, R0+1)):
        A(f"s_lshl_b32 s{sTmp}, s{sk}, 10")
        A(f"s_add_u32 s{sTmp}, s{sTmp}, {XN}")
        A(f"buffer_load_dword v{xr}, v{vT4}, {s(rWS,4)}, s{sTmp} offen sc1")
        A(f"s_lshl_b32 s{sTmp}, s{sk}, 2")
        A(f"s_add_u32 s{sTmp}, s{sTmp}, {RL}")
        A(f"buffer_load_dword v{rr}, v14, {s(rWS,4)}, s{sTmp} offen sc1")
    AC = 24
    for i in range(8): A(f"v_mov_b32 v{AC+i}, 0")
    A("s_waitcnt vmcnt(0)")
    U = 32
    for p in range(64):
        sx = 60 + 6*(p & 1)
        A(f"v_readlane_b32 s{sx}, v{X0}, {p}")
        A(f"v_readlane_b32 s{sx+1}, v{X1}, {p}")
        for u in range(2): A(f"v_accvgpr_read_b32 v{U+4+u}, a{2*p+u}")
        A(f"s_lshl_b32 s{sx+2}, s{sx}, 16"); A(f"s_lshl_b32 s{sx+3}, s{sx+1}, 16")
        A(f"s_and_b32 s{sx+4}, s{sx}, 0xffff0000"); A(f"s_and_b32 s{sx+5}, s{sx+1}, 0xffff0000")
        for u in range(2):
            for mat in range(2):
                unpack(A, U+2*mat, U+2*mat+1, (128+2*p+u) if mat == 0 else (U+4+u))
            for mat in range(2):
                for tok in range(2):
                    for col in range(2):
                        A(f"v_fmac_f32 v{AC+4*mat+2*tok+col}, s{sx+2+2*u+tok}, v{U+2*mat+col}")
    LR, LH = 64, 64 + 8192
    A(f"ds_write_b128 v{vT16}, {v(AC,4)} offset:{LR}")
    A(f"ds_write_b128 v{vT16}, {v(AC+4,4)} offset:{LR+4096}")
    A("s_waitcnt lgkmcnt(0)")
    A("s_barrier")
    Pp = 40
    for mat in range(2):
        for w2 in range(4): A(f"ds_read_b128 {v(Pp+16*mat+4*w2,4)}, v{vL16} offset:{LR+4096*mat+1024*w2}")
    A("s_waitcnt lgkmcnt(0)")
    for mat in range(2):
        for i in range(4):
            b = Pp + 16*mat + i
            A(f"v_add_f32 v{b}, v{b}, v{b+4}"); A(f"v_add_f32 v{b+8}, v{b+8}, v{b+12}"); A(f"v_add_f32 v{b}, v{b}, v{b+8}")
            rnd_bf(A, b)
    def sigmoid(dst, src):
        A(f"v_mul_f32 v{dst}, {f2u(-math.log2(math.e)):#x}, v{src}")
        A(f"v_exp_f32 v{dst}, v{dst}")
        A(f"v_add_f32 v{dst}, 1.0, v{dst}")
        A(f"v_rcp_f32 v{dst}, v{dst}")
    for i in range(4):
        sigmoid(Pp+4+i, Pp+i)
        A(f"v_mul_f32 v{Pp+i}, v{Pp+i}, v{Pp+4+i}")
        rnd_bf(A, Pp+i)
        A(f"v_mul_f32 v{Pp+i}, v{Pp+i}, v{Pp+16+i}")
        rnd_bf(A, Pp+i)
    A(f"ds_write_b128 v{vL16}, {v(Pp,4)} offset:{LH}")
    for i in range(4): A(f"v_mov_b32 v{AC+i}, 0")
    A("s_waitcnt lgkmcnt(0)")
    HB = 40
    for blk in range(7):
        for q in range(8): A(f"ds_read_b128 {v(HB+4*q,4)}, v14 offset:{LH+16*(8*blk+q)}")
        A("s_waitcnt lgkmcnt(0)")
        for q in range(8):
            for u in range(2):
                f = 2*(8*blk+q) + u
                A(f"v_accvgpr_read_b32 v{U+2}, a{128+f}")
                unpack(A, U, U+1, U+2)
                for tok in range(2):
                    for col in range(2):
                        A(f"v_fmac_f32 v{AC+2*tok+col}, v{HB+4*q+2*tok+u}, v{U+col}")
    A(f"s_lshl_b32 s{sTmp}, s{sM}, 12")
    A(f"s_add_u32 s{sTmp}, s{sTmp}, {MOEP}")
    A(f"buffer_store_dwordx4 {v(AC,4)}, v{vT16}, {s(rWS,4)}, s{sTmp} offen sc1")
    A("s_waitcnt vmcnt(0)")
    A("s_barrier")
    signal(A, "moe", lambda: A(f"v_mov_b32 v10, {D_MOE}\nv_mov_b32 v11, 1"), 10, 11, ret=True)
    A("s_waitcnt vmcnt(0)")
    A(f"s_cmp_lg_u32 s{sW}, 0")
    A("s_cbranch_scc1 L_m_w")
    A("s_mov_b64 exec, 1")
    A("ds_write_b32 v14, v11 offset:32")
    A("s_mov_b64 exec, -1")
    A.label("L_m_w")
    A("s_waitcnt lgkmcnt(0)")
    A("s_barrier")
    A("ds_read_b32 v11, v14 offset:32")
    A("s_waitcnt lgkmcnt(0)")
    A(f"v_readfirstlane_b32 s{sTmp}, v11")
    A(f"s_cmp_lg_u32 s{sTmp}, 15")
    A("s_cbranch_scc1 L_orole2")
    for m in range(16):
        A(f"s_mov_b32 s{sTmp}, {MOEP + 4096*m}")
        A(f"buffer_load_dwordx4 {v(40+4*m,4)}, v{vT16}, {s(rWS,4)}, s{sTmp} offen sc1")
    for tok in range(2):
        sigmoid(U+tok, R0+tok); rnd_bf(A, U+tok)
    A("s_waitcnt vmcnt(0)")
    for m in range(1, 16):
        for i in range(4): A(f"v_add_f32 v{40+i}, v{40+i}, v{40+4*m+i}")
    for tok, (sk, xr) in enumerate(((sI0, X0), (sI1, X1))):
        unpack(A, U+2, U+3, xr)
        for col in range(2):
            r = 40 + 2*tok + col
            rnd_bf(A, r)
            A(f"v_mul_f32 v{r}, v{r}, v{U+tok}")
            rnd_bf(A, r)
            A(f"v_add_f32 v{r}, v{r}, v{U+2+col}")
        A(f"v_cvt_pk_bf16_f32 v{48+tok}, v{40+2*tok}, v{41+2*tok}")
        A(f"s_lshl_b32 s{sTmp}, s{sk}, 10")
        A(f"s_add_u32 s{sTmp}, s{sTmp}, {XB}")
        A(f"buffer_store_dword v{48+tok}, v{vT4}, {s(rWS,4)}, s{sTmp} offen sc1")
    A("s_waitcnt vmcnt(0)")
    A("s_barrier")
    signal(A, "moed", lambda: A(f"v_mov_b32 v10, {D_MOEDONE}\nv_mov_b32 v11, 1"), 10, 11)
    A("s_branch L_orole2")

HEADER = open("cdna_kernels/" + NAME + ".s.ref").read().split("; Override launch geometry")[0] if __import__("os").path.exists("cdna_kernels/" + NAME + ".s.ref") else ""

DOC = """
Persistent kernel, one 256-thread workgroup per CU; roles are chosen at run time from HW_REG_XCC_ID + tickets in d_debug.
 team (the 32 workgroups found on one XCD, one head each): the 63-step memory recurrence. Wq/Wk/Wv/Wo of the head stay in
   registers + LDS; the 8 memory rows use the 2:4-sparse MFMA (two K halves per row pair). Per step two hand-offs through
   that XCD's own L2 (partials -> reduce -> new memory), every dword validated against an all-ones sentinel.
 H workers (4 per head): Q/K/V projection of the tokens, then token attention once mem_s is published (sc1 hand-offs).
 O workers: layernorm + router logits first, later Wo projection + residual adds.  M workers: top-2 + expert FFN, then O.
All waits are bounded spins.  Generated by a python script (register maps / schedules written by hand).
"""

def gen_full(**kw):
    A = Asm()
    WST[0] = kw.get("stamps") == 2
    for ln_ in HEADER.strip().split("\n"):
        if ln_: A.raw(ln_)
    A.raw(f"; @launch grid=(256,1,1) block=(256,1,1) lds=163840")
    A.raw('.amdgcn_target "amdgcn-amd-amdhsa--gfx950"')
    for ln_ in DOC.strip("\n").split("\n"): A.raw("; " + ln_)
    A.raw(".text")
    kernel_begin(A, NAME + "_kernel")
    A(f"""
    s_cmp_ge_u32 s2, 256
    s_cbranch_scc1 L_end0
    """)
    T.entry(A, bool(kw.get("stamps")))
    srd(A, rWS, 6, T.WS_BYTES)
    srd(A, rDBG, 4, 256)
    T.role_select(A, "L_worker", force=kw.pop("force", None), cwarm=kw.pop("cwarm", False))
    WPF[0] = kw.pop("wpf", False)
    OPF[0] = kw.pop("opf", True)
    SLP[:] = kw.pop("slp", [8, 2])
    OPN[0] = kw.pop("opn", 2)
    OSC[0] = kw.pop("osc", "")
    noo = kw.pop("noo", False)
    NOP2[0] = kw.pop("nop2", False)
    PRE1[0] = kw.pop("pre1", True)
    HDMA[0] = kw.pop("hdma", True)
    WPW[0] = kw.pop("wpw", 4)
    QLATE[0] = kw.pop("qlate", True)
    NQE[0] = kw.pop("nqe", 2)
    LEAD[0] = kw.pop("lead1", 6)
    OEARLY[0] = kw.pop("oearly", False)
    Q2[0] = kw.pop("q2", False)
    T.team(A, kvchk=True, **kw)
    A.label("L_end0")
    A("s_endpgm")
    A.label("L_worker")
    common(A)
    A(f"s_cmp_ge_u32 s{sI}, {O0}")
    A("s_cbranch_scc1 L_orole")
    A(f"s_cmp_ge_u32 s{sI}, {M0}")
    A("s_cbranch_scc1 L_mrole")
    hrole(A)
    A.label("L_orole")
    ln(A)
    A.label("L_orole2")
    if noo: A("s_branch L_end")
    orole(A)
    A.label("L_end")
    A("s_waitcnt vmcnt(0)")
    if WST[0]:
        wstamp(A, 7)
        A("s_mov_b64 exec, 1")
        for i, r in enumerate([72,73,74,75,98,99,100,101]): A(f"v_mov_b32 v{16+i}, s{r}")
        A(f"s_lshl_b32 s{sTmp}, s{sH}, 5")
        A(f"s_add_u32 s{sTmp}, s{sTmp}, {T.RES + 32768}")
        A("v_mov_b32 v0, 0")
        A(f"buffer_store_dwordx4 v[16:19], v0, {s(rWS,4)}, s{sTmp} offen")
        A(f"buffer_store_dwordx4 v[20:23], v0, {s(rWS,4)}, s{sTmp} offen offset:16")
        A("s_waitcnt vmcnt(0)")
    A("s_endpgm")
    A.label("L_mrole")
    mrole(A)
    A.label("L_code_end")
    A.raw('.section .rodata,"a"')
    A.raw(descriptor(NAME + "_kernel", 512, 102, 256))
    T.STAMP_NAMES = A.stamp_names
    return A.text()

if __name__ == "__main__":
    txt = gen_full()
    open("full.s", "w").write(txt)
    open("cdna_kernels/" + NAME + ".s", "w").write(txt)
```

```python
from asmlib import *

H2 = 0
H1 = 1 << 20
RES = (1 << 20) + (256 << 10)
XN = 2 << 20
KV = 16 << 20
QX = 50 << 20
MEMG = (1 << 20) + (512 << 10)
WS_BYTES = 256 << 20

L_MEM = 0; L_KX = 8192; L_VX = 16384; L_Q = 24576; L_K = 24576 + 256; L_O = 29184; L_ST = 31744; L_W = 32768
RS = 544; RSO = 320
L_F = 24576 + 8*544

rWS, rDBG, rW = 8, 12, 16
sX, sW, sT, sH = 20, 21, 22, 23
sStep, sTmp, sG, sTmp2 = 24, 25, 26, 27
sO1, sO1b, sO2, sO2b = 28, 29, 30, 31
sRd2, sPubO, sRst2, sRst1 = 32, 33, 34, 35
sKV, sMG, sC, sPerm0, sPerm1 = 36, 37, 38, 39, 40
sB = 44
sRetA, sRetB, sRet2 = 48, 49, 50
sMK, sMV, sRd, sPF = 41, 42, 100, 101
sSt = 56
SPIN = 400000
D_WIN, D_INIT, D_LN, D_MOE, D_MOEDONE = 4, 36, 68, 100, 132
CNT = (1 << 20) + (128 << 10)
C_KV, C_O = 0, 128
FLG = (1 << 20) + (64 << 10)
sFl, sFlS, sK = 62, 63, 64
sCm = 66
sRdy = 51

vIdx, vL16, vT16, vT16b, vT16c, vM1, vM2, vM3, vSt2, vQW, vQR, vOW, vOR = range(1, 14)
vT0, vT1, vPD = 0, 14, 15
MEMA = 16
ACCA = 48
ACCB = 56
STG = 64
POOL = 80
ACCV = 112
NEG = 120
S = MEMA + 4
VMR = 124

LDSF = [("q",1,0),("k",0,0),
        ("q",0,4),("k",1,4),
        ("k",0,2),("q",1,3)]
LDSF += [("o", i >> 1, i & 1) for i in (0, 1, 2, 4, 6, 8, 10, 12, 13, 15, 14)]
ALLF = [(m,t,sl) for m in "qkv" for sl in range(8) for t in range(2)] + [("o",t,k) for k in range(2) for t in range(8)]
HOME = {}
_n = 0
for f in ALLF:
    if f in LDSF: HOME[f] = ("l", LDSF.index(f))
    else:
        HOME[f] = ("a", 8*_n) if _n < 32 else ("v", 128 + 8*(_n-32)); _n += 1
assert _n == 47
KST = 248

def lds_frag_addr(idx, part):
    off = L_W + (2*idx + part) * 4096
    if idx == 16: off = L_VX + part * 4096
    if off < 65536: return vT16, off
    if off < 131072: return vT16b, off - 65536
    return vT16c, off - 131072

class Cnt:
    def __init__(self, A, name, cap): self.A, self.name, self.cap, self.n = A, name, cap, 0
    def issue(self): self.n += 1; return self.n
    def wait(self, tok):
        k = self.n - tok
        if k <= self.cap: self.A(f"s_waitcnt {self.name}({k})")
        else: self.A(f"s_waitcnt {self.name}({self.cap})")

def role_select(A, lab_worker, prefetch=False, force=None):
    if prefetch:
        A(f"""
        s_cmp_lt_u32 s{sW}, 2
        s_cbranch_scc1 L_nopf
        s_lshr_b32 s{sTmp}, s2, 6
        s_lshl_b32 s{sTmp}, s{sTmp}, 3
        s_add_u32 s{sTmp}, s{sTmp}, 16
        s_load_dwordx2 s[80:81], s[0:1], s{sTmp}
        s_and_b32 s{sTmp}, s2, 63
        s_lshl_b32 s{sTmp}, s{sTmp}, 16
        v_and_b32 v3, 127, v0
        v_lshlrev_b32 v3, 4, v3
        s_waitcnt lgkmcnt(0)
        """)
        srd(A, rW, 80, 4 << 20)
        for i in range(32):
            if i % 2 == 0 and i: A(f"s_add_u32 s{sTmp}, s{sTmp}, 4096")
            A(f"buffer_load_dwordx4 v[{128+4*(i&7)}:{131+4*(i&7)}], v3, {s(rW,4)}, s{sTmp} offen offset:{2048*(i&1)}")
        A.label("L_nopf")
    A(f"""
    s_cmp_lg_u32 s{sW}, 0
    s_cbranch_scc1 L_role_wait
    s_mov_b64 exec, 1
    v_mov_b32 v3, 1
    s_lshl_b32 s{sTmp}, s{sX}, 5
    v_mov_b32 v4, s{sTmp}
    buffer_atomic_add v3, v4, {s(rDBG,4)}, 0 offen sc0
    s_add_u32 s{sTmp}, s{sX}, 1
    v_mov_b32 v5, 0
    s_mov_b32 s{sG}, 0
    s_cmp_ge_u32 s2, 64
    s_cbranch_scc1 L_poll_win
    {f"s_cmp_eq_u32 s{sX}, {force}" if force is not None else f"s_and_b32 s{sStep}, s{sX}, 3"}
    s_cbranch_scc1 L_bid
    L_poll_win:
    buffer_load_dword v6, v5, {s(rDBG,4)}, 0 offen offset:{D_WIN} sc1
    s_waitcnt vmcnt(0)
    v_readfirstlane_b32 s{sStep}, v6
    s_cmp_lg_u32 s{sStep}, 0
    s_cbranch_scc1 L_have_win
    s_add_u32 s{sG}, s{sG}, 1
    s_cmp_lt_u32 s{sG}, {12 if force is None else 1000}
    s_cbranch_scc1 L_poll_win
    L_bid:
    v_mov_b32 v6, s{sTmp}
    v_mov_b32 v7, 0
    buffer_atomic_cmpswap v[6:7], v5, {s(rDBG,4)}, 0 offen offset:{D_WIN} sc0
    s_waitcnt vmcnt(0)
    v_readfirstlane_b32 s{sStep}, v6
    s_cmp_eq_u32 s{sStep}, 0
    s_cselect_b32 s{sStep}, s{sTmp}, s{sStep}
    L_have_win:
    v_readfirstlane_b32 s{sT}, v3
    s_mov_b32 s{sH}, 0xffff
    s_cmp_gt_u32 s{sT}, 31
    s_cbranch_scc1 L_role_done
    s_sub_u32 s{sStep}, s{sStep}, 1
    s_xor_b32 s{sStep}, s{sStep}, s{sX}
    s_sub_u32 s{sH}, s{sStep}, 3
    s_add_u32 s{sTmp}, s{sStep}, 4
    s_cmp_ge_u32 s{sStep}, 4
    s_cselect_b32 s{sH}, s{sH}, s{sTmp}
    s_cmp_eq_u32 s{sStep}, 0
    s_cselect_b32 s{sH}, 0, s{sH}
    s_lshl_b32 s{sH}, s{sH}, 5
    s_add_u32 s{sH}, s{sH}, s{sT}
    L_role_done:
    v_mov_b32 v3, s{sH}
    v_mov_b32 v4, 0
    ds_write_b32 v4, v3
    s_mov_b64 exec, -1
    L_role_wait:
    s_waitcnt lgkmcnt(0)
    s_barrier
    v_mov_b32 v4, 0
    ds_read_b32 v3, v4
    s_waitcnt lgkmcnt(0)
    v_readfirstlane_b32 s{sH}, v3
    s_barrier
    s_cmp_gt_u32 s{sH}, 31
    s_cbranch_scc1 {lab_worker}
    """)

def team(A, nsteps=64, stamps=False, ctl=6, z0=13, dA=0, gapB=6, nsets=2, dR=(24,4,16,12), n2=2, dAA=0, bar1=1, bar2=1, pfd=0, usepk=True, rt=False, off="pf", cs=((3,6),(5,6)), kvchk=False, trace=False, gapAB=2, na=2, d3r=2, joint=True, bonly=False, fsl=(), fnop=3, cpre=0, fill_at=4, kfasync=True, lead=0, ks=28, linw=0, dmaw=True, wo_at=(1, 2, 3, 5), ea=False, eb=6, dE=16, dE2=8, hseq="Az.B_A.BRSr", g2=0, ob64=True, one=True, nzo=2, shift=1, kxe=False, kep=0, vpre=7, rsm=False, rt4=False, hv=1, vpf=False, ltrace=False, retouch=True, kfd=5, m4=True, osw=True, g10=2, fq=False):
    nst = [0]
    names = []
    def stamp(name=""):
        if stamps != 1: return
        k = nst[0]; nst[0] += 1
        assert k < 23
        names.append(name)
        A(f"s_mem{'real' if rt else ''}time s[{52+2*k}:{53+2*k}]")
    A.stamp_names = names
    if stamps == 2: A("s_memrealtime s[92:93]")
    vC, vG, vLn = 16, 17, 18
    x0, x1, x2, x3 = 19, 20, 21, 22
    vWq, vWq2, vWv, vWv2, vWo = 23, 24, 25, 26, 27
    vPubT = 28
    A(f"""
    {"s_mov_b32 s90, s3" if stamps == 2 else ""}
    v_and_b32 v{vLn}, 63, v0
    v_and_b32 v{vC}, 15, v0
    v_lshrrev_b32 v{vG}, 4, v{vLn}
    v_lshlrev_b32 v{vL16}, 4, v{vLn}
    v_lshlrev_b32 v{vT16}, 4, v0
    v_add_u32 v{vT16b}, 0x10000, v{vT16}
    v_add_u32 v{vT16c}, 0x20000, v{vT16}
    v_xor_b32 v{vM1}, 1024, v{vT16}
    v_xor_b32 v{vM2}, 2048, v{vT16}
    v_xor_b32 v{vM3}, 3072, v{vT16}
    v_and_b32 v{x0}, 2, v{vC}
    v_cmp_ne_u32 vcc, 0, v{x0}
    v_mov_b32 v{x1}, 0x4444
    v_mov_b32 v{x2}, 0xeeee
    v_cndmask_b32 v{vIdx}, v{x1}, v{x2}, vcc
    v_and_b32 v{x3}, 4, v{vC}
    v_cmp_ne_u32 vcc, 0, v{x3}
    v_cndmask_b32 v{x1}, v{x1}, v{x2}, vcc
    v_lshl_or_b32 v{vIdx}, v{x1}, 16, v{vIdx}
    ; row(c) = 2*(c>>2) + (c&1)
    v_lshrrev_b32 v{x1}, 2, v{vC}
    v_and_b32 v{x2}, 1, v{vC}
    v_lshl_add_u32 v{x1}, v{x1}, 1, v{x2}
    v_mul_u32_u24 v{x3}, {RSO}, v{x1}
    v_lshl_add_u32 v{vOR}, v{vG}, 5, v{x3}
    v_lshl_add_u32 v{vOR}, v{x0}, 3, v{vOR}
    v_and_b32 v30, 4, v{vC}
    v_lshlrev_b32 v30, 2, v30
    {f"v_xor_b32 v{vOR}, v{vOR}, v30" if osw else ""}
    {f"v_lshlrev_b32 v{x3}, 1, v{x0}" if m4 else ""}
    {f"v_xor_b32 v{x1}, v{x1}, v{x3}" if m4 else ""}
    v_mul_u32_u24 v{x3}, {RSO}, v{x1}
    v_mul_u32_u24 v{x1}, {RS}, v{x1}
    v_lshl_add_u32 v{vQR}, v{vG}, 4, v{x1}
    s_lshl_b32 s{sTmp}, s{sW}, 6
    v_lshl_add_u32 v{vOW}, v{vG}, 4, v{x3}
    v_add_u32 v{vOW}, s{sTmp}, v{vOW}
    {f"v_lshl_add_u32 v{vOW}, v{x0}, 2, v{vOW}" if ob64 else ""}
    {f"v_xor_b32 v{vOW}, v{vOW}, v30" if osw else ""}
    v_mul_u32_u24 v{x1}, {2*RS}, v{vG}
    v_lshl_add_u32 v{x1}, v{vC}, 2, v{x1}
    v_add_u32 v{vQW}, s{sTmp}, v{x1}
    v_add_u32 v{vQW}, {L_Q}, v{vQW}
    ; vSt2 = (8w + c>>1)*4096 + (g>>1)*2048 + h*64 + (2(g&1) + (c&1))*16
    v_lshrrev_b32 v{x1}, 1, v{vC}
    s_lshl_b32 s{sTmp}, s{sW}, 3
    v_add_u32 v{x1}, s{sTmp}, v{x1}
    v_lshlrev_b32 v{x1}, 12, v{x1}
    v_lshrrev_b32 v{x3}, 1, v{vG}
    v_lshl_add_u32 v{x1}, v{x3}, 11, v{x1}
    v_and_b32 v{x0}, 1, v{vG}
    v_lshl_add_u32 v{x1}, v{x0}, 5, v{x1}
    v_lshl_add_u32 v{x1}, v{x2}, 4, v{x1}
    s_lshl_b32 s{sTmp}, s{sH}, 6
    v_add_u32 v{vSt2}, s{sTmp}, v{x1}
    v_bfe_u32 v{x1}, v{vC}, 1, 1
    s_and_b32 s{sTmp}, s{sW}, 2
    v_add_u32 v{x1}, s{sTmp}, v{x1}
    v_lshl_add_u32 v30, v{x1}, 2, v{x3}
    v_lshlrev_b32 v30, 4, v30
    v_lshl_add_u32 v30, v{x2}, 3, v30
    v_lshl_add_u32 v30, v{x0}, 2, v30
    s_lshr_b32 s{sTmp}, s{sH}, 1
    s_lshl_b32 s{sTmp}, s{sTmp}, 8
    s_and_b32 s{sTmp2}, s{sH}, 1
    s_lshl_b32 s{sTmp2}, s{sTmp2}, 5
    s_add_u32 s{sTmp}, s{sTmp}, s{sTmp2}
    v_add_u32 v30, s{sTmp}, v30
    v_cmp_gt_u32 vcc, 4, v{vC}
    v_mov_b32 v{vPubT}, 0x7f000000
    v_cndmask_b32 v{vPubT}, v{vPubT}, v30, vcc
    v_mov_b32 v{vT1}, v{vPubT}
    v_lshl_add_u32 v{x1}, v{x1}, 1, v{x3}
    v_lshlrev_b32 v{x1}, 10, v{x1}
    v_lshl_add_u32 v{x1}, v{x2}, 4, v{x1}
    v_lshl_add_u32 v{x1}, v{x0}, 2, v{x1}
    s_lshl_b32 s{sTmp}, s{sH}, 5
    v_add_u32 v29, s{sTmp}, v{x1}
    v_lshlrev_b32 v{x2}, 4, v{x2}
    v_mov_b32 v{x3}, 0x3f80
    v_lshlrev_b32 v{x3}, v{x2}, v{x3}
    v_lshrrev_b32 v{x2}, {3 if rsm else 2}, v{vC}
    """)
    for r in range(4):
        A(f"v_cmp_eq_u32 vcc, {r & 1 if rsm else r}, v{x2}")
        A(f"v_cndmask_b32 v{32+r}, 0, v{x3}, vcc")
    A(f"ds_write_b128 v{vL16}, v[32:35] offset:{L_ST}")
    A(f"""
    v_lshrrev_b32 v{x0}, 1, v{vG}
    v_and_b32 v{x1}, 1, v{vG}
    v_lshlrev_b32 v{x2}, 18, v{x0}
    v_lshl_add_u32 v{x2}, v{x1}, 16, v{x2}
    s_lshl_b32 s{sTmp}, s{sH}, 8
    s_lshl_b32 s{sTmp2}, s{sW}, 6
    s_add_u32 s{sTmp}, s{sTmp}, s{sTmp2}
    v_add_u32 v{x2}, s{sTmp}, v{x2}
    v_lshl_add_u32 v{vWq}, v{vC}, 2, v{x2}
    v_add_u32 v{vWq2}, 0x2000, v{vWq}
    ; Wo: (16(g>>1) + 4(g&1))*1024 + h*131072 + 256w + 16c
    v_lshlrev_b32 v{x2}, 12, v{x1}
    v_lshl_add_u32 v{x2}, v{x0}, 14, v{x2}
    v_lshl_add_u32 v{x2}, v{vC}, 4, v{x2}
    s_lshl_b32 s{sTmp}, s{sH}, 17
    s_lshl_b32 s{sTmp2}, s{sW}, 8
    s_add_u32 s{sTmp}, s{sTmp}, s{sTmp2}
    v_add_u32 v{vWo}, s{sTmp}, v{x2}
    s_mov_b32 s{sPerm0}, 0x05040100
    s_mov_b32 s{sPerm1}, 0x07060302
    v_lshrrev_b32 v{vWv}, 4, v0
    v_lshlrev_b32 v{vWv}, 13, v{vWv}
    v_lshl_add_u32 v{vWv}, v{vC}, 4, v{vWv}
    s_lshl_b32 s{sTmp}, s{sH}, 8
    v_add_u32 v{vWv}, s{sTmp}, v{vWv}
    """)
    for i in range(4):
        A(f"s_xor_b32 s{sB+i}, s{sW}, {i}")
        A(f"s_lshl_b32 s{sB+i}, s{sB+i}, 20")
    NG_ = 112
    for i in range(4): A(f"v_mov_b32 v{NG_+i}, -1")
    A(f"s_lshl_b32 s{sRst2}, s{sH}, 12")
    A(f"s_and_b32 s{sPubO}, s{sW}, 1")
    A(f"s_lshl_b32 s{sTmp2}, s{sPubO}, 3")
    A(f"s_lshl_b32 s{sPubO}, s{sPubO}, 12")
    A(f"s_add_u32 s{sMG}, s{sPubO}, {MEMG}")
    A(f"s_add_u32 s{sPubO}, s{sPubO}, {H1}")
    A("s_waitcnt lgkmcnt(0)")
    srd(A, rW, 78, 8192)
    A(f"buffer_load_dword v{vPD}, v29, {s(rW,4)}, s{sTmp2} offen")
    def fills():
        for sl in range(4 if rt4 else 2):
            for x in range(2):
                A(f"s_add_u32 s{sTmp}, s{sRst2}, {H2 + sl*(256<<10) + x*(128<<10)}")
                A(f"buffer_store_dwordx4 {v(NG_,4)}, v{vT16}, {s(rWS,4)}, s{sTmp} offen"); vm.issue()
        A(f"s_lshl_b32 s{sTmp2}, s{sH}, 14")
        for i in range(4):
            A(f"s_add_u32 s{sTmp}, s{sTmp2}, {MEMG + i*4096}")
            A(f"buffer_store_dwordx4 {v(NG_,4)}, v{vT16}, {s(rWS,4)}, s{sTmp} offen sc1"); vm.issue()
        for sl in range(1, 4):
            A(f"s_add_u32 s{sTmp}, s{sPubO}, {sl*8192}")
            A(f"buffer_store_dword v{NG_}, v{vPubT}, {s(rWS,4)}, s{sTmp} offen"); vm.issue()
        A(f"v_min_u32 v{vPD}, 0xfffffffe, v{vPD}")
        A(f"buffer_store_dword v{vPD}, v{vPubT}, {s(rWS,4)}, s{sPubO} offen"); vm.issue()
        if not fsl: return
        A(f"s_lshr_b32 s{sFl}, s{sW}, 1")
        A(f"s_mul_i32 s{sFl}, s{sFl}, 1280")
        A(f"s_add_u32 s{sFl}, s{sFl}, {FLG}")
        A(f"s_bitcmp1_b32 s{sW}, 0")
        A(f"s_cselect_b32 s{sFl}, s{sFl}, 0x7f000000")
        A(f"s_add_u32 s{sFlS}, s{sH}, {FLG}")
        A(f"s_cmp_eq_u32 s{sW}, 0")
        A(f"s_cselect_b32 s{sFlS}, s{sFlS}, 0x7f000000")
        A(f"v_lshlrev_b32 v31, 4, v{vL16}")
        A("s_mov_b64 exec, 0x3ff")
        A(f"buffer_store_byte v{NG_}, v31, {s(rWS,4)}, s{sFlS} offen"); vm.issue()
        A("s_mov_b64 exec, -1")
    def arrive():
        A("s_barrier")
        A(f"""
        s_cmp_lg_u32 s{sW}, 0
        s_cbranch_scc1 L_t_arrived
        s_mov_b64 exec, 1
        v_mov_b32 v{NG_}, 1
        v_mov_b32 v{NG_+1}, 0
        buffer_atomic_add v{NG_}, v{NG_+1}, {s(rDBG,4)}, 0 offen offset:{D_INIT}
        s_mov_b64 exec, -1
        L_t_arrived:
        """)
    TB = [32, 48, 64, 80]
    PT = 96
    vm = Cnt(A, "vmcnt", 63)
    batches = []
    ob = [("o", k, bp) for k in range(2) for bp in range(4)]
    for mi, m in enumerate("qkv"):
        for sl in range(8):
            batches.append((m, sl))
            if (8*mi + sl) % 3 == 0: batches.append(ob.pop(0))
    TB = [32, 48, 64, 80, 116 - 4]
    rWo = 52
    srd(A, rWo, 86, 4 << 20)
    def issue(bi):
        b = batches[bi]; T = TB[bi % 4]
        if b[0] != "o":
            m, sl = b
            if sl == 0: srd(A, rW, {"q": 80, "k": 82, "v": 84}[m], 4 << 20)
            va, vb = vWq, vWq2
            if linw == 1:
                for j in range(4):
                    A(f"s_lshl_b32 s{sTmp}, s{sH}, 17")
                    A(f"s_add_u32 s{sTmp}, s{sTmp}, {sl*16384 + j*4096}")
                    A(f"buffer_load_dwordx4 {v(T+4*j,4)}, v{vT16}, {s(rW,4)}, s{sTmp} offen"); tok = vm.issue()
                return tok
            if linw == 2:
                for j in range(4):
                    A(f"s_mov_b32 s{sTmp}, {(sl*64 + j*16)*8192}")
                    A(f"buffer_load_dwordx4 {v(T+4*j,4)}, v{vWv}, {s(rW,4)}, s{sTmp} offen"); tok = vm.issue()
                return tok
            for be in range(8):
                row = 64*(be >> 2) + 16*(be & 1) + 4*(sl >> 2) + 2*((be >> 1) & 1)
                A(f"s_add_u32 s{sTmp}, s{sB+(sl&3)}, {row*8192}")
                A(f"buffer_load_dword v{T+2*be}, v{va}, {s(rW,4)}, s{sTmp} offen"); vm.issue()
                A(f"buffer_load_dword v{T+2*be+1}, v{vb}, {s(rW,4)}, s{sTmp} offen"); tok = vm.issue()
        else:
            _, k, bp = b
            for j in range(2):
                be = 2*bp + j
                row = 64*k + 32*(be >> 2) + 8*(be & 1) + 2*((be >> 1) & 1)
                A(f"s_mov_b32 s{sTmp}, {row*1024}")
                A(f"buffer_load_dwordx4 {v(T+8*j,4)}, v{vWo}, {s(rWo,4)}, s{sTmp} offen"); vm.issue()
                A(f"buffer_load_dwordx4 {v(T+8*j+4,4)}, v{vWo}, {s(rWo,4)}, s{sTmp} offen offset:1024"); tok = vm.issue()
        return tok
    def put(f, be, lo, hi, sel, tmp):
        kind, base = HOME[f]
        if kind == "v":
            A(f"v_perm_b32 v{base+be}, v{hi}, v{lo}, s{sel}")
        else:
            A(f"v_perm_b32 v{tmp}, v{hi}, v{lo}, s{sel}")
            if kind == "a": A(f"v_accvgpr_write_b32 a{base+be}, v{tmp}")
    def consume(bi):
        b = batches[bi]; T = TB[bi % 4]
        if b[0] != "o":
            m, sl = b
            for t in range(2):
                f = (m, t, sl)
                for be in range(8):
                    put(f, be, T+2*be, T+2*be+1, sPerm1 if t else sPerm0, PT + 8*t + be)
                if HOME[f][0] == "l":
                    for p in range(2):
                        ar, off = lds_frag_addr(HOME[f][1], p)
                        A(f"ds_write_b128 v{ar}, {v(PT+8*t+4*p,4)} offset:{off}")
            A("s_waitcnt lgkmcnt(0)")
        else:
            _, k, bp = b
            for t in range(8):
                f = ("o", t, k)
                for j in range(2):
                    be = 2*bp + j
                    put(f, be, T+8*j+(t >> 1), T+8*j+4+(t >> 1), sPerm1 if t & 1 else sPerm0, PT + 2*t + j)
                if HOME[f][0] == "l":
                    ar, off = lds_frag_addr(HOME[f][1], bp >> 1)
                    A(f"ds_write_b64 v{ar}, {v(PT+2*t,2)} offset:{off + 8*(bp & 1)}")
            A("s_waitcnt lgkmcnt(0)")
    toks = {}
    DEPTH = 4
    def flags1():
        A("v_mov_b32 v30, 0")
        A(f"buffer_load_dword v29, v30, {s(rDBG,4)}, 0 offen offset:{D_LN} sc1"); vm.issue()
        A(f"buffer_load_dword v31, v30, {s(rDBG,4)}, 0 offen offset:{D_INIT} sc1"); vm.issue()
    def flags2():
        A("v_readfirstlane_b32 s60, v29")
        A("v_readfirstlane_b32 s61, v31")
        A(f"v_lshlrev_b32 v30, 4, v{vL16}")
        A(f"s_mov_b32 s{sTmp}, {CNT + C_KV}")
        A(f"buffer_load_dword v29, v30, {s(rWS,4)}, s{sTmp} offen sc1"); vm.issue()
    if not dmaw:
        for bi in range(len(batches) + DEPTH):
            if bi >= DEPTH:
                vm.wait(toks[bi - DEPTH]); consume(bi - DEPTH)
            if bi == len(batches) - 5: flags1()
            if bi == len(batches) - 1: flags2()
            if bi == fill_at: fills()
            if bi == fill_at + DEPTH: arrive()
            if bi < len(batches): toks[bi] = issue(bi)
    else:
        STGB = L_W + 65536
        RA = 116
        RT = 120
        sM0w = 56
        A(f"""
        v_lshlrev_b32 v{vWv}, 13, v{vG}
        v_lshl_add_u32 v{vWv}, v{vC}, 4, v{vWv}
        s_lshl_b32 s{sTmp}, s{sH}, 8
        s_lshl_b32 s{sTmp2}, s{sW}, 20
        s_add_u32 s{sTmp}, s{sTmp}, s{sTmp2}
        v_add_u32 v{vWv}, s{sTmp}, v{vWv}
        v_lshlrev_b32 v{x0}, 10, v{vG}
        v_lshl_add_u32 v{x0}, v{vC}, 2, v{x0}
        s_lshl_b32 s{sTmp}, s{sW}, 6
        s_add_u32 s{sTmp}, s{sTmp}, {STGB}
        v_add_u32 v{x0}, s{sTmp}, v{x0}
        s_lshl_b32 s{sM0w}, s{sW}, 12
        s_add_u32 s{sM0w}, s{sM0w}, {STGB}
        """)
        for i in range(4):
            A(f"s_lshr_b32 s{sTmp}, s{sB+i}, 8")
            A(f"v_add_u32 v{RA+i}, s{sTmp}, v{x0}")
        chunks = [(m, b2, x, b0) for m in "qkv" for x in range(2) for b2 in range(2) for b0 in range(2)]
        def cissue(c):
            m, b2, x, b0 = chunks[c]
            if c % 8 == 0: srd(A, rW, {"q": 80, "k": 82, "v": 84}[m], 4 << 20)
            for g in range(4):
                A(f"s_add_u32 m0, s{sM0w}, {(c % 4)*16384 + g*1024}")
                A(f"s_mov_b32 s{sTmp}, {(64*b2 + 16*b0 + 4*x + 32*(g >> 1) + 8*(g & 1))*8192}")
                A(f"buffer_load_dwordx4 v{vWv}, {s(rW,4)}, s{sTmp} offen lds"); tok = vm.issue()
            return tok
        def cconsume(c):
            m, b2, x, b0 = chunks[c]
            for sp in range(4):
                for b1 in range(2):
                    dst = (PT if sp < 2 else RT - 8) + 4*sp + 2*b1
                    A(f"ds_read2st64_b32 {v(dst,2)}, v{RA+sp} offset0:{(c % 4)*64 + 2*b1} offset1:{(c % 4)*64 + 2*b1 + 1}")
            for sp in range(4):
                A(f"s_waitcnt lgkmcnt({6-2*sp})") if not wrote[0] else A("s_waitcnt lgkmcnt(0)")
                for b1 in range(2):
                    lo = (PT if sp < 2 else RT - 8) + 4*sp + 2*b1
                    be = 4*b2 + 2*b1 + b0
                    for t in range(2):
                        f = (m, t, 4*x + sp); tmp = PT + 8 + 2*b1 + t + 4*(sp & 1)
                        put(f, be, lo, lo+1, sPerm1 if t else sPerm0, tmp)
                        if HOME[f][0] == "l":
                            ar, off = lds_frag_addr(HOME[f][1], be >> 2)
                            A(f"ds_write_b32 v{ar}, v{tmp} offset:{off + 4*(be & 3)}"); wrote[0] = True
            wrote[0] = False
        wrote = [False]
        obs = [i for i, b in enumerate(batches) if b[0] == "o"]
        batches[:] = [batches[i] for i in obs]
        ct = {}
        for c in range(3): ct[c] = cissue(c)
        for c in range(24):
            vm.wait(ct[c])
            A("s_waitcnt lgkmcnt(0)")
            A("s_barrier")
            if c == 1: fills()
            if c == 4: arrive()
            if c + 3 < 24: ct[c+3] = cissue(c + 3)
            if c in wo_at: toks[wo_at.index(c)] = issue(wo_at.index(c))
            if c == 23: flags1()
            cconsume(c)
        A("s_waitcnt lgkmcnt(0)")
        A("s_barrier")
        for bi in range(8):
            vm.wait(toks[bi]); consume(bi)
            if bi == 4: flags2()
            if bi == 5 and retouch:
                for sl in range(2):
                    for x in range(2):
                        A(f"s_add_u32 s{sTmp}, s{sRst2}, {H2 + sl*(256<<10) + x*(128<<10)}")
                        A(f"buffer_load_dwordx4 {v(NG_,4)}, v{vT16}, {s(rWS,4)}, s{sTmp} offen sc1"); vm.issue()
                A(f"s_and_b32 s{sTmp}, s{sRst2}, 0x7000")
                A(f"s_add_u32 s{sTmp}, s{sTmp}, {H1}")
                A(f"buffer_load_dwordx4 {v(NG_,4)}, v{vT16}, {s(rWS,4)}, s{sTmp} offen sc1"); vm.issue()
            if bi + 4 < 8: toks[bi+4] = issue(bi + 4)
        A("s_waitcnt vmcnt(0)")
    if stamps == 2: A("s_memrealtime s[94:95]")
    A(f"s_lshl_b32 s{sKV}, s{sH}, 14")
    A(f"s_lshl_b32 s{sTmp}, s{sW}, 11")
    A(f"s_add_u32 s{sKV}, s{sKV}, s{sTmp}")
    A(f"s_add_u32 s{sKV}, s{sKV}, {KV}")
    A(f"s_add_u32 s{sMK}, s{sTmp}, {L_KX}")
    A(f"s_add_u32 s{sMV}, s{sTmp}, {L_VX}")
    A(f"s_lshl_b32 s{sMV+1}, s{sH}, 14")
    A(f"s_add_u32 s{sMV+1}, s{sMV+1}, {KV + 8192}")
    A(f"s_add_u32 s{sPF}, s{sTmp}, {pfd*32*16384}")
    def dma(which, par, j):
        if j == 0:
            A(f"s_mov_b32 m0, s{sMK if which == 'k' else sMV + par}")
            if which == "v": A(f"s_add_u32 s{sTmp}, s{sKV}, 8192")
        A(f"buffer_load_dwordx4 v{vL16}, {s(rWS,4)}, s{sKV if which == 'k' else sTmp} offen offset:{1024*j} sc1 lds")
    def kv_wait(tag, ta, tb, need):
        A(f"""
        L_kvw{tag}:
        v_lshlrev_b32 v{ta}, 4, v{vL16}
        s_mov_b32 s{sTmp}, {CNT + C_KV}
        buffer_load_dword v{tb}, v{ta}, {s(rWS,4)}, s{sTmp} offen sc1
        s_waitcnt vmcnt(0)
        v_cmp_eq_u32 vcc, 32, v{tb}
        s_ff0_i32_b64 s{sRdy}, vcc
        s_add_u32 s{sG}, s{sG}, 1
        s_cmp_gt_u32 s{sG}, {SPIN}
        s_cbranch_scc1 L_team_end
        s_cmp_gt_u32 s{sRdy}, {need}
        s_cbranch_scc0 L_kvw{tag}
        """)
    A(f"s_mov_b32 s{sG}, 0")
    if kvchk:
        A(f"""
        v_cmp_eq_u32 vcc, 32, v29
        s_ff0_i32_b64 s{sRdy}, vcc
        s_cmp_ge_u32 s60, 64
        s_cselect_b32 s{sRdy}, s{sRdy}, 0
        s_cmp_lg_u32 s{sRdy}, 0
        s_cbranch_scc1 L_kv0ok
        v_mov_b32 v41, 0
        L_lnw:
        buffer_load_dword v40, v41, {s(rDBG,4)}, 0 offen offset:{D_LN} sc1
        s_waitcnt vmcnt(0)
        v_readfirstlane_b32 s{sTmp2}, v40
        s_add_u32 s{sG}, s{sG}, 1
        s_cmp_gt_u32 s{sG}, {SPIN}
        s_cbranch_scc1 L_team_end
        s_cmp_lt_u32 s{sTmp2}, 64
        s_cbranch_scc1 L_lnw
        """)
        kv_wait("0", 40, 41, "0")
        A.label("L_kv0ok")
    for j in range(2): A(f"buffer_load_dwordx4 {v(KST+4*j,4)}, v{vL16}, {s(rWS,4)}, s{sKV} offen offset:{1024*j} sc1")
    A(f"s_add_u32 s{sKV}, s{sKV}, {32*16384}")
    A(f"""
    s_cmp_ge_u32 s61, 32
    s_cbranch_scc1 L_init_wait
    s_cmp_lg_u32 s{sW}, 0
    s_cbranch_scc1 L_init_wait
    v_mov_b32 v41, 0
    s_mov_b32 s{sG}, 0
    L_init_poll:
    buffer_load_dword v40, v41, {s(rDBG,4)}, 0 offen offset:{D_INIT} sc1
    s_waitcnt vmcnt(0)
    v_readfirstlane_b32 s{sTmp}, v40
    s_add_u32 s{sG}, s{sG}, 1
    s_cmp_gt_u32 s{sG}, {SPIN}
    s_cbranch_scc1 L_init_wait
    s_cmp_lt_u32 s{sTmp}, 32
    s_cbranch_scc1 L_init_poll
    L_init_wait:
    s_waitcnt lgkmcnt(0)
    s_barrier
    s_mov_b32 s{sStep}, 0
    s_mov_b32 s{sG}, 0
    s_mov_b32 s{sRetA}, 0
    s_mov_b32 s{sRetB}, 0
    s_mov_b32 s{sRet2}, 0
    s_mov_b32 s{sC}, 0x3e0293ee
    v_mov_b32 v{VMR+1}, 0
    v_mov_b32 v{VMR+3}, 0
    s_lshl_b32 s{sRd2}, s{sW}, 17
    s_lshl_b32 s{sTmp}, s{sH}, 12
    s_add_u32 s{sRd2}, s{sRd2}, s{sTmp}
    """)
    import math, struct
    cval = struct.unpack("<I", struct.pack("<f", (128 ** -0.5) * math.log2(math.e)))[0]
    A(f"s_mov_b32 s{sC}, {cval:#x}")
    if stamps == 2:
        A("s_memrealtime s[96:97]")
        A("s_memtime s[76:77]"); A("s_waitcnt lgkmcnt(0)")
    assert not (stamps == 1 and fsl)
    if stamps == 1:
        for k in range(52, 100): A(f"s_mov_b32 s{k}, 0")

    lg = Cnt(A, "lgkmcnt", 15)
    staged = {}
    def stage(idx, reg):
        f = LDSF[idx]
        for p in range(2):
            ar, off = lds_frag_addr(idx, p)
            A(f"ds_read_b128 {v(reg+4*p,4)}, v{ar} offset:{off}"); tok = lg.issue()
        staged[f] = (reg, tok)
    waited = [0]
    def lwait(tok):
        if tok > waited[0]:
            lg.wait(tok); waited[0] = tok
    def sm(m, t, sl, acc, areg):
        f = (m, t, sl); kind, base = HOME[f]
        if kind == "l":
            reg, tok = staged.pop(f); lwait(tok); b = v(reg, 8)
        else:
            b = (a if kind == "a" else v)(base, 8)
        A(f"v_smfmac_f32_16x16x64_bf16 {v(acc,4)}, {v(areg,4)}, {b}, v{vIdx}")
    def dsr(dst, addr, off, n=4):
        A(f"ds_read_b{32*n} {v(dst,n)}, v{addr} offset:{off}"); return lg.issue()
    def dsw(addr, src, off, n=4):
        A(f"ds_write_b{32*n} v{addr}, {v(src,n)} offset:{off}"); return lg.issue()
    def chk(r, lab):
        A(f"v_max3_u32 v{vT0}, v{r}, v{r+1}, v{r+2}")
        A(f"v_max_u32 v{vT0}, v{vT0}, v{r+3}")
        A(f"v_cmp_eq_u32 vcc, -1, v{vT0}")
        A(f"s_cbranch_vccnz {lab}")
    qa = lambda t: ACCA + 4*t
    ka = lambda t: ACCB + 4*t
    ma = lambda sl: MEMA + 4*sl

    QB = POOL; FR = POOL + 16
    va = lambda t: ACCV + 4*t
    WA = MEMA
    wa = lambda t: WA + 4*t
    R2 = ma(5); SEL = ma(7); PUB = vT1; DD = ma(3)
    def stage1(idx, reg, p):
        f = LDSF[idx]
        ar, off = lds_frag_addr(idx, p)
        A(f"ds_read_b128 {v(reg+4*p,4)}, v{ar} offset:{off}"); tok = lg.issue()
        if p == 1: staged[f] = (reg, tok)
    G = lambda idx, reg, p: (lambda: stage1(idx, reg, p))
    def mf(d, a_, b_, first, k16=False):
        n = 2 if k16 else 4
        A(f"v_mfma_f32_16x16x{16 if k16 else 32}_bf16 {v(d,4)}, {v(a_,n)}, {v(b_,n)}, {0 if first else v(d,4)}")
    def slots(ms, fill):
        for i, m in enumerate(ms):
            m()
            if i < len(fill):
                for f in fill[i]: f()
        for fl in fill[len(ms):]:
            for f in fl: f()
    I = lambda txt: (lambda: A(txt))
    accf = {"q": qa, "k": ka, "v": va}
    SM = lambda m, t, sl, areg=None: (lambda: sm(m, t, sl, accf[m](t), ma(sl) if areg is None else areg))
    PRE = [(0, STG), (1, STG+8), (2, FR), (3, FR+8), (5, QB+8), (4, QB)]
    def chores(lo, hi):
        for idx, reg in PRE[lo:hi]: stage(idx, reg)
    def zero_accs():
        for i in range(0, 16, 2): A(f"v_mov_b64 {v(ACCA+i,2)}, 0")
        for i in range(0, 8, 2): A(f"v_mov_b64 {v(ACCV+i,2)}, 0")
    def set_neg():
        A(f"v_mov_b64 {v(NEG,2)}, -1"); A(f"v_mov_b64 {v(NEG+2,2)}, -1")
    def slot_offsets():
        A(f"""
        s_and_b32 s{sTmp}, s{sStep}, 3
        s_lshl_b32 s{sO1}, s{sTmp}, 13
        s_add_u32 s{sO1}, s{sO1}, {H1}
        s_add_u32 s{sO1b}, s{sO1}, 4096
        """)
    def ld1():
        A(f"buffer_load_dwordx4 {v(ma(0),4)}, v{vT16}, {s(rWS,4)}, s{sO1} offen sc1")
        A(f"buffer_load_dwordx4 {v(ma(4),4)}, v{vT16}, {s(rWS,4)}, s{sO1b} offen sc1")
    def ld2():
        for u in range(2):
            if u and g2: A(f"s_nop {g2-1}")
            A(f"buffer_load_dwordx4 {v(R2+4*u,4)}, v{vL16}, {s(rWS,4)}, s{sRd} offen offset:{1024*u} sc1")
    def delay(n):
        while n > 0:
            A(f"s_nop {min(n,16)-1}"); n -= 16
    chores(0, 6); zero_accs(); set_neg(); slot_offsets()
    A(f"s_mov_b32 s{sO2}, {H2}"); A(f"s_mov_b32 s{sO2b}, {H2 + (128<<10)}")
    A(f"s_add_u32 s{sRst1}, s{sPubO}, {2*8192}")
    A(f"s_and_b32 s{sTmp}, s{sW}, 1")
    A(f"s_lshl_b32 s{sRd2}, s{sTmp}, 17")
    A(f"s_lshl_b32 s{sTmp}, s{sH}, 12")
    A(f"s_add_u32 s{sRd2}, s{sRd2}, s{sTmp}")
    A(f"s_lshr_b32 s{sTmp}, s{sW}, 1")
    A(f"s_lshl_b32 s{sTmp}, s{sTmp}, 11")
    A(f"s_add_u32 s{sRd2}, s{sRd2}, s{sTmp}")
    pre_staged = dict(staged)
    sKf = 47
    A(f"s_mov_b32 s{sCm}, 0xcccccccc"); A(f"s_mov_b32 s{sCm+1}, 0xcccccccc")
    A(f"s_mov_b32 s{sK}, 0")
    if fq:
        A(f"v_lshrrev_b32 v{vT0}, 2, v{vL16}")
        A(f"ds_write_b32 v{vT0}, v{VMR+1} offset:{L_F}")
    A(f"s_waitcnt vmcnt(0) lgkmcnt(0)")
    A(f"v_add_u32 v{vT0}, s{sMK}, v{vL16}")
    A(f"ds_write_b128 v{vT0}, {v(KST,4)}")
    A(f"ds_write_b128 v{vT0}, {v(KST+4,4)} offset:1024")
    def ldA(): A(f"buffer_load_dwordx4 {v(ma(0),4)}, v{vT16}, {s(rWS,4)}, s{sO1} offen sc1")
    def ldB(): A(f"buffer_load_dwordx4 {v(ma(4),4)}, v{vT16}, {s(rWS,4)}, s{sO1b} offen sc1")
    N1 = I("s_nop 1"); N0 = I("s_nop 0")
    if ea: ldA(); ldA()
    if ltrace: A("s_mov_b32 m0, 0")
    if shift is not None:
        A.raw(".p2align 6")
        for _ in range(shift): A("s_nop 0")
    for par in range(2):
        P = f"_{par}"
        LM = L_MEM; LK = L_KX
        st = stamp if par == 0 else (lambda n="": None)
        A.label("L_step" + P)
        if stamps == 1 and par == 0:
            stamp("top")
            A(f"s_cmp_ge_u32 s{sStep}, {nsteps-3}")
            A("s_cbranch_scc1 L_team_end")
        st("top2")
        if ltrace and par == 0: A("s_memtime s[52:53]")
        def kxw():
            A(f"v_add_u32 v{vT0}, s{sMK}, v{vL16}")
            A(f"ds_write_b128 v{vT0}, {v(KST,4)}")
            A(f"ds_write_b128 v{vT0}, {v(KST+4,4)} offset:1024")
        staged.clear()
        zz = [I(f"v_mov_b64 {v(r_,2)}, 0") for r_ in list(range(ACCA, ACCA+16, 2)) + list(range(ACCV, ACCV+8, 2))] + [lambda: set_neg()]
        def zs(n):
            for _ in range(n):
                if zz: zz.pop(0)()
        rst = [I(f"s_xor_b32 s{sTmp}, s{sO2}, {256<<10}"), I(f"s_add_u32 s{sTmp}, s{sTmp}, s{sRst2}"),
               I(f"buffer_store_dwordx4 {v(NEG,4)}, v{vT16}, {s(rWS,4)}, s{sTmp} offen")]
        rst2 = [I(f"s_add_u32 s{sTmp}, s{sTmp}, {128<<10}"),
               I(f"buffer_store_dwordx4 {v(NEG,4)}, v{vT16}, {s(rWS,4)}, s{sTmp} offen"),
               I(f"buffer_store_dword v{NEG}, v{PUB}, {s(rWS,4)}, s{sRst1} offen")]
        pubg = [I(f"buffer_store_dword v{vPD}, v{PUB}, {s(rWS,4)}, s{sMG} offen sc1"), I(f"s_add_u32 s{sMG}, s{sMG}, 8192")]
        nothing = lambda: None
        if rt4:
            rst = [nothing]*3; rst2[0] = rst2[1] = nothing; zz.pop()
        if hseq[0] == "K": kxw()
        zs(z0); delay(dA)
        for ch in hseq:
            if ch == "A": ldA()
            elif ch == "y": zs(2)
            elif ch == "B": ldB()
            elif ch == "z": zs(99)
            elif ch == "_": delay(gapB)
            elif ch == ".": delay(gapAB)
            elif ch == "R":
                zs(99)
                for f in rst: f()
                rst = [nothing]*3
            elif ch == "S":
                for f in rst2[:2]: f()
                rst2[0] = rst2[1] = nothing
            elif ch == "r":
                if not rt4: zs(99)
                rst2[2](); rst2[2] = nothing
        zs(99)
        ops = [ch for ch in hseq if ch in "ABRSr"]
        wA = len(ops) - 1 - ops.index("A"); wB = len(ops) - 1 - ops.index("B")
        assert wB < wA
        waited[0] = lg.n
        staged.clear(); staged.update({f: (r, 0) for f, (r, t) in pre_staged.items()})
        r, q = ma(0), ma(4)
        if ea:
            A(f"s_mov_b32 s{sK}, 1")
            A(f"s_waitcnt vmcnt({nfl+1})")
            A(f"s_branch L_pollA2{P}") if False else None
        else:
            A.label("L_pollA" + P)
            A(f"s_waitcnt vmcnt({wA})")
        A.label("L_pollA2" + P)
        A(f"v_max3_u32 v{vT0}, v{r}, v{r+1}, v{r+2}")
        A(f"v_max_u32 v{vT0}, v{vT0}, v{r+3}")
        if not one: A(f"v_cmp_eq_u32 vcc, -1, v{vT0}")
        tt = {}
        def rd(key, dst, addr, off): return lambda: tt.__setitem__(key, dsr(dst, addr, off))
        kx = lambda i, dst: rd(("kx", i), dst, vL16, LK + 1024*i)
        W = lambda key: (lambda: lwait(tt[key]))
        WS = lambda idx: (lambda: lwait(staged[LDSF[idx]][1]))
        twa = dsw(vT16, r, LM)
        st("ok")
        bchk = [I(f"s_waitcnt vmcnt({wB})"), I(f"v_max3_u32 v{vT0}, v{q}, v{q+1}, v{q+2}"), I(f"v_max_u32 v{vT0}, v{vT0}, v{q+3}"), I(f"v_cmp_eq_u32 vcc, -1, v{vT0}")]
        kvu = []
        if one:
            slots([SM("q",0,0), SM("q",1,0), SM("k",0,0), SM("k",1,0), SM("v",0,0), SM("v",1,0)],
                  [[bchk[0], I(f"v_max3_u32 v{vT0}, v{vT0}, v{q}, v{q+1}")], [I(f"v_max3_u32 v{vT0}, v{vT0}, v{q+2}, v{q+3}")],
                   [lambda: tt.__setitem__("wb", dsw(vT16, q, LM + 4096)), bchk[3]], [], [I(f"s_cbranch_vccnz L_retryA{P}")],
                   [W("wb"), I("s_barrier"), rd(1, ma(1), vM1, LM)]] if hv == 0 else
                  [[bchk[0], I(f"v_max3_u32 v{vT0}, v{vT0}, v{q}, v{q+1}"), I(f"v_max3_u32 v{vT0}, v{vT0}, v{q+2}, v{q+3}")],
                   [lambda: tt.__setitem__("wb", dsw(vT16, q, LM + 4096)), bchk[3]], [], [I(f"s_cbranch_vccnz L_retryA{P}")],
                   [W("wb"), I("s_barrier"), rd(1, ma(1), vM1, LM)] if hv == 2 else [], [] if hv == 2 else [W("wb"), I("s_barrier"), rd(1, ma(1), vM1, LM)]])
            A.label("L_okB" + P)
            slots([SM("q",0,4), SM("q",1,4), SM("k",0,4), SM("k",1,4), SM("v",0,4), SM("v",1,4)],
                  [[rd(2, ma(2), vM2, LM)], [rd(3, ma(3), vM3, LM)], [rd(5, ma(5), vM1, LM+4096)], [kx(4, STG)], [kx(5, STG+4)], [W(1)]])
            mid = [SM("q",0,1), SM("q",1,1), SM("k",0,1), SM("k",1,1), SM("q",0,2), SM("q",1,2), SM("k",0,2), SM("k",1,2)]
        elif not ea:
            slots([SM("q",0,0), SM("q",1,0), SM("k",0,0), SM("k",1,0)],
                  [[], [I(f"s_cbranch_vccnz L_retryA{P}")] + bchk[:2], bchk[2:3], [lambda: lwait(twa), I("s_barrier"), bchk[3]]])
            st("barM")
            rd(1, ma(1), vM1, LM)()
            SM("v",0,0)()
            A(f"s_cbranch_vccnz L_retryB{P}")
            A.label("L_okB" + P)
            st("okB")
            tw = dsw(vT16, q, LM + 4096)
            slots([SM("v",1,0), SM("q",0,4), SM("q",1,4), SM("k",0,4), SM("k",1,4), SM("v",0,4), SM("v",1,4)],
                  [[rd(2, ma(2), vM2, LM)], [rd(3, ma(3), vM3, LM)], [kx(4, STG)], [kx(5, STG+4)], [], [lambda: lwait(tw), I("s_barrier")], [rd(5, ma(5), vM1, LM+4096)]])
            mid = [SM("q",0,1), SM("q",1,1), SM("k",0,1), SM("k",1,1), SM("q",0,2), SM("q",1,2), SM("k",0,2), SM("k",1,2)]
        else:
            slots([SM("q",0,0), SM("q",1,0)], [[], [I(f"s_cbranch_vccnz L_retryA{P}"), lambda: lwait(twa), I("s_barrier")]])
            st("barM")
            rd(1, ma(1), vM1, LM)()
            pre = [SM("k",0,0), SM("k",1,0), SM("v",0,0), SM("v",1,0), SM("q",0,1), SM("q",1,1), SM("k",0,1), SM("k",1,1), SM("q",0,2), SM("q",1,2)][:eb+3]
            fl = [[rd(2, ma(2), vM2, LM)], [rd(3, ma(3), vM3, LM)], [kx(4, STG)], [W(1)], [kx(5, STG+4)], [], [], [W(2)], [], []][:eb+3]
            fl[eb-1] = fl[eb-1] + bchk[:2]; fl[eb] = fl[eb] + bchk[2:3]; fl[eb+1] = fl[eb+1] + bchk[3:]
            slots(pre, fl)
            A(f"s_cbranch_vccnz L_retryB{P}")
            A.label("L_okB" + P)
            st("okB")
            tw = dsw(vT16, q, LM + 4096)
            allm = [SM("q",0,1), SM("q",1,1), SM("k",0,1), SM("k",1,1), SM("q",0,2), SM("q",1,2), SM("k",0,2), SM("k",1,2)][max(0, eb-1):]
            own = [SM("q",0,4), SM("q",1,4), SM("k",0,4), SM("k",1,4), SM("v",0,4), SM("v",1,4)]
            slots(own[:4], [[], [], [], [lambda: lwait(tw), I("s_barrier"), rd(5, ma(5), vM1, LM+4096)]])
            slots(own[4:], [[], []])
            mid = allm
        st("barB")
        bk = [I(x) for x in (
            f"s_add_u32 s{sStep}, s{sStep}, 1", f"s_add_u32 s{sRd}, s{sO2}, s{sRd2}", f"s_and_b32 s{sB}, s{sStep}, 3",
            f"s_lshl_b32 s{sB+1}, s{sB}, 13", f"s_add_u32 s{sO1}, s{sB+1}, {H1}", f"s_add_u32 s{sO1b}, s{sO1}, 4096",
            f"s_add_u32 s{sB+2}, s{sB+1}, s{sPubO}", f"s_xor_b32 s{sRst1}, s{sB+1}, {2<<13}", f"s_add_u32 s{sRst1}, s{sRst1}, s{sPubO}")]
        m0k = lambda: None
        dk = lambda j: I(f"buffer_load_dwordx4 {v(KST+4*j,4)}, v{vL16}, {s(rWS,4)}, s{sKV} offen offset:{1024*j} sc1")
        VX0, VX1 = ma(0), ma(4)
        lv = [I(f"buffer_load_dwordx4 {v(VX0,4)}, v{vT16}, {s(rWS,4)}, s{sMV+1} offen sc1"), I(f"s_add_u32 s{sTmp2}, s{sMV+1}, 4096"),
              I(f"buffer_load_dwordx4 {v(VX1,4)}, v{vT16}, {s(rWS,4)}, s{sTmp2} offen sc1"), I(f"s_add_u32 s{sMV+1}, s{sMV+1}, {32*16384}")]
        if "dma" in off: dk = lambda j: N0
        def kvbr():
            if kvchk:
                A(f"s_cmp_gt_u32 s{sRdy}, s{sStep}")
                A(f"s_cbranch_scc0 L_kvw{P}")
                A.label("L_kvok" + P)
        kfa = [I(f"v_cmp_eq_u32 vcc, 32, v{VMR}")] if (kvchk and kfasync) else []
        kfb = [I(f"s_and_b32 s{sTmp}, vcc_lo, s{sK}"), I(f"s_ff0_i32_b32 s{sTmp}, s{sTmp}"), I(f"s_add_u32 s{sRdy}, s{sRdy}, s{sTmp}")] if (kvchk and kfasync) else []
        kfc = [I(f"s_add_u32 s{sTmp}, s{sStep}, {kfd}"), I(f"s_min_u32 s{sTmp}, s{sTmp}, 63"),
               I(f"s_cmp_gt_u32 s{sRdy}, s{sTmp}"), I(f"s_cselect_b32 s{sK}, 0, 0xffff")] if (kvchk and kfasync) else []
        def kfissue():
            if not (kvchk and kfasync): return
            A(f"s_cmp_lg_u32 s{sK}, 0")
            A(f"s_cbranch_scc1 L_kfgo{P}")
            A.label(f"L_nokf{P}")
        dmaseq = {ks: [m0k, kvbr], ks+1: [dk(0)], ks+3: [dk(1), I(f"s_add_u32 s{sKV}, s{sKV}, {32*16384}")]}
        if vpf:
            dmaseq = {ks: [kvbr, I(f"v_lshlrev_b32 v{VMR+2}, 3, v{vL16}")],
                      ks+1: [I(f"s_add_u32 s{sTmp2}, s{sKV}, 8192"), I("s_mov_b64 exec, 0xffff"),
                             I(f"buffer_load_dword v{KST}, v{VMR+2}, {s(rWS,4)}, s{sTmp2} offen sc1"), I("s_mov_b64 exec, -1")],
                      ks+2: [dk(0)], ks+4: [dk(1), I(f"s_add_u32 s{sKV}, s{sKV}, {32*16384}")]}
        slotno = [0]
        def slots2(ms, fill):
            fill = [list(f) for f in fill][:max(len(ms), max([i+1 for i, f in enumerate(fill) if f] + [0]))] + [[] for _ in range(len(ms) - len(fill))]
            for i in range(len(ms)):
                fill[i] = dmaseq.pop(slotno[0], []) + fill[i]; slotno[0] += 1
            slots(ms, fill)
        mm = mid + [SM("q",1,3), SM("k",0,3), SM("q",0,3), SM("k",1,3), SM("q",0,5), SM("q",1,5), SM("q",0,6), SM("q",1,6), SM("q",0,7), SM("q",1,7)]
        ff = [[rd(6, ma(6), vM2, LM+4096)] + lv[:2], [rd(7, ma(7), vM3, LM+4096), bk[0]], lv[2:], [W(3)] + rst[:2], [kx(6, STG+8)], [kx(7, STG+12)] + rst[2:], bk[1:3], [kx(0, FR)],
               [kx(1, FR+4)], rst2[:2] + kfa, bk[3:6], [W(7), kx(2, FR+8)], rst2[2:] + kfb, [kx(3, FR+12)], pubg, bk[6:9], kfc[:2] + ([I(f"v_mov_b32 v{vPD}, s{sStep}")] if fq else []), kfc[2:]]
        if ea:
            nm_ = len(mm)
            ff = [[rd(6, ma(6), vM2, LM+4096)] + lv[:2], [rd(7, ma(7), vM3, LM+4096), bk[0]] , [kx(6, STG+8)] + lv[2:], [kx(7, STG+12)] + rst[:2], [kx(0, FR)] + rst[2:], [kx(1, FR+4)] + bk[1:3],
                  [kx(2, FR+8)] + bk[3:5], [kx(3, FR+12)] + rst2[:2], [bk[5]], rst2[2:], pubg, bk[6:9], [kfissue]]
            extra = ff[nm_:]; ff = ff[:nm_] + [[] for _ in range(nm_ - len(ff))]
            for x_ in extra: ff[-1] = ff[-1] + x_
            ff[nm_-7] = [W(7)] + ff[nm_-7]
            slotno[0] = 18 - nm_
        slots2(mm, ff)
        st("qdone")
        if trace and par == 0:
            A(f"""
            s_memrealtime s[52:53]
            s_memtime s[54:55]
            s_lshl_b32 s56, s{sStep}, 2
            s_waitcnt lgkmcnt(0)
            v_writelane_b32 v{vT0}, s52, 0
            v_writelane_b32 v{vT0}, s54, 1
            s_lshl_b32 s57, s{sH}, 10
            s_add_u32 s56, s56, s57
            s_add_u32 s56, s56, {RES + 65536 - 4}
            v_lshrrev_b32 v{QB}, 2, v{vL16}
            s_mov_b64 exec, 3
            buffer_store_dword v{vT0}, v{QB}, {s(rWS,4)}, s56 offen
            s_mov_b64 exec, -1
            """)
        def epi_ops(acc):
            return [I(f"v_add_f32 v{acc}, v{acc}, v{acc+2}"), I(f"v_add_f32 v{acc+1}, v{acc+1}, v{acc+3}"),
                    I(f"v_add_f32 v{acc+4}, v{acc+4}, v{acc+6}"), I(f"v_add_f32 v{acc+5}, v{acc+5}, v{acc+7}"),
                    I(f"v_cvt_pk_bf16_f32 v{acc}, v{acc}, v{acc+4}"), I(f"v_cvt_pk_bf16_f32 v{acc+1}, v{acc+1}, v{acc+5}")]
        e = epi_ops(ACCA); ek = epi_ops(ACCB)
        fl_w = [I("s_mov_b64 exec, 0xffff"), lambda: dsw(vQW, vPD, L_F - L_Q, 1), I("s_mov_b64 exec, -1")]
        def w2(acc, o):
            A(f"ds_write2_b32 v{vQW}, v{acc}, v{acc+1} offset0:{o} offset1:{o + RS//4}"); tt["wk"] = lg.issue()
        slots2([SM("k",0,5), SM("k",0,6), SM("k",0,7), SM("k",1,5), SM("k",1,6), SM("k",1,7),
               SM("v",0,1), SM("v",1,1), SM("v",0,2), SM("v",1,2), SM("v",0,3), SM("v",1,3)][:6+min(vpre,6)] + [SM("v",0,5), SM("v",1,5)][:max(0,vpre-6)],
              {0: [[e[0]], [e[1]], [e[2]], [e[3]], [e[4]], [e[5]],
                   [lambda: w2(ACCA, 0), ek[0], ek[1]], [ek[2], ek[3]], [ek[4], ek[5], lambda: w2(ACCB, 64)]] + ([fl_w, [I(f"v_lshrrev_b32 v{vT0}, 2, v{vL16}")], []] if fq else [[], [], []]),
               1: [[e[0]], [e[1]], [e[2]], [e[3]], [e[4]], [e[5]],
                   [lambda: w2(ACCA, 0), ek[0], ek[1]], [ek[2], ek[3], ek[4], ek[5], lambda: w2(ACCB, 64)], [], [], [], []],
               2: [[e[0]], [e[1]], [e[2]], [e[3]], [e[4], ek[0]], [e[5], ek[1]],
                   [lambda: w2(ACCA, 0), N1, N0, ek[2], ek[3], ek[4], ek[5], lambda: w2(ACCB, 64)], [], [], [], [], []]}[kep])
        if fq:
            tt["fl"] = dsr(VMR, vT0, L_F, 1)
        else:
            lwait(tt["wk"]); A("s_barrier"); st("barQK")
        if ltrace and par == 0:
            A("v_writelane_b32 v247, s52, m0") if False else None
            A("s_movreld_b32 s54, s52")
            A("s_add_u32 m0, m0, 1")
            A("s_cmp_eq_u32 m0, 8")
            A("s_cselect_b32 m0, 14, m0")
        qr = lambda k: rd(("q", k), QB+4*k, vQR, L_Q + 64*k)
        KMR = ACCA
        kr = lambda k: rd(("km", k), KMR+4*k, vQR, L_K + 64*k)
        VXR = FR; OO = QB; LL = QB + 8; ONES = NEG
        ones = [I(f"v_mov_b32 v{ONES+i}, 0x3f803f80") for i in range(4)]
        nvm = 3 + (1 if vpf else 0) + (1 if trace and par == 0 else 0) - 2*("dma" in off)
        assert ks >= 15
        qr(0)()
        post = [SM("v",0,3), SM("v",1,3)][2-max(0,6-vpre):] + [SM("v",0,5), SM("v",1,5), SM("v",0,6), SM("v",1,6), SM("v",0,7), SM("v",1,7)][max(0,vpre-6):]
        pf_ = [[qr(1), ones[0]], [qr(2), ones[1]], [qr(3), ones[2]], [kr(0), ones[3]], [kr(1)], [kr(2)]]
        while len(pf_) > len(post):
            x_ = pf_.pop(); pf_[-1] = x_ + pf_[-1]
        pf_ += [[] for _ in range(len(post) - len(pf_))]
        pf_[-1] = pf_[-1] + [W(("q",1))]
        if fq:
            pf_[2] = [qr(3), W("fl"), I(f"v_cmp_ne_u32 vcc, s{sStep}, v{VMR}")]
            pf_[3] = [kr(0), ones[2], ones[3]]
            pf_[-1] = pf_[-1] + [I(f"s_cbranch_vccnz L_fq{P}"), lambda: A.label("L_fqok" + P)]
        slots2(post, pf_)
        st("vdone")
        Sx = lambda t, k: (lambda: (lwait(tt[("q", k)]), mf(S+4*t, (FR if t == 0 else STG) + 4*k, QB+4*k, k == 0)))
        Sm = lambda k: (lambda: (lwait(tt[("km", k)]), mf(S+8, KMR+4*k, QB+4*k, k == 0)))
        ve = []
        for t in range(2):
            ve += [I(f"v_add_f32 v{va(t)}, v{va(t)}, v{va(t)+2}"), I(f"v_add_f32 v{va(t)+1}, v{va(t)+1}, v{va(t)+3}"),
                   I(f"v_cvt_pk_bf16_f32 v{VMR+2*t}, v{va(t)}, v{va(t)+1}")]
        zw = [I(f"v_mov_b64 {v(WA+i,2)}, 0") for i in range(0, 32, 2)]
        slots2([Sx(0,0), Sx(1,0), Sx(0,1), Sx(1,1), Sx(0,2), Sx(1,2), Sx(0,3), Sx(1,3), Sm(0), Sm(1), Sm(2), Sm(3)],
              [[kr(3)] + ([zw[15]] if m4 else []), [ve[0], ve[1]], [ve[2], ve[3]], [W(("q",3)), ve[4]],
               [G(11, FR, 0), ve[5]], [G(11, FR, 1)] + ([zw[13]] if m4 else []),
               [G(6, STG, 0)] + ([zw[14]] if m4 else []), [W(("km",3)), G(6, STG, 1)], [G(7, FR+8, 0), I(f"v_max3_f32 v{vT0}, v{S}, v{S+1}, v{S+2}")],
               [I(f"v_max3_f32 v{vT0}, v{vT0}, v{S+3}, v{S+4}"), I(f"v_max3_f32 v{vT0}, v{vT0}, v{S+5}, v{S+6}")],
               [G(7, FR+8, 1), I(f"v_max_f32 v{vT0}, v{vT0}, v{S+7}")] + ([I(f"v_mov_b32 v{vPD}, v{vT0}")] if m4 else []),
               [G(9, ACCV, 0), I(f"v_permlane32_swap_b32 v{vT0}, v{vPD}"), I(f"v_max_f32 v{vT0}, v{vT0}, v{vPD}"), G(9, ACCV, 1), zw[10], zw[11], G(8, STG+8, 0)] if m4 else
               [G(9, ACCV, 0), zw[10], zw[11], G(9, ACCV, 1), zw[12], zw[13], zw[14]]])
        assert not dmaseq
        st("Smm")
        if m4:
            A(f"v_max3_f32 v{vT0}, v{vT0}, v{S+8}, v{S+9}")
            A(f"v_max3_f32 v{vT0}, v{vT0}, v{S+10}, v{S+11}")
            A(f"v_mov_b32 v{S+10}, v{vT0}")
            G(8, STG+8, 1)(); zw[12]()
        else:
            A(f"v_max3_f32 v{vT0}, v{vT0}, v{S+8}, v{S+9}")
            A(f"v_mov_b32 v{S+10}, v{vT0}")
            G(8, STG+8, 0)(); zw[15]()
            A(f"v_permlane32_swap_b32 v{vT0}, v{S+10}")
            A(f"v_max_f32 v{vT0}, v{vT0}, v{S+10}")
            A(f"v_mov_b32 v{S+10}, v{vT0}")
            G(8, STG+8, 1)()
        A(f"v_permlane16_swap_b32 v{vT0}, v{S+10}")
        A(f"v_max_f32 v{vT0}, v{vT0}, v{S+10}")
        A(f"v_mul_f32 v{S+10}, s{sC}, v{vT0}")
        for i in (8, 0, 2, 4, 6):
            A(f"v_pk_fma_f32 {v(S+i,2)}, {v(S+i,2)}, s[{sC}:{sC+1}], {v(S+10,2)} op_sel_hi:[1,0,0] neg_lo:[0,0,1] neg_hi:[0,0,1]")
        ex = lambda i: I(f"v_exp_f32 v{S+i}, v{S+i}")
        cv = lambda i: I(f"v_cvt_pk_bf16_f32 v{S+i}, v{S+2*i}, v{S+2*i+1}")
        ex(8)(); ex(9)(); ex(0)()
        A(f"v_cvt_pk_bf16_f32 v{S+8}, v{S+8}, v{S+9}"); A(f"v_mov_b32 v{S+9}, 0")
        ex(1)(); ex(2)()
        slots([lambda: mf(LL, ONES, S+8, True, True), lambda: mf(OO, VMR, S+8, True, True), lambda: mf(OO+4, VMR+2, S+8, True, True)],
              [([G(10, ACCB, 0)] if g10 == 1 else []) + [ex(3), cv(0)], ([G(10, ACCB, 1)] if g10 == 1 else []) + [ex(4), ex(5)], [ex(6), ex(7), cv(1), cv(2), cv(3)]])
        st("exp")
        if g10 == 0: G(10, ACCB, 0)()
        A(f"s_waitcnt vmcnt({nvm})")
        slots([lambda: mf(LL, ONES, S, False), lambda: mf(OO, VX0, S, False), lambda: mf(OO+4, VX1, S, False)],
              [([G(10, ACCB, 1)] if g10 == 0 else []) + [zw[4]], [zw[5], zw[6]], [zw[7]]])
        st("PV")
        A(f"v_rcp_f32 v{vT0}, v{LL}")
        zw[0]()
        if ob64:
            for b_ in (0, 4):
                for i in range(2): A(f"v_cndmask_b32 v{OO+b_+i}, v{OO+b_+i}, v{OO+b_+2+i}, s[{sCm}:{sCm+1}]")
                if b_ == 0:
                    for i in range(2): A(f"v_mul_f32 v{OO+i}, v{OO+i}, v{vT0}")
            A(f"v_pk_mul_f32 {v(OO+4,2)}, {v(OO+4,2)}, {v(vT0,2)} op_sel_hi:[1,0]")
            for i in range(2): A(f"v_cvt_pk_bf16_f32 v{OO+i}, v{OO+i}, v{OO+4+i}")
            tw = dsw(vOW, OO, L_O, 2)
        else:
            for i in range(4): A(f"v_mul_f32 v{OO+i}, v{OO+i}, v{vT0}")
            A(f"v_pk_mul_f32 {v(OO+4,2)}, {v(OO+4,2)}, {v(vT0,2)} op_sel_hi:[1,0]")
            A(f"v_pk_mul_f32 {v(OO+6,2)}, {v(OO+6,2)}, {v(vT0,2)} op_sel_hi:[1,0]")
            for i in range(4): A(f"v_cvt_pk_bf16_f32 v{OO+i}, v{OO+i}, v{OO+4+i}")
            tw = dsw(vOW, OO, L_O)
        st("owr")
        for f in (zw[1], zw[2], zw[3], zw[8], zw[9])[:nzo]: f()
        FR_ = [NEG, NEG+1, NEG+2, NEG+3, vT0][:len(fsl)]
        if fsl:
            A(f"v_mov_b32 v{VMR}, s{sStep}")
            A(f"v_bfe_u32 v{VMR+2}, v{vL16}, 2, 5")
            A(f"v_lshlrev_b32 v{vT0}, 4, v{vL16}")
            A(f"s_mul_i32 s{sK+1}, s{sStep}, 0x01010101")
        lwait(tw); A("s_barrier"); st("barO")
        OA = ACCA
        to0 = dsr(OA, vOR, L_O)
        to = dsr(OA+4, vOR, L_O + 128)
        for f in (zw[1], zw[2], zw[3], zw[8], zw[9])[nzo:]: f()
        kfissue()
        if fsl:
            A("s_mov_b64 exec, 0x3ff")
            A(f"buffer_store_byte v{VMR}, v{vT0}, {s(rWS,4)}, s{sFlS} offen")
            A("s_mov_b64 exec, -1")
        dmaseq.update({slotno[0] + sl: [I(f"buffer_load_dword v{FR_[i]}, v{VMR+2}, {s(rWS,4)}, s{sFl} offen offset:{256*i} sc1")] for i, sl in enumerate(fsl)})
        ad = lambda t: [I(f"v_add_f32 v{wa(t)}, v{wa(t)}, v{wa(t)+2}"), I(f"v_add_f32 v{wa(t)+1}, v{wa(t)+1}, v{wa(t)+3}")]
        cvp = lambda dst, t: [I(f"v_cvt_pk_bf16_f32 v{dst}, v{wa(t)}, v{wa(t+1)}"), I(f"v_cvt_pk_bf16_f32 v{dst+2}, v{wa(t)+1}, v{wa(t+1)+1}")]
        sto = lambda x, dst: [I(f"buffer_store_dwordx4 {v(dst,4)}, v{vSt2}, {s(rWS,4)}, s{sO2b if x else sO2} offen")]
        SO = lambda t, k: (lambda: sm("o", t, k, wa(t), OA+4*k))
        DA, DB = QB, QB + 4
        lwait(to0)
        st("ord")
        slots2([SO(t, k) for t in range(8) for k in range(2)],
              [[lambda: lwait(to), G(12, QB+8, 0)], [G(12, QB+8, 1)], [G(13, STG, 0)], [G(13, STG, 1), ad(0)[0]], [G(14, FR+8, 0), ad(0)[1]],
               [G(14, FR+8, 1), ad(1)[0]], [G(15, STG+8, 0), ad(1)[1]], [G(15, STG+8, 1), cvp(DA, 0)[0], cvp(DA, 0)[1]],
               [G(16, ACCV, 0)] + ad(2), [WS(13), G(16, ACCV, 1)] + ad(3), cvp(DA+1, 2), sto(0, DA) + [lambda: st("stA"), ad(4)[0]], [WS(15), ad(4)[1]],
               [WS(16)] + ad(5)[:1], ad(5)[1:], cvp(DB, 4) + ad(6)] if g10 != 2 else
              [[lambda: lwait(to), G(10, ACCB, 0)], [G(10, ACCB, 1)], [G(12, QB+8, 0)], [G(12, QB+8, 1), ad(0)[0]], [G(13, STG, 0), ad(0)[1]],
               [WS(10), G(13, STG, 1), ad(1)[0]], [G(14, FR+8, 0), ad(1)[1]], [G(14, FR+8, 1), cvp(DA, 0)[0], cvp(DA, 0)[1]],
               [G(16, ACCV, 0)] + ad(2), [WS(13), G(16, ACCV, 1)] + ad(3), [G(15, STG+8, 0)] + cvp(DA+1, 2), sto(0, DA) + [G(15, STG+8, 1), lambda: st("stA"), ad(4)[0]], [WS(14), ad(4)[1]],
               [WS(16)] + ad(5)[:1], [WS(15)] + ad(5)[1:], cvp(DB, 4) + ad(6)])
        for f in ad(7) + cvp(DB+1, 6) + sto(1, DB): f()
        st("stB")
        assert not staged, staged
        if bar1: A("s_barrier")
        st("bar1")
        dsr(SEL, vL16, L_ST)
        if rt4:
            A(f"s_add_u32 s{sO2}, s{sO2}, {256<<10}")
            A(f"s_and_b32 s{sO2}, s{sO2}, {768<<10}")
            A(f"s_add_u32 s{sO2b}, s{sO2}, {128<<10}")
            set_neg()
        else:
            A(f"s_xor_b32 s{sO2}, s{sO2}, {256<<10}")
            A(f"s_xor_b32 s{sO2b}, s{sO2b}, {256<<10}")
        def red_block(role, nr):
            T_ = f"{role}{P}"
            ne = 0
            if rt4:
                A(f"s_xor_b32 s{sTmp}, s{sO2}, {512<<10}")
                A(f"s_add_u32 s{sTmp}, s{sTmp}, s{sRst2}")
                A(f"buffer_store_dwordx4 {v(NEG,4)}, v{vT16}, {s(rWS,4)}, s{sTmp} offen")
                A(f"s_add_u32 s{sTmp}, s{sTmp}, {128<<10}")
                A(f"buffer_store_dwordx4 {v(NEG,4)}, v{vT16}, {s(rWS,4)}, s{sTmp} offen")
                ne = 2
            if kxe or "K" in hseq:
                A("s_waitcnt lgkmcnt(0)")
            else:
                A(f"s_waitcnt vmcnt({2*nr+2+ne})")
                kxw()
                A("s_waitcnt lgkmcnt(2)")
            A.label("L_pipe2" + T_)
            if rsm:
                A(f"v_mov_b64 {v(DD,2)}, 0")
            for u in range(2):
                r = R2 + 4*u
                A(f"s_waitcnt vmcnt({2*nr-1-u+ne})")
                A(f"v_max3_u32 v{vT0}, v{r}, v{r+1}, {'v%d' % vT0 if u else 0}")
                A(f"v_max3_u32 v{vT0}, v{r+2}, v{r+3}, v{vT0}")
                if not rsm: mf(DD, SEL, r, u == 0)
            if rsm:
                A(f"v_smfmac_f32_16x16x64_bf16 {v(DD,4)}, {v(SEL,4)}, {v(R2,8)}, v{vIdx} abid:1")
            A(f"v_cmp_eq_u32 vcc, -1, v{vT0}")
            A("s_nop 5")
            A(f"s_cbranch_vccnz L_retryp{T_}")
            if ea and role == 1: ldA()
            for rot in (4, 8):
                A(f"v_add_f32_dpp v{DD}, v{DD}, v{DD} row_ror:{rot} row_mask:0xf bank_mask:0xf")
                A(f"v_add_f32_dpp v{DD+1}, v{DD+1}, v{DD+1} row_ror:{rot} row_mask:0xf bank_mask:0xf")
            A(f"v_cvt_pk_bf16_f32 v{vPD}, v{DD}, v{DD+1}")
            A(f"v_min_u32 v{vPD}, 0xfffffffe, v{vPD}")
            A(f"buffer_store_dword v{vPD}, v{PUB}, {s(rWS,4)}, s{sB+2} offen")
        def feval():
            if not fsl: return
            A("s_waitcnt vmcnt(2)")
            for i, r_ in enumerate(FR_): A(f"v_cmp_ne_u32 s[{sCm+2*i}:{sCm+2*i+1}], s{sK+1}, v{r_}")
            A(f"s_mov_b32 s{sK}, 0")
            for i in range(len(FR_)):
                A(f"s_cmp_lg_u64 s[{sCm+2*i}:{sCm+2*i+1}], 0")
                A(f"s_addc_u32 s{sK}, s{sK}, 0")
            if stamps: A(f"s_add_u32 s{sRetA}, s{sRetA}, s{sK}")
        def fdelay(tag):
            if not fsl: return
            A(f"""
            L_fd{tag}{P}:
            s_sub_u32 s{sK}, s{sK}, 1
            s_cbranch_scc1 L_fe{tag}{P}
            s_nop {fnop}
            s_branch L_fd{tag}{P}
            L_fe{tag}{P}:
            """)
        if kxe:
            A(f"v_add_u32 v{vT0}, s{sMK}, v{vL16}")
            A("s_waitcnt vmcnt(2)")
            A(f"ds_write_b128 v{vT0}, {v(KST,4)}")
        chores(0, 1)
        if kxe: A(f"ds_write_b128 v{vT0}, {v(KST+4,4)} offset:1024")
        A(f"s_bitcmp1_b32 s{sW}, 0")
        A(f"s_cbranch_scc1 L_tailB{P}")
        chores(1, cs[0][0]); delay(dR[0]); ld2(); st("ld2")
        chores(cs[0][0], ctl)
        if na > 1: delay(dR[1]); ld2()
        red_block(0, na)
        if ea:
            delay(dE); ldA(); delay(dE2); ldA()
        A(f"s_branch L_tailj{P}")
        A.label(f"L_tailB{P}")
        if par == 0 and stamps == 1:
            nst[0] -= 1; names.pop()
        chores(1, cs[1][0]); delay(dR[2]); ld2(); st("ld2")
        chores(cs[1][0], ctl)
        if n2 > 1: delay(dR[3]); ld2()
        if n2 > 2: delay(dR[3]); ld2()
        red_block(1, n2)
        A.label(f"L_tailj{P}")
        st("red")
        if bar2: A("s_barrier")
        if par == (nsteps & 1):
            A(f"s_cmp_eq_u32 s{sStep}, {nsteps-1}")
            A("s_cbranch_scc1 L_last")
        if par == 1: A("s_branch L_step_0")
        staged.clear()
    def retry(lab, cnt, body, back):
        A.label(lab)
        A("s_mov_b64 exec, vcc")
        body()
        A("s_mov_b64 exec, -1")
        A(f"s_add_u32 s{cnt}, s{cnt}, 1")
        A(f"s_add_u32 s{sG}, s{sG}, 1")
        A(f"s_cmp_gt_u32 s{sG}, {SPIN}")
        A(f"s_cbranch_scc1 L_team_end")
        if back: A(f"s_branch {back}")
    for par in range(2):
        P = f"_{par}"
        if bonly:
            retry("L_retryA" + P, sRetA, ldA, None)
            A("s_nop 3")
            for i in range(0, 8, 2): A(f"v_mov_b64 {v(ACCA+i,2)}, 0")
            A("s_waitcnt vmcnt(0)")
            A(f"s_branch L_pollA2{P}")
            retry("L_retryB" + P, sRetB, ldB, None)
            A(f"s_waitcnt vmcnt({nsets-1})")
        else:
            if ea:
                A.label("L_retryA" + P)
                A(f"s_cmp_eq_u32 s{sK}, 1")
                A(f"s_mov_b32 s{sK}, 0")
                A(f"s_cbranch_scc1 L_rA2{P}")
            retry(("L_retryAx" if ea else "L_retryA") + P, sRetA, ld1, None)
            A.label("L_rA2" + P)
            A("s_nop 6")
            for i in range(0, 16 if one else 8, 2): A(f"v_mov_b64 {v(ACCA+i,2)}, 0")
            if one and hv == 0:
                for i in range(0, 4, 2): A(f"v_mov_b64 {v(ACCV+i,2)}, 0")
            A(f"s_waitcnt vmcnt({wA})")
            A(f"s_branch L_pollA2{P}")
            retry("L_retryB" + P, sRetB, ld1, None)
            A(f"s_waitcnt vmcnt({wB})")
        chk(ma(4), "L_retryB" + P)
        A(f"s_branch L_okB{P}")
        retry("L_retryp0" + P, sRet2, ld2, "L_pipe20" + P)
        retry("L_retryp1" + P, sRet2, ld2, "L_pipe21" + P)
        if fq:
            A.label("L_fq" + P)
            A(f"ds_read_b32 v{VMR}, v{vT0} offset:{L_F}")
            for k in range(4): A(f"ds_read_b128 {v(POOL+4*k,4)}, v{vQR} offset:{L_Q + 64*k}")
            for k in range(3): A(f"ds_read_b128 {v(ACCA+4*k,4)}, v{vQR} offset:{L_K + 64*k}")
            A("s_waitcnt lgkmcnt(0)")
            A(f"v_cmp_ne_u32 vcc, s{sStep}, v{VMR}")
            A(f"s_add_u32 s{sRetB}, s{sRetB}, 1")
            A(f"s_add_u32 s{sG}, s{sG}, 1")
            A(f"s_cmp_gt_u32 s{sG}, {SPIN}")
            A(f"s_cbranch_scc1 L_team_end")
            A(f"s_cbranch_vccnz L_fq{P}")
            A(f"s_branch L_fqok{P}")
        if kvchk and kfasync:
            A(f"""
            L_kfgo{P}:
            s_min_u32 s{sRdy}, s{sRdy}, 64
            s_lshl_b32 s{sTmp}, s{sRdy}, 8
            v_lshlrev_b32 v{VMR+2}, 4, v{vL16}
            s_add_u32 s{sTmp}, s{sTmp}, {CNT + C_KV}
            s_mov_b64 exec, 0xffff
            buffer_load_dword v{VMR}, v{VMR+2}, {s(rWS,4)}, s{sTmp} offen sc1
            s_mov_b64 exec, -1
            s_branch L_nokf{P}
            """)
        if kvchk:
            kv_wait(P, vT0, VMR, f"s{sStep}")
            A(f"s_branch L_kvok{P}")
    A.label("L_last")
    A(f"buffer_store_dword v{vPD}, v{PUB}, {s(rWS,4)}, s{sMG} offen sc1")
    A("s_waitcnt vmcnt(0) lgkmcnt(0)")
    A.label("L_team_end")
    if stamps:
        if stamps == 2:
            A("s_memrealtime s[98:99]")
            if not ltrace:
                A("s_memtime s[72:73]"); A("s_waitcnt lgkmcnt(0)")
                A("s_sub_u32 s72, s72, s76")
            vals = [72, sStep, sRetA, sRetB, sRet2, 76, 76, 76] + [90, 92, 94, 96, 98, 98, 98, 98]
            if ltrace: vals = list(range(54, 62)) + list(range(68, 92))
        else:
            A("s_waitcnt lgkmcnt(0)")
            for c, (ra, rb) in enumerate(((44, 45), (46, 47))):
                A(f"""
                s_memrealtime s[16:17]
                s_waitcnt lgkmcnt(0)
                s_add_u32 s16, s16, {200 if c else 8}
                L_cal{c}:
                s_memrealtime s[18:19]
                s_memtime s[98:99]
                s_waitcnt lgkmcnt(0)
                s_cmp_lt_u32 s18, s16
                s_cbranch_scc1 L_cal{c}
                s_mov_b32 s{ra}, s18
                s_mov_b32 s{rb}, s98
                """)
            vals = [44, sStep, sRetA, sRetB, sRet2, 45, 46, 47] + list(range(52, 100, 2))
        A(f"s_lshl_b32 s{sTmp}, s{sH}, 2")
        A(f"s_add_u32 s{sTmp}, s{sTmp}, s{sW}")
        A(f"s_lshl_b32 s{sTmp}, s{sTmp}, 7")
        A(f"s_add_u32 s{sTmp}, s{sTmp}, {RES}")
        A("s_waitcnt vmcnt(0)")
        for i, r in enumerate(vals): A(f"v_mov_b32 v{16+i}, s{r}")
        A("v_mov_b32 v0, 0")
        A("s_mov_b64 exec, 1")
        for i in range(len(vals)//4): A(f"buffer_store_dwordx4 {v(16+4*i,4)}, v0, {s(rWS,4)}, s{sTmp} offen offset:{16*i}")
        if stamps == 2 and trace:
            A(f"""
            s_cmp_lg_u32 s{sH}, 0
            s_cbranch_scc1 L_nodbg
            s_cmp_lg_u32 s{sW}, 0
            s_cbranch_scc1 L_nodbg
            buffer_store_dword v24, v0, {s(rDBG,4)}, 0 offen offset:8 sc1
            buffer_store_dword v28, v0, {s(rDBG,4)}, 0 offen offset:12 sc1
            buffer_store_dword v20, v0, {s(rDBG,4)}, 0 offen offset:60 sc1
            buffer_store_dword v19, v0, {s(rDBG,4)}, 0 offen offset:56 sc1
            s_mov_b64 exec, 0xff
            v_lshlrev_b32 v40, 1, v{vL16}
            s_mov_b32 s{sTmp}, {RES + 65536}
            buffer_load_dword v41, v40, {s(rWS,4)}, s{sTmp} offen sc1
            v_lshrrev_b32 v40, 2, v{vL16}
            v_and_b32 v42, 16, v40
            v_lshrrev_b32 v42, 1, v42
            v_add_u32 v40, v40, v42
            s_waitcnt vmcnt(0)
            buffer_store_dword v41, v40, {s(rDBG,4)}, 0 offen offset:16 sc1
            L_nodbg:
            """)
    A("s_waitcnt vmcnt(0)")

def entry(A, diag):
    A(f"""
    {"s_memrealtime s[68:69]" if diag else ""}
    s_load_dwordx4 s[4:7], s[0:1], 104
    s_load_dwordx4 s[76:79], s[0:1], 0
    s_load_dwordx8 s[80:87], s[0:1], 16
    s_load_dwordx8 s[88:95], s[0:1], 64
    s_load_dwordx2 s[70:71], s[0:1], 96
    s_getreg_b32 s{sX}, hwreg(HW_REG_XCC_ID)
    s_and_b32 s{sX}, s{sX}, 7
    v_lshrrev_b32 v1, 6, v0
    v_readfirstlane_b32 s{sW}, v1
    s_waitcnt lgkmcnt(0)
    {"s_mov_b32 s3, s68" if diag else ""}
    """)

def gen_standalone(**kw):
    A = Asm()
    A.raw(f"; @launch grid=(256,1,1) block=(256,1,1) lds=163840")
    A.raw('.amdgcn_target "amdgcn-amd-amdhsa--gfx950"')
    A.raw(".text")
    kernel_begin(A, NAME + "_kernel")
    A(f"""
    s_cmp_ge_u32 s2, 256
    s_cbranch_scc1 L_end
    """)
    entry(A, True)
    srd(A, rWS, 6, WS_BYTES)
    srd(A, rDBG, 4, 256)
    spf = kw.pop("spf", 0)
    role_select(A, "L_pfw" if spf else "L_end")
    team(A, **kw)
    A.label("L_end")
    A("s_endpgm")
    if spf:
        A.label("L_pfw")
        A(f"""
        s_lshr_b32 s{sTmp}, s2, 6
        s_lshl_b32 s{sTmp}, s{sTmp}, 3
        s_add_u32 s{sTmp}, s{sTmp}, 16
        s_load_dwordx2 s[80:81], s[0:1], s{sTmp}
        s_and_b32 s{sTmp}, s2, 62
        s_lshl_b32 s{sTmp}, s{sTmp}, 16
        v_lshlrev_b32 v3, 4, v0
        s_waitcnt lgkmcnt(0)
        """)
        srd(A, rW, 80, 4 << 20)
        for i in range(32):
            A(f"buffer_load_dwordx4 v[{128+4*(i&7)}:{131+4*(i&7)}], v3, {s(rW,4)}, s{sTmp} offen")
            A(f"s_add_u32 s{sTmp}, s{sTmp}, 4096")
        A("s_waitcnt vmcnt(0)")
        A("s_endpgm")
    A.raw('.section .rodata,"a"')
    A.raw(descriptor(NAME + "_kernel", 512, 102, 256))
    global STAMP_NAMES
    STAMP_NAMES = A.stamp_names
    return A.text()

if __name__ == "__main__":
    open("team.s", "w").write(gen_standalone(stamps=2))
```

```python
from asmlib import *

H2 = 0
H1 = 1 << 20
RES = (1 << 20) + (256 << 10)
XN = 2 << 20
KV = 16 << 20
QX = 50 << 20
MEMG = (1 << 20) + (512 << 10)
WS_BYTES = 256 << 20

L_MEM = 0; L_KX = 8192; L_VX = 16384; L_Q = 24576; L_K = 24576 + 256; L_O = 29184; L_ST = 31744; L_W = 32768
RS = 544; RSO = 320
L_F = 24576 + 8*544

rWS, rDBG, rW = 8, 12, 16
sX, sW, sT, sH = 20, 21, 22, 23
sStep, sTmp, sG, sTmp2 = 24, 25, 26, 27
sO1, sO1b, sO2, sO2b = 28, 29, 30, 31
sRd2, sPubO, sRst2, sRst1 = 32, 33, 34, 35
sKV, sMG, sC, sPerm0, sPerm1 = 36, 37, 38, 39, 40
sB = 44
sRetA, sRetB, sRet2 = 48, 49, 50
sMK, sMV, sRd, sPF = 41, 42, 100, 101
sSt = 56
SPIN = 400000
D_WIN, D_INIT, D_LN, D_MOE, D_MOEDONE = 4, 36, 68, 100, 132
CNT = (1 << 20) + (128 << 10)
C_KV, C_O = 0, 128
FLG = (1 << 20) + (64 << 10)
sFl, sFlS, sK = 62, 63, 64
sCm = 66
sRdy = 51

vIdx, vL16, vT16, vT16b, vT16c, vM1, vM2, vM3, vSt2, vQW, vQR, vOW, vOR = range(1, 14)
vT0, vT1, vPD = 0, 14, 15
MEMA = 16
ACCA = 48
ACCB = 56
STG = 64
POOL = 80
ACCV = 112
NEG = 120
S = MEMA + 4
VMR = 124

LDSF = [("q",1,0),("k",0,0),
        ("q",0,4),("k",1,4),
        ("k",0,2),("q",1,3)]
LDSF += [("o", i >> 1, i & 1) for i in (0, 1, 2, 4, 6, 8, 10, 12, 13, 15, 14)]
ALLF = [(m,t,sl) for m in "qkv" for sl in range(8) for t in range(2)] + [("o",t,k) for k in range(2) for t in range(8)]
HOME = {}
_n = 0
for f in ALLF:
    if f in LDSF: HOME[f] = ("l", LDSF.index(f))
    else:
        HOME[f] = ("a", 8*_n) if _n < 32 else ("v", 128 + 8*(_n-32)); _n += 1
assert _n == 47
KST = 248

def lds_frag_addr(idx, part):
    off = L_W + (2*idx + part) * 4096
    if idx == 16: off = L_VX + part * 4096
    if off < 65536: return vT16, off
    if off < 131072: return vT16b, off - 65536
    return vT16c, off - 131072

class Cnt:
    def __init__(self, A, name, cap): self.A, self.name, self.cap, self.n = A, name, cap, 0
    def issue(self): self.n += 1; return self.n
    def wait(self, tok):
        k = self.n - tok
        if k <= self.cap: self.A(f"s_waitcnt {self.name}({k})")
        else: self.A(f"s_waitcnt {self.name}({self.cap})")

def role_select(A, lab_worker, prefetch=False, force=None, cwarm=False):
    if prefetch:
        A(f"""
        s_cmp_lt_u32 s{sW}, 2
        s_cbranch_scc1 L_nopf
        s_lshr_b32 s{sTmp}, s2, 6
        s_lshl_b32 s{sTmp}, s{sTmp}, 3
        s_add_u32 s{sTmp}, s{sTmp}, 16
        s_load_dwordx2 s[80:81], s[0:1], s{sTmp}
        s_and_b32 s{sTmp}, s2, 63
        s_lshl_b32 s{sTmp}, s{sTmp}, 16
        v_and_b32 v3, 127, v0
        v_lshlrev_b32 v3, 4, v3
        s_waitcnt lgkmcnt(0)
        """)
        srd(A, rW, 80, 4 << 20)
        for i in range(32):
            if i % 2 == 0 and i: A(f"s_add_u32 s{sTmp}, s{sTmp}, 4096")
            A(f"buffer_load_dwordx4 v[{128+4*(i&7)}:{131+4*(i&7)}], v3, {s(rW,4)}, s{sTmp} offen offset:{2048*(i&1)}")
        A.label("L_nopf")
    if cwarm:
        A(f"""
        s_cmp_eq_u32 s{sW}, 0
        s_cbranch_scc1 L_nocw
        s_getpc_b64 s[58:59]
        L_pc1:
        s_bfe_u32 s{sTmp}, s2, 0x30003
        s_mul_i32 s{sTmp}, s{sTmp}, 12288
        s_sub_u32 s{sTmp}, s{sTmp}, 4096
        v_lshlrev_b32 v8, 6, v0
        v_add_u32 v8, s{sTmp}, v8
        v_min_u32 v8, L_code_end-L_pc1-4, v8
        v_mov_b32 v9, s59
        v_add_co_u32 v8, vcc, s58, v8
        v_addc_co_u32 v9, vcc, 0, v9, vcc
        global_load_dword v10, v[8:9], off
        s_waitcnt vmcnt(0)
        L_nocw:
        """)
    A(f"""
    s_cmp_lg_u32 s{sW}, 0
    s_cbranch_scc1 L_role_wait
    s_mov_b64 exec, 1
    v_mov_b32 v3, 1
    s_lshl_b32 s{sTmp}, s{sX}, 5
    v_mov_b32 v4, s{sTmp}
    buffer_atomic_add v3, v4, {s(rDBG,4)}, 0 offen sc0
    s_add_u32 s{sTmp}, s{sX}, 1
    v_mov_b32 v5, 0
    s_mov_b32 s{sG}, 0
    s_cmp_ge_u32 s2, 64
    s_cbranch_scc1 L_poll_win
    {f"s_cmp_eq_u32 s{sX}, {force}" if force is not None else f"s_and_b32 s{sStep}, s{sX}, 3"}
    s_cbranch_scc1 L_bid
    L_poll_win:
    buffer_load_dword v6, v5, {s(rDBG,4)}, 0 offen offset:{D_WIN} sc1
    s_waitcnt vmcnt(0)
    v_readfirstlane_b32 s{sStep}, v6
    s_cmp_lg_u32 s{sStep}, 0
    s_cbranch_scc1 L_have_win
    s_add_u32 s{sG}, s{sG}, 1
    s_cmp_lt_u32 s{sG}, {12 if force is None else 1000}
    s_cbranch_scc1 L_poll_win
    L_bid:
    v_mov_b32 v6, s{sTmp}
    v_mov_b32 v7, 0
    buffer_atomic_cmpswap v[6:7], v5, {s(rDBG,4)}, 0 offen offset:{D_WIN} sc0
    s_waitcnt vmcnt(0)
    v_readfirstlane_b32 s{sStep}, v6
    s_cmp_eq_u32 s{sStep}, 0
    s_cselect_b32 s{sStep}, s{sTmp}, s{sStep}
    L_have_win:
    v_readfirstlane_b32 s{sT}, v3
    s_mov_b32 s{sH}, 0xffff
    s_cmp_gt_u32 s{sT}, 31
    s_cbranch_scc1 L_role_done
    s_sub_u32 s{sStep}, s{sStep}, 1
    s_xor_b32 s{sStep}, s{sStep}, s{sX}
    s_sub_u32 s{sH}, s{sStep}, 3
    s_add_u32 s{sTmp}, s{sStep}, 4
    s_cmp_ge_u32 s{sStep}, 4
    s_cselect_b32 s{sH}, s{sH}, s{sTmp}
    s_cmp_eq_u32 s{sStep}, 0
    s_cselect_b32 s{sH}, 0, s{sH}
    s_lshl_b32 s{sH}, s{sH}, 5
    s_add_u32 s{sH}, s{sH}, s{sT}
    L_role_done:
    v_mov_b32 v3, s{sH}
    v_mov_b32 v4, 0
    ds_write_b32 v4, v3
    s_mov_b64 exec, -1
    L_role_wait:
    s_waitcnt lgkmcnt(0)
    s_barrier
    v_mov_b32 v4, 0
    ds_read_b32 v3, v4
    s_waitcnt lgkmcnt(0)
    v_readfirstlane_b32 s{sH}, v3
    s_barrier
    s_cmp_gt_u32 s{sH}, 31
    s_cbranch_scc1 {lab_worker}
    """)

def team(A, nsteps=64, stamps=False, ctl=6, z0=13, dA=0, gapB=6, nsets=2, dR=(24,4,16,12), n2=2, dAA=0, bar1=1, bar2=1, pfd=0, usepk=True, rt=False, off="pf", cs=((3,6),(5,6)), kvchk=False, trace=False, gapAB=2, na=2, d3r=2, joint=True, bonly=False, fsl=(), fnop=3, cpre=0, fill_at=4, kfasync=True, lead=0, ks=28, linw=0, dmaw=True, wo_at=(1, 2, 3, 5), ea=False, eb=6, dE=16, dE2=8, hseq="Az.B_A.BRSr", g2=0, ob64=True, one=True, nzo=2, shift=1, kxe=False, kep=0, vpre=7, rsm=False, rt4=False, hv=1, vpf=False, ltrace=False, retouch=True, kfd=5, m4=True, osw=True, g10=2, fq=False, iwarm=20, unroll=2, whop=False):
    nst = [0]
    names = []
    def stamp(name=""):
        if stamps != 1: return
        k = nst[0]; nst[0] += 1
        assert k < 23
        names.append(name)
        A(f"s_mem{'real' if rt else ''}time s[{52+2*k}:{53+2*k}]")
    A.stamp_names = names
    if stamps == 2: A("s_memrealtime s[92:93]")
    vC, vG, vLn = 16, 17, 18
    x0, x1, x2, x3 = 19, 20, 21, 22
    vWq, vWq2, vWv, vWv2, vWo = 23, 24, 25, 26, 27
    vPubT = 28
    A(f"""
    {"s_mov_b32 s90, s3" if stamps == 2 else ""}
    v_and_b32 v{vLn}, 63, v0
    v_and_b32 v{vC}, 15, v0
    v_lshrrev_b32 v{vG}, 4, v{vLn}
    v_lshlrev_b32 v{vL16}, 4, v{vLn}
    v_lshlrev_b32 v{vT16}, 4, v0
    v_add_u32 v{vT16b}, 0x10000, v{vT16}
    v_add_u32 v{vT16c}, 0x20000, v{vT16}
    v_xor_b32 v{vM1}, 1024, v{vT16}
    v_xor_b32 v{vM2}, 2048, v{vT16}
    v_xor_b32 v{vM3}, 3072, v{vT16}
    v_and_b32 v{x0}, 2, v{vC}
    v_cmp_ne_u32 vcc, 0, v{x0}
    v_mov_b32 v{x1}, 0x4444
    v_mov_b32 v{x2}, 0xeeee
    v_cndmask_b32 v{vIdx}, v{x1}, v{x2}, vcc
    v_and_b32 v{x3}, 4, v{vC}
    v_cmp_ne_u32 vcc, 0, v{x3}
    v_cndmask_b32 v{x1}, v{x1}, v{x2}, vcc
    v_lshl_or_b32 v{vIdx}, v{x1}, 16, v{vIdx}
    ; row(c) = 2*(c>>2) + (c&1)
    v_lshrrev_b32 v{x1}, 2, v{vC}
    v_and_b32 v{x2}, 1, v{vC}
    v_lshl_add_u32 v{x1}, v{x1}, 1, v{x2}
    v_mul_u32_u24 v{x3}, {RSO}, v{x1}
    v_lshl_add_u32 v{vOR}, v{vG}, 5, v{x3}
    v_lshl_add_u32 v{vOR}, v{x0}, 3, v{vOR}
    v_and_b32 v30, 4, v{vC}
    v_lshlrev_b32 v30, 2, v30
    {f"v_xor_b32 v{vOR}, v{vOR}, v30" if osw else ""}
    {f"v_lshlrev_b32 v{x3}, 1, v{x0}" if m4 else ""}
    {f"v_xor_b32 v{x1}, v{x1}, v{x3}" if m4 else ""}
    v_mul_u32_u24 v{x3}, {RSO}, v{x1}
    v_mul_u32_u24 v{x1}, {RS}, v{x1}
    v_lshl_add_u32 v{vQR}, v{vG}, 4, v{x1}
    s_lshl_b32 s{sTmp}, s{sW}, 6
    v_lshl_add_u32 v{vOW}, v{vG}, 4, v{x3}
    v_add_u32 v{vOW}, s{sTmp}, v{vOW}
    {f"v_lshl_add_u32 v{vOW}, v{x0}, 2, v{vOW}" if ob64 else ""}
    {f"v_xor_b32 v{vOW}, v{vOW}, v30" if osw else ""}
    v_mul_u32_u24 v{x1}, {2*RS}, v{vG}
    v_lshl_add_u32 v{x1}, v{vC}, 2, v{x1}
    v_add_u32 v{vQW}, s{sTmp}, v{x1}
    v_add_u32 v{vQW}, {L_Q}, v{vQW}
    ; vSt2 = (8w + c>>1)*4096 + (g>>1)*2048 + h*64 + (2(g&1) + (c&1))*16
    v_lshrrev_b32 v{x1}, 1, v{vC}
    s_lshl_b32 s{sTmp}, s{sW}, 3
    v_add_u32 v{x1}, s{sTmp}, v{x1}
    v_lshlrev_b32 v{x1}, 12, v{x1}
    v_lshrrev_b32 v{x3}, 1, v{vG}
    v_lshl_add_u32 v{x1}, v{x3}, 11, v{x1}
    v_and_b32 v{x0}, 1, v{vG}
    v_lshl_add_u32 v{x1}, v{x0}, 5, v{x1}
    v_lshl_add_u32 v{x1}, v{x2}, 4, v{x1}
    s_lshl_b32 s{sTmp}, s{sH}, 6
    v_add_u32 v{vSt2}, s{sTmp}, v{x1}
    v_bfe_u32 v{x1}, v{vC}, 1, 1
    s_and_b32 s{sTmp}, s{sW}, 2
    v_add_u32 v{x1}, s{sTmp}, v{x1}
    v_lshl_add_u32 v30, v{x1}, 2, v{x3}
    v_lshlrev_b32 v30, 4, v30
    v_lshl_add_u32 v30, v{x2}, 3, v30
    v_lshl_add_u32 v30, v{x0}, 2, v30
    s_lshr_b32 s{sTmp}, s{sH}, 1
    s_lshl_b32 s{sTmp}, s{sTmp}, 8
    s_and_b32 s{sTmp2}, s{sH}, 1
    s_lshl_b32 s{sTmp2}, s{sTmp2}, 5
    s_add_u32 s{sTmp}, s{sTmp}, s{sTmp2}
    v_add_u32 v30, s{sTmp}, v30
    v_cmp_gt_u32 vcc, 4, v{vC}
    v_mov_b32 v{vPubT}, 0x7f000000
    v_cndmask_b32 v{vPubT}, v{vPubT}, v30, vcc
    v_mov_b32 v{vT1}, v{vPubT}
    v_lshl_add_u32 v{x1}, v{x1}, 1, v{x3}
    v_lshlrev_b32 v{x1}, 10, v{x1}
    v_lshl_add_u32 v{x1}, v{x2}, 4, v{x1}
    v_lshl_add_u32 v{x1}, v{x0}, 2, v{x1}
    s_lshl_b32 s{sTmp}, s{sH}, 5
    v_add_u32 v29, s{sTmp}, v{x1}
    v_lshlrev_b32 v{x2}, 4, v{x2}
    v_mov_b32 v{x3}, 0x3f80
    v_lshlrev_b32 v{x3}, v{x2}, v{x3}
    v_lshrrev_b32 v{x2}, {3 if rsm else 2}, v{vC}
    """)
    for r in range(4):
        A(f"v_cmp_eq_u32 vcc, {r & 1 if rsm else r}, v{x2}")
        A(f"v_cndmask_b32 v{32+r}, 0, v{x3}, vcc")
    A(f"ds_write_b128 v{vL16}, v[32:35] offset:{L_ST}")
    A(f"""
    v_lshrrev_b32 v{x0}, 1, v{vG}
    v_and_b32 v{x1}, 1, v{vG}
    v_lshlrev_b32 v{x2}, 18, v{x0}
    v_lshl_add_u32 v{x2}, v{x1}, 16, v{x2}
    s_lshl_b32 s{sTmp}, s{sH}, 8
    s_lshl_b32 s{sTmp2}, s{sW}, 6
    s_add_u32 s{sTmp}, s{sTmp}, s{sTmp2}
    v_add_u32 v{x2}, s{sTmp}, v{x2}
    v_lshl_add_u32 v{vWq}, v{vC}, 2, v{x2}
    v_add_u32 v{vWq2}, 0x2000, v{vWq}
    ; Wo: (16(g>>1) + 4(g&1))*1024 + h*131072 + 256w + 16c
    v_lshlrev_b32 v{x2}, 12, v{x1}
    v_lshl_add_u32 v{x2}, v{x0}, 14, v{x2}
    v_lshl_add_u32 v{x2}, v{vC}, 4, v{x2}
    s_lshl_b32 s{sTmp}, s{sH}, 17
    s_lshl_b32 s{sTmp2}, s{sW}, 8
    s_add_u32 s{sTmp}, s{sTmp}, s{sTmp2}
    v_add_u32 v{vWo}, s{sTmp}, v{x2}
    s_mov_b32 s{sPerm0}, 0x05040100
    s_mov_b32 s{sPerm1}, 0x07060302
    v_lshrrev_b32 v{vWv}, 4, v0
    v_lshlrev_b32 v{vWv}, 13, v{vWv}
    v_lshl_add_u32 v{vWv}, v{vC}, 4, v{vWv}
    s_lshl_b32 s{sTmp}, s{sH}, 8
    v_add_u32 v{vWv}, s{sTmp}, v{vWv}
    """)
    for i in range(4):
        A(f"s_xor_b32 s{sB+i}, s{sW}, {i}")
        A(f"s_lshl_b32 s{sB+i}, s{sB+i}, 20")
    NG_ = 112
    for i in range(4): A(f"v_mov_b32 v{NG_+i}, -1")
    A(f"s_lshl_b32 s{sRst2}, s{sH}, 12")
    A(f"s_and_b32 s{sPubO}, s{sW}, 1")
    A(f"s_lshl_b32 s{sTmp2}, s{sPubO}, 3")
    A(f"s_lshl_b32 s{sPubO}, s{sPubO}, 12")
    A(f"s_add_u32 s{sMG}, s{sPubO}, {MEMG}")
    A(f"s_add_u32 s{sPubO}, s{sPubO}, {H1}")
    A("s_waitcnt lgkmcnt(0)")
    srd(A, rW, 78, 8192)
    A(f"buffer_load_dword v{vPD}, v29, {s(rW,4)}, s{sTmp2} offen")
    def fills():
        for sl in range(4 if rt4 else 2):
            for x in range(2):
                A(f"s_add_u32 s{sTmp}, s{sRst2}, {H2 + sl*(256<<10) + x*(128<<10)}")
                A(f"buffer_store_dwordx4 {v(NG_,4)}, v{vT16}, {s(rWS,4)}, s{sTmp} offen"); vm.issue()
        A(f"s_lshl_b32 s{sTmp2}, s{sH}, 14")
        for i in range(4):
            A(f"s_add_u32 s{sTmp}, s{sTmp2}, {MEMG + i*4096}")
            A(f"buffer_store_dwordx4 {v(NG_,4)}, v{vT16}, {s(rWS,4)}, s{sTmp} offen sc1"); vm.issue()
        for sl in range(1, 4):
            A(f"s_add_u32 s{sTmp}, s{sPubO}, {sl*8192}")
            A(f"buffer_store_dword v{NG_}, v{vPubT}, {s(rWS,4)}, s{sTmp} offen"); vm.issue()
        A(f"v_min_u32 v{vPD}, 0xfffffffe, v{vPD}")
        A(f"buffer_store_dword v{vPD}, v{vPubT}, {s(rWS,4)}, s{sPubO} offen"); vm.issue()
        if not fsl: return
        A(f"s_lshr_b32 s{sFl}, s{sW}, 1")
        A(f"s_mul_i32 s{sFl}, s{sFl}, 1280")
        A(f"s_add_u32 s{sFl}, s{sFl}, {FLG}")
        A(f"s_bitcmp1_b32 s{sW}, 0")
        A(f"s_cselect_b32 s{sFl}, s{sFl}, 0x7f000000")
        A(f"s_add_u32 s{sFlS}, s{sH}, {FLG}")
        A(f"s_cmp_eq_u32 s{sW}, 0")
        A(f"s_cselect_b32 s{sFlS}, s{sFlS}, 0x7f000000")
        A(f"v_lshlrev_b32 v31, 4, v{vL16}")
        A("s_mov_b64 exec, 0x3ff")
        A(f"buffer_store_byte v{NG_}, v31, {s(rWS,4)}, s{sFlS} offen"); vm.issue()
        A("s_mov_b64 exec, -1")
    def arrive():
        A("s_barrier")
        A(f"""
        s_cmp_lg_u32 s{sW}, 0
        s_cbranch_scc1 L_t_arrived
        s_mov_b64 exec, 1
        v_mov_b32 v{NG_}, 1
        v_mov_b32 v{NG_+1}, 0
        buffer_atomic_add v{NG_}, v{NG_+1}, {s(rDBG,4)}, 0 offen offset:{D_INIT}
        s_mov_b64 exec, -1
        L_t_arrived:
        """)
    TB = [32, 48, 64, 80]
    PT = 96
    vm = Cnt(A, "vmcnt", 63)
    batches = []
    ob = [("o", k, bp) for k in range(2) for bp in range(4)]
    for mi, m in enumerate("qkv"):
        for sl in range(8):
            batches.append((m, sl))
            if (8*mi + sl) % 3 == 0: batches.append(ob.pop(0))
    TB = [32, 48, 64, 80, 116 - 4]
    rWo = 52
    srd(A, rWo, 86, 4 << 20)
    def issue(bi):
        b = batches[bi]; T = TB[bi % 4]
        if b[0] != "o":
            m, sl = b
            if sl == 0: srd(A, rW, {"q": 80, "k": 82, "v": 84}[m], 4 << 20)
            va, vb = vWq, vWq2
            if linw == 1:
                for j in range(4):
                    A(f"s_lshl_b32 s{sTmp}, s{sH}, 17")
                    A(f"s_add_u32 s{sTmp}, s{sTmp}, {sl*16384 + j*4096}")
                    A(f"buffer_load_dwordx4 {v(T+4*j,4)}, v{vT16}, {s(rW,4)}, s{sTmp} offen"); tok = vm.issue()
                return tok
            if linw == 2:
                for j in range(4):
                    A(f"s_mov_b32 s{sTmp}, {(sl*64 + j*16)*8192}")
                    A(f"buffer_load_dwordx4 {v(T+4*j,4)}, v{vWv}, {s(rW,4)}, s{sTmp} offen"); tok = vm.issue()
                return tok
            for be in range(8):
                row = 64*(be >> 2) + 16*(be & 1) + 4*(sl >> 2) + 2*((be >> 1) & 1)
                A(f"s_add_u32 s{sTmp}, s{sB+(sl&3)}, {row*8192}")
                A(f"buffer_load_dword v{T+2*be}, v{va}, {s(rW,4)}, s{sTmp} offen"); vm.issue()
                A(f"buffer_load_dword v{T+2*be+1}, v{vb}, {s(rW,4)}, s{sTmp} offen"); tok = vm.issue()
        else:
            _, k, bp = b
            for j in range(2):
                be = 2*bp + j
                row = 64*k + 32*(be >> 2) + 8*(be & 1) + 2*((be >> 1) & 1)
                A(f"s_mov_b32 s{sTmp}, {row*1024}")
                A(f"buffer_load_dwordx4 {v(T+8*j,4)}, v{vWo}, {s(rWo,4)}, s{sTmp} offen"); vm.issue()
                A(f"buffer_load_dwordx4 {v(T+8*j+4,4)}, v{vWo}, {s(rWo,4)}, s{sTmp} offen offset:1024"); tok = vm.issue()
        return tok
    def put(f, be, lo, hi, sel, tmp):
        kind, base = HOME[f]
        if kind == "v":
            A(f"v_perm_b32 v{base+be}, v{hi}, v{lo}, s{sel}")
        else:
            A(f"v_perm_b32 v{tmp}, v{hi}, v{lo}, s{sel}")
            if kind == "a": A(f"v_accvgpr_write_b32 a{base+be}, v{tmp}")
    def consume(bi):
        b = batches[bi]; T = TB[bi % 4]
        if b[0] != "o":
            m, sl = b
            for t in range(2):
                f = (m, t, sl)
                for be in range(8):
                    put(f, be, T+2*be, T+2*be+1, sPerm1 if t else sPerm0, PT + 8*t + be)
                if HOME[f][0] == "l":
                    for p in range(2):
                        ar, off = lds_frag_addr(HOME[f][1], p)
                        A(f"ds_write_b128 v{ar}, {v(PT+8*t+4*p,4)} offset:{off}")
            A("s_waitcnt lgkmcnt(0)")
        else:
            _, k, bp = b
            for t in range(8):
                f = ("o", t, k)
                for j in range(2):
                    be = 2*bp + j
                    put(f, be, T+8*j+(t >> 1), T+8*j+4+(t >> 1), sPerm1 if t & 1 else sPerm0, PT + 2*t + j)
                if HOME[f][0] == "l":
                    ar, off = lds_frag_addr(HOME[f][1], bp >> 1)
                    A(f"ds_write_b64 v{ar}, {v(PT+2*t,2)} offset:{off + 8*(bp & 1)}")
            A("s_waitcnt lgkmcnt(0)")
    toks = {}
    DEPTH = 4
    def flags1():
        A("v_mov_b32 v30, 0")
        A(f"buffer_load_dword v29, v30, {s(rDBG,4)}, 0 offen offset:{D_LN} sc1"); vm.issue()
        A(f"buffer_load_dword v31, v30, {s(rDBG,4)}, 0 offen offset:{D_INIT} sc1"); vm.issue()
    def flags2():
        A("v_readfirstlane_b32 s60, v29")
        A("v_readfirstlane_b32 s61, v31")
        A(f"v_lshlrev_b32 v30, 4, v{vL16}")
        A(f"s_mov_b32 s{sTmp}, {CNT + C_KV}")
        A(f"buffer_load_dword v29, v30, {s(rWS,4)}, s{sTmp} offen sc1"); vm.issue()
    if not dmaw:
        for bi in range(len(batches) + DEPTH):
            if bi >= DEPTH:
                vm.wait(toks[bi - DEPTH]); consume(bi - DEPTH)
            if bi == len(batches) - 5: flags1()
            if bi == len(batches) - 1: flags2()
            if bi == fill_at: fills()
            if bi == fill_at + DEPTH: arrive()
            if bi < len(batches): toks[bi] = issue(bi)
    else:
        STGB = L_W + 65536
        RA = 116
        RT = 120
        sM0w = 56
        A(f"""
        v_lshlrev_b32 v{vWv}, 13, v{vG}
        v_lshl_add_u32 v{vWv}, v{vC}, 4, v{vWv}
        s_lshl_b32 s{sTmp}, s{sH}, 8
        s_lshl_b32 s{sTmp2}, s{sW}, 20
        s_add_u32 s{sTmp}, s{sTmp}, s{sTmp2}
        v_add_u32 v{vWv}, s{sTmp}, v{vWv}
        v_lshlrev_b32 v{x0}, 10, v{vG}
        v_lshl_add_u32 v{x0}, v{vC}, 2, v{x0}
        s_lshl_b32 s{sTmp}, s{sW}, 6
        s_add_u32 s{sTmp}, s{sTmp}, {STGB}
        v_add_u32 v{x0}, s{sTmp}, v{x0}
        s_lshl_b32 s{sM0w}, s{sW}, 12
        s_add_u32 s{sM0w}, s{sM0w}, {STGB}
        """)
        for i in range(4):
            A(f"s_lshr_b32 s{sTmp}, s{sB+i}, 8")
            A(f"v_add_u32 v{RA+i}, s{sTmp}, v{x0}")
        chunks = [(m, b2, x, b0) for m in "qkv" for x in range(2) for b2 in range(2) for b0 in range(2)]
        def cissue(c):
            m, b2, x, b0 = chunks[c]
            if c % 8 == 0: srd(A, rW, {"q": 80, "k": 82, "v": 84}[m], 4 << 20)
            for g in range(4):
                A(f"s_add_u32 m0, s{sM0w}, {(c % 4)*16384 + g*1024}")
                A(f"s_mov_b32 s{sTmp}, {(64*b2 + 16*b0 + 4*x + 32*(g >> 1) + 8*(g & 1))*8192}")
                A(f"buffer_load_dwordx4 v{vWv}, {s(rW,4)}, s{sTmp} offen lds"); tok = vm.issue()
            return tok
        def cconsume(c):
            m, b2, x, b0 = chunks[c]
            for sp in range(4):
                for b1 in range(2):
                    dst = (PT if sp < 2 else RT - 8) + 4*sp + 2*b1
                    A(f"ds_read2st64_b32 {v(dst,2)}, v{RA+sp} offset0:{(c % 4)*64 + 2*b1} offset1:{(c % 4)*64 + 2*b1 + 1}")
            for sp in range(4):
                A(f"s_waitcnt lgkmcnt({6-2*sp})") if not wrote[0] else A("s_waitcnt lgkmcnt(0)")
                for b1 in range(2):
                    lo = (PT if sp < 2 else RT - 8) + 4*sp + 2*b1
                    be = 4*b2 + 2*b1 + b0
                    for t in range(2):
                        f = (m, t, 4*x + sp); tmp = PT + 8 + 2*b1 + t + 4*(sp & 1)
                        put(f, be, lo, lo+1, sPerm1 if t else sPerm0, tmp)
                        if HOME[f][0] == "l":
                            ar, off = lds_frag_addr(HOME[f][1], be >> 2)
                            A(f"ds_write_b32 v{ar}, v{tmp} offset:{off + 4*(be & 3)}"); wrote[0] = True
            wrote[0] = False
        wrote = [False]
        obs = [i for i, b in enumerate(batches) if b[0] == "o"]
        batches[:] = [batches[i] for i in obs]
        ct = {}
        for c in range(3): ct[c] = cissue(c)
        for c in range(24):
            vm.wait(ct[c])
            A("s_waitcnt lgkmcnt(0)")
            A("s_barrier")
            if c == 1: fills()
            if c == 4: arrive()
            if c + 3 < 24: ct[c+3] = cissue(c + 3)
            if c in wo_at: toks[wo_at.index(c)] = issue(wo_at.index(c))
            if c == 23: flags1()
            if c == 23 and whop:
                A("s_branch L_wh0")
                A.label("L_wh_ret")
            if c == iwarm:
                A("s_getpc_b64 s[58:59]")
                A.label("L_pc0")
                A("s_add_u32 s58, s58, L_step_0-L_pc0")
                A("s_addc_u32 s59, s59, 0")
                A("v_lshlrev_b32 v20, 5, v0")
                A("v_mov_b32 v21, s59")
                A("v_add_co_u32 v20, vcc, s58, v20")
                A("v_addc_co_u32 v21, vcc, 0, v21, vcc")
                A("global_load_dword v22, v[20:21], off"); vm.issue()
            cconsume(c)
        A("s_waitcnt lgkmcnt(0)")
        A("s_barrier")
        for bi in range(8):
            vm.wait(toks[bi]); consume(bi)
            if bi == 4: flags2()
            if bi == 5 and retouch:
                for sl in range(2):
                    for x in range(2):
                        A(f"s_add_u32 s{sTmp}, s{sRst2}, {H2 + sl*(256<<10) + x*(128<<10)}")
                        A(f"buffer_load_dwordx4 {v(NG_,4)}, v{vT16}, {s(rWS,4)}, s{sTmp} offen sc1"); vm.issue()
                A(f"s_and_b32 s{sTmp}, s{sRst2}, 0x7000")
                A(f"s_add_u32 s{sTmp}, s{sTmp}, {H1}")
                A(f"buffer_load_dwordx4 {v(NG_,4)}, v{vT16}, {s(rWS,4)}, s{sTmp} offen sc1"); vm.issue()
            if bi + 4 < 8: toks[bi+4] = issue(bi + 4)
        A("s_waitcnt vmcnt(0)")
    if stamps == 2: A("s_memrealtime s[94:95]")
    A(f"s_lshl_b32 s{sKV}, s{sH}, 14")
    A(f"s_lshl_b32 s{sTmp}, s{sW}, 11")
    A(f"s_add_u32 s{sKV}, s{sKV}, s{sTmp}")
    A(f"s_add_u32 s{sKV}, s{sKV}, {KV}")
    A(f"s_add_u32 s{sMK}, s{sTmp}, {L_KX}")
    A(f"s_add_u32 s{sMV}, s{sTmp}, {L_VX}")
    A(f"s_lshl_b32 s{sMV+1}, s{sH}, 14")
    A(f"s_add_u32 s{sMV+1}, s{sMV+1}, {KV + 8192}")
    A(f"s_add_u32 s{sPF}, s{sTmp}, {pfd*32*16384}")
    def dma(which, par, j):
        if j == 0:
            A(f"s_mov_b32 m0, s{sMK if which == 'k' else sMV + par}")
            if which == "v": A(f"s_add_u32 s{sTmp}, s{sKV}, 8192")
        A(f"buffer_load_dwordx4 v{vL16}, {s(rWS,4)}, s{sKV if which == 'k' else sTmp} offen offset:{1024*j} sc1 lds")
    def kv_wait(tag, ta, tb, need):
        A(f"""
        L_kvw{tag}:
        v_lshlrev_b32 v{ta}, 4, v{vL16}
        s_mov_b32 s{sTmp}, {CNT + C_KV}
        buffer_load_dword v{tb}, v{ta}, {s(rWS,4)}, s{sTmp} offen sc1
        s_waitcnt vmcnt(0)
        v_cmp_eq_u32 vcc, 32, v{tb}
        s_ff0_i32_b64 s{sRdy}, vcc
        s_add_u32 s{sG}, s{sG}, 1
        s_cmp_gt_u32 s{sG}, {SPIN}
        s_cbranch_scc1 L_team_end
        s_cmp_gt_u32 s{sRdy}, {need}
        s_cbranch_scc0 L_kvw{tag}
        """)
    A(f"s_mov_b32 s{sG}, 0")
    if kvchk:
        A(f"""
        v_cmp_eq_u32 vcc, 32, v29
        s_ff0_i32_b64 s{sRdy}, vcc
        s_cmp_ge_u32 s60, 64
        s_cselect_b32 s{sRdy}, s{sRdy}, 0
        s_cmp_lg_u32 s{sRdy}, 0
        s_cbranch_scc1 L_kv0ok
        v_mov_b32 v41, 0
        L_lnw:
        buffer_load_dword v40, v41, {s(rDBG,4)}, 0 offen offset:{D_LN} sc1
        s_waitcnt vmcnt(0)
        v_readfirstlane_b32 s{sTmp2}, v40
        s_add_u32 s{sG}, s{sG}, 1
        s_cmp_gt_u32 s{sG}, {SPIN}
        s_cbranch_scc1 L_team_end
        s_cmp_lt_u32 s{sTmp2}, 64
        s_cbranch_scc1 L_lnw
        """)
        kv_wait("0", 40, 41, "0")
        A.label("L_kv0ok")
    for j in range(2): A(f"buffer_load_dwordx4 {v(KST+4*j,4)}, v{vL16}, {s(rWS,4)}, s{sKV} offen offset:{1024*j} sc1")
    A(f"s_add_u32 s{sKV}, s{sKV}, {32*16384}")
    A(f"""
    s_cmp_ge_u32 s61, 32
    s_cbranch_scc1 L_init_wait
    s_cmp_lg_u32 s{sW}, 0
    s_cbranch_scc1 L_init_wait
    v_mov_b32 v41, 0
    s_mov_b32 s{sG}, 0
    L_init_poll:
    buffer_load_dword v40, v41, {s(rDBG,4)}, 0 offen offset:{D_INIT} sc1
    s_waitcnt vmcnt(0)
    v_readfirstlane_b32 s{sTmp}, v40
    s_add_u32 s{sG}, s{sG}, 1
    s_cmp_gt_u32 s{sG}, {SPIN}
    s_cbranch_scc1 L_init_wait
    s_cmp_lt_u32 s{sTmp}, 32
    s_cbranch_scc1 L_init_poll
    L_init_wait:
    s_waitcnt lgkmcnt(0)
    s_barrier
    s_mov_b32 s{sStep}, 0
    s_mov_b32 s{sG}, 0
    s_mov_b32 s{sRetA}, 0
    s_mov_b32 s{sRetB}, 0
    s_mov_b32 s{sRet2}, 0
    s_mov_b32 s{sC}, 0x3e0293ee
    v_mov_b32 v{VMR+1}, 0
    v_mov_b32 v{VMR+3}, 0
    s_lshl_b32 s{sRd2}, s{sW}, 17
    s_lshl_b32 s{sTmp}, s{sH}, 12
    s_add_u32 s{sRd2}, s{sRd2}, s{sTmp}
    """)
    import math, struct
    cval = struct.unpack("<I", struct.pack("<f", (128 ** -0.5) * math.log2(math.e)))[0]
    A(f"s_mov_b32 s{sC}, {cval:#x}")
    if stamps == 2:
        A("s_memrealtime s[96:97]")
        A("s_memtime s[76:77]"); A("s_waitcnt lgkmcnt(0)")
    assert not (stamps == 1 and fsl)
    if stamps == 1:
        for k in range(52, 100): A(f"s_mov_b32 s{k}, 0")

    lg = Cnt(A, "lgkmcnt", 15)
    staged = {}
    def stage(idx, reg):
        f = LDSF[idx]
        for p in range(2):
            ar, off = lds_frag_addr(idx, p)
            A(f"ds_read_b128 {v(reg+4*p,4)}, v{ar} offset:{off}"); tok = lg.issue()
        staged[f] = (reg, tok)
    waited = [0]
    def lwait(tok):
        if tok > waited[0]:
            lg.wait(tok); waited[0] = tok
    def sm(m, t, sl, acc, areg):
        f = (m, t, sl); kind, base = HOME[f]
        if kind == "l":
            reg, tok = staged.pop(f); lwait(tok); b = v(reg, 8)
        else:
            b = (a if kind == "a" else v)(base, 8)
        A(f"v_smfmac_f32_16x16x64_bf16 {v(acc,4)}, {v(areg,4)}, {b}, v{vIdx}")
    def dsr(dst, addr, off, n=4):
        A(f"ds_read_b{32*n} {v(dst,n)}, v{addr} offset:{off}"); return lg.issue()
    def dsw(addr, src, off, n=4):
        A(f"ds_write_b{32*n} v{addr}, {v(src,n)} offset:{off}"); return lg.issue()
    def chk(r, lab):
        A(f"v_max3_u32 v{vT0}, v{r}, v{r+1}, v{r+2}")
        A(f"v_max_u32 v{vT0}, v{vT0}, v{r+3}")
        A(f"v_cmp_eq_u32 vcc, -1, v{vT0}")
        A(f"s_cbranch_vccnz {lab}")
    qa = lambda t: ACCA + 4*t
    ka = lambda t: ACCB + 4*t
    ma = lambda sl: MEMA + 4*sl

    QB = POOL; FR = POOL + 16
    va = lambda t: ACCV + 4*t
    WA = MEMA
    wa = lambda t: WA + 4*t
    R2 = ma(5); SEL = ma(7); PUB = vT1; DD = ma(3)
    def stage1(idx, reg, p):
        f = LDSF[idx]
        ar, off = lds_frag_addr(idx, p)
        A(f"ds_read_b128 {v(reg+4*p,4)}, v{ar} offset:{off}"); tok = lg.issue()
        if p == 1: staged[f] = (reg, tok)
    G = lambda idx, reg, p: (lambda: stage1(idx, reg, p))
    def mf(d, a_, b_, first, k16=False):
        n = 2 if k16 else 4
        A(f"v_mfma_f32_16x16x{16 if k16 else 32}_bf16 {v(d,4)}, {v(a_,n)}, {v(b_,n)}, {0 if first else v(d,4)}")
    def slots(ms, fill):
        for i, m in enumerate(ms):
            m()
            if i < len(fill):
                for f in fill[i]: f()
        for fl in fill[len(ms):]:
            for f in fl: f()
    I = lambda txt: (lambda: A(txt))
    accf = {"q": qa, "k": ka, "v": va}
    SM = lambda m, t, sl, areg=None: (lambda: sm(m, t, sl, accf[m](t), ma(sl) if areg is None else areg))
    PRE = [(0, STG), (1, STG+8), (2, FR), (3, FR+8), (5, QB+8), (4, QB)]
    def chores(lo, hi):
        for idx, reg in PRE[lo:hi]: stage(idx, reg)
    def zero_accs():
        for i in range(0, 16, 2): A(f"v_mov_b64 {v(ACCA+i,2)}, 0")
        for i in range(0, 8, 2): A(f"v_mov_b64 {v(ACCV+i,2)}, 0")
    def set_neg():
        A(f"v_mov_b64 {v(NEG,2)}, -1"); A(f"v_mov_b64 {v(NEG+2,2)}, -1")
    def slot_offsets():
        A(f"""
        s_and_b32 s{sTmp}, s{sStep}, 3
        s_lshl_b32 s{sO1}, s{sTmp}, 13
        s_add_u32 s{sO1}, s{sO1}, {H1}
        s_add_u32 s{sO1b}, s{sO1}, 4096
        """)
    def ld1():
        A(f"buffer_load_dwordx4 {v(ma(0),4)}, v{vT16}, {s(rWS,4)}, s{sO1} offen sc1")
        A(f"buffer_load_dwordx4 {v(ma(4),4)}, v{vT16}, {s(rWS,4)}, s{sO1b} offen sc1")
    def ld2():
        for u in range(2):
            if u and g2: A(f"s_nop {g2-1}")
            A(f"buffer_load_dwordx4 {v(R2+4*u,4)}, v{vL16}, {s(rWS,4)}, s{sRd} offen offset:{1024*u} sc1")
    def delay(n):
        while n > 0:
            A(f"s_nop {min(n,16)-1}"); n -= 16
    chores(0, 6); zero_accs(); set_neg(); slot_offsets()
    A(f"s_mov_b32 s{sO2}, {H2}"); A(f"s_mov_b32 s{sO2b}, {H2 + (128<<10)}")
    A(f"s_add_u32 s{sRst1}, s{sPubO}, {2*8192}")
    A(f"s_and_b32 s{sTmp}, s{sW}, 1")
    A(f"s_lshl_b32 s{sRd2}, s{sTmp}, 17")
    A(f"s_lshl_b32 s{sTmp}, s{sH}, 12")
    A(f"s_add_u32 s{sRd2}, s{sRd2}, s{sTmp}")
    A(f"s_lshr_b32 s{sTmp}, s{sW}, 1")
    A(f"s_lshl_b32 s{sTmp}, s{sTmp}, 11")
    A(f"s_add_u32 s{sRd2}, s{sRd2}, s{sTmp}")
    pre_staged = dict(staged)
    sKf = 47
    A(f"s_mov_b32 s{sCm}, 0xcccccccc"); A(f"s_mov_b32 s{sCm+1}, 0xcccccccc")
    A(f"s_mov_b32 s{sK}, 0")
    if fq:
        A(f"v_lshrrev_b32 v{vT0}, 2, v{vL16}")
        A(f"ds_write_b32 v{vT0}, v{VMR+1} offset:{L_F}")
    A(f"s_waitcnt vmcnt(0) lgkmcnt(0)")
    A(f"v_add_u32 v{vT0}, s{sMK}, v{vL16}")
    A(f"ds_write_b128 v{vT0}, {v(KST,4)}")
    A(f"ds_write_b128 v{vT0}, {v(KST+4,4)} offset:1024")
    def ldA(): A(f"buffer_load_dwordx4 {v(ma(0),4)}, v{vT16}, {s(rWS,4)}, s{sO1} offen sc1")
    def ldB(): A(f"buffer_load_dwordx4 {v(ma(4),4)}, v{vT16}, {s(rWS,4)}, s{sO1b} offen sc1")
    N1 = I("s_nop 1"); N0 = I("s_nop 0")
    if ea: ldA(); ldA()
    if ltrace: A("s_mov_b32 m0, 0")
    if shift is not None:
        A.raw(".p2align 6")
        for _ in range(shift): A("s_nop 0")
    for par in range(unroll):
        P = f"_{par}"
        LM = L_MEM; LK = L_KX
        st = stamp if par == 0 else (lambda n="": None)
        A.label("L_step" + P)
        if stamps == 1 and par == 0:
            stamp("top")
            A(f"s_cmp_ge_u32 s{sStep}, {nsteps-3}")
            A("s_cbranch_scc1 L_team_end")
        st("top2")
        if ltrace and par == 0: A("s_memtime s[52:53]")
        def kxw():
            A(f"v_add_u32 v{vT0}, s{sMK}, v{vL16}")
            A(f"ds_write_b128 v{vT0}, {v(KST,4)}")
            A(f"ds_write_b128 v{vT0}, {v(KST+4,4)} offset:1024")
        staged.clear()
        zz = [I(f"v_mov_b64 {v(r_,2)}, 0") for r_ in list(range(ACCA, ACCA+16, 2)) + list(range(ACCV, ACCV+8, 2))] + [lambda: set_neg()]
        def zs(n):
            for _ in range(n):
                if zz: zz.pop(0)()
        rst = [I(f"s_xor_b32 s{sTmp}, s{sO2}, {256<<10}"), I(f"s_add_u32 s{sTmp}, s{sTmp}, s{sRst2}"),
               I(f"buffer_store_dwordx4 {v(NEG,4)}, v{vT16}, {s(rWS,4)}, s{sTmp} offen")]
        rst2 = [I(f"s_add_u32 s{sTmp}, s{sTmp}, {128<<10}"),
               I(f"buffer_store_dwordx4 {v(NEG,4)}, v{vT16}, {s(rWS,4)}, s{sTmp} offen"),
               I(f"buffer_store_dword v{NEG}, v{PUB}, {s(rWS,4)}, s{sRst1} offen")]
        pubg = [I(f"buffer_store_dword v{vPD}, v{PUB}, {s(rWS,4)}, s{sMG} offen sc1"), I(f"s_add_u32 s{sMG}, s{sMG}, 8192")]
        nothing = lambda: None
        if rt4:
            rst = [nothing]*3; rst2[0] = rst2[1] = nothing; zz.pop()
        if hseq[0] == "K": kxw()
        zs(z0); delay(dA)
        for ch in hseq:
            if ch == "A": ldA()
            elif ch == "y": zs(2)
            elif ch == "B": ldB()
            elif ch == "z": zs(99)
            elif ch == "_": delay(gapB)
            elif ch == ".": delay(gapAB)
            elif ch == "R":
                zs(99)
                for f in rst: f()
                rst = [nothing]*3
            elif ch == "S":
                for f in rst2[:2]: f()
                rst2[0] = rst2[1] = nothing
            elif ch == "r":
                if not rt4: zs(99)
                rst2[2](); rst2[2] = nothing
        zs(99)
        ops = [ch for ch in hseq if ch in "ABRSr"]
        wA = len(ops) - 1 - ops.index("A"); wB = len(ops) - 1 - ops.index("B")
        assert wB < wA
        waited[0] = lg.n
        staged.clear(); staged.update({f: (r, 0) for f, (r, t) in pre_staged.items()})
        r, q = ma(0), ma(4)
        if ea:
            A(f"s_mov_b32 s{sK}, 1")
            A(f"s_waitcnt vmcnt({nfl+1})")
            A(f"s_branch L_pollA2{P}") if False else None
        else:
            A.label("L_pollA" + P)
            A(f"s_waitcnt vmcnt({wA})")
        A.label("L_pollA2" + P)
        A(f"v_max3_u32 v{vT0}, v{r}, v{r+1}, v{r+2}")
        A(f"v_max_u32 v{vT0}, v{vT0}, v{r+3}")
        if not one: A(f"v_cmp_eq_u32 vcc, -1, v{vT0}")
        tt = {}
        def rd(key, dst, addr, off): return lambda: tt.__setitem__(key, dsr(dst, addr, off))
        kx = lambda i, dst: rd(("kx", i), dst, vL16, LK + 1024*i)
        W = lambda key: (lambda: lwait(tt[key]))
        WS = lambda idx: (lambda: lwait(staged[LDSF[idx]][1]))
        twa = dsw(vT16, r, LM)
        st("ok")
        bchk = [I(f"s_waitcnt vmcnt({wB})"), I(f"v_max3_u32 v{vT0}, v{q}, v{q+1}, v{q+2}"), I(f"v_max_u32 v{vT0}, v{vT0}, v{q+3}"), I(f"v_cmp_eq_u32 vcc, -1, v{vT0}")]
        kvu = []
        if one:
            slots([SM("q",0,0), SM("q",1,0), SM("k",0,0), SM("k",1,0), SM("v",0,0), SM("v",1,0)],
                  [[bchk[0], I(f"v_max3_u32 v{vT0}, v{vT0}, v{q}, v{q+1}")], [I(f"v_max3_u32 v{vT0}, v{vT0}, v{q+2}, v{q+3}")],
                   [lambda: tt.__setitem__("wb", dsw(vT16, q, LM + 4096)), bchk[3]], [], [I(f"s_cbranch_vccnz L_retryA{P}")],
                   [W("wb"), I("s_barrier"), rd(1, ma(1), vM1, LM)]] if hv == 0 else
                  [[bchk[0], I(f"v_max3_u32 v{vT0}, v{vT0}, v{q}, v{q+1}"), I(f"v_max3_u32 v{vT0}, v{vT0}, v{q+2}, v{q+3}")],
                   [lambda: tt.__setitem__("wb", dsw(vT16, q, LM + 4096)), bchk[3]], [], [I(f"s_cbranch_vccnz L_retryA{P}")],
                   [W("wb"), I("s_barrier"), rd(1, ma(1), vM1, LM)] if hv == 2 else [], [] if hv == 2 else [W("wb"), I("s_barrier"), rd(1, ma(1), vM1, LM)]])
            A.label("L_okB" + P)
            slots([SM("q",0,4), SM("q",1,4), SM("k",0,4), SM("k",1,4), SM("v",0,4), SM("v",1,4)],
                  [[rd(2, ma(2), vM2, LM)], [rd(3, ma(3), vM3, LM)], [rd(5, ma(5), vM1, LM+4096)], [kx(4, STG)], [kx(5, STG+4)], [W(1)]])
            mid = [SM("q",0,1), SM("q",1,1), SM("k",0,1), SM("k",1,1), SM("q",0,2), SM("q",1,2), SM("k",0,2), SM("k",1,2)]
        elif not ea:
            slots([SM("q",0,0), SM("q",1,0), SM("k",0,0), SM("k",1,0)],
                  [[], [I(f"s_cbranch_vccnz L_retryA{P}")] + bchk[:2], bchk[2:3], [lambda: lwait(twa), I("s_barrier"), bchk[3]]])
            st("barM")
            rd(1, ma(1), vM1, LM)()
            SM("v",0,0)()
            A(f"s_cbranch_vccnz L_retryB{P}")
            A.label("L_okB" + P)
            st("okB")
            tw = dsw(vT16, q, LM + 4096)
            slots([SM("v",1,0), SM("q",0,4), SM("q",1,4), SM("k",0,4), SM("k",1,4), SM("v",0,4), SM("v",1,4)],
                  [[rd(2, ma(2), vM2, LM)], [rd(3, ma(3), vM3, LM)], [kx(4, STG)], [kx(5, STG+4)], [], [lambda: lwait(tw), I("s_barrier")], [rd(5, ma(5), vM1, LM+4096)]])
            mid = [SM("q",0,1), SM("q",1,1), SM("k",0,1), SM("k",1,1), SM("q",0,2), SM("q",1,2), SM("k",0,2), SM("k",1,2)]
        else:
            slots([SM("q",0,0), SM("q",1,0)], [[], [I(f"s_cbranch_vccnz L_retryA{P}"), lambda: lwait(twa), I("s_barrier")]])
            st("barM")
            rd(1, ma(1), vM1, LM)()
            pre = [SM("k",0,0), SM("k",1,0), SM("v",0,0), SM("v",1,0), SM("q",0,1), SM("q",1,1), SM("k",0,1), SM("k",1,1), SM("q",0,2), SM("q",1,2)][:eb+3]
            fl = [[rd(2, ma(2), vM2, LM)], [rd(3, ma(3), vM3, LM)], [kx(4, STG)], [W(1)], [kx(5, STG+4)], [], [], [W(2)], [], []][:eb+3]
            fl[eb-1] = fl[eb-1] + bchk[:2]; fl[eb] = fl[eb] + bchk[2:3]; fl[eb+1] = fl[eb+1] + bchk[3:]
            slots(pre, fl)
            A(f"s_cbranch_vccnz L_retryB{P}")
            A.label("L_okB" + P)
            st("okB")
            tw = dsw(vT16, q, LM + 4096)
            allm = [SM("q",0,1), SM("q",1,1), SM("k",0,1), SM("k",1,1), SM("q",0,2), SM("q",1,2), SM("k",0,2), SM("k",1,2)][max(0, eb-1):]
            own = [SM("q",0,4), SM("q",1,4), SM("k",0,4), SM("k",1,4), SM("v",0,4), SM("v",1,4)]
            slots(own[:4], [[], [], [], [lambda: lwait(tw), I("s_barrier"), rd(5, ma(5), vM1, LM+4096)]])
            slots(own[4:], [[], []])
            mid = allm
        st("barB")
        bk = [I(x) for x in (
            f"s_add_u32 s{sStep}, s{sStep}, 1", f"s_add_u32 s{sRd}, s{sO2}, s{sRd2}", f"s_and_b32 s{sB}, s{sStep}, 3",
            f"s_lshl_b32 s{sB+1}, s{sB}, 13", f"s_add_u32 s{sO1}, s{sB+1}, {H1}", f"s_add_u32 s{sO1b}, s{sO1}, 4096",
            f"s_add_u32 s{sB+2}, s{sB+1}, s{sPubO}", f"s_xor_b32 s{sRst1}, s{sB+1}, {2<<13}", f"s_add_u32 s{sRst1}, s{sRst1}, s{sPubO}")]
        m0k = lambda: None
        dk = lambda j: I(f"buffer_load_dwordx4 {v(KST+4*j,4)}, v{vL16}, {s(rWS,4)}, s{sKV} offen offset:{1024*j} sc1")
        VX0, VX1 = ma(0), ma(4)
        lv = [I(f"buffer_load_dwordx4 {v(VX0,4)}, v{vT16}, {s(rWS,4)}, s{sMV+1} offen sc1"), I(f"s_add_u32 s{sTmp2}, s{sMV+1}, 4096"),
              I(f"buffer_load_dwordx4 {v(VX1,4)}, v{vT16}, {s(rWS,4)}, s{sTmp2} offen sc1"), I(f"s_add_u32 s{sMV+1}, s{sMV+1}, {32*16384}")]
        if "dma" in off: dk = lambda j: N0
        def kvbr():
            if kvchk:
                A(f"s_cmp_gt_u32 s{sRdy}, s{sStep}")
                A(f"s_cbranch_scc0 L_kvw{P}")
                A.label("L_kvok" + P)
        kfa = [I(f"v_cmp_eq_u32 vcc, 32, v{VMR}")] if (kvchk and kfasync) else []
        kfb = [I(f"s_and_b32 s{sTmp}, vcc_lo, s{sK}"), I(f"s_ff0_i32_b32 s{sTmp}, s{sTmp}"), I(f"s_add_u32 s{sRdy}, s{sRdy}, s{sTmp}")] if (kvchk and kfasync) else []
        kfc = [I(f"s_add_u32 s{sTmp}, s{sStep}, {kfd}"), I(f"s_min_u32 s{sTmp}, s{sTmp}, 63"),
               I(f"s_cmp_gt_u32 s{sRdy}, s{sTmp}"), I(f"s_cselect_b32 s{sK}, 0, 0xffff")] if (kvchk and kfasync) else []
        def kfissue():
            if not (kvchk and kfasync): return
            A(f"s_cmp_lg_u32 s{sK}, 0")
            A(f"s_cbranch_scc1 L_kfgo{P}")
            A.label(f"L_nokf{P}")
        dmaseq = {ks: [m0k, kvbr], ks+1: [dk(0)], ks+3: [dk(1), I(f"s_add_u32 s{sKV}, s{sKV}, {32*16384}")]}
        if vpf:
            dmaseq = {ks: [kvbr, I(f"v_lshlrev_b32 v{VMR+2}, 3, v{vL16}")],
                      ks+1: [I(f"s_add_u32 s{sTmp2}, s{sKV}, 8192"), I("s_mov_b64 exec, 0xffff"),
                             I(f"buffer_load_dword v{KST}, v{VMR+2}, {s(rWS,4)}, s{sTmp2} offen sc1"), I("s_mov_b64 exec, -1")],
                      ks+2: [dk(0)], ks+4: [dk(1), I(f"s_add_u32 s{sKV}, s{sKV}, {32*16384}")]}
        slotno = [0]
        def slots2(ms, fill):
            fill = [list(f) for f in fill][:max(len(ms), max([i+1 for i, f in enumerate(fill) if f] + [0]))] + [[] for _ in range(len(ms) - len(fill))]
            for i in range(len(ms)):
                fill[i] = dmaseq.pop(slotno[0], []) + fill[i]; slotno[0] += 1
            slots(ms, fill)
        mm = mid + [SM("q",1,3), SM("k",0,3), SM("q",0,3), SM("k",1,3), SM("q",0,5), SM("q",1,5), SM("q",0,6), SM("q",1,6), SM("q",0,7), SM("q",1,7)]
        ff = [[rd(6, ma(6), vM2, LM+4096)] + lv[:2], [rd(7, ma(7), vM3, LM+4096), bk[0]], lv[2:], [W(3)] + rst[:2], [kx(6, STG+8)], [kx(7, STG+12)] + rst[2:], bk[1:3], [kx(0, FR)],
               [kx(1, FR+4)], rst2[:2] + kfa, bk[3:6], [W(7), kx(2, FR+8)], rst2[2:] + kfb, [kx(3, FR+12)], pubg, bk[6:9], kfc[:2] + ([I(f"v_mov_b32 v{vPD}, s{sStep}")] if fq else []), kfc[2:]]
        if ea:
            nm_ = len(mm)
            ff = [[rd(6, ma(6), vM2, LM+4096)] + lv[:2], [rd(7, ma(7), vM3, LM+4096), bk[0]] , [kx(6, STG+8)] + lv[2:], [kx(7, STG+12)] + rst[:2], [kx(0, FR)] + rst[2:], [kx(1, FR+4)] + bk[1:3],
                  [kx(2, FR+8)] + bk[3:5], [kx(3, FR+12)] + rst2[:2], [bk[5]], rst2[2:], pubg, bk[6:9], [kfissue]]
            extra = ff[nm_:]; ff = ff[:nm_] + [[] for _ in range(nm_ - len(ff))]
            for x_ in extra: ff[-1] = ff[-1] + x_
            ff[nm_-7] = [W(7)] + ff[nm_-7]
            slotno[0] = 18 - nm_
        slots2(mm, ff)
        st("qdone")
        if trace and par == 0:
            A(f"""
            s_memrealtime s[52:53]
            s_memtime s[54:55]
            s_lshl_b32 s56, s{sStep}, 2
            s_waitcnt lgkmcnt(0)
            v_writelane_b32 v{vT0}, s52, 0
            v_writelane_b32 v{vT0}, s54, 1
            s_lshl_b32 s57, s{sH}, 10
            s_add_u32 s56, s56, s57
            s_add_u32 s56, s56, {RES + 65536 - 4}
            v_lshrrev_b32 v{QB}, 2, v{vL16}
            s_mov_b64 exec, 3
            buffer_store_dword v{vT0}, v{QB}, {s(rWS,4)}, s56 offen
            s_mov_b64 exec, -1
            """)
        def epi_ops(acc):
            return [I(f"v_add_f32 v{acc}, v{acc}, v{acc+2}"), I(f"v_add_f32 v{acc+1}, v{acc+1}, v{acc+3}"),
                    I(f"v_add_f32 v{acc+4}, v{acc+4}, v{acc+6}"), I(f"v_add_f32 v{acc+5}, v{acc+5}, v{acc+7}"),
                    I(f"v_cvt_pk_bf16_f32 v{acc}, v{acc}, v{acc+4}"), I(f"v_cvt_pk_bf16_f32 v{acc+1}, v{acc+1}, v{acc+5}")]
        e = epi_ops(ACCA); ek = epi_ops(ACCB)
        fl_w = [I("s_mov_b64 exec, 0xffff"), lambda: dsw(vQW, vPD, L_F - L_Q, 1), I("s_mov_b64 exec, -1")]
        def w2(acc, o):
            A(f"ds_write2_b32 v{vQW}, v{acc}, v{acc+1} offset0:{o} offset1:{o + RS//4}"); tt["wk"] = lg.issue()
        slots2([SM("k",0,5), SM("k",0,6), SM("k",0,7), SM("k",1,5), SM("k",1,6), SM("k",1,7),
               SM("v",0,1), SM("v",1,1), SM("v",0,2), SM("v",1,2), SM("v",0,3), SM("v",1,3)][:6+min(vpre,6)] + [SM("v",0,5), SM("v",1,5)][:max(0,vpre-6)],
              {0: [[e[0]], [e[1]], [e[2]], [e[3]], [e[4]], [e[5]],
                   [lambda: w2(ACCA, 0), ek[0], ek[1]], [ek[2], ek[3]], [ek[4], ek[5], lambda: w2(ACCB, 64)]] + ([fl_w, [I(f"v_lshrrev_b32 v{vT0}, 2, v{vL16}")], []] if fq else [[], [], []]),
               1: [[e[0]], [e[1]], [e[2]], [e[3]], [e[4]], [e[5]],
                   [lambda: w2(ACCA, 0), ek[0], ek[1]], [ek[2], ek[3], ek[4], ek[5], lambda: w2(ACCB, 64)], [], [], [], []],
               2: [[e[0]], [e[1]], [e[2]], [e[3]], [e[4], ek[0]], [e[5], ek[1]],
                   [lambda: w2(ACCA, 0), N1, N0, ek[2], ek[3], ek[4], ek[5], lambda: w2(ACCB, 64)], [], [], [], [], []]}[kep])
        if fq:
            tt["fl"] = dsr(VMR, vT0, L_F, 1)
        else:
            lwait(tt["wk"]); A("s_barrier"); st("barQK")
        if ltrace and par == 0:
            A("v_writelane_b32 v247, s52, m0") if False else None
            A("s_movreld_b32 s54, s52")
            A("s_add_u32 m0, m0, 1")
            A("s_cmp_eq_u32 m0, 8")
            A("s_cselect_b32 m0, 14, m0")
        qr = lambda k: rd(("q", k), QB+4*k, vQR, L_Q + 64*k)
        KMR = ACCA
        kr = lambda k: rd(("km", k), KMR+4*k, vQR, L_K + 64*k)
        VXR = FR; OO = QB; LL = QB + 8; ONES = NEG
        ones = [I(f"v_mov_b32 v{ONES+i}, 0x3f803f80") for i in range(4)]
        nvm = 3 + (1 if vpf else 0) + (1 if trace and par == 0 else 0) - 2*("dma" in off)
        assert ks >= 15
        qr(0)()
        post = [SM("v",0,3), SM("v",1,3)][2-max(0,6-vpre):] + [SM("v",0,5), SM("v",1,5), SM("v",0,6), SM("v",1,6), SM("v",0,7), SM("v",1,7)][max(0,vpre-6):]
        pf_ = [[qr(1), ones[0]], [qr(2), ones[1]], [qr(3), ones[2]], [kr(0), ones[3]], [kr(1)], [kr(2)]]
        while len(pf_) > len(post):
            x_ = pf_.pop(); pf_[-1] = x_ + pf_[-1]
        pf_ += [[] for _ in range(len(post) - len(pf_))]
        pf_[-1] = pf_[-1] + [W(("q",1))]
        if fq:
            pf_[2] = [qr(3), W("fl"), I(f"v_cmp_ne_u32 vcc, s{sStep}, v{VMR}")]
            pf_[3] = [kr(0), ones[2], ones[3]]
            pf_[-1] = pf_[-1] + [I(f"s_cbranch_vccnz L_fq{P}"), lambda: A.label("L_fqok" + P)]
        slots2(post, pf_)
        st("vdone")
        Sx = lambda t, k: (lambda: (lwait(tt[("q", k)]), mf(S+4*t, (FR if t == 0 else STG) + 4*k, QB+4*k, k == 0)))
        Sm = lambda k: (lambda: (lwait(tt[("km", k)]), mf(S+8, KMR+4*k, QB+4*k, k == 0)))
        ve = []
        for t in range(2):
            ve += [I(f"v_add_f32 v{va(t)}, v{va(t)}, v{va(t)+2}"), I(f"v_add_f32 v{va(t)+1}, v{va(t)+1}, v{va(t)+3}"),
                   I(f"v_cvt_pk_bf16_f32 v{VMR+2*t}, v{va(t)}, v{va(t)+1}")]
        zw = [I(f"v_mov_b64 {v(WA+i,2)}, 0") for i in range(0, 32, 2)]
        slots2([Sx(0,0), Sx(1,0), Sx(0,1), Sx(1,1), Sx(0,2), Sx(1,2), Sx(0,3), Sx(1,3), Sm(0), Sm(1), Sm(2), Sm(3)],
              [[kr(3)] + ([zw[15]] if m4 else []), [ve[0], ve[1]], [ve[2], ve[3]], [W(("q",3)), ve[4]],
               [G(11, FR, 0), ve[5]], [G(11, FR, 1)] + ([zw[13]] if m4 else []),
               [G(6, STG, 0)] + ([zw[14]] if m4 else []), [W(("km",3)), G(6, STG, 1)], [G(7, FR+8, 0), I(f"v_max3_f32 v{vT0}, v{S}, v{S+1}, v{S+2}")],
               [I(f"v_max3_f32 v{vT0}, v{vT0}, v{S+3}, v{S+4}"), I(f"v_max3_f32 v{vT0}, v{vT0}, v{S+5}, v{S+6}")],
               [G(7, FR+8, 1), I(f"v_max_f32 v{vT0}, v{vT0}, v{S+7}")] + ([I(f"v_mov_b32 v{vPD}, v{vT0}")] if m4 else []),
               [G(9, ACCV, 0), I(f"v_permlane32_swap_b32 v{vT0}, v{vPD}"), I(f"v_max_f32 v{vT0}, v{vT0}, v{vPD}"), G(9, ACCV, 1), zw[10], zw[11], G(8, STG+8, 0)] if m4 else
               [G(9, ACCV, 0), zw[10], zw[11], G(9, ACCV, 1), zw[12], zw[13], zw[14]]])
        assert not dmaseq
        st("Smm")
        if m4:
            A(f"v_max3_f32 v{vT0}, v{vT0}, v{S+8}, v{S+9}")
            A(f"v_max3_f32 v{vT0}, v{vT0}, v{S+10}, v{S+11}")
            A(f"v_mov_b32 v{S+10}, v{vT0}")
            G(8, STG+8, 1)(); zw[12]()
        else:
            A(f"v_max3_f32 v{vT0}, v{vT0}, v{S+8}, v{S+9}")
            A(f"v_mov_b32 v{S+10}, v{vT0}")
            G(8, STG+8, 0)(); zw[15]()
            A(f"v_permlane32_swap_b32 v{vT0}, v{S+10}")
            A(f"v_max_f32 v{vT0}, v{vT0}, v{S+10}")
            A(f"v_mov_b32 v{S+10}, v{vT0}")
            G(8, STG+8, 1)()
        A(f"v_permlane16_swap_b32 v{vT0}, v{S+10}")
        A(f"v_max_f32 v{vT0}, v{vT0}, v{S+10}")
        A(f"v_mul_f32 v{S+10}, s{sC}, v{vT0}")
        for i in (8, 0, 2, 4, 6):
            A(f"v_pk_fma_f32 {v(S+i,2)}, {v(S+i,2)}, s[{sC}:{sC+1}], {v(S+10,2)} op_sel_hi:[1,0,0] neg_lo:[0,0,1] neg_hi:[0,0,1]")
        ex = lambda i: I(f"v_exp_f32 v{S+i}, v{S+i}")
        cv = lambda i: I(f"v_cvt_pk_bf16_f32 v{S+i}, v{S+2*i}, v{S+2*i+1}")
        ex(8)(); ex(9)(); ex(0)()
        A(f"v_cvt_pk_bf16_f32 v{S+8}, v{S+8}, v{S+9}"); A(f"v_mov_b32 v{S+9}, 0")
        ex(1)(); ex(2)()
        slots([lambda: mf(LL, ONES, S+8, True, True), lambda: mf(OO, VMR, S+8, True, True), lambda: mf(OO+4, VMR+2, S+8, True, True)],
              [([G(10, ACCB, 0)] if g10 == 1 else []) + [ex(3), cv(0)], ([G(10, ACCB, 1)] if g10 == 1 else []) + [ex(4), ex(5)], [ex(6), ex(7), cv(1), cv(2), cv(3)]])
        st("exp")
        if g10 == 0: G(10, ACCB, 0)()
        A(f"s_waitcnt vmcnt({nvm})")
        slots([lambda: mf(LL, ONES, S, False), lambda: mf(OO, VX0, S, False), lambda: mf(OO+4, VX1, S, False)],
              [([G(10, ACCB, 1)] if g10 == 0 else []) + [zw[4]], [zw[5], zw[6]], [zw[7]]])
        st("PV")
        A(f"v_rcp_f32 v{vT0}, v{LL}")
        zw[0]()
        if ob64:
            for b_ in (0, 4):
                for i in range(2): A(f"v_cndmask_b32 v{OO+b_+i}, v{OO+b_+i}, v{OO+b_+2+i}, s[{sCm}:{sCm+1}]")
                if b_ == 0:
                    for i in range(2): A(f"v_mul_f32 v{OO+i}, v{OO+i}, v{vT0}")
            A(f"v_pk_mul_f32 {v(OO+4,2)}, {v(OO+4,2)}, {v(vT0,2)} op_sel_hi:[1,0]")
            for i in range(2): A(f"v_cvt_pk_bf16_f32 v{OO+i}, v{OO+i}, v{OO+4+i}")
            tw = dsw(vOW, OO, L_O, 2)
        else:
            for i in range(4): A(f"v_mul_f32 v{OO+i}, v{OO+i}, v{vT0}")
            A(f"v_pk_mul_f32 {v(OO+4,2)}, {v(OO+4,2)}, {v(vT0,2)} op_sel_hi:[1,0]")
            A(f"v_pk_mul_f32 {v(OO+6,2)}, {v(OO+6,2)}, {v(vT0,2)} op_sel_hi:[1,0]")
            for i in range(4): A(f"v_cvt_pk_bf16_f32 v{OO+i}, v{OO+i}, v{OO+4+i}")
            tw = dsw(vOW, OO, L_O)
        st("owr")
        for f in (zw[1], zw[2], zw[3], zw[8], zw[9])[:nzo]: f()
        FR_ = [NEG, NEG+1, NEG+2, NEG+3, vT0][:len(fsl)]
        if fsl:
            A(f"v_mov_b32 v{VMR}, s{sStep}")
            A(f"v_bfe_u32 v{VMR+2}, v{vL16}, 2, 5")
            A(f"v_lshlrev_b32 v{vT0}, 4, v{vL16}")
            A(f"s_mul_i32 s{sK+1}, s{sStep}, 0x01010101")
        lwait(tw); A("s_barrier"); st("barO")
        OA = ACCA
        to0 = dsr(OA, vOR, L_O)
        to = dsr(OA+4, vOR, L_O + 128)
        for f in (zw[1], zw[2], zw[3], zw[8], zw[9])[nzo:]: f()
        kfissue()
        if fsl:
            A("s_mov_b64 exec, 0x3ff")
            A(f"buffer_store_byte v{VMR}, v{vT0}, {s(rWS,4)}, s{sFlS} offen")
            A("s_mov_b64 exec, -1")
        dmaseq.update({slotno[0] + sl: [I(f"buffer_load_dword v{FR_[i]}, v{VMR+2}, {s(rWS,4)}, s{sFl} offen offset:{256*i} sc1")] for i, sl in enumerate(fsl)})
        ad = lambda t: [I(f"v_add_f32 v{wa(t)}, v{wa(t)}, v{wa(t)+2}"), I(f"v_add_f32 v{wa(t)+1}, v{wa(t)+1}, v{wa(t)+3}")]
        cvp = lambda dst, t: [I(f"v_cvt_pk_bf16_f32 v{dst}, v{wa(t)}, v{wa(t+1)}"), I(f"v_cvt_pk_bf16_f32 v{dst+2}, v{wa(t)+1}, v{wa(t+1)+1}")]
        sto = lambda x, dst: [I(f"buffer_store_dwordx4 {v(dst,4)}, v{vSt2}, {s(rWS,4)}, s{sO2b if x else sO2} offen")]
        SO = lambda t, k: (lambda: sm("o", t, k, wa(t), OA+4*k))
        DA, DB = QB, QB + 4
        lwait(to0)
        st("ord")
        slots2([SO(t, k) for t in range(8) for k in range(2)],
              [[lambda: lwait(to), G(12, QB+8, 0)], [G(12, QB+8, 1)], [G(13, STG, 0)], [G(13, STG, 1), ad(0)[0]], [G(14, FR+8, 0), ad(0)[1]],
               [G(14, FR+8, 1), ad(1)[0]], [G(15, STG+8, 0), ad(1)[1]], [G(15, STG+8, 1), cvp(DA, 0)[0], cvp(DA, 0)[1]],
               [G(16, ACCV, 0)] + ad(2), [WS(13), G(16, ACCV, 1)] + ad(3), cvp(DA+1, 2), sto(0, DA) + [lambda: st("stA"), ad(4)[0]], [WS(15), ad(4)[1]],
               [WS(16)] + ad(5)[:1], ad(5)[1:], cvp(DB, 4) + ad(6)] if g10 != 2 else
              [[lambda: lwait(to), G(10, ACCB, 0)], [G(10, ACCB, 1)], [G(12, QB+8, 0)], [G(12, QB+8, 1), ad(0)[0]], [G(13, STG, 0), ad(0)[1]],
               [WS(10), G(13, STG, 1), ad(1)[0]], [G(14, FR+8, 0), ad(1)[1]], [G(14, FR+8, 1), cvp(DA, 0)[0], cvp(DA, 0)[1]],
               [G(16, ACCV, 0)] + ad(2), [WS(13), G(16, ACCV, 1)] + ad(3), [G(15, STG+8, 0)] + cvp(DA+1, 2), sto(0, DA) + [G(15, STG+8, 1), lambda: st("stA"), ad(4)[0]], [WS(14), ad(4)[1]],
               [WS(16)] + ad(5)[:1], [WS(15)] + ad(5)[1:], cvp(DB, 4) + ad(6)])
        for f in ad(7) + cvp(DB+1, 6) + sto(1, DB): f()
        st("stB")
        assert not staged, staged
        if bar1: A("s_barrier")
        st("bar1")
        dsr(SEL, vL16, L_ST)
        if rt4:
            A(f"s_add_u32 s{sO2}, s{sO2}, {256<<10}")
            A(f"s_and_b32 s{sO2}, s{sO2}, {768<<10}")
            A(f"s_add_u32 s{sO2b}, s{sO2}, {128<<10}")
            set_neg()
        else:
            A(f"s_xor_b32 s{sO2}, s{sO2}, {256<<10}")
            A(f"s_xor_b32 s{sO2b}, s{sO2b}, {256<<10}")
        def red_block(role, nr):
            T_ = f"{role}{P}"
            ne = 0
            if rt4:
                A(f"s_xor_b32 s{sTmp}, s{sO2}, {512<<10}")
                A(f"s_add_u32 s{sTmp}, s{sTmp}, s{sRst2}")
                A(f"buffer_store_dwordx4 {v(NEG,4)}, v{vT16}, {s(rWS,4)}, s{sTmp} offen")
                A(f"s_add_u32 s{sTmp}, s{sTmp}, {128<<10}")
                A(f"buffer_store_dwordx4 {v(NEG,4)}, v{vT16}, {s(rWS,4)}, s{sTmp} offen")
                ne = 2
            if kxe or "K" in hseq:
                A("s_waitcnt lgkmcnt(0)")
            else:
                A(f"s_waitcnt vmcnt({2*nr+2+ne})")
                kxw()
                A("s_waitcnt lgkmcnt(2)")
            A.label("L_pipe2" + T_)
            if rsm:
                A(f"v_mov_b64 {v(DD,2)}, 0")
            for u in range(2):
                r = R2 + 4*u
                A(f"s_waitcnt vmcnt({2*nr-1-u+ne})")
                A(f"v_max3_u32 v{vT0}, v{r}, v{r+1}, {'v%d' % vT0 if u else 0}")
                A(f"v_max3_u32 v{vT0}, v{r+2}, v{r+3}, v{vT0}")
                if not rsm: mf(DD, SEL, r, u == 0)
            if rsm:
                A(f"v_smfmac_f32_16x16x64_bf16 {v(DD,4)}, {v(SEL,4)}, {v(R2,8)}, v{vIdx} abid:1")
            A(f"v_cmp_eq_u32 vcc, -1, v{vT0}")
            A("s_nop 5")
            A(f"s_cbranch_vccnz L_retryp{T_}")
            if ea and role == 1: ldA()
            for rot in (4, 8):
                A(f"v_add_f32_dpp v{DD}, v{DD}, v{DD} row_ror:{rot} row_mask:0xf bank_mask:0xf")
                A(f"v_add_f32_dpp v{DD+1}, v{DD+1}, v{DD+1} row_ror:{rot} row_mask:0xf bank_mask:0xf")
            A(f"v_cvt_pk_bf16_f32 v{vPD}, v{DD}, v{DD+1}")
            A(f"v_min_u32 v{vPD}, 0xfffffffe, v{vPD}")
            A(f"buffer_store_dword v{vPD}, v{PUB}, {s(rWS,4)}, s{sB+2} offen")
        def feval():
            if not fsl: return
            A("s_waitcnt vmcnt(2)")
            for i, r_ in enumerate(FR_): A(f"v_cmp_ne_u32 s[{sCm+2*i}:{sCm+2*i+1}], s{sK+1}, v{r_}")
            A(f"s_mov_b32 s{sK}, 0")
            for i in range(len(FR_)):
                A(f"s_cmp_lg_u64 s[{sCm+2*i}:{sCm+2*i+1}], 0")
                A(f"s_addc_u32 s{sK}, s{sK}, 0")
            if stamps: A(f"s_add_u32 s{sRetA}, s{sRetA}, s{sK}")
        def fdelay(tag):
            if not fsl: return
            A(f"""
            L_fd{tag}{P}:
            s_sub_u32 s{sK}, s{sK}, 1
            s_cbranch_scc1 L_fe{tag}{P}
            s_nop {fnop}
            s_branch L_fd{tag}{P}
            L_fe{tag}{P}:
            """)
        if kxe:
            A(f"v_add_u32 v{vT0}, s{sMK}, v{vL16}")
            A("s_waitcnt vmcnt(2)")
            A(f"ds_write_b128 v{vT0}, {v(KST,4)}")
        chores(0, 1)
        if kxe: A(f"ds_write_b128 v{vT0}, {v(KST+4,4)} offset:1024")
        A(f"s_bitcmp1_b32 s{sW}, 0")
        A(f"s_cbranch_scc1 L_tailB{P}")
        chores(1, cs[0][0]); delay(dR[0]); ld2(); st("ld2")
        chores(cs[0][0], ctl)
        if na > 1: delay(dR[1]); ld2()
        red_block(0, na)
        if ea:
            delay(dE); ldA(); delay(dE2); ldA()
        A(f"s_branch L_tailj{P}")
        A.label(f"L_tailB{P}")
        if par == 0 and stamps == 1:
            nst[0] -= 1; names.pop()
        chores(1, cs[1][0]); delay(dR[2]); ld2(); st("ld2")
        chores(cs[1][0], ctl)
        if n2 > 1: delay(dR[3]); ld2()
        if n2 > 2: delay(dR[3]); ld2()
        red_block(1, n2)
        A.label(f"L_tailj{P}")
        st("red")
        if unroll == 1: A(f"s_cmp_eq_u32 s{sStep}, {nsteps-1}")
        if bar2: A("s_barrier")
        if unroll == 1:
            A("s_cbranch_scc0 L_step_0")
            A("s_branch L_last")
        else:
            if par == (nsteps & 1):
                A(f"s_cmp_eq_u32 s{sStep}, {nsteps-1}")
                A("s_cbranch_scc1 L_last")
            if par == 1: A("s_branch L_step_0")
        staged.clear()
    def retry(lab, cnt, body, back):
        A.label(lab)
        A("s_mov_b64 exec, vcc")
        body()
        A("s_mov_b64 exec, -1")
        A(f"s_add_u32 s{cnt}, s{cnt}, 1")
        A(f"s_add_u32 s{sG}, s{sG}, 1")
        A(f"s_cmp_gt_u32 s{sG}, {SPIN}")
        A(f"s_cbranch_scc1 L_team_end")
        if back: A(f"s_branch {back}")
    nh = [0]
    def hop():
        if not whop: return
        A.label(f"L_wh{nh[0]}"); nh[0] += 1
        A(f"s_branch L_wh{nh[0]}")
    hop()
    for par in range(unroll):
        P = f"_{par}"
        if bonly:
            retry("L_retryA" + P, sRetA, ldA, None)
            A("s_nop 3")
            for i in range(0, 8, 2): A(f"v_mov_b64 {v(ACCA+i,2)}, 0")
            A("s_waitcnt vmcnt(0)")
            A(f"s_branch L_pollA2{P}")
            retry("L_retryB" + P, sRetB, ldB, None)
            A(f"s_waitcnt vmcnt({nsets-1})")
        else:
            if ea:
                A.label("L_retryA" + P)
                A(f"s_cmp_eq_u32 s{sK}, 1")
                A(f"s_mov_b32 s{sK}, 0")
                A(f"s_cbranch_scc1 L_rA2{P}")
            retry(("L_retryAx" if ea else "L_retryA") + P, sRetA, ld1, None)
            A.label("L_rA2" + P)
            A("s_nop 6")
            for i in range(0, 16 if one else 8, 2): A(f"v_mov_b64 {v(ACCA+i,2)}, 0")
            if one and hv == 0:
                for i in range(0, 4, 2): A(f"v_mov_b64 {v(ACCV+i,2)}, 0")
            A(f"s_waitcnt vmcnt({wA})")
            A(f"s_branch L_pollA2{P}")
            hop()
            if not one:
                retry("L_retryB" + P, sRetB, ld1, None)
                A(f"s_waitcnt vmcnt({wB})")
        if not one:
            chk(ma(4), "L_retryB" + P)
            A(f"s_branch L_okB{P}")
        retry("L_retryp0" + P, sRet2, ld2, "L_pipe20" + P); hop()
        retry("L_retryp1" + P, sRet2, ld2, "L_pipe21" + P); hop()
        if fq:
            A.label("L_fq" + P)
            A(f"ds_read_b32 v{VMR}, v{vT0} offset:{L_F}")
            for k in range(4): A(f"ds_read_b128 {v(POOL+4*k,4)}, v{vQR} offset:{L_Q + 64*k}")
            for k in range(3): A(f"ds_read_b128 {v(ACCA+4*k,4)}, v{vQR} offset:{L_K + 64*k}")
            A("s_waitcnt lgkmcnt(0)")
            A(f"v_cmp_ne_u32 vcc, s{sStep}, v{VMR}")
            A(f"s_add_u32 s{sRetB}, s{sRetB}, 1")
            A(f"s_add_u32 s{sG}, s{sG}, 1")
            A(f"s_cmp_gt_u32 s{sG}, {SPIN}")
            A(f"s_cbranch_scc1 L_team_end")
            A(f"s_cbranch_vccnz L_fq{P}")
            A(f"s_branch L_fqok{P}")
        if kvchk and kfasync:
            A(f"""
            L_kfgo{P}:
            s_min_u32 s{sRdy}, s{sRdy}, 64
            s_lshl_b32 s{sTmp}, s{sRdy}, 8
            v_lshlrev_b32 v{VMR+2}, 4, v{vL16}
            s_add_u32 s{sTmp}, s{sTmp}, {CNT + C_KV}
            s_mov_b64 exec, 0xffff
            buffer_load_dword v{VMR}, v{VMR+2}, {s(rWS,4)}, s{sTmp} offen sc1
            s_mov_b64 exec, -1
            s_branch L_nokf{P}
            """)
            hop()
        if kvchk:
            kv_wait(P, vT0, VMR, f"s{sStep}")
            A(f"s_branch L_kvok{P}")
            hop()
    if whop:
        A.label(f"L_wh{nh[0]}")
        A("s_branch L_wh_ret")
    A.label("L_last")
    A(f"buffer_store_dword v{vPD}, v{PUB}, {s(rWS,4)}, s{sMG} offen sc1")
    A("s_waitcnt vmcnt(0) lgkmcnt(0)")
    A.label("L_team_end")
    if stamps:
        if stamps == 2:
            A("s_memrealtime s[98:99]")
            if not ltrace:
                A("s_memtime s[72:73]"); A("s_waitcnt lgkmcnt(0)")
                A("s_sub_u32 s72, s72, s76")
            vals = [72, sStep, sRetA, sRetB, sRet2, 76, 76, 76] + [90, 92, 94, 96, 98, 98, 98, 98]
            if ltrace: vals = list(range(54, 62)) + list(range(68, 92))
        else:
            A("s_waitcnt lgkmcnt(0)")
            for c, (ra, rb) in enumerate(((44, 45), (46, 47))):
                A(f"""
                s_memrealtime s[16:17]
                s_waitcnt lgkmcnt(0)
                s_add_u32 s16, s16, {200 if c else 8}
                L_cal{c}:
                s_memrealtime s[18:19]
                s_memtime s[98:99]
                s_waitcnt lgkmcnt(0)
                s_cmp_lt_u32 s18, s16
                s_cbranch_scc1 L_cal{c}
                s_mov_b32 s{ra}, s18
                s_mov_b32 s{rb}, s98
                """)
            vals = [44, sStep, sRetA, sRetB, sRet2, 45, 46, 47] + list(range(52, 100, 2))
        A(f"s_lshl_b32 s{sTmp}, s{sH}, 2")
        A(f"s_add_u32 s{sTmp}, s{sTmp}, s{sW}")
        A(f"s_lshl_b32 s{sTmp}, s{sTmp}, 7")
        A(f"s_add_u32 s{sTmp}, s{sTmp}, {RES}")
        A("s_waitcnt vmcnt(0)")
        for i, r in enumerate(vals): A(f"v_mov_b32 v{16+i}, s{r}")
        A("v_mov_b32 v0, 0")
        A("s_mov_b64 exec, 1")
        for i in range(len(vals)//4): A(f"buffer_store_dwordx4 {v(16+4*i,4)}, v0, {s(rWS,4)}, s{sTmp} offen offset:{16*i}")
        if stamps == 2 and trace:
            A(f"""
            s_cmp_lg_u32 s{sH}, 0
            s_cbranch_scc1 L_nodbg
            s_cmp_lg_u32 s{sW}, 0
            s_cbranch_scc1 L_nodbg
            buffer_store_dword v24, v0, {s(rDBG,4)}, 0 offen offset:8 sc1
            buffer_store_dword v28, v0, {s(rDBG,4)}, 0 offen offset:12 sc1
            buffer_store_dword v20, v0, {s(rDBG,4)}, 0 offen offset:60 sc1
            buffer_store_dword v19, v0, {s(rDBG,4)}, 0 offen offset:56 sc1
            s_mov_b64 exec, 0xff
            v_lshlrev_b32 v40, 1, v{vL16}
            s_mov_b32 s{sTmp}, {RES + 65536}
            buffer_load_dword v41, v40, {s(rWS,4)}, s{sTmp} offen sc1
            v_lshrrev_b32 v40, 2, v{vL16}
            v_and_b32 v42, 16, v40
            v_lshrrev_b32 v42, 1, v42
            v_add_u32 v40, v40, v42
            s_waitcnt vmcnt(0)
            buffer_store_dword v41, v40, {s(rDBG,4)}, 0 offen offset:16 sc1
            L_nodbg:
            """)
    A("s_waitcnt vmcnt(0)")

def entry(A, diag):
    A(f"""
    {"s_memrealtime s[68:69]" if diag else ""}
    s_load_dwordx4 s[4:7], s[0:1], 104
    s_load_dwordx4 s[76:79], s[0:1], 0
    s_load_dwordx8 s[80:87], s[0:1], 16
    s_load_dwordx8 s[88:95], s[0:1], 64
    s_load_dwordx2 s[70:71], s[0:1], 96
    s_getreg_b32 s{sX}, hwreg(HW_REG_XCC_ID)
    s_and_b32 s{sX}, s{sX}, 7
    v_lshrrev_b32 v1, 6, v0
    v_readfirstlane_b32 s{sW}, v1
    s_waitcnt lgkmcnt(0)
    {"s_mov_b32 s3, s68" if diag else ""}
    """)

def gen_standalone(**kw):
    A = Asm()
    A.raw(f"; @launch grid=(256,1,1) block=(256,1,1) lds=163840")
    A.raw('.amdgcn_target "amdgcn-amd-amdhsa--gfx950"')
    A.raw(".text")
    kernel_begin(A, NAME + "_kernel")
    A(f"""
    s_cmp_ge_u32 s2, 256
    s_cbranch_scc1 L_end
    """)
    entry(A, True)
    srd(A, rWS, 6, WS_BYTES)
    srd(A, rDBG, 4, 256)
    spf = kw.pop("spf", 0)
    kw["iwarm"] = -1
    role_select(A, "L_pfw" if spf else "L_end")
    team(A, **kw)
    A.label("L_end")
    A("s_endpgm")
    if spf:
        A.label("L_pfw")
        A(f"""
        s_lshr_b32 s{sTmp}, s2, 6
        s_lshl_b32 s{sTmp}, s{sTmp}, 3
        s_add_u32 s{sTmp}, s{sTmp}, 16
        s_load_dwordx2 s[80:81], s[0:1], s{sTmp}
        s_and_b32 s{sTmp}, s2, 62
        s_lshl_b32 s{sTmp}, s{sTmp}, 16
        v_lshlrev_b32 v3, 4, v0
        s_waitcnt lgkmcnt(0)
        """)
        srd(A, rW, 80, 4 << 20)
        for i in range(32):
            A(f"buffer_load_dwordx4 v[{128+4*(i&7)}:{131+4*(i&7)}], v3, {s(rW,4)}, s{sTmp} offen")
            A(f"s_add_u32 s{sTmp}, s{sTmp}, 4096")
        A("s_waitcnt vmcnt(0)")
        A("s_endpgm")
    A.raw('.section .rodata,"a"')
    A.raw(descriptor(NAME + "_kernel", 512, 102, 256))
    global STAMP_NAMES
    STAMP_NAMES = A.stamp_names
    return A.text()

if __name__ == "__main__":
    open("team.s", "w").write(gen_standalone(stamps=2))
```
